```python
import torch

def _softmax(x, axis=-1):
    return torch.softmax(x, dim=axis)
def _gelu(x):
    return torch.nn.functional.gelu(x, approximate="tanh")
def _silu(x):
    return torch.nn.functional.silu(x)
def _sigmoid(x):
    return torch.sigmoid(x)
def _layernorm(x, axis=-1, eps=1e-5):
    m = x.mean(dim=axis, keepdim=True)
    v = x.var(dim=axis, keepdim=True, unbiased=False)
    return (x - m) / torch.sqrt(v + eps)
def _scatter_add(tgt, idx, src, axis=0):
    return tgt.clone().index_add_(axis, idx, src)
def _segment_sum(src, seg, n):
    out = torch.zeros((n,) + src.shape[1:], dtype=src.dtype)
    return out.index_add_(0, seg, src)
def _pad(x, pw):
    flat = tuple(v for pair in reversed(pw) for v in pair)
    return torch.nn.functional.pad(x, flat)

kernel_name = 'parallel_sum__ssm_conv_s5__glu_gated_bilinear__prompt'

def setup_inputs():

    _w = (lambda a: (lambda t: t.to(torch.bfloat16) if t.is_floating_point() else t)(torch.as_tensor(a)))
    def _A_setup():
        B, S, D = 1, 2048, 512
        P = D
        Lambda_re = -0.5 * (lambda _x: torch.exp(torch.as_tensor(_x)))((lambda *s: torch.randn(*s, dtype=torch.bfloat16) * 0.2)(P))
        Lambda_im = (lambda *s: torch.randn(*s, dtype=torch.bfloat16) * 0.8)(P) * 1.0
        B_re = (lambda *s: torch.randn(*s, dtype=torch.bfloat16) * 0.2)(P, D) * (D ** -0.5)
        B_im = (lambda *s: torch.randn(*s, dtype=torch.bfloat16) * 0.2)(P, D) * (D ** -0.5)
        C_re = (lambda *s: torch.randn(*s, dtype=torch.bfloat16) * 0.2)(D, P) * (P ** -0.5)
        C_im = (lambda *s: torch.randn(*s, dtype=torch.bfloat16) * 0.2)(D, P) * (P ** -0.5)
        log_dt = (lambda *s: torch.randn(*s, dtype=torch.bfloat16) * 0.2)(P) * 0.3 - 2.0
        Dskip = (lambda *s: torch.randn(*s, dtype=torch.bfloat16) * 0.05)(D)
        return {
            "x": _w((lambda *s: torch.randn(*s, dtype=torch.bfloat16) * 0.05)(B, S, D)),
            "Lambda_re": _w(Lambda_re),
            "Lambda_im": _w(Lambda_im),
            "B_re": _w(B_re),
            "B_im": _w(B_im),
            "C_re": _w(C_re),
            "C_im": _w(C_im),
            "log_dt": _w(log_dt),
            "Dskip": _w(Dskip),
        }
    _A_in = _A_setup()

    def _B_setup():
        B, S, D, F = 1, 2048, 512, 1376
        return {
            "x": _w((lambda *s: torch.randn(*s, dtype=torch.bfloat16) * 0.05)(B, S, D)),
            "w_gate": _w((lambda *s: torch.randn(*s, dtype=torch.bfloat16) * 0.4)(D, F) * (D ** -0.5)),
            "w_up": _w((lambda *s: torch.randn(*s, dtype=torch.bfloat16) * 0.4)(D, F) * (D ** -0.5)),
            "w_down": _w((lambda *s: torch.randn(*s, dtype=torch.bfloat16) * 0.4)(F, D) * (F ** -0.5)),
        }
    _B_in = _B_setup()

    return {
        "A_x": _A_in["x"],
        "A_Lambda_re": _A_in["Lambda_re"],
        "A_Lambda_im": _A_in["Lambda_im"],
        "A_B_re": _A_in["B_re"],
        "A_B_im": _A_in["B_im"],
        "A_C_re": _A_in["C_re"],
        "A_C_im": _A_in["C_im"],
        "A_log_dt": _A_in["log_dt"],
        "A_Dskip": _A_in["Dskip"],
        "B_x": _B_in["x"],
        "B_w_gate": _B_in["w_gate"],
        "B_w_up": _B_in["w_up"],
        "B_w_down": _B_in["w_down"],
    }

def reference(A_x, A_Lambda_re, A_Lambda_im, A_B_re, A_B_im, A_C_re, A_C_im, A_log_dt, A_Dskip, B_x, B_w_gate, B_w_up, B_w_down):
    def _A_ref(x, Lambda_re, Lambda_im, B_re, B_im, C_re, C_im, log_dt, Dskip):
        Bsz, L, H = x.shape
        Lam = Lambda_re + 1j * Lambda_im
        Bmat = B_re + 1j * B_im
        Cmat = C_re + 1j * C_im
        dt = torch.exp(log_dt)
        Lam_bar = torch.exp(dt * Lam)
        B_bar = ((Lam_bar - 1.0) / Lam)[:, None] * Bmat
        Bu = torch.einsum("bld,pd->blp", x + 0j, B_bar)
        h = torch.zeros_like(Bu[:, 0, :])
        hs = []
        for t in range(L):
            h = Lam_bar[None, :] * h + Bu[:, t, :]
            hs.append(h)
        hseq = torch.stack(hs, 1)
        y = 2.0 * torch.einsum("blp,dp->bld", hseq, Cmat).real + x * Dskip[None, None, :]
        return y

    def _B_ref(x, w_gate, w_up, w_down):
        g = torch.einsum("bsd,df->bsf", x, w_gate)
        u = torch.einsum("bsd,df->bsf", x, w_up)
        h = g * u
        return torch.einsum("bsf,fd->bsd", h, w_down)

    x = A_x
    xn = _layernorm(x, axis=-1)
    return x + _A_ref(xn, A_Lambda_re, A_Lambda_im, A_B_re, A_B_im, A_C_re, A_C_im, A_log_dt, A_Dskip) + _B_ref(xn, B_w_gate, B_w_up, B_w_down)
```

```python
import re

TRANS = ("v_exp_f32", "v_log_f32", "v_rcp_f32", "v_rsq_f32", "v_sqrt_f32", "v_sin_f32", "v_cos_f32")
_reg = re.compile(r"^(-|abs\()?([vas])(?:(\d+)|\[(\d+):(\d+)\])\)?$")

def regs_of(tok):
    tok = tok.strip()
    if tok in ("vcc",): return {"vcc"}
    if tok in ("exec",): return {"exec"}
    if tok == "m0": return {"m0"}
    m = _reg.match(tok)
    if not m: return set()
    k = m.group(2)
    if m.group(3) is not None: return {f"{k}{m.group(3)}"}
    return {f"{k}{i}" for i in range(int(m.group(4)), int(m.group(5)) + 1)}

class Ins:
    __slots__ = ("text", "mn", "cls", "dst", "src", "srcC", "srcAB", "pos", "wide_store", "data")

def parse(text):
    t = text.split(";")[0].strip()
    mn, _, rest = t.partition(" ")
    ops = []
    depth = 0; cur = ""
    for ch in rest:
        if ch == "[": depth += 1
        if ch == "]": depth -= 1
        if ch == "," and depth == 0: ops.append(cur.strip()); cur = ""
        else: cur += ch
    if cur.strip(): ops.append(cur.strip())
    if ops: ops[-1] = ops[-1].split(" ")[0]
    R = [regs_of(o) for o in ops]
    I = Ins(); I.text = text; I.mn = mn; I.dst = set(); I.src = set(); I.srcC = set(); I.srcAB = set(); I.wide_store = False; I.data = set()
    U = lambda xs: set().union(*xs) if xs else set()
    if mn.startswith("v_mfma"):
        I.cls = "mfma"; I.dst = R[0]; I.srcAB = R[1] | R[2]; I.srcC = R[3]; I.src = I.srcAB | I.srcC
    elif mn.startswith("v_"):
        I.cls = "trans" if mn in TRANS else ("dot" if mn.startswith("v_dot") else "valu")
        I.dst = R[0]; I.src = U(R[1:])
        if mn.startswith("v_permlane"): I.dst = R[0] | R[1]; I.src = R[0] | R[1]
        if mn.startswith("v_dot2c") or mn.startswith("v_fmac"): I.src |= R[0]; I.srcC = R[0]
        if mn == "v_dot2_f32_bf16": I.srcC = R[3]
    elif mn.startswith("ds_read"):
        I.cls = "ds"; I.dst = R[0]; I.src = U(R[1:])
        if "d16" in mn: I.src |= R[0]
    elif mn.startswith("ds_"):
        I.cls = "ds"; I.src = U(R)
    elif mn.startswith("buffer_load") or mn.startswith("global_load"):
        I.cls = "vmem"
        if t.endswith(" lds"): I.src = U(R) | {"m0"}
        else: I.dst = R[0]; I.src = U(R[1:])
    elif mn.startswith("buffer_") or mn.startswith("global_"):
        I.cls = "vmem"; I.src = U(R)
        if "x4" in mn or "x3" in mn: I.wide_store = True; I.data = R[0]
    elif mn.startswith("s_"):
        I.cls = "salu"
        if mn.startswith(("s_cmp", "s_bitcmp", "s_cbranch", "s_waitcnt", "s_barrier", "s_nop", "s_branch", "s_sleep", "s_endpgm", "s_setprio")):
            I.src = U(R)
        else:
            I.dst = R[0]; I.src = U(R[1:])
    else:
        raise ValueError(text)
    return I

def isv(r): return r[0] in "va" and r != "vcc"
def iss(r): return r[0] == "s" or r == "vcc"

def need(p, c):
    n = 0
    pv = p.cls in ("valu", "trans", "dot")
    cv = c.cls in ("valu", "trans", "dot")
    if pv:
        raw = p.dst & c.src
        rawv = {r for r in raw if isv(r)}; raws = {r for r in raw if iss(r)}
        if c.cls == "mfma" and rawv: n = max(n, 3 if p.cls == "dot" else 2)
        if cv:
            if p.cls == "trans" and rawv: n = max(n, 1)
            if (c.mn.startswith("v_permlane") or c.mn.endswith("_dpp")) and rawv: n = max(n, 2)
            if c.mn.startswith(("v_readfirstlane", "v_readlane")) and rawv: n = max(n, 1)
            if raws: n = max(n, 2)
        if c.cls == "vmem" and raws: n = max(n, 5)
        if c.cls == "salu" and raws: n = max(n, 2)
        if p.cls == "dot":
            touch = p.dst & (c.src | c.dst)
            if touch:
                if c.mn == p.mn and not (p.dst & (c.src - c.srcC)) : pass
                else: n = max(n, 3)
    if p.cls == "mfma":
        if c.cls == "mfma":
            if p.dst & c.srcAB: n = max(n, 12)
            if p.dst & c.srcC and p.dst != c.srcC: n = max(n, 10)
            if p.dst & c.dst and p.dst != c.srcC: n = max(n, 12)
        else:
            if p.dst & (c.src | c.dst): n = max(n, 12)
            if cv and (p.srcC & c.dst): n = max(n, 7)
    if p.cls == "salu" and "m0" in p.dst and c.cls == "vmem" and "m0" in c.src: n = max(n, 1)
    if p.wide_store and (p.data & c.dst): n = max(n, 2)
    return n

class Emitter:
    def __init__(self):
        self.lines = []; self.hist = []; self.pos = 0
        self.vm = []; self.vm_done = 0
        self.lg = []; self.lg_done = 0
        self.cond = None
        self.nops = 0; self.count = 0; self.nvec = 0
        self.barriers = []
    def raw(self, s): self.lines.append(s)
    def label(self, s): self.lines.append(s + ":")
    def comment(self, s): self.lines.append("; " + s)
    def I(self, text):
        ins = parse(text)
        k = 0
        for p in self.hist:
            k = max(k, need(p, ins) - (self.pos - p.pos - 1))
        while k > 0:
            n = min(k, 16); self.lines.append(f"  s_nop {n-1}"); self.pos += n; k -= n; self.nops += 1
        ins.pos = self.pos
        self.pos += (int(text.split()[1]) + 1) if ins.mn == "s_nop" else 1
        self.hist.append(ins); self.hist = [h for h in self.hist if self.pos - h.pos < 24]
        self.lines.append("  " + text); self.count += 1
        if ins.cls != "salu": self.nvec += 1
        return ins
    def VM(self, text, tag=None):
        self.I(text)
        if self.cond is None: self.vm.append(tag)
    def DS(self, text, tag=None):
        self.I(text)
        assert self.cond is None
        self.lg.append(tag)
    def last(self, lst, tag):
        for i in range(len(lst) - 1, -1, -1):
            if lst[i] == tag: return i + 1
        raise KeyError(tag)
    def wait(self, vm=(), lg=()):
        parts = []
        if isinstance(vm, str) or not hasattr(vm, "__iter__"): vm = [vm]
        if isinstance(lg, str) or not hasattr(lg, "__iter__"): lg = [lg]
        nv = max([self.last(self.vm, t) for t in vm], default=0)
        nl = max([self.last(self.lg, t) for t in lg], default=0)
        if nv > self.vm_done:
            n = min(len(self.vm) - nv, 63); parts.append(f"vmcnt({n})"); self.vm_done = len(self.vm) - n
        if nl > self.lg_done:
            n = min(len(self.lg) - nl, 15); parts.append(f"lgkmcnt({n})"); self.lg_done = len(self.lg) - n
        if parts: self.I("s_waitcnt " + " ".join(parts))
    def wait_all(self, vm=False, lg=False):
        parts = []
        if vm: parts.append("vmcnt(0)"); self.vm_done = len(self.vm)
        if lg: parts.append("lgkmcnt(0)"); self.lg_done = len(self.lg)
        self.I("s_waitcnt " + " ".join(parts))
    def barrier(self):
        self.I("s_barrier"); self.barriers.append((self.vm_done, self.lg_done))
    def begin_cond(self): self.cond = self.pos
    def end_cond(self):
        d = self.pos - self.cond
        for h in self.hist:
            if h.pos < self.cond: h.pos += d
        self.cond = None
    def text(self): return "\n".join(self.lines) + "\n"
```

```python
import sys
from emit import Emitter
NAME = "parallel_sum__ssm_conv_s5__glu_gated_bilinear__prompt"
OPT = dict(stamps=0, D=4, efetch=72, echeck=92, hflag=7, poll1=184)
for a in sys.argv[2:]:
    k, v = a.split("="); OPT[k] = int(v)

WS_EB = 0xA00000; WS_FH = 0xA40000; WS_FG = 0xA42000; WS_ST = 0xC00000; WS_SIZE = 0xD00000
U8 = 8192
MISC = 18 * U8
RTAB = MISC; MTAB = MISC + 512; EQ = MISC + 1024; ZT = MISC + 4864; HS = MISC + 7168; XE = MISC + 7168
LDS_BYTES = 163840
OOB = 0x80000000
sW_, sC_, sG_, sGL, sGH, sJ0 = "s3", "s4", "s5", "s6", "s7", "s8"
sT0, sT1, sT2, sT3 = "s9", "s10", "s11", "s12"
SX, SS, SG, SC, SWD, SWS, SOUT, SDBG = ("s[48:51]", "s[52:55]", "s[56:59]", "s[60:63]", "s[64:67]", "s[68:71]", "s[72:75]", "s[76:79]")
sM4, sM2, sM6 = "s80", "s81", "s82"
sQW, sQHG = "s83", "s84"
sSO = "s85"
sHST, sHST2 = "s86", "s87"
sHG = ["s88", "s89", "s94"]
sNON, sC10, sC01, sC11 = "s90", "s91", "s92", "s93"
sFH, sFG = "s95", "s96"
sSPIN = "s97"
sST = "s[98:99]"
vLANE = "v1"
vP1 = [2, 3, 4, 5]; vGT = 6; vGo = [7, 8, 9]; vSo = [10, 11]; vXo = [12, 13, 14, 15]
vR2, vNM = 16, 17
vLR, vLI, vCR, vCI = 18, 19, 20, 21
vL16, vL128, vL256, vPQ = 22, 24, 26, 28
vE, vE2, vP = 30, 32, 34
vRT = 36
vTAB, vEQA, vPOLL, vDSK = 44, 45, 46, 47
ACC_R, ACC_I = 48, 64
ACC_G = 80
XF = 128
A_U = 0; A_FB = 48; NFB = 16

E = Emitter()
I, VM, DS = E.I, E.VM, E.DS
def v(n, k=1): return f"v{n}" if k == 1 else f"v[{n}:{n+k-1}]"
def a(n, k=1): return f"a{n}" if k == 1 else f"a[{n}:{n+k-1}]"
slow = []
nstamp = [0]
def stamp():
    if not OPT["stamps"]: return
    I(f"s_memtime {sST}"); E.wait_all(lg=True)
    I(f"v_writelane_b32 v0, s98, {nstamp[0]}"); nstamp[0] += 1

def cmul(d, x, y, t):
    I(f"v_mul_f32 {v(t)}, {v(x)}, {v(y)}"); I(f"v_mul_f32 {v(t+1)}, {v(x)}, {v(y+1)}")
    I(f"v_fma_f32 {v(t)}, -{v(x+1)}, {v(y+1)}, {v(t)}"); I(f"v_fma_f32 {v(d+1)}, {v(x+1)}, {v(y)}, {v(t+1)}")
    I(f"v_mov_b32 {v(d)}, {v(t)}")
def cfma_ops(d, L, x, br, bi):
    return [f"v_fma_f32 {v(d[0])}, {v(L)}, {v(x[0])}, {v(br)}", f"v_fma_f32 {v(d[1])}, {v(L)}, {v(x[1])}, {v(bi)}",
            f"v_fma_f32 {v(d[0])}, -{v(L+1)}, {v(x[1])}, {v(d[0])}", f"v_fma_f32 {v(d[1])}, {v(L+1)}, {v(x[0])}, {v(d[1])}"]
def bf16r(d, s):
    I(f"v_cvt_pk_bf16_f32 {v(d)}, {v(s)}, {v(s)}"); I(f"v_and_b32 {v(d)}, 0xffff0000, {v(d)}")

class Item:
    def __init__(s, name, base, size, private=False):
        s.name, s.base, s.size, s.private = name, base, size, private
        s.last_read = None; s.reads_done = False; s.ndma = 0
items = {}
live = []
def place(name, base, size, private=False):
    for o in list(live):
        if o.base < base + size and base < o.base + o.size:
            assert o.reads_done, (name, "overlaps unread", o.name)
            assert any(lg >= o.last_read for (_, lg) in E.barriers[o.bar_at_last_read:]), (name, "WAR: no covering barrier after reads of", o.name)
            live.remove(o)
    it = Item(name, base, size, private); items[name] = it; live.append(it); return it
def check_read(it):
    nv = E.last(E.vm, it.name)
    if it.private: assert E.vm_done >= nv, it.name
    else: assert any(vm >= nv for (vm, _) in E.barriers), ("RAW", it.name)
def note_read(it, last=False):
    it.last_read = len(E.lg); it.bar_at_last_read = len(E.barriers)
    if last: it.reads_done = True

def kc_soff(i, mul, add=0):
    I(f"s_add_u32 {sSO}, {sJ0}, {i}"); I(f"s_and_b32 {sSO}, {sSO}, 7"); I(f"s_mul_i32 {sSO}, {sSO}, {mul}")
    if add: I(f"s_add_u32 {sSO}, {sSO}, {add}")
def dma_ops(name, base, size, srd, sm, voffs, prep, private=False, pol="", split=None):
    ops = []
    def first():
        place(name, base, size, private); prep(); I(f"s_add_u32 m0, {sm}, {base}")
        VM(f"buffer_load_dwordx4 {v(voffs[0])}, {srd}, {sSO} offen{pol} lds", name)
    ops.append(first)
    for q in range(1, len(voffs)):
        ops.append(lambda q=q: VM(f"buffer_load_dwordx4 {v(voffs[q])}, {srd}, {sSO} offen offset:{q*1024}{pol} lds", name))
    if split:
        m0_add, soff_add = split
        def second():
            I(f"s_add_u32 {sSO}, {sSO}, {soff_add}"); I(f"s_add_u32 m0, {sm}, {base + m0_add}")
            VM(f"buffer_load_dwordx4 {v(voffs[0])}, {srd}, {sSO} offen{pol} lds", name)
        ops.append(second)
        for q in range(1, len(voffs)):
            ops.append(lambda q=q: VM(f"buffer_load_dwordx4 {v(voffs[q])}, {srd}, {sSO} offen offset:{q*1024}{pol} lds", name))
    return ops
X_BASE = [2 * i * U8 for i in range(8)]
S_BASE = [16 * U8, 17 * U8] + [i * U8 for i in range(6)]
G_BASE = [6 * U8, 9 * U8, 12 * U8, 15 * U8, 0, 3 * U8, 6 * U8, 9 * U8]
vCo = [144, 145, 146, 147]; vWo = [148, 149, 150, 151]; vHo = 152; vXEo = [153, 154]
vHST = 155; vHSW = 156; vHSR = 157; vFL = 158; vOUT = 159
def X_ops(i): return dma_ops(f"X{i}", X_BASE[i], 16384, SX, sM4, vXo, lambda: kc_soff(i, 128), private=True)
def S_ops(i): return dma_ops(f"S{i}", S_BASE[i], 8192, SS, sM2, vSo, lambda: kc_soff(i, 128))
def G_ops(i): return dma_ops(f"G{i}", G_BASE[i], 24576, SG, sM6, vGo, lambda: kc_soff(i, 64 * 2752), split=(3072, 16 * 2752))
def C_ops(i, sl): return dma_ops(f"C{i}", sl * 16384, 16384, SC, sM4, vCo, lambda: kc_soff(i, 128))
def H_ops(i, sl): return dma_ops(f"H{i}", sl * 16384, 16384, SWS, sM4, [vHo] * 4, lambda: kc_soff(i, 8192), pol=" sc1")
def adv11(s):
    I(f"s_add_u32 {s}, {s}, 1"); I(f"s_cmp_eq_u32 {s}, 11"); I(f"s_cselect_b32 {s}, 0, {s}")
def W_ops(i, sl):
    def prep():
        I(f"s_lshl_b32 {sSO}, {sQW}, 17"); adv11(sQW)
    return dma_ops(f"W{i}", sl * 16384, 16384, SWD, sM4, vWo, prep)
def HG_ops(i, sl):
    def prep():
        I(f"s_lshl_b32 {sSO}, {sQHG}, 13"); I(f"s_add_u32 {sSO}, {sSO}, 65536"); adv11(sQHG)
    return dma_ops(f"HG{i}", sl * 16384, 16384, SWS, sM4, [vHo] * 4, prep, pol=" sc1")
def XE_ops(): return dma_ops("XE", XE, 8192, SX, sM2, vXEo, lambda: I(f"s_mov_b32 {sSO}, 0"))

def spin_guard(lbl_loop, lbl_back):
    return [f"  s_add_u32 {sSPIN}, {sSPIN}, 1", f"  s_cmp_gt_u32 {sSPIN}, 0x40000", f"  s_cbranch_scc1 {lbl_back}"]

E.label(f"{NAME}_kernel")
I("s_cmp_ge_u32 s2, 256"); I("s_cbranch_scc1 L_end")
I("s_load_dwordx16 s[16:31], s[0:1], 0"); I("s_load_dwordx16 s[32:47], s[0:1], 64")
I("s_memrealtime s[14:15]")
I(f"v_and_b32 {vLANE}, 63, v0"); I("v_lshrrev_b32 v80, 6, v0"); I(f"v_readfirstlane_b32 {sW_}, v80")
I(f"s_and_b32 {sGH}, s2, 1"); I(f"s_bfe_u32 {sT0}, s2, 0x20001")
I(f"s_lshr_b32 {sT1}, s2, 6")
I(f"s_lshl_b32 {sC_}, {sT0}, 2"); I(f"s_add_u32 {sC_}, {sC_}, {sT1}")
I(f"s_bfe_u32 {sGL}, s2, 0x30003")
I(f"s_lshl_b32 {sG_}, {sGH}, 3"); I(f"s_add_u32 {sG_}, {sG_}, {sGL}")
I(f"s_lshl_b32 {sJ0}, {sT1}, 1"); I(f"s_add_u32 {sJ0}, {sJ0}, {sGL}"); I(f"s_and_b32 {sJ0}, {sJ0}, 7")
I(f"s_mul_i32 {sQW}, {sGL}, 11"); I(f"s_lshr_b32 {sQW}, {sQW}, 3"); I(f"s_mul_i32 {sT2}, {sT1}, 3"); I(f"s_add_u32 {sQW}, {sQW}, {sT2}")
I(f"s_sub_u32 {sT2}, {sQW}, 11"); I(f"s_cmp_ge_u32 {sQW}, 11"); I(f"s_cselect_b32 {sQW}, {sT2}, {sQW}"); I(f"s_mov_b32 {sQHG}, {sQW}")
I(f"s_lshl_b32 {sM4}, {sW_}, 12"); I(f"s_lshl_b32 {sM2}, {sW_}, 11"); I(f"s_mul_i32 {sM6}, {sW_}, 6144")
I(f"s_mov_b32 {sSPIN}, 0")
I(f"v_lshrrev_b32 v81, 3, {vLANE}"); I(f"v_and_b32 v82, 7, {vLANE}")
I("v_lshrrev_b32 v84, 1, v81"); I("v_xor_b32 v83, v82, v84"); I("v_lshlrev_b32 v83, 4, v83")
I("v_lshrrev_b32 v84, 2, v81"); I("v_lshlrev_b32 v84, 4, v84"); I("v_and_b32 v85, 3, v81"); I("v_add_u32 v84, v84, v85")
I(f"s_lshl_b32 {sT0}, {sC_}, 7"); I(f"s_lshl_b32 {sT1}, {sW_}, 5"); I(f"s_add_u32 {sT0}, {sT0}, {sT1}")
I(f"v_add_u32 v84, {sT0}, v84"); I("v_lshlrev_b32 v84, 10, v84")
I("v_xor_b32 v85, 64, v83")
I(f"v_add_u32 {v(vXo[0])}, v84, v83"); I(f"v_add_u32 {v(vXo[1])}, v84, v85")
I(f"v_add_u32 {v(vXo[2])}, 6144, {v(vXo[0])}"); I(f"v_add_u32 {v(vXo[3])}, 9216, {v(vXo[1])}"); I(f"v_add_u32 {v(vXo[1])}, 3072, {v(vXo[1])}")
I(f"v_and_b32 v86, 31, {vLANE}"); I(f"s_lshl_b32 {sT0}, {sG_}, 5"); I(f"v_add_u32 v87, {sT0}, v86"); I("v_lshlrev_b32 v87, 1, v87")
I(f"s_and_b32 {sT1}, {sW_}, 1"); I(f"s_lshl_b32 {sT1}, {sT1}, 5"); I(f"s_lshl_b32 {sT2}, {sGL}, 6"); I(f"s_add_u32 {sT1}, {sT1}, {sT2}")
I(f"v_add_u32 v88, {sT1}, v86"); I("v_lshlrev_b32 v88, 1, v88")
E.wait_all(lg=True)
def srd(dst, lo, hi, size):
    n = int(dst[2:dst.index(":")])
    I(f"s_mov_b32 s{n}, s{lo}"); I(f"s_mov_b32 s{n+1}, s{hi}"); I(f"s_mov_b32 s{n+2}, {size}"); I(f"s_mov_b32 s{n+3}, 0x20000")
def srd_sel(dst, p0, p1, size):
    n = int(dst[2:dst.index(":")])
    I(f"s_cselect_b32 s{n}, s{p1}, s{p0}"); I(f"s_cselect_b32 s{n+1}, s{p1+1}, s{p0+1}"); I(f"s_mov_b32 s{n+2}, {size}"); I(f"s_mov_b32 s{n+3}, 0x20000")
srd(SX, 16, 17, 2097152)
stamp()
for i in range(2):
    for op in X_ops(i): op()
VM("global_load_ushort v90, v87, s[30:31]", "par"); VM("global_load_ushort v91, v87, s[18:19]", "par")
VM("global_load_ushort v92, v87, s[20:21]", "par"); VM(f"global_load_ushort {v(vDSK)}, v88, s[32:33]", "par")
srd(SDBG, 44, 45, 256)
I(f"s_or_b32 {sT0}, s2, {sW_}"); I(f"s_cmp_lg_u32 {sT0}, 0"); I("s_cbranch_scc1 L_notag")
E.begin_cond()
I("s_or_b32 s14, s14, 1"); I("v_mov_b32 v93, s14"); I("v_mov_b32 v94, 0"); I("s_mov_b64 exec, 1")
VM(f"buffer_store_dword v93, v94, {SDBG}, 0 offen sc1"); I("s_mov_b64 exec, -1")
E.end_cond(); E.label("L_notag")
for op in X_ops(2): op()
I(f"s_cmp_ge_u32 {sW_}, 2")
srd_sel(SS, 22, 24, 524288); srd_sel(SG, 36, 38, 1409024); srd_sel(SC, 26, 28, 524288)
srd(SWD, 40, 41, 1409024); srd(SWS, 46, 47, WS_SIZE); srd(SOUT, 42, 43, 4194304)
I(f"s_mov_b32 {sC10}, 0x00003f80"); I(f"s_mov_b32 {sC01}, 0x3f800000"); I(f"s_mov_b32 {sC11}, 0x3f803f80")
I(f"s_and_b32 {sT1}, {sW_}, 1"); I(f"s_lshl_b32 {sT2}, {sT1}, 4"); I(f"s_lshl_b32 {sT0}, {sG_}, 5"); I(f"s_add_u32 {sT0}, {sT0}, {sT2}")
I(f"v_add_u32 v84, {sT0}, v81"); I("v_lshlrev_b32 v84, 10, v84")
I(f"v_add_u32 {v(vSo[0])}, v84, v83"); I(f"v_add_u32 {v(vSo[1])}, v84, v85"); I(f"v_add_u32 {v(vSo[1])}, 7168, {v(vSo[1])}")
I(f"s_mul_i32 {sT0}, {sT1}, {32*2752}"); I(f"s_mul_i32 {sT2}, {sG_}, 192"); I(f"s_add_u32 {sT0}, {sT0}, {sT2}")
I(f"s_mul_i32 {sT2}, {sG_}, 3"); I(f"s_mov_b32 {sT3}, 2752")
assert all((n * 43691) >> 19 == n // 12 for n in range(192))
I(f"v_mov_b32 v99, {OOB}")
for i in range(3):
    I(f"v_add_u32 v95, {64*i}, {vLANE}"); I("v_mul_u32_u24 v96, 43691, v95"); I("v_lshrrev_b32 v96, 19, v96")
    I("v_mul_u32_u24 v97, 12, v96"); I("v_sub_u32 v97, v95, v97")
    I(f"v_mul_lo_u32 v96, v96, {sT3}"); I("v_lshl_add_u32 v96, v97, 4, v96"); I(f"v_add_u32 v96, {sT0}, v96")
    if i: I(f"v_subrev_u32 v96, {1024*i}, v96")
    I("v_lshrrev_b32 v97, 2, v97"); I(f"v_add_u32 v97, {sT2}, v97"); I("v_cmp_gt_u32 vcc, 43, v97")
    I(f"v_cndmask_b32 {v(vGo[i])}, v99, v96, vcc")
I(f"v_lshrrev_b32 v95, 5, {vLANE}")
I("v_bfe_u32 v96, v86, 1, 3"); I("v_xor_b32 v96, v96, v95"); I("v_lshlrev_b32 v96, 4, v96"); I("v_lshl_add_u32 v96, v86, 7, v96")
I(f"v_add_u32 {v(vP1[0])}, {sM4}, v96")
for s in range(1, 4): I(f"v_xor_b32 {v(vP1[s])}, {32*s}, {v(vP1[0])}")
I(f"v_bfe_u32 v96, {vLANE}, 2, 2"); I("v_lshl_add_u32 v96, v95, 3, v96")
I(f"v_mul_u32_u24 {v(vGT)}, 192, v96")
I(f"v_and_b32 v97, 16, {vLANE}"); I(f"v_lshl_add_u32 {v(vGT)}, v97, 1, {v(vGT)}")
I(f"v_and_b32 v97, 1, {vLANE}"); I(f"v_lshl_add_u32 {v(vGT)}, v97, 4, {v(vGT)}")
I(f"v_and_b32 v97, 2, {vLANE}"); I(f"v_lshl_add_u32 {v(vGT)}, v97, 2, {v(vGT)}")
I(f"s_lshl_b32 {sT0}, {sW_}, 9"); I(f"s_add_u32 {sT0}, {sT0}, {EQ}")
I(f"v_lshlrev_b32 {v(vEQA)}, 8, v95"); I(f"v_lshl_add_u32 {v(vEQA)}, v86, 3, {v(vEQA)}"); I(f"v_add_u32 {v(vEQA)}, {sT0}, {v(vEQA)}")
I(f"s_lshl_b32 {sT0}, {sW_}, 7"); I(f"s_add_u32 {sT0}, {sT0}, {RTAB}")
I(f"v_lshlrev_b32 {v(vTAB)}, 6, v95"); I(f"v_add_u32 {v(vTAB)}, {sT0}, {v(vTAB)}")
I("v_bfe_u32 v97, v86, 2, 1"); I("v_lshlrev_b32 v89, 4, v97"); I("v_lshrrev_b32 v97, 3, v86"); I("v_lshl_add_u32 v89, v97, 2, v89")
I("v_and_b32 v97, 3, v86"); I("v_add_u32 v89, v89, v97"); I("v_lshlrev_b32 v89, 2, v89"); I(f"v_add_u32 v89, {sT0}, v89")
I("v_mov_b32 v100, 0"); I("v_mov_b32 v101, 0"); I(f"s_lshl_b32 {sT0}, {sW_}, 9"); I(f"s_add_u32 {sT0}, {sT0}, {EQ}")
I(f"v_lshlrev_b32 v97, 3, {vLANE}"); I(f"v_add_u32 v97, {sT0}, v97")
DS("ds_write_b64 v97, v[100:101]", "eqz")
E.wait(vm="par")
LOG2E = "0x3fb8aa3b"
I("v_lshlrev_b32 v90, 16, v90"); I("v_lshlrev_b32 v91, 16, v91"); I("v_lshlrev_b32 v92, 16, v92"); I(f"v_lshlrev_b32 {v(vDSK)}, 16, {v(vDSK)}")
I(f"v_mul_f32 v90, {LOG2E}, v90"); I("v_exp_f32 v90, v90"); bf16r(90, 90)
I("v_mul_f32 v93, v90, v91"); I("v_mul_f32 v94, v90, v92")
I(f"v_mul_f32 v93, {LOG2E}, v93"); I("v_exp_f32 v93, v93")
I("v_mul_f32 v94, 0.15915494, v94"); I("v_rndne_f32 v97, v94"); I("v_sub_f32 v94, v94, v97")
I("v_cos_f32 v97, v94"); I("v_sin_f32 v98, v94")
I(f"v_mul_f32 {v(vLR)}, v93, v97"); I("v_mul_f32 v98, v93, v98")
I(f"v_add_f32 v97, -1.0, {v(vLR)}")
I("v_mul_f32 v93, v91, v91"); I("v_fmac_f32 v93, v92, v92"); I("v_rcp_f32 v93, v93"); I("v_add_f32 v93, v93, v93")
I(f"v_mul_f32 {v(vCR)}, v97, v91"); I(f"v_fmac_f32 {v(vCR)}, v98, v92"); I(f"v_mul_f32 {v(vCR)}, {v(vCR)}, v93")
I(f"v_mul_f32 {v(vCI)}, v98, v91"); I(f"v_fma_f32 {v(vCI)}, -v97, v92, {v(vCI)}"); I(f"v_mul_f32 {v(vCI)}, {v(vCI)}, v93")
I(f"v_sub_f32 {v(vLI)}, 0, v98")
cmul(102, vLR, vLR, 110); cmul(102, 102, 102, 110); cmul(102, 102, 102, 110); cmul(vL16, 102, 102, 110)
cmul(104, vL16, vL16, 110); cmul(106, 104, 104, 110); cmul(vL128, 106, 106, 110); cmul(vL256, vL128, vL128, 110)
I(f"v_cmp_lt_u32 vcc, 31, {vLANE}")
I(f"v_cndmask_b32 {v(vPQ)}, 1.0, {v(vL16)}, vcc"); I(f"v_cndmask_b32 {v(vPQ+1)}, 0, {v(vL16+1)}, vcc")
for bit, L in ((1, 104), (2, 106)):
    I(f"s_and_b32 {sT0}, {sW_}, {bit}"); I("s_cselect_b64 vcc, -1, 0")
    I(f"v_cndmask_b32 v108, 1.0, {v(L)}, vcc"); I(f"v_cndmask_b32 v109, 0, {v(L+1)}, vcc")
    cmul(vPQ, vPQ, 108, 110)
for r in range(112, 120): I(f"v_mov_b32 v{r}, 0")
nxt = {0: X_ops(3), 1: X_ops(4), 2: X_ops(5), 3: X_ops(6), 4: X_ops(7), 5: S_ops(0) + S_ops(1), 6: S_ops(2) + S_ops(3), 7: S_ops(4) + S_ops(5)}
for i in range(8):
    it = items[f"X{i}"]
    if i == 4:
        for s in range(4): I(f"v_add_u32 {v(vP1[s])}, 65536, {v(vP1[s])}")
    E.wait(vm=it.name)
    if i == 5: E.barrier()
    check_read(it)
    for s in range(4):
        DS(f"ds_read_b128 {v(XF + 16*i + 4*s, 4)}, {v(vP1[s])} offset:{it.base & 0xffff}", f"xr{i}_{s}"); note_read(it, s == 3)
    for op in nxt[i]: op()
    for s in range(4):
        E.wait(lg=f"xr{i}_{s}")
        for d in range(4):
            x = v(XF + 16*i + 4*s + d)
            I(f"v_dot2c_f32_bf16 v{112+d}, {sC11}, {x}"); I(f"v_dot2c_f32_bf16 v{116+d}, {x}, {x}")
    if i in (0, 7): stamp()
for op in S_ops(6) + S_ops(7): op()
I("v_mov_b32 v94, 0")
VM(f"buffer_load_dword {v(vPOLL)}, v94, {SDBG}, 0 offen sc1", "tag")
I("v_add_f32 v112, v112, v113"); I("v_add_f32 v114, v114, v115"); I("v_add_f32 v116, v116, v117"); I("v_add_f32 v118, v118, v119")
I("v_add_f32 v112, v112, v114"); I("v_add_f32 v116, v116, v118")
I("v_mov_b32 v113, v112"); I("v_mov_b32 v117, v116")
I("v_permlane32_swap_b32 v112, v113"); I("v_permlane32_swap_b32 v116, v117")
I("v_add_f32 v112, v112, v113"); I("v_add_f32 v116, v116, v117")
I("v_mul_f32 v112, 0x3b000000, v112"); I("v_mul_f32 v116, 0x3b000000, v116")
I("v_fma_f32 v116, -v112, v112, v116"); I("v_max_f32 v116, 0, v116")
bf16r(113, 112)
I(f"v_sub_f32 {v(vNM)}, 0, v113")
bf16r(116, 116); I("v_add_f32 v116, 0x3727c5ac, v116"); bf16r(116, 116); I("v_sqrt_f32 v116, v116"); bf16r(116, 116)
I("v_rcp_f32 v116, v116")
DS(f"ds_write_b32 v89, v113 offset:512", "tabw")
DS(f"ds_write_b32 v89, v116", "tabw")
I(f"v_mul_f32 {v(vR2)}, v116, v116")
I(f"s_sub_u32 {sT0}, 65536, {sM4}")
for s in range(4): I(f"v_add_u32 {v(vP1[s])}, {sT0}, {v(vP1[s])}")
p1_win = [131072]

qV, qD = [], []
marks = set()
def mark(m): return ("mark", m)
def run_op(op):
    if isinstance(op, tuple): marks.add(op[1]); return 0
    if isinstance(op, str): I(op); return 1
    op(); return 1
def popV(n):
    while qV and (n > 0 or isinstance(qV[0], tuple)): n -= run_op(qV.pop(0))
def popD(n):
    while qD and n > 0: n -= run_op(qD.pop(0))
def need_mark(m):
    while m not in marks: run_op(qV.pop(0))
def need_item(name):
    while name not in items or qD and getattr(qD[0], "item", None) == name: run_op(qD.pop(0))
def pushD(ops, name):
    for op in ops: op.item = name
    qD.extend(ops)

fb = [0]
def newfb():
    r = A_FB + 4 * (fb[0] % NFB); fb[0] += 1; return r

class Slot: pass
slots = []
def add_slot(chunk, reads, mfma, needs=(), nV=3, dper=2):
    s = Slot(); s.chunk, s.reads, s.mfma, s.needs, s.nV, s.dper = chunk, reads, mfma, needs, nV, dper; slots.append(s)

def center_ops(f):
    ops = []
    for d in range(4):
        x = v(XF + 4*f + d)
        ops.append(f"v_dot2_f32_bf16 v{80+2*d}, {x}, {sC10}, {v(vNM)}"); ops.append(f"v_dot2_f32_bf16 v{81+2*d}, {x}, {sC01}, {v(vNM)}")
    for d in range(4): ops.append(f"v_cvt_pk_bf16_f32 {v(XF + 4*f + d)}, v{80+2*d}, v{81+2*d}")
    ops.append(mark(f"cen{f}"))
    return ops
for i in range(8):
    for s in range(4):
        f = 4*i + s
        for comp in range(2):
            acc = v(ACC_I if comp else ACC_R, 16)
            add_slot(f"S{i}", [("p1", f"S{i}", s, comp * 4096, s == 3 and comp == 1)],
                     lambda b, f=f, acc=acc: f"v_mfma_f32_32x32x16_bf16 {acc}, {v(XF+4*f,4)}, {a(b[0],4)}, {acc if f else 0}",
                     needs=[f"cen{f}"], nV=6, dper=2)
P2 = len(slots)
for i in range(8):
    order = [(s, u, m) for s in range(4) for u in range(3) for m in range(2)]
    if i == 7: order = [(s, u, m) for u in range(3) for s in range(4) for m in range(2)]
    for n, (s, u, m) in enumerate(order):
        f = 4*i + s
        acc = a(A_U + 16*u, 16) if m else v(ACC_G + 16*u, 16)
        add_slot(f"G{i}", [("gt", f"G{i}", m * 12288 + 16*s*192 + 64*u, n == 23)],
                 lambda b, f=f, acc=acc: f"v_mfma_f32_32x32x16_bf16 {acc}, {a(b[0],4)}, {v(XF+4*f,4)}, {acc if f else 0}", nV=3, dper=2)
P3 = len(slots)
ACC3 = 48
vHR, vWT = 160, 161; vC1 = [162, 163, 164, 165]; vXR = 166; vTAB3 = 167
for i in range(8):
    for s in range(8):
        first = (i == 0 and s == 0)
        add_slot(f"H{i}", [("lin", f"H{i}", s * 1024, s == 7), ("c1", f"C{i}", s & 3, (s >> 2) * 8192, s == 7)],
                 lambda b, first=first: f"v_mfma_f32_32x32x16_bf16 {v(ACC3,16)}, {a(b[0],4)}, {a(b[1],4)}, {0 if first else v(ACC3,16)}", nV=4, dper=1)
P3U = len(slots)
for i in range(11):
    for s in range(8):
        add_slot(f"U{i}", [("lin", f"HG{i}", s * 1024, s == 7), ("wt", f"W{i}", 16*s*128, s == 7)],
                 lambda b: f"v_mfma_f32_32x32x16_bf16 {v(ACC3,16)}, {a(b[0],4)}, {a(b[1],4)}, {v(ACC3,16)}", nV=4, dper=1)
M = len(slots)

win = {"gt": 0, "lin": 0, "c1": 0, "wt": 0}
def set_win(kind, regs, base, span):
    cur = p1_win[0] if kind == "p1" else win[kind]
    if not (cur <= base and base + span <= cur + 65536):
        new = base if base + 65536 > MISC else (base // 49152) * 49152
        if not (new <= base and base + span <= new + 65536): new = base
        for r in regs: I(f"v_add_u32 {v(r)}, {(new - cur) & 0xffffffff}, {v(r)}")
        cur = new
        if kind == "p1": p1_win[0] = cur
        else: win[kind] = cur
    return cur
def emit_reads(m):
    s = slots[m]; s.bufs = []; s.tags = []
    for rd in s.reads:
        kind, name = rd[0], rd[1]; it = items[name]; check_read(it)
        b = newfb(); s.bufs.append(b); tag = f"rd{m}_{kind}"; s.tags.append(tag)
        if kind in ("p1", "c1"):
            regs = vP1 if kind == "p1" else vC1
            w = set_win(kind, regs, it.base, it.size)
            DS(f"ds_read_b128 {a(b,4)}, {v(regs[rd[2]])} offset:{it.base - w + rd[3]}", tag)
        elif kind == "lin":
            w = set_win(kind, [vHR], it.base, it.size)
            DS(f"ds_read_b128 {a(b,4)}, {v(vHR)} offset:{it.base - w + rd[2]}", tag)
        else:
            reg, pitch = (vGT, 192) if kind == "gt" else (vWT, 128)
            w = set_win(kind, [reg], it.base, it.size)
            DS(f"ds_read_b64_tr_b16 {a(b,2)}, {v(reg)} offset:{it.base - w + rd[2]}", tag)
            DS(f"ds_read_b64_tr_b16 {a(b+2,2)}, {v(reg)} offset:{it.base - w + rd[2] + 4*pitch}", tag)
        note_read(it, rd[-1])

events = {}
bevents = {}
def at(m, fn): events.setdefault(m, []).append(fn)
def after_b(chunk, fn): bevents.setdefault(chunk, ([], []))[1].append(fn)
def wait_b(chunk, tag): bevents.setdefault(chunk, ([], []))[0].append(tag)
def chunk_items(chunk):
    k, i = chunk[0], chunk[1:]
    return {"S": [f"S{i}"], "G": [f"G{i}"], "H": [f"C{i}", f"H{i}"], "U": [f"W{i}", f"HG{i}"]}[k]
first_slot = {}
for m, s in enumerate(slots): first_slot.setdefault(s.chunk, m)
def free_at(chunk, fn):
    def f():
        E.barrier(); fn()
    at(first_slot[chunk], f)

after_b("S0", lambda: [pushD(G_ops(i), f"G{i}") for i in range(3)])
after_b("S3", lambda: pushD(G_ops(3), "G3"))
after_b("S6", lambda: pushD(G_ops(4), "G4"))
free_at("G0", lambda: pushD(G_ops(5), "G5"))
free_at("G1", lambda: pushD(G_ops(6), "G6"))
free_at("G2", lambda: pushD(G_ops(7), "G7"))
free_at("G3", lambda: pushD(C_ops(0, 6), "C0"))
free_at("G4", lambda: [pushD(C_ops(1, 7), "C1"), pushD(C_ops(2, 8), "C2")])
free_at("G5", lambda: pushD(C_ops(3, 0), "C3"))
free_at("G6", lambda: [pushD(C_ops(4, 1), "C4"), pushD(C_ops(5, 2), "C5")])
free_at("G7", lambda: [pushD(C_ops(6, 3), "C6"), pushD(XE_ops(), "XE")])
def slot_of(n): return items[n].base // 16384
wish = ["H2", "H3", "C7", "H4", "H5", "H6", "H7", "W0", "W1", "W2", "W3", "W4", "HG0", "HG1", "HG2", "HG3",
        "HG4", "W5", "HG5", "W6", "HG6", "W7", "HG7", "W8", "HG8", "W9", "HG9", "W10", "HG10"]
def push_named(n, sl):
    k = n.rstrip("0123456789"); i = int(n[len(k):])
    pushD({"H": H_ops, "C": C_ops, "W": W_ops, "HG": HG_ops}[k](i, sl), n)
p3chunks = [f"H{i}" for i in range(8)] + [f"U{i}" for i in range(11)]
def poll_issue(soff, tag): VM(f"buffer_load_dword {v(vPOLL)}, {v(vFL)}, {SWS}, {soff} offen sc1", tag)
def poll_check(soff, tag):
    E.wait(vm=tag)
    I(f"v_cmp_ne_u32 vcc, {sNON}, {v(vPOLL)}"); I(f"s_cbranch_vccnz L_slow_{tag}"); E.label(f"L_back_{tag}")
    slow.extend([f"L_slow_{tag}:", "  s_sleep 2", f"  buffer_load_dword {v(vPOLL)}, {v(vFL)}, {SWS}, {soff} offen sc1", "  s_waitcnt vmcnt(0)",
                 f"  v_cmp_ne_u32 vcc, {sNON}, {v(vPOLL)}"] + spin_guard(None, f"L_back_{tag}") +
                [f"  s_cbranch_vccnz L_slow_{tag}", f"  s_branch L_back_{tag}"])
for k in range(1, len(p3chunks)):
    def fn(k=k):
        for n in chunk_items(p3chunks[k-1]):
            if wish:
                w = wish.pop(0)
                if w == "HG0": qD.append(lambda: poll_check(sFG, "pg"))
                if w == "W3": qD.append(lambda: poll_issue(sFG, "pg"))
                push_named(w, slot_of(n))
    free_at(p3chunks[k], fn)

def flag_store(soff, lbl):
    I(f"s_cmp_lg_u32 {sW_}, 0"); I(f"s_cbranch_scc1 {lbl}")
    E.begin_cond()
    I(f"s_lshl_b32 s13, {sG_}, 2"); I(f"v_mov_b32 v12, s13"); I(f"v_mov_b32 v13, {sNON}"); I("s_mov_b64 exec, 1")
    VM(f"buffer_store_dword v13, v12, {SWS}, {soff} offen sc1"); I("s_mov_b64 exec, -1")
    E.end_cond(); E.label(lbl)

for f in range(32): qV.extend(center_ops(f))

def ssm1():
    ops = []
    def tagcheck():
        E.wait(vm="tag"); I(f"v_readfirstlane_b32 {sNON}, {v(vPOLL)}"); I(f"s_cmp_eq_u32 {sNON}, 0"); I("s_cbranch_scc1 L_slow_tag"); E.label("L_back_tag")
        slow.extend(["L_slow_tag:", "  s_sleep 2", "  v_mov_b32 v12, 0", f"  buffer_load_dword {v(vPOLL)}, v12, {SDBG}, 0 offen sc1", "  s_waitcnt vmcnt(0)",
                     f"  v_readfirstlane_b32 {sNON}, {v(vPOLL)}"] + spin_guard(None, "L_back_tag") +
                    [f"  s_cmp_eq_u32 {sNON}, 0", "  s_cbranch_scc1 L_slow_tag", "  s_branch L_back_tag"])
    ops.append(tagcheck)
    def rd(j): return lambda: DS(f"ds_read_b128 {v(vRT + 4*(j&1), 4)}, {v(vTAB)} offset:{16*j}", f"rt{j}")
    ops += [rd(0), rd(1)]
    cur, nx = (vE, vE + 1), (vE2, vE2 + 1)
    for r in range(16):
        rt = v(vRT + 4*((r >> 2) & 1) + (r & 3)); aR, aI = ACC_R + r, ACC_I + r
        if r % 4 == 0: ops.append(lambda j=r >> 2: E.wait(lg=f"rt{j}"))
        ops += [f"v_mul_f32 v12, {v(aR)}, {rt}", f"v_mul_f32 v13, {v(aI)}, {rt}"]
        if r % 4 == 3 and r < 8: ops.append(rd((r >> 2) + 2))
        ops += [f"v_mul_f32 {v(aR)}, {v(vCR)}, v12", f"v_mul_f32_e64 {v(aI)}, -{v(vCR)}, v13",
                f"v_fma_f32 {v(aR)}, -{v(vCI)}, v13, {v(aR)}", f"v_fma_f32 {v(aI)}, -{v(vCI)}, v12, {v(aI)}"]
        if r == 0: src = (aR, aI)
        else:
            ops += cfma_ops(nx, vLR, src, aR, aI); src = nx; cur, nx = nx, cur
    assert src == (vE2, vE2 + 1)
    ops.append(lambda: DS(f"ds_write_b64 {v(vEQA)}, {v(vE2,2)} offset:{7*256}", "eqw"))
    def bar(): E.wait(lg="eqw"); E.barrier()
    ops.append(bar); ops.append(mark("ssm1"))
    return ops
at(P2 + 1, lambda: qV.extend(ssm1()))
for m in range(P2 + 1, P2 + 24): slots[m].nV = 8

def ssm2():
    ops = [lambda i=i: DS(f"ds_read_b64 {v(128+2*i,2)}, {v(vEQA)} offset:{256*i}", f"eq{i}") for i in range(7)]
    ops += [f"s_lshl_b32 {sT0}, {sG_}, 4", f"s_add_u32 {sT0}, {sT0}, {sC_}", f"s_lshl_b32 {sT0}, {sT0}, 9", f"s_add_u32 {sT0}, {sT0}, {WS_EB - 512}",
            f"v_lshlrev_b32 v142, 4, {vLANE}", f"v_add_u32 v142, {sT0}, v142", f"v_mov_b32 v143, {OOB}",
            f"s_cmp_eq_u32 {sW_}, 3", f"s_cselect_b32 {sT1}, 31, 64", f"v_cmp_lt_u32 vcc, {sT1}, {vLANE}", "v_cndmask_b32 v142, v143, v142, vcc"]
    src = (128, 129); pp = [(vP, vP + 1), (vE, vE + 1)]
    ops.append(lambda: E.wait(lg="eq1"))
    for i in range(1, 7):
        if i > 1: ops.append(lambda i=i: E.wait(lg=f"eq{i}"))
        d = pp[i & 1]; ops += cfma_ops(d, vL16, src, 128 + 2*i, 129 + 2*i); src = d
    assert src == (vP, vP + 1)
    ops += cfma_ops((36, 38), vL16, src, vE2, vE2 + 1)
    ops += [f"v_mov_b32 v37, {sNON}", f"v_mov_b32 v39, {sNON}"]
    ops.append(lambda: VM(f"buffer_store_dwordx4 v[36:39], v142, {SWS}, 0 offen sc1", "est"))
    ops += [f"s_lshl_b32 {sT0}, {sW_}, 2", f"s_add_u32 {sT0}, {sT0}, {sC_}", f"s_sub_u32 {sT0}, {sT0}, 16",
            f"v_lshrrev_b32 v136, 5, {vLANE}", "v_lshlrev_b32 v136, 1, v136", f"v_add_u32 v136, {sT0}, v136",
            f"s_lshl_b32 {sT1}, {sG_}, 13", f"s_add_u32 {sT1}, {sT1}, {WS_EB}",
            f"v_and_b32 v137, 31, {vLANE}", "v_lshlrev_b32 v137, 4, v137", f"v_add_u32 v137, {sT1}, v137",
            "v_lshl_add_u32 v140, v136, 9, v137", "v_add_u32 v141, 512, v140", f"v_mov_b32 v137, {sNON}",
            "v_cmp_le_i32 vcc, 0, v136", "v_cndmask_b32 v140, v143, v140, vcc", "v_cndmask_b32 v138, 0, v137, vcc",
            "v_cmp_le_i32 vcc, -1, v136", "v_cndmask_b32 v141, v143, v141, vcc", "v_cndmask_b32 v139, 0, v137, vcc", mark("ssm2")]
    return ops
at(P2 + 24, lambda: (need_mark("ssm1"), qV.extend(atomize(ssm2()))))
for m in range(P2 + 24, P2 + 36): slots[m].nV = 7

def p3addr_a():
    o = []
    o += [f"v_lshrrev_b32 v36, 3, {vLANE}", f"v_and_b32 v37, 7, {vLANE}", "v_lshrrev_b32 v38, 1, v36", "v_xor_b32 v39, v37, v38", "v_lshlrev_b32 v39, 4, v39", "v_xor_b32 v40, 64, v39"]
    o += [f"s_and_b32 {sT1}, {sW_}, 1", f"s_lshl_b32 {sT0}, {sT1}, 5", f"s_lshl_b32 {sT2}, {sGL}, 6", f"s_add_u32 {sT0}, {sT0}, {sT2}",
          f"v_add_u32 v41, {sT0}, v36", "v_lshlrev_b32 v41, 10, v41",
          f"v_add_u32 {v(vCo[0])}, v41, v39", f"v_add_u32 {v(vCo[1])}, v41, v40",
          f"v_add_u32 {v(vCo[2])}, {2*7168}, {v(vCo[0])}", f"v_add_u32 {v(vCo[3])}, {3*7168}, {v(vCo[1])}", f"v_add_u32 {v(vCo[1])}, 7168, {v(vCo[1])}", mark("vCo")]
    o += ["v_and_b32 v38, 1, v38", "v_lshlrev_b32 v38, 2, v38", "v_xor_b32 v38, v37, v38", "v_lshlrev_b32 v38, 4, v38", "v_lshl_add_u32 v38, v36, 10, v38",
          f"s_lshl_b32 {sT0}, {sW_}, 15", f"s_lshl_b32 {sT2}, {sGL}, 7", f"s_add_u32 {sT0}, {sT0}, {sT2}", f"v_add_u32 {v(vWo[0])}, {sT0}, v38"]
    o += [f"v_add_u32 {v(vWo[q])}, {7168*q}, {v(vWo[0])}" for q in range(1, 4)]
    o += [f"s_lshl_b32 {sT0}, {sC_}, 7", f"s_lshl_b32 {sT3}, {sGH}, 6", f"s_add_u32 {sT0}, {sT0}, {sT3}", f"s_lshl_b32 {sT3}, {sW_}, 4", f"s_add_u32 {sT0}, {sT0}, {sT3}",
          f"s_lshl_b32 {sT0}, {sT0}, 10", f"s_add_u32 {sT0}, {sT0}, {sT2}",
          "v_lshlrev_b32 v38, 4, v37", "v_lshl_add_u32 v38, v36, 10, v38", f"v_add_u32 {v(vXEo[0])}, {sT0}, v38", f"v_add_u32 {v(vXEo[1])}, 7168, {v(vXEo[0])}"]
    o += [f"s_lshl_b32 {sT0}, {sC_}, 2", f"s_lshl_b32 {sT3}, {sGH}, 1", f"s_add_u32 {sT0}, {sT0}, {sT3}", f"s_lshr_b32 {sT3}, {sW_}, 1", f"s_add_u32 {sT0}, {sT0}, {sT3}",
          f"s_mul_i32 {sT0}, {sT0}, {152*1024}", f"s_lshl_b32 {sT3}, {sT1}, 12", f"s_add_u32 {sT0}, {sT0}, {sT3}",
          f"v_lshlrev_b32 v38, 4, {vLANE}", f"v_add_u32 {v(vHo)}, {sT0}, v38"]
    o += [f"s_lshl_b32 {sT0}, {sC_}, 2", f"s_add_u32 {sT0}, {sT0}, {sW_}", f"s_mul_i32 {sT0}, {sT0}, {152*1024}", f"v_add_u32 {v(vHST)}, {sT0}, v38",
          f"s_lshr_b32 {sT0}, {sG_}, 1", f"s_lshl_b32 {sT0}, {sT0}, 13", f"s_and_b32 {sT3}, {sG_}, 1", f"s_lshl_b32 {sT3}, {sT3}, 11", f"s_add_u32 {sHST}, {sT0}, {sT3}", f"s_add_u32 {sHST2}, {sHST}, 4096"]
    for uu in range(3):
        o += [f"s_mul_i32 {sT0}, {sG_}, 3", f"s_add_u32 {sT0}, {sT0}, {uu}", f"s_lshl_b32 {sT3}, {sT0}, 11", f"s_add_u32 {sT3}, {sT3}, 65536",
              f"s_cmp_lt_u32 {sT0}, 44", f"s_cselect_b32 {sHG[uu]}, {sT3}, 0x40000000"]
    o += [f"s_mul_i32 {sT0}, {sW_}, 2304", f"s_add_u32 {sT0}, {sT0}, {HS}",
          f"v_and_b32 v36, 31, {vLANE}", "v_mul_u32_u24 v36, 72, v36", f"v_and_b32 v37, 32, {vLANE}", "v_add_u32 v36, v36, v37", f"v_add_u32 {v(vHSW)}, {sT0}, v36",
          f"v_bfe_u32 v36, {vLANE}, 2, 2", "v_lshrrev_b32 v37, 2, v37", "v_add_u32 v36, v36, v37", "v_mul_u32_u24 v36, 72, v36",
          f"v_and_b32 v37, 1, {vLANE}", "v_lshl_add_u32 v36, v37, 5, v36", f"v_and_b32 v37, 16, {vLANE}", "v_add_u32 v36, v36, v37",
          f"v_and_b32 v37, 2, {vLANE}", "v_lshl_add_u32 v36, v37, 2, v36", f"v_add_u32 {v(vHSR)}, {sT0}, v36"]
    o += [f"v_and_b32 {v(vFL)}, 15, {vLANE}", f"v_lshlrev_b32 {v(vFL)}, 2, {v(vFL)}",
          f"s_lshl_b32 {sT0}, {sC_}, 8", f"s_add_u32 {sFH}, {sT0}, {WS_FH}", f"s_add_u32 {sFG}, {sT0}, {WS_FG}"]
    o += [f"s_lshl_b32 {sT0}, {sC_}, 7", f"s_lshl_b32 {sT3}, {sGH}, 6", f"s_add_u32 {sT0}, {sT0}, {sT3}", f"s_lshr_b32 {sT3}, {sW_}, 1", f"s_lshl_b32 {sT3}, {sT3}, 5",
          f"s_add_u32 {sT0}, {sT0}, {sT3}", f"s_lshl_b32 {sT0}, {sT0}, 11", f"s_lshl_b32 {sT3}, {sGL}, 8", f"s_add_u32 {sT0}, {sT0}, {sT3}", f"s_lshl_b32 {sT3}, {sT1}, 7", f"s_add_u32 {sT0}, {sT0}, {sT3}",
          f"v_and_b32 v36, 31, {vLANE}", "v_lshlrev_b32 v36, 2, v36", f"v_and_b32 v37, 32, {vLANE}", "v_lshl_add_u32 v36, v37, 10, v36", f"v_add_u32 {v(vOUT)}, {sT0}, v36", mark("p3a")]
    return o
def atomize(ops):
    out = []
    for op in ops:
        if isinstance(op, str) and (op.startswith("s_cselect") or op.startswith("v_cndmask")) and out and not isinstance(out[-1], tuple):
            prev = out.pop()
            out.append(lambda prev=prev, op=op: (run_op(prev), I(op)))
        else: out.append(op)
    return out
at(P2 + 48, lambda: qV.extend(atomize(p3addr_a())))
def p3addr_b():
    o = [f"s_and_b32 {sT1}, {sW_}, 1", f"s_lshr_b32 {sT2}, {sW_}, 1"]
    o += [f"s_lshl_b32 {sT0}, {sT2}, 13", f"v_lshlrev_b32 {v(vHR)}, 4, {vLANE}", f"v_add_u32 {v(vHR)}, {sT0}, {v(vHR)}"]
    o += [f"v_lshrrev_b32 v36, 5, {vLANE}", f"v_bfe_u32 v37, {vLANE}, 1, 3", "v_xor_b32 v37, v37, v36", "v_lshlrev_b32 v37, 4, v37",
          f"v_and_b32 v38, 31, {vLANE}", "v_lshl_add_u32 v37, v38, 7, v37", f"s_lshl_b32 {sT0}, {sT1}, 12", f"v_add_u32 {v(vC1[0])}, {sT0}, v37"]
    o += [f"v_xor_b32 {v(vC1[s])}, {32*s}, {v(vC1[0])}" for s in range(1, 4)]
    o += [f"v_bfe_u32 v37, {vLANE}, 2, 2", "v_lshl_add_u32 v37, v36, 3, v37", "v_lshlrev_b32 v37, 7, v37",
          f"v_and_b32 v39, 16, {vLANE}", "v_lshl_add_u32 v37, v39, 1, v37", f"v_and_b32 v39, 3, {vLANE}", "v_lshl_add_u32 v37, v39, 3, v37",
          f"v_and_b32 v39, 8, {vLANE}", "v_lshlrev_b32 v39, 3, v39", f"s_lshl_b32 {sT0}, {sT1}, 6", f"v_xor_b32 v39, {sT0}, v39", f"v_add_u32 {v(vWT)}, v37, v39"]
    o += [f"s_lshl_b32 {sT3}, {sT2}, 12", f"s_add_u32 {sT0}, {sT0}, {sT3}", f"s_add_u32 {sT0}, {sT0}, {XE}",
          "v_lshlrev_b32 v37, 11, v36", "v_lshl_add_u32 v37, v38, 1, v37", f"v_add_u32 {v(vXR)}, {sT0}, v37",
          f"s_lshl_b32 {sT0}, {sGH}, 8", f"s_lshl_b32 {sT3}, {sT2}, 7", f"s_add_u32 {sT0}, {sT0}, {sT3}", f"s_add_u32 {sT0}, {sT0}, {RTAB}",
          "v_lshlrev_b32 v37, 6, v36", f"v_add_u32 {v(vTAB3)}, {sT0}, v37", mark("p3b")]
    return o
at(P2 + 72, lambda: need_mark("vCo"))
at(P2 + 130, lambda: qV.extend(p3addr_b()))

def efetch():
    need_mark("ssm2")
    VM(f"buffer_load_dwordx4 v[128:131], v140, {SWS}, 0 offen sc1", "ef"); VM(f"buffer_load_dwordx4 v[132:135], v141, {SWS}, 0 offen sc1", "ef")
at(P2 + OPT["efetch"], efetch)
ZR = 176
def ssm3():
    chk = ["v_xor_b32 v136, v129, v138", "v_xor_b32 v137, v131, v138", "v_or_b32 v136, v136, v137",
           "v_xor_b32 v137, v133, v139", "v_or_b32 v136, v136, v137", "v_xor_b32 v137, v135, v139", "v_or_b32 v136, v136, v137", "v_cmp_ne_u32 vcc, 0, v136"]
    def check():
        E.wait(vm="ef")
        for c in chk: I(c)
        I("s_cbranch_vccnz L_slow_e"); E.label("L_back_e")
        slow.extend(["L_slow_e:", "  s_sleep 2", f"  buffer_load_dwordx4 v[128:131], v140, {SWS}, 0 offen sc1", f"  buffer_load_dwordx4 v[132:135], v141, {SWS}, 0 offen sc1",
                     "  s_waitcnt vmcnt(0)"] + ["  " + c for c in chk] + spin_guard(None, "L_back_e") + ["  s_cbranch_vccnz L_slow_e", "  s_branch L_back_e"])
    ops = [check]
    ops += cfma_ops((vE, vE + 1), vL128, (128, 130), 132, 134)
    ops.append(lambda: DS(f"ds_write_b64 {v(vEQA)}, {v(vE,2)} offset:{ZT - EQ}", "zw"))
    ops += [f"v_and_b32 v136, 31, {vLANE}", "v_lshlrev_b32 v136, 3, v136", f"v_add_u32 v136, {ZT}, v136"]
    def bar(): E.wait(lg="zw"); E.barrier()
    ops.append(bar)
    ops += [lambda i=i: DS(f"ds_read_b64 {v(ZR+2*i,2)}, v136 offset:{256*i}", f"z{i}") for i in range(8)]
    src = (ZR, ZR + 1); pp = [(vE, vE + 1), (vE2, vE2 + 1)]
    for i in range(1, 8):
        ops.append(lambda i=i: E.wait(lg=f"z{i}"))
        d = pp[i & 1]; ops += cfma_ops(d, vL256, src, ZR + 2*i, ZR + 2*i + 1); src = d
    assert src == (vE2, vE2 + 1)
    ops += cfma_ops((vE, vE + 1), vPQ, src, vP, vP + 1)
    src = (vE, vE + 1)
    for r in range(16):
        d = (ACC_R + r, ACC_I + r); ops += cfma_ops(d, vLR, src, d[0], d[1]); src = d
        if r & 1:
            ops += [f"v_cvt_pk_bf16_f32 {v(ZR + (r>>1))}, {v(ACC_R+r-1)}, {v(ACC_R+r)}", f"v_cvt_pk_bf16_f32 {v(ZR + 8 + (r>>1))}, {v(ACC_I+r-1)}, {v(ACC_I+r)}"]
    for comp in range(2):
        ops += [lambda j=j, comp=comp: DS(f"ds_write_b64 {v(vHSW)}, {v(ZR + 8*comp + 2*j, 2)} offset:{8*j}", "hsw") for j in range(4)]
        for st in range(2):
            for ph in range(2):
                ops.append(lambda st=st, ph=ph, comp=comp: DS(f"ds_read_b64_tr_b16 {v(128 + 8*comp + 4*st + 2*ph, 2)}, {v(vHSR)} offset:{(16*st + 4*ph)*72}", f"hr{comp}{st}"))
    for comp in range(2):
        for st in range(2):
            def stv(st=st, comp=comp):
                E.wait(lg=f"hr{comp}{st}")
                VM(f"buffer_store_dwordx4 {v(128 + 8*comp + 4*st, 4)}, {v(vHST)}, {SWS}, {sHST2 if comp else sHST} offen offset:{st*1024} sc1", "hst")
            ops.append(stv)
    ops.append(mark("ssm3"))
    return ops
EC = P2 + max(OPT["echeck"], 96)
at(EC, lambda: (need_mark("p3a"), qV.extend(ssm3())))
for m in range(EC, EC + 24): slots[m].nV = 7
hf = f"G{OPT['hflag']}"
wait_b(hf, "hst"); after_b(hf, lambda: flag_store(sFH, "L_fh"))

def glu_epi(u):
    ops = []; o = 192 + 8*u; t = 216
    for j in range(8):
        t0, t1 = t + 2*(j & 3), t + 2*(j & 3) + 1
        ops += [f"v_accvgpr_read_b32 {v(t0)}, {a(A_U+16*u+2*j)}", f"v_accvgpr_read_b32 {v(t1)}, {a(A_U+16*u+2*j+1)}",
                f"v_mul_f32 {v(t0)}, {v(vR2)}, {v(t0)}", f"v_mul_f32 {v(t1)}, {v(vR2)}, {v(t1)}",
                f"v_mul_f32 {v(t0)}, {v(ACC_G+16*u+2*j)}, {v(t0)}", f"v_mul_f32 {v(t1)}, {v(ACC_G+16*u+2*j+1)}, {v(t1)}",
                f"v_cvt_pk_bf16_f32 {v(o+j)}, {v(t0)}, {v(t1)}"]
        if j & 3 == 3:
            ops.append(lambda fr=j >> 2: VM(f"buffer_store_dwordx4 {v(o + 4*fr, 4)}, {v(vHST)}, {SWS}, {sHG[u]} offen offset:{fr*1024} sc1", "gst"))
    ops.append(mark(f"epi{u}"))
    return ops
G7 = first_slot["G7"]
at(G7 + 10, lambda: qV.extend(glu_epi(0))); at(G7 + 18, lambda: qV.extend(glu_epi(1)))
for m in range(G7 + 10, P3): slots[m].nV = 7
at(P2 + OPT["poll1"], lambda: poll_issue(sFH, "ph"))
wait_b("H1", "gst"); after_b("H1", lambda: flag_store(sFG, "L_fg"))

BASE = 64
def base_ops():
    ops = [f"v_mov_b32 {v(BASE+r)}, 0" for r in range(16)]
    def rdx(r):
        check_read(items["XE"]); DS(f"ds_read_u16_d16_hi {v(BASE+r)}, {v(vXR)} offset:{128*r}", f"xe{r}")
    ops += [lambda r=r: rdx(r) for r in range(16)]
    ops += [lambda j=j: DS(f"ds_read_b128 {v(80+4*j,4)}, {v(vTAB3)} offset:{16*j}", f"r3{j}") for j in range(4)]
    ops += [lambda j=j: DS(f"ds_read_b128 {v(96+4*j,4)}, {v(vTAB3)} offset:{512+16*j}", f"m3{j}") for j in range(4)]
    ops.append(lambda: E.wait(lg="m33"))
    for r in range(0, 16, 2):
        t0, t1, p = 112, 113, 114
        rnd = [f"v_cvt_pk_bf16_f32 {v(p)}, {v(t0)}, {v(t1)}", f"v_lshlrev_b32 {v(t0)}, 16, {v(p)}", f"v_and_b32 {v(t1)}, 0xffff0000, {v(p)}"]
        ops += [f"v_sub_f32 {v(t0)}, {v(BASE+r)}, {v(96+r)}", f"v_sub_f32 {v(t1)}, {v(BASE+r+1)}, {v(97+r)}"] + rnd
        ops += [f"v_mul_f32 {v(t0)}, {v(t0)}, {v(80+r)}", f"v_mul_f32 {v(t1)}, {v(t1)}, {v(81+r)}"] + rnd
        ops += [f"v_mul_f32 {v(t0)}, {v(t0)}, {v(vDSK)}", f"v_mul_f32 {v(t1)}, {v(t1)}, {v(vDSK)}"] + rnd
        ops += [f"v_add_f32 {v(BASE+r)}, {v(BASE+r)}, {v(t0)}", f"v_add_f32 {v(BASE+r+1)}, {v(BASE+r+1)}, {v(t1)}"]
    ops.append(mark("base"))
    return ops
at(first_slot["H2"], lambda: qV.extend(base_ops()))

def boundary(chunk):
    ex, fns = bevents.get(chunk, ([], []))
    if chunk == "H0":
        pass
    for n in chunk_items(chunk): need_item(n)
    if "hst" in ex: need_mark("ssm3")
    if "gst" in ex: need_mark("epi2")
    E.wait(vm=chunk_items(chunk) + ex, lg=["tabw", "eqz"])
    E.barrier()
    for fn in fns: fn()

D = OPT["D"]
def do_slot(m):
    s = slots[m]
    for n in s.needs: need_mark(n)
    E.wait(lg=s.tags)
    I(s.mfma(s.bufs))
    for fn in events.get(m, []): fn()
def segment(lo, hi):
    for m in range(lo - D, hi):
        if m >= lo: do_slot(m)
        r = m + D
        if r < hi:
            if first_slot[slots[r].chunk] == r: boundary(slots[r].chunk)
            emit_reads(r)
        if m >= lo:
            if m % slots[m].dper == 0: popD(1)
            popV(slots[m].nV)
            if OPT["stamps"] and first_slot[slots[m].chunk] == m and slots[m].chunk in ("S0", "G0", "G2", "G4", "G6", "H0", "H1", "H4", "U0", "U1", "U5", "U10"): stamp()
segment(0, P3)
stamp()
need_mark("p3b"); popD(100)
E.barrier()
poll_check(sFH, "ph")
for op in H_ops(0, 4) + H_ops(1, 5): op()
need_mark("epi1"); qV.extend(glu_epi(2)); need_mark("epi2")
stamp()
segment(P3, M)
need_mark("base")
assert not qV and not qD and not wish, (len(qV), len(qD), wish)
stamp()
for r in range(16):
    I(f"v_add_f32 {v(BASE+r)}, {v(BASE+r)}, {v(ACC3+r)}")
    if r % 2 == 0: I(f"s_mov_b32 {sT0}, {(r>>1)*4096}")
    VM(f"buffer_store_dword {v(BASE+r)}, {v(vOUT)}, {SOUT}, {sT0} offen offset:{(r&1)*2048}", "out")
if OPT["stamps"]:
    E.wait_all(vm=True); stamp()
    I(f"s_lshl_b32 {sT0}, s2, 2"); I(f"s_add_u32 {sT0}, {sT0}, {sW_}"); I(f"s_lshl_b32 {sT0}, {sT0}, 8"); I(f"s_add_u32 {sT0}, {sT0}, {WS_ST}")
    I(f"v_writelane_b32 v0, {sSPIN}, {nstamp[0]}")
    I(f"v_lshlrev_b32 v2, 2, {vLANE}"); I(f"v_cmp_ge_u32 vcc, {nstamp[0]}, {vLANE}"); I("s_and_saveexec_b64 s[98:99], vcc")
    VM(f"buffer_store_dword v0, v2, {SWS}, {sT0} offen")
E.label("L_end")
I("s_endpgm")

hdr = open("cdna_kernels/" + NAME + ".s.ref").read().split("; Override launch geometry")[0]
out = hdr + f"; @launch grid=(256,1,1) block=(256,1,1) lds={LDS_BYTES}\n"
out += f'.amdgcn_target "amdgcn-amd-amdhsa--gfx950"\n.text\n.globl {NAME}_kernel\n.p2align 8\n.type {NAME}_kernel,@function\n'
out += E.text() + "\n".join(slow) + "\n"
out += f""".section .rodata,"a"
.p2align 6
.amdhsa_kernel {NAME}_kernel
  .amdhsa_next_free_vgpr 384
  .amdhsa_next_free_sgpr 102
  .amdhsa_accum_offset 256
  .amdhsa_group_segment_fixed_size 0
  .amdhsa_kernarg_size 128
  .amdhsa_user_sgpr_count 2
  .amdhsa_user_sgpr_kernarg_segment_ptr 1
  .amdhsa_system_sgpr_workgroup_id_x 1
.end_amdhsa_kernel
"""
open(sys.argv[1], "w").write(out)
print(f"instructions {E.count}, nops {E.nops}, barriers {len(E.barriers)}, vm ops {len(E.vm)}, ds ops {len(E.lg)}", file=sys.stderr)
```

```python
import sys
from emit import Emitter
NAME = "parallel_sum__ssm_conv_s5__glu_gated_bilinear__prompt"
OPT = dict(stamps=0, D=4, efetch=72, echeck=92, hflag=7, poll1=184)
for a in sys.argv[2:]:
    k, v = a.split("="); OPT[k] = int(v)

WS_EB = 0xA00000; WS_FH = 0xA40000; WS_FG = 0xA42000; WS_ST = 0xC00000; WS_SIZE = 0xD00000
U8 = 8192
MISC = 18 * U8
RTAB = MISC; MTAB = MISC + 512; EQ = MISC + 1024; ZT = MISC + 4864; HS = MISC + 7168; XE = MISC + 7168
LDS_BYTES = 163840
OOB = 0x80000000
sW_, sC_, sG_, sGL, sGH, sJ0 = "s3", "s4", "s5", "s6", "s7", "s8"
sT0, sT1, sT2, sT3 = "s9", "s10", "s11", "s12"
SX, SS, SG, SC, SWD, SWS, SOUT, SDBG = ("s[48:51]", "s[52:55]", "s[56:59]", "s[60:63]", "s[64:67]", "s[68:71]", "s[72:75]", "s[76:79]")
sM4, sM2, sM6 = "s80", "s81", "s82"
sQW, sQHG = "s83", "s84"
sSO = "s85"
sHST, sHST2 = "s86", "s87"
sHG = ["s88", "s89", "s94"]
sNON, sC10, sC01, sC11 = "s90", "s91", "s92", "s93"
sFH, sFG = "s95", "s96"
sSPIN = "s97"
sST = "s[98:99]"
vLANE = "v1"
vP1 = [2, 3, 4, 5]; vGT = 6; vGo = [7, 8, 9]; vSo = [10, 11]; vXo = [12, 13, 14, 15]
vR2, vNM = 16, 17
vLR, vLI, vCR, vCI = 18, 19, 20, 21
vL16, vL128, vL256, vPQ = 22, 24, 26, 28
vE, vE2, vP = 30, 32, 34
vRT = 36
vTAB, vEQA, vPOLL, vDSK = 44, 45, 46, 47
ACC_R, ACC_I = 48, 64
ACC_G = 80
XF = 128
A_U = 0; A_FB = 48; NFB = 16

E = Emitter()
I, VM, DS = E.I, E.VM, E.DS
def v(n, k=1): return f"v{n}" if k == 1 else f"v[{n}:{n+k-1}]"
def a(n, k=1): return f"a{n}" if k == 1 else f"a[{n}:{n+k-1}]"
slow = []
nstamp = [0]
def stamp():
    if not OPT["stamps"]: return
    I(f"s_memtime {sST}"); E.wait_all(lg=True)
    I(f"v_writelane_b32 v0, s98, {nstamp[0]}"); nstamp[0] += 1

def cmul(d, x, y, t):
    I(f"v_mul_f32 {v(t)}, {v(x)}, {v(y)}"); I(f"v_mul_f32 {v(t+1)}, {v(x)}, {v(y+1)}")
    I(f"v_fma_f32 {v(t)}, -{v(x+1)}, {v(y+1)}, {v(t)}"); I(f"v_fma_f32 {v(d+1)}, {v(x+1)}, {v(y)}, {v(t+1)}")
    I(f"v_mov_b32 {v(d)}, {v(t)}")
def cfma_ops(d, L, x, br, bi):
    return [f"v_fma_f32 {v(d[0])}, {v(L)}, {v(x[0])}, {v(br)}", f"v_fma_f32 {v(d[1])}, {v(L)}, {v(x[1])}, {v(bi)}",
            f"v_fma_f32 {v(d[0])}, -{v(L+1)}, {v(x[1])}, {v(d[0])}", f"v_fma_f32 {v(d[1])}, {v(L+1)}, {v(x[0])}, {v(d[1])}"]
def bf16r(d, s):
    I(f"v_cvt_pk_bf16_f32 {v(d)}, {v(s)}, {v(s)}"); I(f"v_and_b32 {v(d)}, 0xffff0000, {v(d)}")

class Item:
    def __init__(s, name, base, size, private=False):
        s.name, s.base, s.size, s.private = name, base, size, private
        s.last_read = None; s.reads_done = False; s.ndma = 0
items = {}
live = []
def place(name, base, size, private=False):
    for o in list(live):
        if o.base < base + size and base < o.base + o.size:
            assert o.reads_done, (name, "overlaps unread", o.name)
            assert any(lg >= o.last_read for (_, lg) in E.barriers[o.bar_at_last_read:]), (name, "WAR: no covering barrier after reads of", o.name)
            live.remove(o)
    it = Item(name, base, size, private); items[name] = it; live.append(it); return it
def check_read(it):
    nv = E.last(E.vm, it.name)
    if it.private: assert E.vm_done >= nv, it.name
    else: assert any(vm >= nv for (vm, _) in E.barriers), ("RAW", it.name)
def note_read(it, last=False):
    it.last_read = len(E.lg); it.bar_at_last_read = len(E.barriers)
    if last: it.reads_done = True

def kc_soff(i, mul, add=0):
    I(f"s_add_u32 {sSO}, {sJ0}, {i}"); I(f"s_and_b32 {sSO}, {sSO}, 7"); I(f"s_mul_i32 {sSO}, {sSO}, {mul}")
    if add: I(f"s_add_u32 {sSO}, {sSO}, {add}")
def dma_ops(name, base, size, srd, sm, voffs, prep, private=False, pol="", split=None):
    ops = []
    def first():
        place(name, base, size, private); prep(); I(f"s_add_u32 m0, {sm}, {base}")
        VM(f"buffer_load_dwordx4 {v(voffs[0])}, {srd}, {sSO} offen{pol} lds", name)
    ops.append(first)
    for q in range(1, len(voffs)):
        ops.append(lambda q=q: VM(f"buffer_load_dwordx4 {v(voffs[q])}, {srd}, {sSO} offen offset:{q*1024}{pol} lds", name))
    if split:
        m0_add, soff_add = split
        def second():
            I(f"s_add_u32 {sSO}, {sSO}, {soff_add}"); I(f"s_add_u32 m0, {sm}, {base + m0_add}")
            VM(f"buffer_load_dwordx4 {v(voffs[0])}, {srd}, {sSO} offen{pol} lds", name)
        ops.append(second)
        for q in range(1, len(voffs)):
            ops.append(lambda q=q: VM(f"buffer_load_dwordx4 {v(voffs[q])}, {srd}, {sSO} offen offset:{q*1024}{pol} lds", name))
    return ops
X_BASE = [2 * i * U8 for i in range(8)]
S_BASE = [16 * U8, 17 * U8] + [i * U8 for i in range(6)]
G_BASE = [6 * U8, 9 * U8, 12 * U8, 15 * U8, 0, 3 * U8, 6 * U8, 9 * U8]
vCo = [144, 145, 146, 147]; vWo = [148, 149, 150, 151]; vHo = 152; vXEo = [153, 154]
vHST = 155; vHSW = 156; vHSR = 157; vFL = 158; vOUT = 159
def X_ops(i): return dma_ops(f"X{i}", X_BASE[i], 16384, SX, sM4, vXo, lambda: kc_soff(i, 128), private=True)
def S_ops(i): return dma_ops(f"S{i}", S_BASE[i], 8192, SS, sM2, vSo, lambda: kc_soff(i, 128))
def G_ops(i): return dma_ops(f"G{i}", G_BASE[i], 24576, SG, sM6, vGo, lambda: kc_soff(i, 64 * 2752), split=(3072, 16 * 2752))
def C_ops(i, sl): return dma_ops(f"C{i}", sl * 16384, 16384, SC, sM4, vCo, lambda: kc_soff(i, 128))
def H_ops(i, sl): return dma_ops(f"H{i}", sl * 16384, 16384, SWS, sM4, [vHo] * 4, lambda: kc_soff(i, 8192), pol=" sc1")
def adv11(s):
    I(f"s_add_u32 {s}, {s}, 1"); I(f"s_cmp_eq_u32 {s}, 11"); I(f"s_cselect_b32 {s}, 0, {s}")
def W_ops(i, sl):
    def prep():
        I(f"s_lshl_b32 {sSO}, {sQW}, 17"); adv11(sQW)
    return dma_ops(f"W{i}", sl * 16384, 16384, SWD, sM4, vWo, prep)
def HG_ops(i, sl):
    def prep():
        I(f"s_lshl_b32 {sSO}, {sQHG}, 13"); I(f"s_add_u32 {sSO}, {sSO}, 65536"); adv11(sQHG)
    return dma_ops(f"HG{i}", sl * 16384, 16384, SWS, sM4, [vHo] * 4, prep, pol=" sc1")
def XE_ops(): return dma_ops("XE", XE, 8192, SX, sM2, vXEo, lambda: I(f"s_mov_b32 {sSO}, 0"))

def spin_guard(lbl_loop, lbl_back):
    return [f"  s_add_u32 {sSPIN}, {sSPIN}, 1", f"  s_cmp_gt_u32 {sSPIN}, 0x40000", f"  s_cbranch_scc1 {lbl_back}"]

E.label(f"{NAME}_kernel")
I("s_cmp_ge_u32 s2, 256"); I("s_cbranch_scc1 L_end")
I("s_load_dwordx16 s[16:31], s[0:1], 0"); I("s_load_dwordx16 s[32:47], s[0:1], 64")
I("s_memrealtime s[14:15]")
I(f"v_and_b32 {vLANE}, 63, v0"); I("v_lshrrev_b32 v80, 6, v0"); I(f"v_readfirstlane_b32 {sW_}, v80")
I(f"s_and_b32 {sGH}, s2, 1"); I(f"s_bfe_u32 {sT0}, s2, 0x20001")
I(f"s_lshr_b32 {sT1}, s2, 6")
I(f"s_lshl_b32 {sC_}, {sT0}, 2"); I(f"s_add_u32 {sC_}, {sC_}, {sT1}")
I(f"s_bfe_u32 {sGL}, s2, 0x30003")
I(f"s_lshl_b32 {sG_}, {sGH}, 3"); I(f"s_add_u32 {sG_}, {sG_}, {sGL}")
I(f"s_lshl_b32 {sJ0}, {sT1}, 1"); I(f"s_add_u32 {sJ0}, {sJ0}, {sGL}"); I(f"s_and_b32 {sJ0}, {sJ0}, 7")
I(f"s_mul_i32 {sQW}, {sGL}, 11"); I(f"s_lshr_b32 {sQW}, {sQW}, 3"); I(f"s_mul_i32 {sT2}, {sT1}, 3"); I(f"s_add_u32 {sQW}, {sQW}, {sT2}")
I(f"s_sub_u32 {sT2}, {sQW}, 11"); I(f"s_cmp_ge_u32 {sQW}, 11"); I(f"s_cselect_b32 {sQW}, {sT2}, {sQW}"); I(f"s_mov_b32 {sQHG}, {sQW}")
I(f"s_lshl_b32 {sM4}, {sW_}, 12"); I(f"s_lshl_b32 {sM2}, {sW_}, 11"); I(f"s_mul_i32 {sM6}, {sW_}, 6144")
I(f"s_mov_b32 {sSPIN}, 0")
I(f"v_lshrrev_b32 v81, 3, {vLANE}"); I(f"v_and_b32 v82, 7, {vLANE}")
I("v_lshrrev_b32 v84, 1, v81"); I("v_xor_b32 v83, v82, v84"); I("v_lshlrev_b32 v83, 4, v83")
I("v_lshrrev_b32 v84, 2, v81"); I("v_lshlrev_b32 v84, 4, v84"); I("v_and_b32 v85, 3, v81"); I("v_add_u32 v84, v84, v85")
I(f"s_lshl_b32 {sT0}, {sC_}, 7"); I(f"s_lshl_b32 {sT1}, {sW_}, 5"); I(f"s_add_u32 {sT0}, {sT0}, {sT1}")
I(f"v_add_u32 v84, {sT0}, v84"); I("v_lshlrev_b32 v84, 10, v84")
I("v_xor_b32 v85, 64, v83")
I(f"v_add_u32 {v(vXo[0])}, v84, v83"); I(f"v_add_u32 {v(vXo[1])}, v84, v85")
I(f"v_add_u32 {v(vXo[2])}, 6144, {v(vXo[0])}"); I(f"v_add_u32 {v(vXo[3])}, 9216, {v(vXo[1])}"); I(f"v_add_u32 {v(vXo[1])}, 3072, {v(vXo[1])}")
I(f"v_and_b32 v86, 31, {vLANE}"); I(f"s_lshl_b32 {sT0}, {sG_}, 5"); I(f"v_add_u32 v87, {sT0}, v86"); I("v_lshlrev_b32 v87, 1, v87")
I(f"s_and_b32 {sT1}, {sW_}, 1"); I(f"s_lshl_b32 {sT1}, {sT1}, 5"); I(f"s_lshl_b32 {sT2}, {sGL}, 6"); I(f"s_add_u32 {sT1}, {sT1}, {sT2}")
I(f"v_add_u32 v88, {sT1}, v86"); I("v_lshlrev_b32 v88, 1, v88")
E.wait_all(lg=True)
def srd(dst, lo, hi, size):
    n = int(dst[2:dst.index(":")])
    I(f"s_mov_b32 s{n}, s{lo}"); I(f"s_mov_b32 s{n+1}, s{hi}"); I(f"s_mov_b32 s{n+2}, {size}"); I(f"s_mov_b32 s{n+3}, 0x20000")
def srd_sel(dst, p0, p1, size):
    n = int(dst[2:dst.index(":")])
    I(f"s_cselect_b32 s{n}, s{p1}, s{p0}"); I(f"s_cselect_b32 s{n+1}, s{p1+1}, s{p0+1}"); I(f"s_mov_b32 s{n+2}, {size}"); I(f"s_mov_b32 s{n+3}, 0x20000")
srd(SX, 16, 17, 2097152)
stamp()
for i in range(2):
    for op in X_ops(i): op()
VM("global_load_ushort v90, v87, s[30:31]", "par"); VM("global_load_ushort v91, v87, s[18:19]", "par")
VM("global_load_ushort v92, v87, s[20:21]", "par"); VM(f"global_load_ushort {v(vDSK)}, v88, s[32:33]", "par")
srd(SDBG, 44, 45, 256)
I(f"s_or_b32 {sT0}, s2, {sW_}"); I(f"s_cmp_lg_u32 {sT0}, 0"); I("s_cbranch_scc1 L_notag")
E.begin_cond()
I("s_or_b32 s14, s14, 1"); I("v_mov_b32 v93, s14"); I("v_mov_b32 v94, 0"); I("s_mov_b64 exec, 1")
VM(f"buffer_store_dword v93, v94, {SDBG}, 0 offen sc1"); I("s_mov_b64 exec, -1")
E.end_cond(); E.label("L_notag")
for op in X_ops(2): op()
I(f"s_cmp_ge_u32 {sW_}, 2")
srd_sel(SS, 22, 24, 524288); srd_sel(SG, 36, 38, 1409024); srd_sel(SC, 26, 28, 524288)
srd(SWD, 40, 41, 1409024); srd(SWS, 46, 47, WS_SIZE); srd(SOUT, 42, 43, 4194304)
I(f"s_mov_b32 {sC10}, 0x00003f80"); I(f"s_mov_b32 {sC01}, 0x3f800000"); I(f"s_mov_b32 {sC11}, 0x3f803f80")
I(f"s_and_b32 {sT1}, {sW_}, 1"); I(f"s_lshl_b32 {sT2}, {sT1}, 4"); I(f"s_lshl_b32 {sT0}, {sG_}, 5"); I(f"s_add_u32 {sT0}, {sT0}, {sT2}")
I(f"v_add_u32 v84, {sT0}, v81"); I("v_lshlrev_b32 v84, 10, v84")
I(f"v_add_u32 {v(vSo[0])}, v84, v83"); I(f"v_add_u32 {v(vSo[1])}, v84, v85"); I(f"v_add_u32 {v(vSo[1])}, 7168, {v(vSo[1])}")
I(f"s_mul_i32 {sT0}, {sT1}, {32*2752}"); I(f"s_mul_i32 {sT2}, {sG_}, 192"); I(f"s_add_u32 {sT0}, {sT0}, {sT2}")
I(f"s_mul_i32 {sT2}, {sG_}, 3"); I(f"s_mov_b32 {sT3}, 2752")
assert all((n * 43691) >> 19 == n // 12 for n in range(192))
I(f"v_mov_b32 v99, {OOB}")
for i in range(3):
    I(f"v_add_u32 v95, {64*i}, {vLANE}"); I("v_mul_u32_u24 v96, 43691, v95"); I("v_lshrrev_b32 v96, 19, v96")
    I("v_mul_u32_u24 v97, 12, v96"); I("v_sub_u32 v97, v95, v97")
    I(f"v_mul_lo_u32 v96, v96, {sT3}"); I("v_lshl_add_u32 v96, v97, 4, v96"); I(f"v_add_u32 v96, {sT0}, v96")
    if i: I(f"v_subrev_u32 v96, {1024*i}, v96")
    I("v_lshrrev_b32 v97, 2, v97"); I(f"v_add_u32 v97, {sT2}, v97"); I("v_cmp_gt_u32 vcc, 43, v97")
    I(f"v_cndmask_b32 {v(vGo[i])}, v99, v96, vcc")
I(f"v_lshrrev_b32 v95, 5, {vLANE}")
I("v_bfe_u32 v96, v86, 1, 3"); I("v_xor_b32 v96, v96, v95"); I("v_lshlrev_b32 v96, 4, v96"); I("v_lshl_add_u32 v96, v86, 7, v96")
I(f"v_add_u32 {v(vP1[0])}, {sM4}, v96")
for s in range(1, 4): I(f"v_xor_b32 {v(vP1[s])}, {32*s}, {v(vP1[0])}")
I(f"v_bfe_u32 v96, {vLANE}, 2, 2"); I("v_lshl_add_u32 v96, v95, 3, v96")
I(f"v_mul_u32_u24 {v(vGT)}, 192, v96")
I(f"v_and_b32 v97, 16, {vLANE}"); I(f"v_lshl_add_u32 {v(vGT)}, v97, 1, {v(vGT)}")
I(f"v_and_b32 v97, 1, {vLANE}"); I(f"v_lshl_add_u32 {v(vGT)}, v97, 4, {v(vGT)}")
I(f"v_and_b32 v97, 2, {vLANE}"); I(f"v_lshl_add_u32 {v(vGT)}, v97, 2, {v(vGT)}")
I(f"s_lshl_b32 {sT0}, {sW_}, 9"); I(f"s_add_u32 {sT0}, {sT0}, {EQ}")
I(f"v_lshlrev_b32 {v(vEQA)}, 8, v95"); I(f"v_lshl_add_u32 {v(vEQA)}, v86, 3, {v(vEQA)}"); I(f"v_add_u32 {v(vEQA)}, {sT0}, {v(vEQA)}")
I(f"s_lshl_b32 {sT0}, {sW_}, 7"); I(f"s_add_u32 {sT0}, {sT0}, {RTAB}")
I(f"v_lshlrev_b32 {v(vTAB)}, 6, v95"); I(f"v_add_u32 {v(vTAB)}, {sT0}, {v(vTAB)}")
I("v_bfe_u32 v97, v86, 2, 1"); I("v_lshlrev_b32 v89, 4, v97"); I("v_lshrrev_b32 v97, 3, v86"); I("v_lshl_add_u32 v89, v97, 2, v89")
I("v_and_b32 v97, 3, v86"); I("v_add_u32 v89, v89, v97"); I("v_lshlrev_b32 v89, 2, v89"); I(f"v_add_u32 v89, {sT0}, v89")
I("v_mov_b32 v100, 0"); I("v_mov_b32 v101, 0"); I(f"s_lshl_b32 {sT0}, {sW_}, 9"); I(f"s_add_u32 {sT0}, {sT0}, {EQ}")
I(f"v_lshlrev_b32 v97, 3, {vLANE}"); I(f"v_add_u32 v97, {sT0}, v97")
DS("ds_write_b64 v97, v[100:101]", "eqz")
E.wait(vm="par")
LOG2E = "0x3fb8aa3b"
I("v_lshlrev_b32 v90, 16, v90"); I("v_lshlrev_b32 v91, 16, v91"); I("v_lshlrev_b32 v92, 16, v92"); I(f"v_lshlrev_b32 {v(vDSK)}, 16, {v(vDSK)}")
I(f"v_mul_f32 v90, {LOG2E}, v90"); I("v_exp_f32 v90, v90"); bf16r(90, 90)
I("v_mul_f32 v93, v90, v91"); I("v_mul_f32 v94, v90, v92")
I(f"v_mul_f32 v93, {LOG2E}, v93"); I("v_exp_f32 v93, v93")
I("v_mul_f32 v94, 0.15915494, v94"); I("v_rndne_f32 v97, v94"); I("v_sub_f32 v94, v94, v97")
I("v_cos_f32 v97, v94"); I("v_sin_f32 v98, v94")
I(f"v_mul_f32 {v(vLR)}, v93, v97"); I("v_mul_f32 v98, v93, v98")
I(f"v_add_f32 v97, -1.0, {v(vLR)}")
I("v_mul_f32 v93, v91, v91"); I("v_fmac_f32 v93, v92, v92"); I("v_rcp_f32 v93, v93"); I("v_add_f32 v93, v93, v93")
I(f"v_mul_f32 {v(vCR)}, v97, v91"); I(f"v_fmac_f32 {v(vCR)}, v98, v92"); I(f"v_mul_f32 {v(vCR)}, {v(vCR)}, v93")
I(f"v_mul_f32 {v(vCI)}, v98, v91"); I(f"v_fma_f32 {v(vCI)}, -v97, v92, {v(vCI)}"); I(f"v_mul_f32 {v(vCI)}, {v(vCI)}, v93")
I(f"v_sub_f32 {v(vLI)}, 0, v98")
cmul(102, vLR, vLR, 110); cmul(102, 102, 102, 110); cmul(102, 102, 102, 110); cmul(vL16, 102, 102, 110)
cmul(104, vL16, vL16, 110); cmul(106, 104, 104, 110); cmul(vL128, 106, 106, 110); cmul(vL256, vL128, vL128, 110)
I(f"v_cmp_lt_u32 vcc, 31, {vLANE}")
I(f"v_cndmask_b32 {v(vPQ)}, 1.0, {v(vL16)}, vcc"); I(f"v_cndmask_b32 {v(vPQ+1)}, 0, {v(vL16+1)}, vcc")
for bit, L in ((1, 104), (2, 106)):
    I(f"s_and_b32 {sT0}, {sW_}, {bit}"); I("s_cselect_b64 vcc, -1, 0")
    I(f"v_cndmask_b32 v108, 1.0, {v(L)}, vcc"); I(f"v_cndmask_b32 v109, 0, {v(L+1)}, vcc")
    cmul(vPQ, vPQ, 108, 110)
for r in range(112, 120): I(f"v_mov_b32 v{r}, 0")
nxt = {0: X_ops(3), 1: X_ops(4), 2: X_ops(5), 3: X_ops(6), 4: X_ops(7), 5: S_ops(0) + S_ops(1), 6: S_ops(2) + S_ops(3), 7: S_ops(4) + S_ops(5)}
for i in range(8):
    it = items[f"X{i}"]
    if i == 4:
        for s in range(4): I(f"v_add_u32 {v(vP1[s])}, 65536, {v(vP1[s])}")
    E.wait(vm=it.name)
    if i == 5: E.barrier()
    check_read(it)
    for s in range(4):
        DS(f"ds_read_b128 {v(XF + 16*i + 4*s, 4)}, {v(vP1[s])} offset:{it.base & 0xffff}", f"xr{i}_{s}"); note_read(it, s == 3)
    for op in nxt[i]: op()
    for s in range(4):
        E.wait(lg=f"xr{i}_{s}")
        for d in range(4):
            x = v(XF + 16*i + 4*s + d)
            I(f"v_dot2c_f32_bf16 v{112+d}, {sC11}, {x}"); I(f"v_dot2c_f32_bf16 v{116+d}, {x}, {x}")
    if i in (0, 7): stamp()
for op in S_ops(6) + S_ops(7): op()
I("v_mov_b32 v94, 0")
VM(f"buffer_load_dword {v(vPOLL)}, v94, {SDBG}, 0 offen sc1", "tag")
I("v_add_f32 v112, v112, v113"); I("v_add_f32 v114, v114, v115"); I("v_add_f32 v116, v116, v117"); I("v_add_f32 v118, v118, v119")
I("v_add_f32 v112, v112, v114"); I("v_add_f32 v116, v116, v118")
I("v_mov_b32 v113, v112"); I("v_mov_b32 v117, v116")
I("v_permlane32_swap_b32 v112, v113"); I("v_permlane32_swap_b32 v116, v117")
I("v_add_f32 v112, v112, v113"); I("v_add_f32 v116, v116, v117")
I("v_mul_f32 v112, 0x3b000000, v112"); I("v_mul_f32 v116, 0x3b000000, v116")
I("v_fma_f32 v116, -v112, v112, v116"); I("v_max_f32 v116, 0, v116")
bf16r(113, 112)
I(f"v_sub_f32 {v(vNM)}, 0, v113")
bf16r(116, 116); I("v_add_f32 v116, 0x3727c5ac, v116"); bf16r(116, 116); I("v_sqrt_f32 v116, v116"); bf16r(116, 116)
I("v_rcp_f32 v116, v116")
DS(f"ds_write_b32 v89, v113 offset:512", "tabw")
DS(f"ds_write_b32 v89, v116", "tabw")
I(f"v_mul_f32 {v(vR2)}, v116, v116")
I(f"s_sub_u32 {sT0}, 65536, {sM4}")
for s in range(4): I(f"v_add_u32 {v(vP1[s])}, {sT0}, {v(vP1[s])}")
p1_win = [131072]

qV, qD = [], []
marks = set()
def mark(m): return ("mark", m)
def run_op(op):
    if isinstance(op, tuple): marks.add(op[1]); return 0
    if isinstance(op, str): I(op); return 1
    op(); return 1
def popV(n):
    while qV and (n > 0 or isinstance(qV[0], tuple)): n -= run_op(qV.pop(0))
def popD(n):
    while qD and n > 0: n -= run_op(qD.pop(0))
def need_mark(m):
    while m not in marks: run_op(qV.pop(0))
def need_item(name):
    while name not in items or qD and getattr(qD[0], "item", None) == name: run_op(qD.pop(0))
def pushD(ops, name):
    for op in ops: op.item = name
    qD.extend(ops)

fb = [0]
def newfb():
    r = A_FB + 4 * (fb[0] % NFB); fb[0] += 1; return r

class Slot: pass
slots = []
def add_slot(chunk, reads, mfma, needs=(), nV=3, dper=2):
    s = Slot(); s.chunk, s.reads, s.mfma, s.needs, s.nV, s.dper = chunk, reads, mfma, needs, nV, dper; slots.append(s)

def center_ops(f):
    ops = []
    for d in range(4):
        x = v(XF + 4*f + d)
        ops.append(f"v_dot2_f32_bf16 v{80+2*d}, {x}, {sC10}, {v(vNM)}"); ops.append(f"v_dot2_f32_bf16 v{81+2*d}, {x}, {sC01}, {v(vNM)}")
    for d in range(4): ops.append(f"v_cvt_pk_bf16_f32 {v(XF + 4*f + d)}, v{80+2*d}, v{81+2*d}")
    ops.append(mark(f"cen{f}"))
    return ops
for i in range(8):
    for s in range(4):
        f = 4*i + s
        for comp in range(2):
            acc = v(ACC_I if comp else ACC_R, 16)
            add_slot(f"S{i}", [("p1", f"S{i}", s, comp * 4096, s == 3 and comp == 1)],
                     lambda b, f=f, acc=acc: f"v_mfma_f32_32x32x16_bf16 {acc}, {v(XF+4*f,4)}, {a(b[0],4)}, {acc if f else 0}",
                     needs=[f"cen{f}"], nV=6, dper=2)
P2 = len(slots)
for i in range(8):
    order = [(s, u, m) for s in range(4) for u in range(3) for m in range(2)]
    if i == 7: order = [(s, u, m) for u in range(3) for s in range(4) for m in range(2)]
    for n, (s, u, m) in enumerate(order):
        f = 4*i + s
        acc = a(A_U + 16*u, 16) if m else v(ACC_G + 16*u, 16)
        add_slot(f"G{i}", [("gt", f"G{i}", m * 12288 + 16*s*192 + 64*u, n == 23)],
                 lambda b, f=f, acc=acc: f"v_mfma_f32_32x32x16_bf16 {acc}, {a(b[0],4)}, {v(XF+4*f,4)}, {acc if f else 0}", nV=3, dper=2)
P3 = len(slots)
ACC3 = 48
vHR, vWT = 160, 161; vC1 = [162, 163, 164, 165]; vXR = 166; vTAB3 = 167
for i in range(8):
    for s in range(8):
        first = (i == 0 and s == 0)
        add_slot(f"H{i}", [("lin", f"H{i}", s * 1024, s == 7), ("c1", f"C{i}", s & 3, (s >> 2) * 8192, s == 7)],
                 lambda b, first=first: f"v_mfma_f32_32x32x16_bf16 {v(ACC3,16)}, {a(b[0],4)}, {a(b[1],4)}, {0 if first else v(ACC3,16)}", nV=4, dper=1)
P3U = len(slots)
for i in range(11):
    for s in range(8):
        add_slot(f"U{i}", [("lin", f"HG{i}", s * 1024, s == 7), ("wt", f"W{i}", 16*s*128, s == 7)],
                 lambda b: f"v_mfma_f32_32x32x16_bf16 {v(ACC3,16)}, {a(b[0],4)}, {a(b[1],4)}, {v(ACC3,16)}", nV=4, dper=1)
M = len(slots)

win = {"gt": 0, "lin": 0, "c1": 0, "wt": 0}
def set_win(kind, regs, base, span):
    cur = p1_win[0] if kind == "p1" else win[kind]
    if not (cur <= base and base + span <= cur + 65536):
        new = base if base + 65536 > MISC else (base // 49152) * 49152
        if not (new <= base and base + span <= new + 65536): new = base
        for r in regs: I(f"v_add_u32 {v(r)}, {(new - cur) & 0xffffffff}, {v(r)}")
        cur = new
        if kind == "p1": p1_win[0] = cur
        else: win[kind] = cur
    return cur
def emit_reads(m):
    s = slots[m]; s.bufs = []; s.tags = []
    for rd in s.reads:
        kind, name = rd[0], rd[1]; it = items[name]; check_read(it)
        b = newfb(); s.bufs.append(b); tag = f"rd{m}_{kind}"; s.tags.append(tag)
        if kind in ("p1", "c1"):
            regs = vP1 if kind == "p1" else vC1
            w = set_win(kind, regs, it.base, it.size)
            DS(f"ds_read_b128 {a(b,4)}, {v(regs[rd[2]])} offset:{it.base - w + rd[3]}", tag)
        elif kind == "lin":
            w = set_win(kind, [vHR], it.base, it.size)
            DS(f"ds_read_b128 {a(b,4)}, {v(vHR)} offset:{it.base - w + rd[2]}", tag)
        else:
            reg, pitch = (vGT, 192) if kind == "gt" else (vWT, 128)
            w = set_win(kind, [reg], it.base, it.size)
            DS(f"ds_read_b64_tr_b16 {a(b,2)}, {v(reg)} offset:{it.base - w + rd[2]}", tag)
            DS(f"ds_read_b64_tr_b16 {a(b+2,2)}, {v(reg)} offset:{it.base - w + rd[2] + 4*pitch}", tag)
        note_read(it, rd[-1])

events = {}
bevents = {}
def at(m, fn): events.setdefault(m, []).append(fn)
def after_b(chunk, fn): bevents.setdefault(chunk, ([], []))[1].append(fn)
def wait_b(chunk, tag): bevents.setdefault(chunk, ([], []))[0].append(tag)
def chunk_items(chunk):
    k, i = chunk[0], chunk[1:]
    return {"S": [f"S{i}"], "G": [f"G{i}"], "H": [f"C{i}", f"H{i}"], "U": [f"W{i}", f"HG{i}"]}[k]
first_slot = {}
for m, s in enumerate(slots): first_slot.setdefault(s.chunk, m)
def free_at(chunk, fn):
    def f():
        E.barrier(); fn()
    at(first_slot[chunk], f)

after_b("S0", lambda: [pushD(G_ops(i), f"G{i}") for i in range(3)])
after_b("S3", lambda: pushD(G_ops(3), "G3"))
after_b("S6", lambda: pushD(G_ops(4), "G4"))
free_at("G0", lambda: pushD(G_ops(5), "G5"))
free_at("G1", lambda: pushD(G_ops(6), "G6"))
free_at("G2", lambda: pushD(G_ops(7), "G7"))
free_at("G3", lambda: pushD(C_ops(0, 6), "C0"))
free_at("G4", lambda: [pushD(C_ops(1, 7), "C1"), pushD(C_ops(2, 8), "C2")])
free_at("G5", lambda: pushD(C_ops(3, 0), "C3"))
free_at("G6", lambda: [pushD(C_ops(4, 1), "C4"), pushD(C_ops(5, 2), "C5")])
free_at("G7", lambda: [pushD(C_ops(6, 3), "C6"), pushD(XE_ops(), "XE")])
def slot_of(n): return items[n].base // 16384
wish = ["H2", "H3", "C7", "H4", "H5", "H6", "H7", "W0", "W1", "W2", "W3", "W4", "HG0", "HG1", "HG2", "HG3",
        "HG4", "W5", "HG5", "W6", "HG6", "W7", "HG7", "W8", "HG8", "W9", "HG9", "W10", "HG10"]
def push_named(n, sl):
    k = n.rstrip("0123456789"); i = int(n[len(k):])
    pushD({"H": H_ops, "C": C_ops, "W": W_ops, "HG": HG_ops}[k](i, sl), n)
p3chunks = [f"H{i}" for i in range(8)] + [f"U{i}" for i in range(11)]
def poll_issue(soff, tag): VM(f"buffer_load_dword {v(vPOLL)}, {v(vFL)}, {SWS}, {soff} offen sc1", tag)
def poll_check(soff, tag):
    E.wait(vm=tag)
    I(f"v_cmp_ne_u32 vcc, {sNON}, {v(vPOLL)}"); I(f"s_cbranch_vccnz L_slow_{tag}"); E.label(f"L_back_{tag}")
    slow.extend([f"L_slow_{tag}:", "  s_sleep 2", f"  buffer_load_dword {v(vPOLL)}, {v(vFL)}, {SWS}, {soff} offen sc1", "  s_waitcnt vmcnt(0)",
                 f"  v_cmp_ne_u32 vcc, {sNON}, {v(vPOLL)}"] + spin_guard(None, f"L_back_{tag}") +
                [f"  s_cbranch_vccnz L_slow_{tag}", f"  s_branch L_back_{tag}"])
for k in range(1, len(p3chunks)):
    def fn(k=k):
        for n in chunk_items(p3chunks[k-1]):
            if wish:
                w = wish.pop(0)
                if w == "HG0": qD.append(lambda: poll_check(sFG, "pg"))
                if w == "W3": qD.append(lambda: poll_issue(sFG, "pg"))
                push_named(w, slot_of(n))
    free_at(p3chunks[k], fn)

def flag_store(soff, lbl):
    I(f"s_cmp_lg_u32 {sW_}, 0"); I(f"s_cbranch_scc1 {lbl}")
    E.begin_cond()
    I(f"s_lshl_b32 s13, {sG_}, 2"); I(f"v_mov_b32 v12, s13"); I(f"v_mov_b32 v13, {sNON}"); I("s_mov_b64 exec, 1")
    VM(f"buffer_store_dword v13, v12, {SWS}, {soff} offen sc1"); I("s_mov_b64 exec, -1")
    E.end_cond(); E.label(lbl)

for f in range(32): qV.extend(center_ops(f))

def ssm1():
    ops = []
    def tagcheck():
        E.wait(vm="tag"); I(f"v_readfirstlane_b32 {sNON}, {v(vPOLL)}"); I(f"s_cmp_eq_u32 {sNON}, 0"); I("s_cbranch_scc1 L_slow_tag"); E.label("L_back_tag")
        slow.extend(["L_slow_tag:", "  s_sleep 2", "  v_mov_b32 v12, 0", f"  buffer_load_dword {v(vPOLL)}, v12, {SDBG}, 0 offen sc1", "  s_waitcnt vmcnt(0)",
                     f"  v_readfirstlane_b32 {sNON}, {v(vPOLL)}"] + spin_guard(None, "L_back_tag") +
                    [f"  s_cmp_eq_u32 {sNON}, 0", "  s_cbranch_scc1 L_slow_tag", "  s_branch L_back_tag"])
    ops.append(tagcheck)
    def rd(j): return lambda: DS(f"ds_read_b128 {v(vRT + 4*(j&1), 4)}, {v(vTAB)} offset:{16*j}", f"rt{j}")
    ops += [rd(0), rd(1)]
    cur, nx = (vE, vE + 1), (vE2, vE2 + 1)
    for r in range(16):
        rt = v(vRT + 4*((r >> 2) & 1) + (r & 3)); aR, aI = ACC_R + r, ACC_I + r
        if r % 4 == 0: ops.append(lambda j=r >> 2: E.wait(lg=f"rt{j}"))
        ops += [f"v_mul_f32 v12, {v(aR)}, {rt}", f"v_mul_f32 v13, {v(aI)}, {rt}"]
        if r % 4 == 3 and r < 8: ops.append(rd((r >> 2) + 2))
        ops += [f"v_mul_f32 {v(aR)}, {v(vCR)}, v12", f"v_mul_f32_e64 {v(aI)}, -{v(vCR)}, v13",
                f"v_fma_f32 {v(aR)}, -{v(vCI)}, v13, {v(aR)}", f"v_fma_f32 {v(aI)}, -{v(vCI)}, v12, {v(aI)}"]
        if r == 0: src = (aR, aI)
        else:
            ops += cfma_ops(nx, vLR, src, aR, aI); src = nx; cur, nx = nx, cur
    assert src == (vE2, vE2 + 1)
    ops.append(lambda: DS(f"ds_write_b64 {v(vEQA)}, {v(vE2,2)} offset:{7*256}", "eqw"))
    def bar(): E.wait(lg="eqw"); E.barrier()
    ops.append(bar); ops.append(mark("ssm1"))
    return ops
at(P2 + 1, lambda: qV.extend(ssm1()))
for m in range(P2 + 1, P2 + 24): slots[m].nV = 8

def ssm2():
    ops = [lambda i=i: DS(f"ds_read_b64 {v(128+2*i,2)}, {v(vEQA)} offset:{256*i}", f"eq{i}") for i in range(7)]
    ops += [f"s_lshl_b32 {sT0}, {sG_}, 4", f"s_add_u32 {sT0}, {sT0}, {sC_}", f"s_lshl_b32 {sT0}, {sT0}, 9", f"s_add_u32 {sT0}, {sT0}, {WS_EB - 512}",
            f"v_lshlrev_b32 v142, 4, {vLANE}", f"v_add_u32 v142, {sT0}, v142", f"v_mov_b32 v143, {OOB}",
            f"s_cmp_eq_u32 {sW_}, 3", f"s_cselect_b32 {sT1}, 31, 64", f"v_cmp_lt_u32 vcc, {sT1}, {vLANE}", "v_cndmask_b32 v142, v143, v142, vcc"]
    src = (128, 129); pp = [(vP, vP + 1), (vE, vE + 1)]
    ops.append(lambda: E.wait(lg="eq1"))
    for i in range(1, 7):
        if i > 1: ops.append(lambda i=i: E.wait(lg=f"eq{i}"))
        d = pp[i & 1]; ops += cfma_ops(d, vL16, src, 128 + 2*i, 129 + 2*i); src = d
    assert src == (vP, vP + 1)
    ops += cfma_ops((36, 38), vL16, src, vE2, vE2 + 1)
    ops += [f"v_mov_b32 v37, {sNON}", f"v_mov_b32 v39, {sNON}"]
    ops.append(lambda: VM(f"buffer_store_dwordx4 v[36:39], v142, {SWS}, 0 offen sc1", "est"))
    ops += [f"s_lshl_b32 {sT0}, {sW_}, 2", f"s_add_u32 {sT0}, {sT0}, {sC_}", f"s_sub_u32 {sT0}, {sT0}, 16",
            f"v_lshrrev_b32 v136, 5, {vLANE}", "v_lshlrev_b32 v136, 1, v136", f"v_add_u32 v136, {sT0}, v136",
            f"s_lshl_b32 {sT1}, {sG_}, 13", f"s_add_u32 {sT1}, {sT1}, {WS_EB}",
            f"v_and_b32 v137, 31, {vLANE}", "v_lshlrev_b32 v137, 4, v137", f"v_add_u32 v137, {sT1}, v137",
            "v_lshl_add_u32 v140, v136, 9, v137", "v_add_u32 v141, 512, v140", f"v_mov_b32 v137, {sNON}",
            "v_cmp_le_i32 vcc, 0, v136", "v_cndmask_b32 v140, v143, v140, vcc", "v_cndmask_b32 v138, 0, v137, vcc",
            "v_cmp_le_i32 vcc, -1, v136", "v_cndmask_b32 v141, v143, v141, vcc", "v_cndmask_b32 v139, 0, v137, vcc", mark("ssm2")]
    return ops
at(P2 + 24, lambda: (need_mark("ssm1"), qV.extend(atomize(ssm2()))))
for m in range(P2 + 24, P2 + 36): slots[m].nV = 7

def p3addr_a():
    o = []
    o += [f"v_lshrrev_b32 v36, 3, {vLANE}", f"v_and_b32 v37, 7, {vLANE}", "v_lshrrev_b32 v38, 1, v36", "v_xor_b32 v39, v37, v38", "v_lshlrev_b32 v39, 4, v39", "v_xor_b32 v40, 64, v39"]
    o += [f"s_and_b32 {sT1}, {sW_}, 1", f"s_lshl_b32 {sT0}, {sT1}, 5", f"s_lshl_b32 {sT2}, {sGL}, 6", f"s_add_u32 {sT0}, {sT0}, {sT2}",
          f"v_add_u32 v41, {sT0}, v36", "v_lshlrev_b32 v41, 10, v41",
          f"v_add_u32 {v(vCo[0])}, v41, v39", f"v_add_u32 {v(vCo[1])}, v41, v40",
          f"v_add_u32 {v(vCo[2])}, {2*7168}, {v(vCo[0])}", f"v_add_u32 {v(vCo[3])}, {3*7168}, {v(vCo[1])}", f"v_add_u32 {v(vCo[1])}, 7168, {v(vCo[1])}", mark("vCo")]
    o += ["v_and_b32 v38, 1, v38", "v_lshlrev_b32 v38, 2, v38", "v_xor_b32 v38, v37, v38", "v_lshlrev_b32 v38, 4, v38", "v_lshl_add_u32 v38, v36, 10, v38",
          f"s_lshl_b32 {sT0}, {sW_}, 15", f"s_lshl_b32 {sT2}, {sGL}, 7", f"s_add_u32 {sT0}, {sT0}, {sT2}", f"v_add_u32 {v(vWo[0])}, {sT0}, v38"]
    o += [f"v_add_u32 {v(vWo[q])}, {7168*q}, {v(vWo[0])}" for q in range(1, 4)]
    o += [f"s_lshl_b32 {sT0}, {sC_}, 7", f"s_lshl_b32 {sT3}, {sGH}, 6", f"s_add_u32 {sT0}, {sT0}, {sT3}", f"s_lshl_b32 {sT3}, {sW_}, 4", f"s_add_u32 {sT0}, {sT0}, {sT3}",
          f"s_lshl_b32 {sT0}, {sT0}, 10", f"s_add_u32 {sT0}, {sT0}, {sT2}",
          "v_lshlrev_b32 v38, 4, v37", "v_lshl_add_u32 v38, v36, 10, v38", f"v_add_u32 {v(vXEo[0])}, {sT0}, v38", f"v_add_u32 {v(vXEo[1])}, 7168, {v(vXEo[0])}"]
    o += [f"s_lshl_b32 {sT0}, {sC_}, 2", f"s_lshl_b32 {sT3}, {sGH}, 1", f"s_add_u32 {sT0}, {sT0}, {sT3}", f"s_lshr_b32 {sT3}, {sW_}, 1", f"s_add_u32 {sT0}, {sT0}, {sT3}",
          f"s_mul_i32 {sT0}, {sT0}, {152*1024}", f"s_lshl_b32 {sT3}, {sT1}, 12", f"s_add_u32 {sT0}, {sT0}, {sT3}",
          f"v_lshlrev_b32 v38, 4, {vLANE}", f"v_add_u32 {v(vHo)}, {sT0}, v38"]
    o += [f"s_lshl_b32 {sT0}, {sC_}, 2", f"s_add_u32 {sT0}, {sT0}, {sW_}", f"s_mul_i32 {sT0}, {sT0}, {152*1024}", f"v_add_u32 {v(vHST)}, {sT0}, v38",
          f"s_lshr_b32 {sT0}, {sG_}, 1", f"s_lshl_b32 {sT0}, {sT0}, 13", f"s_and_b32 {sT3}, {sG_}, 1", f"s_lshl_b32 {sT3}, {sT3}, 11", f"s_add_u32 {sHST}, {sT0}, {sT3}", f"s_add_u32 {sHST2}, {sHST}, 4096"]
    for uu in range(3):
        o += [f"s_mul_i32 {sT0}, {sG_}, 3", f"s_add_u32 {sT0}, {sT0}, {uu}", f"s_lshl_b32 {sT3}, {sT0}, 11", f"s_add_u32 {sT3}, {sT3}, 65536",
              f"s_cmp_lt_u32 {sT0}, 44", f"s_cselect_b32 {sHG[uu]}, {sT3}, 0x40000000"]
    o += [f"s_mul_i32 {sT0}, {sW_}, 2304", f"s_add_u32 {sT0}, {sT0}, {HS}",
          f"v_and_b32 v36, 31, {vLANE}", "v_mul_u32_u24 v36, 72, v36", f"v_and_b32 v37, 32, {vLANE}", "v_add_u32 v36, v36, v37", f"v_add_u32 {v(vHSW)}, {sT0}, v36",
          f"v_bfe_u32 v36, {vLANE}, 2, 2", "v_lshrrev_b32 v37, 2, v37", "v_add_u32 v36, v36, v37", "v_mul_u32_u24 v36, 72, v36",
          f"v_and_b32 v37, 1, {vLANE}", "v_lshl_add_u32 v36, v37, 5, v36", f"v_and_b32 v37, 16, {vLANE}", "v_add_u32 v36, v36, v37",
          f"v_and_b32 v37, 2, {vLANE}", "v_lshl_add_u32 v36, v37, 2, v36", f"v_add_u32 {v(vHSR)}, {sT0}, v36"]
    o += [f"v_and_b32 {v(vFL)}, 15, {vLANE}", f"v_lshlrev_b32 {v(vFL)}, 2, {v(vFL)}",
          f"s_lshl_b32 {sT0}, {sC_}, 8", f"s_add_u32 {sFH}, {sT0}, {WS_FH}", f"s_add_u32 {sFG}, {sT0}, {WS_FG}"]
    o += [f"s_lshl_b32 {sT0}, {sC_}, 7", f"s_lshl_b32 {sT3}, {sGH}, 6", f"s_add_u32 {sT0}, {sT0}, {sT3}", f"s_lshr_b32 {sT3}, {sW_}, 1", f"s_lshl_b32 {sT3}, {sT3}, 5",
          f"s_add_u32 {sT0}, {sT0}, {sT3}", f"s_lshl_b32 {sT0}, {sT0}, 11", f"s_lshl_b32 {sT3}, {sGL}, 8", f"s_add_u32 {sT0}, {sT0}, {sT3}", f"s_lshl_b32 {sT3}, {sT1}, 7", f"s_add_u32 {sT0}, {sT0}, {sT3}",
          f"v_and_b32 v36, 31, {vLANE}", "v_lshlrev_b32 v36, 2, v36", f"v_and_b32 v37, 32, {vLANE}", "v_lshl_add_u32 v36, v37, 10, v36", f"v_add_u32 {v(vOUT)}, {sT0}, v36", mark("p3a")]
    return o
def atomize(ops):
    out = []
    for op in ops:
        if isinstance(op, str) and (op.startswith("s_cselect") or op.startswith("v_cndmask")) and out and not isinstance(out[-1], tuple):
            prev = out.pop()
            out.append(lambda prev=prev, op=op: (run_op(prev), I(op)))
        else: out.append(op)
    return out
at(P2 + 48, lambda: qV.extend(atomize(p3addr_a())))
def p3addr_b():
    o = [f"s_and_b32 {sT1}, {sW_}, 1", f"s_lshr_b32 {sT2}, {sW_}, 1"]
    o += [f"s_lshl_b32 {sT0}, {sT2}, 13", f"v_lshlrev_b32 {v(vHR)}, 4, {vLANE}", f"v_add_u32 {v(vHR)}, {sT0}, {v(vHR)}"]
    o += [f"v_lshrrev_b32 v36, 5, {vLANE}", f"v_bfe_u32 v37, {vLANE}, 1, 3", "v_xor_b32 v37, v37, v36", "v_lshlrev_b32 v37, 4, v37",
          f"v_and_b32 v38, 31, {vLANE}", "v_lshl_add_u32 v37, v38, 7, v37", f"s_lshl_b32 {sT0}, {sT1}, 12", f"v_add_u32 {v(vC1[0])}, {sT0}, v37"]
    o += [f"v_xor_b32 {v(vC1[s])}, {32*s}, {v(vC1[0])}" for s in range(1, 4)]
    o += [f"v_bfe_u32 v37, {vLANE}, 2, 2", "v_lshl_add_u32 v37, v36, 3, v37", "v_lshlrev_b32 v37, 7, v37",
          f"v_and_b32 v39, 16, {vLANE}", "v_lshl_add_u32 v37, v39, 1, v37", f"v_and_b32 v39, 3, {vLANE}", "v_lshl_add_u32 v37, v39, 3, v37",
          f"v_and_b32 v39, 8, {vLANE}", "v_lshlrev_b32 v39, 3, v39", f"s_lshl_b32 {sT0}, {sT1}, 6", f"v_xor_b32 v39, {sT0}, v39", f"v_add_u32 {v(vWT)}, v37, v39"]
    o += [f"s_lshl_b32 {sT3}, {sT2}, 12", f"s_add_u32 {sT0}, {sT0}, {sT3}", f"s_add_u32 {sT0}, {sT0}, {XE}",
          "v_lshlrev_b32 v37, 11, v36", "v_lshl_add_u32 v37, v38, 1, v37", f"v_add_u32 {v(vXR)}, {sT0}, v37",
          f"s_lshl_b32 {sT0}, {sGH}, 8", f"s_lshl_b32 {sT3}, {sT2}, 7", f"s_add_u32 {sT0}, {sT0}, {sT3}", f"s_add_u32 {sT0}, {sT0}, {RTAB}",
          "v_lshlrev_b32 v37, 6, v36", f"v_add_u32 {v(vTAB3)}, {sT0}, v37", mark("p3b")]
    return o
at(P2 + 72, lambda: need_mark("vCo"))
at(P2 + 130, lambda: qV.extend(p3addr_b()))

def efetch():
    need_mark("ssm2")
    VM(f"buffer_load_dwordx4 v[128:131], v140, {SWS}, 0 offen sc1", "ef"); VM(f"buffer_load_dwordx4 v[132:135], v141, {SWS}, 0 offen sc1", "ef")
at(P2 + OPT["efetch"], efetch)
ZR = 176
def ssm3():
    chk = ["v_xor_b32 v136, v129, v138", "v_xor_b32 v137, v131, v138", "v_or_b32 v136, v136, v137",
           "v_xor_b32 v137, v133, v139", "v_or_b32 v136, v136, v137", "v_xor_b32 v137, v135, v139", "v_or_b32 v136, v136, v137", "v_cmp_ne_u32 vcc, 0, v136"]
    def check():
        E.wait(vm="ef")
        for c in chk: I(c)
        I("s_cbranch_vccnz L_slow_e"); E.label("L_back_e")
        slow.extend(["L_slow_e:", "  s_sleep 2", f"  buffer_load_dwordx4 v[128:131], v140, {SWS}, 0 offen sc1", f"  buffer_load_dwordx4 v[132:135], v141, {SWS}, 0 offen sc1",
                     "  s_waitcnt vmcnt(0)"] + ["  " + c for c in chk] + spin_guard(None, "L_back_e") + ["  s_cbranch_vccnz L_slow_e", "  s_branch L_back_e"])
    ops = [check]
    ops += cfma_ops((vE, vE + 1), vL128, (128, 130), 132, 134)
    ops.append(lambda: DS(f"ds_write_b64 {v(vEQA)}, {v(vE,2)} offset:{ZT - EQ}", "zw"))
    ops += [f"v_and_b32 v136, 31, {vLANE}", "v_lshlrev_b32 v136, 3, v136", f"v_add_u32 v136, {ZT}, v136"]
    def bar(): E.wait(lg="zw"); E.barrier()
    ops.append(bar)
    ops += [lambda i=i: DS(f"ds_read_b64 {v(ZR+2*i,2)}, v136 offset:{256*i}", f"z{i}") for i in range(8)]
    src = (ZR, ZR + 1); pp = [(vE, vE + 1), (vE2, vE2 + 1)]
    for i in range(1, 8):
        ops.append(lambda i=i: E.wait(lg=f"z{i}"))
        d = pp[i & 1]; ops += cfma_ops(d, vL256, src, ZR + 2*i, ZR + 2*i + 1); src = d
    assert src == (vE2, vE2 + 1)
    ops += cfma_ops((vE, vE + 1), vPQ, src, vP, vP + 1)
    src = (vE, vE + 1)
    for r in range(16):
        d = (ACC_R + r, ACC_I + r); ops += cfma_ops(d, vLR, src, d[0], d[1]); src = d
        if r & 1:
            ops += [f"v_cvt_pk_bf16_f32 {v(ZR + (r>>1))}, {v(ACC_R+r-1)}, {v(ACC_R+r)}", f"v_cvt_pk_bf16_f32 {v(ZR + 8 + (r>>1))}, {v(ACC_I+r-1)}, {v(ACC_I+r)}"]
    for comp in range(2):
        ops += [lambda j=j, comp=comp: DS(f"ds_write_b64 {v(vHSW)}, {v(ZR + 8*comp + 2*j, 2)} offset:{8*j}", "hsw") for j in range(4)]
        for st in range(2):
            for ph in range(2):
                ops.append(lambda st=st, ph=ph, comp=comp: DS(f"ds_read_b64_tr_b16 {v(128 + 8*comp + 4*st + 2*ph, 2)}, {v(vHSR)} offset:{(16*st + 4*ph)*72}", f"hr{comp}{st}"))
    for comp in range(2):
        for st in range(2):
            def stv(st=st, comp=comp):
                E.wait(lg=f"hr{comp}{st}")
                VM(f"buffer_store_dwordx4 {v(128 + 8*comp + 4*st, 4)}, {v(vHST)}, {SWS}, {sHST2 if comp else sHST} offen offset:{st*1024} sc1", "hst")
            ops.append(stv)
    ops.append(mark("ssm3"))
    return ops
EC = P2 + max(OPT["echeck"], 96)
at(EC, lambda: (need_mark("p3a"), qV.extend(ssm3())))
for m in range(EC, EC + 24): slots[m].nV = 7
hf = f"G{OPT['hflag']}"
wait_b(hf, "hst"); after_b(hf, lambda: flag_store(sFH, "L_fh"))

def glu_epi(u):
    ops = []; o = 192 + 8*u; t = 216
    for j in range(8):
        t0, t1 = t + 2*(j & 3), t + 2*(j & 3) + 1
        ops += [f"v_accvgpr_read_b32 {v(t0)}, {a(A_U+16*u+2*j)}", f"v_accvgpr_read_b32 {v(t1)}, {a(A_U+16*u+2*j+1)}",
                f"v_mul_f32 {v(t0)}, {v(vR2)}, {v(t0)}", f"v_mul_f32 {v(t1)}, {v(vR2)}, {v(t1)}",
                f"v_mul_f32 {v(t0)}, {v(ACC_G+16*u+2*j)}, {v(t0)}", f"v_mul_f32 {v(t1)}, {v(ACC_G+16*u+2*j+1)}, {v(t1)}",
                f"v_cvt_pk_bf16_f32 {v(o+j)}, {v(t0)}, {v(t1)}"]
        if j & 3 == 3:
            ops.append(lambda fr=j >> 2: VM(f"buffer_store_dwordx4 {v(o + 4*fr, 4)}, {v(vHST)}, {SWS}, {sHG[u]} offen offset:{fr*1024} sc1", "gst"))
    ops.append(mark(f"epi{u}"))
    return ops
G7 = first_slot["G7"]
at(G7 + 10, lambda: qV.extend(glu_epi(0))); at(G7 + 18, lambda: qV.extend(glu_epi(1)))
for m in range(G7 + 10, P3): slots[m].nV = 7
at(P2 + OPT["poll1"], lambda: poll_issue(sFH, "ph"))
wait_b("H1", "gst"); after_b("H1", lambda: flag_store(sFG, "L_fg"))

BASE = 64
def base_ops():
    ops = [f"v_mov_b32 {v(BASE+r)}, 0" for r in range(16)]
    def rdx(r):
        check_read(items["XE"]); DS(f"ds_read_u16_d16_hi {v(BASE+r)}, {v(vXR)} offset:{128*r}", f"xe{r}")
    ops += [lambda r=r: rdx(r) for r in range(16)]
    ops += [lambda j=j: DS(f"ds_read_b128 {v(80+4*j,4)}, {v(vTAB3)} offset:{16*j}", f"r3{j}") for j in range(4)]
    ops += [lambda j=j: DS(f"ds_read_b128 {v(96+4*j,4)}, {v(vTAB3)} offset:{512+16*j}", f"m3{j}") for j in range(4)]
    ops.append(lambda: E.wait(lg="m33"))
    for r in range(0, 16, 2):
        t0, t1, p = 112, 113, 114
        rnd = [f"v_cvt_pk_bf16_f32 {v(p)}, {v(t0)}, {v(t1)}", f"v_lshlrev_b32 {v(t0)}, 16, {v(p)}", f"v_and_b32 {v(t1)}, 0xffff0000, {v(p)}"]
        ops += [f"v_sub_f32 {v(t0)}, {v(BASE+r)}, {v(96+r)}", f"v_sub_f32 {v(t1)}, {v(BASE+r+1)}, {v(97+r)}"] + rnd
        ops += [f"v_mul_f32 {v(t0)}, {v(t0)}, {v(80+r)}", f"v_mul_f32 {v(t1)}, {v(t1)}, {v(81+r)}"] + rnd
        ops += [f"v_mul_f32 {v(t0)}, {v(t0)}, {v(vDSK)}", f"v_mul_f32 {v(t1)}, {v(t1)}, {v(vDSK)}"] + rnd
        ops += [f"v_add_f32 {v(BASE+r)}, {v(BASE+r)}, {v(t0)}", f"v_add_f32 {v(BASE+r+1)}, {v(BASE+r+1)}, {v(t1)}"]
    ops.append(mark("base"))
    return ops
at(first_slot["H2"], lambda: qV.extend(base_ops()))

def boundary(chunk):
    ex, fns = bevents.get(chunk, ([], []))
    if chunk == "H0":
        pass
    for n in chunk_items(chunk): need_item(n)
    if "hst" in ex: need_mark("ssm3")
    if "gst" in ex: need_mark("epi2")
    E.wait(vm=chunk_items(chunk) + ex, lg=["tabw", "eqz"])
    E.barrier()
    for fn in fns: fn()

D = OPT["D"]
def do_slot(m):
    s = slots[m]
    for n in s.needs: need_mark(n)
    E.wait(lg=s.tags)
    I(s.mfma(s.bufs))
    for fn in events.get(m, []): fn()
def segment(lo, hi):
    for m in range(lo - D, hi):
        if m >= lo: do_slot(m)
        r = m + D
        if r < hi:
            if first_slot[slots[r].chunk] == r: boundary(slots[r].chunk)
            emit_reads(r)
        if m >= lo:
            if m % slots[m].dper == 0: popD(1)
            popV(slots[m].nV)
            if OPT["stamps"] and first_slot[slots[m].chunk] == m and slots[m].chunk in ("S0", "G0", "G2", "G4", "G6", "H0", "H1", "H4", "U0", "U1", "U5", "U10"): stamp()
segment(0, P3)
stamp()
need_mark("p3b"); popD(100)
E.barrier()
poll_check(sFH, "ph")
for op in H_ops(0, 4) + H_ops(1, 5): op()
need_mark("epi1"); qV.extend(glu_epi(2)); need_mark("epi2")
stamp()
segment(P3, M)
need_mark("base")
assert not qV and not qD and not wish, (len(qV), len(qD), wish)
stamp()
for r in range(16):
    I(f"v_add_f32 {v(BASE+r)}, {v(BASE+r)}, {v(ACC3+r)}")
    if r % 2 == 0: I(f"s_mov_b32 {sT0}, {(r>>1)*4096}")
    VM(f"buffer_store_dword {v(BASE+r)}, {v(vOUT)}, {SOUT}, {sT0} offen offset:{(r&1)*2048}", "out")
if OPT["stamps"]:
    E.wait_all(vm=True); stamp()
    I(f"s_lshl_b32 {sT0}, s2, 2"); I(f"s_add_u32 {sT0}, {sT0}, {sW_}"); I(f"s_lshl_b32 {sT0}, {sT0}, 8"); I(f"s_add_u32 {sT0}, {sT0}, {WS_ST}")
    I(f"v_writelane_b32 v0, {sSPIN}, {nstamp[0]}")
    I(f"v_lshlrev_b32 v2, 2, {vLANE}"); I(f"v_cmp_ge_u32 vcc, {nstamp[0]}, {vLANE}"); I("s_and_saveexec_b64 s[98:99], vcc")
    VM(f"buffer_store_dword v0, v2, {SWS}, {sT0} offen")
    if OPT["stamps"] == 2:
        I("s_mov_b64 exec, 1"); I("s_memrealtime s[98:99]"); E.wait_all(lg=True)
        I("s_not_b32 s14, s14"); I("s_mov_b64 exec, -1"); I("v_mov_b32 v5, 0"); I("s_mov_b64 exec, 1"); I("v_mov_b32 v3, s14"); I("v_mov_b32 v4, s98")
        VM(f"buffer_atomic_umax v3, v5, {SDBG}, 0 offen offset:4"); VM(f"buffer_atomic_umax v4, v5, {SDBG}, 0 offen offset:8")
        I(f"s_lshl_b32 {sT0}, s2, 2"); I(f"s_add_u32 {sT0}, {sT0}, {sW_}"); I(f"s_cmp_lg_u32 {sT0}, 148"); I("s_cbranch_scc1 L_end")
        I("s_mov_b64 exec, -1"); I("v_readlane_b32 s14, v0, 0"); I("v_subrev_u32 v0, s14, v0")
        for n, l in enumerate([1, 2, 3, 4, 6, 8, 10, 13, 17, 18]):
            I(f"v_readlane_b32 s14, v0, {l}"); I(f"v_mov_b32 v3, s14"); VM(f"buffer_store_dword v3, v5, {SDBG}, 0 offen offset:{12+4*n}")
E.label("L_end")
I("s_endpgm")

hdr = open("cdna_kernels/" + NAME + ".s.ref").read().split("; Override launch geometry")[0]
out = hdr + f"; @launch grid=(256,1,1) block=(256,1,1) lds={LDS_BYTES}\n"
out += f'.amdgcn_target "amdgcn-amd-amdhsa--gfx950"\n.text\n.globl {NAME}_kernel\n.p2align 8\n.type {NAME}_kernel,@function\n'
out += E.text() + "\n".join(slow) + "\n"
out += f""".section .rodata,"a"
.p2align 6
.amdhsa_kernel {NAME}_kernel
  .amdhsa_next_free_vgpr 384
  .amdhsa_next_free_sgpr 102
  .amdhsa_accum_offset 256
  .amdhsa_group_segment_fixed_size 0
  .amdhsa_kernarg_size 128
  .amdhsa_user_sgpr_count 2
  .amdhsa_user_sgpr_kernarg_segment_ptr 1
  .amdhsa_system_sgpr_workgroup_id_x 1
.end_amdhsa_kernel
"""
open(sys.argv[1], "w").write(out)
print(f"instructions {E.count}, nops {E.nops}, barriers {len(E.barriers)}, vm ops {len(E.vm)}, ds ops {len(E.lg)}", file=sys.stderr)
```

```python
import sys
from emit import Emitter
NAME = "parallel_sum__ssm_conv_s5__glu_gated_bilinear__prompt"
OPT = dict(stamps=0, pairw=1, D=5, efetch=72, echeck=92, hflag=7, poll1=184)
for a in sys.argv[2:]:
    k, v = a.split("="); OPT[k] = int(v)

WS_EB = 0xA00000; WS_FH = 0xA40000; WS_FG = 0xA42000; WS_ST = 0xC00000; WS_SIZE = 0xD00000
U8 = 8192
MISC = 18 * U8
RTAB = MISC; MTAB = MISC + 512; EQ = MISC + 1024; ZT = MISC + 4864; HS = MISC + 7168; XE = MISC + 7168
LDS_BYTES = 163840
OOB = 0x80000000
sW_, sC_, sG_, sGL, sGH, sJ0 = "s3", "s4", "s5", "s6", "s7", "s8"
sT0, sT1, sT2, sT3 = "s9", "s10", "s11", "s12"
SX, SS, SG, SC, SWD, SWS, SOUT, SDBG = ("s[48:51]", "s[52:55]", "s[56:59]", "s[60:63]", "s[64:67]", "s[68:71]", "s[72:75]", "s[76:79]")
sK = [f"s{80+i}" for i in range(8)]
sM4, sM2, sM6 = "s88", "s89", "s94"
sQW, sQHG = "s95", "s96"
sSO = "s100"
sHST, sHST2 = "s16", "s17"
sHG = ["s18", "s19", "s20"]
sNON, sC10, sC01, sC11 = "s90", "s91", "s92", "s93"
sFH, sFG = "s21", "s22"
sSPIN = "s97"
sST = "s[98:99]"
vLANE = "v1"
vP1 = [2, 3, 4, 5]; vGT = 6; vGo = [7, 8, 9]; vSo = [10, 11]; vXo = [12, 13, 14, 15]
vR2, vNM = 16, 17
vLR, vLI, vCR, vCI = 18, 19, 20, 21
vL16, vL128, vL256, vPQ = 22, 24, 26, 28
vE, vE2, vP = 30, 32, 34
vRT = 36
vTAB, vEQA, vPOLL, vDSK = 44, 45, 46, 47
ACC_R, ACC_I = 48, 64
ACC_G = 80
XF = 128
A_U = 0; A_FB = 48; NFB = 16

E = Emitter()
I, VM, DS = E.I, E.VM, E.DS
def v(n, k=1): return f"v{n}" if k == 1 else f"v[{n}:{n+k-1}]"
def a(n, k=1): return f"a{n}" if k == 1 else f"a[{n}:{n+k-1}]"
slow = []
nstamp = [0]
def stamp():
    if not OPT["stamps"]: return
    I(f"s_memtime {sST}"); E.wait_all(lg=True)
    I(f"v_writelane_b32 v0, s98, {nstamp[0]}"); nstamp[0] += 1

def cmul(d, x, y, t):
    I(f"v_mul_f32 {v(t)}, {v(x)}, {v(y)}"); I(f"v_mul_f32 {v(t+1)}, {v(x)}, {v(y+1)}")
    I(f"v_fma_f32 {v(t)}, -{v(x+1)}, {v(y+1)}, {v(t)}"); I(f"v_fma_f32 {v(d+1)}, {v(x+1)}, {v(y)}, {v(t+1)}")
    I(f"v_mov_b32 {v(d)}, {v(t)}")
def cfma_ops(d, L, x, br, bi):
    return [f"v_fma_f32 {v(d[0])}, {v(L)}, {v(x[0])}, {v(br)}", f"v_fma_f32 {v(d[1])}, {v(L)}, {v(x[1])}, {v(bi)}",
            f"v_fma_f32 {v(d[0])}, -{v(L+1)}, {v(x[1])}, {v(d[0])}", f"v_fma_f32 {v(d[1])}, {v(L+1)}, {v(x[0])}, {v(d[1])}"]
def bf16r(d, s):
    I(f"v_cvt_pk_bf16_f32 {v(d)}, {v(s)}, {v(s)}"); I(f"v_and_b32 {v(d)}, 0xffff0000, {v(d)}")

class Item:
    def __init__(s, name, base, size, private=False):
        s.name, s.base, s.size, s.private = name, base, size, private
        s.last_read = None; s.reads_done = False; s.ndma = 0
items = {}
live = []
def place(name, base, size, private=False):
    for o in list(live):
        if o.base < base + size and base < o.base + o.size:
            assert o.reads_done, (name, "overlaps unread", o.name)
            assert any(lg >= o.last_read for (_, lg) in E.barriers[o.bar_at_last_read:]), (name, "WAR: no covering barrier after reads of", o.name)
            live.remove(o)
    it = Item(name, base, size, private); items[name] = it; live.append(it); return it
def check_read(it):
    nv = E.last(E.vm, it.name)
    if it.private: assert E.vm_done >= nv, it.name
    else: assert any(vm >= nv for (vm, _) in E.barriers), ("RAW", it.name)
def note_read(it, last=False):
    it.last_read = len(E.lg); it.bar_at_last_read = len(E.barriers)
    if last: it.reads_done = True

def dma_ops(name, base, size, srd, sm, voffs, prep, private=False, pol="", split=None):
    ops = []; so = [None]
    def ld(q): VM(f"buffer_load_dwordx4 {v(voffs[q])}, {srd}, {so[0]} offen" + (f" offset:{q*1024}" if q else "") + f"{pol} lds", name)
    def first():
        place(name, base, size, private); I(f"s_add_u32 m0, {sm}, {base}"); so[0] = prep(); ld(0)
    ops.append(first)
    for q in range(1, len(voffs)): ops.append(lambda q=q: ld(q))
    if split:
        m0_add, soff_add = split
        def second():
            I(f"s_add_u32 m0, {sm}, {base + m0_add}"); I(f"s_add_u32 {sSO}, {sSO}, {soff_add}"); ld(0)
        ops.append(second)
        for q in range(1, len(voffs)): ops.append(lambda q=q: ld(q))
    return ops
X_BASE = [2 * i * U8 for i in range(8)]
S_BASE = [16 * U8, 17 * U8] + [i * U8 for i in range(6)]
G_BASE = [6 * U8, 9 * U8, 12 * U8, 15 * U8, 0, 3 * U8, 6 * U8, 9 * U8]
vCo = [144, 145, 146, 147]; vWo = [148, 149, 150, 151]; vHo = 152; vXEo = [153, 154]
vHST = 155; vHSW = 156; vHSR = 157; vFL = 158; vOUT = 159
def X_ops(i): return dma_ops(f"X{i}", X_BASE[i], 16384, SX, sM4, vXo, lambda: sK[i], private=True)
def S_ops(i): return dma_ops(f"S{i}", S_BASE[i], 8192, SS, sM2, vSo, lambda: sK[i])
def G_ops(i):
    def prep(): I(f"s_mul_i32 {sSO}, {sK[i]}, 1376"); return sSO
    return dma_ops(f"G{i}", G_BASE[i], 24576, SG, sM6, vGo, prep, split=(3072, 16 * 2752))
def C_ops(i, sl): return dma_ops(f"C{i}", sl * 16384, 16384, SC, sM4, vCo, lambda: sK[i])
def H_ops(i, sl):
    def prep(): I(f"s_lshl_b32 {sSO}, {sK[i]}, 6"); return sSO
    return dma_ops(f"H{i}", sl * 16384, 16384, SWS, sM4, [vHo] * 4, prep, pol=" sc1")
def adv11(s):
    I(f"s_add_u32 {s}, {s}, 1"); I(f"s_cmp_eq_u32 {s}, 11"); I(f"s_cselect_b32 {s}, 0, {s}")
def W_ops(i, sl):
    def prep(): I(f"s_lshl_b32 {sSO}, {sQW}, 17"); adv11(sQW); return sSO
    return dma_ops(f"W{i}", sl * 16384, 16384, SWD, sM4, vWo, prep)
def HG_ops(i, sl):
    def prep(): I(f"s_lshl_b32 {sSO}, {sQHG}, 13"); I(f"s_add_u32 {sSO}, {sSO}, 65536"); adv11(sQHG); return sSO
    return dma_ops(f"HG{i}", sl * 16384, 16384, SWS, sM4, [vHo] * 4, prep, pol=" sc1")
def XE_ops(): return dma_ops("XE", XE, 8192, SX, sM2, vXEo, lambda: "0")

def spin_guard(lbl_loop, lbl_back):
    return [f"  s_add_u32 {sSPIN}, {sSPIN}, 1", f"  s_cmp_gt_u32 {sSPIN}, 0x40000", f"  s_cbranch_scc1 {lbl_back}"]

E.label(f"{NAME}_kernel")
I("s_cmp_ge_u32 s2, 256"); I("s_cbranch_scc1 L_end")
I("s_load_dwordx16 s[16:31], s[0:1], 0")
I("s_getpc_b64 s[12:13]"); I(f"s_bfe_u32 {sT0}, s2, 0x20003"); I("v_and_b32 v80, 0xfc, v0"); I(f"v_or_b32 v80, {sT0}, v80"); I("v_lshlrev_b32 v80, 7, v80")
VM("global_load_dword v126, v80, s[12:13]", "code")
I("s_load_dwordx16 s[32:47], s[0:1], 64")
I("s_memrealtime s[14:15]")
I("v_lshrrev_b32 v80, 6, v0"); I(f"v_and_b32 {vLANE}, 63, v0"); I(f"v_readfirstlane_b32 {sW_}, v80")
I(f"s_bfe_u32 {sT0}, s2, 0x20001")
I(f"s_lshr_b32 {sT1}, s2, 6")
I(f"s_lshl2_add_u32 {sC_}, {sT0}, {sT1}")
I(f"s_bfe_u32 {sGL}, s2, 0x30003")
I(f"s_lshl1_add_u32 {sJ0}, {sT1}, {sGL}")
def ktab(i):
    I(f"s_add_u32 {sK[i]}, {sJ0}, {i}"); I(f"s_and_b32 {sK[i]}, {sK[i]}, 7"); I(f"s_lshl_b32 {sK[i]}, {sK[i]}, 7")
for i in range(3): ktab(i)
I(f"s_lshl_b32 {sM4}, {sW_}, 12")
I(f"v_lshrrev_b32 v81, 3, {vLANE}"); I(f"v_and_b32 v82, 7, {vLANE}")
I("v_lshrrev_b32 v84, 1, v81"); I("v_xor_b32 v83, v82, v84"); I("v_lshlrev_b32 v83, 4, v83")
I("v_and_b32 v84, 4, v81"); I("v_and_b32 v85, 3, v81"); I("v_lshl_add_u32 v84, v84, 2, v85")
I(f"s_lshl2_add_u32 {sT0}, {sC_}, {sW_}"); I(f"s_lshl_b32 {sT0}, {sT0}, 5")
I(f"v_add_lshl_u32 v84, v84, {sT0}, 10")
I("v_xor_b32 v85, 64, v83")
I(f"v_add_u32 {v(vXo[0])}, v84, v83"); I(f"v_add_u32 {v(vXo[1])}, v84, v85")
I(f"v_add_u32 {v(vXo[2])}, 6144, {v(vXo[0])}"); I(f"v_add_u32 {v(vXo[3])}, 9216, {v(vXo[1])}"); I(f"v_add_u32 {v(vXo[1])}, 3072, {v(vXo[1])}")
I("s_mov_b32 s50, 2097152"); I("s_mov_b32 s51, 0x20000")
E.wait_all(lg=True)
def srd(dst, lo, hi, size):
    n = int(dst[2:dst.index(":")])
    I(f"s_mov_b64 s[{n}:{n+1}], s[{lo}:{hi}]"); I(f"s_mov_b32 s{n+2}, {size}"); I(f"s_mov_b32 s{n+3}, 0x20000")
def srd_sel(dst, p0, p1, size):
    n = int(dst[2:dst.index(":")])
    I(f"s_cselect_b64 s[{n}:{n+1}], s[{p1}:{p1+1}], s[{p0}:{p0+1}]"); I(f"s_mov_b32 s{n+2}, {size}"); I(f"s_mov_b32 s{n+3}, 0x20000")
I("s_mov_b64 s[48:49], s[16:17]")
stamp()
for i in range(3):
    for op in X_ops(i): op()
I(f"s_and_b32 {sGH}, s2, 1"); I(f"s_lshl3_add_u32 {sG_}, {sGH}, {sGL}")
I(f"v_and_b32 v86, 31, {vLANE}"); I(f"s_lshl_b32 {sT0}, {sG_}, 5"); I(f"v_add_lshl_u32 v87, v86, {sT0}, 1")
I(f"s_and_b32 {sT2}, {sW_}, 1"); I(f"s_lshl1_add_u32 {sT2}, {sGL}, {sT2}"); I(f"s_lshl_b32 {sT2}, {sT2}, 5"); I(f"v_add_lshl_u32 v88, v86, {sT2}, 1")
VM("global_load_ushort v90, v87, s[30:31]", "par"); VM("global_load_ushort v91, v87, s[18:19]", "par")
VM("global_load_ushort v92, v87, s[20:21]", "par"); VM(f"global_load_ushort {v(vDSK)}, v88, s[32:33]", "par")
srd(SDBG, 44, 45, 256)
I(f"s_or_b32 {sT0}, s2, {sW_}"); I("s_cbranch_scc1 L_notag")
E.begin_cond()
I("s_or_b32 s14, s14, 1"); I("v_mov_b32 v93, s14"); I("v_mov_b32 v94, 0"); I("s_mov_b64 exec, 1")
VM(f"buffer_store_dword v93, v94, {SDBG}, 0 offen sc1"); I("s_mov_b64 exec, -1")
E.end_cond(); E.label("L_notag")
for i in range(3, 8): ktab(i)
I(f"s_mul_i32 {sQW}, {sGL}, 11"); I(f"s_lshr_b32 {sQW}, {sQW}, 3"); I(f"s_mul_i32 {sT2}, {sT1}, 3"); I(f"s_add_u32 {sQW}, {sQW}, {sT2}")
I(f"s_sub_u32 {sT2}, {sQW}, 11"); I(f"s_cmp_ge_u32 {sQW}, 11"); I(f"s_cselect_b32 {sQW}, {sT2}, {sQW}"); I(f"s_mov_b32 {sQHG}, {sQW}")
I(f"s_lshl_b32 {sM2}, {sW_}, 11"); I(f"s_mul_i32 {sM6}, {sW_}, 6144")
I(f"s_mov_b32 {sSPIN}, 0")
I(f"s_cmp_ge_u32 {sW_}, 2")
srd_sel(SS, 22, 24, 524288); srd_sel(SG, 36, 38, 1409024); srd_sel(SC, 26, 28, 524288)
srd(SWD, 40, 41, 1409024); srd(SWS, 46, 47, WS_SIZE); srd(SOUT, 42, 43, 4194304)
I(f"s_mov_b32 {sC10}, 0x00003f80"); I(f"s_mov_b32 {sC01}, 0x3f800000"); I(f"s_mov_b32 {sC11}, 0x3f803f80")
I(f"s_and_b32 {sT1}, {sW_}, 1"); I(f"s_lshl_b32 {sT2}, {sT1}, 4"); I(f"s_lshl_b32 {sT0}, {sG_}, 5"); I(f"s_add_u32 {sT0}, {sT0}, {sT2}")
I(f"v_add_u32 v84, {sT0}, v81"); I("v_lshlrev_b32 v84, 10, v84")
I(f"v_add_u32 {v(vSo[0])}, v84, v83"); I(f"v_add_u32 {v(vSo[1])}, v84, v85"); I(f"v_add_u32 {v(vSo[1])}, 7168, {v(vSo[1])}")
I(f"s_mul_i32 {sT0}, {sT1}, {32*2752}"); I(f"s_mul_i32 {sT2}, {sG_}, 192"); I(f"s_add_u32 {sT0}, {sT0}, {sT2}")
I(f"s_mul_i32 {sT2}, {sG_}, 3"); I(f"s_mov_b32 {sT3}, 2752")
assert all((n * 43691) >> 19 == n // 12 for n in range(192))
I(f"v_mov_b32 v99, {OOB}")
for i in range(3):
    I(f"v_add_u32 v95, {64*i}, {vLANE}"); I("v_mul_u32_u24 v96, 43691, v95"); I("v_lshrrev_b32 v96, 19, v96")
    I("v_mul_u32_u24 v97, 12, v96"); I("v_sub_u32 v97, v95, v97")
    I(f"v_mul_lo_u32 v96, v96, {sT3}"); I("v_lshl_add_u32 v96, v97, 4, v96"); I(f"v_add_u32 v96, {sT0}, v96")
    if i: I(f"v_subrev_u32 v96, {1024*i}, v96")
    I("v_lshrrev_b32 v97, 2, v97"); I(f"v_add_u32 v97, {sT2}, v97"); I("v_cmp_gt_u32 vcc, 43, v97")
    I(f"v_cndmask_b32 {v(vGo[i])}, v99, v96, vcc")
I(f"v_lshrrev_b32 v95, 5, {vLANE}")
I("v_bfe_u32 v96, v86, 1, 3"); I("v_xor_b32 v96, v96, v95"); I("v_lshlrev_b32 v96, 4, v96"); I("v_lshl_add_u32 v96, v86, 7, v96")
I(f"v_add_u32 {v(vP1[0])}, {sM4}, v96")
for s in range(1, 4): I(f"v_xor_b32 {v(vP1[s])}, {32*s}, {v(vP1[0])}")
I(f"v_bfe_u32 v96, {vLANE}, 2, 2"); I("v_lshl_add_u32 v96, v95, 3, v96")
I(f"v_mul_u32_u24 {v(vGT)}, 192, v96")
I(f"v_and_b32 v97, 16, {vLANE}"); I(f"v_lshl_add_u32 {v(vGT)}, v97, 1, {v(vGT)}")
I(f"v_and_b32 v97, 1, {vLANE}"); I(f"v_lshl_add_u32 {v(vGT)}, v97, 4, {v(vGT)}")
I(f"v_and_b32 v97, 2, {vLANE}"); I(f"v_lshl_add_u32 {v(vGT)}, v97, 2, {v(vGT)}")
I(f"s_lshl_b32 {sT0}, {sW_}, 9"); I(f"s_add_u32 {sT0}, {sT0}, {EQ}")
I(f"v_lshlrev_b32 {v(vEQA)}, 8, v95"); I(f"v_lshl_add_u32 {v(vEQA)}, v86, 3, {v(vEQA)}"); I(f"v_add_u32 {v(vEQA)}, {sT0}, {v(vEQA)}")
I(f"s_lshl_b32 {sT0}, {sW_}, 7"); I(f"s_add_u32 {sT0}, {sT0}, {RTAB}")
I(f"v_lshlrev_b32 {v(vTAB)}, 6, v95"); I(f"v_add_u32 {v(vTAB)}, {sT0}, {v(vTAB)}")
I("v_bfe_u32 v97, v86, 2, 1"); I("v_lshlrev_b32 v89, 4, v97"); I("v_lshrrev_b32 v97, 3, v86"); I("v_lshl_add_u32 v89, v97, 2, v89")
I("v_and_b32 v97, 3, v86"); I("v_add_u32 v89, v89, v97"); I("v_lshlrev_b32 v89, 2, v89"); I(f"v_add_u32 v89, {sT0}, v89")
I("v_mov_b32 v100, 0"); I("v_mov_b32 v101, 0"); I(f"s_lshl_b32 {sT0}, {sW_}, 9"); I(f"s_add_u32 {sT0}, {sT0}, {EQ}")
I(f"v_lshlrev_b32 v97, 3, {vLANE}"); I(f"v_add_u32 v97, {sT0}, v97")
DS("ds_write_b64 v97, v[100:101]", "eqz")
E.wait(vm="par")
LOG2E = "0x3fb8aa3b"
I("v_lshlrev_b32 v90, 16, v90"); I("v_lshlrev_b32 v91, 16, v91"); I("v_lshlrev_b32 v92, 16, v92"); I(f"v_lshlrev_b32 {v(vDSK)}, 16, {v(vDSK)}")
I(f"v_mul_f32 v90, {LOG2E}, v90"); I("v_exp_f32 v90, v90"); bf16r(90, 90)
I("v_mul_f32 v93, v90, v91"); I("v_mul_f32 v94, v90, v92")
I(f"v_mul_f32 v93, {LOG2E}, v93"); I("v_exp_f32 v93, v93")
I("v_mul_f32 v94, 0.15915494, v94"); I("v_rndne_f32 v97, v94"); I("v_sub_f32 v94, v94, v97")
I("v_cos_f32 v97, v94"); I("v_sin_f32 v98, v94")
I(f"v_mul_f32 {v(vLR)}, v93, v97"); I("v_mul_f32 v98, v93, v98")
I(f"v_add_f32 v97, -1.0, {v(vLR)}")
I("v_mul_f32 v93, v91, v91"); I("v_fmac_f32 v93, v92, v92"); I("v_rcp_f32 v93, v93"); I("v_add_f32 v93, v93, v93")
I(f"v_mul_f32 {v(vCR)}, v97, v91"); I(f"v_fmac_f32 {v(vCR)}, v98, v92"); I(f"v_mul_f32 {v(vCR)}, {v(vCR)}, v93")
I(f"v_mul_f32 {v(vCI)}, v98, v91"); I(f"v_fma_f32 {v(vCI)}, -v97, v92, {v(vCI)}"); I(f"v_mul_f32 {v(vCI)}, {v(vCI)}, v93")
I(f"v_sub_f32 {v(vLI)}, 0, v98")
cmul(102, vLR, vLR, 110); cmul(102, 102, 102, 110); cmul(102, 102, 102, 110); cmul(vL16, 102, 102, 110)
cmul(104, vL16, vL16, 110); cmul(106, 104, 104, 110); cmul(vL128, 106, 106, 110); cmul(vL256, vL128, vL128, 110)
I(f"v_cmp_lt_u32 vcc, 31, {vLANE}")
I(f"v_cndmask_b32 {v(vPQ)}, 1.0, {v(vL16)}, vcc"); I(f"v_cndmask_b32 {v(vPQ+1)}, 0, {v(vL16+1)}, vcc")
for bit, L in ((1, 104), (2, 106)):
    I(f"s_and_b32 {sT0}, {sW_}, {bit}"); I("s_cselect_b64 vcc, -1, 0")
    I(f"v_cndmask_b32 v108, 1.0, {v(L)}, vcc"); I(f"v_cndmask_b32 v109, 0, {v(L+1)}, vcc")
    cmul(vPQ, vPQ, 108, 110)
for r in range(112, 120): I(f"v_mov_b32 v{r}, 0")
nxt = {0: X_ops(3), 1: X_ops(4), 2: X_ops(5), 3: X_ops(6), 4: X_ops(7), 5: S_ops(0) + S_ops(1), 6: S_ops(2) + S_ops(3), 7: S_ops(4) + S_ops(5)}
for i in range(8):
    it = items[f"X{i}"]
    if i == 4:
        for s in range(4): I(f"v_add_u32 {v(vP1[s])}, 65536, {v(vP1[s])}")
    E.wait(vm=it.name)
    if i == 5: E.barrier()
    check_read(it)
    for s in range(4):
        DS(f"ds_read_b128 {v(XF + 16*i + 4*s, 4)}, {v(vP1[s])} offset:{it.base & 0xffff}", f"xr{i}_{s}"); note_read(it, s == 3)
    for op in nxt[i]: op()
    for s in range(4):
        E.wait(lg=f"xr{i}_{s}")
        for d in range(4):
            x = v(XF + 16*i + 4*s + d)
            I(f"v_dot2c_f32_bf16 v{112+d}, {sC11}, {x}"); I(f"v_dot2c_f32_bf16 v{116+d}, {x}, {x}")
    if i in (0, 7): stamp()
for op in S_ops(6) + S_ops(7): op()
I("v_mov_b32 v94, 0")
VM(f"buffer_load_dword {v(vPOLL)}, v94, {SDBG}, 0 offen sc1", "tag")
I("v_add_f32 v112, v112, v113"); I("v_add_f32 v114, v114, v115"); I("v_add_f32 v116, v116, v117"); I("v_add_f32 v118, v118, v119")
I("v_add_f32 v112, v112, v114"); I("v_add_f32 v116, v116, v118")
I("v_mov_b32 v113, v112"); I("v_mov_b32 v117, v116")
I("v_permlane32_swap_b32 v112, v113"); I("v_permlane32_swap_b32 v116, v117")
I("v_add_f32 v112, v112, v113"); I("v_add_f32 v116, v116, v117")
I("v_mul_f32 v112, 0x3b000000, v112"); I("v_mul_f32 v116, 0x3b000000, v116")
I("v_fma_f32 v116, -v112, v112, v116"); I("v_max_f32 v116, 0, v116")
bf16r(113, 112)
I(f"v_sub_f32 {v(vNM)}, 0, v113")
bf16r(116, 116); I("v_add_f32 v116, 0x3727c5ac, v116"); bf16r(116, 116); I("v_sqrt_f32 v116, v116"); bf16r(116, 116)
I("v_rcp_f32 v116, v116")
DS(f"ds_write_b32 v89, v113 offset:512", "tabw")
DS(f"ds_write_b32 v89, v116", "tabw")
I(f"v_mul_f32 {v(vR2)}, v116, v116")
I(f"s_sub_u32 {sT0}, 65536, {sM4}")
for s in range(4): I(f"v_add_u32 {v(vP1[s])}, {sT0}, {v(vP1[s])}")
p1_win = [131072]

qV, qD = [], []
marks = set()
def mark(m): return ("mark", m)
def run_op(op):
    if isinstance(op, tuple): marks.add(op[1]); return 0
    if isinstance(op, str): I(op); return 1
    op(); return 1
def popV(n):
    while qV and (n > 0 or isinstance(qV[0], tuple)): n -= run_op(qV.pop(0))
def popD(n):
    while qD and n > 0: n -= run_op(qD.pop(0))
def need_mark(m):
    while m not in marks: run_op(qV.pop(0))
def need_item(name):
    while name not in items or qD and getattr(qD[0], "item", None) == name: run_op(qD.pop(0))
def pushD(ops, name):
    for op in ops: op.item = name
    qD.extend(ops)

fb = [0]
def newfb():
    r = A_FB + 4 * (fb[0] % NFB); fb[0] += 1; return r

class Slot: pass
slots = []
def add_slot(chunk, reads, mfma, needs=(), nV=3, dper=2):
    s = Slot(); s.chunk, s.reads, s.mfma, s.needs, s.nV, s.dper = chunk, reads, mfma, needs, nV, dper; slots.append(s)

def burst(i):
    for d in range(16):
        x = v(XF + 16*i + d)
        I(f"v_dot2_f32_bf16 v{80+2*d}, {x}, {sC10}, {v(vNM)}"); I(f"v_dot2_f32_bf16 v{81+2*d}, {x}, {sC01}, {v(vNM)}")
def cvt_ops(i):
    ops = []
    for d in range(16):
        ops.append(f"v_cvt_pk_bf16_f32 {v(XF + 16*i + d)}, v{80+2*d}, v{81+2*d}")
        if d & 3 == 3: ops.append(mark(f"cen{4*i + (d>>2)}"))
    return ops
for i in range(8):
    for s in range(4):
        f = 4*i + s
        for comp in range(2):
            acc = v(ACC_I if comp else ACC_R, 16)
            add_slot(f"S{i}", [("p1", f"S{i}", s, comp * 4096, s == 3 and comp == 1)],
                     lambda b, f=f, acc=acc: f"v_mfma_f32_32x32x16_bf16 {acc}, {v(XF+4*f,4)}, {a(b[0],4)}, {acc if f else 0}",
                     needs=[f"cen{f}"], nV=3, dper=2)
P2 = len(slots)
for i in range(8):
    order = [(s, u, m) for s in range(4) for u in range(3) for m in range(2)]
    if i == 7: order = [(s, u, m) for u in range(3) for s in range(4) for m in range(2)]
    for n, (s, u, m) in enumerate(order):
        f = 4*i + s
        acc = a(A_U + 16*u, 16) if m else v(ACC_G + 16*u, 16)
        add_slot(f"G{i}", [("gt", f"G{i}", m * 12288 + 16*s*192 + 64*u, n == 23)],
                 lambda b, f=f, acc=acc: f"v_mfma_f32_32x32x16_bf16 {acc}, {a(b[0],4)}, {v(XF+4*f,4)}, {acc if f else 0}", nV=3, dper=2)
P3 = len(slots)
ACC3 = 48
vHR, vWT = 160, 161; vC1 = [162, 163, 164, 165]; vXR = 166; vTAB3 = 167
for i in range(8):
    for s in range(8):
        first = (i == 0 and s == 0)
        add_slot(f"H{i}", [("lin", f"H{i}", s * 1024, s == 7), ("c1", f"C{i}", s & 3, (s >> 2) * 8192, s == 7)],
                 lambda b, first=first: f"v_mfma_f32_32x32x16_bf16 {v(ACC3,16)}, {a(b[0],4)}, {a(b[1],4)}, {0 if first else v(ACC3,16)}", nV=4, dper=1)
P3U = len(slots)
for i in range(11):
    for s in range(8):
        add_slot(f"U{i}", [("lin", f"HG{i}", s * 1024, s == 7), ("wt", f"W{i}", 16*s*128, s == 7)],
                 lambda b: f"v_mfma_f32_32x32x16_bf16 {v(ACC3,16)}, {a(b[0],4)}, {a(b[1],4)}, {v(ACC3,16)}", nV=4, dper=1)
M = len(slots)

win = {"gt": 0, "lin": 0, "c1": 0, "wt": 0}
def set_win(kind, regs, base, span):
    cur = p1_win[0] if kind == "p1" else win[kind]
    if not (cur <= base and base + span <= cur + 65536):
        new = base if base + 65536 > MISC else (base // 49152) * 49152
        if not (new <= base and base + span <= new + 65536): new = base
        for r in regs: I(f"v_add_u32 {v(r)}, {(new - cur) & 0xffffffff}, {v(r)}")
        cur = new
        if kind == "p1": p1_win[0] = cur
        else: win[kind] = cur
    return cur
def emit_reads(m):
    s = slots[m]; s.bufs = []; s.tags = []
    for rd in s.reads:
        kind, name = rd[0], rd[1]; it = items[name]; check_read(it)
        b = newfb(); s.bufs.append(b); tag = f"rd{m}_{kind}"; s.tags.append(tag)
        if kind in ("p1", "c1"):
            regs = vP1 if kind == "p1" else vC1
            w = set_win(kind, regs, it.base, it.size)
            DS(f"ds_read_b128 {a(b,4)}, {v(regs[rd[2]])} offset:{it.base - w + rd[3]}", tag)
        elif kind == "lin":
            w = set_win(kind, [vHR], it.base, it.size)
            DS(f"ds_read_b128 {a(b,4)}, {v(vHR)} offset:{it.base - w + rd[2]}", tag)
        else:
            reg, pitch = (vGT, 192) if kind == "gt" else (vWT, 128)
            w = set_win(kind, [reg], it.base, it.size)
            DS(f"ds_read_b64_tr_b16 {a(b,2)}, {v(reg)} offset:{it.base - w + rd[2]}", tag)
            DS(f"ds_read_b64_tr_b16 {a(b+2,2)}, {v(reg)} offset:{it.base - w + rd[2] + 4*pitch}", tag)
        note_read(it, rd[-1])

events = {}
bevents = {}
def at(m, fn): events.setdefault(m, []).append(fn)
def after_b(chunk, fn): bevents.setdefault(chunk, ([], []))[1].append(fn)
def wait_b(chunk, tag): bevents.setdefault(chunk, ([], []))[0].append(tag)
def chunk_items(chunk):
    k, i = chunk[0], chunk[1:]
    return {"S": [f"S{i}"], "G": [f"G{i}"], "H": [f"C{i}", f"H{i}"], "U": [f"W{i}", f"HG{i}"]}[k]
first_slot = {}
for m, s in enumerate(slots): first_slot.setdefault(s.chunk, m)
def free_at(chunk, fn):
    def f():
        E.barrier(); fn()
    at(first_slot[chunk], f)

after_b("S0", lambda: [pushD(G_ops(i), f"G{i}") for i in range(3)])
after_b("S3", lambda: pushD(G_ops(3), "G3"))
after_b("S6", lambda: pushD(G_ops(4), "G4"))
free_at("G0", lambda: pushD(G_ops(5), "G5"))
free_at("G1", lambda: pushD(G_ops(6), "G6"))
free_at("G2", lambda: pushD(G_ops(7), "G7"))
free_at("G3", lambda: pushD(C_ops(0, 6), "C0"))
free_at("G4", lambda: [pushD(C_ops(1, 7), "C1"), pushD(C_ops(2, 8), "C2")])
free_at("G5", lambda: pushD(C_ops(3, 0), "C3"))
free_at("G6", lambda: [pushD(C_ops(4, 1), "C4"), pushD(C_ops(5, 2), "C5")])
free_at("G7", lambda: [pushD(C_ops(6, 3), "C6"), pushD(XE_ops(), "XE")])
def slot_of(n): return items[n].base // 16384
wish = ["H2", "H3", "C7", "H4", "H5", "H6", "H7", "W0", "W1", "W2", "W3", "W4", "HG0", "HG1", "HG2", "HG3",
        "HG4", "W5", "HG5", "W6", "HG6", "W7", "HG7", "W8", "HG8", "W9", "HG9", "W10", "HG10"]
def push_named(n, sl):
    k = n.rstrip("0123456789"); i = int(n[len(k):])
    pushD({"H": H_ops, "C": C_ops, "W": W_ops, "HG": HG_ops}[k](i, sl), n)
p3chunks = [f"H{i}" for i in range(8)] + [f"U{i}" for i in range(11)]
def poll_issue(soff, tag): VM(f"buffer_load_dword {v(vPOLL)}, {v(vFL)}, {SWS}, {soff} offen sc1", tag)
def poll_check(soff, tag):
    E.wait(vm=tag)
    I(f"v_cmp_ne_u32 vcc, {sNON}, {v(vPOLL)}"); I(f"s_cbranch_vccnz L_slow_{tag}"); E.label(f"L_back_{tag}")
    slow.extend([f"L_slow_{tag}:", "  s_sleep 2", f"  buffer_load_dword {v(vPOLL)}, {v(vFL)}, {SWS}, {soff} offen sc1", "  s_waitcnt vmcnt(0)",
                 f"  v_cmp_ne_u32 vcc, {sNON}, {v(vPOLL)}"] + spin_guard(None, f"L_back_{tag}") +
                [f"  s_cbranch_vccnz L_slow_{tag}", f"  s_branch L_back_{tag}"])
for k in range(1, len(p3chunks)):
    def fn(k=k):
        for n in chunk_items(p3chunks[k-1]):
            if wish:
                w = wish.pop(0)
                if w == "HG0": qD.append(lambda: poll_check(sFG, "pg"))
                if w == "W3": qD.append(lambda: poll_issue(sFG, "pg"))
                push_named(w, slot_of(n))
    free_at(p3chunks[k], fn)

def flag_store(soff, lbl):
    I(f"s_cmp_lg_u32 {sW_}, 0"); I(f"s_cbranch_scc1 {lbl}")
    E.begin_cond()
    I(f"s_lshl_b32 s13, {sG_}, 2"); I(f"v_mov_b32 v12, s13"); I(f"v_mov_b32 v13, {sNON}"); I("s_mov_b64 exec, 1")
    VM(f"buffer_store_dword v13, v12, {SWS}, {soff} offen sc1"); I("s_mov_b64 exec, -1")
    E.end_cond(); E.label(lbl)

post = {}
for i in range(6):
    post[8*i + 7] = lambda i=i: (need_mark(f"cen{4*i+7}"), burst(i + 2), qV.extend(cvt_ops(i + 2)))

def ssm1():
    ops = []
    def tagcheck():
        E.wait(vm="tag"); I(f"v_readfirstlane_b32 {sNON}, {v(vPOLL)}"); I(f"s_cmp_eq_u32 {sNON}, 0"); I("s_cbranch_scc1 L_slow_tag"); E.label("L_back_tag")
        slow.extend(["L_slow_tag:", "  s_sleep 2", "  v_mov_b32 v12, 0", f"  buffer_load_dword {v(vPOLL)}, v12, {SDBG}, 0 offen sc1", "  s_waitcnt vmcnt(0)",
                     f"  v_readfirstlane_b32 {sNON}, {v(vPOLL)}"] + spin_guard(None, "L_back_tag") +
                    [f"  s_cmp_eq_u32 {sNON}, 0", "  s_cbranch_scc1 L_slow_tag", "  s_branch L_back_tag"])
    ops.append(tagcheck)
    def rd(j): return lambda: DS(f"ds_read_b128 {v(vRT + 4*(j&1), 4)}, {v(vTAB)} offset:{16*j}", f"rt{j}")
    ops += [rd(0), rd(1)]
    cur, nx = (vE, vE + 1), (vE2, vE2 + 1)
    for r in range(16):
        rt = v(vRT + 4*((r >> 2) & 1) + (r & 3)); aR, aI = ACC_R + r, ACC_I + r
        if r % 4 == 0: ops.append(lambda j=r >> 2: E.wait(lg=f"rt{j}"))
        ops += [f"v_mul_f32 v12, {v(aR)}, {rt}", f"v_mul_f32 v13, {v(aI)}, {rt}"]
        if r % 4 == 3 and r < 8: ops.append(rd((r >> 2) + 2))
        ops += [f"v_mul_f32 {v(aR)}, {v(vCR)}, v12", f"v_mul_f32_e64 {v(aI)}, -{v(vCR)}, v13",
                f"v_fma_f32 {v(aR)}, -{v(vCI)}, v13, {v(aR)}", f"v_fma_f32 {v(aI)}, -{v(vCI)}, v12, {v(aI)}"]
        if r == 0: src = (aR, aI)
        else:
            ops += cfma_ops(nx, vLR, src, aR, aI); src = nx; cur, nx = nx, cur
    assert src == (vE2, vE2 + 1)
    ops.append(lambda: DS(f"ds_write_b64 {v(vEQA)}, {v(vE2,2)} offset:{7*256}", "eqw"))
    def bar(): E.wait(lg="eqw"); E.barrier()
    ops.append(bar); ops.append(mark("ssm1"))
    return ops
at(P2 + 1, lambda: qV.extend(ssm1()))
for m in range(P2 + 1, P2 + 24): slots[m].nV = 8

def ssm2():
    ops = [lambda i=i: DS(f"ds_read_b64 {v(128+2*i,2)}, {v(vEQA)} offset:{256*i}", f"eq{i}") for i in range(7)]
    ops += [f"s_lshl_b32 {sT0}, {sG_}, 4", f"s_add_u32 {sT0}, {sT0}, {sC_}", f"s_lshl_b32 {sT0}, {sT0}, 9", f"s_add_u32 {sT0}, {sT0}, {WS_EB - 512}",
            f"v_lshlrev_b32 v142, 4, {vLANE}", f"v_add_u32 v142, {sT0}, v142", f"v_mov_b32 v143, {OOB}",
            f"s_cmp_eq_u32 {sW_}, 3", f"s_cselect_b32 {sT1}, 31, 64", f"v_cmp_lt_u32 vcc, {sT1}, {vLANE}", "v_cndmask_b32 v142, v143, v142, vcc"]
    src = (128, 129); pp = [(vP, vP + 1), (vE, vE + 1)]
    ops.append(lambda: E.wait(lg="eq1"))
    for i in range(1, 7):
        if i > 1: ops.append(lambda i=i: E.wait(lg=f"eq{i}"))
        d = pp[i & 1]; ops += cfma_ops(d, vL16, src, 128 + 2*i, 129 + 2*i); src = d
    assert src == (vP, vP + 1)
    ops += cfma_ops((36, 38), vL16, src, vE2, vE2 + 1)
    ops += [f"v_mov_b32 v37, {sNON}", f"v_mov_b32 v39, {sNON}"]
    ops.append(lambda: VM(f"buffer_store_dwordx4 v[36:39], v142, {SWS}, 0 offen sc1", "est"))
    ops += [f"s_lshl_b32 {sT0}, {sW_}, 2", f"s_add_u32 {sT0}, {sT0}, {sC_}", f"s_sub_u32 {sT0}, {sT0}, 16",
            f"v_lshrrev_b32 v136, 5, {vLANE}", "v_lshlrev_b32 v136, 1, v136", f"v_add_u32 v136, {sT0}, v136",
            f"s_lshl_b32 {sT1}, {sG_}, 13", f"s_add_u32 {sT1}, {sT1}, {WS_EB}",
            f"v_and_b32 v137, 31, {vLANE}", "v_lshlrev_b32 v137, 4, v137", f"v_add_u32 v137, {sT1}, v137",
            "v_lshl_add_u32 v140, v136, 9, v137", "v_add_u32 v141, 512, v140", f"v_mov_b32 v137, {sNON}",
            "v_cmp_le_i32 vcc, 0, v136", "v_cndmask_b32 v140, v143, v140, vcc", "v_cndmask_b32 v138, 0, v137, vcc",
            "v_cmp_le_i32 vcc, -1, v136", "v_cndmask_b32 v141, v143, v141, vcc", "v_cndmask_b32 v139, 0, v137, vcc", mark("ssm2")]
    return ops
at(P2 + 24, lambda: (need_mark("ssm1"), qV.extend(atomize(ssm2()))))
for m in range(P2 + 24, P2 + 36): slots[m].nV = 7

def p3addr_a():
    o = []
    o += [f"v_lshrrev_b32 v36, 3, {vLANE}", f"v_and_b32 v37, 7, {vLANE}", "v_lshrrev_b32 v38, 1, v36", "v_xor_b32 v39, v37, v38", "v_lshlrev_b32 v39, 4, v39", "v_xor_b32 v40, 64, v39"]
    o += [f"s_and_b32 {sT1}, {sW_}, 1", f"s_lshl_b32 {sT0}, {sT1}, 5", f"s_lshl_b32 {sT2}, {sGL}, 6", f"s_add_u32 {sT0}, {sT0}, {sT2}",
          f"v_add_u32 v41, {sT0}, v36", "v_lshlrev_b32 v41, 10, v41",
          f"v_add_u32 {v(vCo[0])}, v41, v39", f"v_add_u32 {v(vCo[1])}, v41, v40",
          f"v_add_u32 {v(vCo[2])}, {2*7168}, {v(vCo[0])}", f"v_add_u32 {v(vCo[3])}, {3*7168}, {v(vCo[1])}", f"v_add_u32 {v(vCo[1])}, 7168, {v(vCo[1])}", mark("vCo")]
    o += ["v_and_b32 v38, 1, v38", "v_lshlrev_b32 v38, 2, v38", "v_xor_b32 v38, v37, v38", "v_lshlrev_b32 v38, 4, v38", "v_lshl_add_u32 v38, v36, 10, v38",
          f"s_lshl_b32 {sT0}, {sW_}, 15", f"s_lshl_b32 {sT2}, {sGL}, 7", f"s_add_u32 {sT0}, {sT0}, {sT2}", f"v_add_u32 {v(vWo[0])}, {sT0}, v38"]
    o += [f"v_add_u32 {v(vWo[q])}, {7168*q}, {v(vWo[0])}" for q in range(1, 4)]
    o += [f"s_lshl_b32 {sT0}, {sC_}, 7", f"s_lshl_b32 {sT3}, {sGH}, 6", f"s_add_u32 {sT0}, {sT0}, {sT3}", f"s_lshl_b32 {sT3}, {sW_}, 4", f"s_add_u32 {sT0}, {sT0}, {sT3}",
          f"s_lshl_b32 {sT0}, {sT0}, 10", f"s_add_u32 {sT0}, {sT0}, {sT2}",
          "v_lshlrev_b32 v38, 4, v37", "v_lshl_add_u32 v38, v36, 10, v38", f"v_add_u32 {v(vXEo[0])}, {sT0}, v38", f"v_add_u32 {v(vXEo[1])}, 7168, {v(vXEo[0])}"]
    o += [f"s_lshl_b32 {sT0}, {sC_}, 2", f"s_lshl_b32 {sT3}, {sGH}, 1", f"s_add_u32 {sT0}, {sT0}, {sT3}", f"s_lshr_b32 {sT3}, {sW_}, 1", f"s_add_u32 {sT0}, {sT0}, {sT3}",
          f"s_mul_i32 {sT0}, {sT0}, {152*1024}", f"s_lshl_b32 {sT3}, {sT1}, 12", f"s_add_u32 {sT0}, {sT0}, {sT3}",
          f"v_lshlrev_b32 v38, 4, {vLANE}", f"v_add_u32 {v(vHo)}, {sT0}, v38"]
    o += [f"s_lshl_b32 {sT0}, {sC_}, 2", f"s_add_u32 {sT0}, {sT0}, {sW_}", f"s_mul_i32 {sT0}, {sT0}, {152*1024}", f"v_add_u32 {v(vHST)}, {sT0}, v38",
          f"s_lshr_b32 {sT0}, {sG_}, 1", f"s_lshl_b32 {sT0}, {sT0}, 13", f"s_and_b32 {sT3}, {sG_}, 1", f"s_lshl_b32 {sT3}, {sT3}, 11", f"s_add_u32 {sHST}, {sT0}, {sT3}", f"s_add_u32 {sHST2}, {sHST}, 4096"]
    for uu in range(3):
        o += [f"s_mul_i32 {sT0}, {sG_}, 3", f"s_add_u32 {sT0}, {sT0}, {uu}", f"s_lshl_b32 {sT3}, {sT0}, 11", f"s_add_u32 {sT3}, {sT3}, 65536",
              f"s_cmp_lt_u32 {sT0}, 44", f"s_cselect_b32 {sHG[uu]}, {sT3}, 0x40000000"]
    o += [f"s_mul_i32 {sT0}, {sW_}, 2304", f"s_add_u32 {sT0}, {sT0}, {HS}",
          f"v_and_b32 v36, 31, {vLANE}", "v_mul_u32_u24 v36, 72, v36", f"v_and_b32 v37, 32, {vLANE}", "v_add_u32 v36, v36, v37", f"v_add_u32 {v(vHSW)}, {sT0}, v36",
          f"v_bfe_u32 v36, {vLANE}, 2, 2", "v_lshrrev_b32 v37, 2, v37", "v_add_u32 v36, v36, v37", "v_mul_u32_u24 v36, 72, v36",
          f"v_and_b32 v37, 1, {vLANE}", "v_lshl_add_u32 v36, v37, 5, v36", f"v_and_b32 v37, 16, {vLANE}", "v_add_u32 v36, v36, v37",
          f"v_and_b32 v37, 2, {vLANE}", "v_lshl_add_u32 v36, v37, 2, v36", f"v_add_u32 {v(vHSR)}, {sT0}, v36"]
    o += [f"v_and_b32 {v(vFL)}, 15, {vLANE}", f"v_lshlrev_b32 {v(vFL)}, 2, {v(vFL)}",
          f"s_lshl_b32 {sT0}, {sC_}, 8", f"s_add_u32 {sFH}, {sT0}, {WS_FH}", f"s_add_u32 {sFG}, {sT0}, {WS_FG}"]
    o += [f"s_lshl_b32 {sT0}, {sC_}, 7", f"s_lshl_b32 {sT3}, {sGH}, 6", f"s_add_u32 {sT0}, {sT0}, {sT3}", f"s_lshr_b32 {sT3}, {sW_}, 1", f"s_lshl_b32 {sT3}, {sT3}, 5",
          f"s_add_u32 {sT0}, {sT0}, {sT3}", f"s_lshl_b32 {sT0}, {sT0}, 11", f"s_lshl_b32 {sT3}, {sGL}, 8", f"s_add_u32 {sT0}, {sT0}, {sT3}", f"s_lshl_b32 {sT3}, {sT1}, 7", f"s_add_u32 {sT0}, {sT0}, {sT3}",
          f"v_and_b32 v36, 31, {vLANE}", "v_lshlrev_b32 v36, 2, v36", f"v_and_b32 v37, 32, {vLANE}", "v_lshl_add_u32 v36, v37, 10, v36", f"v_add_u32 {v(vOUT)}, {sT0}, v36", mark("p3a")]
    return o
def atomize(ops):
    out = []
    for op in ops:
        if isinstance(op, str) and (op.startswith("s_cselect") or op.startswith("v_cndmask")) and out and not isinstance(out[-1], tuple):
            prev = out.pop()
            out.append(lambda prev=prev, op=op: (run_op(prev), I(op)))
        else: out.append(op)
    return out
at(P2 + 48, lambda: qV.extend(atomize(p3addr_a())))
def p3addr_b():
    o = [f"s_and_b32 {sT1}, {sW_}, 1", f"s_lshr_b32 {sT2}, {sW_}, 1"]
    o += [f"s_lshl_b32 {sT0}, {sT2}, 13", f"v_lshlrev_b32 {v(vHR)}, 4, {vLANE}", f"v_add_u32 {v(vHR)}, {sT0}, {v(vHR)}"]
    o += [f"v_lshrrev_b32 v36, 5, {vLANE}", f"v_bfe_u32 v37, {vLANE}, 1, 3", "v_xor_b32 v37, v37, v36", "v_lshlrev_b32 v37, 4, v37",
          f"v_and_b32 v38, 31, {vLANE}", "v_lshl_add_u32 v37, v38, 7, v37", f"s_lshl_b32 {sT0}, {sT1}, 12", f"v_add_u32 {v(vC1[0])}, {sT0}, v37"]
    o += [f"v_xor_b32 {v(vC1[s])}, {32*s}, {v(vC1[0])}" for s in range(1, 4)]
    o += [f"v_bfe_u32 v37, {vLANE}, 2, 2", "v_lshl_add_u32 v37, v36, 3, v37", "v_lshlrev_b32 v37, 7, v37",
          f"v_and_b32 v39, 16, {vLANE}", "v_lshl_add_u32 v37, v39, 1, v37", f"v_and_b32 v39, 3, {vLANE}", "v_lshl_add_u32 v37, v39, 3, v37",
          f"v_and_b32 v39, 8, {vLANE}", "v_lshlrev_b32 v39, 3, v39", f"s_lshl_b32 {sT0}, {sT1}, 6", f"v_xor_b32 v39, {sT0}, v39", f"v_add_u32 {v(vWT)}, v37, v39"]
    o += [f"s_lshl_b32 {sT3}, {sT2}, 12", f"s_add_u32 {sT0}, {sT0}, {sT3}", f"s_add_u32 {sT0}, {sT0}, {XE}",
          "v_lshlrev_b32 v37, 11, v36", "v_lshl_add_u32 v37, v38, 1, v37", f"v_add_u32 {v(vXR)}, {sT0}, v37",
          f"s_lshl_b32 {sT0}, {sGH}, 8", f"s_lshl_b32 {sT3}, {sT2}, 7", f"s_add_u32 {sT0}, {sT0}, {sT3}", f"s_add_u32 {sT0}, {sT0}, {RTAB}",
          "v_lshlrev_b32 v37, 6, v36", f"v_add_u32 {v(vTAB3)}, {sT0}, v37", mark("p3b")]
    return o
at(P2 + 72, lambda: need_mark("vCo"))
at(P2 + 130, lambda: qV.extend(p3addr_b()))

def efetch():
    need_mark("ssm2")
    VM(f"buffer_load_dwordx4 v[128:131], v140, {SWS}, 0 offen sc1", "ef"); VM(f"buffer_load_dwordx4 v[132:135], v141, {SWS}, 0 offen sc1", "ef")
at(P2 + OPT["efetch"], efetch)
ZR = 176
def ssm3():
    chk = ["v_xor_b32 v136, v129, v138", "v_xor_b32 v137, v131, v138", "v_or_b32 v136, v136, v137",
           "v_xor_b32 v137, v133, v139", "v_or_b32 v136, v136, v137", "v_xor_b32 v137, v135, v139", "v_or_b32 v136, v136, v137", "v_cmp_ne_u32 vcc, 0, v136"]
    def check():
        E.wait(vm="ef")
        for c in chk: I(c)
        I("s_cbranch_vccnz L_slow_e"); E.label("L_back_e")
        slow.extend(["L_slow_e:", "  s_sleep 2", f"  buffer_load_dwordx4 v[128:131], v140, {SWS}, 0 offen sc1", f"  buffer_load_dwordx4 v[132:135], v141, {SWS}, 0 offen sc1",
                     "  s_waitcnt vmcnt(0)"] + ["  " + c for c in chk] + spin_guard(None, "L_back_e") + ["  s_cbranch_vccnz L_slow_e", "  s_branch L_back_e"])
    ops = [check]
    ops += cfma_ops((vE, vE + 1), vL128, (128, 130), 132, 134)
    ops.append(lambda: DS(f"ds_write_b64 {v(vEQA)}, {v(vE,2)} offset:{ZT - EQ}", "zw"))
    ops += [f"v_and_b32 v136, 31, {vLANE}", "v_lshlrev_b32 v136, 3, v136", f"v_add_u32 v136, {ZT}, v136"]
    def bar(): E.wait(lg="zw"); E.barrier()
    ops.append(bar)
    ops += [lambda i=i: DS(f"ds_read_b64 {v(ZR+2*i,2)}, v136 offset:{256*i}", f"z{i}") for i in range(8)]
    src = (ZR, ZR + 1); pp = [(vE, vE + 1), (vE2, vE2 + 1)]
    for i in range(1, 8):
        ops.append(lambda i=i: E.wait(lg=f"z{i}"))
        d = pp[i & 1]; ops += cfma_ops(d, vL256, src, ZR + 2*i, ZR + 2*i + 1); src = d
    assert src == (vE2, vE2 + 1)
    ops += cfma_ops((vE, vE + 1), vPQ, src, vP, vP + 1)
    src = (vE, vE + 1)
    for r in range(16):
        d = (ACC_R + r, ACC_I + r); ops += cfma_ops(d, vLR, src, d[0], d[1]); src = d
        if r & 1:
            ops += [f"v_cvt_pk_bf16_f32 {v(ZR + (r>>1))}, {v(ACC_R+r-1)}, {v(ACC_R+r)}", f"v_cvt_pk_bf16_f32 {v(ZR + 8 + (r>>1))}, {v(ACC_I+r-1)}, {v(ACC_I+r)}"]
    for comp in range(2):
        ops += [lambda j=j, comp=comp: DS(f"ds_write_b64 {v(vHSW)}, {v(ZR + 8*comp + 2*j, 2)} offset:{8*j}", "hsw") for j in range(4)]
        for st in range(2):
            for ph in range(2):
                ops.append(lambda st=st, ph=ph, comp=comp: DS(f"ds_read_b64_tr_b16 {v(128 + 8*comp + 4*st + 2*ph, 2)}, {v(vHSR)} offset:{(16*st + 4*ph)*72}", f"hr{comp}{st}"))
    for comp in range(2):
        for st in range(2):
            def stv(st=st, comp=comp):
                E.wait(lg=f"hr{comp}{st}")
                VM(f"buffer_store_dwordx4 {v(128 + 8*comp + 4*st, 4)}, {v(vHST)}, {SWS}, {sHST2 if comp else sHST} offen offset:{st*1024} sc1", "hst")
            ops.append(stv)
    ops.append(mark("ssm3"))
    return ops
EC = P2 + max(OPT["echeck"], 96)
at(EC, lambda: (need_mark("p3a"), qV.extend(ssm3())))
for m in range(EC, EC + 24): slots[m].nV = 7
hf = f"G{OPT['hflag']}"
wait_b(hf, "hst"); after_b(hf, lambda: flag_store(sFH, "L_fh"))

def glu_epi(u):
    ops = []; o = 192 + 8*u; t = 216
    for j in range(8):
        t0, t1 = t + 2*(j & 3), t + 2*(j & 3) + 1
        ops += [f"v_accvgpr_read_b32 {v(t0)}, {a(A_U+16*u+2*j)}", f"v_accvgpr_read_b32 {v(t1)}, {a(A_U+16*u+2*j+1)}",
                f"v_mul_f32 {v(t0)}, {v(vR2)}, {v(t0)}", f"v_mul_f32 {v(t1)}, {v(vR2)}, {v(t1)}",
                f"v_mul_f32 {v(t0)}, {v(ACC_G+16*u+2*j)}, {v(t0)}", f"v_mul_f32 {v(t1)}, {v(ACC_G+16*u+2*j+1)}, {v(t1)}",
                f"v_cvt_pk_bf16_f32 {v(o+j)}, {v(t0)}, {v(t1)}"]
        if j & 3 == 3:
            ops.append(lambda fr=j >> 2: VM(f"buffer_store_dwordx4 {v(o + 4*fr, 4)}, {v(vHST)}, {SWS}, {sHG[u]} offen offset:{fr*1024} sc1", "gst"))
    ops.append(mark(f"epi{u}"))
    return ops
G7 = first_slot["G7"]
at(G7 + 10, lambda: qV.extend(glu_epi(0))); at(G7 + 18, lambda: qV.extend(glu_epi(1)))
for m in range(G7 + 10, P3): slots[m].nV = 7
at(P2 + OPT["poll1"], lambda: poll_issue(sFH, "ph"))
wait_b("H1", "gst"); after_b("H1", lambda: flag_store(sFG, "L_fg"))

BASE = 64
def base_ops():
    ops = [f"v_mov_b32 {v(BASE+r)}, 0" for r in range(16)]
    def rdx(r):
        check_read(items["XE"]); DS(f"ds_read_u16_d16_hi {v(BASE+r)}, {v(vXR)} offset:{128*r}", f"xe{r}")
    ops += [lambda r=r: rdx(r) for r in range(16)]
    ops += [lambda j=j: DS(f"ds_read_b128 {v(80+4*j,4)}, {v(vTAB3)} offset:{16*j}", f"r3{j}") for j in range(4)]
    ops += [lambda j=j: DS(f"ds_read_b128 {v(96+4*j,4)}, {v(vTAB3)} offset:{512+16*j}", f"m3{j}") for j in range(4)]
    ops.append(lambda: E.wait(lg="m33"))
    for r in range(0, 16, 2):
        t0, t1, p = 112, 113, 114
        rnd = [f"v_cvt_pk_bf16_f32 {v(p)}, {v(t0)}, {v(t1)}", f"v_lshlrev_b32 {v(t0)}, 16, {v(p)}", f"v_and_b32 {v(t1)}, 0xffff0000, {v(p)}"]
        ops += [f"v_sub_f32 {v(t0)}, {v(BASE+r)}, {v(96+r)}", f"v_sub_f32 {v(t1)}, {v(BASE+r+1)}, {v(97+r)}"] + rnd
        ops += [f"v_mul_f32 {v(t0)}, {v(t0)}, {v(80+r)}", f"v_mul_f32 {v(t1)}, {v(t1)}, {v(81+r)}"] + rnd
        ops += [f"v_mul_f32 {v(t0)}, {v(t0)}, {v(vDSK)}", f"v_mul_f32 {v(t1)}, {v(t1)}, {v(vDSK)}"] + rnd
        ops += [f"v_add_f32 {v(BASE+r)}, {v(BASE+r)}, {v(t0)}", f"v_add_f32 {v(BASE+r+1)}, {v(BASE+r+1)}, {v(t1)}"]
    ops.append(mark("base"))
    return ops
at(first_slot["H2"], lambda: qV.extend(base_ops()))

def boundary(chunk):
    ex, fns = bevents.get(chunk, ([], []))
    if chunk == "H0":
        pass
    for n in chunk_items(chunk): need_item(n)
    if "hst" in ex: need_mark("ssm3")
    if "gst" in ex: need_mark("epi2")
    E.wait(vm=chunk_items(chunk) + ex, lg=["tabw", "eqz"])
    E.barrier()
    for fn in fns: fn()

D = OPT["D"]
def do_slot(m):
    s = slots[m]
    for n in s.needs: need_mark(n)
    tags = list(s.tags)
    if OPT["pairw"] and m % 2 == 0 and m + 1 < M and hasattr(slots[m+1], "tags"): tags += slots[m+1].tags
    E.wait(lg=tags)
    I(s.mfma(s.bufs))
    for fn in events.get(m, []): fn()
def segment(lo, hi):
    for m in range(lo - D, hi):
        if m >= lo: do_slot(m)
        r = m + D
        if r < hi:
            if first_slot[slots[r].chunk] == r: boundary(slots[r].chunk)
            emit_reads(r)
        if m >= lo:
            if m % slots[m].dper == 0: popD(1)
            popV(slots[m].nV)
            if m in post: post[m]()
            if OPT["stamps"] and first_slot[slots[m].chunk] == m and slots[m].chunk in ("S0", "G0", "G2", "G4", "G6", "H0", "H1", "H4", "U0", "U1", "U5", "U10"): stamp()
burst(0); qV.extend(cvt_ops(0)); need_mark("cen3"); burst(1); qV.extend(cvt_ops(1))
segment(0, P3)
stamp()
need_mark("p3b"); popD(100)
E.barrier()
poll_check(sFH, "ph")
for op in H_ops(0, 4) + H_ops(1, 5): op()
need_mark("epi1"); qV.extend(glu_epi(2)); need_mark("epi2")
stamp()
segment(P3, M)
need_mark("base")
assert not qV and not qD and not wish, (len(qV), len(qD), wish)
stamp()
for r in range(16):
    I(f"v_add_f32 {v(BASE+r)}, {v(BASE+r)}, {v(ACC3+r)}")
    if r % 2 == 0: I(f"s_mov_b32 {sT0}, {(r>>1)*4096}")
    VM(f"buffer_store_dword {v(BASE+r)}, {v(vOUT)}, {SOUT}, {sT0} offen offset:{(r&1)*2048}", "out")
if OPT["stamps"]:
    E.wait_all(vm=True); stamp()
    I(f"s_lshl_b32 {sT0}, s2, 2"); I(f"s_add_u32 {sT0}, {sT0}, {sW_}"); I(f"s_lshl_b32 {sT0}, {sT0}, 8"); I(f"s_add_u32 {sT0}, {sT0}, {WS_ST}")
    I(f"v_writelane_b32 v0, {sSPIN}, {nstamp[0]}")
    I("s_memrealtime s[98:99]"); E.wait_all(lg=True); I("v_writelane_b32 v0, s98, 62"); I("v_writelane_b32 v0, s14, 63")
    I(f"v_lshlrev_b32 v2, 2, {vLANE}"); I(f"v_writelane_b32 v0, {nstamp[0]}, 61")
    VM(f"buffer_store_dword v0, v2, {SWS}, {sT0} offen")
    if OPT["stamps"] == 2:
        I("s_mov_b64 exec, 1"); I("s_memrealtime s[98:99]"); E.wait_all(lg=True)
        I("s_not_b32 s14, s14"); I("s_mov_b64 exec, -1"); I("v_mov_b32 v5, 0"); I("s_mov_b64 exec, 1"); I("v_mov_b32 v3, s14"); I("v_mov_b32 v4, s98")
        VM(f"buffer_atomic_umax v3, v5, {SDBG}, 0 offen offset:4"); VM(f"buffer_atomic_umax v4, v5, {SDBG}, 0 offen offset:8")
        I(f"s_lshl_b32 {sT0}, s2, 2"); I(f"s_add_u32 {sT0}, {sT0}, {sW_}"); I(f"s_cmp_lg_u32 {sT0}, 148"); I("s_cbranch_scc1 L_end")
        I("s_mov_b64 exec, -1"); I("v_readlane_b32 s14, v0, 0"); I("v_subrev_u32 v0, s14, v0")
        for n, l in enumerate([1, 2, 3, 4, 6, 8, 10, 13, 17, 18]):
            I(f"v_readlane_b32 s14, v0, {l}"); I(f"v_mov_b32 v3, s14"); VM(f"buffer_store_dword v3, v5, {SDBG}, 0 offen offset:{12+4*n}")
if OPT.get("fixdur"):
    E.label("L_fix"); I("s_sleep 1"); I("s_memrealtime s[98:99]"); E.wait_all(lg=True); I("s_sub_u32 s98, s98, s14"); I(f"s_cmp_lt_u32 s98, {OPT['fixdur']}"); I("s_cbranch_scc1 L_fix")
E.label("L_end")
I("s_endpgm")

hdr = open("cdna_kernels/" + NAME + ".s.ref").read().split("; Override launch geometry")[0]
out = hdr + f"; @launch grid=(256,1,1) block=(256,1,1) lds={LDS_BYTES}\n"
out += f'.amdgcn_target "amdgcn-amd-amdhsa--gfx950"\n.text\n.globl {NAME}_kernel\n.p2align 8\n.type {NAME}_kernel,@function\n'
out += E.text() + "\n".join(slow) + "\n"
out += f"L_pad:\n.fill (33024 - (L_pad - {NAME}_kernel)) / 4, 4, 0xbf810000\n"
out += f""".section .rodata,"a"
.p2align 6
.amdhsa_kernel {NAME}_kernel
  .amdhsa_next_free_vgpr 384
  .amdhsa_next_free_sgpr 102
  .amdhsa_accum_offset 256
  .amdhsa_group_segment_fixed_size 0
  .amdhsa_kernarg_size 128
  .amdhsa_user_sgpr_count 2
  .amdhsa_user_sgpr_kernarg_segment_ptr 1
  .amdhsa_system_sgpr_workgroup_id_x 1
.end_amdhsa_kernel
"""
open(sys.argv[1], "w").write(out)
print(f"instructions {E.count}, nops {E.nops}, barriers {len(E.barriers)}, vm ops {len(E.vm)}, ds ops {len(E.lg)}", file=sys.stderr)
```

```python
import sys
from emit import Emitter
NAME = "parallel_sum__ssm_conv_s5__glu_gated_bilinear__prompt"
OPT = dict(lst=0, rt=1, D=4, D3=4, NU=2, gfd=40, prio=1, bd=15, ipc=85, slp=4, dsp=3, efn=90, rot=1, lead=12, ge=0, gf=1, gp=2, d64=0, w2a=60, w2b=130, pb=2, vc=85, efd=27, ecd=20)
for a_ in sys.argv[2:]:
    k_, v_ = a_.split("="); OPT[k_] = int(v_)

WS_EB = 0xA00000; WS_FH = 0xA40000; WS_FG = 0xA48000; WS_ST = 0xC00000; WS_SIZE = 0xD00000
U8 = 8192; MISC = 18 * U8
RTAB = MISC; EQ = MISC + 1024; HS = MISC + 5120; XE = MISC + 5120
DUMP = 0
PRG = MISC + 15872
LDS_BYTES = 163840
OOB = 0x80000000
sW_, sC_, sG_, sGL, sGH, sJ0 = "s3", "s4", "s5", "s6", "s7", "s8"
sT0, sT1, sT2, sT3 = "s9", "s10", "s11", "s12"
SX, SS, SG, SC, SWD, SWS, SOUT, SDBG = ("s[48:51]", "s[52:55]", "s[56:59]", "s[60:63]", "s[64:67]", "s[68:71]", "s[72:75]", "s[76:79]")
sK = [f"s{80+i}" for i in range(8)]
sM4, sM2, sM6 = "s88", "s89", "s94"
sQW, sQHG, sSO = "s95", "s96", "s100"
sNON, sC10, sC01, sC11 = "s90", "s91", "s92", "s93"
sSPIN = "s97"; sSP2 = "s99"; sCL = "s101"
vLANE = "v1"
MF = "v_mfma_f32_32x32x16_bf16"
def v(n, k=1): return f"v{n}" if k == 1 else f"v[{n}:{n+k-1}]"

EC, EH, E0 = Emitter(), Emitter(), Emitter()
E = E0
def I(t): return E.I(t)
def VM(t, tag=None): return E.VM(t, tag)
def DS(t, tag=None): return E.DS(t, tag)
slow = []
lnames = {"C": [], "H": []}
def lstamp(name):
    who = "C" if E is EC else "H"
    if OPT["lst"] and name in LSET[who] and len(lnames[who]) < 12:
        k = 24 + 2 * len(lnames[who]); lnames[who].append(name); I(f"{'s_memrealtime' if OPT['rt'] else 's_memtime'} s[{k}:{k+1}]")
LSETS = {0: ([], []),
         1: (["X0", "X7", "S0", "G0", "G4", "T", "H5", "H1", "U0", "U5", "last", "end"], ["b0", "xd", "bD", "epub", "ef", "eok", "hst", "hflag", "okh", "gT", "okg", "end"]),
         2: (["S0", "S2", "S4", "S6", "G0", "G1", "G2", "G3", "G4", "G5", "G6", "T"], ["b0", "xd", "bD", "epub", "ef", "eok", "hst", "hflag", "okh", "gT", "okg", "end"]),
         3: (["T", "K0", "K4", "H5", "H7", "H1", "H3", "U0", "U2", "U4", "U7", "last"], ["b0", "xd", "bD", "epub", "ef", "eok", "hst", "hflag", "okh", "gT", "okg", "end"])}
LSET = dict(zip("CH", LSETS[OPT["lst"]]))
def runall(ops):
    for op in ops:
        if isinstance(op, str): I(op)
        else: op()
def csq_ops(d, x, t):
    return [f"v_mul_f32 {v(t)}, {v(x+1)}, {v(x+1)}", f"v_add_f32 {v(t+1)}, {v(x)}, {v(x)}", f"v_fma_f32 {v(d)}, {v(x)}, {v(x)}, -{v(t)}", f"v_mul_f32 {v(d+1)}, {v(t+1)}, {v(x+1)}"]
def cmul_ops(d, x, y, t):
    return [f"v_mul_f32 {v(t)}, {v(x)}, {v(y)}", f"v_mul_f32 {v(t+1)}, {v(x)}, {v(y+1)}",
            f"v_fma_f32 {v(t)}, -{v(x+1)}, {v(y+1)}, {v(t)}", f"v_fma_f32 {v(d+1)}, {v(x+1)}, {v(y)}, {v(t+1)}", f"v_mov_b32 {v(d)}, {v(t)}"]
def cfma_ops(d, L, x, br, bi):
    return [f"v_fma_f32 {v(d[0])}, {v(L)}, {v(x[0])}, {v(br)}", f"v_fma_f32 {v(d[1])}, {v(L)}, {v(x[1])}, {v(bi)}",
            f"v_fma_f32 {v(d[0])}, -{v(L+1)}, {v(x[1])}, {v(d[0])}", f"v_fma_f32 {v(d[1])}, {v(L+1)}, {v(x[0])}, {v(d[1])}"]
def bf16r_ops(d, s): return [f"v_cvt_pk_bf16_f32 {v(d)}, {v(s)}, {v(s)}", f"v_and_b32 {v(d)}, 0xffff0000, {v(d)}"]
def srd(dst, lo, size):
    n = int(dst[2:dst.index(":")])
    I(f"s_mov_b64 s[{n}:{n+1}], s[{lo}:{lo+1}]"); I(f"s_mov_b32 s{n+2}, {size}"); I(f"s_mov_b32 s{n+3}, 0x20000")
def srd_sel(dst, p0, p1, size):
    n = int(dst[2:dst.index(":")])
    I(f"s_cselect_b64 s[{n}:{n+1}], s[{p1}:{p1+1}], s[{p0}:{p0+1}]"); I(f"s_mov_b32 s{n+2}, {size}"); I(f"s_mov_b32 s{n+3}, 0x20000")
def ktab(i):
    I(f"s_add_u32 {sK[i]}, {sJ0}, {i}"); I(f"s_and_b32 {sK[i]}, {sK[i]}, 7"); I(f"s_lshl_b32 {sK[i]}, {sK[i]}, 7")
def spin_guard(lbl_back, inc):
    return ([f"  s_add_u32 s15, s15, {inc}"] if OPT["lst"] else []) + [f"  s_add_u32 {sSPIN}, {sSPIN}, 1", f"  s_cmp_gt_u32 {sSPIN}, 0x400000", f"  s_cbranch_scc1 {lbl_back}"]
def tag_check(who, vp, vz):
    E.wait(vm="tag"); I(f"v_readfirstlane_b32 {sNON}, {v(vp)}"); I(f"s_cmp_eq_u32 {sNON}, 0"); I(f"s_cbranch_scc1 L_slow_tag{who}"); E.label(f"L_back_tag{who}")
    slow.extend([f"L_slow_tag{who}:", "  s_sleep 1", f"  v_mov_b32 {v(vz)}, 0", f"  buffer_load_dword {v(vp)}, {v(vz)}, {SDBG}, 0 offen sc1", "  s_waitcnt vmcnt(0)",
                 f"  v_readfirstlane_b32 {sNON}, {v(vp)}"] + spin_guard(f"L_back_tag{who}", 1) +
                [f"  s_cmp_eq_u32 {sNON}, 0", f"  s_cbranch_scc1 L_slow_tag{who}", f"  s_branch L_back_tag{who}"])
signals = {}
def signal(word, val, va, vt, off):
    signals[(word, val)] = (E, E.lg_done)
    I(f"v_mov_b32 {v(vt)}, {val}"); DS(f"ds_write_b32 {v(va)}, {v(vt)} offset:{off}", "sig")
nchk = [0]
def chk_issue(va, vt, off):
    nchk[0] += 1; DS(f"ds_read_b32 {v(vt)}, {v(va)} offset:{off}", f"chk{nchk[0]}"); return f"chk{nchk[0]}"
def chk_test(tag, val, va, vt, off, inc):
    E.wait(lg=tag)
    I(f"v_cmp_gt_u32 vcc, {val}, {v(vt)}"); I(f"s_cbranch_vccnz L_slow_{tag}"); E.label(f"L_back_{tag}")
    slow.extend([f"L_slow_{tag}:", f"  ds_read_b32 {v(vt)}, {v(va)} offset:{off}", "  s_waitcnt lgkmcnt(0)", f"  v_cmp_gt_u32 vcc, {val}, {v(vt)}"]
                + spin_guard(f"L_back_{tag}", inc) + [f"  s_cbranch_vccnz L_slow_{tag}", f"  s_branch L_back_{tag}"])
def chk_spin(val, va, vt, off):
    nchk[0] += 1; lbl = f"L_spin{nchk[0]}"
    E.label(lbl)
    DS(f"ds_read_b32 {v(vt)}, {v(va)} offset:{off}", lbl); I(f"s_sub_u32 {sSP2}, {sSP2}, 1"); I("s_cbranch_scc1 L_end")
    E.wait_all(lg=True)
    I(f"v_cmp_gt_u32 vcc, {val}, {v(vt)}"); I(f"s_cbranch_vccnz {lbl}")
def dump_stamps(who):
    if not OPT["lst"]: return
    E.wait_all(vm=True); lstamp("end"); E.wait_all(lg=True)
    n = len(lnames[who])
    for k in range(n): I(f"v_writelane_b32 v2, s{24+2*k}, {k}")
    I(f"v_writelane_b32 v2, {n}, 61"); I("v_writelane_b32 v2, s15, 60"); I("v_writelane_b32 v2, s14, 63")
    I(f"s_lshl3_add_u32 {sT0}, s2, {sW_}"); I(f"s_add_u32 {sT0}, {sT0}, {4 if who == 'H' else 0}"); I(f"s_lshl_b32 {sT0}, {sT0}, 8"); I(f"s_add_u32 {sT0}, {sT0}, {WS_ST}")
    I(f"v_lshlrev_b32 v3, 2, {vLANE}")
    VM(f"buffer_store_dword v2, v3, {SWS}, {sT0} offen")

NU = OPT["NU"]; assert NU == 2
OPT_GF = ["K4", "H5", "H6"][OPT["gf"]]
BASE_OF = {}
for i in range(8): BASE_OF[f"X{i}"] = (2 * (i & 3) * U8, 16384)
for i, u in enumerate([8, 9, 10, 11, 0, 1, 2, 3]): BASE_OF[f"S{i}"] = (u * U8, 8192)
for i, u in enumerate([12, 15, 4, 7, 12, 15, 0, 4]): BASE_OF[f"G{i}"] = (u * U8, 24576)
DUMPS = [10 * U8, 0]
BASE_OF["DUMP0"] = (DUMPS[0], 16384); BASE_OF["DUMP1"] = (DUMPS[1], 16384); BASE_OF["XE"] = (XE, 8192); BASE_OF["HS"] = (HS, 10432)
slot_of = {"C0": 5, "C1": 4, "W0": 6, "C2": 7, "C3": 8, "C4": 0, "C5": 1, "C6": 2, "C7": 3}
NK = 5
HORD = [5, 6, 7, 0, 1, 2, 3, 4]
p3chunks = ["K0", "K4"] + [f"H{i}" for i in HORD] + [f"U{i}" for i in range(11)]
def chunk_items(ch):
    i = ch[1:]
    if ch[0] == "S": return [f"S{i}", f"S{int(i)+1}"]
    if ch == "K0": return ["C0", "C1", "C2", "C3", "XE"]
    if ch == "K4": return ["C4"]
    if ch[0] == "H" and int(i) < NK: return [f"H{i}"]
    return {"G": [f"G{i}"], "H": [f"C{i}", f"H{i}"], "U": [f"W{i}", f"HG{i}"]}[ch[0]]
FREED = {"K4": "K0", "H5": "K4"}
for k in range(4, len(p3chunks)): FREED[p3chunks[k]] = p3chunks[k-2]
seq = ["H5", "H6", "H7", "H0", "H1", "H2", "W1", "H3", "W2", "H4", "W3", "W4", "HG0", "HG1", "HG2", "HG3", "HG4", "W5", "HG5", "W6", "HG6", "W7", "HG7", "W8", "HG8", "W9", "HG9", "W10", "HG10"]
P3PLAN = {}
for ch in p3chunks:
    l = []
    for o in (chunk_items(FREED[ch]) if ch in FREED else []):
        if o != "XE" and seq:
            n = seq.pop(0); slot_of[n] = slot_of[o]; l.append(n)
    P3PLAN[ch] = l
assert not seq
CHUNKS = ["S0", "S2", "S4", "S6"] + [f"G{i}" for i in range(8)]
PHV = {c: k + 1 for k, c in enumerate(CHUNKS)}
STAGES = ["X", "S1", "S5", "dump"] + [f"G{i}" for i in range(6)] + ["T"]
PCV = {c: k + 1 for k, c in enumerate(STAGES)}
for n, s in slot_of.items(): BASE_OF[n] = (s * 16384, 16384)

class Item: pass
items = {}
for n, (b, sz) in BASE_OF.items():
    it = Item(); it.name, it.base, it.size = n, b, sz; it.first_bar = None; it.last_read = None; it.reader = None; items[n] = it
bar_names = []
def note_read(name):
    it = items[name]
    if it.first_bar is None: it.first_bar = len(E.barriers)
    it.last_read = len(E.lg); it.last_bar = len(E.barriers); it.reader = E

E = E0
E.label(f"{NAME}_kernel")
I("s_cmp_ge_u32 s2, 256"); I("s_cbranch_scc1 L_end")
I("s_load_dwordx16 s[16:31], s[0:1], 0")
I("s_getpc_b64 s[98:99]"); I(f"s_bfe_u32 {sT0}, s2, 0x20003"); I("v_lshrrev_b32 v80, 3, v0"); I(f"v_lshl_add_u32 v80, v80, 2, {sT0}"); I("v_lshlrev_b32 v80, 7, v80")
VM("global_load_dword v95, v80, s[98:99]", "code")
I("s_load_dwordx16 s[32:47], s[0:1], 64")
I("s_memrealtime s[14:15]")
I("v_lshrrev_b32 v80, 6, v0"); I(f"v_and_b32 {vLANE}, 63, v0"); I(f"v_readfirstlane_b32 {sT3}, v80")
I(f"s_bfe_u32 {sT0}, s2, 0x20001"); I(f"s_lshr_b32 {sCL}, s2, 6"); I(f"s_lshl2_add_u32 {sC_}, {sT0}, {sCL}")
I(f"s_bfe_u32 {sGL}, s2, 0x30003")
if OPT["rot"] == 8: I(f"s_lshl1_add_u32 {sJ0}, {sCL}, {sGL}")
else: I(f"s_add_u32 {sJ0}, {sCL}, {sGL}"); I(f"s_lshl_b32 {sJ0}, {sJ0}, { {4: 1, 2: 2, 1: 3}[OPT['rot']] }")
I(f"s_and_b32 {sGH}, s2, 1"); I(f"s_lshl3_add_u32 {sG_}, {sGH}, {sGL}")
for i in range(2): ktab(i)
I(f"s_and_b32 {sW_}, {sT3}, 3"); I(f"s_lshl_b32 {sM4}, {sW_}, 12")
I(f"v_lshrrev_b32 v81, 3, {vLANE}"); I(f"v_and_b32 v82, 7, {vLANE}")
I("v_lshrrev_b32 v84, 1, v81"); I("v_xor_b32 v83, v82, v84"); I("v_lshlrev_b32 v83, 4, v83"); I("v_xor_b32 v85, 64, v83")
I(f"s_mov_b32 {sSP2}, 0x1000000")
I(f"s_cmp_ge_u32 {sT3}, 4"); I("s_cbranch_scc1 L_helper")

E = EC
vP1 = [2, 3, 4, 5]; vGT = 6; vNM = 7; vR2 = 0
FB0, NFB = 8, 6
ACCG = [32, 64, 96]; ACCU = [48, 80, 112]; ACC_R, ACC_I = 96, 112
XF = 128
vXo = [86, 87, 88, 89]
def cbar(name, vm=(), lg=()):
    E.wait(vm=vm, lg=lg); E.barrier(); bar_names.append(name)
I("v_and_b32 v84, 4, v81"); I("v_and_b32 v80, 3, v81"); I("v_lshl_add_u32 v84, v84, 2, v80")
I(f"s_lshl2_add_u32 {sT0}, {sC_}, {sW_}"); I(f"s_lshl_b32 {sT0}, {sT0}, 5")
I(f"v_add_lshl_u32 v84, v84, {sT0}, 10")
I(f"v_add_u32 {v(vXo[0])}, v84, v83"); I(f"v_add_u32 {v(vXo[1])}, v84, v85")
I(f"v_add_u32 {v(vXo[2])}, 6144, {v(vXo[0])}"); I(f"v_add_u32 {v(vXo[3])}, 9216, {v(vXo[1])}"); I(f"v_add_u32 {v(vXo[1])}, 3072, {v(vXo[1])}")
I("s_mov_b32 s50, 2097152"); I("s_mov_b32 s51, 0x20000")
E.wait_all(lg=True)
I("s_mov_b64 s[48:49], s[16:17]")
def X_issue(i):
    I(f"s_add_u32 m0, {sM4}, {items[f'X{i}'].base}")
    for q in range(4): VM(f"buffer_load_dwordx4 {v(vXo[q])}, {SX}, {sK[i]} offen" + (f" offset:{q*1024}" if q else "") + " lds", f"X{i}")
X_issue(0); X_issue(1)
if OPT["prio"] == 1: I("s_setprio 1")
for i in range(2, 8): ktab(i)
X_issue(2)
I(f"v_and_b32 v90, 31, {vLANE}"); I(f"v_lshrrev_b32 v91, 5, {vLANE}")
I("v_bfe_u32 v92, v90, 1, 3"); I("v_xor_b32 v92, v92, v91"); I("v_lshlrev_b32 v92, 4, v92"); I("v_lshl_add_u32 v92, v90, 7, v92")
I(f"v_add_u32 {v(vP1[0])}, {sM4}, v92")
for s in range(1, 4): I(f"v_xor_b32 {v(vP1[s])}, {32*s}, {v(vP1[0])}")
I(f"s_mov_b32 {sC11}, 0x3f803f80"); I(f"s_mov_b32 {sC10}, 0x00003f80"); I(f"s_mov_b32 {sC01}, 0x3f800000")
for r in range(64, 72): I(f"v_mov_b32 v{r}, 0")
srd(SWS, 46, WS_SIZE); srd(SOUT, 42, 4194304)
I(f"s_mov_b32 {sSPIN}, 0"); I("s_mov_b32 s15, 0"); I("s_mov_b64 s[22:23], s[32:33]")
I(f"v_bfe_u32 v92, {vLANE}, 2, 2"); I("v_lshl_add_u32 v92, v91, 3, v92"); I(f"v_mul_u32_u24 {v(vGT)}, 192, v92")
I(f"v_and_b32 v93, 16, {vLANE}"); I(f"v_lshl_add_u32 {v(vGT)}, v93, 1, {v(vGT)}")
I(f"v_and_b32 v93, 1, {vLANE}"); I(f"v_lshl_add_u32 {v(vGT)}, v93, 4, {v(vGT)}")
I(f"v_and_b32 v93, 2, {vLANE}"); I(f"v_lshl_add_u32 {v(vGT)}, v93, 2, {v(vGT)}")
I(f"s_lshl_b32 {sT0}, {sW_}, 7"); I(f"s_add_u32 {sT0}, {sT0}, {RTAB}")
I("v_bfe_u32 v93, v90, 2, 1"); I("v_lshlrev_b32 v94, 4, v93"); I("v_lshrrev_b32 v93, 3, v90"); I("v_lshl_add_u32 v94, v93, 2, v94")
I("v_and_b32 v93, 3, v90"); I("v_add_u32 v94, v94, v93"); I(f"v_lshl_add_u32 v94, v94, 2, {sT0}")
FR = dict(r=72, t=73, v=74, w=75)
I(f"v_and_b32 v72, 3, {vLANE}"); I("v_lshlrev_b32 v72, 2, v72"); I(f"v_add_u32 v72, {PRG}, v72")
I(f"s_lshl_b32 {sT0}, {sW_}, 2"); I(f"s_add_u32 {sT0}, {sT0}, {PRG}"); I(f"v_mov_b32 v75, {sT0}")
def csig(st): signal("PC", PCV[st], FR["w"], FR["v"], 0)
for i in range(8):
    it = items[f"X{i}"]
    if i == 2: cbar("b0")
    E.wait(vm=it.name)
    for s in range(4):
        DS(f"ds_read_b128 {v(XF + 16*i + 4*s, 4)}, {v(vP1[s])} offset:{it.base & 0xffff}", f"xr{i}_{s}"); note_read(it.name)
    if i + 3 < 8: X_issue(i + 3)
    for s in range(4):
        E.wait(lg=f"xr{i}_{s}")
        for d in range(4):
            x = v(XF + 16*i + 4*s + d)
            I(f"v_dot2c_f32_bf16 v{64+d}, {sC11}, {x}"); I(f"v_dot2c_f32_bf16 v{68+d}, {x}, {x}")
    lstamp(f"X{i}")
csig("X"); gchk = {"S0": chk_issue(FR["r"], FR["t"], 16)}
I("v_add_f32 v64, v64, v65"); I("v_add_f32 v66, v66, v67"); I("v_add_f32 v68, v68, v69")
I("v_add_f32 v64, v64, v66"); I("v_add_f32 v70, v70, v71"); I("v_mov_b32 v65, v64"); I("v_add_f32 v68, v68, v70"); I("v_mov_b32 v69, v68")
I("v_permlane32_swap_b32 v64, v65"); I("v_permlane32_swap_b32 v68, v69")
I("v_add_f32 v64, v64, v65"); I("v_mul_f32 v64, 0x3b000000, v64")
runall(bf16r_ops(65, 64)); I(f"v_sub_f32 {v(vNM)}, 0, v65")
I(f"s_sub_u32 {sT0}, 65536, {sM4}")
for s in range(4): I(f"v_add_u32 {v(vP1[s])}, {sT0}, {v(vP1[s])}")
win = {"p1": 65536, "c1": 0, "gt": 0, "lin": 0, "wt": 0}
def burst(i):
    for d in range(16):
        x = v(XF + 16*i + d)
        I(f"v_dot2_f32_bf16 v{32+2*d}, {x}, {sC10}, {v(vNM)}"); I(f"v_dot2_f32_bf16 v{33+2*d}, {x}, {sC01}, {v(vNM)}")
qC, qB = [], []
marks = set()
def run_op(op):
    if isinstance(op, tuple): marks.add(op[1])
    elif isinstance(op, str): I(op)
    else: op()
def need_mark(m):
    while m not in marks:
        q = next(q for q in (qC, qB) if ("mark", m) in [o for o in q if isinstance(o, tuple)])
        run_op(q.pop(0))
def cvt_ops(i):
    ops = []
    for d in range(16):
        ops.append(f"v_cvt_pk_bf16_f32 {v(XF + 16*i + d)}, v{32+2*d}, v{33+2*d}")
        if d & 3 == 3: ops.append(("mark", f"cen{4*i + (d>>2)}"))
    return ops
B = ["v_add_f32 v68, v68, v69", "v_mul_f32 v68, 0x3b000000, v68", "v_fma_f32 v68, -v64, v64, v68", "v_max_f32 v68, 0, v68"]
B += bf16r_ops(68, 68) + ["v_add_f32 v68, 0x3727c5ac, v68"] + bf16r_ops(68, 68) + ["v_sqrt_f32 v68, v68", lambda: DS("ds_write_b32 v94, v65 offset:512", "tabw")]
B += bf16r_ops(68, 68) + ["v_rcp_f32 v68, v68", lambda: DS("ds_write_b32 v94, v68", "tabw"), f"v_mul_f32 {v(vR2)}, v68, v68", ("mark", "tab")]
qB.extend(B)

class Slot: pass
slots = []
def add_slot(chunk, reads, mfma, needs=()):
    s = Slot(); s.chunk, s.reads, s.mfma, s.needs = chunk, reads, mfma, needs; slots.append(s)
for i in range(8):
    for s in range(4):
        f = 4*i + s
        for comp in range(2):
            acc = v(ACC_I if comp else ACC_R, 16)
            add_slot(f"S{i}", [("p1", f"S{i}", s, comp * 4096)], lambda b, f=f, acc=acc: f"{MF} {acc}, {v(XF+4*f,4)}, {v(b[0],4)}, {acc if f else 0}", needs=[f"cen{f}"])
P2 = len(slots)
order = [(0, s, u, m) for s in range(4) for u in range(2) for m in range(2)] + [(0, s, 2, m) for s in range(4) for m in range(2)]
order += [(i, s, u, m) for i in range(1, 8 - NU) for s in range(4) for u in range(3) for m in range(2)]
order += [(i, s, u, m) for u in range(3) for i in range(8 - NU, 8) for s in range(4) for m in range(2)]
unit_done = {}
for (i, s, u, m) in order:
    f = 4*i + s; acc = v((ACCU if m else ACCG)[u], 16)
    nd = (["tab"] if f == 0 else []) + (["dumped"] if (f, u) == (0, 2) else [])
    add_slot(f"G{i}", [("gt", f"G{i}", m * 12288 + 16*s*192 + 64*u)], lambda b, f=f, acc=acc: f"{MF} {acc}, {v(b[0],4)}, {v(XF+4*f,4)}, {acc if f else 0}", needs=nd)
    unit_done[u] = len(slots) - 1
P3 = len(slots)
ACC3 = 32; BASE = 48
vHST = 128; vHR, vWT, vXR, vTAB3, vOUT, vDSK = 129, 130, 131, 132, 133, 134
sHG = ["s16", "s17", "s18"]
EPO = 144; vC1 = [140, 141, 142, 143]
quads = list(range(168, 256, 4)) + list(range(100, 128, 4)) + list(range(144, 168, 4)) + list(range(64, 100, 4))
STG = {(i, s): quads[8*i + s] for i in range(NK) for s in range(8)}
P3BUFS = list(range(8, 32, 4)) + quads[8*NK:]
for i in HORD:
    for s in range(8):
        if i < NK:
            add_slot(f"H{i}", [("lin", f"H{i}", s * 1024)], lambda b, q=STG[(i, s)]: f"{MF} {v(ACC3,16)}, {v(b[0],4)}, {v(q,4)}, {v(ACC3,16)}")
        else:
            add_slot(f"H{i}", [("lin", f"H{i}", s * 1024), ("c1", f"C{i}", s & 3, (s >> 2) * 8192)],
                     lambda b, first=(i == HORD[0] and s == 0): f"{MF} {v(ACC3,16)}, {v(b[0],4)}, {v(b[1],4)}, {0 if first else v(ACC3,16)}")
for i in range(11):
    for s in range(8):
        add_slot(f"U{i}", [("lin", f"HG{i}", s * 1024), ("wt", f"W{i}", 16*s*128)], lambda b: f"{MF} {v(ACC3,16)}, {v(b[0],4)}, {v(b[1],4)}, {v(ACC3,16)}")
M = len(slots)
first_slot = {}
for m, s in enumerate(slots): first_slot.setdefault(s.chunk, m)
fbs = {"l": [FB0 + 4*k for k in range(NFB)], "k": 0}
def newfb():
    r = fbs["l"][fbs["k"] % len(fbs["l"])]; fbs["k"] += 1; return r
def set_win(kind, regs, base, span):
    cur = win[kind]
    if not (cur <= base and base + span <= cur + 65536):
        new = min((base // 49152) * 49152, MISC - 65536)
        if not (new <= base and base + span <= new + 65536): new = base
        for r in regs: I(f"v_add_u32 {v(r)}, {(new - cur) & 0xffffffff}, {v(r)}")
        win[kind] = cur = new
    return cur
def emit_reads(m):
    s = slots[m]; s.bufs = []; s.tags = []
    for rd in s.reads:
        b = newfb(); s.bufs.append(b); tag = f"rd{m}_{rd[0]}"; s.tags.append(tag)
        kind, it = rd[0], items[rd[1]]
        if kind in ("p1", "c1"):
            regs = vP1 if kind == "p1" else vC1
            w = set_win(kind, regs, it.base, it.size); DS(f"ds_read_b128 {v(b,4)}, {v(regs[rd[2]])} offset:{it.base - w + rd[3]}", tag)
        elif kind == "lin":
            w = set_win(kind, [vHR], it.base, it.size); DS(f"ds_read_b128 {v(b,4)}, {v(vHR)} offset:{it.base - w + rd[2]}", tag)
        else:
            reg, pitch = (vGT, 192) if kind == "gt" else (vWT, 128)
            w = set_win(kind, [reg], it.base, it.size)
            DS(f"ds_read_b64_tr_b16 {v(b,2)}, {v(reg)} offset:{it.base - w + rd[2]}", tag)
            DS(f"ds_read_b64_tr_b16 {v(b+2,2)}, {v(reg)} offset:{it.base - w + rd[2] + 4*pitch}", tag)
        note_read(it.name)
events = {}
def at(m, fn): events.setdefault(m, []).append(fn)
post = {8*i + 7: (lambda i=i: (need_mark(f"cen{4*i+7}"), burst(i + 2), qC.extend(cvt_ops(i + 2)))) for i in range(6)}
at(52, lambda: qB.extend([f"v_lshlrev_b32 {v(vNM)}, 6, {vLANE}", f"v_bfe_u32 v64, {vLANE}, 1, 2", f"v_lshl_add_u32 {v(vNM)}, v64, 4, {v(vNM)}",
                          f"v_add_u32 {v(vNM)}, {sM4}, {v(vNM)}", ("mark", "dadr")]))
def dump_op(j, comp):
    need_mark("dadr")
    if j and comp == 0: I(f"v_xor_b32 {v(vNM)}, {16 * (j ^ (j - 1))}, {v(vNM)}")
    if comp == 0: I(f"v_add_u32 {v(vP1[1])}, {DUMPS[0]}, {v(vNM)}")
    DS(f"ds_write_b128 {v(vNM if comp else vP1[1])}, {v((ACC_I if comp else ACC_R) + 4*j, 4)}", "dump")
    if (j, comp) == (3, 1): marks.add("dumped")
def dump64(j, comp, hf):
    need_mark("dadr")
    if j and comp == 0 and hf == 0: I(f"v_xor_b32 {v(vNM)}, {16 * (j ^ (j - 1))}, {v(vNM)}")
    if comp == 0 and hf == 0: I(f"v_add_u32 {v(vP1[1])}, {DUMPS[0]}, {v(vNM)}")
    DS(f"ds_write_b64 {v(vNM if comp else vP1[1])}, {v((ACC_I if comp else ACC_R) + 4*j + 2*hf, 2)} offset:{8*hf}", "dump")
    if (j, comp, hf) == (3, 1, 1): marks.add("dumped")
if OPT["d64"]:
    for k in range(16): at(P2 + (k * 15) // 16, lambda k=k: dump64(k >> 2, (k >> 1) & 1, k & 1))
else:
    for k in range(8): at(P2 + 1 + (k * OPT["dsp"]) // 2, lambda k=k: dump_op(k >> 1, k & 1))
def fr_move():
    I(f"v_mov_b32 {v(vP1[0])}, v72"); I(f"v_mov_b32 {v(vP1[3])}, v75"); FR.update(r=vP1[0], t=vP1[1], v=vP1[2], w=vP1[3])
at(P2 - 2, fr_move)
at(17, lambda: csig("S1")); at(48, lambda: csig("S5"))
at(P2 + OPT["bd"], lambda: (need_mark("dumped"), E.wait(lg=["dump", "tabw"]), csig("dump")))
for i in range(6): at(P2 + 24*(i+1) + 1, lambda i=i: csig(f"G{i}"))
for c in CHUNKS[1:12]: at(first_slot[c] - OPT["D"] - 3, lambda c=c: gchk.__setitem__(c, chk_issue(FR["r"], FR["t"], 16)))
def st_addr():
    o = [f"s_lshl2_add_u32 {sT0}, {sC_}, {sW_}", f"s_mul_i32 {sT0}, {sT0}, {152*1024}", f"v_lshl_add_u32 {v(vHST)}, {vLANE}, 4, {sT0}", f"s_mul_i32 {sT0}, {sG_}, 3"]
    for uu in range(3):
        o += [f"s_add_u32 {sT1}, {sT0}, {uu}", f"s_lshl_b32 {sT3}, {sT1}, 11", f"s_add_u32 {sT3}, {sT3}, 65536",
              lambda uu=uu: (I(f"s_cmp_lt_u32 {sT1}, 44"), I(f"s_cselect_b32 {sHG[uu]}, {sT3}, 0x40000000"))]
    return o
def st_addr2():
    o = [f"s_and_b32 {sT1}, {sW_}, 1", f"s_lshr_b32 {sT2}, {sW_}, 1", f"v_lshrrev_b32 v136, 5, {vLANE}", f"v_and_b32 v138, 31, {vLANE}"]
    o += [f"s_lshl1_add_u32 {sT3}, {sGL}, {sT1}", f"s_lshl_b32 {sT0}, {sT3}, 5", f"v_add_lshl_u32 v137, v138, {sT0}, 1",
          lambda: VM(f"global_load_ushort {v(vDSK)}, v137, s[22:23]", "dsk")]
    o += [f"s_lshl_b32 {sT3}, {sT3}, 7", f"s_lshl1_add_u32 {sT0}, {sGH}, {sT2}", f"s_lshl2_add_u32 s13, {sC_}, {sT0}", "s_lshl_b32 s13, s13, 16", f"s_add_u32 s13, s13, {sT3}",
          "v_lshlrev_b32 v137, 15, v136", "v_lshl_add_u32 v137, v138, 2, v137", f"v_add_u32 {v(vOUT)}, s13, v137"]
    o += [f"s_lshl_b32 {sT0}, {sT0}, 7", f"s_add_u32 {sT0}, {sT0}, {RTAB}", f"v_lshl_add_u32 {v(vTAB3)}, v136, 6, {sT0}",
          f"s_lshl_b32 {sT0}, {sT1}, 6", f"s_lshl_b32 {sT3}, {sT2}, 12", f"s_add_u32 {sT3}, {sT3}, {sT0}", f"s_add_u32 {sT3}, {sT3}, {XE}",
          "v_lshlrev_b32 v137, 11, v136", "v_lshl_add_u32 v137, v138, 1, v137", f"v_add_u32 {v(vXR)}, {sT3}, v137",
          f"s_lshl_b32 {sT3}, {sT2}, 13", f"v_lshl_add_u32 {v(vHR)}, {vLANE}, 4, {sT3}"]
    o += [f"v_bfe_u32 v137, {vLANE}, 2, 2", "v_lshl_add_u32 v137, v136, 3, v137", "v_lshlrev_b32 v137, 7, v137",
          f"v_and_b32 v139, 16, {vLANE}", "v_lshl_add_u32 v137, v139, 1, v137", f"v_and_b32 v139, 3, {vLANE}", "v_lshl_add_u32 v137, v139, 3, v137",
          f"v_and_b32 v139, 8, {vLANE}", "v_lshlrev_b32 v139, 3, v139", f"v_xor_b32 v139, {sT0}, v139", f"v_add_u32 {v(vWT)}, v137, v139"]
    o += [f"s_lshl_b32 {sT0}, {sT1}, 12", "v_bfe_u32 v137, v138, 1, 3", "v_xor_b32 v137, v137, v136", "v_lshlrev_b32 v137, 4, v137", "v_lshl_add_u32 v137, v138, 7, v137",
          f"v_add_u32 {v(vC1[0])}, {sT0}, v137"] + [f"v_xor_b32 {v(vC1[s])}, {32*s}, {v(vC1[0])}" for s in range(1, 4)] + [("mark", "sta")]
    return o
at(P2 + 120, lambda: qB.extend(st_addr()))
def glu_epi(u):
    ops = []; o = EPO + 8*u
    for j in range(8):
        g0, u0 = ACCG[u] + 2*j, ACCU[u] + 2*j
        ops += [f"v_mul_f32 {v(u0)}, {v(vR2)}, {v(u0)}", f"v_mul_f32 {v(u0+1)}, {v(vR2)}, {v(u0+1)}",
                f"v_mul_f32 {v(u0)}, {v(g0)}, {v(u0)}", f"v_mul_f32 {v(u0+1)}, {v(g0+1)}, {v(u0+1)}", f"v_cvt_pk_bf16_f32 {v(o+j)}, {v(u0)}, {v(u0+1)}"]
        if j & 3 == 3:
            ops.append(lambda fr=j >> 2: VM(f"buffer_store_dwordx4 {v(o + 4*fr, 4)}, {v(vHST)}, {SWS}, {sHG[u]} offen offset:{fr*1024} sc1", "gst"))
    return ops + [("mark", f"epi{u}")]
for u in range(2): at(unit_done[u] + 3, lambda u=u: qB.extend(glu_epi(u)))
def base_ops():
    ops = [f"v_mov_b32 {v(BASE+r)}, 0" for r in range(16)]
    def rdx(r): DS(f"ds_read_u16_d16_hi {v(BASE+r)}, {v(vXR)} offset:{128*r}", f"xe{r}"); note_read("XE")
    ops += [lambda r=r: rdx(r) for r in range(16)]
    ops += [lambda j=j: DS(f"ds_read_b128 {v(64+4*j,4)}, {v(vTAB3)} offset:{16*j}", f"r3{j}") for j in range(4)]
    ops += [lambda j=j: DS(f"ds_read_b128 {v(80+4*j,4)}, {v(vTAB3)} offset:{512+16*j}", f"m3{j}") for j in range(4)]
    ops += [lambda: E.wait(vm="dsk"), f"v_lshlrev_b32 {v(vDSK)}, 16, {v(vDSK)}", lambda: E.wait(lg="m33")]
    for r in range(0, 16, 2):
        t0, t1, p = 96, 97, 98
        rnd = [f"v_cvt_pk_bf16_f32 {v(p)}, {v(t0)}, {v(t1)}", f"v_lshlrev_b32 {v(t0)}, 16, {v(p)}", f"v_and_b32 {v(t1)}, 0xffff0000, {v(p)}"]
        ops += [f"v_sub_f32 {v(t0)}, {v(BASE+r)}, {v(80+r)}", f"v_sub_f32 {v(t1)}, {v(BASE+r+1)}, {v(81+r)}"] + rnd
        ops += [f"v_mul_f32 {v(t0)}, {v(t0)}, {v(64+r)}", f"v_mul_f32 {v(t1)}, {v(t1)}, {v(65+r)}"] + rnd
        ops += [f"v_mul_f32 {v(t0)}, {v(t0)}, {v(vDSK)}", f"v_mul_f32 {v(t1)}, {v(t1)}, {v(vDSK)}"] + rnd
        ops += [f"v_add_f32 {v(BASE+r)}, {v(BASE+r)}, {v(t0)}", f"v_add_f32 {v(BASE+r+1)}, {v(BASE+r+1)}, {v(t1)}"]
    return ops + [("mark", "base")]

def segment(lo, hi, D, lim, pre_bar):
    for m in range(lo - D, hi):
        c0 = E.count + E.nops
        if m >= lo:
            s = slots[m]
            for n in s.needs: need_mark(n)
            tags = list(s.tags)
            if m % 2 == 0 and m + 1 < hi and D >= 4: tags += slots[m+1].tags
            E.wait(lg=tags)
            I(s.mfma(s.bufs)); c0 = E.count + E.nops
            if first_slot[s.chunk] == m and m < P3: lstamp(s.chunk)
            for fn in events.get(m, []): fn()
        r = m + D
        if r < hi:
            if pre_bar and first_slot[slots[r].chunk] == r: pre_bar(slots[r].chunk)
            if first_slot[slots[r].chunk] == r and slots[r].chunk in gchk: chk_test(gchk[slots[r].chunk], PHV[slots[r].chunk], FR["r"], FR["t"], 16, 0x100 if r < P3 else 0)
            emit_reads(r)
        if m >= lo:
            n = 0
            while qC and (n < 3 or isinstance(qC[0], tuple)): run_op(qC.pop(0)); n += 1
            while qB and (E.count + E.nops - c0 < lim - (m & 1) or isinstance(qB[0], tuple)): run_op(qB.pop(0))
            if m in post: post[m]()
burst(0); runall([o for o in cvt_ops(0) if isinstance(o, str)]); marks.update(f"cen{k}" for k in range(4)); burst(1); qC.extend(cvt_ops(1))
segment(0, P3, OPT["D"], 6, None)
lstamp("T"); csig("T")
need_mark("epi1")
qB.extend(glu_epi(2)); need_mark("epi2")
qB.extend(st_addr2()); need_mark("sta")
fbs.update(l=P3BUFS, k=0); assert len(P3BUFS) >= 2 * (OPT["D3"] + 1)
def stage(i):
    it = items[f"C{i}"]
    for s_ in range(8):
        w = set_win("c1", vC1, it.base, it.size)
        DS(f"ds_read_b128 {v(STG[(i, s_)],4)}, {v(vC1[s_ & 3])} offset:{it.base - w + (s_ >> 2) * 8192}", "stg"); note_read(it.name)
def p3bar(ch):
    cbar("b" + ch, vm=["gst"] if ch == OPT_GF else [], lg=["stg"] if ch in ("K4", "H5") else []); lstamp(ch)
p3bar("K0")
for i in range(4): stage(i)
p3bar("K4")
qB.extend(base_ops()); need_mark("base"); stage(4)
segment(P3, M, OPT["D3"], 8, p3bar)
need_mark("base")
assert not qC and not qB
lstamp("last")
for r in range(16):
    I(f"v_add_f32 {v(BASE+r)}, {v(BASE+r)}, {v(ACC3+r)}")
    if r % 2 == 0: I(f"s_mov_b32 {sT0}, {(r>>1)*4096}")
    VM(f"buffer_store_dword {v(BASE+r)}, {v(vOUT)}, {SOUT}, {sT0} offen offset:{(r&1)*2048}", "out")
dump_stamps("C")
I("s_endpgm")

E = EH
E.label("L_helper")
vSo = [2, 3]; vGo = [4, 5, 6]; vCo = [8, 9, 10, 11]; vWo = [12, 13, 14, 15]; vHo = 16; vXEo = [17, 18]
vFLS, vFLP, vPOLL, vFLX = 19, 20, 21, 7
vLR, vCR, vL16, vL128, vL256, vPQ = 22, 24, 26, 28, 30, 32
vE, vE2, vP = 34, 36, 38
vEQA, vEST, vEF, vEX, vZA, vHSW, vHSR, vHSTo, vDA, vTAB = 40, 41, 42, 44, 46, 47, 48, 49, 50, 54
TR, TI, RT, TMP = 96, 112, 128, 144
vF16, vF256 = 56, 58
vQR, vQT, vQV, vQW = 160, 161, 162, 163
vDB = 164
live = [items[f"X{i}"] for i in range(4, 8)]
known = {id(EC): 0, id(EH): 0}
def hplace(name):
    it = items[name]
    for o in list(live):
        if o.base < it.base + it.size and it.base < o.base + o.size:
            assert known[id(o.reader)] >= o.last_read, ("WAR", name, o.name)
            live.remove(o)
    live.append(it); return it
def adv11(s): I(f"s_add_u32 {s}, {s}, 1"); I(f"s_cmp_eq_u32 {s}, 11"); I(f"s_cselect_b32 {s}, 0, {s}")
cur_m0 = [None]
SOFF = {"G": "s16", "H": "s17", "W": "s18", "HG": "s19"}
def item_ops(name):
    k = name.rstrip("0123456789"); i = int(name[len(k):] or 0)
    so = SOFF.get(k)
    srd_, sm, voffs, pol = {"S": (SS, sM2, vSo, ""), "G": (SG, sM6, vGo, ""), "C": (SC, sM4, vCo, ""), "H": (SWS, sM4, [vHo]*4, " sc1"),
                            "W": (SWD, sM4, vWo, ""), "HG": (SWS, sM4, [vHo]*4, " sc1"), "XE": (SX, sM2, vXEo, "")}[k]
    prep = {"G": lambda: I(f"s_mul_i32 {so}, {sK[i]}, 1376"), "H": lambda: I(f"s_lshl_b32 {so}, {sK[i]}, 6"),
            "W": lambda: (I(f"s_lshl_b32 {so}, {sQW}, 17"), adv11(sQW)),
            "HG": lambda: (I(f"s_lshl_b32 {so}, {sQHG}, 13"), I(f"s_add_u32 {so}, {so}, 65536"), adv11(sQHG))}.get(k, lambda: None)
    if so is None: so = "0" if k == "XE" else sK[i]
    ops = []
    for half in range(2 if k == "G" else 1):
        for q in range(len(voffs)):
            def op(half=half, q=q):
                if (half, q) == (0, 0): hplace(name)
                m0 = (sm, items[name].base + 3072 * half)
                if cur_m0[0] != m0: I(f"s_add_u32 m0, {sm}, {m0[1]}"); cur_m0[0] = m0
                if (half, q) == (0, 0): prep()
                if (half, q) == (1, 0): I(f"s_add_u32 {so}, {so}, {16*2752}")
                VM(f"buffer_load_dwordx4 {v(voffs[q])}, {srd_}, {so} offen" + (f" offset:{q*1024}" if q else "") + f"{pol} lds", name)
            ops.append(op)
    last = ops[-1]
    ops[-1] = lambda: (last(), done_issue.__setitem__(name, True))
    return ops
done_issue = {}
def issue(name, between=lambda: None):
    for op in item_ops(name): op(); between()
def issue_mix(miss, *hits):
    mo = item_ops(miss); ho = [op for h in hits for op in item_ops(h)]
    for k, op in enumerate(mo):
        op()
        for h in ho[k * len(ho) // len(mo):(k + 1) * len(ho) // len(mo)]: h()
def flag_send(so): VM(f"buffer_store_dword v61, {v(vFLS)}, {SWS}, {so} offen sc1", "flag")
def poll_issue(so, tag): VM(f"buffer_load_dword {v(vPOLL)}, {v(vFLP)}, {SWS}, {so} offen sc1", tag)
def poll_check(so, tag, inc):
    E.wait(vm=tag)
    I(f"v_cmp_ne_u32 vcc, {v(vFLX)}, {v(vPOLL)}"); I(f"s_cbranch_vccnz L_slow_{tag}"); E.label(f"L_back_{tag}")
    slow.extend([f"L_slow_{tag}:", f"  s_sleep {OPT['slp']}", f"  buffer_load_dword {v(vPOLL)}, {v(vFLP)}, {SWS}, {so} offen sc1", "  s_waitcnt vmcnt(0)",
                 f"  v_cmp_ne_u32 vcc, {v(vFLX)}, {v(vPOLL)}"] + spin_guard(f"L_back_{tag}", inc) + [f"  s_cbranch_vccnz L_slow_{tag}", f"  s_branch L_back_{tag}"])
I(f"s_and_b32 {sT1}, {sW_}, 1"); I(f"s_lshl1_add_u32 {sT0}, {sG_}, {sT1}"); I(f"s_lshl_b32 {sT0}, {sT0}, 4")
I(f"v_add_lshl_u32 v84, v81, {sT0}, 10")
I(f"v_add_u32 {v(vSo[0])}, v84, v83"); I(f"v_add_u32 {v(vSo[1])}, v84, v85"); I(f"v_add_u32 {v(vSo[1])}, 7168, {v(vSo[1])}")
I(f"s_lshl_b32 {sM2}, {sW_}, 11")
E.wait_all(lg=True)
I(f"s_cmp_ge_u32 {sW_}, 2"); srd_sel(SS, 22, 24, 524288); srd_sel(SG, 36, 38, 1409024); srd_sel(SC, 26, 28, 524288)
issue("S0"); issue("S1")
if OPT["prio"] == 2: I("s_setprio 1")
I(f"s_lshl2_add_u32 {sT0}, {sG_}, {sW_}"); I(f"s_lshl_b32 {sT0}, {sT0}, 3"); I(f"v_add_lshl_u32 v87, v82, {sT0}, 1")
VM("global_load_ushort v70, v87, s[30:31]", "par"); VM("global_load_ushort v71, v87, s[18:19]", "par"); VM("global_load_ushort v72, v87, s[20:21]", "par")
srd(SDBG, 44, 256)
I(f"s_or_b32 {sT0}, s2, {sW_}"); I("s_cbranch_scc1 L_notag")
E.begin_cond()
I("s_or_b32 s13, s14, 1"); I("v_mov_b32 v93, s13"); I("v_mov_b32 v94, 0"); I("s_mov_b64 exec, 1")
VM(f"buffer_store_dword v93, v94, {SDBG}, 0 offen sc1"); I("s_mov_b64 exec, -1")
E.end_cond(); E.label("L_notag")
for i in range(2, 8): ktab(i)
srd(SX, 16, 2097152); srd(SWD, 40, 1409024); srd(SWS, 46, WS_SIZE)
def setup1():
    I(f"s_mov_b32 {sSPIN}, 0"); I("s_mov_b32 s15, 0"); I(f"s_mul_i32 {sM6}, {sW_}, 6144")
    I(f"s_mul_i32 {sQW}, {sGL}, 11"); I(f"s_lshr_b32 {sQW}, {sQW}, 3"); I(f"s_mul_i32 {sT2}, {sCL}, 3"); I(f"s_add_u32 {sQW}, {sQW}, {sT2}")
    I(f"s_sub_u32 {sT2}, {sQW}, 11"); I(f"s_cmp_ge_u32 {sQW}, 11"); I(f"s_cselect_b32 {sQW}, {sT2}, {sQW}"); I(f"s_mov_b32 {sQHG}, {sQW}")
    I(f"s_mul_i32 {sT0}, {sT1}, {32*2752}"); I(f"s_mul_i32 {sT2}, {sG_}, 192"); I(f"s_add_u32 {sT0}, {sT0}, {sT2}")
    I(f"s_mul_i32 {sT2}, {sG_}, 3"); I(f"s_mov_b32 {sT3}, 2752"); I(f"v_mov_b32 v90, {OOB}")
    for i in range(3):
        I(f"v_add_u32 v88, {64*i}, {vLANE}"); I("v_mul_u32_u24 v86, 43691, v88"); I("v_lshrrev_b32 v86, 19, v86")
        I("v_mul_u32_u24 v87, 12, v86"); I("v_sub_u32 v87, v88, v87")
        I(f"v_mul_lo_u32 v86, v86, {sT3}"); I("v_lshl_add_u32 v86, v87, 4, v86"); I(f"v_add_u32 v86, {sT0}, v86")
        I("v_lshrrev_b32 v87, 2, v87"); I(f"v_add_u32 v87, {sT2}, v87"); I("v_cmp_gt_u32 vcc, 43, v87")
        if i: I(f"v_subrev_u32 v86, {1024*i}, v86")
        I(f"v_cndmask_b32 {v(vGo[i])}, v90, v86, vcc")
    I(f"s_lshl2_add_u32 {sT0}, {sGL}, {sT1}"); I(f"s_lshl_b32 {sT2}, {sG_}, 1"); I(f"s_sub_u32 {sT0}, {sT0}, {sT2}"); I(f"s_lshl_b32 {sT0}, {sT0}, 14")
    I(f"v_add_u32 {v(vCo[0])}, {sT0}, {v(vSo[0])}"); I(f"v_add_u32 {v(vCo[1])}, {sT0}, {v(vSo[1])}")
    I(f"v_add_u32 {v(vCo[2])}, {2*7168}, {v(vCo[0])}"); I(f"v_add_u32 {v(vCo[3])}, {2*7168}, {v(vCo[1])}")
    I("v_lshlrev_b32 v86, 4, v82"); I("v_lshl_add_u32 v86, v81, 10, v86"); I(f"v_and_b32 v87, 16, {vLANE}"); I("v_lshlrev_b32 v87, 2, v87"); I("v_xor_b32 v87, v86, v87")
    I(f"s_lshl_b32 {sT0}, {sW_}, 15"); I(f"s_lshl_b32 {sT3}, {sGL}, 7"); I(f"s_add_u32 {sT0}, {sT0}, {sT3}"); I(f"v_add_u32 {v(vWo[0])}, {sT0}, v87")
    for q in range(1, 4): I(f"v_add_u32 {v(vWo[q])}, {7168*q}, {v(vWo[0])}")
    I(f"s_lshl1_add_u32 s13, {sC_}, {sGH}"); I(f"s_lshl2_add_u32 {sT0}, s13, {sW_}"); I(f"s_lshl_b32 {sT0}, {sT0}, 14"); I(f"s_add_u32 {sT0}, {sT0}, {sT3}")
    I(f"v_add_u32 {v(vXEo[0])}, {sT0}, v86"); I(f"v_add_u32 {v(vXEo[1])}, 7168, {v(vXEo[0])}")
    I(f"s_lshr_b32 {sT2}, {sW_}, 1"); I(f"s_lshl1_add_u32 {sT0}, s13, {sT2}"); I(f"s_mul_i32 {sT0}, {sT0}, {152*1024}"); I(f"s_lshl_b32 {sT3}, {sT1}, 12"); I(f"s_add_u32 {sT0}, {sT0}, {sT3}")
    I(f"v_lshl_add_u32 {v(vHo)}, {vLANE}, 4, {sT0}")
    I(f"s_cmp_eq_u32 {sW_}, 0"); I(f"s_cselect_b32 {sT2}, 16, 0"); I(f"v_cmp_gt_u32 vcc, {sT2}, {vLANE}")
    I(f"s_lshl_b32 {sT0}, {sC_}, 11"); I(f"s_lshl2_add_u32 {sT3}, {sG_}, {sT0}"); I(f"v_lshl_add_u32 v86, {vLANE}, 7, {sT3}")
    I(f"v_cndmask_b32 {v(vFLS)}, v90, v86, vcc")
    I(f"s_lshl_b32 {sT3}, {sG_}, 7"); I(f"s_add_u32 {sT3}, {sT3}, {sT0}"); I(f"v_lshl_add_u32 v86, {vLANE}, 2, {sT3}")
    I(f"v_cndmask_b32 {v(vFLP)}, v90, v86, vcc"); I(f"v_cndmask_b32 {v(vFLX)}, 0, -1, vcc")
    I(f"s_mov_b32 s20, {WS_FH}"); I(f"s_mov_b32 s21, {WS_FG}")

def setup2():
    o = []
    A = o.append
    A(f"s_lshl_b32 {sT0}, {sW_}, 10"); A(f"s_add_u32 {sT0}, {sT0}, {EQ}"); A(f"v_lshl_add_u32 {v(vEQA)}, {vLANE}, 3, {sT0}")
    A("v_mov_b32 v88, 0"); A("v_mov_b32 v89, 0"); A(lambda: DS(f"ds_write_b64 {v(vEQA)}, v[88:89]", "eqz"))
    A(f"v_lshl_add_u32 {v(vZA)}, v82, 3, {sT0}")
    A(f"s_lshl_b32 {sT0}, {sW_}, 9"); A(f"v_lshlrev_b32 v86, 11, v81"); A("v_lshl_add_u32 v86, v82, 6, v86"); A("v_lshrrev_b32 v87, 1, v82")
    A("v_lshl_add_u32 v86, v87, 4, v86"); A(f"v_add_u32 {v(vDA)}, {sT0}, v86")
    for j in range(1, 4): A(f"v_xor_b32 {v(vDA+j)}, {16*j}, {v(vDA)}")
    for j in range(4): A(f"v_add_u32 {v(vDB+j)}, {DUMPS[0]}, {v(vDA+j)}")
    A(f"v_lshlrev_b32 {v(vTAB)}, 6, v81"); A(f"v_add_u32 {v(vTAB)}, {RTAB}, {v(vTAB)}")
    A(f"s_lshl_b32 {sT0}, {sG_}, 13"); A(f"s_lshl_b32 {sT2}, {sW_}, 7"); A(f"s_add_u32 {sT0}, {sT0}, {sT2}"); A(f"s_add_u32 {sT0}, {sT0}, {WS_EB}")
    A(f"v_lshl_add_u32 v86, v82, 4, {sT0}")
    A(f"s_lshl_b32 {sT2}, {sC_}, 9"); A(f"v_add_u32 {v(vEST)}, {sT2}, v86"); A(lambda: (I("v_cmp_eq_u32 vcc, 7, v81"), I(f"v_cndmask_b32 {v(vEST)}, v90, {v(vEST)}, vcc")))
    A(f"s_sub_u32 {sT2}, {sC_}, 16"); A(f"v_lshl_add_u32 v87, v81, 1, {sT2}")
    A(f"v_lshl_add_u32 {v(vEF)}, v87, 9, v86"); A(f"v_add_u32 {v(vEF+1)}, 512, {v(vEF)}")
    A(lambda: (I("v_cmp_le_i32 vcc, 0, v87"), I(f"v_cndmask_b32 {v(vEF)}, v90, {v(vEF)}, vcc"), I(f"v_cndmask_b32 {v(vEX)}, 0, -1, vcc")))
    A(lambda: (I("v_cmp_le_i32 vcc, -1, v87"), I(f"v_cndmask_b32 {v(vEF+1)}, v90, {v(vEF+1)}, vcc"), I(f"v_cndmask_b32 {v(vEX+1)}, 0, -1, vcc")))
    A(f"s_mul_i32 {sT0}, {sW_}, 2608"); A(f"s_add_u32 {sT0}, {sT0}, {HS}")
    A("v_mul_u32_u24 v86, 336, v82"); A("v_lshl_add_u32 v86, v81, 5, v86"); A(f"v_add_u32 {v(vHSW)}, {sT0}, v86")
    A(f"v_bfe_u32 v86, {vLANE}, 2, 2"); A("v_mul_u32_u24 v86, 336, v86"); A(f"v_and_b32 v87, 32, {vLANE}"); A("v_lshl_add_u32 v86, v87, 1, v86")
    A(f"v_and_b32 v87, 1, {vLANE}"); A("v_lshl_add_u32 v86, v87, 5, v86"); A(f"v_and_b32 v87, 16, {vLANE}"); A("v_add_u32 v86, v86, v87")
    A(f"v_and_b32 v87, 2, {vLANE}"); A("v_lshl_add_u32 v86, v87, 2, v86"); A(f"v_add_u32 {v(vHSR)}, {sT0}, v86")
    A(f"s_mul_i32 {sT0}, {sC_}, {4*152}"); A(f"s_lshr_b32 {sT2}, {sG_}, 1"); A(f"s_lshl3_add_u32 {sT0}, {sT2}, {sT0}"); A(f"s_and_b32 {sT2}, {sG_}, 1")
    A(f"s_lshl1_add_u32 {sT0}, {sT2}, {sT0}"); A(f"s_lshl_b32 {sT0}, {sT0}, 10"); A(f"s_lshl_b32 {sT2}, {sW_}, 9"); A(f"s_add_u32 {sT0}, {sT0}, {sT2}")
    A(f"v_lshrrev_b32 v86, 5, {vLANE}"); A(f"v_mul_u32_u24 v86, {152*1024}, v86"); A(f"v_and_b32 v87, 31, {vLANE}"); A("v_lshl_add_u32 v86, v87, 4, v86"); A(f"v_add_u32 {v(vHSTo)}, {sT0}, v86")
    LOG2E = "0x3fb8aa3b"
    A(lambda: E.wait(vm="par"))
    o += ["v_lshlrev_b32 v70, 16, v70", "v_lshlrev_b32 v71, 16, v71", "v_lshlrev_b32 v72, 16, v72",
          f"v_mul_f32 v70, {LOG2E}, v70", "v_exp_f32 v70, v70", "v_mul_f32 v74, v71, v71"] + bf16r_ops(70, 70)
    o += ["v_mul_f32 v75, v70, v71", "v_mul_f32 v76, v70, v72", f"v_mul_f32 v75, {LOG2E}, v75", "v_exp_f32 v75, v75",
          "v_mul_f32 v76, 0.15915494, v76", "v_rndne_f32 v77, v76", "v_sub_f32 v76, v76, v77", "v_cos_f32 v77, v76", "v_sin_f32 v78, v76",
          "v_fmac_f32 v74, v72, v72", f"v_mul_f32 {v(vLR)}, v75, v77", "v_mul_f32 v78, v75, v78", "v_rcp_f32 v74, v74",
          f"v_add_f32 v77, -1.0, {v(vLR)}", "v_add_f32 v74, v74, v74",
          f"v_mul_f32 {v(vCR)}, v77, v71", f"v_fmac_f32 {v(vCR)}, v78, v72", f"v_mul_f32 {v(vCR)}, {v(vCR)}, v74",
          f"v_mul_f32 {v(vCR+1)}, v77, v72", f"v_fma_f32 {v(vCR+1)}, -v78, v71, {v(vCR+1)}", f"v_mul_f32 {v(vCR+1)}, {v(vCR+1)}, v74",
          f"v_sub_f32 {v(vLR+1)}, 0, v78"]
    o += csq_ops(70, vLR, 78) + csq_ops(72, 70, 78) + csq_ops(70, 72, 78) + csq_ops(vL16, 70, 78)
    o += csq_ops(70, vL16, 78) + csq_ops(72, 70, 78) + csq_ops(vL128, 72, 78) + csq_ops(vL256, vL128, 78)
    o += [f"v_mov_b32 {v(vPQ)}, {v(vCR)}", f"v_mov_b32 {v(vPQ+1)}, {v(vCR+1)}"]
    for bit, L in ((8, vL16), (16, 70), (32, 72)):
        o += [f"v_and_b32 v74, {bit}, {vLANE}", lambda L=L: (I("v_cmp_ne_u32 vcc, 0, v74"), I(f"v_cndmask_b32 v76, 1.0, {v(L)}, vcc"), I(f"v_cndmask_b32 v77, 0, {v(L+1)}, vcc"))]
        o += cmul_ops(vPQ, vPQ, 76, 78)
    def factor(F, Ls):
        r = []
        for n, (bit, L) in enumerate(zip((8, 16, 32), Ls)):
            d = F if n == 0 else 76
            r += [f"v_and_b32 v74, {bit}, {vLANE}", lambda L=L, d=d: (I("v_cmp_eq_u32 vcc, 0, v74"), I(f"v_cndmask_b32 {v(d)}, 1.0, {v(L)}, vcc"), I(f"v_cndmask_b32 {v(d+1)}, 0, {v(L+1)}, vcc"))]
            if n: r += cmul_ops(F, F, 76, 78)
        return r
    o += factor(vF16, (vL16, 70, 72))
    o += csq_ops(70, vL256, 78) + csq_ops(72, 70, 78) + factor(vF256, (vL256, 70, 72))
    return o
def allsum(a_, b_, t):
    o = [f"v_add_f32_dpp {v(t)}, {v(a_)}, {v(a_)} row_ror:8 row_mask:0xf bank_mask:0xf", f"v_add_f32_dpp {v(t+1)}, {v(b_)}, {v(b_)} row_ror:8 row_mask:0xf bank_mask:0xf",
         f"v_mov_b32 {v(a_)}, {v(t)}", f"v_mov_b32 {v(b_)}, {v(t+1)}",
         f"v_permlane16_swap_b32 {v(a_)}, {v(t)}", f"v_permlane16_swap_b32 {v(b_)}, {v(t+1)}",
         f"v_add_f32 {v(a_)}, {v(a_)}, {v(t)}", f"v_add_f32 {v(b_)}, {v(b_)}, {v(t+1)}",
         f"v_mov_b32 {v(t)}, {v(a_)}", f"v_mov_b32 {v(t+1)}, {v(b_)}",
         f"v_permlane32_swap_b32 {v(a_)}, {v(t)}", f"v_permlane32_swap_b32 {v(b_)}, {v(t+1)}",
         f"v_add_f32 {v(a_)}, {v(a_)}, {v(t)}", f"v_add_f32 {v(b_)}, {v(b_)}, {v(t+1)}"]
    return o
def cmul4(d, x, y):
    return [f"v_mul_f32 {v(d[0])}, {v(x[0])}, {v(y)}", f"v_mul_f32 {v(d[1])}, {v(x[0])}, {v(y+1)}",
            f"v_fma_f32 {v(d[0])}, -{v(x[1])}, {v(y+1)}, {v(d[0])}", f"v_fmac_f32 {v(d[1])}, {v(x[1])}, {v(y)}"]
def ssm1():
    o = []
    def rdd(j, comp): DS(f"ds_read_b128 {v((TI if comp else TR) + 4*j, 4)}, {v((vDA if comp else vDB)+j)}", f"dr{j}"); note_read(f"DUMP{comp}")
    for j in range(4):
        o += [lambda j=j: DS(f"ds_read_b128 {v(RT + 4*j, 4)}, {v(vTAB)} offset:{16*j}", f"dr{j}"), lambda j=j: rdd(j, 0), lambda j=j: rdd(j, 1)]
    cur, nx = (vE, vE + 1), (vE2, vE2 + 1)
    for r in range(16):
        if r % 4 == 0: o.append(lambda j=r >> 2: E.wait(lg=f"dr{j}"))
        o += [f"v_mul_f32 {v(TR+r)}, {v(TR+r)}, {v(RT+r)}", f"v_mul_f32_e64 {v(TI+r)}, -{v(TI+r)}, {v(RT+r)}"]
        if r == 0: src = (TR, TI)
        else:
            o += cfma_ops(nx, vLR, src, TR + r, TI + r); src = nx; cur, nx = nx, cur
    assert src == (vE2, vE2 + 1)
    o += cmul4((60, 62), src, vF16) + allsum(60, 62, 64)
    o.append(lambda: (VM(f"buffer_store_dwordx4 v[60:63], {v(vEST)}, {SWS}, 0 offen sc1", "est"), lstamp("epub")))
    return o
def window():
    o = [lambda: DS(f"ds_write_b64 {v(vEQA)}, {v(vE2,2)} offset:{7*64}", "eqw")]
    o += [lambda i=i: DS(f"ds_read_b64 {v(TMP+2*i,2)}, {v(vEQA)} offset:{64*i}", "eq") for i in range(7)]
    for r in range(16):
        o += [f"v_mul_f32 v72, {v(vCR+1)}, {v(TI+r)}", f"v_mul_f32 {v(TI+r)}, {v(vCR)}, {v(TI+r)}",
              f"v_fmac_f32 {v(TI+r)}, {v(vCR+1)}, {v(TR+r)}", f"v_fma_f32 {v(TR+r)}, {v(vCR)}, {v(TR+r)}, -v72"]
    o.append(lambda: E.wait(lg="eq"))
    src = (TMP, TMP + 1); pp = [(vE2, vE2 + 1), (vE, vE + 1)]
    for i in range(1, 7):
        d = pp[i & 1]; o += cfma_ops(d, vL16, src, TMP + 2*i, TMP + 2*i + 1); src = d
    return o + cmul4((vP, vP + 1), src, vCR)
def efetch_issue():
    VM(f"buffer_load_dwordx4 v[64:67], {v(vEF)}, {SWS}, 0 offen sc1", "ef"); VM(f"buffer_load_dwordx4 v[68:71], {v(vEF+1)}, {SWS}, 0 offen sc1", "ef")
def ssm3():
    chk = [f"v_xor_b32 v72, v65, {v(vEX)}", f"v_xor_b32 v73, v67, {v(vEX)}", f"v_xor_b32 v74, v69, {v(vEX+1)}", "v_or3_b32 v72, v72, v73, v74",
           f"v_xor_b32 v73, v71, {v(vEX+1)}", "v_or_b32 v72, v72, v73", "v_cmp_ne_u32 vcc, 0, v72"]
    def check():
        E.wait(vm="ef")
        for c in chk: I(c)
        I("s_cbranch_vccnz L_slow_e"); E.label("L_back_e"); lstamp("eok")
        slow.extend(["L_slow_e:", f"  buffer_load_dwordx4 v[64:67], {v(vEF)}, {SWS}, 0 offen sc1", f"  buffer_load_dwordx4 v[68:71], {v(vEF+1)}, {SWS}, 0 offen sc1",
                     "  s_waitcnt vmcnt(0)"] + ["  " + c for c in chk] + spin_guard("L_back_e", 0x100) + ["  s_cbranch_vccnz L_slow_e", "  s_branch L_back_e"])
    o = [check] + cfma_ops((vE, vE + 1), vL128, (64, 66), 68, 70)
    o += cmul4((vE2, vE2 + 1), (vE, vE + 1), vF256) + allsum(vE2, vE2 + 1, 72)
    src = (vE2, vE2 + 1)
    o += cfma_ops((vE, vE + 1), vPQ, src, vP, vP + 1)
    src = (vE, vE + 1)
    for r in range(16):
        d = (TR + r, TI + r); o += cfma_ops(d, vLR, src, d[0], d[1]); src = d
        if r & 1: o += [f"v_cvt_pk_bf16_f32 {v(TMP + (r>>1))}, {v(TR+r-1)}, {v(TR+r)}", f"v_cvt_pk_bf16_f32 {v(TMP + 8 + (r>>1))}, {v(TI+r-1)}, {v(TI+r)}"]
    for comp in range(2):
        o += [lambda j=j, comp=comp: DS(f"ds_write_b128 {v(vHSW)}, {v(TMP + 8*comp + 4*j, 4)} offset:{16*j}", "hsw") for j in range(2)]
        for i in range(2):
            for ph in range(2):
                def rd(i=i, ph=ph, comp=comp):
                    DS(f"ds_read_b64_tr_b16 {v(RT + 8*comp + 4*i + 2*ph, 2)}, {v(vHSR)} offset:{4*ph*336 + 128*i}", f"hr{comp}{i}"); note_read("HS")
                o.append(rd)
    for comp in range(2):
        for i in range(2):
            def st(i=i, comp=comp):
                I(f"s_mov_b32 {sT0}, {2*i*152*1024 + comp*4096}"); E.wait(lg=f"hr{comp}{i}")
                VM(f"buffer_store_dwordx4 {v(RT + 8*comp + 4*i, 4)}, {v(vHSTo)}, {SWS}, {sT0} offen sc1", "hst")
            o.append(st)
    o.append(lambda: lstamp("hst"))
    return o
work = []
def pop_work(n):
    while n > 0 and work: runall([work.pop(0)]); n -= 1
def between(n=8): return lambda: pop_work(n)
live.append(items["HS"])
I(f"v_and_b32 {v(vQR)}, 3, {vLANE}"); I(f"v_lshlrev_b32 {v(vQR)}, 2, {v(vQR)}"); I(f"v_add_u32 {v(vQR)}, {PRG}, {v(vQR)}"); I(f"v_mov_b32 {v(vQV)}, 0")
for off in (0, 16, 32): DS(f"ds_write_b32 {v(vQR)}, {v(vQV)} offset:{off}", "prz")
I(f"s_lshl_b32 {sT0}, {sW_}, 2"); I(f"s_add_u32 {sT0}, {sT0}, {PRG}"); I(f"v_mov_b32 {v(vQW)}, {sT0}")
E.wait(lg="prz"); issue("S2"); issue("S3"); E.barrier(); lstamp("b0")
def hchk(word, st):
    off = {"PC": 0, "PD": 32}[word]; val = PCV[st] if word == "PC" else st
    chk_spin(val, vQR, vQT, off)
    em, lg = signals[(word, val)]; known[id(em)] = max(known[id(em)], lg)
published = [0]
def pub(ch):
    assert PHV[ch] > published[0]
    E.wait(vm=[n for c in CHUNKS[published[0]:PHV[ch]] for n in chunk_items(c)]); signal("PH", PHV[ch], vQW, vQV, 16); published[0] = PHV[ch]
def auto_pub(lead):
    best = None
    for c in CHUNKS[published[0]:]:
        if all(n in E.vm and done_issue.get(n) and len(E.vm) - E.last(E.vm, n) >= lead for n in chunk_items(c)): best = c
        else: break
    if best: pub(best)
setup1()
pub("S2")
if OPT["ge"] >= 1: issue("G0")
if OPT["ge"] >= 2: issue("G1")
I("v_mov_b32 v91, 0"); VM(f"buffer_load_dword {v(vPOLL)}, v91, {SDBG}, 0 offen sc1", "tag")
w2 = setup2(); runall(w2[:OPT["w2a"]])
hchk("PC", "X"); lstamp("xd")
for n in ["S4", "S5", "S6", "S7"] + ["G0", "G1"][OPT["ge"]:]: issue(n)
runall(w2[OPT["w2a"]:OPT["w2b"]])
pub("S6")
issue("G2"); hchk("PC", "S1"); issue("G3")
runall(w2[OPT["w2b"]:])
tag_check("H", vPOLL, 88)
runall([f"v_mov_b32 v61, {sNON}", f"v_mov_b32 v63, {sNON}", f"v_and_b32 {v(vEX)}, {sNON}, {v(vEX)}", f"v_and_b32 {v(vEX+1)}, {sNON}, {v(vEX+1)}", f"v_and_b32 {v(vFLX)}, {sNON}, {v(vFLX)}"])
hchk("PC", "S5"); hplace("DUMP0"); hplace("DUMP1"); pub("G1")
I(f"s_setprio {OPT['pb']}")
hchk("PC", "dump"); lstamp("bD")
def pass2():
    t0 = OPT["bd"] + 2
    s1, wn, s3 = ssm1(), window(), ssm3()
    s1.insert(30, lambda: (E.wait(lg="dr3"), signal("PD", 1, vQW, vQV, 32)))
    ins = []
    def spread(name, ta, tb, pre=None):
        holder = {}
        n = 6 if name[0] == "G" else 4
        for k in range(n):
            def f(k=k):
                if k == 0:
                    if pre: hchk(*pre)
                    holder["ops"] = item_ops(name)
                holder["ops"][k]()
            ins.append((ta + (tb - ta) * k / n, f))
    ins.append((24, lambda: pub("G3")))
    spread("G4", 27, 44, ("PC", "G0")); spread("G6", 44, 61, ("PD", 1)); spread("G5", 61, 78, ("PC", "G1")); spread("G7", 78, 95, ("PC", "G2")); spread("C0", 99, 111)
    ins.append((66, lambda: pub("G4"))); ins.append((96, lambda: pub("G6"))); ins.append((116, lambda: pub("G7")))
    ins.sort(key=lambda x: x[0])
    t = [float(t0)]
    def cyc(): return E.nvec * OPT["vc"] / 10.0 + (E.count + E.nops - E.nvec) * 4.0
    def adv(c0): t[0] += (cyc() - c0) / 33.0
    def run(ops):
        for op in ops:
            while ins and ins[0][0] <= t[0]:
                c0 = cyc(); ins.pop(0)[1](); adv(c0)
            c0 = cyc(); runall([op]); adv(c0)
    def idle_until(tt):
        while ins and ins[0][0] <= tt: t[0] = max(t[0], ins[0][0]); ins.pop(0)[1]()
        t[0] = max(t[0], tt)
    run(s1); tpub = t[0]
    k = 0
    while k < len(wn) and t[0] < tpub + OPT["efd"]: run([wn[k]]); k += 1
    efetch_issue(); lstamp("ef"); tf = t[0]
    run(wn[k:]); idle_until(tf + OPT["ecd"])
    tc = t[0]
    run(s3); ts = t[0]; assert not ins
    hchk("PC", "G4"); issue("C1"); issue("W0")
    E.wait(vm="hst"); signal("PD", 2, vQW, vQV, 32); hchk("PD", 2); flag_send("s20"); lstamp("hflag")
    if OPT.get("log"): print(f"helper est: epub {tpub:.0f} efetch {tf:.0f} check {tc:.0f} stores {ts:.0f}", file=sys.stderr)
pass2()
issue("XE"); hchk("PC", "G5"); issue("C2"); issue("C3")
hchk("PC", "T"); lstamp("gT")
poll_issue("s20", "ph"); issue("C4")
gk = next(k for k, ch in enumerate(p3chunks) if "HG0" in P3PLAN[ch])
for k, ch in enumerate(p3chunks):
    if ch == "K4": poll_check("s20", "ph", 0x10000); lstamp("okh")
    if k == gk: poll_check("s21", "pg", 0x1000000); lstamp("okg")
    E.wait(vm=chunk_items(ch)); E.barrier()
    known[id(EC)] = max(known[id(EC)], EC.barriers[k + 1][1])
    if ch == OPT_GF: flag_send("s21")
    if k == gk - OPT["gp"]: poll_issue("s21", "pg")
    for n in (["C5", "C6", "C7"] if ch == "K0" else P3PLAN[ch]): issue(n)
if OPT.get("log"): print(P3PLAN, file=sys.stderr)
assert len(EH.barriers) == len(EC.barriers)
dump_stamps("H")
E.label("L_end"); I("s_endpgm")

hdr = open("cdna_kernels/" + NAME + ".s.ref").read().split("; Override launch geometry")[0]
out = hdr
if OPT["lst"]: out += "; cstamps: " + " ".join(lnames["C"]) + "\n; hstamps: " + " ".join(lnames["H"]) + f"\n; rt: {OPT['rt']}\n"
out += f"; @launch grid=(256,1,1) block=(512,1,1) lds={LDS_BYTES}\n"
out += f'.amdgcn_target "amdgcn-amd-amdhsa--gfx950"\n.text\n.globl {NAME}_kernel\n.p2align 8\n.type {NAME}_kernel,@function\n'
kc = next(k for k, l in enumerate(EC.lines) if "v_and_b32 v90, 31" in l)
out += E0.text() + "\n".join(EC.lines[:kc]) + "\n  s_branch L_cmain\n" + EH.text() + "L_cmain:\n" + "\n".join(EC.lines[kc:]) + "\n" + "\n".join(slow) + "\n"
out += f"L_pad:\n.fill (37120 - (L_pad - {NAME}_kernel)) / 4, 4, 0xbf810000\n"
out += f""".section .rodata,"a"
.p2align 6
.amdhsa_kernel {NAME}_kernel
  .amdhsa_next_free_vgpr 256
  .amdhsa_next_free_sgpr 102
  .amdhsa_accum_offset 256
  .amdhsa_group_segment_fixed_size 0
  .amdhsa_kernarg_size 128
  .amdhsa_user_sgpr_count 2
  .amdhsa_user_sgpr_kernarg_segment_ptr 1
  .amdhsa_system_sgpr_workgroup_id_x 1
.end_amdhsa_kernel
"""
open(sys.argv[1], "w").write(out)
print(f"compute {EC.count}+{EC.nops} helper {EH.count}+{EH.nops} barriers {len(bar_names)}: {' '.join(bar_names)}", file=sys.stderr)
```

```python
import sys
from emit import Emitter
NAME = "parallel_sum__ssm_conv_s5__glu_gated_bilinear__prompt"
OPT = dict(lst=0, rt=1, D=4, D2=7, D3=6, NU=2, gfd=40, prio=1, bd=15, ipc=85, slp=4, dsp=3, efn=90, rot=8, lead=12, ge=0, gf=1, gg=5, gp=2, mw=0, ar=1, nr=8, bk=12, c34=1, f0=0, nwt=1, a0=12, al=12, nb=60, gs=4, tw=0, osc=0, d64=0, w2a=20, w2b=110, pb=2, l4=72, l5=100, l7=122, c2=109, c3=140, pg2=30, ep=0, vc=85, efd=27, ecd=20)
for a_ in sys.argv[2:]:
    k_, v_ = a_.split("="); OPT[k_] = int(v_)

WS_EB = 0xA00000; WS_FH = 0xA40000; WS_FG = 0xA48000; WS_ST = 0xC00000; WS_SIZE = 0xD00000
U8 = 8192; MISC = 18 * U8
RTAB = MISC; EQ = MISC + 1024; HS = MISC + 5120; XE = MISC + 5120
DUMP = 0
PRG = MISC + 15872
LDS_BYTES = 163840
OOB = 0x80000000
sW_, sC_, sG_, sGL, sGH, sJ0 = "s3", "s4", "s5", "s6", "s7", "s8"
sT0, sT1, sT2, sT3 = "s9", "s10", "s11", "s12"
SX, SS, SG, SC, SWD, SWS, SOUT, SDBG = ("s[48:51]", "s[52:55]", "s[56:59]", "s[60:63]", "s[64:67]", "s[68:71]", "s[72:75]", "s[76:79]")
sK = [f"s{80+i}" for i in range(8)]
sM4, sM2, sM6 = "s88", "s89", "s94"
sQW, sQHG, sSO = "s95", "s96", "s100"
sNON, sC10, sC01, sC11 = "s90", "s91", "s92", "s93"
sSPIN = "s97"; sSP2 = "s99"; sCL = "s101"
vLANE = "v1"
MF = "v_mfma_f32_32x32x16_bf16"
def v(n, k=1): return f"v{n}" if k == 1 else f"v[{n}:{n+k-1}]"

EC, EH, E0 = Emitter(), Emitter(), Emitter()
E = E0
def I(t): return E.I(t)
def VM(t, tag=None): return E.VM(t, tag)
def DS(t, tag=None): return E.DS(t, tag)
slow = []
lnames = {"C": [], "H": []}
def lstamp(name):
    who = "C" if E is EC else "H"
    if OPT["lst"] and name in LSET[who] and len(lnames[who]) < 12:
        k = 24 + 2 * len(lnames[who]); lnames[who].append(name); I(f"{'s_memrealtime' if OPT['rt'] else 's_memtime'} s[{k}:{k+1}]")
LSETS = {0: ([], []),
         1: (["X6", "X7", "S0", "G0", "G4", "T", "H0", "H4", "U0", "U5", "last", "end"], ["b0", "xd", "bD", "epub", "ef", "eok", "hst", "hflag", "okh", "gT", "okg", "end"]),
         2: (["S0", "S2", "S4", "S6", "G0", "G1", "G2", "G3", "G4", "G5", "G6", "T"], ["b0", "xd", "bD", "epub", "ef", "eok", "hst", "hflag", "okh", "gT", "okg", "end"]),
         3: (["T", "K0", "H0", "H2", "H4", "H6", "U0", "U2", "U4", "U7", "U10", "last"], ["b0", "xd", "bD", "epub", "ef", "eok", "hst", "hflag", "okh", "gT", "okg", "end"])}
LSET = dict(zip("CH", LSETS[OPT["lst"]]))
def runall(ops):
    for op in ops:
        if isinstance(op, str): I(op)
        else: op()
def csq_ops(d, x, t):
    return [f"v_mul_f32 {v(t)}, {v(x+1)}, {v(x+1)}", f"v_add_f32 {v(t+1)}, {v(x)}, {v(x)}", f"v_fma_f32 {v(d)}, {v(x)}, {v(x)}, -{v(t)}", f"v_mul_f32 {v(d+1)}, {v(t+1)}, {v(x+1)}"]
def cmul_ops(d, x, y, t):
    return [f"v_mul_f32 {v(t)}, {v(x)}, {v(y)}", f"v_mul_f32 {v(t+1)}, {v(x)}, {v(y+1)}",
            f"v_fma_f32 {v(t)}, -{v(x+1)}, {v(y+1)}, {v(t)}", f"v_fma_f32 {v(d+1)}, {v(x+1)}, {v(y)}, {v(t+1)}", f"v_mov_b32 {v(d)}, {v(t)}"]
def cfma_ops(d, L, x, br, bi):
    return [f"v_fma_f32 {v(d[0])}, {v(L)}, {v(x[0])}, {v(br)}", f"v_fma_f32 {v(d[1])}, {v(L)}, {v(x[1])}, {v(bi)}",
            f"v_fma_f32 {v(d[0])}, -{v(L+1)}, {v(x[1])}, {v(d[0])}", f"v_fma_f32 {v(d[1])}, {v(L+1)}, {v(x[0])}, {v(d[1])}"]
def bf16r_ops(d, s): return [f"v_cvt_pk_bf16_f32 {v(d)}, {v(s)}, {v(s)}", f"v_and_b32 {v(d)}, 0xffff0000, {v(d)}"]
def srd(dst, lo, size):
    n = int(dst[2:dst.index(":")])
    I(f"s_mov_b64 s[{n}:{n+1}], s[{lo}:{lo+1}]"); I(f"s_mov_b32 s{n+2}, {size}"); I(f"s_mov_b32 s{n+3}, 0x20000")
def srd_sel(dst, p0, p1, size):
    n = int(dst[2:dst.index(":")])
    I(f"s_cselect_b64 s[{n}:{n+1}], s[{p1}:{p1+1}], s[{p0}:{p0+1}]"); I(f"s_mov_b32 s{n+2}, {size}"); I(f"s_mov_b32 s{n+3}, 0x20000")
def ktab(i):
    I(f"s_add_u32 {sK[i]}, {sJ0}, {i}"); I(f"s_and_b32 {sK[i]}, {sK[i]}, 7"); I(f"s_lshl_b32 {sK[i]}, {sK[i]}, 7")
def spin_guard(lbl_back, inc):
    return ([f"  s_add_u32 s15, s15, {inc}" if inc >= 0 else f"  s_bitset1_b32 s15, {-inc}"] if OPT["lst"] else []) + [f"  s_add_u32 {sSPIN}, {sSPIN}, 1", f"  s_cmp_gt_u32 {sSPIN}, 0x400000", f"  s_cbranch_scc1 {lbl_back}"]
def tag_check(who, vp, vz):
    E.wait(vm="tag"); I(f"v_readfirstlane_b32 {sNON}, {v(vp)}"); I(f"s_cmp_eq_u32 {sNON}, 0"); I(f"s_cbranch_scc1 L_slow_tag{who}"); E.label(f"L_back_tag{who}")
    slow.extend([f"L_slow_tag{who}:", "  s_sleep 1", f"  v_mov_b32 {v(vz)}, 0", f"  buffer_load_dword {v(vp)}, {v(vz)}, {SDBG}, 0 offen sc1", "  s_waitcnt vmcnt(0)",
                 f"  v_readfirstlane_b32 {sNON}, {v(vp)}"] + spin_guard(f"L_back_tag{who}", 1) +
                [f"  s_cmp_eq_u32 {sNON}, 0", f"  s_cbranch_scc1 L_slow_tag{who}", f"  s_branch L_back_tag{who}"])
signals = {}
def signal(word, val, va, vt, off):
    signals[(word, val)] = (E, E.lg_done)
    I(f"v_mov_b32 {v(vt)}, {val}"); DS(f"ds_write_b32 {v(va)}, {v(vt)} offset:{off}", "sig")
nchk = [0]
def chk_issue(va, vt, off):
    nchk[0] += 1; DS(f"ds_read_b32 {v(vt)}, {v(va)} offset:{off}", f"chk{nchk[0]}"); return f"chk{nchk[0]}"
def chk_test(tag, val, va, vt, off, inc):
    E.wait(lg=tag)
    I(f"v_cmp_gt_u32 vcc, {val}, {v(vt)}"); I(f"s_cbranch_vccnz L_slow_{tag}"); E.label(f"L_back_{tag}")
    slow.extend([f"L_slow_{tag}:", f"  ds_read_b32 {v(vt)}, {v(va)} offset:{off}", "  s_waitcnt lgkmcnt(0)", f"  v_cmp_gt_u32 vcc, {val}, {v(vt)}"]
                + spin_guard(f"L_back_{tag}", inc) + [f"  s_cbranch_vccnz L_slow_{tag}", f"  s_branch L_back_{tag}"])
def chk_spin(val, va, vt, off):
    nchk[0] += 1; lbl = f"L_spin{nchk[0]}"
    E.label(lbl)
    DS(f"ds_read_b32 {v(vt)}, {v(va)} offset:{off}", lbl); I(f"s_sub_u32 {sSP2}, {sSP2}, 1"); I("s_cbranch_scc1 L_end")
    E.wait_all(lg=True)
    I(f"v_cmp_gt_u32 vcc, {val}, {v(vt)}"); I(f"s_cbranch_vccnz {lbl}")
def dump_stamps(who):
    if not OPT["lst"]: return
    E.wait_all(vm=True); lstamp("end"); E.wait_all(lg=True)
    n = len(lnames[who])
    for k in range(n): I(f"v_writelane_b32 v2, s{24+2*k}, {k}")
    I(f"v_writelane_b32 v2, {n}, 61"); I("v_writelane_b32 v2, s15, 60"); I("v_writelane_b32 v2, s14, 63")
    I(f"s_lshl3_add_u32 {sT0}, s2, {sW_}"); I(f"s_add_u32 {sT0}, {sT0}, {4 if who == 'H' else 0}"); I(f"s_lshl_b32 {sT0}, {sT0}, 8"); I(f"s_add_u32 {sT0}, {sT0}, {WS_ST}")
    I(f"v_lshlrev_b32 v3, 2, {vLANE}")
    VM(f"buffer_store_dword v2, v3, {SWS}, {sT0} offen")

NU = OPT["NU"]; assert NU == 2
OPT_GF = f"H{OPT['gf']}"; OPT_GG = f"H{OPT['gg']}"
BASE_OF = {}
for i in range(8): BASE_OF[f"X{i}"] = (2 * (i & 3) * U8, 16384)
for i, u in enumerate(range(8, 16)): BASE_OF[f"S{i}"] = (u * U8, 8192)
for i, u in enumerate([0, 3, 6, 9, 0, 3, 12, 15]): BASE_OF[f"G{i}"] = (u * U8, 24576)
DUMPS = [16 * U8, 12 * U8]
BASE_OF["DUMP0"] = (DUMPS[0], 16384); BASE_OF["DUMP1"] = (DUMPS[1], 16384); BASE_OF["XE"] = (XE, 8192); BASE_OF["HS"] = (HS, 10432); BASE_OF["OFT"] = (HS, 8192)
slot_of = {"C0": 3, "C1": 4, "C2": 5, "C3": 0, "C4": 1, "C5": 2, "C6": 6, "C7": 7, "W0": 8}
RT_ = {}
p3chunks = [f"H{i}" for i in range(8)] + [f"U{i}" for i in range(11)] + ["R"]
def chunk_items(ch):
    i = ch[1:]
    if ch[0] == "S": return [f"S{i}", f"S{int(i)+1}"]
    return {"K": ["XE"] if ch == "KX" else [], "R": [], "G": [f"G{i}"], "H": [f"C{i}"], "U": [f"W{i}"]}[ch[0]]
seq = [f"W{i}" for i in range(1, 11)]
P3PLAN = {}
for k, ch in enumerate(p3chunks):
    P3PLAN[ch] = []
    if k >= 2 and seq:
        n = seq.pop(0); slot_of[n] = slot_of[chunk_items(p3chunks[k-2])[0]]; P3PLAN[ch] = [n]
RED = slot_of["W7"] * 16384
CHUNKS = ["S0", "S2", "S4", "S6"] + [f"G{i}" for i in range(4)] + ["KX", "K0"]
PHV = {c: k + 1 for k, c in enumerate(CHUNKS)}
CEV = {"G0": 25, "G1": 49, "L4": OPT["l4"], "G2": 73, "G3": 97, "L5": OPT["l5"], "G4": 121, "L7": OPT["l7"], "G5": 145}
STAGES = ["X", "S3", "S5", "dump"] + sorted(CEV, key=CEV.get) + ["T", "gst"]
PCV = {c: k + 1 for k, c in enumerate(STAGES)}
for n, s in slot_of.items(): BASE_OF[n] = (s * 16384, 16384)

class Item: pass
items = {}
for n, (b, sz) in BASE_OF.items():
    it = Item(); it.name, it.base, it.size = n, b, sz; it.first_bar = None; it.last_read = None; it.reader = None; items[n] = it
bar_names = []
def note_read(name):
    it = items[name]
    if it.first_bar is None: it.first_bar = len(E.barriers)
    it.last_read = len(E.lg); it.last_bar = len(E.barriers); it.reader = E

E = E0
E.label(f"{NAME}_kernel")
I("s_cmp_ge_u32 s2, 256"); I("s_cbranch_scc1 L_end")
I("s_load_dwordx16 s[16:31], s[0:1], 0")
I("s_getpc_b64 s[98:99]"); I(f"s_bfe_u32 {sT0}, s2, 0x20003"); I("v_lshrrev_b32 v80, 3, v0"); I(f"v_lshl_add_u32 v80, v80, 2, {sT0}"); I("v_lshlrev_b32 v80, 7, v80")
VM("global_load_dword v95, v80, s[98:99]", "code")
I("s_load_dwordx16 s[32:47], s[0:1], 64")
I("s_memrealtime s[14:15]")
I("v_lshrrev_b32 v80, 6, v0"); I(f"v_and_b32 {vLANE}, 63, v0"); I(f"v_readfirstlane_b32 {sT3}, v80")
I(f"s_bfe_u32 {sT0}, s2, 0x20001"); I(f"s_lshr_b32 {sCL}, s2, 6"); I(f"s_lshl2_add_u32 {sC_}, {sT0}, {sCL}")
I(f"s_bfe_u32 {sGL}, s2, 0x30003")
if OPT["rot"] == 8: I(f"s_lshl1_add_u32 {sJ0}, {sCL}, {sGL}")
elif OPT["rot"] == 82: I(f"s_lshl2_add_u32 {sJ0}, {sCL}, {sGL}")
elif OPT["rot"] == 81: I(f"s_mov_b32 {sJ0}, {sGL}")
else: I(f"s_add_u32 {sJ0}, {sCL}, {sGL}"); I(f"s_lshl_b32 {sJ0}, {sJ0}, { {4: 1, 2: 2, 1: 3}[OPT['rot']] }")
I(f"s_and_b32 {sGH}, s2, 1"); I(f"s_lshl3_add_u32 {sG_}, {sGH}, {sGL}")
for i in range(2): ktab(i)
I(f"s_and_b32 {sW_}, {sT3}, 3"); I(f"s_lshl_b32 {sM4}, {sW_}, 12")
I(f"v_lshrrev_b32 v81, 3, {vLANE}"); I(f"v_and_b32 v82, 7, {vLANE}")
I("v_lshrrev_b32 v84, 1, v81"); I("v_xor_b32 v83, v82, v84"); I("v_lshlrev_b32 v83, 4, v83"); I("v_xor_b32 v85, 64, v83")
I(f"s_mov_b32 {sSP2}, 0x1000000")
I(f"s_cmp_ge_u32 {sT3}, 4"); I("s_cbranch_scc1 L_helper")

E = EC
vP1 = [2, 3, 4, 5]; vGT = 6; vNM = 7; vR2 = 0
FB0, NFB = 8, 6
ACCG = [32, 64, 96]; ACCU = [48, 80, 112]; ACC_R, ACC_I = 96, 112
XF = 128
vXo = [86, 87, 88, 89]
def cbar(name, vm=(), lg=()):
    E.wait(vm=vm, lg=lg); E.barrier(); bar_names.append(name)
I("v_and_b32 v84, 4, v81"); I("v_and_b32 v80, 3, v81"); I("v_lshl_add_u32 v84, v84, 2, v80")
I(f"s_lshl2_add_u32 {sT0}, {sC_}, {sW_}"); I(f"s_lshl_b32 {sT0}, {sT0}, 5")
I(f"v_add_lshl_u32 v84, v84, {sT0}, 10")
I(f"v_add_u32 {v(vXo[0])}, v84, v83"); I(f"v_add_u32 {v(vXo[1])}, v84, v85")
I(f"v_add_u32 {v(vXo[2])}, 6144, {v(vXo[0])}"); I(f"v_add_u32 {v(vXo[3])}, 9216, {v(vXo[1])}"); I(f"v_add_u32 {v(vXo[1])}, 3072, {v(vXo[1])}")
I("s_mov_b32 s50, 2097152"); I("s_mov_b32 s51, 0x20000")
E.wait_all(lg=True)
I("s_mov_b64 s[48:49], s[16:17]")
def X_issue(i):
    I(f"s_add_u32 m0, {sM4}, {items[f'X{i}'].base}")
    for q in range(4): VM(f"buffer_load_dwordx4 {v(vXo[q])}, {SX}, {sK[i]} offen" + (f" offset:{q*1024}" if q else "") + " lds", f"X{i}")
X_issue(0); X_issue(1)
if OPT["prio"] == 1: I("s_setprio 1")
for i in range(2, 8): ktab(i)
X_issue(2)
I(f"v_and_b32 v90, 31, {vLANE}"); I(f"v_lshrrev_b32 v91, 5, {vLANE}")
I("v_bfe_u32 v92, v90, 1, 3"); I("v_xor_b32 v92, v92, v91"); I("v_lshlrev_b32 v92, 4, v92"); I("v_lshl_add_u32 v92, v90, 7, v92")
I(f"v_add_u32 {v(vP1[0])}, {sM4}, v92")
for s in range(1, 4): I(f"v_xor_b32 {v(vP1[s])}, {32*s}, {v(vP1[0])}")
I(f"s_mov_b32 {sC11}, 0x3f803f80"); I(f"s_mov_b32 {sC10}, 0x00003f80"); I(f"s_mov_b32 {sC01}, 0x3f800000")
for r in range(64, 72): I(f"v_mov_b32 v{r}, 0")
srd(SWS, 46, WS_SIZE); srd(SOUT, 42, 4194304)
I(f"s_cmp_ge_u32 {sW_}, 2"); srd_sel(SG, 36, 38, 1409024); srd_sel(SC, 26, 28, 524288); I(f"s_mul_i32 {sM6}, {sW_}, 6144")
I(f"s_mov_b32 {sSPIN}, 0"); I("s_mov_b32 s15, 0"); I("s_mov_b64 s[22:23], s[32:33]"); I("s_mov_b64 s[20:21], s[40:41]")
I(f"v_bfe_u32 v92, {vLANE}, 2, 2"); I("v_lshl_add_u32 v92, v91, 3, v92"); I(f"v_mul_u32_u24 {v(vGT)}, 192, v92")
I(f"v_and_b32 v93, 16, {vLANE}"); I(f"v_lshl_add_u32 {v(vGT)}, v93, 1, {v(vGT)}")
I(f"v_and_b32 v93, 1, {vLANE}"); I(f"v_lshl_add_u32 {v(vGT)}, v93, 4, {v(vGT)}")
I(f"v_and_b32 v93, 2, {vLANE}"); I(f"v_lshl_add_u32 {v(vGT)}, v93, 2, {v(vGT)}")
I(f"s_lshl_b32 {sT0}, {sW_}, 7"); I(f"s_add_u32 {sT0}, {sT0}, {RTAB}")
I("v_bfe_u32 v93, v90, 2, 1"); I("v_lshlrev_b32 v94, 4, v93"); I("v_lshrrev_b32 v93, 3, v90"); I("v_lshl_add_u32 v94, v93, 2, v94")
I("v_and_b32 v93, 3, v90"); I("v_add_u32 v94, v94, v93"); I(f"v_lshl_add_u32 v94, v94, 2, {sT0}")
FR = dict(r=72, t=73, v=74, w=75)
I(f"v_and_b32 v72, 3, {vLANE}"); I("v_lshlrev_b32 v72, 2, v72"); I(f"v_add_u32 v72, {PRG}, v72")
I(f"s_lshl_b32 {sT0}, {sW_}, 2"); I(f"s_add_u32 {sT0}, {sT0}, {PRG}"); I(f"v_mov_b32 v75, {sT0}")
def csig(st): signal("PC", PCV[st], FR["w"], FR["v"], 0)
for i in range(8):
    it = items[f"X{i}"]
    if i == 2: cbar("b0")
    E.wait(vm=it.name)
    for s in range(4):
        DS(f"ds_read_b128 {v(XF + 16*i + 4*s, 4)}, {v(vP1[s])} offset:{it.base & 0xffff}", f"xr{i}_{s}"); note_read(it.name)
    if i + 3 < 8: X_issue(i + 3)
    if i == 4 and OPT["mw"]:
        I(f"s_cmp_eq_u32 {sW_}, 1"); I("s_cselect_b64 s[52:53], s[38:39], s[36:37]"); I(f"s_cmp_eq_u32 {sW_}, 2"); I("s_cselect_b64 s[52:53], s[40:41], s[52:53]")
        I(f"s_cmp_eq_u32 {sW_}, 3"); I("s_cselect_b64 s[52:53], s[26:27], s[52:53]"); I("s_mov_b32 s54, 1409024"); I("s_cselect_b32 s54, 524288, s54"); I("s_mov_b32 s55, 0x20000")
        I(f"s_cselect_b32 {sT0}, 16, 43"); I(f"s_mul_i32 {sT1}, s2, {sT0}"); I(f"s_sub_u32 {sT0}, {sT0}, 1"); I(f"v_min_u32 v76, {sT0}, {vLANE}"); I(f"v_add_lshl_u32 v76, v76, {sT1}, 7")
        VM("buffer_load_dword v77, v76, s[52:55], 0 offen", "mw")
        I("s_mov_b64 s[52:53], s[28:29]"); I(f"s_cmp_eq_u32 {sW_}, 3"); I("s_cselect_b32 s54, 524288, 0")
        VM("buffer_load_dword v77, v76, s[52:55], 0 offen", "mw")
    for s in range(4):
        E.wait(lg=f"xr{i}_{s}")
        for d in range(4):
            x = v(XF + 16*i + 4*s + d)
            I(f"v_dot2c_f32_bf16 v{64+d}, {sC11}, {x}"); I(f"v_dot2c_f32_bf16 v{68+d}, {x}, {x}")
    lstamp(f"X{i}")
csig("X"); gchk = {"S0": chk_issue(FR["r"], FR["t"], 16)}
I("v_add_f32 v64, v64, v65"); I("v_add_f32 v66, v66, v67"); I("v_add_f32 v68, v68, v69")
I("v_add_f32 v64, v64, v66"); I("v_add_f32 v70, v70, v71"); I("v_mov_b32 v65, v64"); I("v_add_f32 v68, v68, v70"); I("v_mov_b32 v69, v68")
I("v_permlane32_swap_b32 v64, v65"); I("v_permlane32_swap_b32 v68, v69")
I("v_add_f32 v64, v64, v65"); I("v_mul_f32 v64, 0x3b000000, v64")
runall(bf16r_ops(65, 64)); I(f"v_sub_f32 {v(vNM)}, 0, v65")
I(f"s_sub_u32 {sT0}, 65536, {sM4}")
for s in range(4): I(f"v_add_u32 {v(vP1[s])}, {sT0}, {v(vP1[s])}")
win = {"p1": 65536, "c1": 0, "gt": 0, "lin": 0, "wt": 0}
def burst(i):
    for d in range(16):
        x = v(XF + 16*i + d)
        I(f"v_dot2_f32_bf16 v{32+2*d}, {x}, {sC10}, {v(vNM)}"); I(f"v_dot2_f32_bf16 v{33+2*d}, {x}, {sC01}, {v(vNM)}")
qC, qB = [], []
marks = set()
def run_op(op):
    if isinstance(op, tuple): marks.add(op[1])
    elif isinstance(op, str): I(op)
    else: op()
def need_mark(m):
    while m not in marks:
        q = next(q for q in (qC, qB) if ("mark", m) in [o for o in q if isinstance(o, tuple)])
        run_op(q.pop(0))
def cvt_ops(i):
    ops = []
    for d in range(16):
        ops.append(f"v_cvt_pk_bf16_f32 {v(XF + 16*i + d)}, v{32+2*d}, v{33+2*d}")
        if d & 3 == 3: ops.append(("mark", f"cen{4*i + (d>>2)}"))
    return ops
B = ["v_add_f32 v68, v68, v69", "v_mul_f32 v68, 0x3b000000, v68", "v_fma_f32 v68, -v64, v64, v68", "v_max_f32 v68, 0, v68"]
B += bf16r_ops(68, 68) + ["v_add_f32 v68, 0x3727c5ac, v68"] + bf16r_ops(68, 68) + ["v_sqrt_f32 v68, v68", lambda: DS("ds_write_b32 v94, v65 offset:512", "tabw")]
B += bf16r_ops(68, 68) + ["v_rcp_f32 v68, v68", lambda: DS("ds_write_b32 v94, v68", "tabw"), f"v_mul_f32 {v(vR2)}, v68, v68", ("mark", "tab")]
qB.extend(B)

class Slot: pass
slots = []
def add_slot(chunk, reads, mfma, needs=()):
    s = Slot(); s.chunk, s.reads, s.mfma, s.needs = chunk, reads, mfma, needs; slots.append(s)
for i in range(8):
    for s in range(4):
        f = 4*i + s
        for comp in range(2):
            acc = v(ACC_I if comp else ACC_R, 16)
            add_slot(f"S{i}", [("p1", f"S{i}", s, comp * 4096)], lambda b, f=f, acc=acc: f"{MF} {acc}, {v(XF+4*f,4)}, {v(b[0],4)}, {acc if f else 0}", needs=[f"cen{f}"])
P2 = len(slots)
order = [(0, s, u, m) for s in range(4) for u in range(2) for m in range(2)] + [(0, s, 2, m) for s in range(4) for m in range(2)]
order += [(i, s, u, m) for i in range(1, 8 - NU) for s in range(4) for u in range(3) for m in range(2)]
order += [(i, s, u, m) for u in range(3) for i in range(8 - NU, 8) for s in range(4) for m in range(2)]
unit_done = {}
for (i, s, u, m) in order:
    f = 4*i + s; acc = v((ACCU if m else ACCG)[u], 16)
    nd = (["tab"] if f == 0 else []) + (["dumped"] if (f, u) == (0, 2) else [])
    add_slot(f"G{i}", [("gt", f"G{i}", m * 12288 + 16*s*192 + 64*u)], lambda b, f=f, acc=acc: f"{MF} {acc}, {v(b[0],4)}, {v(XF+4*f,4)}, {acc if f else 0}", needs=nd)
    unit_done[u] = len(slots) - 1
P3 = len(slots)
ACC3 = 32; BASE = 48
vHST = 138; vDSK = 140; vHR, vWT, vXR, vTAB3, vOUT = 128, 129, 130, 131, 132
sHG = ["s16", "s17", "s18"]
EPO = 144; vC1 = [134, 135, 136, 137]; vC2 = [2, 3, 4, 5]
cGo = [128, 129, 130]; cCo = [132, 133, 134, 135]
ACC4 = 48
AQ = list(range(168, 256, 4)) + list(range(76, 128, 4)) + list(range(144, 168, 4))
P3BUFS = list(range(8, 32, 4)) + [64, 68, 72]
vA = 139; vWT2 = 133
aloads = []
for n, ch in enumerate([f"H{i}" for i in range(8)] + [f"U{i}" for i in range(11)]):
    i = int(ch[1:])
    for s in range(4):
        q = AQ[(4*n + s) % len(AQ)]; tag = f"a{n}_{s}"; aloads.append((tag, q, ch, s))
        for a_ in range(2):
            rd = ("c1", f"C{i}", s, a_) if ch[0] == "H" else ("wt", f"W{i}", 16*s*128, a_)
            acc = v(ACC4 if a_ else ACC3, 16)
            add_slot(ch, [rd], lambda b, q=q, acc=acc, z=(n == 0 and s == 0 and a_ == 1): f"{MF} {acc}, {v(q,4)}, {v(b[0],4)}, {0 if z else acc}")
            slots[-1].atag = tag
M = len(slots)
first_slot = {}
for m, s in enumerate(slots): first_slot.setdefault(s.chunk, m)
pool = [FB0 + 4*k for k in range(NFB)]
def newfb(): return pool.pop(0)
def set_win(kind, regs, base, span):
    cur = win[kind]
    if not (cur <= base and base + span <= cur + 65536):
        new = min((base // 49152) * 49152, MISC - 65536)
        if not (new <= base and base + span <= new + 65536): new = base
        for r in regs: I(f"v_add_u32 {v(r)}, {(new - cur) & 0xffffffff}, {v(r)}")
        win[kind] = cur = new
    return cur
def emit_reads(m):
    s = slots[m]; s.bufs = []; s.tags = []
    for rd in s.reads:
        b = newfb(); s.bufs.append(b); tag = f"rd{m}_{rd[0]}"; s.tags.append(tag)
        kind, it = rd[0], items[rd[1]]
        if kind == "p1":
            w = set_win(kind, vP1, it.base, it.size); DS(f"ds_read_b128 {v(b,4)}, {v(vP1[rd[2]])} offset:{it.base - w + rd[3]}", tag)
        elif kind == "c1":
            w = set_win(kind, vC1 + vC2, it.base, it.size); DS(f"ds_read_b128 {v(b,4)}, {v((vC2 if rd[3] else vC1)[rd[2]])} offset:{it.base - w}", tag)
        else:
            regs, pitch = ([vGT], 192) if kind == "gt" else ([vWT, vWT2], 128)
            reg = regs[rd[3]] if kind == "wt" else vGT
            w = set_win(kind, regs, it.base, it.size)
            DS(f"ds_read_b64_tr_b16 {v(b,2)}, {v(reg)} offset:{it.base - w + rd[2]}", tag)
            DS(f"ds_read_b64_tr_b16 {v(b+2,2)}, {v(reg)} offset:{it.base - w + rd[2] + 4*pitch}", tag)
        note_read(it.name)
events = {}
def at(m, fn): events.setdefault(m, []).append(fn)
post = {8*i + 7: (lambda i=i: (need_mark(f"cen{4*i+7}"), burst(i + 2), qC.extend(cvt_ops(i + 2)))) for i in range(6)}
at(52, lambda: qB.extend([f"v_lshlrev_b32 {v(vNM)}, 6, {vLANE}", f"v_bfe_u32 v64, {vLANE}, 1, 2", f"v_lshl_add_u32 {v(vNM)}, v64, 4, {v(vNM)}",
                          f"v_add_u32 {v(vNM)}, {sM4}, {v(vNM)}", f"v_add_u32 {v(vNM)}, {DUMPS[1]}, {v(vNM)}", ("mark", "dadr")]))
def dump_op(j, comp):
    need_mark("dadr")
    if j and comp == 0: I(f"v_xor_b32 {v(vNM)}, {16 * (j ^ (j - 1))}, {v(vNM)}")
    DS(f"ds_write_b128 {v(vNM)}, {v((ACC_I if comp else ACC_R) + 4*j, 4)} offset:{DUMPS[comp] - DUMPS[1]}", "dump")
    if (j, comp) == (3, 1): marks.add("dumped")
def dump64(j, comp, hf):
    need_mark("dadr")
    if j and comp == 0 and hf == 0: I(f"v_xor_b32 {v(vNM)}, {16 * (j ^ (j - 1))}, {v(vNM)}")
    if comp == 0 and hf == 0: I(f"v_add_u32 {v(vP1[1])}, {DUMPS[0]}, {v(vNM)}")
    DS(f"ds_write_b64 {v(vNM if comp else vP1[1])}, {v((ACC_I if comp else ACC_R) + 4*j + 2*hf, 2)} offset:{8*hf}", "dump")
    if (j, comp, hf) == (3, 1, 1): marks.add("dumped")
if OPT["d64"]:
    for k in range(16): at(P2 + (k * 15) // 16, lambda k=k: dump64(k >> 2, (k >> 1) & 1, k & 1))
else:
    for k in range(8): at(P2 + 1 + (k * OPT["dsp"]) // 2, lambda k=k: dump_op(k >> 1, k & 1))
def fr_move():
    I(f"v_mov_b32 {v(vP1[0])}, v72"); I(f"v_mov_b32 {v(vP1[3])}, v75"); FR.update(r=vP1[0], t=vP1[1], v=vP1[2], w=vP1[3])
at(P2 - 2, fr_move)
if OPT["mw"]: at(P2 - 3, lambda: E.wait(vm="mw"))
at(31, lambda: csig("S3")); at(47, lambda: csig("S5"))
at(P2 + OPT["bd"], lambda: (need_mark("dumped"), E.wait(lg=["dump", "tabw"]), csig("dump")))
LAND = {"L4": ["G4"], "L5": ["G5", "G6"], "L7": ["G7"]}
for st, sl in CEV.items(): at(P2 + sl, lambda st=st: (E.wait(vm=LAND.get(st, [])), csig(st)))
GATE = {c: (16, PHV[c]) for c in CHUNKS[:8]}
GATE.update({"G4": (0, PCV["L4"]), "G5": (0, PCV["L5"]), "G7": (0, PCV["L7"])})
for c in list(GATE)[1:]: at(first_slot[c] - OPT["D"] - 3, lambda c=c: gchk.__setitem__(c, chk_issue(FR["r"], FR["t"], GATE[c][0])))
cplaced = []
def c_offsets():
    I(f"s_lshl_b32 {sT0}, {sW_}, 11"); I(f"s_add_u32 {sT0}, {sT0}, {HS}"); I(f"v_lshl_add_u32 v136, {vLANE}, 4, {sT0}")
    DS("ds_read_b128 v[128:131], v136", "cof"); DS("ds_read_b128 v[132:135], v136 offset:1024", "cof"); note_read("OFT")
at(P2 + 24, c_offsets)
def c_load(name, ta, step2, gate=None):
    k = name[0]; i = int(name[1:]); base = items[name].base
    tag = {}
    if gate:
        off, val = (0, PCV[gate]) if gate in PCV else (32, gate)
        at(P2 + ta - 2, lambda: tag.__setitem__(0, chk_issue(FR["r"], 137, off)))
    n = 6 if k == "G" else 4
    for q in range(n):
        def op(q=q):
            if q == 0:
                E.wait(lg="cof")
                if gate: chk_test(tag[0], val, FR["r"], 137, off, -20); cknown.append(("PC" if off == 0 else "PD", val))
                cplaced.append((name, list(cknown)))
            if k == "G":
                if q % 3 == 0:
                    I(f"s_add_u32 m0, {sM6}, {base + 1024*q}")
                    I(f"s_mul_i32 {sSO}, {sK[i]}, 1376" if q == 0 else f"s_add_u32 {sSO}, {sSO}, {16*2752}")
                VM(f"buffer_load_dwordx4 {v(cGo[q%3])}, {SG}, {sSO} offen" + (f" offset:{(q%3)*1024}" if q % 3 else "") + " lds", name)
            else:
                if q == 0: I(f"s_add_u32 m0, {sM4}, {base}")
                VM(f"buffer_load_dwordx4 {v(cCo[q])}, {SC}, {sK[i]} offen" + (f" offset:{q*1024}" if q else "") + " lds", name)
        at(P2 + ta + (q * step2) // 2, op)
cknown = []
c_load("G4", 29, 5, "G0"); c_load("G6", 44, 5, 1); c_load("G5", 59, 5, "G1"); c_load("G7", 74, 5); c_load("C0", 89, 4, "G2")
c_load("C1", 101, 4, "G3"); c_load("C2", OPT["c2"], 4); c_load("C3", OPT["c3"], 4, "G4"); c_load("C4", 149, 4, "G5"); c_load("C5", 157, 4)
def st_addr():
    o = [f"s_lshl2_add_u32 {sT0}, {sC_}, {sW_}", f"s_mul_i32 {sT0}, {sT0}, {152*1024}", f"v_lshl_add_u32 {v(vHST)}, {vLANE}, 4, {sT0}", f"s_mul_i32 {sT0}, {sG_}, 3"]
    for uu in range(3):
        o += [f"s_add_u32 {sT1}, {sT0}, {uu}", f"s_lshl_b32 {sT3}, {sT1}, 11", f"s_add_u32 {sT3}, {sT3}, 65536",
              lambda uu=uu: (I(f"s_cmp_lt_u32 {sT1}, 44"), I(f"s_cselect_b32 {sHG[uu]}, {sT3}, 0x40000000"))]
    o += [f"s_and_b32 {sT1}, {sW_}, 1", f"s_lshr_b32 {sT2}, {sW_}, 1", f"s_lshl1_add_u32 {sT0}, {sC_}, {sGH}", f"s_lshl1_add_u32 {sT0}, {sT0}, {sT2}",
          f"s_mul_i32 {sT0}, {sT0}, {152*1024}", f"s_lshl_b32 {sT3}, {sT1}, 12", f"s_add_u32 {sT0}, {sT0}, {sT3}", f"v_lshl_add_u32 {v(vA)}, {vLANE}, 4, {sT0}",
          f"v_and_b32 v143, 31, {vLANE}", f"s_lshl1_add_u32 {sT3}, {sGL}, {sT1}", f"s_lshl_b32 {sT0}, {sT3}, 5", f"v_add_lshl_u32 v142, v143, {sT0}, 1",
          lambda: VM(f"global_load_ushort {v(vDSK)}, v142, s[22:23]", "dsk")]
    return o
def st_addr2():
    o = [f"s_and_b32 {sT1}, {sW_}, 1", f"s_lshr_b32 {sT2}, {sW_}, 1", f"v_lshrrev_b32 v141, 5, {vLANE}", f"v_and_b32 v143, 31, {vLANE}"]
    o += [f"s_lshl1_add_u32 {sT3}, {sGL}, {sT1}"]
    o += [f"s_lshl_b32 {sT3}, {sT3}, 7", f"s_lshl1_add_u32 {sT0}, {sGH}, {sT2}", f"s_lshl2_add_u32 s13, {sC_}, {sT0}", "s_lshl_b32 s13, s13, 16", f"s_add_u32 s13, s13, {sT3}",
          "v_lshlrev_b32 v142, 15, v141", "v_lshl_add_u32 v142, v143, 2, v142", f"v_add_u32 {v(vOUT)}, s13, v142"]
    o += [f"s_lshl_b32 {sT0}, {sT0}, 7", f"s_add_u32 {sT0}, {sT0}, {RTAB}", f"v_lshl_add_u32 {v(vTAB3)}, v141, 6, {sT0}",
          f"s_lshl_b32 {sT0}, {sT1}, 6", f"s_lshl_b32 {sT3}, {sT2}, 12", f"s_add_u32 {sT3}, {sT3}, {sT0}", f"s_add_u32 {sT3}, {sT3}, {XE}",
          "v_lshlrev_b32 v142, 11, v141", "v_lshl_add_u32 v142, v143, 1, v142", f"v_add_u32 {v(vXR)}, {sT3}, v142",
          f"s_lshl_b32 {sT3}, {sW_}, 12", f"s_add_u32 {sT3}, {sT3}, {RED}", f"v_lshl_add_u32 {v(vHR)}, {vLANE}, 4, {sT3}"]
    o += [f"v_bfe_u32 v142, {vLANE}, 2, 2", "v_lshl_add_u32 v142, v141, 3, v142", "v_lshlrev_b32 v142, 7, v142",
          f"v_and_b32 v7, 16, {vLANE}", "v_lshl_add_u32 v142, v7, 1, v142", f"v_and_b32 v7, 3, {vLANE}", "v_lshl_add_u32 v142, v7, 3, v142",
          f"v_and_b32 v7, 8, {vLANE}", "v_lshlrev_b32 v7, 3, v7", f"v_xor_b32 v7, {sT0}, v7", f"s_lshl_b32 {sT3}, {sT1}, 13", f"v_add3_u32 {v(vWT)}, v142, v7, {sT3}", f"v_xor_b32 {v(vWT2)}, 64, {v(vWT)}"]
    o += [f"s_mul_i32 {sT0}, {sT1}, 12288", "v_bfe_u32 v142, v143, 1, 3", "v_xor_b32 v142, v142, v141", "v_lshlrev_b32 v142, 4, v142", "v_lshl_add_u32 v142, v143, 7, v142",
          f"v_add_u32 {v(vC1[0])}, {sT0}, v142"] + [f"v_xor_b32 {v(vC1[s])}, {32*s}, {v(vC1[0])}" for s in range(1, 4)] + [f"v_xor_b32 {v(vC2[s])}, 4096, {v(vC1[s])}" for s in range(4)] + [("mark", "sta")]
    return o
at(P2 + 120, lambda: qB.extend(st_addr()))
def wtouch(k):
    o = []
    if k == 0:
        o += [f"s_mov_b64 s[64:65], s[20:21]", "s_mov_b32 s66, 1409024", "s_mov_b32 s67, 0x20000",
              f"s_mul_i32 {sQHG}, {sGL}, 11", f"s_lshr_b32 {sQHG}, {sQHG}, 3", f"s_mul_i32 {sT2}, {sCL}, 3", f"s_add_u32 {sQHG}, {sQHG}, {sT2}", f"s_sub_u32 {sT2}, {sQHG}, 11",
              lambda: (I(f"s_cmp_ge_u32 {sQHG}, 11"), I(f"s_cselect_b32 {sQHG}, {sT2}, {sQHG}"))]
    o += [f"s_lshl_b32 {sT0}, {sQHG}, 7", f"s_mul_i32 {sT1}, {sW_}, 96", f"s_add_u32 {sT0}, {sT0}, {sT1}", f"s_add_u32 {sT0}, {sT0}, {48*k}", f"s_lshl_b32 {sT1}, {sGL}, 7",
          f"v_min_u32 v129, 47, {vLANE}", f"v_add_u32 v129, {sT0}, v129", "v_subrev_u32 v130, 1408, v129", "v_min_u32 v129, v129, v130", "v_lshlrev_b32 v129, 10, v129",
          lambda: VM(f"buffer_load_dword v131, v129, {SWD}, {sT1} offen", "wt")]
    return o
at(P2 + 110, lambda: qB.extend(wtouch(0)[3:9]))
def glu_epi(u):
    ops = []; o = EPO + 8*u
    for j in range(8):
        g0, u0 = ACCG[u] + 2*j, ACCU[u] + 2*j
        ops += [f"v_mul_f32 {v(u0)}, {v(vR2)}, {v(u0)}", f"v_mul_f32 {v(u0+1)}, {v(vR2)}, {v(u0+1)}",
                f"v_mul_f32 {v(u0)}, {v(g0)}, {v(u0)}", f"v_mul_f32 {v(u0+1)}, {v(g0+1)}, {v(u0+1)}", f"v_cvt_pk_bf16_f32 {v(o+j)}, {v(u0)}, {v(u0+1)}"]
        if j & 3 == 3:
            ops.append(lambda fr=j >> 2: VM(f"buffer_store_dwordx4 {v(o + 4*fr, 4)}, {v(vHST)}, {SWS}, {sHG[u]} offen offset:{fr*1024} sc1", "gst"))
    return ops + [("mark", f"epi{u}")]
for u in range(2): at(unit_done[u] + 3, lambda u=u: qB.extend(glu_epi(u)))
def base_ops():
    R3, M3 = 32, 8
    ops = [f"v_mov_b32 {v(BASE+r)}, 0" for r in range(16)]
    def rdx(r): DS(f"ds_read_u16_d16_hi {v(BASE+r)}, {v(vXR)} offset:{128*r}", f"xe{r}"); note_read("XE")
    ops += [lambda r=r: rdx(r) for r in range(16)]
    ops += [lambda j=j: DS(f"ds_read_b128 {v(R3+4*j,4)}, {v(vTAB3)} offset:{16*j}", f"r3{j}") for j in range(4)]
    ops += [lambda j=j: DS(f"ds_read_b128 {v(M3+4*j,4)}, {v(vTAB3)} offset:{512+16*j}", f"m3{j}") for j in range(4)]
    ops += [lambda: E.wait(vm="dsk"), f"v_lshlrev_b32 {v(vDSK)}, 16, {v(vDSK)}", lambda: E.wait(lg="m33")]
    for r in range(0, 16, 2):
        t0, t1, p = 24, 25, 26
        rnd = [f"v_cvt_pk_bf16_f32 {v(p)}, {v(t0)}, {v(t1)}", f"v_lshlrev_b32 {v(t0)}, 16, {v(p)}", f"v_and_b32 {v(t1)}, 0xffff0000, {v(p)}"]
        ops += [f"v_sub_f32 {v(t0)}, {v(BASE+r)}, {v(M3+r)}", f"v_sub_f32 {v(t1)}, {v(BASE+r+1)}, {v(M3+1+r)}"] + rnd
        ops += [f"v_mul_f32 {v(t0)}, {v(t0)}, {v(R3+r)}", f"v_mul_f32 {v(t1)}, {v(t1)}, {v(R3+1+r)}"] + rnd
        ops += [f"v_mul_f32 {v(t0)}, {v(t0)}, {v(vDSK)}", f"v_mul_f32 {v(t1)}, {v(t1)}, {v(vDSK)}"] + rnd
        ops += [f"v_add_f32 {v(ACC3+r)}, {v(BASE+r)}, {v(t0)}", f"v_add_f32 {v(ACC3+r+1)}, {v(BASE+r+1)}, {v(t1)}"]
    return ops + [("mark", "base")]

def segment(lo, hi, Dof, lim, pre_bar):
    rn = lo; held = []
    for m in range(lo - 1, hi):
        c0 = E.count + E.nops
        if m >= lo:
            s = slots[m]
            for n in s.needs: need_mark(n)
            tags = list(s.tags)
            if m % 2 == 0 and m + 1 < hi: tags += slots[m+1].tags
            E.wait(vm=[s.atag] if m >= P3 else [], lg=tags)
            I(s.mfma(s.bufs)); c0 = E.count + E.nops
            pool.extend(b for b in held if b not in retired); held = list(s.bufs)
            if m >= P3:
                adone[0] = (m - P3 + 1) // 2; a_issue(OPT["ar"])
            if first_slot[s.chunk] == m and m < P3: lstamp(s.chunk)
            for fn in events.get(m, []): fn()
        nr = 0
        while rn < hi and rn <= m + Dof(m) and len(pool) >= len(slots[rn].reads) and (nr < 2 or m < lo):
            ch = slots[rn].chunk
            if first_slot[ch] == rn:
                if pre_bar: pre_bar(ch)
                if ch in GATE: chk_test(gchk[ch], GATE[ch][1], FR["r"], FR["t"], GATE[ch][0], -(list(GATE).index(ch) + 1))
            emit_reads(rn); rn += 1; nr += 1
        assert rn >= min(hi, m + 3), (m, rn)
        if m >= lo:
            n = 0
            while qC and (n < 3 or isinstance(qC[0], tuple)): run_op(qC.pop(0)); n += 1
            while qB and (E.count + E.nops - c0 < lim - (m & 1) or isinstance(qB[0], tuple)): run_op(qB.pop(0))
            if m in post: post[m]()
retired = set()
def D2(m): return OPT["D"]
burst(0); runall([o for o in cvt_ops(0) if isinstance(o, str)]); marks.update(f"cen{k}" for k in range(4)); burst(1); qC.extend(cvt_ops(1))
segment(0, P3, D2, 6, None)
anext = [0]; aok = {"H": False, "U": False}; adone = [0]
def a_issue(n):
    while n > 0 and anext[0] < len(aloads):
        tag, q, ch, s_ = aloads[anext[0]]
        if not aok[ch[0]] or anext[0] - adone[0] >= min(len(AQ), OPT["al"]): return
        i = int(ch[1:])
        if s_ == 0:
            if ch[0] == "H": I(f"s_lshl_b32 {sSO}, {sK[i]}, 6")
            else:
                I(f"s_lshl_b32 {sSO}, {sQHG}, 13"); I(f"s_add_u32 {sSO}, {sSO}, 65536")
                I(f"s_add_u32 {sQHG}, {sQHG}, 1"); I(f"s_cmp_eq_u32 {sQHG}, 11"); I(f"s_cselect_b32 {sQHG}, 0, {sQHG}")
        VM(f"buffer_load_dwordx4 {v(q,4)}, {v(vA)}, {SWS}, {sSO} offen" + (f" offset:{s_*1024}" if s_ else "") + " sc1", tag)
        anext[0] += 1; n -= 1
def p3bar(ch):
    cbar("b" + ch, vm=["C5"]); lstamp(ch)
    if ch == OPT_GG: aok["U"] = True
lstamp("T"); csig("T")
need_mark("epi1")
qB.extend(glu_epi(2)); need_mark("epi2")
pool[:] = P3BUFS
sa = st_addr2()
for op in sa[:-5]: run_op(op)
bo = base_ops(); nb = OPT["nb"]
if nb: chk_spin(PHV["KX"], FR["r"], FR["t"], 16)
for op in bo[:nb]: run_op(op)
chk_spin(PHV["K0"], FR["r"], FR["t"], 16); lstamp("K0"); aok["H"] = True
a_issue(4)
for k in range(nb, len(bo), OPT["bk"]):
    a_issue(1)
    for op in bo[k:k+OPT["bk"]]: run_op(op)
    if k == nb + OPT["bk"] * OPT["gs"]: E.wait(vm="gst"); csig("gst")
for op in sa[-5:]: run_op(op)
segment(P3, M, lambda m: OPT["D3"], 8, p3bar)
assert not qC and not qB and anext[0] == len(aloads)
for j in range(4): DS(f"ds_write_b128 {v(vHR)}, {v(ACC4+4*j,4)} offset:{1024*j}", "red")
I(f"v_xor_b32 {v(vWT)}, 4096, {v(vHR)}")
cbar("bR", lg=["red"])
for j in range(4): DS(f"ds_read_b128 {v(ACC4+4*j,4)}, {v(vWT)} offset:{1024*j}", f"rr{j}")
lstamp("last")
for r in range(16):
    if r % 4 == 0: E.wait(lg=f"rr{r>>2}")
    I(f"v_add_f32 {v(ACC3+r)}, {v(ACC3+r)}, {v(ACC4+r)}")
    if r % 2 == 0: I(f"s_mov_b32 {sT0}, {(r>>1)*4096}")
    VM(f"buffer_store_dword {v(ACC3+r)}, {v(vOUT)}, {SOUT}, {sT0} offen offset:{(r&1)*2048}" + (" sc1" if OPT["osc"] else ""), "out")
dump_stamps("C")
I("s_endpgm")

E = EH
E.label("L_helper")
vSo = [2, 3]; vGo = [4, 5, 6]; vCo = [8, 9, 10, 11]; vWo = [12, 13, 14, 15]; vHo = 16; vXEo = [17, 18]
vFLS, vFLP, vPOLL, vFLX = 19, 20, 21, 7
vLR, vCR, vL16, vL128, vL256, vPQ = 22, 24, 26, 28, 30, 32
vE, vE2, vP = 34, 36, 38
vEQA, vEST, vEF, vEX, vZA, vHSW, vHSR, vHSTo, vDA, vTAB = 40, 41, 42, 44, 46, 47, 48, 49, 50, 54
TR, TI, RT, TMP = 96, 112, 128, 144
vF16, vF256 = 56, 58
vQR, vQT, vQV, vQW = 160, 161, 162, 163
vDB = 164; vUP = 76
live = [items[f"X{i}"] for i in range(4, 8)]
known = {id(EC): 0, id(EH): 0}
def hplace(name):
    it = items[name]
    for o in list(live):
        if o.base < it.base + it.size and it.base < o.base + o.size:
            assert known[id(o.reader)] >= o.last_read, ("WAR", name, o.name)
            live.remove(o)
    live.append(it); return it
def adv11(s): I(f"s_add_u32 {s}, {s}, 1"); I(f"s_cmp_eq_u32 {s}, 11"); I(f"s_cselect_b32 {s}, 0, {s}")
cur_m0 = [None]
SOFF = {"G": "s16", "H": "s17", "W": "s18", "HG": "s19"}
def item_ops(name):
    k = name.rstrip("0123456789"); i = int(name[len(k):] or 0)
    so = SOFF.get(k)
    srd_, sm, voffs, pol = {"S": (SS, sM2, vSo, ""), "G": (SG, sM6, vGo, ""), "C": (SC, sM4, vCo, ""), "H": (SWS, sM4, [vHo]*4, " sc1"),
                            "W": (SWD, sM4, vWo, ""), "HG": (SWS, sM4, [vHo]*4, " sc1"), "XE": (SX, sM2, vXEo, "")}[k]
    prep = {"G": lambda: I(f"s_mul_i32 {so}, {sK[i]}, 1376"), "H": lambda: I(f"s_lshl_b32 {so}, {sK[i]}, 6"),
            "W": lambda: (I(f"s_add_u32 {so}, {sQW}, {i}"), I(f"s_sub_u32 {sSO}, {so}, 11"), I(f"s_cmp_ge_u32 {so}, 11"), I(f"s_cselect_b32 {so}, {sSO}, {so}"), I(f"s_lshl_b32 {so}, {so}, 17")),
            "HG": lambda: (I(f"s_add_u32 {so}, {sQHG}, {i}"), I(f"s_sub_u32 {sSO}, {so}, 11"), I(f"s_cmp_ge_u32 {so}, 11"), I(f"s_cselect_b32 {so}, {sSO}, {so}"),
                           I(f"s_lshl_b32 {so}, {so}, 13"), I(f"s_add_u32 {so}, {so}, 65536"))}.get(k, lambda: None)
    if so is None: so = "0" if k == "XE" else sK[i]
    ops = []
    for half in range(2 if k == "G" else 1):
        for q in range(len(voffs)):
            def op(half=half, q=q):
                if name in RT_:
                    if q == 0: prep()
                    VM(f"buffer_load_dwordx4 {v(RT_[name] + 4*q, 4)}, {v(voffs[q])}, {srd_}, {so} offen" + (f" offset:{q*1024}" if q else ""), name)
                    return
                if (half, q) == (0, 0): hplace(name)
                m0 = (sm, items[name].base + 3072 * half)
                if cur_m0[0] != m0: I(f"s_add_u32 m0, {sm}, {m0[1]}"); cur_m0[0] = m0
                if (half, q) == (0, 0): prep()
                if (half, q) == (1, 0): I(f"s_add_u32 {so}, {so}, {16*2752}")
                VM(f"buffer_load_dwordx4 {v(voffs[q])}, {srd_}, {so} offen" + (f" offset:{q*1024}" if q else "") + f"{pol} lds", name)
            ops.append(op)
    last = ops[-1]
    ops[-1] = lambda: (last(), done_issue.__setitem__(name, True))
    return ops
done_issue = {}
def issue(name, between=lambda: None):
    for op in item_ops(name): op(); between()
def unpark(name):
    hplace(name); E.wait(vm=name)
    I(f"v_add_u32 {v(vUP+1)}, {items[name].base}, {v(vUP)}")
    for q in range(4): DS(f"ds_write_b128 {v(vUP+1)}, {v(RT_[name] + 4*q, 4)} offset:{q*1024}", "up" + name)
def issue_mix(miss, *hits):
    mo = item_ops(miss); ho = [op for h in hits for op in item_ops(h)]
    for k, op in enumerate(mo):
        op()
        for h in ho[k * len(ho) // len(mo):(k + 1) * len(ho) // len(mo)]: h()
def flag_send(so): VM(f"buffer_store_dword v61, {v(vFLS)}, {SWS}, {so} offen sc1", "flag")
def poll_issue(so, tag): VM(f"buffer_load_dword {v(vPOLL)}, {v(vFLP)}, {SWS}, {so} offen sc1", tag)
def poll_check(so, tag, inc):
    E.wait(vm=tag)
    I(f"v_cmp_ne_u32 vcc, {v(vFLX)}, {v(vPOLL)}"); I(f"s_cbranch_vccnz L_slow_{tag}"); E.label(f"L_back_{tag}")
    slow.extend([f"L_slow_{tag}:", f"  s_sleep {OPT['slp']}", f"  buffer_load_dword {v(vPOLL)}, {v(vFLP)}, {SWS}, {so} offen sc1", "  s_waitcnt vmcnt(0)",
                 f"  v_cmp_ne_u32 vcc, {v(vFLX)}, {v(vPOLL)}"] + spin_guard(f"L_back_{tag}", inc) + [f"  s_cbranch_vccnz L_slow_{tag}", f"  s_branch L_back_{tag}"])
I(f"s_and_b32 {sT1}, {sW_}, 1"); I(f"s_lshl1_add_u32 {sT0}, {sG_}, {sT1}"); I(f"s_lshl_b32 {sT0}, {sT0}, 4")
I(f"v_add_lshl_u32 v84, v81, {sT0}, 10")
I(f"v_add_u32 {v(vSo[0])}, v84, v83"); I(f"v_add_u32 {v(vSo[1])}, v84, v85"); I(f"v_add_u32 {v(vSo[1])}, 7168, {v(vSo[1])}")
I(f"s_lshl_b32 {sM2}, {sW_}, 11")
E.wait_all(lg=True)
I(f"s_cmp_ge_u32 {sW_}, 2"); srd_sel(SS, 22, 24, 524288); srd_sel(SG, 36, 38, 1409024); srd_sel(SC, 26, 28, 524288)
issue("S0"); issue("S1")
if OPT["prio"] == 2: I("s_setprio 1")
I(f"s_lshl2_add_u32 {sT0}, {sG_}, {sW_}"); I(f"s_lshl_b32 {sT0}, {sT0}, 3"); I(f"v_add_lshl_u32 v87, v82, {sT0}, 1")
VM("global_load_ushort v70, v87, s[30:31]", "par"); VM("global_load_ushort v71, v87, s[18:19]", "par"); VM("global_load_ushort v72, v87, s[20:21]", "par")
srd(SDBG, 44, 256)
I(f"s_or_b32 {sT0}, s2, {sW_}"); I("s_cbranch_scc1 L_notag")
E.begin_cond()
I("s_or_b32 s13, s14, 1"); I("v_mov_b32 v93, s13"); I("v_mov_b32 v94, 0"); I("s_mov_b64 exec, 1")
VM(f"buffer_store_dword v93, v94, {SDBG}, 0 offen sc1"); I("s_mov_b64 exec, -1")
E.end_cond(); E.label("L_notag")
for i in range(2, 8): ktab(i)
srd(SX, 16, 2097152); srd(SWD, 40, 1409024); srd(SWS, 46, WS_SIZE)
def warm():
    if not OPT["tw"]: return
    srd(SOUT, 42, 4194304)
    I("v_mov_b32 v92, 0"); I(f"s_lshl2_add_u32 {sT0}, {sC_}, {sW_}"); I(f"s_mul_i32 {sT0}, {sT0}, {152*1024}")
    I(f"s_lshr_b32 {sT2}, {sG_}, 1"); I(f"s_lshl_b32 {sT2}, {sT2}, 13"); I(f"s_add_u32 {sT0}, {sT0}, {sT2}"); I(f"s_and_b32 {sT2}, {sG_}, 1"); I(f"s_lshl_b32 {sT2}, {sT2}, 11"); I(f"s_add_u32 {sT0}, {sT0}, {sT2}")
    I(f"s_mov_b32 {sT2}, {WS_EB + 0x30000}"); I(f"s_lshl_b32 {sT3}, {sC_}, 18")
    I("s_mov_b64 exec, 1")
    for sr, so in ((SG, "0"), (SC, "0"), (SWD, "0"), (SWS, sT0), (SWS, sT2), (SOUT, sT3)):
        VM(f"buffer_load_dword v95, v92, {sr}, {so} offen sc1", "tw")
    I("s_mov_b64 exec, -1")
def setup1():
    I(f"s_mov_b32 {sSPIN}, 0"); I("s_mov_b32 s15, 0"); I(f"s_mul_i32 {sM6}, {sW_}, 6144")
    I(f"s_mul_i32 {sQW}, {sGL}, 11"); I(f"s_lshr_b32 {sQW}, {sQW}, 3"); I(f"s_mul_i32 {sT2}, {sCL}, 3"); I(f"s_add_u32 {sQW}, {sQW}, {sT2}")
    I(f"s_sub_u32 {sT2}, {sQW}, 11"); I(f"s_cmp_ge_u32 {sQW}, 11"); I(f"s_cselect_b32 {sQW}, {sT2}, {sQW}"); I(f"s_mov_b32 {sQHG}, {sQW}")
    I(f"s_mul_i32 {sT0}, {sT1}, {32*2752}"); I(f"s_mul_i32 {sT2}, {sG_}, 192"); I(f"s_add_u32 {sT0}, {sT0}, {sT2}")
    I(f"s_mul_i32 {sT2}, {sG_}, 3"); I(f"s_mov_b32 {sT3}, 2752"); I(f"v_mov_b32 v90, {OOB}")
    for i in range(3):
        I(f"v_add_u32 v88, {64*i}, {vLANE}"); I("v_mul_u32_u24 v86, 43691, v88"); I("v_lshrrev_b32 v86, 19, v86")
        I("v_mul_u32_u24 v87, 12, v86"); I("v_sub_u32 v87, v88, v87")
        I(f"v_mul_lo_u32 v86, v86, {sT3}"); I("v_lshl_add_u32 v86, v87, 4, v86"); I(f"v_add_u32 v86, {sT0}, v86")
        I("v_lshrrev_b32 v87, 2, v87"); I(f"v_add_u32 v87, {sT2}, v87"); I("v_cmp_gt_u32 vcc, 43, v87")
        if i: I(f"v_subrev_u32 v86, {1024*i}, v86")
        I(f"v_cndmask_b32 {v(vGo[i])}, v90, v86, vcc")
    I(f"s_lshl2_add_u32 {sT0}, {sGL}, {sT1}"); I(f"s_lshl_b32 {sT2}, {sG_}, 1"); I(f"s_sub_u32 {sT0}, {sT0}, {sT2}"); I(f"s_lshl_b32 {sT0}, {sT0}, 14")
    I(f"v_add_u32 {v(vCo[0])}, {sT0}, {v(vSo[0])}"); I(f"v_add_u32 {v(vCo[1])}, {sT0}, {v(vSo[1])}")
    I(f"v_add_u32 {v(vCo[2])}, {2*7168}, {v(vCo[0])}"); I(f"v_add_u32 {v(vCo[3])}, {2*7168}, {v(vCo[1])}")
    I("v_lshlrev_b32 v86, 4, v82"); I("v_lshl_add_u32 v86, v81, 10, v86"); I(f"v_and_b32 v87, 16, {vLANE}"); I("v_lshlrev_b32 v87, 2, v87"); I("v_xor_b32 v87, v86, v87")
    I(f"s_lshl_b32 {sT0}, {sW_}, 15"); I(f"s_lshl_b32 {sT3}, {sGL}, 7"); I(f"s_add_u32 {sT0}, {sT0}, {sT3}"); I(f"v_add_u32 {v(vWo[0])}, {sT0}, v87")
    for q in range(1, 4): I(f"v_add_u32 {v(vWo[q])}, {7168*q}, {v(vWo[0])}")
    I(f"s_lshl1_add_u32 s13, {sC_}, {sGH}"); I(f"s_lshl2_add_u32 {sT0}, s13, {sW_}"); I(f"s_lshl_b32 {sT0}, {sT0}, 14"); I(f"s_add_u32 {sT0}, {sT0}, {sT3}")
    I(f"v_add_u32 {v(vXEo[0])}, {sT0}, v86"); I(f"v_add_u32 {v(vXEo[1])}, 7168, {v(vXEo[0])}")
    I(f"s_lshr_b32 {sT2}, {sW_}, 1"); I(f"s_lshl1_add_u32 {sT0}, s13, {sT2}"); I(f"s_mul_i32 {sT0}, {sT0}, {152*1024}"); I(f"s_lshl_b32 {sT3}, {sT1}, 12"); I(f"s_add_u32 {sT0}, {sT0}, {sT3}")
    I(f"v_lshl_add_u32 {v(vHo)}, {vLANE}, 4, {sT0}")
    I(f"s_cmp_eq_u32 {sW_}, 0"); I(f"s_cselect_b32 {sT2}, 16, 0"); I(f"v_cmp_gt_u32 vcc, {sT2}, {vLANE}")
    I(f"s_lshl_b32 {sT0}, {sC_}, 11"); I(f"s_lshl2_add_u32 {sT3}, {sG_}, {sT0}"); I(f"v_lshl_add_u32 v86, {vLANE}, 7, {sT3}")
    I(f"v_cndmask_b32 {v(vFLS)}, v90, v86, vcc")
    I(f"s_lshl_b32 {sT3}, {sG_}, 7"); I(f"s_add_u32 {sT3}, {sT3}, {sT0}"); I(f"v_lshl_add_u32 v86, {vLANE}, 2, {sT3}")
    I(f"v_cndmask_b32 {v(vFLP)}, v90, v86, vcc"); I(f"v_cndmask_b32 {v(vFLX)}, 0, -1, vcc")
    I(f"s_mov_b32 s20, {WS_FH}"); I(f"s_mov_b32 s21, {WS_FG}")

def setup2():
    o = []
    A = o.append
    A(f"s_lshl_b32 {sT0}, {sW_}, 10"); A(f"s_add_u32 {sT0}, {sT0}, {EQ}"); A(f"v_lshl_add_u32 {v(vEQA)}, {vLANE}, 3, {sT0}")
    A("v_mov_b32 v88, 0"); A("v_mov_b32 v89, 0"); A(lambda: DS(f"ds_write_b64 {v(vEQA)}, v[88:89]", "eqz"))
    A(f"v_lshl_add_u32 {v(vZA)}, v82, 3, {sT0}")
    A(f"s_lshl_b32 {sT0}, {sW_}, 9"); A(f"v_lshlrev_b32 v86, 11, v81"); A("v_lshl_add_u32 v86, v82, 6, v86"); A("v_lshrrev_b32 v87, 1, v82")
    A("v_lshl_add_u32 v86, v87, 4, v86"); A(f"v_add_u32 {v(vDA)}, {sT0}, v86")
    for j in range(1, 4): A(f"v_xor_b32 {v(vDA+j)}, {16*j}, {v(vDA)}")
    for j in range(4): A(f"v_add_u32 {v(vDB+j)}, {DUMPS[1]}, {v(vDA+j)}")
    A(f"v_lshlrev_b32 {v(vTAB)}, 6, v81"); A(f"v_add_u32 {v(vTAB)}, {RTAB}, {v(vTAB)}")
    A(f"s_lshl_b32 {sT0}, {sG_}, 13"); A(f"s_lshl_b32 {sT2}, {sW_}, 7"); A(f"s_add_u32 {sT0}, {sT0}, {sT2}"); A(f"s_add_u32 {sT0}, {sT0}, {WS_EB}")
    A(f"v_lshl_add_u32 v86, v82, 4, {sT0}")
    A(f"s_lshl_b32 {sT2}, {sC_}, 9"); A(f"v_add_u32 {v(vEST)}, {sT2}, v86"); A(lambda: (I("v_cmp_eq_u32 vcc, 7, v81"), I(f"v_cndmask_b32 {v(vEST)}, v90, {v(vEST)}, vcc")))
    A(f"s_sub_u32 {sT2}, {sC_}, 16"); A(f"v_lshl_add_u32 v87, v81, 1, {sT2}")
    A(f"v_lshl_add_u32 {v(vEF)}, v87, 9, v86"); A(f"v_add_u32 {v(vEF+1)}, 512, {v(vEF)}")
    A(lambda: (I("v_cmp_le_i32 vcc, 0, v87"), I(f"v_cndmask_b32 {v(vEF)}, v90, {v(vEF)}, vcc"), I(f"v_cndmask_b32 {v(vEX)}, 0, -1, vcc")))
    A(lambda: (I("v_cmp_le_i32 vcc, -1, v87"), I(f"v_cndmask_b32 {v(vEF+1)}, v90, {v(vEF+1)}, vcc"), I(f"v_cndmask_b32 {v(vEX+1)}, 0, -1, vcc")))
    A(f"s_mul_i32 {sT0}, {sW_}, 2608"); A(f"s_add_u32 {sT0}, {sT0}, {HS}")
    A("v_mul_u32_u24 v86, 336, v82"); A("v_lshl_add_u32 v86, v81, 5, v86"); A(f"v_add_u32 {v(vHSW)}, {sT0}, v86")
    A(f"v_bfe_u32 v86, {vLANE}, 2, 2"); A("v_mul_u32_u24 v86, 336, v86"); A(f"v_and_b32 v87, 32, {vLANE}"); A("v_lshl_add_u32 v86, v87, 1, v86")
    A(f"v_and_b32 v87, 1, {vLANE}"); A("v_lshl_add_u32 v86, v87, 5, v86"); A(f"v_and_b32 v87, 16, {vLANE}"); A("v_add_u32 v86, v86, v87")
    A(f"v_and_b32 v87, 2, {vLANE}"); A("v_lshl_add_u32 v86, v87, 2, v86"); A(f"v_add_u32 {v(vHSR)}, {sT0}, v86")
    A(f"s_mul_i32 {sT0}, {sC_}, {4*152}"); A(f"s_lshr_b32 {sT2}, {sG_}, 1"); A(f"s_lshl3_add_u32 {sT0}, {sT2}, {sT0}"); A(f"s_and_b32 {sT2}, {sG_}, 1")
    A(f"s_lshl1_add_u32 {sT0}, {sT2}, {sT0}"); A(f"s_lshl_b32 {sT0}, {sT0}, 10"); A(f"s_lshl_b32 {sT2}, {sW_}, 9"); A(f"s_add_u32 {sT0}, {sT0}, {sT2}")
    A(f"v_lshrrev_b32 v86, 5, {vLANE}"); A(f"v_mul_u32_u24 v86, {152*1024}, v86"); A(f"v_and_b32 v87, 31, {vLANE}"); A("v_lshl_add_u32 v86, v87, 4, v86"); A(f"v_add_u32 {v(vHSTo)}, {sT0}, v86")
    LOG2E = "0x3fb8aa3b"
    A(lambda: E.wait(vm="par"))
    o += ["v_lshlrev_b32 v70, 16, v70", "v_lshlrev_b32 v71, 16, v71", "v_lshlrev_b32 v72, 16, v72",
          f"v_mul_f32 v70, {LOG2E}, v70", "v_exp_f32 v70, v70", "v_mul_f32 v74, v71, v71"] + bf16r_ops(70, 70)
    o += ["v_mul_f32 v75, v70, v71", "v_mul_f32 v76, v70, v72", f"v_mul_f32 v75, {LOG2E}, v75", "v_exp_f32 v75, v75",
          "v_mul_f32 v76, 0.15915494, v76", "v_rndne_f32 v77, v76", "v_sub_f32 v76, v76, v77", "v_cos_f32 v77, v76", "v_sin_f32 v78, v76",
          "v_fmac_f32 v74, v72, v72", f"v_mul_f32 {v(vLR)}, v75, v77", "v_mul_f32 v78, v75, v78", "v_rcp_f32 v74, v74",
          f"v_add_f32 v77, -1.0, {v(vLR)}", "v_add_f32 v74, v74, v74",
          f"v_mul_f32 {v(vCR)}, v77, v71", f"v_fmac_f32 {v(vCR)}, v78, v72", f"v_mul_f32 {v(vCR)}, {v(vCR)}, v74",
          f"v_mul_f32 {v(vCR+1)}, v77, v72", f"v_fma_f32 {v(vCR+1)}, -v78, v71, {v(vCR+1)}", f"v_mul_f32 {v(vCR+1)}, {v(vCR+1)}, v74",
          f"v_sub_f32 {v(vLR+1)}, 0, v78"]
    o += csq_ops(70, vLR, 78) + csq_ops(72, 70, 78) + csq_ops(70, 72, 78) + csq_ops(vL16, 70, 78)
    o += csq_ops(70, vL16, 78) + csq_ops(72, 70, 78) + csq_ops(vL128, 72, 78) + csq_ops(vL256, vL128, 78)
    o += [f"v_mov_b32 {v(vPQ)}, {v(vCR)}", f"v_mov_b32 {v(vPQ+1)}, {v(vCR+1)}"]
    for bit, L in ((8, vL16), (16, 70), (32, 72)):
        o += [f"v_and_b32 v74, {bit}, {vLANE}", lambda L=L: (I("v_cmp_ne_u32 vcc, 0, v74"), I(f"v_cndmask_b32 v76, 1.0, {v(L)}, vcc"), I(f"v_cndmask_b32 v77, 0, {v(L+1)}, vcc"))]
        o += cmul_ops(vPQ, vPQ, 76, 78)
    def factor(F, Ls):
        r = []
        for n, (bit, L) in enumerate(zip((8, 16, 32), Ls)):
            d = F if n == 0 else 76
            r += [f"v_and_b32 v74, {bit}, {vLANE}", lambda L=L, d=d: (I("v_cmp_eq_u32 vcc, 0, v74"), I(f"v_cndmask_b32 {v(d)}, 1.0, {v(L)}, vcc"), I(f"v_cndmask_b32 {v(d+1)}, 0, {v(L+1)}, vcc"))]
            if n: r += cmul_ops(F, F, 76, 78)
        return r
    o += factor(vF16, (vL16, 70, 72))
    o += csq_ops(70, vL256, 78) + csq_ops(72, 70, 78) + factor(vF256, (vL256, 70, 72))
    return o
def allsum(a_, b_, t):
    o = [f"v_add_f32_dpp {v(t)}, {v(a_)}, {v(a_)} row_ror:8 row_mask:0xf bank_mask:0xf", f"v_add_f32_dpp {v(t+1)}, {v(b_)}, {v(b_)} row_ror:8 row_mask:0xf bank_mask:0xf",
         f"v_mov_b32 {v(a_)}, {v(t)}", f"v_mov_b32 {v(b_)}, {v(t+1)}",
         f"v_permlane16_swap_b32 {v(a_)}, {v(t)}", f"v_permlane16_swap_b32 {v(b_)}, {v(t+1)}",
         f"v_add_f32 {v(a_)}, {v(a_)}, {v(t)}", f"v_add_f32 {v(b_)}, {v(b_)}, {v(t+1)}",
         f"v_mov_b32 {v(t)}, {v(a_)}", f"v_mov_b32 {v(t+1)}, {v(b_)}",
         f"v_permlane32_swap_b32 {v(a_)}, {v(t)}", f"v_permlane32_swap_b32 {v(b_)}, {v(t+1)}",
         f"v_add_f32 {v(a_)}, {v(a_)}, {v(t)}", f"v_add_f32 {v(b_)}, {v(b_)}, {v(t+1)}"]
    return o
def cmul4(d, x, y):
    return [f"v_mul_f32 {v(d[0])}, {v(x[0])}, {v(y)}", f"v_mul_f32 {v(d[1])}, {v(x[0])}, {v(y+1)}",
            f"v_fma_f32 {v(d[0])}, -{v(x[1])}, {v(y+1)}, {v(d[0])}", f"v_fmac_f32 {v(d[1])}, {v(x[1])}, {v(y)}"]
def ssm1():
    o = []
    def rdd(j, comp): DS(f"ds_read_b128 {v((TI if comp else TR) + 4*j, 4)}, {v(vDB+j)} offset:{DUMPS[comp] - DUMPS[1]}", f"dr{j}"); note_read(f"DUMP{comp}")
    for j in range(4):
        o += [lambda j=j: DS(f"ds_read_b128 {v(RT + 4*j, 4)}, {v(vTAB)} offset:{16*j}", f"dr{j}"), lambda j=j: rdd(j, 0), lambda j=j: rdd(j, 1)]
    cur, nx = (vE, vE + 1), (vE2, vE2 + 1)
    for r in range(16):
        if r % 4 == 0: o.append(lambda j=r >> 2: E.wait(lg=f"dr{j}"))
        o += [f"v_mul_f32 {v(TR+r)}, {v(TR+r)}, {v(RT+r)}", f"v_mul_f32_e64 {v(TI+r)}, -{v(TI+r)}, {v(RT+r)}"]
        if r == 0: src = (TR, TI)
        else:
            o += cfma_ops(nx, vLR, src, TR + r, TI + r); src = nx; cur, nx = nx, cur
    assert src == (vE2, vE2 + 1)
    o += cmul4((60, 62), src, vF16) + allsum(60, 62, 64)
    o.append(lambda: (VM(f"buffer_store_dwordx4 v[60:63], {v(vEST)}, {SWS}, 0 offen sc1", "est"), lstamp("epub")))
    return o
def window():
    o = [lambda: DS(f"ds_write_b64 {v(vEQA)}, {v(vE2,2)} offset:{7*64}", "eqw")]
    o += [lambda i=i: DS(f"ds_read_b64 {v(TMP+2*i,2)}, {v(vEQA)} offset:{64*i}", "eq") for i in range(7)]
    for r in range(16):
        o += [f"v_mul_f32 v72, {v(vCR+1)}, {v(TI+r)}", f"v_mul_f32 {v(TI+r)}, {v(vCR)}, {v(TI+r)}",
              f"v_fmac_f32 {v(TI+r)}, {v(vCR+1)}, {v(TR+r)}", f"v_fma_f32 {v(TR+r)}, {v(vCR)}, {v(TR+r)}, -v72"]
    o.append(lambda: E.wait(lg="eq"))
    src = (TMP, TMP + 1); pp = [(vE2, vE2 + 1), (vE, vE + 1)]
    for i in range(1, 7):
        d = pp[i & 1]; o += cfma_ops(d, vL16, src, TMP + 2*i, TMP + 2*i + 1); src = d
    return o + cmul4((vP, vP + 1), src, vCR)
def efetch_issue():
    VM(f"buffer_load_dwordx4 v[64:67], {v(vEF)}, {SWS}, 0 offen sc1", "ef"); VM(f"buffer_load_dwordx4 v[68:71], {v(vEF+1)}, {SWS}, 0 offen sc1", "ef")
def ssm3():
    chk = [f"v_xor_b32 v72, v65, {v(vEX)}", f"v_xor_b32 v73, v67, {v(vEX)}", f"v_xor_b32 v74, v69, {v(vEX+1)}", "v_or3_b32 v72, v72, v73, v74",
           f"v_xor_b32 v73, v71, {v(vEX+1)}", "v_or_b32 v72, v72, v73", "v_cmp_ne_u32 vcc, 0, v72"]
    def check():
        E.wait(vm="ef")
        for c in chk: I(c)
        I("s_cbranch_vccnz L_slow_e"); E.label("L_back_e"); lstamp("eok")
        slow.extend(["L_slow_e:", f"  buffer_load_dwordx4 v[64:67], {v(vEF)}, {SWS}, 0 offen sc1", f"  buffer_load_dwordx4 v[68:71], {v(vEF+1)}, {SWS}, 0 offen sc1",
                     "  s_waitcnt vmcnt(0)"] + ["  " + c for c in chk] + spin_guard("L_back_e", 0x100) + ["  s_cbranch_vccnz L_slow_e", "  s_branch L_back_e"])
    o = [check] + cfma_ops((vE, vE + 1), vL128, (64, 66), 68, 70)
    o += cmul4((vE2, vE2 + 1), (vE, vE + 1), vF256) + allsum(vE2, vE2 + 1, 72)
    src = (vE2, vE2 + 1)
    o += cfma_ops((vE, vE + 1), vPQ, src, vP, vP + 1)
    src = (vE, vE + 1)
    for r in range(16):
        d = (TR + r, TI + r); o += cfma_ops(d, vLR, src, d[0], d[1]); src = d
        if r & 1: o += [f"v_cvt_pk_bf16_f32 {v(TMP + (r>>1))}, {v(TR+r-1)}, {v(TR+r)}", f"v_cvt_pk_bf16_f32 {v(TMP + 8 + (r>>1))}, {v(TI+r-1)}, {v(TI+r)}"]
    for comp in range(2):
        o += [lambda j=j, comp=comp: DS(f"ds_write_b128 {v(vHSW)}, {v(TMP + 8*comp + 4*j, 4)} offset:{16*j}", "hsw") for j in range(2)]
        for i in range(2):
            for ph in range(2):
                def rd(i=i, ph=ph, comp=comp):
                    DS(f"ds_read_b64_tr_b16 {v(RT + 8*comp + 4*i + 2*ph, 2)}, {v(vHSR)} offset:{4*ph*336 + 128*i}", f"hr{comp}{i}"); note_read("HS")
                o.append(rd)
    for comp in range(2):
        for i in range(2):
            def st(i=i, comp=comp):
                I(f"s_mov_b32 {sT0}, {2*i*152*1024 + comp*4096}"); E.wait(lg=f"hr{comp}{i}")
                VM(f"buffer_store_dwordx4 {v(RT + 8*comp + 4*i, 4)}, {v(vHSTo)}, {SWS}, {sT0} offen sc1", "hst")
            o.append(st)
    o.append(lambda: lstamp("hst"))
    return o
work = []
def pop_work(n):
    while n > 0 and work: runall([work.pop(0)]); n -= 1
def between(n=8): return lambda: pop_work(n)
live.append(items["OFT"])
I(f"v_and_b32 {v(vQR)}, 3, {vLANE}"); I(f"v_lshlrev_b32 {v(vQR)}, 2, {v(vQR)}"); I(f"v_add_u32 {v(vQR)}, {PRG}, {v(vQR)}"); I(f"v_mov_b32 {v(vQV)}, 0")
for off in (0, 16, 32): DS(f"ds_write_b32 {v(vQR)}, {v(vQV)} offset:{off}", "prz")
I(f"s_lshl_b32 {sT0}, {sW_}, 2"); I(f"s_add_u32 {sT0}, {sT0}, {PRG}"); I(f"v_mov_b32 {v(vQW)}, {sT0}")
E.wait(lg="prz"); issue("S2"); issue("S3"); warm(); E.barrier(); lstamp("b0")
def hchk(word, st):
    off = {"PC": 0, "PD": 32}[word]; val = PCV[st] if word == "PC" else st
    chk_spin(val, vQR, vQT, off)
    em, lg = signals[(word, val)]; known[id(em)] = max(known[id(em)], lg)
published = [0]
def pub(ch):
    assert PHV[ch] > published[0]
    E.wait(vm=[n for c in CHUNKS[published[0]:PHV[ch]] for n in chunk_items(c)]); signal("PH", PHV[ch], vQW, vQV, 16); published[0] = PHV[ch]
def auto_pub(lead):
    best = None
    for c in CHUNKS[published[0]:]:
        if all(n in E.vm and done_issue.get(n) and len(E.vm) - E.last(E.vm, n) >= lead for n in chunk_items(c)): best = c
        else: break
    if best: pub(best)
for n in ("S4", "S5", "S6", "S7"): issue(n)
I("v_mov_b32 v91, 0"); VM(f"buffer_load_dword {v(vPOLL)}, v91, {SDBG}, 0 offen sc1", "tag")
pub("S2")
setup1()
I(f"s_lshl_b32 {sT0}, {sW_}, 11"); I(f"s_add_u32 {sT0}, {sT0}, {HS}"); I(f"v_lshl_add_u32 v86, {vLANE}, 4, {sT0}")
DS("ds_write_b128 v86, v[4:7]", "oft"); DS("ds_write_b128 v86, v[8:11] offset:1024", "oft"); E.wait(lg="oft")
pub("S6")
w2 = setup2(); runall(w2[:OPT["w2a"]])
hchk("PC", "X"); lstamp("xd")
issue("G0"); runall(w2[OPT["w2a"]:OPT["w2b"]]); issue("G1"); runall(w2[OPT["w2b"]:])
tag_check("H", vPOLL, 88)
runall([f"v_mov_b32 v61, {sNON}", f"v_mov_b32 v63, {sNON}", f"v_and_b32 {v(vEX)}, {sNON}, {v(vEX)}", f"v_and_b32 {v(vEX+1)}, {sNON}, {v(vEX+1)}", f"v_and_b32 {v(vFLX)}, {sNON}, {v(vFLX)}",
        f"v_lshl_add_u32 {v(vUP)}, {vLANE}, 4, {sM4}"])
hchk("PC", "S5"); hplace("DUMP0"); hplace("DUMP1"); pub("G0")
issue("G2"); pub("G1"); issue("G3")
I(f"v_and_b32 v86, 31, {vLANE}"); I(f"s_and_b32 {sT1}, {sW_}, 1"); I(f"s_lshl1_add_u32 {sT0}, {sGL}, {sT1}"); I(f"s_lshl_b32 {sT0}, {sT0}, 15")
I(f"v_mov_b32 v87, {sK[0]}"); I(f"v_mov_b32 v88, {sK[1]}"); I(f"v_cmp_lt_u32 vcc, 31, {vLANE}"); I("v_cndmask_b32 v87, v87, v88, vcc"); I("v_lshl_add_u32 v86, v86, 10, v87")
VM(f"buffer_load_dword v95, v86, {SC}, {sT0} offen", "ct")
if OPT["nwt"]:
    n_ = OPT["nwt"]
    I(f"s_lshl_b32 {sT0}, {sQW}, 7"); I(f"s_mul_i32 {sT1}, {sW_}, {32*n_}"); I(f"s_add_u32 {sT0}, {sT0}, {sT1}"); I(f"s_lshl_b32 {sT1}, {sGL}, 7")
    for k in range(0, 32*n_, 64):
        I(f"v_min_u32 v86, {min(63, 32*n_ - k - 1)}, {vLANE}"); I(f"v_add3_u32 v86, v86, {k}, {sT0}"); I("v_subrev_u32 v87, 1408, v86"); I("v_min_u32 v86, v86, v87"); I("v_lshlrev_b32 v86, 10, v86")
        VM(f"buffer_load_dword v95, v86, {SWD}, {sT1} offen", "ct")
I(f"s_setprio {OPT['pb']}")
hchk("PC", "dump"); lstamp("bD")
def pass2():
    t0 = OPT["bd"] + 2
    s1, wn, s3 = ssm1(), window(), ssm3()
    s1.insert(30, lambda: (E.wait(lg="dr3"), signal("PD", 1, vQW, vQV, 32)))
    ins = []
    def spread(name, ta, tb, pre=None):
        holder = {}
        n = 6 if name[0] == "G" else 4
        for k in range(n):
            def f(k=k):
                if k == 0:
                    if pre: hchk(*pre)
                    holder["ops"] = item_ops(name)
                holder["ops"][k]()
            ins.append((ta + (tb - ta) * k / n, f))
    ins.append((OPT["pg2"], lambda: pub("G2"))); ins.append((52, lambda: pub("G3")))
    ins.sort(key=lambda x: x[0])
    t = [float(t0)]
    def cyc(): return E.nvec * OPT["vc"] / 10.0 + (E.count + E.nops - E.nvec) * 4.0
    def adv(c0): t[0] += (cyc() - c0) / 33.0
    def run(ops):
        for op in ops:
            while ins and ins[0][0] <= t[0]:
                c0 = cyc(); ins.pop(0)[1](); adv(c0)
            c0 = cyc(); runall([op]); adv(c0)
    def idle_until(tt):
        while ins and ins[0][0] <= tt: t[0] = max(t[0], ins[0][0]); ins.pop(0)[1]()
        t[0] = max(t[0], tt)
    run(s1); tpub = t[0]
    k = 0
    while k < len(wn) and t[0] < tpub + OPT["efd"]: run([wn[k]]); k += 1
    efetch_issue(); lstamp("ef"); tf = t[0]
    run(wn[k:]); hchk("PC", "G1"); hplace("HS")
    tc = t[0]
    run(s3); ts = t[0]; assert not ins
    E.wait(vm="hst"); signal("PD", 2, vQW, vQV, 32); hchk("PD", 2); flag_send("s20"); lstamp("hflag")
    if OPT.get("log"): print(f"helper est: epub {tpub:.0f} efetch {tf:.0f} check {tc:.0f} stores {ts:.0f}", file=sys.stderr)
pass2()
issue("XE")
pub("KX")
for name, kn in cplaced:
    save = dict(known); known.update({id(EC): 0, id(EH): 0})
    for w_, val in kn:
        em, lg = signals[(w_, val)]; known[id(em)] = max(known[id(em)], lg)
    hplace(name); done_issue[name] = True; known.update(save)
if OPT["ep"]:
    hchk("PC", "G5"); I(f"s_sleep {OPT['ep']}")
    poll_issue("s20", "ph"); poll_check("s20", "ph", 0x10000); lstamp("okh"); pub("K0")
hchk("PC", "T"); lstamp("gT")
fetch = ["C6", "C7", "W0"]
def do_fetch(n):
    for _ in range(n):
        if fetch: issue(fetch.pop(0))
if not OPT["ep"]:
    poll_issue("s20", "ph"); do_fetch(2); poll_check("s20", "ph", 0x10000); lstamp("okh"); pub("K0")
else: do_fetch(2)
hchk("PC", "gst"); flag_send("s21")
gk = p3chunks.index(OPT_GG)
for k, ch in enumerate(p3chunks):
    if k == gk: poll_check("s21", "pg", 0x1000000); lstamp("okg")
    assert all(done_issue.get(n) for n in chunk_items(ch)), ch
    E.wait(vm=[n for n in chunk_items(ch) if n in E.vm]); E.barrier()
    known[id(EC)] = max(known[id(EC)], EC.barriers[k + 1][1])
    if k == gk - OPT["gp"]: poll_issue("s21", "pg")
    for n in P3PLAN[ch]:
        if n in RT_:
            assert done_issue.get(n), n
            unpark(n)
        else: issue(n)
    do_fetch(2 if k < 2 else 0)
assert known[id(EC)] >= items["W7"].last_read
if OPT.get("log"): print(P3PLAN, file=sys.stderr)
assert len(EH.barriers) == len(EC.barriers)
dump_stamps("H")
E.label("L_end"); I("s_endpgm")

hdr = open("cdna_kernels/" + NAME + ".s.ref").read().split("; Override launch geometry")[0]
out = hdr
if OPT["lst"]: out += "; cstamps: " + " ".join(lnames["C"]) + "\n; hstamps: " + " ".join(lnames["H"]) + f"\n; rt: {OPT['rt']}\n"
out += f"; @launch grid=(256,1,1) block=(512,1,1) lds={LDS_BYTES}\n"
out += f'.amdgcn_target "amdgcn-amd-amdhsa--gfx950"\n.text\n.globl {NAME}_kernel\n.p2align 8\n.type {NAME}_kernel,@function\n'
kc = next(k for k, l in enumerate(EC.lines) if "v_and_b32 v90, 31" in l)
out += E0.text() + "\n".join(EC.lines[:kc]) + "\n  s_branch L_cmain\n" + EH.text() + "L_cmain:\n" + "\n".join(EC.lines[kc:]) + "\n" + "\n".join(slow) + "\n"
out += f"L_pad:\n.fill (37120 - (L_pad - {NAME}_kernel)) / 4, 4, 0xbf810000\n"
out += f""".section .rodata,"a"
.p2align 6
.amdhsa_kernel {NAME}_kernel
  .amdhsa_next_free_vgpr 256
  .amdhsa_next_free_sgpr 102
  .amdhsa_accum_offset 256
  .amdhsa_group_segment_fixed_size 0
  .amdhsa_kernarg_size 128
  .amdhsa_user_sgpr_count 2
  .amdhsa_user_sgpr_kernarg_segment_ptr 1
  .amdhsa_system_sgpr_workgroup_id_x 1
.end_amdhsa_kernel
"""
open(sys.argv[1], "w").write(out)
print(f"compute {EC.count}+{EC.nops} helper {EH.count}+{EH.nops} barriers {len(bar_names)}: {' '.join(bar_names)}", file=sys.stderr)
```

```python
import sys
from emit import Emitter
NAME = "parallel_sum__ssm_conv_s5__glu_gated_bilinear__prompt"
OPT = dict(lst=0, rt=1, D=4, D2=7, D3=6, NU=2, gfd=40, prio=1, bd=15, ipc=85, slp=4, slq=0, dsp=3, efn=90, rot=8, lead=12, ge=0, gf=1, gg=5, gp=2, mw=0, ar=1, nr=8, bk=12, c34=1, f0=0, f2=1, pw=0, pd=2, nwt=0, a0=6, al=16, nb=60, gs=-1, tw=0, osc=1, d64=0, w2a=20, w2b=110, pb=0, c1=117, c45=1, u0s=158, xi=-1, pc=2, map=0, xj=1, nd=1, skw=0, gj=6, pjd=18, ea=0, pl=14, w1e=1, xw=1, ct=1, stg=0, x3=0, wr=4, pg2=21, ep=0, vc=85, efd=35, ecd=20)
for a_ in sys.argv[2:]:
    k_, v_ = a_.split("="); OPT[k_] = int(v_)

WS_EB = 0xA00000; WS_FH = 0xA40000; WS_FG = 0xA48000; WS_ST = 0xC00000; WS_FP = 0xA50000; WS_PB = 0x1000000; WS_SIZE = 0x1800000
U8 = 8192; MISC = 18 * U8
RTAB = MISC; EQ = MISC + 1024; HS = MISC + 5120; XE = MISC + 5120
DUMP = 0
PRG = MISC + 15872
LDS_BYTES = 163840
OOB = 0x80000000
sW_, sC_, sG_, sGL, sGH, sJ0 = "s3", "s4", "s5", "s6", "s7", "s8"
sT0, sT1, sT2, sT3 = "s9", "s10", "s11", "s12"
SX, SS, SG, SC, SWD, SWS, SOUT, SDBG = ("s[48:51]", "s[52:55]", "s[56:59]", "s[60:63]", "s[64:67]", "s[68:71]", "s[72:75]", "s[76:79]")
sK = [f"s{80+i}" for i in range(8)]
sM4, sM2, sM6 = "s88", "s89", "s94"
sQW, sQHG, sSO = "s95", "s96", "s100"
sNON, sC10, sC01, sC11 = "s90", "s91", "s92", "s93"
sSPIN = "s97"; sSP2 = "s99"; sCL = "s101"
sCW = "s98"; WMUL = {4: 3, 2: 6, 1: 0}[OPT["wr"]]
sRA = "s52"
def q_setup(): return [f"s_add_u32 {sQW}, {sGL}, {sCL}"]
def q_h(so, i): I(f"s_add_u32 {so}, {sQW}, {i}"); I(f"s_and_b32 {so}, {so}, 3"); I(f"s_lshl2_add_u32 {so}, {sGH}, {so}")
def q_u(so, i):
    if i < 4: q_h(so, i); I(f"s_cmp_eq_u32 {so}, 7"); I(f"s_cselect_b32 {so}, 11, {so}")
    else: I(f"s_add_u32 {so}, {sQW}, {i}"); I(f"s_and_b32 {so}, {so}, 1"); I(f"s_lshl1_add_u32 {so}, {sGH}, {so}"); I(f"s_add_u32 {so}, {so}, 7")
def w_soff(so, i, tmp):
    q_u(tmp, i); I(f"s_lshl2_add_u32 {tmp}, {tmp}, {sW_}"); I(f"s_mul_i32 {so}, {tmp}, 3")
    I(f"s_cmp_ge_u32 {tmp}, 15"); I(f"s_cselect_b32 {sRA}, 44, 0"); I(f"s_cmp_ge_u32 {tmp}, 30"); I(f"s_cselect_b32 {sRA}, 88, {sRA}")
    I(f"s_sub_u32 {so}, {so}, {sRA}"); I(f"s_lshl_b32 {so}, {so}, 15")
vLANE = "v1"
MF = "v_mfma_f32_32x32x16_bf16"
def v(n, k=1): return f"v{n}" if k == 1 else f"v[{n}:{n+k-1}]"

EC, EH, E0 = Emitter(), Emitter(), Emitter()
E = E0
def I(t): return E.I(t)
def VM(t, tag=None): return E.VM(t, tag)
def DS(t, tag=None): return E.DS(t, tag)
slow = []
lnames = {"C": [], "H": []}
def lstamp(name):
    who = "C" if E is EC else "H"
    if OPT["lst"] and name in LSET[who] and len(lnames[who]) < 12:
        k = 24 + 2 * len(lnames[who]); lnames[who].append(name); I(f"{'s_memrealtime' if OPT['rt'] else 's_memtime'} s[{k}:{k+1}]")
LSETS = {0: ([], []),
         1: (["X6", "X7", "S0", "G0", "G4", "T", "J0", "J4", "snd", "kp", "last", "end"], ["b0", "xd", "bD", "epub", "ef", "eok", "hst", "hflag", "okh", "gT", "okg", "end"]),
         2: (["S0", "S2", "S4", "S6", "G0", "G1", "G2", "G3", "G4", "G5", "G6", "T"], ["b0", "xd", "bD", "epub", "ef", "eok", "hst", "hflag", "okh", "gT", "okg", "end"]),
         3: (["T", "K0", "J0", "J2", "J4", "J7", "snd", "J10", "J13", "kp", "last", "end"], ["b0", "xd", "bD", "epub", "ef", "eok", "hst", "hflag", "okh", "gT", "okg", "end"])}
LSETS[9] = ([], LSETS[1][1])
LSET = dict(zip("CH", LSETS[OPT["lst"]]))
def runall(ops):
    for op in ops:
        if isinstance(op, str): I(op)
        else: op()
def csq_ops(d, x, t):
    return [f"v_mul_f32 {v(t)}, {v(x+1)}, {v(x+1)}", f"v_add_f32 {v(t+1)}, {v(x)}, {v(x)}", f"v_fma_f32 {v(d)}, {v(x)}, {v(x)}, -{v(t)}", f"v_mul_f32 {v(d+1)}, {v(t+1)}, {v(x+1)}"]
def cmul_ops(d, x, y, t):
    return [f"v_mul_f32 {v(t)}, {v(x)}, {v(y)}", f"v_mul_f32 {v(t+1)}, {v(x)}, {v(y+1)}",
            f"v_fma_f32 {v(t)}, -{v(x+1)}, {v(y+1)}, {v(t)}", f"v_fma_f32 {v(d+1)}, {v(x+1)}, {v(y)}, {v(t+1)}", f"v_mov_b32 {v(d)}, {v(t)}"]
def cfma_ops(d, L, x, br, bi):
    return [f"v_fma_f32 {v(d[0])}, {v(L)}, {v(x[0])}, {v(br)}", f"v_fma_f32 {v(d[1])}, {v(L)}, {v(x[1])}, {v(bi)}",
            f"v_fma_f32 {v(d[0])}, -{v(L+1)}, {v(x[1])}, {v(d[0])}", f"v_fma_f32 {v(d[1])}, {v(L+1)}, {v(x[0])}, {v(d[1])}"]
def bf16r_ops(d, s): return [f"v_cvt_pk_bf16_f32 {v(d)}, {v(s)}, {v(s)}", f"v_and_b32 {v(d)}, 0xffff0000, {v(d)}"]
def srd(dst, lo, size):
    n = int(dst[2:dst.index(":")])
    I(f"s_mov_b64 s[{n}:{n+1}], s[{lo}:{lo+1}]"); I(f"s_mov_b32 s{n+2}, {size}"); I(f"s_mov_b32 s{n+3}, 0x20000")
def srd_sel(dst, p0, p1, size):
    n = int(dst[2:dst.index(":")])
    I(f"s_cselect_b64 s[{n}:{n+1}], s[{p1}:{p1+1}], s[{p0}:{p0+1}]"); I(f"s_mov_b32 s{n+2}, {size}"); I(f"s_mov_b32 s{n+3}, 0x20000")
def ktab(i):
    I(f"s_add_u32 {sK[i]}, {sJ0}, {i}"); I(f"s_and_b32 {sK[i]}, {sK[i]}, 7"); I(f"s_lshl_b32 {sK[i]}, {sK[i]}, 7")
def spin_guard(lbl_back, inc):
    return ([f"  s_add_u32 s15, s15, {inc}" if inc >= 0 else f"  s_bitset1_b32 s15, {-inc}"] if OPT["lst"] else []) + [f"  s_add_u32 {sSPIN}, {sSPIN}, 1", f"  s_cmp_gt_u32 {sSPIN}, 0x400000", f"  s_cbranch_scc1 {lbl_back}"]
def tag_check(who, vp, vz):
    E.wait(vm="tag"); I(f"v_readfirstlane_b32 {sNON}, {v(vp)}"); I(f"s_cmp_eq_u32 {sNON}, 0"); I(f"s_cbranch_scc1 L_slow_tag{who}"); E.label(f"L_back_tag{who}")
    slow.extend([f"L_slow_tag{who}:", "  s_sleep 1", f"  v_mov_b32 {v(vz)}, 0", f"  buffer_load_dword {v(vp)}, {v(vz)}, {SDBG}, 0 offen sc1", "  s_waitcnt vmcnt(0)",
                 f"  v_readfirstlane_b32 {sNON}, {v(vp)}"] + spin_guard(f"L_back_tag{who}", 1) +
                [f"  s_cmp_eq_u32 {sNON}, 0", f"  s_cbranch_scc1 L_slow_tag{who}", f"  s_branch L_back_tag{who}"])
signals = {}
def signal(word, val, va, vt, off):
    signals[(word, val)] = (E, E.lg_done)
    I(f"v_mov_b32 {v(vt)}, {val}"); DS(f"ds_write_b32 {v(va)}, {v(vt)} offset:{off}", "sig")
nchk = [0]
def chk_issue(va, vt, off):
    nchk[0] += 1; DS(f"ds_read_b32 {v(vt)}, {v(va)} offset:{off}", f"chk{nchk[0]}"); return f"chk{nchk[0]}"
def chk_test(tag, val, va, vt, off, inc):
    E.wait(lg=tag)
    I(f"v_cmp_gt_u32 vcc, {val}, {v(vt)}"); I(f"s_cbranch_vccnz L_slow_{tag}"); E.label(f"L_back_{tag}")
    slow.extend([f"L_slow_{tag}:", f"  ds_read_b32 {v(vt)}, {v(va)} offset:{off}", "  s_waitcnt lgkmcnt(0)", f"  v_cmp_gt_u32 vcc, {val}, {v(vt)}"]
                + spin_guard(f"L_back_{tag}", inc) + [f"  s_cbranch_vccnz L_slow_{tag}", f"  s_branch L_back_{tag}"])
def chk_spin(val, va, vt, off):
    nchk[0] += 1; lbl = f"L_spin{nchk[0]}"
    E.label(lbl)
    DS(f"ds_read_b32 {v(vt)}, {v(va)} offset:{off}", lbl); I(f"s_sub_u32 {sSP2}, {sSP2}, 1"); I("s_cbranch_scc1 L_end")
    E.wait_all(lg=True)
    I(f"v_cmp_gt_u32 vcc, {val}, {v(vt)}"); I(f"s_cbranch_vccnz {lbl}")
def dump_stamps(who):
    if not OPT["lst"]: return
    E.wait_all(vm=True); lstamp("end"); E.wait_all(lg=True)
    n = len(lnames[who])
    for k in range(n): I(f"v_writelane_b32 v2, s{24+2*k}, {k}")
    I(f"v_writelane_b32 v2, {n}, 61"); I("v_writelane_b32 v2, s15, 60"); I("v_writelane_b32 v2, s14, 63")
    I(f"s_lshl3_add_u32 {sT0}, s2, {sW_}"); I(f"s_add_u32 {sT0}, {sT0}, {4 if who == 'H' else 0}"); I(f"s_lshl_b32 {sT0}, {sT0}, 8"); I(f"s_add_u32 {sT0}, {sT0}, {WS_ST}")
    I(f"v_lshlrev_b32 v3, 2, {vLANE}")
    VM(f"buffer_store_dword v2, v3, {SWS}, {sT0} offen")

NU = OPT["NU"]; assert NU == 2

BASE_OF = {}
for i in range(8): BASE_OF[f"X{i}"] = (2 * (i & 3) * U8, 16384)
for i, u in enumerate(range(8, 16)): BASE_OF[f"S{i}"] = (u * U8, 8192)
for i, u in enumerate([0, 3, 6, 9, 0, 3, 12, 15]): BASE_OF[f"G{i}"] = (u * U8, 24576)
DUMPS = [16 * U8, 12 * U8]
BASE_OF["DUMP0"] = (DUMPS[0], 16384); BASE_OF["DUMP1"] = (DUMPS[1], 16384); BASE_OF["XE"] = (XE, 8192); BASE_OF["HS"] = (HS, 10432); BASE_OF["OFT"] = (HS, 8192)
slot_of = {"C1": 3, "C2": 4, "C3": 5, "W1": 0, "W2": 1, "W3": 2, "C0": 6, "W0": 7, "W4": 8, "W5": 3}
RT_ = {"C0": 168, "W0": 184, "W4": 200}
ND = OPT["nd"]
CO = ["C1", "C2", "C3", "C0"]; WO = ["W1", "W2", "W3", "W0", "W4", "W5"]
SK = [["W1"], ["W1", "W4"], []][OPT["skw"]]
jobs = [(t, "sk") for t in CO[:4-ND]] + [(t, "s") for t in CO[4-ND:]] + [(t, "sk" if t in SK else "s") for t in WO] + [(t, "k") for t in WO if t not in SK] + [(t, "k") for t in CO[4-ND:]]
NJ1 = 10
def chunk_items(ch):
    i = ch[1:]
    if ch[0] == "S": return [f"S{i}", f"S{int(i)+1}"]
    return {"K": ["XE"] if ch == "KX" else [], "G": [f"G{i}"]}[ch[0]]
RED = slot_of["C2"] * 16384; assert ND <= 2
CHUNKS = ["S0", "S2", "S4", "S6"] + [f"G{i}" for i in range(4)] + ["KX", "K0", "Kp"]
PHV = {c: k + 1 for k, c in enumerate(CHUNKS)}
CEV = {"G0": 25, "G1": 49, "G2": 74, "G3": 99, "G4": 122, "G5": 145, "U0": OPT["u0s"]}
STAGES = ["Xi", "X", "S3", "S5", "dump"] + sorted(CEV, key=CEV.get) + ["T", "gsa", "gst", "pj"]
PCV = {c: k + 1 for k, c in enumerate(STAGES)}
for n, s in slot_of.items(): BASE_OF[n] = (s * 16384, 16384)

class Item: pass
items = {}
for n, (b, sz) in BASE_OF.items():
    it = Item(); it.name, it.base, it.size = n, b, sz; it.first_bar = None; it.last_read = None; it.reader = None; items[n] = it
bar_names = []
def note_read(name):
    it = items[name]
    if it.first_bar is None: it.first_bar = len(E.barriers)
    it.last_read = len(E.lg); it.last_bar = len(E.barriers); it.reader = E

E = E0
E.label(f"{NAME}_kernel")
I("s_cmp_ge_u32 s2, 256"); I("s_cbranch_scc1 L_end")
I("s_load_dwordx16 s[16:31], s[0:1], 0")
I("s_getpc_b64 s[98:99]"); I(f"s_bfe_u32 {sT0}, s2, 0x20003"); I("v_lshrrev_b32 v80, 3, v0"); I(f"v_lshl_add_u32 v80, v80, 2, {sT0}"); I("v_lshlrev_b32 v80, 7, v80")
VM("global_load_dword v95, v80, s[98:99]", "code")
I("s_load_dwordx16 s[32:47], s[0:1], 64")
I("s_memrealtime s[14:15]")
I("v_lshrrev_b32 v80, 6, v0"); I(f"v_and_b32 {vLANE}, 63, v0"); I(f"v_readfirstlane_b32 {sT3}, v80")
sR8 = "s19" if False else None
if OPT["map"] == 0:
    I(f"s_bfe_u32 {sT0}, s2, 0x20001"); I(f"s_lshr_b32 {sCL}, s2, 6"); I(f"s_lshl2_add_u32 {sC_}, {sT0}, {sCL}")
    I(f"s_bfe_u32 {sGL}, s2, 0x30003"); I(f"s_lshl1_add_u32 {sJ0}, {sCL}, {sGL}")
    I(f"s_and_b32 {sGH}, s2, 1"); I(f"s_lshl3_add_u32 {sG_}, {sGH}, {sGL}"); I(f"s_mov_b32 {sQW}, {sGL}")
    if OPT["xj"]: I(f"s_add_u32 {sJ0}, {sJ0}, {sT0}")
else:
    I(f"s_and_b32 {sT0}, s2, 1"); I(f"s_lshr_b32 {sQW}, s2, 5"); I(f"s_lshl3_add_u32 {sC_}, {sT0}, {sQW}")
    I(f"s_bfe_u32 {sCL}, s2, 0x20003"); I(f"s_bfe_u32 {sT0}, s2, 0x20001"); I(f"s_lshl2_add_u32 {sG_}, {sT0}, {sCL}")
    I(f"s_and_b32 {sGL}, {sG_}, 7"); I(f"s_lshr_b32 {sGH}, {sG_}, 3"); I(f"s_lshl1_add_u32 {sJ0}, {sCL}, {sQW}")
for i in range(2): ktab(i)
I(f"s_and_b32 {sW_}, {sT3}, 3"); I(f"s_lshl_b32 {sM4}, {sW_}, 12")
I(f"v_lshrrev_b32 v81, 3, {vLANE}"); I(f"v_and_b32 v82, 7, {vLANE}")
I("v_lshrrev_b32 v84, 1, v81"); I("v_xor_b32 v83, v82, v84"); I("v_lshlrev_b32 v83, 4, v83"); I("v_xor_b32 v85, 64, v83")
I(f"v_lshlrev_b32 v78, 2, {vLANE}"); I("v_mov_b32 v79, 0"); I(f"v_add_u32 v78, {PRG}, v78"); DS("ds_write_b32 v78, v79", "prz")
I(f"s_mov_b32 {sSP2}, 0x1000000"); I(f"s_and_b32 {sCW}, {sCL}, {3 if OPT['wr'] == 4 else 1}")
I(f"s_cmp_ge_u32 {sT3}, 4"); I("s_cbranch_scc1 L_helper")

E = EC
vP1 = [2, 3, 4, 5]; vGT = 6; vNM = 7; vR2 = 0
FB0, NFB = 8, 6
ACCG = [32, 64, 96]; ACCU = [48, 80, 112]; ACC_R, ACC_I = 96, 112
XF = 128
vXo = [86, 87, 88, 89]
def cbar(name, vm=(), lg=()):
    E.wait(vm=vm, lg=lg); E.barrier(); bar_names.append(name)
I("v_and_b32 v84, 4, v81"); I("v_and_b32 v80, 3, v81"); I("v_lshl_add_u32 v84, v84, 2, v80")
I(f"s_lshl2_add_u32 {sT0}, {sC_}, {sW_}"); I(f"s_lshl_b32 {sT0}, {sT0}, 5")
I(f"v_add_lshl_u32 v84, v84, {sT0}, 10")
I(f"v_add_u32 {v(vXo[0])}, v84, v83"); I(f"v_add_u32 {v(vXo[1])}, v84, v85")
I(f"v_add_u32 {v(vXo[2])}, 6144, {v(vXo[0])}"); I(f"v_add_u32 {v(vXo[3])}, 9216, {v(vXo[1])}"); I(f"v_add_u32 {v(vXo[1])}, 3072, {v(vXo[1])}")
I("s_mov_b32 s50, 2097152"); I("s_mov_b32 s51, 0x20000")
E.wait_all(lg=True)
I("s_mov_b64 s[48:49], s[16:17]")
def X_issue(i):
    I(f"s_add_u32 m0, {sM4}, {items[f'X{i}'].base}")
    for q in range(4): VM(f"buffer_load_dwordx4 {v(vXo[q])}, {SX}, {sK[i]} offen" + (f" offset:{q*1024}" if q else "") + " lds", f"X{i}")
X_issue(0); X_issue(1)
if OPT["prio"] == 1: I("s_setprio 1")
for i in range(2, 8): ktab(i)
X_issue(2)
if OPT["x3"]: X_issue(3)
cbar("b0")
I(f"v_and_b32 v90, 31, {vLANE}"); I(f"v_lshrrev_b32 v91, 5, {vLANE}")
I("v_bfe_u32 v92, v90, 1, 3"); I("v_xor_b32 v92, v92, v91"); I("v_lshlrev_b32 v92, 4, v92"); I("v_lshl_add_u32 v92, v90, 7, v92")
I(f"v_add_u32 {v(vP1[0])}, {sM4}, v92")
for s in range(1, 4): I(f"v_xor_b32 {v(vP1[s])}, {32*s}, {v(vP1[0])}")
I(f"s_mov_b32 {sC11}, 0x3f803f80"); I(f"s_mov_b32 {sC10}, 0x00003f80"); I(f"s_mov_b32 {sC01}, 0x3f800000")
for r in range(64, 72): I(f"v_mov_b32 v{r}, 0")
srd(SWS, 46, WS_SIZE); srd(SOUT, 42, 4194304)
I(f"s_cmp_ge_u32 {sW_}, 2"); srd_sel(SG, 36, 38, 1409024); srd_sel(SC, 26, 28, 524288); I(f"s_mul_i32 {sM6}, {sW_}, 6144"); srd(SWD, 40, 1409024)
I(f"s_mov_b32 {sSPIN}, 0"); I("s_mov_b32 s15, 0"); I("s_mov_b64 s[22:23], s[32:33]"); I("s_mov_b64 s[20:21], s[40:41]")
I(f"v_bfe_u32 v92, {vLANE}, 2, 2"); I("v_lshl_add_u32 v92, v91, 3, v92"); I(f"v_mul_u32_u24 {v(vGT)}, 192, v92")
I(f"v_and_b32 v93, 16, {vLANE}"); I(f"v_lshl_add_u32 {v(vGT)}, v93, 1, {v(vGT)}")
I(f"v_and_b32 v93, 1, {vLANE}"); I(f"v_lshl_add_u32 {v(vGT)}, v93, 4, {v(vGT)}")
I(f"v_and_b32 v93, 2, {vLANE}"); I(f"v_lshl_add_u32 {v(vGT)}, v93, 2, {v(vGT)}")
I(f"s_lshl_b32 {sT0}, {sW_}, 7"); I(f"s_add_u32 {sT0}, {sT0}, {RTAB}")
I("v_bfe_u32 v93, v90, 2, 1"); I("v_lshlrev_b32 v94, 4, v93"); I("v_lshrrev_b32 v93, 3, v90"); I("v_lshl_add_u32 v94, v93, 2, v94")
I("v_and_b32 v93, 3, v90"); I("v_add_u32 v94, v94, v93"); I(f"v_lshl_add_u32 v94, v94, 2, {sT0}")
FR = dict(r=72, t=73, v=74, w=75)
I(f"v_and_b32 v72, 3, {vLANE}"); I("v_lshlrev_b32 v72, 2, v72"); I(f"v_add_u32 v72, {PRG}, v72")
I(f"s_lshl_b32 {sT0}, {sW_}, 2"); I(f"s_add_u32 {sT0}, {sT0}, {PRG}"); I(f"v_mov_b32 v75, {sT0}")
def csig(st): signal("PC", PCV[st], FR["w"], FR["v"], 0)
for i in range(8):
    it = items[f"X{i}"]
    E.wait(vm=it.name)
    for s in range(4):
        DS(f"ds_read_b128 {v(XF + 16*i + 4*s, 4)}, {v(vP1[s])} offset:{it.base & 0xffff}", f"xr{i}_{s}"); note_read(it.name)
    if not OPT["x3"] and i + 3 < 8: X_issue(i + 3)
    if OPT["x3"] and i + 4 < 8: E.wait(lg=f"xr{i}_3"); X_issue(i + 4)
    if i == OPT["xi"]: csig("Xi")
    if i == 4 and OPT["mw"]:
        I(f"s_cmp_eq_u32 {sW_}, 1"); I("s_cselect_b64 s[52:53], s[38:39], s[36:37]"); I(f"s_cmp_eq_u32 {sW_}, 2"); I("s_cselect_b64 s[52:53], s[40:41], s[52:53]")
        I(f"s_cmp_eq_u32 {sW_}, 3"); I("s_cselect_b64 s[52:53], s[26:27], s[52:53]"); I("s_mov_b32 s54, 1409024"); I("s_cselect_b32 s54, 524288, s54"); I("s_mov_b32 s55, 0x20000")
        I(f"s_cselect_b32 {sT0}, 16, 43"); I(f"s_mul_i32 {sT1}, s2, {sT0}"); I(f"s_sub_u32 {sT0}, {sT0}, 1"); I(f"v_min_u32 v76, {sT0}, {vLANE}"); I(f"v_add_lshl_u32 v76, v76, {sT1}, 7")
        VM("buffer_load_dword v77, v76, s[52:55], 0 offen", "mw")
        I("s_mov_b64 s[52:53], s[28:29]"); I(f"s_cmp_eq_u32 {sW_}, 3"); I("s_cselect_b32 s54, 524288, 0")
        VM("buffer_load_dword v77, v76, s[52:55], 0 offen", "mw")
    for s in range(4):
        E.wait(lg=f"xr{i}_{s}")
        for d in range(4):
            x = v(XF + 16*i + 4*s + d)
            I(f"v_dot2c_f32_bf16 v{64+d}, {sC11}, {x}"); I(f"v_dot2c_f32_bf16 v{68+d}, {x}, {x}")
    lstamp(f"X{i}")
csig("X"); gchk = {"S0": chk_issue(FR["r"], FR["t"], 16)}
I("v_add_f32 v64, v64, v65"); I("v_add_f32 v66, v66, v67"); I("v_add_f32 v68, v68, v69")
I("v_add_f32 v64, v64, v66"); I("v_add_f32 v70, v70, v71"); I("v_mov_b32 v65, v64"); I("v_add_f32 v68, v68, v70"); I("v_mov_b32 v69, v68")
I("v_permlane32_swap_b32 v64, v65"); I("v_permlane32_swap_b32 v68, v69")
I("v_add_f32 v64, v64, v65"); I("v_mul_f32 v64, 0x3b000000, v64")
runall(bf16r_ops(65, 64)); I(f"v_sub_f32 {v(vNM)}, 0, v65")
I(f"s_sub_u32 {sT0}, 65536, {sM4}")
for s in range(4): I(f"v_add_u32 {v(vP1[s])}, {sT0}, {v(vP1[s])}")
win = {"p1": 65536, "c1": 0, "gt": 0, "lin": 0, "wt": 0}
def burst(i):
    for d in range(16):
        x = v(XF + 16*i + d)
        I(f"v_dot2_f32_bf16 v{32+2*d}, {x}, {sC10}, {v(vNM)}"); I(f"v_dot2_f32_bf16 v{33+2*d}, {x}, {sC01}, {v(vNM)}")
qC, qB = [], []
marks = set()
def run_op(op):
    if isinstance(op, tuple):
        if op[0] == "hold": holdq[0] = op[1]
        else: marks.add(op[1])
    elif isinstance(op, str): I(op)
    else: op()
def need_mark(m):
    while m not in marks:
        q = next(q for q in (qC, qB) if ("mark", m) in [o for o in q if isinstance(o, tuple)])
        run_op(q.pop(0))
def cvt_ops(i):
    ops = []
    for d in range(16):
        ops.append(f"v_cvt_pk_bf16_f32 {v(XF + 16*i + d)}, v{32+2*d}, v{33+2*d}")
        if d & 3 == 3: ops.append(("mark", f"cen{4*i + (d>>2)}"))
    return ops
B = ["v_add_f32 v68, v68, v69", "v_mul_f32 v68, 0x3b000000, v68", "v_fma_f32 v68, -v64, v64, v68", "v_max_f32 v68, 0, v68"]
B += bf16r_ops(68, 68) + ["v_add_f32 v68, 0x3727c5ac, v68"] + bf16r_ops(68, 68) + ["v_sqrt_f32 v68, v68", lambda: DS("ds_write_b32 v94, v65 offset:512", "tabw")]
B += bf16r_ops(68, 68) + ["v_rcp_f32 v68, v68", lambda: DS("ds_write_b32 v94, v68", "tabw"), f"v_mul_f32 {v(vR2)}, v68, v68", ("mark", "tab")]
qB.extend(B)

class Slot: pass
slots = []
def add_slot(chunk, reads, mfma, needs=()):
    s = Slot(); s.chunk, s.reads, s.mfma, s.needs = chunk, reads, mfma, needs; slots.append(s)
for i in range(8):
    for s in range(4):
        f = 4*i + s
        for comp in range(2):
            acc = v(ACC_I if comp else ACC_R, 16)
            add_slot(f"S{i}", [("p1", f"S{i}", s, comp * 4096)], lambda b, f=f, acc=acc: f"{MF} {acc}, {v(XF+4*f,4)}, {v(b[0],4)}, {acc if f else 0}", needs=[f"cen{f}"])
P2 = len(slots)
order = [(0, s, u, m) for s in range(4) for u in range(2) for m in range(2)] + [(0, s, 2, m) for s in range(4) for m in range(2)]
order += [(i, s, u, m) for i in range(1, 8 - NU) for s in range(4) for u in range(3) for m in range(2)]
order += [(i, s, u, m) for u in range(3) for i in range(8 - NU, 8) for s in range(4) for m in range(2)]
unit_done = {}
for (i, s, u, m) in order:
    f = 4*i + s; acc = v((ACCU if m else ACCG)[u], 16)
    nd = (["tab"] if f == 0 else []) + (["dumped"] if (f, u) == (0, 2) else [])
    add_slot(f"G{i}", [("gt", f"G{i}", m * 12288 + 16*s*192 + 64*u)], lambda b, f=f, acc=acc: f"{MF} {acc}, {v(b[0],4)}, {v(XF+4*f,4)}, {acc if f else 0}", needs=nd)
    unit_done[u] = len(slots) - 1
P3 = len(slots)
ACC3 = 32; BASE = 48
vHST = 138; vDSK = 140; vHR, vWT, vXR, vTAB3, vOUT = 128, 129, 130, 131, 132
sHG = ["s16", "s17", "s18"]
EPO = 144; vC1 = [134, 135, 136, 137]; vC2 = [2, 3, 4, 5]
cGo = [128, 129, 130]; cCo = [132, 133, 134, 135]
ACC4 = 48; ACCS = [64, 80]
AQ = list(range(172, 256, 4)) + list(range(108, 128, 4))
BASE = 144; PX = 108
P3BUFS = list(range(8, 32, 4)) + [96, 100, 104]
vA = 139; vWT2 = 133; vA2 = 7; vPB = 0
aloads = []; started = set()
for n, (t, hv) in enumerate(jobs):
    if n == NJ1: P4 = len(slots)
    for s in range(4):
        idx = {}
        for h_ in hv: idx[h_] = len(aloads); aloads.append((f"a{len(aloads)}", AQ[len(aloads) % len(AQ)], t, s, h_, s == 0 and h_ == hv[0]))
        for a_ in range(2):
            rd = ("c1", t, s, a_) if t[0] == "C" else ("wt", t, 16*s*128, a_)
            for k_, h_ in enumerate(hv):
                r_ = ([ACC3, ACC4] if h_ == "k" else ACCS)[a_]; acc = v(r_, 16)
                z = r_ not in started; started.add(r_)
                tag, q = aloads[idx[h_]][:2]
                add_slot(f"J{n}", [rd] if k_ == 0 else [], lambda b, q=q, acc=acc, z=z: f"{MF} {acc}, {v(q,4)}, {v(b[0],4)}, {0 if z else acc}")
                slots[-1].atag = tag; slots[-1].arel = idx[h_] + 1 if a_ == 1 else None
M = len(slots)
first_slot = {}
for m, s in enumerate(slots): first_slot.setdefault(s.chunk, m)
pool = [FB0 + 4*k for k in range(NFB)]
def newfb(): return pool.pop(0)
def set_win(kind, regs, base, span):
    cur = win[kind]
    if not (cur <= base and base + span <= cur + 65536):
        new = min((base // 49152) * 49152, MISC - 65536)
        if not (new <= base and base + span <= new + 65536): new = base
        for r in regs: I(f"v_add_u32 {v(r)}, {(new - cur) & 0xffffffff}, {v(r)}")
        win[kind] = cur = new
    return cur
def emit_reads(m):
    s = slots[m]; s.bufs = []; s.tags = []; s.own = bool(s.reads)
    if not s.reads: s.bufs = slots[m-1].bufs
    for rd in s.reads:
        b = newfb(); s.bufs.append(b); tag = f"rd{m}_{rd[0]}"; s.tags.append(tag)
        kind, it = rd[0], items[rd[1]]
        if kind == "p1":
            w = set_win(kind, vP1, it.base, it.size); DS(f"ds_read_b128 {v(b,4)}, {v(vP1[rd[2]])} offset:{it.base - w + rd[3]}", tag)
        elif kind == "c1":
            w = set_win(kind, vC1 + vC2, it.base, it.size); DS(f"ds_read_b128 {v(b,4)}, {v((vC2 if rd[3] else vC1)[rd[2]])} offset:{it.base - w}", tag)
        else:
            regs, pitch = ([vGT], 192) if kind == "gt" else ([vWT, vWT2], 128)
            reg = regs[rd[3]] if kind == "wt" else vGT
            w = set_win(kind, regs, it.base, it.size)
            DS(f"ds_read_b64_tr_b16 {v(b,2)}, {v(reg)} offset:{it.base - w + rd[2]}", tag)
            DS(f"ds_read_b64_tr_b16 {v(b+2,2)}, {v(reg)} offset:{it.base - w + rd[2] + 4*pitch}", tag)
        note_read(it.name)
events = {}
def at(m, fn): events.setdefault(m, []).append(fn)
post = {8*i + 7: (lambda i=i: (need_mark(f"cen{4*i+7}"), burst(i + 2), qC.extend(cvt_ops(i + 2)))) for i in range(6)}
at(52, lambda: qB.extend([f"v_lshlrev_b32 {v(vNM)}, 6, {vLANE}", f"v_bfe_u32 v64, {vLANE}, 1, 2", f"v_lshl_add_u32 {v(vNM)}, v64, 4, {v(vNM)}",
                          f"v_add_u32 {v(vNM)}, {sM4}, {v(vNM)}", f"v_add_u32 {v(vNM)}, {DUMPS[1]}, {v(vNM)}", ("mark", "dadr")]))
dtag = {}
at(P2 - 1, lambda: dtag.__setitem__(0, chk_issue(FR["r"], FR["t"], 0)))
def dump_op(j, comp):
    need_mark("dadr")
    if (j, comp) == (0, 1): chk_test(dtag[0], PCV["S5"], FR["r"], FR["t"], 0, -12)
    if j and comp == 0: I(f"v_xor_b32 {v(vNM)}, {16 * (j ^ (j - 1))}, {v(vNM)}")
    DS(f"ds_write_b128 {v(vNM)}, {v((ACC_I if comp else ACC_R) + 4*j, 4)} offset:{DUMPS[comp] - DUMPS[1]}", "dump")
    if (j, comp) == (3, 1): marks.add("dumped")
def dump64(j, comp, hf):
    need_mark("dadr")
    if j and comp == 0 and hf == 0: I(f"v_xor_b32 {v(vNM)}, {16 * (j ^ (j - 1))}, {v(vNM)}")
    if comp == 0 and hf == 0: I(f"v_add_u32 {v(vP1[1])}, {DUMPS[0]}, {v(vNM)}")
    DS(f"ds_write_b64 {v(vNM if comp else vP1[1])}, {v((ACC_I if comp else ACC_R) + 4*j + 2*hf, 2)} offset:{8*hf}", "dump")
    if (j, comp, hf) == (3, 1, 1): marks.add("dumped")
if OPT["d64"]:
    for k in range(16): at(P2 + (k * 15) // 16, lambda k=k: dump64(k >> 2, (k >> 1) & 1, k & 1))
else:
    for k in range(8): at(P2 + 1 + (k * OPT["dsp"]) // 2, lambda k=k: dump_op(k >> 1, k & 1))
def fr_move():
    I(f"v_mov_b32 {v(vP1[0])}, v72"); I(f"v_mov_b32 {v(vP1[3])}, v75"); FR.update(r=vP1[0], t=vP1[1], v=vP1[2], w=vP1[3])
at(P2 - 2, fr_move)
if OPT["mw"]: at(P2 - 3, lambda: E.wait(vm="mw"))
at(31, lambda: csig("S3")); at(47, lambda: csig("S5"))
at(P2 + OPT["bd"], lambda: (need_mark("dumped"), E.wait(lg=["dump", "tabw"]), csig("dump")))
LAND = {"G2": ["G4"], "G3": ["G5", "G6"], "G4": ["G7"]}
for st, sl in CEV.items(): at(P2 + sl, lambda st=st: (E.wait(vm=LAND.get(st, []), lg=["cof2"] if st == "G1" else []), csig(st)))
GATE = {c: (16, PHV[c]) for c in CHUNKS[:8]}
GATE["S0"] = (16, PHV["S2"]); GATE["S4"] = (16, PHV["S6"])
GATE.update({"G4": (0, PCV["G2"]), "G5": (0, PCV["G3"]), "G6": (0, PCV["G4"])})
del GATE["S2"], GATE["S6"]
for c in list(GATE)[1:]: at(first_slot[c] - OPT["D"] - 6, lambda c=c: gchk.__setitem__(c, chk_issue(FR["r"], FR["t"], GATE[c][0])))
cplaced = []
cWo = [168, 169, 170, 171]
def c_offsets():
    I(f"s_lshl_b32 {sT0}, {sW_}, 11"); I(f"s_add_u32 {sT0}, {sT0}, {HS}"); I(f"v_lshl_add_u32 v136, {vLANE}, 4, {sT0}")
    DS("ds_read_b128 v[128:131], v136", "cof"); note_read("OFT")
at(P2 + 24, c_offsets)
at(P2 + 45, lambda: (DS("ds_read_b128 v[132:135], v136 offset:1024", "cof2"), note_read("OFT")))
at(P2 + 76, lambda: qB.extend([lambda: E.wait(lg="cof2"), f"v_readfirstlane_b32 {sNON}, v135", "v_mov_b32 v168, v134"] + [f"v_add_u32 v{168+q}, {7168*q}, v134" for q in range(1, 4)]
                              + ["v_add_u32 v134, 14336, v132", "v_add_u32 v135, 14336, v133"] + q_setup() + [("mark", "cw")]))
def c_load(name, ta, step2, gate=None):
    k = name[0]; i = int(name[1:]); base = items[name].base
    tag = {}
    if gate:
        off, val = (0, PCV[gate]) if gate in PCV else (32, gate)
        at(P2 + ta - 6, lambda: tag.__setitem__(0, chk_issue(FR["r"], 137, off)))
    n = 6 if k == "G" else 4
    for q in range(n):
        def op(q=q):
            if q == 0:
                E.wait(lg="cof")
                if gate: chk_test(tag[0], val, FR["r"], 137, off, -(13 + len(cplaced))); cknown.append(("PC" if off == 0 else "PD", val))
                cplaced.append((name, list(cknown)))
            if k == "G":
                if q % 3 == 0:
                    I(f"s_add_u32 m0, {sM6}, {base + 1024*q}")
                    I(f"s_mul_i32 {sSO}, {sK[i]}, 1376" if q == 0 else f"s_add_u32 {sSO}, {sSO}, {16*2752}")
                VM(f"buffer_load_dwordx4 {v(cGo[q%3])}, {SG}, {sSO} offen" + (f" offset:{(q%3)*1024}" if q % 3 else "") + " lds", name)
            else:
                if q == 0:
                    need_mark("cw"); I(f"s_add_u32 m0, {sM4}, {base}")
                    if k == "C": q_h(sSO, i); I(f"s_lshl_b32 {sSO}, {sSO}, 7")
                    else: w_soff(sSO, i, "s19")
                VM(f"buffer_load_dwordx4 {v((cCo if k == 'C' else cWo)[q])}, {SC if k == 'C' else SWD}, {sSO} offen" + (f" offset:{q*1024}" if q else "") + " lds", name)
        at(P2 + ta + (q * step2) // 2, op)
cknown = []
c_load("G4", 37, 5, "G0"); c_load("G6", 52, 4); c_load("G5", 64, 4, "G1"); c_load("G7", 77, 5); c_load("C1", 93, 4)
c_load("C2", OPT["c1"], 4); c_load("C3", OPT["c1"] + 8, 4); c_load("W1", 141, 4); c_load("W2", 156, 3, "G5"); c_load("W3", 162, 3)
def st_addr():
    o = [f"s_lshl2_add_u32 {sT0}, {sC_}, {sW_}", f"s_mul_i32 {sT0}, {sT0}, {152*1024}", f"v_lshl_add_u32 {v(vHST)}, {vLANE}, 4, {sT0}", f"s_lshl_b32 {sT0}, {sG_}, 11"]
    for uu in range(3):
        o += [f"s_add_u32 {sT3}, {sT0}, {65536 + 15*uu*2048}",
              lambda uu=uu: (I(f"s_cmp_lt_u32 {sG_}, {14 if uu == 2 else 15}"), I(f"s_cselect_b32 {sHG[uu]}, {sT3}, 0x40000000"))]
    o += [f"s_and_b32 {sT1}, {sW_}, 1", f"s_lshr_b32 {sT2}, {sW_}, 1", f"s_lshl1_add_u32 {sT0}, {sC_}, {sGH}", f"s_lshl1_add_u32 {sT0}, {sT0}, {sT2}",
          f"s_mul_i32 {sT0}, {sT0}, {152*1024}", f"s_lshl_b32 {sT3}, {sT1}, 12", f"s_add_u32 {sT0}, {sT0}, {sT3}", f"v_lshl_add_u32 {v(vA)}, {vLANE}, 4, {sT0}",
          f"v_lshlrev_b32 {v(vDSK)}, 16, v131",
          f"s_mul_i32 {sT0}, {sGH}, {4*152*1024}", f"s_sub_u32 {sT0}, {2*152*1024}, {sT0}", f"v_add_u32 {v(vA2)}, {sT0}, {v(vA)}", ("mark", "sta1")]
    return o
def st_addr2():
    o = [f"s_and_b32 {sT1}, {sW_}, 1", f"s_lshr_b32 {sT2}, {sW_}, 1", f"v_lshrrev_b32 v141, 5, {vLANE}", f"v_and_b32 v143, 31, {vLANE}"]
    o += [f"s_lshl1_add_u32 {sT3}, {sGL}, {sT1}"]
    o += [f"s_lshl_b32 {sT3}, {sT3}, 7", f"s_lshl1_add_u32 {sT0}, {sGH}, {sT2}", f"s_lshl2_add_u32 s13, {sC_}, {sT0}", "s_lshl_b32 s13, s13, 16", f"s_add_u32 s13, s13, {sT3}",
          "v_lshlrev_b32 v142, 15, v141", "v_lshl_add_u32 v142, v143, 2, v142", f"v_add_u32 {v(vOUT)}, s13, v142"]
    o += [f"s_lshl_b32 {sT0}, {sT0}, 7", f"s_add_u32 {sT0}, {sT0}, {RTAB}", f"v_lshl_add_u32 {v(vTAB3)}, v141, 6, {sT0}",
          f"s_lshl_b32 {sT0}, {sT1}, 6", f"s_lshl_b32 {sT3}, {sT2}, 12", f"s_add_u32 {sT3}, {sT3}, {sT0}", f"s_add_u32 {sT3}, {sT3}, {XE}",
          "v_lshlrev_b32 v142, 11, v141", "v_lshl_add_u32 v142, v143, 1, v142", f"v_add_u32 {v(vXR)}, {sT3}, v142",
          f"s_lshl_b32 {sT3}, {sW_}, 12", f"s_add_u32 {sT3}, {sT3}, {RED}", f"v_lshl_add_u32 {v(vHR)}, {vLANE}, 4, {sT3}"]
    o += [f"v_bfe_u32 v142, {vLANE}, 2, 2", "v_lshl_add_u32 v142, v141, 3, v142", "v_lshlrev_b32 v142, 7, v142",
          f"v_and_b32 v6, 16, {vLANE}", "v_lshl_add_u32 v142, v6, 1, v142", f"v_and_b32 v6, 3, {vLANE}", "v_lshl_add_u32 v142, v6, 3, v142",
          f"v_and_b32 v6, 8, {vLANE}", "v_lshlrev_b32 v6, 3, v6", f"v_xor_b32 v6, {sT0}, v6", f"s_lshl_b32 {sT3}, {sT1}, 13", f"v_add3_u32 {v(vWT)}, v142, v6, {sT3}", f"v_xor_b32 {v(vWT2)}, 64, {v(vWT)}"]
    o += [f"s_mul_i32 {sT0}, {sT1}, 12288", "v_bfe_u32 v142, v143, 1, 3", "v_xor_b32 v142, v142, v141", "v_lshlrev_b32 v142, 4, v142", "v_lshl_add_u32 v142, v143, 7, v142",
          f"v_add_u32 {v(vC1[0])}, {sT0}, v142"] + [f"v_xor_b32 {v(vC1[s])}, {32*s}, {v(vC1[0])}" for s in range(1, 4)] + [f"v_xor_b32 {v(vC2[s])}, 4096, {v(vC1[s])}" for s in range(4)] + [("mark", "sta")]
    return o
at(P2 + 120, lambda: qB.extend(st_addr()))
def glu_epi(u):
    ops = []; o = EPO + 8*u
    for j in range(8):
        g0, u0 = ACCG[u] + 2*j, ACCU[u] + 2*j
        ops += [f"v_mul_f32 {v(u0)}, {v(vR2)}, {v(u0)}", f"v_mul_f32 {v(u0+1)}, {v(vR2)}, {v(u0+1)}",
                f"v_mul_f32 {v(u0)}, {v(g0)}, {v(u0)}", f"v_mul_f32 {v(u0+1)}, {v(g0+1)}, {v(u0+1)}", f"v_cvt_pk_bf16_f32 {v(o+j)}, {v(u0)}, {v(u0+1)}"]
        if j & 3 == 3:
            ops.append(lambda fr=j >> 2: VM(f"buffer_store_dwordx4 {v(o + 4*fr, 4)}, {v(vHST)}, {SWS}, {sHG[u]} offen offset:{fr*1024} sc1", "gst" if u == 2 else "gsa"))
    return ops + [("mark", f"epi{u}")]
for u in range(2): at(unit_done[u] + 3, lambda u=u: qB.extend(glu_epi(u)))
def base_ops():
    ops = [f"v_mov_b32 {v(BASE+r)}, 0" for r in range(16)]
    def rdx(r): DS(f"ds_read_u16_d16_hi {v(BASE+r)}, {v(vXR)} offset:{128*r}", f"xe{r}"); note_read("XE")
    ops += [lambda r=r: rdx(r) for r in range(16)]
    R3, M3, t0, t1, p = 160, 164, 168, 169, 170
    rnd = [f"v_cvt_pk_bf16_f32 {v(p)}, {v(t0)}, {v(t1)}", f"v_lshlrev_b32 {v(t0)}, 16, {v(p)}", f"v_and_b32 {v(t1)}, 0xffff0000, {v(p)}"]
    for j in range(4):
        ops += [lambda j=j: DS(f"ds_read_b128 {v(R3,4)}, {v(vTAB3)} offset:{16*j}", f"r3{j}"), lambda j=j: DS(f"ds_read_b128 {v(M3,4)}, {v(vTAB3)} offset:{512+16*j}", f"m3{j}"),
                ("hold", 3), lambda j=j: E.wait(lg=f"m3{j}")]
        for e in (0, 2):
            r = 4*j + e
            ops += [f"v_sub_f32 {v(t0)}, {v(BASE+r)}, {v(M3+e)}", f"v_sub_f32 {v(t1)}, {v(BASE+r+1)}, {v(M3+1+e)}"] + rnd
            ops += [f"v_mul_f32 {v(t0)}, {v(t0)}, {v(R3+e)}", f"v_mul_f32 {v(t1)}, {v(t1)}, {v(R3+1+e)}"] + rnd
            ops += [f"v_mul_f32 {v(t0)}, {v(t0)}, {v(vDSK)}", f"v_mul_f32 {v(t1)}, {v(t1)}, {v(vDSK)}"] + rnd
            ops += [f"v_add_f32 {v(BASE+r)}, {v(BASE+r)}, {v(t0)}", f"v_add_f32 {v(BASE+r+1)}, {v(BASE+r+1)}, {v(t1)}"]
    return ops + [("mark", "base")]
holdq = [0]

def segment(lo, hi, Dof, lim, pre_bar):
    rn = lo; held = []
    for m in range(lo - 1, hi):
        c0 = E.count + E.nops
        if m >= lo:
            s = slots[m]
            for n in s.needs: need_mark(n)
            tags = list(s.tags)
            if m % 2 == 0 and m + 1 < hi: tags += slots[m+1].tags
            E.wait(vm=[s.atag] if m >= P3 else [], lg=tags)
            I(s.mfma(s.bufs)); c0 = E.count + E.nops
            if s.own: pool.extend(held); held = list(s.bufs)
            if m >= P3:
                if s.arel: adone[0] = max(adone[0], s.arel)
                a_issue(OPT["ar"])
            if first_slot[s.chunk] == m and m < P3: lstamp(s.chunk)
            if OPT["lst"] == 9 and m >= P2 + OPT["l0"] and (m - P2 - OPT["l0"]) % OPT["ld"] == 0: LSET["C"].append(f"m{m-P2}"); lstamp(f"m{m-P2}")
            for fn in events.get(m, []): fn()
        nr = 0
        while rn < hi and rn <= m + Dof(m) and len(pool) >= len(slots[rn].reads) and (nr < 2 or m < lo):
            ch = slots[rn].chunk
            if first_slot[ch] == rn:
                if pre_bar: pre_bar(ch)
                if ch in GATE:
                    chk_test(gchk[ch], GATE[ch][1], FR["r"], FR["t"], GATE[ch][0], -(list(GATE).index(ch) + 1))
                    cknown.append(("PC" if GATE[ch][0] == 0 else "PH", GATE[ch][1]))
            emit_reads(rn); rn += 1; nr += 1
        assert rn >= min(hi, m + 3), (m, rn)
        if m >= lo:
            n = 0
            while qC and (n < 3 or isinstance(qC[0], tuple)): run_op(qC.pop(0)); n += 1
            if holdq[0]: holdq[0] -= 1
            while qB and not holdq[0] and (E.count + E.nops - c0 < lim - (m & 1) or isinstance(qB[0], tuple)): run_op(qB.pop(0))
            if m in post: post[m]()
    pool.extend(held)
retired = set()
def D2(m): return OPT["D"]
anext = [0]; aok = {"C": False, "W": False, "L": False}; adone = [0]
def a_issue(n):
    while n > 0 and anext[0] < len(aloads):
        tag, q, t, s_, h_, first = aloads[anext[0]]
        if not aok["L" if t in ("W4", "W5") else t[0]] or anext[0] - adone[0] >= min(len(AQ), OPT["al"]): return
        if first:
            i = int(t[1:])
            if t[0] == "C": q_h(sSO, i); I(f"s_lshl_b32 {sSO}, {sSO}, 13")
            else:
                q_u(sSO, i); I(f"s_cmp_eq_u32 {sSO}, 11"); I(f"s_cselect_b32 {sSO}, 0x20000, {sSO}"); I(f"s_lshl_b32 {sSO}, {sSO}, 13"); I(f"s_add_u32 {sSO}, {sSO}, 65536")
        VM(f"buffer_load_dwordx4 {v(q,4)}, {v(vA if h_ == 'k' else vA2)}, {SWS}, {sSO} offen" + (f" offset:{s_*1024}" if s_ else "") + " sc1", tag)
        anext[0] += 1; n -= 1
if OPT["ea"]:
    etag = {}
    at(P2 + OPT["ea"] - 6, lambda: etag.__setitem__(0, chk_issue(FR["r"], FR["t"], 16)))
    at(P2 + OPT["ea"], lambda: (need_mark("sta1"), chk_test(etag[0], PHV["K0"], FR["r"], FR["t"], 16, -11), aok.__setitem__("C", True)))
    for m_ in range(OPT["ea"], 192): at(P2 + m_, lambda: a_issue(1) if anext[0] < 12 else None)
burst(0); runall([o for o in cvt_ops(0) if isinstance(o, str)]); marks.update(f"cen{k}" for k in range(4)); burst(1); qC.extend(cvt_ops(1))
segment(0, P3, D2, 6, None)
PBAR = {"J0": "P0", "J2": "P1", f"J{OPT['gj']}": "P2", "J8": "P3", "J12": "P4"}
def p3bar(ch):
    if ch in PBAR:
        cbar("b" + PBAR[ch], vm=["W3"])
        if PBAR[ch] == "P1": aok["W"] = True
        if PBAR[ch] == "P2": aok["L"] = True
    lstamp(ch)
lstamp("T"); csig("T")
need_mark("epi1")
qB.extend(glu_epi(2)); need_mark("epi2")
pool[:] = P3BUFS
sa = st_addr2()
I(f"v_mov_b32 v106, {v(FR['r'])}"); I(f"v_mov_b32 v107, {v(FR['w'])}"); FR.update(r=106, w=107, t=104, v=105); P3BUFS.pop(); pool[:] = P3BUFS
for op in sa: run_op(op)
if OPT["ep"]:
    if not OPT["ea"]: chk_spin(PHV["K0"], FR["r"], FR["t"], 16); aok["C"] = True; a_issue(OPT["a0"])
    E.wait(vm="gsa"); csig("gsa"); a_issue(12)
else:
    E.wait(vm="gsa"); csig("gsa")
    chk_spin(PHV["K0"], FR["r"], FR["t"], 16); aok["C"] = True; a_issue(12)
lstamp("K0")
qB.extend([f"s_lshl4_add_u32 {sT0}, {sC_}, {sG_}", f"s_lshl2_add_u32 {sT0}, {sT0}, {sW_}", f"s_lshl_b32 {sT0}, {sT0}, 12", f"s_add_u32 s20, {sT0}, {WS_PB}", f"s_xor_b32 s21, s20, {8 << 14}",
           "s_mov_b32 s16, 0x07060500", "s_mov_b32 s17, 0x07060501", "s_mov_b32 s18, 0x07060502", "s_mov_b32 s22, 0x07060503", "s_mov_b32 s23, 0x0c0c0400", "s_mov_b32 s53, 0x05040100", f"v_lshlrev_b32 {v(vPB)}, 4, {vLANE}"] + base_ops())
if OPT["gs"] < 0: E.wait(vm="gst"); csig("gst")
else: at(P3 + OPT["gs"], lambda: (E.wait(vm="gst"), csig("gst")))
at(first_slot[f"J{OPT['gj']}"] - OPT["D3"] - OPT["pjd"], lambda: csig("pj"))
def reduce_pair(own, other, bar):
    for j in range(4): DS(f"ds_write_b128 {v(vHR)}, {v(other+4*j,4)} offset:{1024*j}", "red" + bar)
    I(f"v_xor_b32 {v(FR['t'])}, 4096, {v(vHR)}")
    cbar(bar, lg=["red" + bar])
    for j in range(4): DS(f"ds_read_b128 {v(other+4*j,4)}, {v(FR['t'])} offset:{1024*j}", f"rr{j}")
segment(P3, P4, lambda m: OPT["D3"], 8, p3bar)
lstamp("snd")
need_mark("base")
reduce_pair(ACCS[0], ACCS[1], "bR1")
I(f"v_mov_b32 v171, {sNON}")
for j in range(4):
    E.wait(lg=f"rr{j}")
    for e in range(4): I(f"v_add_f32 {v(ACCS[0]+4*j+e)}, {v(ACCS[0]+4*j+e)}, {v(ACCS[1]+4*j+e)}")
    for e in range(4): I(f"v_perm_b32 {v(ACCS[0]+4*j+e)}, {v(ACCS[0]+4*j+e)}, v171, {['s16', 's17', 's18', 's22'][e]}")
    VM(f"buffer_store_dwordx4 {v(ACCS[0]+4*j,4)}, {v(vPB)}, {SWS}, s21 offen offset:{1024*j} sc1", "pst")
pl_ld = [f"buffer_load_dwordx4 {v(80+4*j,4)}, {v(vPB)}, {SWS}, s20 offen offset:{1024*j} sc1" for j in range(4)]
at(M - 1 - OPT["pl"], lambda: [VM(t_, "pld") for t_ in pl_ld])
segment(P4, M, lambda m: OPT["D3"], 8, p3bar)
assert not qC and not qB and anext[0] == len(aloads)
RT2 = jobs[10][0]; RED2 = slot_of[RT2] * 16384
I(f"v_add_u32 {v(vHR)}, {(RED2 - RED) & 0xffffffff}, {v(vHR)}")
reduce_pair(ACC3, ACC4, "bR2")
for r in range(16): I(f"v_add_f32 {v(ACC3+r)}, {v(ACC3+r)}, {v(BASE+r)}")
chkp = []
for j in range(4):
    b_ = 80 + 4*j
    chkp += [f"v_perm_b32 v65, v{b_+1}, v{b_}, s23", f"v_perm_b32 v66, v{b_+3}, v{b_+2}, s23", "v_perm_b32 v65, v66, v65, s53",
             "v_xor_b32 v64, v171, v65" if j == 0 else "v_xor_b32 v65, v171, v65"] + ([] if j == 0 else ["v_or_b32 v64, v64, v65"])
chkp.append("v_cmp_ne_u32 vcc, 0, v64")
E.wait(vm="pld")
for c_ in chkp: I(c_)
I("s_cbranch_vccnz L_slow_p"); E.label("L_back_p"); lstamp("kp")
slow.extend(["L_slow_p:", f"  s_sleep {OPT['slq']}"] + ["  " + t_ for t_ in pl_ld] + ["  s_waitcnt vmcnt(0)"] + ["  " + c_ for c_ in chkp] + spin_guard("L_back_p", -10) + ["  s_cbranch_vccnz L_slow_p", "  s_branch L_back_p"])
I("s_mov_b32 s16, 0xffffff00")
for r in range(16): I(f"v_and_b32 {v(80+r)}, s16, {v(80+r)}"); I(f"v_add_f32 {v(ACC3+r)}, {v(ACC3+r)}, {v(80 + r)}")
lstamp("last")
for r in range(16):
    if r % 4 == 0: E.wait(lg=f"rr{r>>2}")
    I(f"v_add_f32 {v(ACC3+r)}, {v(ACC3+r)}, {v(ACC4+r)}")
    if r % 2 == 0: I(f"s_mov_b32 {sT0}, {(r>>1)*4096}")
    VM(f"buffer_store_dword {v(ACC3+r)}, {v(vOUT)}, {SOUT}, {sT0} offen offset:{(r&1)*2048}" + (" sc1" if OPT["osc"] else ""), "out")
dump_stamps("C")
I("s_endpgm")

E = EH
E.label("L_helper")
vSo = [2, 3]; vGo = [4, 5, 6]; vCo = [8, 9, 10, 11]; vWo = [12, 13, 14, 15]; vHo = 16; vXEo = [17, 18]
vFLS, vFLP, vPOLL, vFLX = 19, 20, 21, 7
vLR, vCR, vL16, vL128, vL256, vPQ = 22, 24, 26, 28, 30, 32
vE, vE2, vP = 34, 36, 38
vEQA, vEST, vEF, vEX, vZA, vHSW, vHSR, vHSTo, vDA, vTAB = 40, 41, 42, 44, 46, 47, 48, 49, 50, 54
TR, TI, RT, TMP = 96, 112, 128, 144
vF16, vF256 = 56, 58
vQR, vQT, vQV, vQW = 160, 161, 162, 163
vDB = 164; vUP = 76
live = [items[f"X{i}"] for i in range(4, 8)]
known = {id(EC): 0, id(EH): 0}
def hplace(name):
    it = items[name]
    for o in list(live):
        if o.base < it.base + it.size and it.base < o.base + o.size:
            assert known[id(o.reader)] >= o.last_read, ("WAR", name, o.name)
            live.remove(o)
    live.append(it); return it
def adv11(s): I(f"s_add_u32 {s}, {s}, 1"); I(f"s_cmp_eq_u32 {s}, 11"); I(f"s_cselect_b32 {s}, 0, {s}")
cur_m0 = [None]
SOFF = {"G": "s16", "C": "s17", "W": "s18"}
def item_ops(name):
    k = name.rstrip("0123456789"); i = int(name[len(k):] or 0)
    so = SOFF.get(k)
    srd_, sm, voffs, pol = {"S": (SS, sM2, vSo, ""), "G": (SG, sM6, vGo, ""), "C": (SC, sM4, vCo, ""), "H": (SWS, sM4, [vHo]*4, " sc1"),
                            "W": (SWD, sM4, vWo, ""), "HG": (SWS, sM4, [vHo]*4, " sc1"), "XE": (SX, sM2, vXEo, "")}[k]
    prep = {"G": lambda: I(f"s_mul_i32 {so}, {sK[i]}, 1376"), "C": lambda: (q_h(so, i), I(f"s_lshl_b32 {so}, {so}, 7")),
            "W": lambda: w_soff(so, i, sSO)}.get(k, lambda: None)
    if so is None: so = "0" if k == "XE" else sK[i]
    ops = []
    for half in range(2 if k == "G" else 1):
        for q in range(len(voffs)):
            def op(half=half, q=q):
                if name in RT_:
                    if q == 0: prep()
                    VM(f"buffer_load_dwordx4 {v(RT_[name] + 4*q, 4)}, {v(voffs[q])}, {srd_}, {so} offen" + (f" offset:{q*1024}" if q else ""), name)
                    return
                if (half, q) == (0, 0): hplace(name)
                m0 = (sm, items[name].base + 3072 * half)
                if cur_m0[0] != m0: I(f"s_add_u32 m0, {sm}, {m0[1]}"); cur_m0[0] = m0
                if (half, q) == (0, 0): prep()
                if (half, q) == (1, 0): I(f"s_add_u32 {so}, {so}, {16*2752}")
                VM(f"buffer_load_dwordx4 {v(voffs[q])}, {srd_}, {so} offen" + (f" offset:{q*1024}" if q else "") + f"{pol} lds", name)
            ops.append(op)
    last = ops[-1]
    ops[-1] = lambda: (last(), done_issue.__setitem__(name, True))
    return ops
done_issue = {}
def issue(name, between=lambda: None):
    for op in item_ops(name): op(); between()
def unpark(name):
    hplace(name); E.wait(vm=name)
    I(f"v_add_u32 {v(vUP+1)}, {items[name].base}, {v(vUP)}")
    for q in range(4): DS(f"ds_write_b128 {v(vUP+1)}, {v(RT_[name] + 4*q, 4)} offset:{q*1024}", "up" + name)
def issue_mix(miss, *hits):
    mo = item_ops(miss); ho = [op for h in hits for op in item_ops(h)]
    for k, op in enumerate(mo):
        op()
        for h in ho[k * len(ho) // len(mo):(k + 1) * len(ho) // len(mo)]: h()
def flag_send(so): VM(f"buffer_store_dword v61, {v(vFLS)}, {SWS}, {so} offen sc1", "flag")
def poll_issue(so, tag): VM(f"buffer_load_dword {v(vPOLL)}, {v(vFLP)}, {SWS}, {so} offen sc1", tag)
def poll_check(so, tag, inc):
    E.wait(vm=tag)
    I(f"v_cmp_ne_u32 vcc, {v(vFLX)}, {v(vPOLL)}"); I(f"s_cbranch_vccnz L_slow_{tag}"); E.label(f"L_back_{tag}")
    slow.extend([f"L_slow_{tag}:", f"  s_sleep {OPT['slp']}", f"  buffer_load_dword {v(vPOLL)}, {v(vFLP)}, {SWS}, {so} offen sc1", "  s_waitcnt vmcnt(0)",
                 f"  v_cmp_ne_u32 vcc, {v(vFLX)}, {v(vPOLL)}"] + spin_guard(f"L_back_{tag}", inc) + [f"  s_cbranch_vccnz L_slow_{tag}", f"  s_branch L_back_{tag}"])
I(f"s_and_b32 {sT1}, {sW_}, 1"); I(f"s_lshl1_add_u32 {sT0}, {sG_}, {sT1}"); I(f"s_lshl_b32 {sT0}, {sT0}, 4")
I(f"v_add_lshl_u32 v84, v81, {sT0}, 10")
I(f"v_add_u32 {v(vSo[0])}, v84, v83"); I(f"v_add_u32 {v(vSo[1])}, v84, v85"); I(f"v_add_u32 {v(vSo[1])}, 7168, {v(vSo[1])}")
I(f"s_lshl_b32 {sM2}, {sW_}, 11")
E.wait_all(lg=True)
I(f"s_cmp_ge_u32 {sW_}, 2"); srd_sel(SS, 22, 24, 524288); srd_sel(SG, 36, 38, 1409024); srd_sel(SC, 26, 28, 524288)
issue("S0"); issue("S1"); E.barrier()
if OPT["prio"] == 2: I("s_setprio 1")
I(f"s_lshl2_add_u32 {sT0}, {sG_}, {sW_}"); I(f"s_lshl_b32 {sT0}, {sT0}, 3"); I(f"v_add_lshl_u32 v87, v82, {sT0}, 1")
VM("global_load_ushort v70, v87, s[30:31]", "par"); VM("global_load_ushort v71, v87, s[18:19]", "par"); VM("global_load_ushort v72, v87, s[20:21]", "par")
I(f"s_lshl1_add_u32 {sT0}, {sGL}, {sT1}"); I(f"s_lshl_b32 {sT0}, {sT0}, 5"); I(f"v_and_b32 v87, 31, {vLANE}"); I(f"v_add_lshl_u32 v87, v87, {sT0}, 1")
VM("global_load_ushort v7, v87, s[32:33]", "par")
srd(SDBG, 44, 256)
I(f"s_or_b32 {sT0}, s2, {sW_}"); I("s_cbranch_scc1 L_notag")
E.begin_cond()
I("s_or_b32 s13, s14, 1"); I("v_mov_b32 v93, s13"); I("v_mov_b32 v94, 0"); I("s_mov_b64 exec, 1")
VM(f"buffer_store_dword v93, v94, {SDBG}, 0 offen sc1"); I("s_mov_b64 exec, -1")
E.end_cond(); E.label("L_notag")
for i in range(2, 8): ktab(i)
srd(SX, 16, 2097152); srd(SWD, 40, 1409024); srd(SWS, 46, WS_SIZE)
def warm():
    if not OPT["tw"]: return
    srd(SOUT, 42, 4194304)
    I("v_mov_b32 v92, 0"); I(f"s_lshl2_add_u32 {sT0}, {sC_}, {sW_}"); I(f"s_mul_i32 {sT0}, {sT0}, {152*1024}")
    I(f"s_lshr_b32 {sT2}, {sG_}, 1"); I(f"s_lshl_b32 {sT2}, {sT2}, 13"); I(f"s_add_u32 {sT0}, {sT0}, {sT2}"); I(f"s_and_b32 {sT2}, {sG_}, 1"); I(f"s_lshl_b32 {sT2}, {sT2}, 11"); I(f"s_add_u32 {sT0}, {sT0}, {sT2}")
    I(f"s_mov_b32 {sT2}, {WS_EB + 0x30000}"); I(f"s_lshl_b32 {sT3}, {sC_}, 18")
    I("s_mov_b64 exec, 1")
    for sr, so in ((SG, "0"), (SC, "0"), (SWD, "0"), (SWS, sT0), (SWS, sT2), (SOUT, sT3)):
        VM(f"buffer_load_dword v95, v92, {sr}, {so} offen sc1", "tw")
    I("s_mov_b64 exec, -1")
def setup1():
    I(f"s_mov_b32 {sSPIN}, 0"); I("s_mov_b32 s15, 0"); I(f"s_mul_i32 {sM6}, {sW_}, 6144")
    I(f"s_mul_i32 {sT0}, {sT1}, {32*2752}"); I(f"s_mul_i32 {sT2}, {sG_}, 192"); I(f"s_add_u32 {sT0}, {sT0}, {sT2}")
    I(f"s_mul_i32 {sT2}, {sG_}, 3"); I(f"s_mov_b32 {sT3}, 2752"); I(f"v_mov_b32 v90, {OOB}")
    for i in range(3):
        I(f"v_add_u32 v88, {64*i}, {vLANE}"); I("v_mul_u32_u24 v86, 43691, v88"); I("v_lshrrev_b32 v86, 19, v86")
        I("v_mul_u32_u24 v87, 12, v86"); I("v_sub_u32 v87, v88, v87")
        I(f"v_mul_lo_u32 v86, v86, {sT3}"); I("v_lshl_add_u32 v86, v87, 4, v86"); I(f"v_add_u32 v86, {sT0}, v86")
        I("v_lshrrev_b32 v87, 2, v87"); I(f"v_add_u32 v87, {sT2}, v87"); I("v_cmp_gt_u32 vcc, 43, v87")
        if i: I(f"v_subrev_u32 v86, {1024*i}, v86")
        I(f"v_cndmask_b32 {v(vGo[i])}, v90, v86, vcc")
    I(f"s_lshl2_add_u32 {sT0}, {sGL}, {sT1}"); I(f"s_lshl_b32 {sT2}, {sG_}, 1"); I(f"s_sub_u32 {sT0}, {sT0}, {sT2}"); I(f"s_lshl_b32 {sT0}, {sT0}, 14")
    I(f"v_add_u32 {v(vCo[0])}, {sT0}, {v(vSo[0])}"); I(f"v_add_u32 {v(vCo[1])}, {sT0}, {v(vSo[1])}")
    I(f"v_add_u32 {v(vCo[2])}, {2*7168}, {v(vCo[0])}"); I(f"v_add_u32 {v(vCo[3])}, {2*7168}, {v(vCo[1])}")

def setup1b():
    I(f"s_and_b32 {sT1}, {sW_}, 1")
    I("v_lshlrev_b32 v86, 4, v82"); I("v_lshl_add_u32 v86, v81, 10, v86"); I(f"v_and_b32 v87, 16, {vLANE}"); I("v_lshlrev_b32 v87, 2, v87"); I("v_xor_b32 v87, v86, v87")
    I(f"s_lshl_b32 {sT3}, {sGL}, 7"); I(f"v_add_u32 {v(vWo[0])}, {sT3}, v87")
    for q in range(1, 4): I(f"v_add_u32 {v(vWo[q])}, {7168*q}, {v(vWo[0])}")
    I(f"s_lshl1_add_u32 s13, {sC_}, {sGH}"); I(f"s_lshl2_add_u32 {sT0}, s13, {sW_}"); I(f"s_lshl_b32 {sT0}, {sT0}, 14"); I(f"s_add_u32 {sT0}, {sT0}, {sT3}")
    I(f"v_add_u32 {v(vXEo[0])}, {sT0}, v86"); I(f"v_add_u32 {v(vXEo[1])}, 7168, {v(vXEo[0])}")
    I(f"s_lshr_b32 {sT2}, {sW_}, 1"); I(f"s_lshl1_add_u32 {sT0}, s13, {sT2}"); I(f"s_mul_i32 {sT0}, {sT0}, {152*1024}"); I(f"s_lshl_b32 {sT3}, {sT1}, 12"); I(f"s_add_u32 {sT0}, {sT0}, {sT3}")
    I(f"v_lshl_add_u32 {v(vHo)}, {vLANE}, 4, {sT0}")
    I(f"s_cmp_eq_u32 {sW_}, 0"); I(f"s_cselect_b32 {sT2}, 16, 0"); I(f"v_cmp_gt_u32 vcc, {sT2}, {vLANE}")
    I(f"s_lshl_b32 {sT0}, {sC_}, 11"); I(f"s_lshl2_add_u32 {sT3}, {sG_}, {sT0}"); I(f"v_lshl_add_u32 v86, {vLANE}, 7, {sT3}")
    I(f"v_cndmask_b32 {v(vFLS)}, v90, v86, vcc")
    I(f"s_lshl_b32 {sT3}, {sG_}, 7"); I(f"s_add_u32 {sT3}, {sT3}, {sT0}"); I(f"v_lshl_add_u32 v86, {vLANE}, 2, {sT3}")
    I(f"v_cndmask_b32 {v(vFLP)}, v90, v86, vcc"); I(f"v_cndmask_b32 {v(vFLX)}, 0, -1, vcc")
    I(f"s_mov_b32 s20, {WS_FH}"); I(f"s_mov_b32 s21, {WS_FG}")

def setup2():
    o = []
    A = o.append
    A(f"s_lshl_b32 {sT0}, {sW_}, 10"); A(f"s_add_u32 {sT0}, {sT0}, {EQ}"); A(f"v_lshl_add_u32 {v(vEQA)}, {vLANE}, 3, {sT0}")
    A("v_mov_b32 v88, 0"); A("v_mov_b32 v89, 0"); A(lambda: DS(f"ds_write_b64 {v(vEQA)}, v[88:89]", "eqz"))
    A(f"v_lshl_add_u32 {v(vZA)}, v82, 3, {sT0}")
    A(f"s_lshl_b32 {sT0}, {sW_}, 9"); A(f"v_lshlrev_b32 v86, 11, v81"); A("v_lshl_add_u32 v86, v82, 6, v86"); A("v_lshrrev_b32 v87, 1, v82")
    A("v_lshl_add_u32 v86, v87, 4, v86"); A(f"v_add_u32 {v(vDA)}, {sT0}, v86")
    for j in range(1, 4): A(f"v_xor_b32 {v(vDA+j)}, {16*j}, {v(vDA)}")
    for j in range(4): A(f"v_add_u32 {v(vDB+j)}, {DUMPS[1]}, {v(vDA+j)}")
    A(f"v_lshlrev_b32 {v(vTAB)}, 6, v81"); A(f"v_add_u32 {v(vTAB)}, {RTAB}, {v(vTAB)}")
    A(f"s_lshl_b32 {sT0}, {sG_}, 13"); A(f"s_lshl_b32 {sT2}, {sW_}, 7"); A(f"s_add_u32 {sT0}, {sT0}, {sT2}"); A(f"s_add_u32 {sT0}, {sT0}, {WS_EB}")
    A(f"v_lshl_add_u32 v86, v82, 4, {sT0}")
    A(f"s_lshl_b32 {sT2}, {sC_}, 9"); A(f"v_add_u32 {v(vEST)}, {sT2}, v86"); A(lambda: (I("v_cmp_eq_u32 vcc, 7, v81"), I(f"v_cndmask_b32 {v(vEST)}, v90, {v(vEST)}, vcc")))
    A(f"s_sub_u32 {sT2}, {sC_}, 16"); A(f"v_lshl_add_u32 v87, v81, 1, {sT2}")
    A(f"v_lshl_add_u32 {v(vEF)}, v87, 9, v86"); A(f"v_add_u32 {v(vEF+1)}, 512, {v(vEF)}")
    A(lambda: (I("v_cmp_le_i32 vcc, 0, v87"), I(f"v_cndmask_b32 {v(vEF)}, v90, {v(vEF)}, vcc"), I(f"v_cndmask_b32 {v(vEX)}, 0, -1, vcc")))
    A(lambda: (I("v_cmp_le_i32 vcc, -1, v87"), I(f"v_cndmask_b32 {v(vEF+1)}, v90, {v(vEF+1)}, vcc"), I(f"v_cndmask_b32 {v(vEX+1)}, 0, -1, vcc")))
    A(f"s_mul_i32 {sT0}, {sW_}, 2608"); A(f"s_add_u32 {sT0}, {sT0}, {HS}")
    A("v_mul_u32_u24 v86, 336, v82"); A("v_lshl_add_u32 v86, v81, 5, v86"); A(f"v_add_u32 {v(vHSW)}, {sT0}, v86")
    A(f"v_bfe_u32 v86, {vLANE}, 2, 2"); A("v_mul_u32_u24 v86, 336, v86"); A(f"v_and_b32 v87, 32, {vLANE}"); A("v_lshl_add_u32 v86, v87, 1, v86")
    A(f"v_and_b32 v87, 1, {vLANE}"); A("v_lshl_add_u32 v86, v87, 5, v86"); A(f"v_and_b32 v87, 16, {vLANE}"); A("v_add_u32 v86, v86, v87")
    A(f"v_and_b32 v87, 2, {vLANE}"); A("v_lshl_add_u32 v86, v87, 2, v86"); A(f"v_add_u32 {v(vHSR)}, {sT0}, v86")
    A(f"s_mul_i32 {sT0}, {sC_}, {4*152}"); A(f"s_lshr_b32 {sT2}, {sG_}, 1"); A(f"s_lshl3_add_u32 {sT0}, {sT2}, {sT0}"); A(f"s_and_b32 {sT2}, {sG_}, 1")
    A(f"s_lshl1_add_u32 {sT0}, {sT2}, {sT0}"); A(f"s_lshl_b32 {sT0}, {sT0}, 10"); A(f"s_lshl_b32 {sT2}, {sW_}, 9"); A(f"s_add_u32 {sT0}, {sT0}, {sT2}")
    A(f"v_lshrrev_b32 v86, 5, {vLANE}"); A(f"v_mul_u32_u24 v86, {152*1024}, v86"); A(f"v_and_b32 v87, 31, {vLANE}"); A("v_lshl_add_u32 v86, v87, 4, v86"); A(f"v_add_u32 {v(vHSTo)}, {sT0}, v86")
    LOG2E = "0x3fb8aa3b"
    A(lambda: E.wait(vm="par"))
    o += ["v_lshlrev_b32 v70, 16, v70", "v_lshlrev_b32 v71, 16, v71", "v_lshlrev_b32 v72, 16, v72",
          f"v_mul_f32 v70, {LOG2E}, v70", "v_exp_f32 v70, v70", "v_mul_f32 v74, v71, v71"] + bf16r_ops(70, 70)
    o += ["v_mul_f32 v75, v70, v71", "v_mul_f32 v76, v70, v72", f"v_mul_f32 v75, {LOG2E}, v75", "v_exp_f32 v75, v75",
          "v_mul_f32 v76, 0.15915494, v76", "v_rndne_f32 v77, v76", "v_sub_f32 v76, v76, v77", "v_cos_f32 v77, v76", "v_sin_f32 v78, v76",
          "v_fmac_f32 v74, v72, v72", f"v_mul_f32 {v(vLR)}, v75, v77", "v_mul_f32 v78, v75, v78", "v_rcp_f32 v74, v74",
          f"v_add_f32 v77, -1.0, {v(vLR)}", "v_add_f32 v74, v74, v74",
          f"v_mul_f32 {v(vCR)}, v77, v71", f"v_fmac_f32 {v(vCR)}, v78, v72", f"v_mul_f32 {v(vCR)}, {v(vCR)}, v74",
          f"v_mul_f32 {v(vCR+1)}, v77, v72", f"v_fma_f32 {v(vCR+1)}, -v78, v71, {v(vCR+1)}", f"v_mul_f32 {v(vCR+1)}, {v(vCR+1)}, v74",
          f"v_sub_f32 {v(vLR+1)}, 0, v78"]
    o += csq_ops(70, vLR, 78) + csq_ops(72, 70, 78) + csq_ops(70, 72, 78) + csq_ops(vL16, 70, 78)
    o += csq_ops(70, vL16, 78) + csq_ops(72, 70, 78) + csq_ops(vL128, 72, 78) + csq_ops(vL256, vL128, 78)
    o += [f"v_mov_b32 {v(vPQ)}, {v(vCR)}", f"v_mov_b32 {v(vPQ+1)}, {v(vCR+1)}"]
    for bit, L in ((8, vL16), (16, 70), (32, 72)):
        o += [f"v_and_b32 v74, {bit}, {vLANE}", lambda L=L: (I("v_cmp_ne_u32 vcc, 0, v74"), I(f"v_cndmask_b32 v76, 1.0, {v(L)}, vcc"), I(f"v_cndmask_b32 v77, 0, {v(L+1)}, vcc"))]
        o += cmul_ops(vPQ, vPQ, 76, 78)
    def factor(F, Ls):
        r = []
        for n, (bit, L) in enumerate(zip((8, 16, 32), Ls)):
            d = F if n == 0 else 76
            r += [f"v_and_b32 v74, {bit}, {vLANE}", lambda L=L, d=d: (I("v_cmp_eq_u32 vcc, 0, v74"), I(f"v_cndmask_b32 {v(d)}, 1.0, {v(L)}, vcc"), I(f"v_cndmask_b32 {v(d+1)}, 0, {v(L+1)}, vcc"))]
            if n: r += cmul_ops(F, F, 76, 78)
        return r
    o += factor(vF16, (vL16, 70, 72))
    o += csq_ops(70, vL256, 78) + csq_ops(72, 70, 78) + factor(vF256, (vL256, 70, 72))
    return o
def allsum(a_, b_, t):
    o = [f"v_add_f32_dpp {v(t)}, {v(a_)}, {v(a_)} row_ror:8 row_mask:0xf bank_mask:0xf", f"v_add_f32_dpp {v(t+1)}, {v(b_)}, {v(b_)} row_ror:8 row_mask:0xf bank_mask:0xf",
         f"v_mov_b32 {v(a_)}, {v(t)}", f"v_mov_b32 {v(b_)}, {v(t+1)}",
         f"v_permlane16_swap_b32 {v(a_)}, {v(t)}", f"v_permlane16_swap_b32 {v(b_)}, {v(t+1)}",
         f"v_add_f32 {v(a_)}, {v(a_)}, {v(t)}", f"v_add_f32 {v(b_)}, {v(b_)}, {v(t+1)}",
         f"v_mov_b32 {v(t)}, {v(a_)}", f"v_mov_b32 {v(t+1)}, {v(b_)}",
         f"v_permlane32_swap_b32 {v(a_)}, {v(t)}", f"v_permlane32_swap_b32 {v(b_)}, {v(t+1)}",
         f"v_add_f32 {v(a_)}, {v(a_)}, {v(t)}", f"v_add_f32 {v(b_)}, {v(b_)}, {v(t+1)}"]
    return o
def cmul4(d, x, y):
    return [f"v_mul_f32 {v(d[0])}, {v(x[0])}, {v(y)}", f"v_mul_f32 {v(d[1])}, {v(x[0])}, {v(y+1)}",
            f"v_fma_f32 {v(d[0])}, -{v(x[1])}, {v(y+1)}, {v(d[0])}", f"v_fmac_f32 {v(d[1])}, {v(x[1])}, {v(y)}"]
def ssm1():
    o = []
    def rdd(j, comp): DS(f"ds_read_b128 {v((TI if comp else TR) + 4*j, 4)}, {v(vDB+j)} offset:{DUMPS[comp] - DUMPS[1]}", f"dr{j}"); note_read(f"DUMP{comp}")
    for j in range(4):
        o += [lambda j=j: DS(f"ds_read_b128 {v(RT + 4*j, 4)}, {v(vTAB)} offset:{16*j}", f"dr{j}"), lambda j=j: rdd(j, 0), lambda j=j: rdd(j, 1)]
    cur, nx = (vE, vE + 1), (vE2, vE2 + 1)
    for r in range(16):
        if r % 4 == 0: o.append(lambda j=r >> 2: E.wait(lg=f"dr{j}"))
        o += [f"v_mul_f32 {v(TR+r)}, {v(TR+r)}, {v(RT+r)}", f"v_mul_f32_e64 {v(TI+r)}, -{v(TI+r)}, {v(RT+r)}"]
        if r == 0: src = (TR, TI)
        else:
            o += cfma_ops(nx, vLR, src, TR + r, TI + r); src = nx; cur, nx = nx, cur
    assert src == (vE2, vE2 + 1)
    o += cmul4((60, 62), src, vF16) + allsum(60, 62, 64)
    o.append(lambda: (VM(f"buffer_store_dwordx4 v[60:63], {v(vEST)}, {SWS}, 0 offen sc1", "est"), lstamp("epub")))
    return o
def window():
    o = [lambda: DS(f"ds_write_b64 {v(vEQA)}, {v(vE2,2)} offset:{7*64}", "eqw")]
    o += [lambda i=i: DS(f"ds_read_b64 {v(TMP+2*i,2)}, {v(vEQA)} offset:{64*i}", "eq") for i in range(7)]
    for r in range(16):
        o += [f"v_mul_f32 v72, {v(vCR+1)}, {v(TI+r)}", f"v_mul_f32 {v(TI+r)}, {v(vCR)}, {v(TI+r)}",
              f"v_fmac_f32 {v(TI+r)}, {v(vCR+1)}, {v(TR+r)}", f"v_fma_f32 {v(TR+r)}, {v(vCR)}, {v(TR+r)}, -v72"]
    o.append(lambda: E.wait(lg="eq"))
    src = (TMP, TMP + 1); pp = [(vE2, vE2 + 1), (vE, vE + 1)]
    for i in range(1, 7):
        d = pp[i & 1]; o += cfma_ops(d, vL16, src, TMP + 2*i, TMP + 2*i + 1); src = d
    return o + cmul4((vP, vP + 1), src, vCR)
def efetch_issue():
    VM(f"buffer_load_dwordx4 v[64:67], {v(vEF)}, {SWS}, 0 offen sc1", "ef"); VM(f"buffer_load_dwordx4 v[68:71], {v(vEF+1)}, {SWS}, 0 offen sc1", "ef")
def ssm3():
    chk = [f"v_xor_b32 v72, v65, {v(vEX)}", f"v_xor_b32 v73, v67, {v(vEX)}", f"v_xor_b32 v74, v69, {v(vEX+1)}", "v_or3_b32 v72, v72, v73, v74",
           f"v_xor_b32 v73, v71, {v(vEX+1)}", "v_or_b32 v72, v72, v73", "v_cmp_ne_u32 vcc, 0, v72"]
    def check():
        E.wait(vm="ef")
        for c in chk: I(c)
        I("s_cbranch_vccnz L_slow_e"); E.label("L_back_e"); lstamp("eok")
        slow.extend(["L_slow_e:", f"  s_sleep {OPT['slq']}", f"  buffer_load_dwordx4 v[64:67], {v(vEF)}, {SWS}, 0 offen sc1", f"  buffer_load_dwordx4 v[68:71], {v(vEF+1)}, {SWS}, 0 offen sc1",
                     "  s_waitcnt vmcnt(0)"] + ["  " + c for c in chk] + spin_guard("L_back_e", 0x100) + ["  s_cbranch_vccnz L_slow_e", "  s_branch L_back_e"])
    o = [check] + cfma_ops((vE, vE + 1), vL128, (64, 66), 68, 70)
    o += cmul4((vE2, vE2 + 1), (vE, vE + 1), vF256) + allsum(vE2, vE2 + 1, 72)
    src = (vE2, vE2 + 1)
    o += cfma_ops((vE, vE + 1), vPQ, src, vP, vP + 1)
    src = (vE, vE + 1)
    for r in range(16):
        d = (TR + r, TI + r); o += cfma_ops(d, vLR, src, d[0], d[1]); src = d
        if r & 1: o += [f"v_cvt_pk_bf16_f32 {v(TMP + (r>>1))}, {v(TR+r-1)}, {v(TR+r)}", f"v_cvt_pk_bf16_f32 {v(TMP + 8 + (r>>1))}, {v(TI+r-1)}, {v(TI+r)}"]
    for comp in range(2):
        o += [lambda j=j, comp=comp: DS(f"ds_write_b128 {v(vHSW)}, {v(TMP + 8*comp + 4*j, 4)} offset:{16*j}", "hsw") for j in range(2)]
        for i in range(2):
            for ph in range(2):
                def rd(i=i, ph=ph, comp=comp):
                    DS(f"ds_read_b64_tr_b16 {v(RT + 8*comp + 4*i + 2*ph, 2)}, {v(vHSR)} offset:{4*ph*336 + 128*i}", f"hr{comp}{i}"); note_read("HS")
                o.append(rd)
    for comp in range(2):
        for i in range(2):
            def st(i=i, comp=comp):
                I(f"s_mov_b32 {sT0}, {2*i*152*1024 + comp*4096}"); E.wait(lg=f"hr{comp}{i}")
                VM(f"buffer_store_dwordx4 {v(RT + 8*comp + 4*i, 4)}, {v(vHSTo)}, {SWS}, {sT0} offen sc1", "hst")
            o.append(st)
    o.append(lambda: lstamp("hst"))
    return o
work = []
def pop_work(n):
    while n > 0 and work: runall([work.pop(0)]); n -= 1
def between(n=8): return lambda: pop_work(n)
live.append(items["OFT"])
I(f"v_and_b32 {v(vQR)}, 3, {vLANE}"); I(f"v_lshlrev_b32 {v(vQR)}, 2, {v(vQR)}"); I(f"v_add_u32 {v(vQR)}, {PRG}, {v(vQR)}"); I(f"v_mov_b32 {v(vQV)}, 0")
I(f"s_lshl_b32 {sT0}, {sW_}, 2"); I(f"s_add_u32 {sT0}, {sT0}, {PRG}"); I(f"v_mov_b32 {v(vQW)}, {sT0}")
issue("S2"); issue("S3"); lstamp("b0")
def hchk(word, st):
    off = {"PC": 0, "PD": 32}[word]; val = PCV[st] if word == "PC" else st
    chk_spin(val, vQR, vQT, off)
    em, lg = signals[(word, val)]; known[id(em)] = max(known[id(em)], lg)
published = [0]
def pub(ch):
    assert PHV[ch] > published[0]
    E.wait(vm=[n for c in CHUNKS[published[0]:PHV[ch]] for n in chunk_items(c)]); signal("PH", PHV[ch], vQW, vQV, 16); published[0] = PHV[ch]
def auto_pub(lead):
    best = None
    for c in CHUNKS[published[0]:]:
        if all(n in E.vm and done_issue.get(n) and len(E.vm) - E.last(E.vm, n) >= lead for n in chunk_items(c)): best = c
        else: break
    if best: pub(best)
def s47():
    for n in ("S4", "S5", "S6", "S7"): issue(n)
if OPT["xi"] < 0: s47()
pub("S2")
setup1()
I(f"s_lshl_b32 {sT0}, {sW_}, 11"); I(f"s_add_u32 {sT0}, {sT0}, {HS}"); I(f"v_lshl_add_u32 v86, {vLANE}, 4, {sT0}")
E.wait(vm="par"); DS("ds_write_b128 v86, v[4:7]", "oft"); I("v_mov_b32 v92, v86"); E.wait(lg="oft")
if OPT["xi"] >= 0: hchk("PC", "Xi"); s47()
w2 = setup2(); runall(w2[:OPT["w2a"]])
hchk("PC", "X"); lstamp("xd")
I("v_mov_b32 v91, 0"); VM(f"buffer_load_dword {v(vPOLL)}, v91, {SDBG}, 0 offen sc1", "tag")
issue("G0"); pub("S6"); runall(w2[OPT["w2a"]:OPT["w2b"]]); issue("G1"); runall(w2[OPT["w2b"]:]); pub("G0"); hchk("PC", "S3"); issue("G2"); pub("G1"); issue("G3"); setup1b()
tag_check("H", vPOLL, 88)
runall([f"v_mov_b32 v61, {sNON}", f"v_mov_b32 v63, {sNON}", f"v_and_b32 {v(vEX)}, {sNON}, {v(vEX)}", f"v_and_b32 {v(vEX+1)}, {sNON}, {v(vEX+1)}", f"v_and_b32 {v(vFLX)}, {sNON}, {v(vFLX)}",
        f"v_lshl_add_u32 {v(vUP)}, {vLANE}, 4, {sM4}"])
known[id(EC)] = max(known[id(EC)], signals[("PC", PCV["S5"])][1]); hplace("DUMP0"); hplace("DUMP1")
DS("ds_write_b64 v92, v[8:9] offset:1024", "oft"); DS("ds_write_b32 v92, v12 offset:1032", "oft"); DS("ds_write_b32 v92, v61 offset:1036", "oft")
runall(q_setup()); issue("C0"); issue("W0")
if OPT["w1e"]: issue("W4")
I(f"s_setprio {OPT['pb']}")
hchk("PC", "dump"); lstamp("bD")
def pass2():
    t0 = OPT["bd"] + 2
    s1, wn, s3 = ssm1(), window(), ssm3()
    ins = []
    def spread(name, ta, tb, pre=None):
        holder = {}
        n = 6 if name[0] == "G" else 4
        for k in range(n):
            def f(k=k):
                if k == 0:
                    if pre: hchk(*pre)
                    holder["ops"] = item_ops(name)
                holder["ops"][k]()
            ins.append((ta + (tb - ta) * k / n, f))
    ins.append((OPT["pg2"], lambda: (E.wait(lg="dr3"), pub("G2")))); ins.append((48, lambda: pub("G3")))
    ins.sort(key=lambda x: x[0])
    t = [float(t0)]
    def cyc(): return E.nvec * OPT["vc"] / 10.0 + (E.count + E.nops - E.nvec) * 4.0
    def adv(c0): t[0] += (cyc() - c0) / 33.0
    def run(ops):
        for op in ops:
            while ins and ins[0][0] <= t[0]:
                c0 = cyc(); ins.pop(0)[1](); adv(c0)
            c0 = cyc(); runall([op]); adv(c0)
    def idle_until(tt):
        while ins and ins[0][0] <= tt: t[0] = max(t[0], ins[0][0]); ins.pop(0)[1]()
        t[0] = max(t[0], tt)
    run(s1); tpub = t[0]
    k = 0
    while k < len(wn) and t[0] < tpub + OPT["efd"]: run([wn[k]]); k += 1
    efetch_issue(); lstamp("ef"); tf = t[0]
    run(wn[k:]); hchk("PC", "G1"); hplace("HS")
    tc = t[0]
    I(f"s_setprio {OPT['pc']}"); run(s3); ts = t[0]; assert not ins
    E.wait(vm="hst"); signal("PD", 2, vQW, vQV, 32); hchk("PD", 2); flag_send("s20"); lstamp("hflag")
    if OPT.get("log"): print(f"helper est: epub {tpub:.0f} efetch {tf:.0f} check {tc:.0f} stores {ts:.0f}", file=sys.stderr)
pass2()
issue("XE")
if not OPT["w1e"]: issue("W4")
pub("KX")
for name, kn in cplaced:
    save = dict(known); known.update({id(EC): 0, id(EH): 0})
    for w_, val in kn:
        em, lg = signals[(w_, val)]; known[id(em)] = max(known[id(em)], lg)
    hplace(name); done_issue[name] = True; known.update(save)
I(f"s_setprio {OPT['pd']}")
if OPT["ep"]:
    hchk("PC", "U0"); poll_issue("s20", "ph"); poll_check("s20", "ph", 0x10000); lstamp("okh"); pub("K0")
hchk("PC", "T"); lstamp("gT")
if not OPT["ep"]: poll_issue("s20", "ph")
I(f"s_mov_b32 s19, {WS_FP}")
unpark("C0")
if not OPT["ep"]: poll_check("s20", "ph", 0x10000); lstamp("okh"); pub("K0")
hchk("PC", "gsa"); flag_send("s19")
unpark("W0"); unpark("W4")
if OPT["gs"] < 0: hchk("PC", "gst"); flag_send("s21")
for k, bn in enumerate(bar_names[1:]):
    if bn == "bP1": poll_check("s19", "pa", 0x1)
    if bn == "bP2": hchk("PC", "pj"); poll_issue("s21", "pg"); poll_check("s21", "pg", 0x1000000); lstamp("okg")
    E.wait(vm=["W5"] if bn == "bP3" else [], lg=["upW4"]); E.barrier()
    known[id(EC)] = max(known[id(EC)], EC.barriers[k + 1][1])
    if bn == "bP0" and OPT["gs"] >= 0: hchk("PC", "gst"); flag_send("s21")
    if bn == "bP0": poll_issue("s19", "pa")
    if bn == "bP1": issue("W5")
    if bn == "bP3": assert known[id(EC)] >= min(items["C2"].last_read, 10**9)
    if bn == "bP4": assert known[id(EC)] >= items[RT2].last_read
assert len(EH.barriers) == len(EC.barriers)
dump_stamps("H")
E.label("L_end"); I("s_endpgm")

hdr = open("cdna_kernels/" + NAME + ".s.ref").read().split("; Override launch geometry")[0]
out = hdr
if OPT["lst"]: out += "; cstamps: " + " ".join(lnames["C"]) + "\n; hstamps: " + " ".join(lnames["H"]) + f"\n; rt: {OPT['rt']}\n"
out += f"; @launch grid=(256,1,1) block=(512,1,1) lds={LDS_BYTES}\n"
out += f'.amdgcn_target "amdgcn-amd-amdhsa--gfx950"\n.text\n.globl {NAME}_kernel\n.p2align 8\n.type {NAME}_kernel,@function\n'
kc = next(k for k, l in enumerate(EC.lines) if "v_and_b32 v90, 31" in l)
out += E0.text() + "\n".join(EC.lines[:kc]) + "\n  s_branch L_cmain\n" + EH.text() + "L_cmain:\n" + "\n".join(EC.lines[kc:]) + "\n" + "\n".join(slow) + "\n"
out += f"L_pad:\n.fill (37120 - (L_pad - {NAME}_kernel)) / 4, 4, 0xbf810000\n"
out += f""".section .rodata,"a"
.p2align 6
.amdhsa_kernel {NAME}_kernel
  .amdhsa_next_free_vgpr 256
  .amdhsa_next_free_sgpr 102
  .amdhsa_accum_offset 256
  .amdhsa_group_segment_fixed_size 0
  .amdhsa_kernarg_size 128
  .amdhsa_user_sgpr_count 2
  .amdhsa_user_sgpr_kernarg_segment_ptr 1
  .amdhsa_system_sgpr_workgroup_id_x 1
.end_amdhsa_kernel
"""
open(sys.argv[1], "w").write(out)
print(f"compute {EC.count}+{EC.nops} helper {EH.count}+{EH.nops} barriers {len(bar_names)}: {' '.join(bar_names)}", file=sys.stderr)
```

```python
import sys
from emit import Emitter
NAME = "parallel_sum__ssm_conv_s5__glu_gated_bilinear__prompt"
OPT = dict(lst=0, rt=1, D=4, D2=7, D3=6, NU=2, gfd=40, prio=1, bd=15, ipc=85, slp=4, slq=0, wl=0, dsp=3, efn=90, rot=8, lead=12, ge=0, gf=1, gg=5, gp=2, mw=0, ar=1, nr=8, bk=12, c34=1, f0=0, f2=1, pw=0, pd=2, nwt=0, a0=6, al=16, nb=60, gs=-1, tw=0, osc=1, d64=0, w2a=20, w2b=110, pb=0, c1=117, c45=1, u0s=158, xi=-1, pc=2, map=0, xj=1, nd=1, skw=0, gj=6, pjd=18, ea=0, pl=14, w1e=1, xw=1, ct=1, stg=0, x3=0, wr=4, pg2=21, ep=0, vc=85, efd=35, ecd=20)
for a_ in sys.argv[2:]:
    k_, v_ = a_.split("="); OPT[k_] = int(v_)

WS_EB = 0xA00000; WS_FH = 0xA40000; WS_FG = 0xA48000; WS_ST = 0xC00000; WS_FP = 0xA50000; WS_PB = 0x1000000; WS_SIZE = 0x1800000
U8 = 8192; MISC = 18 * U8
RTAB = MISC; EQ = MISC + 1024; HS = MISC + 5120; XE = MISC + 5120
DUMP = 0
PRG = MISC + 15872
LDS_BYTES = 163840
OOB = 0x80000000
sW_, sC_, sG_, sGL, sGH, sJ0 = "s3", "s4", "s5", "s6", "s7", "s8"
sT0, sT1, sT2, sT3 = "s9", "s10", "s11", "s12"
SX, SS, SG, SC, SWD, SWS, SOUT, SDBG = ("s[48:51]", "s[52:55]", "s[56:59]", "s[60:63]", "s[64:67]", "s[68:71]", "s[72:75]", "s[76:79]")
sK = [f"s{80+i}" for i in range(8)]
sM4, sM2, sM6 = "s88", "s89", "s94"
sQW, sQHG, sSO = "s95", "s96", "s100"
sNON, sC10, sC01, sC11 = "s90", "s91", "s92", "s93"
sSPIN = "s97"; sSP2 = "s99"; sCL = "s101"
sCW = "s98"; WMUL = {4: 3, 2: 6, 1: 0}[OPT["wr"]]
sRA = "s52"
def q_setup(): return [f"s_add_u32 {sQW}, {sGL}, {sCL}"]
def q_h(so, i): I(f"s_add_u32 {so}, {sQW}, {i}"); I(f"s_and_b32 {so}, {so}, 3"); I(f"s_lshl2_add_u32 {so}, {sGH}, {so}")
def q_u(so, i):
    if i < 4: q_h(so, i); I(f"s_cmp_eq_u32 {so}, 7"); I(f"s_cselect_b32 {so}, 11, {so}")
    else: I(f"s_add_u32 {so}, {sQW}, {i}"); I(f"s_and_b32 {so}, {so}, 1"); I(f"s_lshl1_add_u32 {so}, {sGH}, {so}"); I(f"s_add_u32 {so}, {so}, 7")
def w_soff(so, i, tmp):
    q_u(tmp, i); I(f"s_lshl2_add_u32 {tmp}, {tmp}, {sW_}"); I(f"s_mul_i32 {so}, {tmp}, 3")
    I(f"s_cmp_ge_u32 {tmp}, 15"); I(f"s_cselect_b32 {sRA}, 44, 0"); I(f"s_cmp_ge_u32 {tmp}, 30"); I(f"s_cselect_b32 {sRA}, 88, {sRA}")
    I(f"s_sub_u32 {so}, {so}, {sRA}"); I(f"s_lshl_b32 {so}, {so}, 15")
vLANE = "v1"
MF = "v_mfma_f32_32x32x16_bf16"
def v(n, k=1): return f"v{n}" if k == 1 else f"v[{n}:{n+k-1}]"

EC, EH, E0 = Emitter(), Emitter(), Emitter()
E = E0
def I(t): return E.I(t)
def VM(t, tag=None): return E.VM(t, tag)
def DS(t, tag=None): return E.DS(t, tag)
slow = []
lnames = {"C": [], "H": []}
def lstamp(name):
    who = "C" if E is EC else "H"
    if OPT["lst"] and name in LSET[who] and len(lnames[who]) < 12:
        k = 24 + 2 * len(lnames[who]); lnames[who].append(name); I(f"{'s_memrealtime' if OPT['rt'] else 's_memtime'} s[{k}:{k+1}]")
LSETS = {0: ([], []),
         1: (["X6", "X7", "S0", "G0", "G4", "T", "J0", "J4", "snd", "kp", "last", "end"], ["b0", "xd", "bD", "epub", "ef", "eok", "hst", "hflag", "okh", "gT", "okg", "end"]),
         2: (["S0", "S2", "S4", "S6", "G0", "G1", "G2", "G3", "G4", "G5", "G6", "T"], ["b0", "xd", "bD", "epub", "ef", "eok", "hst", "hflag", "okh", "gT", "okg", "end"]),
         3: (["T", "K0", "J0", "J2", "J4", "J7", "snd", "J10", "J13", "kp", "last", "end"], ["b0", "xd", "bD", "epub", "ef", "eok", "hst", "hflag", "okh", "gT", "okg", "end"])}
LSETS[9] = ([], LSETS[1][1])
LSET = dict(zip("CH", LSETS[OPT["lst"]]))
def runall(ops):
    for op in ops:
        if isinstance(op, str): I(op)
        else: op()
def csq_ops(d, x, t):
    return [f"v_mul_f32 {v(t)}, {v(x+1)}, {v(x+1)}", f"v_add_f32 {v(t+1)}, {v(x)}, {v(x)}", f"v_fma_f32 {v(d)}, {v(x)}, {v(x)}, -{v(t)}", f"v_mul_f32 {v(d+1)}, {v(t+1)}, {v(x+1)}"]
def cmul_ops(d, x, y, t):
    return [f"v_mul_f32 {v(t)}, {v(x)}, {v(y)}", f"v_mul_f32 {v(t+1)}, {v(x)}, {v(y+1)}",
            f"v_fma_f32 {v(t)}, -{v(x+1)}, {v(y+1)}, {v(t)}", f"v_fma_f32 {v(d+1)}, {v(x+1)}, {v(y)}, {v(t+1)}", f"v_mov_b32 {v(d)}, {v(t)}"]
def cfma_ops(d, L, x, br, bi):
    return [f"v_fma_f32 {v(d[0])}, {v(L)}, {v(x[0])}, {v(br)}", f"v_fma_f32 {v(d[1])}, {v(L)}, {v(x[1])}, {v(bi)}",
            f"v_fma_f32 {v(d[0])}, -{v(L+1)}, {v(x[1])}, {v(d[0])}", f"v_fma_f32 {v(d[1])}, {v(L+1)}, {v(x[0])}, {v(d[1])}"]
def bf16r_ops(d, s): return [f"v_cvt_pk_bf16_f32 {v(d)}, {v(s)}, {v(s)}", f"v_and_b32 {v(d)}, 0xffff0000, {v(d)}"]
def srd(dst, lo, size):
    n = int(dst[2:dst.index(":")])
    I(f"s_mov_b64 s[{n}:{n+1}], s[{lo}:{lo+1}]"); I(f"s_mov_b32 s{n+2}, {size}"); I(f"s_mov_b32 s{n+3}, 0x20000")
def srd_sel(dst, p0, p1, size):
    n = int(dst[2:dst.index(":")])
    I(f"s_cselect_b64 s[{n}:{n+1}], s[{p1}:{p1+1}], s[{p0}:{p0+1}]"); I(f"s_mov_b32 s{n+2}, {size}"); I(f"s_mov_b32 s{n+3}, 0x20000")
def ktab(i):
    I(f"s_add_u32 {sK[i]}, {sJ0}, {i}"); I(f"s_and_b32 {sK[i]}, {sK[i]}, 7"); I(f"s_lshl_b32 {sK[i]}, {sK[i]}, 7")
def spin_guard(lbl_back, inc):
    return ([f"  s_add_u32 s15, s15, {inc}" if inc >= 0 else f"  s_bitset1_b32 s15, {-inc}"] if OPT["lst"] else []) + [f"  s_add_u32 {sSPIN}, {sSPIN}, 1", f"  s_cmp_gt_u32 {sSPIN}, 0x400000", f"  s_cbranch_scc1 {lbl_back}"]
def tag_check(who, vp, vz):
    E.wait(vm="tag"); I(f"v_readfirstlane_b32 {sNON}, {v(vp)}"); I(f"s_cmp_eq_u32 {sNON}, 0"); I(f"s_cbranch_scc1 L_slow_tag{who}"); E.label(f"L_back_tag{who}")
    slow.extend([f"L_slow_tag{who}:", "  s_sleep 1", f"  v_mov_b32 {v(vz)}, 0", f"  buffer_load_dword {v(vp)}, {v(vz)}, {SDBG}, 0 offen sc1", "  s_waitcnt vmcnt(0)",
                 f"  v_readfirstlane_b32 {sNON}, {v(vp)}"] + spin_guard(f"L_back_tag{who}", 1) +
                [f"  s_cmp_eq_u32 {sNON}, 0", f"  s_cbranch_scc1 L_slow_tag{who}", f"  s_branch L_back_tag{who}"])
signals = {}
def signal(word, val, va, vt, off):
    signals[(word, val)] = (E, E.lg_done)
    I(f"v_mov_b32 {v(vt)}, {val}"); DS(f"ds_write_b32 {v(va)}, {v(vt)} offset:{off}", "sig")
nchk = [0]
def chk_issue(va, vt, off):
    nchk[0] += 1; DS(f"ds_read_b32 {v(vt)}, {v(va)} offset:{off}", f"chk{nchk[0]}"); return f"chk{nchk[0]}"
def chk_test(tag, val, va, vt, off, inc):
    E.wait(lg=tag)
    I(f"v_cmp_gt_u32 vcc, {val}, {v(vt)}"); I(f"s_cbranch_vccnz L_slow_{tag}"); E.label(f"L_back_{tag}")
    slow.extend([f"L_slow_{tag}:", f"  ds_read_b32 {v(vt)}, {v(va)} offset:{off}", "  s_waitcnt lgkmcnt(0)", f"  v_cmp_gt_u32 vcc, {val}, {v(vt)}"]
                + spin_guard(f"L_back_{tag}", inc) + [f"  s_cbranch_vccnz L_slow_{tag}", f"  s_branch L_back_{tag}"])
def chk_spin(val, va, vt, off):
    nchk[0] += 1; lbl = f"L_spin{nchk[0]}"
    E.label(lbl)
    DS(f"ds_read_b32 {v(vt)}, {v(va)} offset:{off}", lbl); I(f"s_sub_u32 {sSP2}, {sSP2}, 1"); I("s_cbranch_scc1 L_end")
    E.wait_all(lg=True)
    I(f"v_cmp_gt_u32 vcc, {val}, {v(vt)}"); I(f"s_cbranch_vccnz {lbl}")
def dump_stamps(who):
    if not OPT["lst"]: return
    E.wait_all(vm=True); lstamp("end"); E.wait_all(lg=True)
    n = len(lnames[who])
    for k in range(n): I(f"v_writelane_b32 v2, s{24+2*k}, {k}")
    I(f"v_writelane_b32 v2, {n}, 61"); I("v_writelane_b32 v2, s15, 60"); I("v_writelane_b32 v2, s14, 63")
    I(f"s_lshl3_add_u32 {sT0}, s2, {sW_}"); I(f"s_add_u32 {sT0}, {sT0}, {4 if who == 'H' else 0}"); I(f"s_lshl_b32 {sT0}, {sT0}, 8"); I(f"s_add_u32 {sT0}, {sT0}, {WS_ST}")
    I(f"v_lshlrev_b32 v3, 2, {vLANE}")
    VM(f"buffer_store_dword v2, v3, {SWS}, {sT0} offen")

NU = OPT["NU"]; assert NU == 2

BASE_OF = {}
for i in range(8): BASE_OF[f"X{i}"] = (2 * (i & 3) * U8, 16384)
for i, u in enumerate(range(8, 16)): BASE_OF[f"S{i}"] = (u * U8, 8192)
for i, u in enumerate([0, 3, 6, 9, 0, 3, 12, 15]): BASE_OF[f"G{i}"] = (u * U8, 24576)
DUMPS = [16 * U8, 12 * U8]
BASE_OF["DUMP0"] = (DUMPS[0], 16384); BASE_OF["DUMP1"] = (DUMPS[1], 16384); BASE_OF["XE"] = (XE, 8192); BASE_OF["HS"] = (HS, 10432); BASE_OF["OFT"] = (HS, 8192)
slot_of = {"C1": 3, "C2": 4, "C3": 5, "W1": 0, "W2": 1, "W3": 2, "C0": 6, "W0": 7, "W4": 8, "W5": 3}
RT_ = {"C0": 168, "W0": 184, "W4": 200}
ND = OPT["nd"]
CO = ["C1", "C2", "C3", "C0"]; WO = ["W1", "W2", "W3", "W0", "W4", "W5"]
SK = [["W1"], ["W1", "W4"], []][OPT["skw"]]
jobs = [(t, "sk") for t in CO[:4-ND]] + [(t, "s") for t in CO[4-ND:]] + [(t, "sk" if t in SK else "s") for t in WO] + [(t, "k") for t in WO if t not in SK] + [(t, "k") for t in CO[4-ND:]]
NJ1 = 10
def chunk_items(ch):
    i = ch[1:]
    if ch[0] == "S": return [f"S{i}", f"S{int(i)+1}"]
    return {"K": ["XE"] if ch == "KX" else [], "G": [f"G{i}"]}[ch[0]]
RED = slot_of["C2"] * 16384; assert ND <= 2
CHUNKS = ["S0", "S2", "S4", "S6"] + [f"G{i}" for i in range(4)] + ["KX", "K0", "Kp"]
PHV = {c: k + 1 for k, c in enumerate(CHUNKS)}
CEV = {"G0": 25, "G1": 49, "G2": 74, "G3": 99, "G4": 122, "G5": 145, "U0": OPT["u0s"]}
STAGES = ["Xi", "X", "S3", "S5", "dump"] + sorted(CEV, key=CEV.get) + ["T", "gsa", "gst", "pj"]
PCV = {c: k + 1 for k, c in enumerate(STAGES)}
for n, s in slot_of.items(): BASE_OF[n] = (s * 16384, 16384)

class Item: pass
items = {}
for n, (b, sz) in BASE_OF.items():
    it = Item(); it.name, it.base, it.size = n, b, sz; it.first_bar = None; it.last_read = None; it.reader = None; items[n] = it
bar_names = []
def note_read(name):
    it = items[name]
    if it.first_bar is None: it.first_bar = len(E.barriers)
    it.last_read = len(E.lg); it.last_bar = len(E.barriers); it.reader = E

E = E0
E.label(f"{NAME}_kernel")
I("s_cmp_ge_u32 s2, 256"); I("s_cbranch_scc1 L_end")
I("s_load_dwordx16 s[16:31], s[0:1], 0")
I("s_getpc_b64 s[98:99]"); I(f"s_bfe_u32 {sT0}, s2, 0x20003"); I("v_lshrrev_b32 v80, 3, v0"); I(f"v_lshl_add_u32 v80, v80, 2, {sT0}"); I("v_lshlrev_b32 v80, 7, v80")
VM("global_load_dword v95, v80, s[98:99]", "code")
I("s_load_dwordx16 s[32:47], s[0:1], 64")
I("s_memrealtime s[14:15]")
I("v_lshrrev_b32 v80, 6, v0"); I(f"v_and_b32 {vLANE}, 63, v0"); I(f"v_readfirstlane_b32 {sT3}, v80")
sR8 = "s19" if False else None
if OPT["map"] == 0:
    I(f"s_bfe_u32 {sT0}, s2, 0x20001"); I(f"s_lshr_b32 {sCL}, s2, 6"); I(f"s_lshl2_add_u32 {sC_}, {sT0}, {sCL}")
    I(f"s_bfe_u32 {sGL}, s2, 0x30003"); I(f"s_lshl1_add_u32 {sJ0}, {sCL}, {sGL}")
    I(f"s_and_b32 {sGH}, s2, 1"); I(f"s_lshl3_add_u32 {sG_}, {sGH}, {sGL}"); I(f"s_mov_b32 {sQW}, {sGL}")
    if OPT["xj"]: I(f"s_add_u32 {sJ0}, {sJ0}, {sT0}")
else:
    I(f"s_and_b32 {sT0}, s2, 1"); I(f"s_lshr_b32 {sQW}, s2, 5"); I(f"s_lshl3_add_u32 {sC_}, {sT0}, {sQW}")
    I(f"s_bfe_u32 {sCL}, s2, 0x20003"); I(f"s_bfe_u32 {sT0}, s2, 0x20001"); I(f"s_lshl2_add_u32 {sG_}, {sT0}, {sCL}")
    I(f"s_and_b32 {sGL}, {sG_}, 7"); I(f"s_lshr_b32 {sGH}, {sG_}, 3"); I(f"s_lshl1_add_u32 {sJ0}, {sCL}, {sQW}")
for i in range(2): ktab(i)
I(f"s_and_b32 {sW_}, {sT3}, 3"); I(f"s_lshl_b32 {sM4}, {sW_}, 12")
I(f"v_lshrrev_b32 v81, 3, {vLANE}"); I(f"v_and_b32 v82, 7, {vLANE}")
I("v_lshrrev_b32 v84, 1, v81"); I("v_xor_b32 v83, v82, v84"); I("v_lshlrev_b32 v83, 4, v83"); I("v_xor_b32 v85, 64, v83")
I(f"v_lshlrev_b32 v78, 2, {vLANE}"); I("v_mov_b32 v79, 0"); I(f"v_add_u32 v78, {PRG}, v78"); DS("ds_write_b32 v78, v79", "prz")
I(f"s_mov_b32 {sSP2}, 0x1000000"); I(f"s_and_b32 {sCW}, {sCL}, {3 if OPT['wr'] == 4 else 1}")
I(f"s_cmp_ge_u32 {sT3}, 4"); I("s_cbranch_scc1 L_helper")

E = EC
vP1 = [2, 3, 4, 5]; vGT = 6; vNM = 7; vR2 = 0
FB0, NFB = 8, 6
ACCG = [32, 64, 96]; ACCU = [48, 80, 112]; ACC_R, ACC_I = 96, 112
XF = 128
vXo = [86, 87, 88, 89]
def cbar(name, vm=(), lg=()):
    E.wait(vm=vm, lg=lg); E.barrier(); bar_names.append(name)
I("v_and_b32 v84, 4, v81"); I("v_and_b32 v80, 3, v81"); I("v_lshl_add_u32 v84, v84, 2, v80")
I(f"s_lshl2_add_u32 {sT0}, {sC_}, {sW_}"); I(f"s_lshl_b32 {sT0}, {sT0}, 5")
I(f"v_add_lshl_u32 v84, v84, {sT0}, 10")
I(f"v_add_u32 {v(vXo[0])}, v84, v83"); I(f"v_add_u32 {v(vXo[1])}, v84, v85")
I(f"v_add_u32 {v(vXo[2])}, 6144, {v(vXo[0])}"); I(f"v_add_u32 {v(vXo[3])}, 9216, {v(vXo[1])}"); I(f"v_add_u32 {v(vXo[1])}, 3072, {v(vXo[1])}")
I("s_mov_b32 s50, 2097152"); I("s_mov_b32 s51, 0x20000")
E.wait_all(lg=True)
I("s_mov_b64 s[48:49], s[16:17]")
def X_issue(i):
    I(f"s_add_u32 m0, {sM4}, {items[f'X{i}'].base}")
    for q in range(4): VM(f"buffer_load_dwordx4 {v(vXo[q])}, {SX}, {sK[i]} offen" + (f" offset:{q*1024}" if q else "") + " lds", f"X{i}")
X_issue(0); X_issue(1)
if OPT["prio"] == 1: I("s_setprio 1")
for i in range(2, 8): ktab(i)
X_issue(2)
if OPT["x3"]: X_issue(3)
cbar("b0")
I(f"v_and_b32 v90, 31, {vLANE}"); I(f"v_lshrrev_b32 v91, 5, {vLANE}")
I("v_bfe_u32 v92, v90, 1, 3"); I("v_xor_b32 v92, v92, v91"); I("v_lshlrev_b32 v92, 4, v92"); I("v_lshl_add_u32 v92, v90, 7, v92")
I(f"v_add_u32 {v(vP1[0])}, {sM4}, v92")
for s in range(1, 4): I(f"v_xor_b32 {v(vP1[s])}, {32*s}, {v(vP1[0])}")
I(f"s_mov_b32 {sC11}, 0x3f803f80"); I(f"s_mov_b32 {sC10}, 0x00003f80"); I(f"s_mov_b32 {sC01}, 0x3f800000")
for r in range(64, 72): I(f"v_mov_b32 v{r}, 0")
srd(SWS, 46, WS_SIZE); srd(SOUT, 42, 4194304)
I(f"s_cmp_ge_u32 {sW_}, 2"); srd_sel(SG, 36, 38, 1409024); srd_sel(SC, 26, 28, 524288); I(f"s_mul_i32 {sM6}, {sW_}, 6144"); srd(SWD, 40, 1409024)
I(f"s_mov_b32 {sSPIN}, 0"); I("s_mov_b32 s15, 0"); I("s_mov_b64 s[22:23], s[32:33]"); I("s_mov_b64 s[20:21], s[40:41]")
I(f"v_bfe_u32 v92, {vLANE}, 2, 2"); I("v_lshl_add_u32 v92, v91, 3, v92"); I(f"v_mul_u32_u24 {v(vGT)}, 192, v92")
I(f"v_and_b32 v93, 16, {vLANE}"); I(f"v_lshl_add_u32 {v(vGT)}, v93, 1, {v(vGT)}")
I(f"v_and_b32 v93, 1, {vLANE}"); I(f"v_lshl_add_u32 {v(vGT)}, v93, 4, {v(vGT)}")
I(f"v_and_b32 v93, 2, {vLANE}"); I(f"v_lshl_add_u32 {v(vGT)}, v93, 2, {v(vGT)}")
I(f"s_lshl_b32 {sT0}, {sW_}, 7"); I(f"s_add_u32 {sT0}, {sT0}, {RTAB}")
I("v_bfe_u32 v93, v90, 2, 1"); I("v_lshlrev_b32 v94, 4, v93"); I("v_lshrrev_b32 v93, 3, v90"); I("v_lshl_add_u32 v94, v93, 2, v94")
I("v_and_b32 v93, 3, v90"); I("v_add_u32 v94, v94, v93"); I(f"v_lshl_add_u32 v94, v94, 2, {sT0}")
FR = dict(r=72, t=73, v=74, w=75)
I(f"v_and_b32 v72, 3, {vLANE}"); I("v_lshlrev_b32 v72, 2, v72"); I(f"v_add_u32 v72, {PRG}, v72")
I(f"s_lshl_b32 {sT0}, {sW_}, 2"); I(f"s_add_u32 {sT0}, {sT0}, {PRG}"); I(f"v_mov_b32 v75, {sT0}")
def csig(st): signal("PC", PCV[st], FR["w"], FR["v"], 0)
for i in range(8):
    it = items[f"X{i}"]
    E.wait(vm=it.name)
    for s in range(4):
        DS(f"ds_read_b128 {v(XF + 16*i + 4*s, 4)}, {v(vP1[s])} offset:{it.base & 0xffff}", f"xr{i}_{s}"); note_read(it.name)
    if not OPT["x3"] and i + 3 < 8: X_issue(i + 3)
    if OPT["x3"] and i + 4 < 8: E.wait(lg=f"xr{i}_3"); X_issue(i + 4)
    if i == OPT["xi"]: csig("Xi")
    if i == 4 and OPT["mw"]:
        I(f"s_cmp_eq_u32 {sW_}, 1"); I("s_cselect_b64 s[52:53], s[38:39], s[36:37]"); I(f"s_cmp_eq_u32 {sW_}, 2"); I("s_cselect_b64 s[52:53], s[40:41], s[52:53]")
        I(f"s_cmp_eq_u32 {sW_}, 3"); I("s_cselect_b64 s[52:53], s[26:27], s[52:53]"); I("s_mov_b32 s54, 1409024"); I("s_cselect_b32 s54, 524288, s54"); I("s_mov_b32 s55, 0x20000")
        I(f"s_cselect_b32 {sT0}, 16, 43"); I(f"s_mul_i32 {sT1}, s2, {sT0}"); I(f"s_sub_u32 {sT0}, {sT0}, 1"); I(f"v_min_u32 v76, {sT0}, {vLANE}"); I(f"v_add_lshl_u32 v76, v76, {sT1}, 7")
        VM("buffer_load_dword v77, v76, s[52:55], 0 offen", "mw")
        I("s_mov_b64 s[52:53], s[28:29]"); I(f"s_cmp_eq_u32 {sW_}, 3"); I("s_cselect_b32 s54, 524288, 0")
        VM("buffer_load_dword v77, v76, s[52:55], 0 offen", "mw")
    for s in range(4):
        E.wait(lg=f"xr{i}_{s}")
        for d in range(4):
            x = v(XF + 16*i + 4*s + d)
            I(f"v_dot2c_f32_bf16 v{64+d}, {sC11}, {x}"); I(f"v_dot2c_f32_bf16 v{68+d}, {x}, {x}")
    lstamp(f"X{i}")
csig("X"); gchk = {"S0": chk_issue(FR["r"], FR["t"], 16)}
I("v_add_f32 v64, v64, v65"); I("v_add_f32 v66, v66, v67"); I("v_add_f32 v68, v68, v69")
I("v_add_f32 v64, v64, v66"); I("v_add_f32 v70, v70, v71"); I("v_mov_b32 v65, v64"); I("v_add_f32 v68, v68, v70"); I("v_mov_b32 v69, v68")
I("v_permlane32_swap_b32 v64, v65"); I("v_permlane32_swap_b32 v68, v69")
I("v_add_f32 v64, v64, v65"); I("v_mul_f32 v64, 0x3b000000, v64")
runall(bf16r_ops(65, 64)); I(f"v_sub_f32 {v(vNM)}, 0, v65")
I(f"s_sub_u32 {sT0}, 65536, {sM4}")
for s in range(4): I(f"v_add_u32 {v(vP1[s])}, {sT0}, {v(vP1[s])}")
win = {"p1": 65536, "c1": 0, "gt": 0, "lin": 0, "wt": 0}
def burst(i):
    for d in range(16):
        x = v(XF + 16*i + d)
        I(f"v_dot2_f32_bf16 v{32+2*d}, {x}, {sC10}, {v(vNM)}"); I(f"v_dot2_f32_bf16 v{33+2*d}, {x}, {sC01}, {v(vNM)}")
qC, qB = [], []
marks = set()
def run_op(op):
    if isinstance(op, tuple):
        if op[0] == "hold": holdq[0] = op[1]
        else: marks.add(op[1])
    elif isinstance(op, str): I(op)
    else: op()
def need_mark(m):
    while m not in marks:
        q = next(q for q in (qC, qB) if ("mark", m) in [o for o in q if isinstance(o, tuple)])
        run_op(q.pop(0))
def cvt_ops(i):
    ops = []
    for d in range(16):
        ops.append(f"v_cvt_pk_bf16_f32 {v(XF + 16*i + d)}, v{32+2*d}, v{33+2*d}")
        if d & 3 == 3: ops.append(("mark", f"cen{4*i + (d>>2)}"))
    return ops
B = ["v_add_f32 v68, v68, v69", "v_mul_f32 v68, 0x3b000000, v68", "v_fma_f32 v68, -v64, v64, v68", "v_max_f32 v68, 0, v68"]
B += bf16r_ops(68, 68) + ["v_add_f32 v68, 0x3727c5ac, v68"] + bf16r_ops(68, 68) + ["v_sqrt_f32 v68, v68", lambda: DS("ds_write_b32 v94, v65 offset:512", "tabw")]
B += bf16r_ops(68, 68) + ["v_rcp_f32 v68, v68", lambda: DS("ds_write_b32 v94, v68", "tabw"), f"v_mul_f32 {v(vR2)}, v68, v68", ("mark", "tab")]
qB.extend(B)

class Slot: pass
slots = []
def add_slot(chunk, reads, mfma, needs=()):
    s = Slot(); s.chunk, s.reads, s.mfma, s.needs = chunk, reads, mfma, needs; slots.append(s)
for i in range(8):
    for s in range(4):
        f = 4*i + s
        for comp in range(2):
            acc = v(ACC_I if comp else ACC_R, 16)
            add_slot(f"S{i}", [("p1", f"S{i}", s, comp * 4096)], lambda b, f=f, acc=acc: f"{MF} {acc}, {v(XF+4*f,4)}, {v(b[0],4)}, {acc if f else 0}", needs=[f"cen{f}"])
P2 = len(slots)
order = [(0, s, u, m) for s in range(4) for u in range(2) for m in range(2)] + [(0, s, 2, m) for s in range(4) for m in range(2)]
order += [(i, s, u, m) for i in range(1, 8 - NU) for s in range(4) for u in range(3) for m in range(2)]
order += [(i, s, u, m) for u in range(3) for i in range(8 - NU, 8) for s in range(4) for m in range(2)]
unit_done = {}
for (i, s, u, m) in order:
    f = 4*i + s; acc = v((ACCU if m else ACCG)[u], 16)
    nd = (["tab"] if f == 0 else []) + (["dumped"] if (f, u) == (0, 2) else [])
    add_slot(f"G{i}", [("gt", f"G{i}", m * 12288 + 16*s*192 + 64*u)], lambda b, f=f, acc=acc: f"{MF} {acc}, {v(b[0],4)}, {v(XF+4*f,4)}, {acc if f else 0}", needs=nd)
    unit_done[u] = len(slots) - 1
P3 = len(slots)
ACC3 = 32; BASE = 48
vHST = 138; vDSK = 140; vHR, vWT, vXR, vTAB3, vOUT = 128, 129, 130, 131, 132
sHG = ["s16", "s17", "s18"]
EPO = 144; vC1 = [134, 135, 136, 137]; vC2 = [2, 3, 4, 5]
cGo = [128, 129, 130]; cCo = [132, 133, 134, 135]
ACC4 = 48; ACCS = [64, 80]
AQ = list(range(172, 256, 4)) + list(range(108, 128, 4))
BASE = 144; PX = 108
P3BUFS = list(range(8, 32, 4)) + [96, 100, 104]
vA = 139; vWT2 = 133; vA2 = 7; vPB = 0
aloads = []; started = set()
for n, (t, hv) in enumerate(jobs):
    if n == NJ1: P4 = len(slots)
    for s in range(4):
        idx = {}
        for h_ in hv: idx[h_] = len(aloads); aloads.append((f"a{len(aloads)}", AQ[len(aloads) % len(AQ)], t, s, h_, s == 0 and h_ == hv[0]))
        for a_ in range(2):
            rd = ("c1", t, s, a_) if t[0] == "C" else ("wt", t, 16*s*128, a_)
            for k_, h_ in enumerate(hv):
                r_ = ([ACC3, ACC4] if h_ == "k" else ACCS)[a_]; acc = v(r_, 16)
                z = r_ not in started; started.add(r_)
                tag, q = aloads[idx[h_]][:2]
                add_slot(f"J{n}", [rd] if k_ == 0 else [], lambda b, q=q, acc=acc, z=z: f"{MF} {acc}, {v(q,4)}, {v(b[0],4)}, {0 if z else acc}")
                slots[-1].atag = tag; slots[-1].arel = idx[h_] + 1 if a_ == 1 else None
M = len(slots)
first_slot = {}
for m, s in enumerate(slots): first_slot.setdefault(s.chunk, m)
pool = [FB0 + 4*k for k in range(NFB)]
def newfb(): return pool.pop(0)
def set_win(kind, regs, base, span):
    cur = win[kind]
    if not (cur <= base and base + span <= cur + 65536):
        new = min((base // 49152) * 49152, MISC - 65536)
        if not (new <= base and base + span <= new + 65536): new = base
        for r in regs: I(f"v_add_u32 {v(r)}, {(new - cur) & 0xffffffff}, {v(r)}")
        win[kind] = cur = new
    return cur
def emit_reads(m):
    s = slots[m]; s.bufs = []; s.tags = []; s.own = bool(s.reads)
    if not s.reads: s.bufs = slots[m-1].bufs
    for rd in s.reads:
        b = newfb(); s.bufs.append(b); tag = f"rd{m}_{rd[0]}"; s.tags.append(tag)
        kind, it = rd[0], items[rd[1]]
        if kind == "p1":
            w = set_win(kind, vP1, it.base, it.size); DS(f"ds_read_b128 {v(b,4)}, {v(vP1[rd[2]])} offset:{it.base - w + rd[3]}", tag)
        elif kind == "c1":
            w = set_win(kind, vC1 + vC2, it.base, it.size); DS(f"ds_read_b128 {v(b,4)}, {v((vC2 if rd[3] else vC1)[rd[2]])} offset:{it.base - w}", tag)
        else:
            regs, pitch = ([vGT], 192) if kind == "gt" else ([vWT, vWT2], 128)
            reg = regs[rd[3]] if kind == "wt" else vGT
            w = set_win(kind, regs, it.base, it.size)
            DS(f"ds_read_b64_tr_b16 {v(b,2)}, {v(reg)} offset:{it.base - w + rd[2]}", tag)
            DS(f"ds_read_b64_tr_b16 {v(b+2,2)}, {v(reg)} offset:{it.base - w + rd[2] + 4*pitch}", tag)
        note_read(it.name)
events = {}
def at(m, fn): events.setdefault(m, []).append(fn)
post = {8*i + 7: (lambda i=i: (need_mark(f"cen{4*i+7}"), burst(i + 2), qC.extend(cvt_ops(i + 2)))) for i in range(6)}
at(52, lambda: qB.extend([f"v_lshlrev_b32 {v(vNM)}, 6, {vLANE}", f"v_bfe_u32 v64, {vLANE}, 1, 2", f"v_lshl_add_u32 {v(vNM)}, v64, 4, {v(vNM)}",
                          f"v_add_u32 {v(vNM)}, {sM4}, {v(vNM)}", f"v_add_u32 {v(vNM)}, {DUMPS[1]}, {v(vNM)}", ("mark", "dadr")]))
dtag = {}
at(P2 - 1, lambda: dtag.__setitem__(0, chk_issue(FR["r"], FR["t"], 0)))
def dump_op(j, comp):
    need_mark("dadr")
    if (j, comp) == (0, 1): chk_test(dtag[0], PCV["S5"], FR["r"], FR["t"], 0, -12)
    if j and comp == 0: I(f"v_xor_b32 {v(vNM)}, {16 * (j ^ (j - 1))}, {v(vNM)}")
    DS(f"ds_write_b128 {v(vNM)}, {v((ACC_I if comp else ACC_R) + 4*j, 4)} offset:{DUMPS[comp] - DUMPS[1]}", "dump")
    if (j, comp) == (3, 1): marks.add("dumped")
def dump64(j, comp, hf):
    need_mark("dadr")
    if j and comp == 0 and hf == 0: I(f"v_xor_b32 {v(vNM)}, {16 * (j ^ (j - 1))}, {v(vNM)}")
    if comp == 0 and hf == 0: I(f"v_add_u32 {v(vP1[1])}, {DUMPS[0]}, {v(vNM)}")
    DS(f"ds_write_b64 {v(vNM if comp else vP1[1])}, {v((ACC_I if comp else ACC_R) + 4*j + 2*hf, 2)} offset:{8*hf}", "dump")
    if (j, comp, hf) == (3, 1, 1): marks.add("dumped")
if OPT["d64"]:
    for k in range(16): at(P2 + (k * 15) // 16, lambda k=k: dump64(k >> 2, (k >> 1) & 1, k & 1))
else:
    for k in range(8): at(P2 + 1 + (k * OPT["dsp"]) // 2, lambda k=k: dump_op(k >> 1, k & 1))
def fr_move():
    I(f"v_mov_b32 {v(vP1[0])}, v72"); I(f"v_mov_b32 {v(vP1[3])}, v75"); FR.update(r=vP1[0], t=vP1[1], v=vP1[2], w=vP1[3])
at(P2 - 2, fr_move)
if OPT["mw"]: at(P2 - 3, lambda: E.wait(vm="mw"))
at(31, lambda: csig("S3")); at(47, lambda: csig("S5"))
at(P2 + OPT["bd"], lambda: (need_mark("dumped"), E.wait(lg=["dump", "tabw"]), csig("dump")))
LAND = {"G2": ["G4"], "G3": ["G5", "G6"], "G4": ["G7"]}
for st, sl in CEV.items(): at(P2 + sl, lambda st=st: (E.wait(vm=LAND.get(st, []), lg=["cof2"] if st == "G1" else []), csig(st)))
GATE = {c: (16, PHV[c]) for c in CHUNKS[:8]}
GATE["S0"] = (16, PHV["S2"]); GATE["S4"] = (16, PHV["S6"])
GATE.update({"G4": (0, PCV["G2"]), "G5": (0, PCV["G3"]), "G6": (0, PCV["G4"])})
del GATE["S2"], GATE["S6"]
for c in list(GATE)[1:]: at(first_slot[c] - OPT["D"] - 6, lambda c=c: gchk.__setitem__(c, chk_issue(FR["r"], FR["t"], GATE[c][0])))
cplaced = []
cWo = [168, 169, 170, 171]
def c_offsets():
    I(f"s_lshl_b32 {sT0}, {sW_}, 11"); I(f"s_add_u32 {sT0}, {sT0}, {HS}"); I(f"v_lshl_add_u32 v136, {vLANE}, 4, {sT0}")
    DS("ds_read_b128 v[128:131], v136", "cof"); note_read("OFT")
at(P2 + 24, c_offsets)
at(P2 + 45, lambda: (DS("ds_read_b128 v[132:135], v136 offset:1024", "cof2"), note_read("OFT")))
at(P2 + 76, lambda: qB.extend([lambda: E.wait(lg="cof2"), f"v_readfirstlane_b32 {sNON}, v135", "v_mov_b32 v168, v134"] + [f"v_add_u32 v{168+q}, {7168*q}, v134" for q in range(1, 4)]
                              + ["v_add_u32 v134, 14336, v132", "v_add_u32 v135, 14336, v133"] + q_setup() + [("mark", "cw")]))
def c_load(name, ta, step2, gate=None):
    k = name[0]; i = int(name[1:]); base = items[name].base
    tag = {}
    if gate:
        off, val = (0, PCV[gate]) if gate in PCV else (32, gate)
        at(P2 + ta - 6, lambda: tag.__setitem__(0, chk_issue(FR["r"], 137, off)))
    n = 6 if k == "G" else 4
    for q in range(n):
        def op(q=q):
            if q == 0:
                E.wait(lg="cof")
                if gate: chk_test(tag[0], val, FR["r"], 137, off, -(13 + len(cplaced))); cknown.append(("PC" if off == 0 else "PD", val))
                cplaced.append((name, list(cknown)))
            if k == "G":
                if q % 3 == 0:
                    I(f"s_add_u32 m0, {sM6}, {base + 1024*q}")
                    I(f"s_mul_i32 {sSO}, {sK[i]}, 1376" if q == 0 else f"s_add_u32 {sSO}, {sSO}, {16*2752}")
                VM(f"buffer_load_dwordx4 {v(cGo[q%3])}, {SG}, {sSO} offen" + (f" offset:{(q%3)*1024}" if q % 3 else "") + " lds", name)
            else:
                if q == 0:
                    need_mark("cw"); I(f"s_add_u32 m0, {sM4}, {base}")
                    if k == "C": q_h(sSO, i); I(f"s_lshl_b32 {sSO}, {sSO}, 7")
                    else: w_soff(sSO, i, "s19")
                VM(f"buffer_load_dwordx4 {v((cCo if k == 'C' else cWo)[q])}, {SC if k == 'C' else SWD}, {sSO} offen" + (f" offset:{q*1024}" if q else "") + " lds", name)
        at(P2 + ta + (q * step2) // 2, op)
cknown = []
c_load("G4", 37, 5, "G0"); c_load("G6", 52, 4); c_load("G5", 64, 4, "G1"); c_load("G7", 77, 5); c_load("C1", 93, 4)
c_load("C2", OPT["c1"], 4); c_load("C3", OPT["c1"] + 8, 4);
if OPT["wl"] < 3: c_load("W1", 141, 4)
if OPT["wl"] < 2: c_load("W2", 156, 3, "G5"); c_load("W3", 162, 3)
def st_addr():
    o = [f"s_lshl2_add_u32 {sT0}, {sC_}, {sW_}", f"s_mul_i32 {sT0}, {sT0}, {152*1024}", f"v_lshl_add_u32 {v(vHST)}, {vLANE}, 4, {sT0}", f"s_lshl_b32 {sT0}, {sG_}, 11"]
    for uu in range(3):
        o += [f"s_add_u32 {sT3}, {sT0}, {65536 + 15*uu*2048}",
              lambda uu=uu: (I(f"s_cmp_lt_u32 {sG_}, {14 if uu == 2 else 15}"), I(f"s_cselect_b32 {sHG[uu]}, {sT3}, 0x40000000"))]
    o += [f"s_and_b32 {sT1}, {sW_}, 1", f"s_lshr_b32 {sT2}, {sW_}, 1", f"s_lshl1_add_u32 {sT0}, {sC_}, {sGH}", f"s_lshl1_add_u32 {sT0}, {sT0}, {sT2}",
          f"s_mul_i32 {sT0}, {sT0}, {152*1024}", f"s_lshl_b32 {sT3}, {sT1}, 12", f"s_add_u32 {sT0}, {sT0}, {sT3}", f"v_lshl_add_u32 {v(vA)}, {vLANE}, 4, {sT0}",
          f"v_lshlrev_b32 {v(vDSK)}, 16, v131",
          f"s_mul_i32 {sT0}, {sGH}, {4*152*1024}", f"s_sub_u32 {sT0}, {2*152*1024}, {sT0}", f"v_add_u32 {v(vA2)}, {sT0}, {v(vA)}", ("mark", "sta1")]
    return o
def st_addr2():
    o = [f"s_and_b32 {sT1}, {sW_}, 1", f"s_lshr_b32 {sT2}, {sW_}, 1", f"v_lshrrev_b32 v141, 5, {vLANE}", f"v_and_b32 v143, 31, {vLANE}"]
    o += [f"s_lshl1_add_u32 {sT3}, {sGL}, {sT1}"]
    o += [f"s_lshl_b32 {sT3}, {sT3}, 7", f"s_lshl1_add_u32 {sT0}, {sGH}, {sT2}", f"s_lshl2_add_u32 s13, {sC_}, {sT0}", "s_lshl_b32 s13, s13, 16", f"s_add_u32 s13, s13, {sT3}",
          "v_lshlrev_b32 v142, 15, v141", "v_lshl_add_u32 v142, v143, 2, v142", f"v_add_u32 {v(vOUT)}, s13, v142"]
    o += [f"s_lshl_b32 {sT0}, {sT0}, 7", f"s_add_u32 {sT0}, {sT0}, {RTAB}", f"v_lshl_add_u32 {v(vTAB3)}, v141, 6, {sT0}",
          f"s_lshl_b32 {sT0}, {sT1}, 6", f"s_lshl_b32 {sT3}, {sT2}, 12", f"s_add_u32 {sT3}, {sT3}, {sT0}", f"s_add_u32 {sT3}, {sT3}, {XE}",
          "v_lshlrev_b32 v142, 11, v141", "v_lshl_add_u32 v142, v143, 1, v142", f"v_add_u32 {v(vXR)}, {sT3}, v142",
          f"s_lshl_b32 {sT3}, {sW_}, 12", f"s_add_u32 {sT3}, {sT3}, {RED}", f"v_lshl_add_u32 {v(vHR)}, {vLANE}, 4, {sT3}"]
    o += [f"v_bfe_u32 v142, {vLANE}, 2, 2", "v_lshl_add_u32 v142, v141, 3, v142", "v_lshlrev_b32 v142, 7, v142",
          f"v_and_b32 v6, 16, {vLANE}", "v_lshl_add_u32 v142, v6, 1, v142", f"v_and_b32 v6, 3, {vLANE}", "v_lshl_add_u32 v142, v6, 3, v142",
          f"v_and_b32 v6, 8, {vLANE}", "v_lshlrev_b32 v6, 3, v6", f"v_xor_b32 v6, {sT0}, v6", f"s_lshl_b32 {sT3}, {sT1}, 13", f"v_add3_u32 {v(vWT)}, v142, v6, {sT3}", f"v_xor_b32 {v(vWT2)}, 64, {v(vWT)}"]
    o += [f"s_mul_i32 {sT0}, {sT1}, 12288", "v_bfe_u32 v142, v143, 1, 3", "v_xor_b32 v142, v142, v141", "v_lshlrev_b32 v142, 4, v142", "v_lshl_add_u32 v142, v143, 7, v142",
          f"v_add_u32 {v(vC1[0])}, {sT0}, v142"] + [f"v_xor_b32 {v(vC1[s])}, {32*s}, {v(vC1[0])}" for s in range(1, 4)] + [f"v_xor_b32 {v(vC2[s])}, 4096, {v(vC1[s])}" for s in range(4)] + [("mark", "sta")]
    return o
at(P2 + 120, lambda: qB.extend(st_addr()))
def glu_epi(u):
    ops = []; o = EPO + 8*u
    for j in range(8):
        g0, u0 = ACCG[u] + 2*j, ACCU[u] + 2*j
        ops += [f"v_mul_f32 {v(u0)}, {v(vR2)}, {v(u0)}", f"v_mul_f32 {v(u0+1)}, {v(vR2)}, {v(u0+1)}",
                f"v_mul_f32 {v(u0)}, {v(g0)}, {v(u0)}", f"v_mul_f32 {v(u0+1)}, {v(g0+1)}, {v(u0+1)}", f"v_cvt_pk_bf16_f32 {v(o+j)}, {v(u0)}, {v(u0+1)}"]
        if j & 3 == 3:
            ops.append(lambda fr=j >> 2: VM(f"buffer_store_dwordx4 {v(o + 4*fr, 4)}, {v(vHST)}, {SWS}, {sHG[u]} offen offset:{fr*1024} sc1", "gst" if u == 2 else "gsa"))
    return ops + [("mark", f"epi{u}")]
for u in range(2): at(unit_done[u] + 3, lambda u=u: qB.extend(glu_epi(u)))
def base_ops():
    ops = [f"v_mov_b32 {v(BASE+r)}, 0" for r in range(16)]
    def rdx(r): DS(f"ds_read_u16_d16_hi {v(BASE+r)}, {v(vXR)} offset:{128*r}", f"xe{r}"); note_read("XE")
    ops += [lambda r=r: rdx(r) for r in range(16)]
    R3, M3, t0, t1, p = 160, 164, 168, 169, 170
    rnd = [f"v_cvt_pk_bf16_f32 {v(p)}, {v(t0)}, {v(t1)}", f"v_lshlrev_b32 {v(t0)}, 16, {v(p)}", f"v_and_b32 {v(t1)}, 0xffff0000, {v(p)}"]
    for j in range(4):
        ops += [lambda j=j: DS(f"ds_read_b128 {v(R3,4)}, {v(vTAB3)} offset:{16*j}", f"r3{j}"), lambda j=j: DS(f"ds_read_b128 {v(M3,4)}, {v(vTAB3)} offset:{512+16*j}", f"m3{j}"),
                ("hold", 3), lambda j=j: E.wait(lg=f"m3{j}")]
        for e in (0, 2):
            r = 4*j + e
            ops += [f"v_sub_f32 {v(t0)}, {v(BASE+r)}, {v(M3+e)}", f"v_sub_f32 {v(t1)}, {v(BASE+r+1)}, {v(M3+1+e)}"] + rnd
            ops += [f"v_mul_f32 {v(t0)}, {v(t0)}, {v(R3+e)}", f"v_mul_f32 {v(t1)}, {v(t1)}, {v(R3+1+e)}"] + rnd
            ops += [f"v_mul_f32 {v(t0)}, {v(t0)}, {v(vDSK)}", f"v_mul_f32 {v(t1)}, {v(t1)}, {v(vDSK)}"] + rnd
            ops += [f"v_add_f32 {v(BASE+r)}, {v(BASE+r)}, {v(t0)}", f"v_add_f32 {v(BASE+r+1)}, {v(BASE+r+1)}, {v(t1)}"]
    return ops + [("mark", "base")]
holdq = [0]

def segment(lo, hi, Dof, lim, pre_bar):
    rn = lo; held = []
    for m in range(lo - 1, hi):
        c0 = E.count + E.nops
        if m >= lo:
            s = slots[m]
            for n in s.needs: need_mark(n)
            tags = list(s.tags)
            if m % 2 == 0 and m + 1 < hi: tags += slots[m+1].tags
            E.wait(vm=[s.atag] if m >= P3 else [], lg=tags)
            I(s.mfma(s.bufs)); c0 = E.count + E.nops
            if s.own: pool.extend(held); held = list(s.bufs)
            if m >= P3:
                if s.arel: adone[0] = max(adone[0], s.arel)
                a_issue(OPT["ar"])
            if first_slot[s.chunk] == m and m < P3: lstamp(s.chunk)
            if OPT["lst"] == 9 and m >= P2 + OPT["l0"] and (m - P2 - OPT["l0"]) % OPT["ld"] == 0: LSET["C"].append(f"m{m-P2}"); lstamp(f"m{m-P2}")
            for fn in events.get(m, []): fn()
        nr = 0
        while rn < hi and rn <= m + Dof(m) and len(pool) >= len(slots[rn].reads) and (nr < 2 or m < lo):
            ch = slots[rn].chunk
            if first_slot[ch] == rn:
                if pre_bar: pre_bar(ch)
                if ch in GATE:
                    chk_test(gchk[ch], GATE[ch][1], FR["r"], FR["t"], GATE[ch][0], -(list(GATE).index(ch) + 1))
                    cknown.append(("PC" if GATE[ch][0] == 0 else "PH", GATE[ch][1]))
            emit_reads(rn); rn += 1; nr += 1
        assert rn >= min(hi, m + 3), (m, rn)
        if m >= lo:
            n = 0
            while qC and (n < 3 or isinstance(qC[0], tuple)): run_op(qC.pop(0)); n += 1
            if holdq[0]: holdq[0] -= 1
            while qB and not holdq[0] and (E.count + E.nops - c0 < lim - (m & 1) or isinstance(qB[0], tuple)): run_op(qB.pop(0))
            if m in post: post[m]()
    pool.extend(held)
retired = set()
def D2(m): return OPT["D"]
anext = [0]; aok = {"C": False, "W": False, "L": False}; adone = [0]
def a_issue(n):
    while n > 0 and anext[0] < len(aloads):
        tag, q, t, s_, h_, first = aloads[anext[0]]
        if not aok["L" if t in ("W4", "W5") else t[0]] or anext[0] - adone[0] >= min(len(AQ), OPT["al"]): return
        if first:
            i = int(t[1:])
            if t[0] == "C": q_h(sSO, i); I(f"s_lshl_b32 {sSO}, {sSO}, 13")
            else:
                q_u(sSO, i); I(f"s_cmp_eq_u32 {sSO}, 11"); I(f"s_cselect_b32 {sSO}, 0x20000, {sSO}"); I(f"s_lshl_b32 {sSO}, {sSO}, 13"); I(f"s_add_u32 {sSO}, {sSO}, 65536")
        VM(f"buffer_load_dwordx4 {v(q,4)}, {v(vA if h_ == 'k' else vA2)}, {SWS}, {sSO} offen" + (f" offset:{s_*1024}" if s_ else "") + " sc1", tag)
        anext[0] += 1; n -= 1
if OPT["ea"]:
    etag = {}
    at(P2 + OPT["ea"] - 6, lambda: etag.__setitem__(0, chk_issue(FR["r"], FR["t"], 16)))
    at(P2 + OPT["ea"], lambda: (need_mark("sta1"), chk_test(etag[0], PHV["K0"], FR["r"], FR["t"], 16, -11), aok.__setitem__("C", True)))
    for m_ in range(OPT["ea"], 192): at(P2 + m_, lambda: a_issue(1) if anext[0] < 12 else None)
burst(0); runall([o for o in cvt_ops(0) if isinstance(o, str)]); marks.update(f"cen{k}" for k in range(4)); burst(1); qC.extend(cvt_ops(1))
segment(0, P3, D2, 6, None)
PBAR = {"J0": "P0", "J2": "P1", f"J{OPT['gj']}": "P2", "J8": "P3", "J12": "P4"}
def p3bar(ch):
    if ch in PBAR:
        cbar("b" + PBAR[ch], vm=[{0: "W3", 2: "W1", 3: "C3"}[OPT["wl"]]])
        if PBAR[ch] == "P1": aok["W"] = True
        if PBAR[ch] == "P2": aok["L"] = True
    lstamp(ch)
lstamp("T"); csig("T")
need_mark("epi1")
qB.extend(glu_epi(2)); need_mark("epi2")
pool[:] = P3BUFS
sa = st_addr2()
I(f"v_mov_b32 v106, {v(FR['r'])}"); I(f"v_mov_b32 v107, {v(FR['w'])}"); FR.update(r=106, w=107, t=104, v=105); P3BUFS.pop(); pool[:] = P3BUFS
for op in sa: run_op(op)
if OPT["ep"]:
    if not OPT["ea"]: chk_spin(PHV["K0"], FR["r"], FR["t"], 16); aok["C"] = True; a_issue(OPT["a0"])
    E.wait(vm="gsa"); csig("gsa"); a_issue(12)
else:
    E.wait(vm="gsa"); csig("gsa")
    chk_spin(PHV["K0"], FR["r"], FR["t"], 16); aok["C"] = True; a_issue(12)
lstamp("K0")
qB.extend([f"s_lshl4_add_u32 {sT0}, {sC_}, {sG_}", f"s_lshl2_add_u32 {sT0}, {sT0}, {sW_}", f"s_lshl_b32 {sT0}, {sT0}, 12", f"s_add_u32 s20, {sT0}, {WS_PB}", f"s_xor_b32 s21, s20, {8 << 14}",
           "s_mov_b32 s16, 0x07060500", "s_mov_b32 s17, 0x07060501", "s_mov_b32 s18, 0x07060502", "s_mov_b32 s22, 0x07060503", "s_mov_b32 s23, 0x0c0c0400", "s_mov_b32 s53, 0x05040100", f"v_lshlrev_b32 {v(vPB)}, 4, {vLANE}"] + base_ops())
if OPT["gs"] < 0: E.wait(vm="gst"); csig("gst")
else: at(P3 + OPT["gs"], lambda: (E.wait(vm="gst"), csig("gst")))
at(first_slot[f"J{OPT['gj']}"] - OPT["D3"] - OPT["pjd"], lambda: csig("pj"))
def reduce_pair(own, other, bar):
    for j in range(4): DS(f"ds_write_b128 {v(vHR)}, {v(other+4*j,4)} offset:{1024*j}", "red" + bar)
    I(f"v_xor_b32 {v(FR['t'])}, 4096, {v(vHR)}")
    cbar(bar, lg=["red" + bar])
    for j in range(4): DS(f"ds_read_b128 {v(other+4*j,4)}, {v(FR['t'])} offset:{1024*j}", f"rr{j}")
segment(P3, P4, lambda m: OPT["D3"], 8, p3bar)
lstamp("snd")
need_mark("base")
reduce_pair(ACCS[0], ACCS[1], "bR1")
I(f"v_mov_b32 v171, {sNON}")
for j in range(4):
    E.wait(lg=f"rr{j}")
    for e in range(4): I(f"v_add_f32 {v(ACCS[0]+4*j+e)}, {v(ACCS[0]+4*j+e)}, {v(ACCS[1]+4*j+e)}")
    for e in range(4): I(f"v_perm_b32 {v(ACCS[0]+4*j+e)}, {v(ACCS[0]+4*j+e)}, v171, {['s16', 's17', 's18', 's22'][e]}")
    VM(f"buffer_store_dwordx4 {v(ACCS[0]+4*j,4)}, {v(vPB)}, {SWS}, s21 offen offset:{1024*j} sc1", "pst")
pl_ld = [f"buffer_load_dwordx4 {v(80+4*j,4)}, {v(vPB)}, {SWS}, s20 offen offset:{1024*j} sc1" for j in range(4)]
at(M - 1 - OPT["pl"], lambda: [VM(t_, "pld") for t_ in pl_ld])
segment(P4, M, lambda m: OPT["D3"], 8, p3bar)
assert not qC and not qB and anext[0] == len(aloads)
RT2 = jobs[10][0]; RED2 = slot_of[RT2] * 16384
I(f"v_add_u32 {v(vHR)}, {(RED2 - RED) & 0xffffffff}, {v(vHR)}")
reduce_pair(ACC3, ACC4, "bR2")
for r in range(16): I(f"v_add_f32 {v(ACC3+r)}, {v(ACC3+r)}, {v(BASE+r)}")
chkp = []
for j in range(4):
    b_ = 80 + 4*j
    chkp += [f"v_perm_b32 v65, v{b_+1}, v{b_}, s23", f"v_perm_b32 v66, v{b_+3}, v{b_+2}, s23", "v_perm_b32 v65, v66, v65, s53",
             "v_xor_b32 v64, v171, v65" if j == 0 else "v_xor_b32 v65, v171, v65"] + ([] if j == 0 else ["v_or_b32 v64, v64, v65"])
chkp.append("v_cmp_ne_u32 vcc, 0, v64")
E.wait(vm="pld")
for c_ in chkp: I(c_)
I("s_cbranch_vccnz L_slow_p"); E.label("L_back_p"); lstamp("kp")
slow.extend(["L_slow_p:", f"  s_sleep {OPT['slq']}"] + ["  " + t_ for t_ in pl_ld] + ["  s_waitcnt vmcnt(0)"] + ["  " + c_ for c_ in chkp] + spin_guard("L_back_p", -10) + ["  s_cbranch_vccnz L_slow_p", "  s_branch L_back_p"])
I("s_mov_b32 s16, 0xffffff00")
for r in range(16): I(f"v_and_b32 {v(80+r)}, s16, {v(80+r)}"); I(f"v_add_f32 {v(ACC3+r)}, {v(ACC3+r)}, {v(80 + r)}")
lstamp("last")
for r in range(16):
    if r % 4 == 0: E.wait(lg=f"rr{r>>2}")
    I(f"v_add_f32 {v(ACC3+r)}, {v(ACC3+r)}, {v(ACC4+r)}")
    if r % 2 == 0: I(f"s_mov_b32 {sT0}, {(r>>1)*4096}")
    VM(f"buffer_store_dword {v(ACC3+r)}, {v(vOUT)}, {SOUT}, {sT0} offen offset:{(r&1)*2048}" + (" sc1" if OPT["osc"] else ""), "out")
dump_stamps("C")
I("s_endpgm")

E = EH
E.label("L_helper")
vSo = [2, 3]; vGo = [4, 5, 6]; vCo = [8, 9, 10, 11]; vWo = [12, 13, 14, 15]; vHo = 16; vXEo = [17, 18]
vFLS, vFLP, vPOLL, vFLX = 19, 20, 21, 7
vLR, vCR, vL16, vL128, vL256, vPQ = 22, 24, 26, 28, 30, 32
vE, vE2, vP = 34, 36, 38
vEQA, vEST, vEF, vEX, vZA, vHSW, vHSR, vHSTo, vDA, vTAB = 40, 41, 42, 44, 46, 47, 48, 49, 50, 54
TR, TI, RT, TMP = 96, 112, 128, 144
vF16, vF256 = 56, 58
vQR, vQT, vQV, vQW = 160, 161, 162, 163
vDB = 164; vUP = 76
live = [items[f"X{i}"] for i in range(4, 8)]
known = {id(EC): 0, id(EH): 0}
def hplace(name):
    it = items[name]
    for o in list(live):
        if o.base < it.base + it.size and it.base < o.base + o.size:
            assert known[id(o.reader)] >= o.last_read, ("WAR", name, o.name)
            live.remove(o)
    live.append(it); return it
def adv11(s): I(f"s_add_u32 {s}, {s}, 1"); I(f"s_cmp_eq_u32 {s}, 11"); I(f"s_cselect_b32 {s}, 0, {s}")
cur_m0 = [None]
SOFF = {"G": "s16", "C": "s17", "W": "s18"}
def item_ops(name):
    k = name.rstrip("0123456789"); i = int(name[len(k):] or 0)
    so = SOFF.get(k)
    srd_, sm, voffs, pol = {"S": (SS, sM2, vSo, ""), "G": (SG, sM6, vGo, ""), "C": (SC, sM4, vCo, ""), "H": (SWS, sM4, [vHo]*4, " sc1"),
                            "W": (SWD, sM4, vWo, ""), "HG": (SWS, sM4, [vHo]*4, " sc1"), "XE": (SX, sM2, vXEo, "")}[k]
    prep = {"G": lambda: I(f"s_mul_i32 {so}, {sK[i]}, 1376"), "C": lambda: (q_h(so, i), I(f"s_lshl_b32 {so}, {so}, 7")),
            "W": lambda: w_soff(so, i, sSO)}.get(k, lambda: None)
    if so is None: so = "0" if k == "XE" else sK[i]
    ops = []
    for half in range(2 if k == "G" else 1):
        for q in range(len(voffs)):
            def op(half=half, q=q):
                if name in RT_:
                    if q == 0: prep()
                    VM(f"buffer_load_dwordx4 {v(RT_[name] + 4*q, 4)}, {v(voffs[q])}, {srd_}, {so} offen" + (f" offset:{q*1024}" if q else ""), name)
                    return
                if (half, q) == (0, 0): hplace(name)
                m0 = (sm, items[name].base + 3072 * half)
                if cur_m0[0] != m0: I(f"s_add_u32 m0, {sm}, {m0[1]}"); cur_m0[0] = m0
                if (half, q) == (0, 0): prep()
                if (half, q) == (1, 0): I(f"s_add_u32 {so}, {so}, {16*2752}")
                VM(f"buffer_load_dwordx4 {v(voffs[q])}, {srd_}, {so} offen" + (f" offset:{q*1024}" if q else "") + f"{pol} lds", name)
            ops.append(op)
    last = ops[-1]
    ops[-1] = lambda: (last(), done_issue.__setitem__(name, True))
    return ops
done_issue = {}
def issue(name, between=lambda: None):
    for op in item_ops(name): op(); between()
def unpark(name):
    hplace(name); E.wait(vm=name)
    I(f"v_add_u32 {v(vUP+1)}, {items[name].base}, {v(vUP)}")
    for q in range(4): DS(f"ds_write_b128 {v(vUP+1)}, {v(RT_[name] + 4*q, 4)} offset:{q*1024}", "up" + name)
def issue_mix(miss, *hits):
    mo = item_ops(miss); ho = [op for h in hits for op in item_ops(h)]
    for k, op in enumerate(mo):
        op()
        for h in ho[k * len(ho) // len(mo):(k + 1) * len(ho) // len(mo)]: h()
def flag_send(so): VM(f"buffer_store_dword v61, {v(vFLS)}, {SWS}, {so} offen sc1", "flag")
def poll_issue(so, tag): VM(f"buffer_load_dword {v(vPOLL)}, {v(vFLP)}, {SWS}, {so} offen sc1", tag)
def poll_check(so, tag, inc):
    E.wait(vm=tag)
    I(f"v_cmp_ne_u32 vcc, {v(vFLX)}, {v(vPOLL)}"); I(f"s_cbranch_vccnz L_slow_{tag}"); E.label(f"L_back_{tag}")
    slow.extend([f"L_slow_{tag}:", f"  s_sleep {OPT['slp']}", f"  buffer_load_dword {v(vPOLL)}, {v(vFLP)}, {SWS}, {so} offen sc1", "  s_waitcnt vmcnt(0)",
                 f"  v_cmp_ne_u32 vcc, {v(vFLX)}, {v(vPOLL)}"] + spin_guard(f"L_back_{tag}", inc) + [f"  s_cbranch_vccnz L_slow_{tag}", f"  s_branch L_back_{tag}"])
I(f"s_and_b32 {sT1}, {sW_}, 1"); I(f"s_lshl1_add_u32 {sT0}, {sG_}, {sT1}"); I(f"s_lshl_b32 {sT0}, {sT0}, 4")
I(f"v_add_lshl_u32 v84, v81, {sT0}, 10")
I(f"v_add_u32 {v(vSo[0])}, v84, v83"); I(f"v_add_u32 {v(vSo[1])}, v84, v85"); I(f"v_add_u32 {v(vSo[1])}, 7168, {v(vSo[1])}")
I(f"s_lshl_b32 {sM2}, {sW_}, 11")
E.wait_all(lg=True)
I(f"s_cmp_ge_u32 {sW_}, 2"); srd_sel(SS, 22, 24, 524288); srd_sel(SG, 36, 38, 1409024); srd_sel(SC, 26, 28, 524288)
issue("S0"); issue("S1"); E.barrier()
if OPT["prio"] == 2: I("s_setprio 1")
I(f"s_lshl2_add_u32 {sT0}, {sG_}, {sW_}"); I(f"s_lshl_b32 {sT0}, {sT0}, 3"); I(f"v_add_lshl_u32 v87, v82, {sT0}, 1")
VM("global_load_ushort v70, v87, s[30:31]", "par"); VM("global_load_ushort v71, v87, s[18:19]", "par"); VM("global_load_ushort v72, v87, s[20:21]", "par")
I(f"s_lshl1_add_u32 {sT0}, {sGL}, {sT1}"); I(f"s_lshl_b32 {sT0}, {sT0}, 5"); I(f"v_and_b32 v87, 31, {vLANE}"); I(f"v_add_lshl_u32 v87, v87, {sT0}, 1")
VM("global_load_ushort v7, v87, s[32:33]", "par")
srd(SDBG, 44, 256)
I(f"s_or_b32 {sT0}, s2, {sW_}"); I("s_cbranch_scc1 L_notag")
E.begin_cond()
I("s_or_b32 s13, s14, 1"); I("v_mov_b32 v93, s13"); I("v_mov_b32 v94, 0"); I("s_mov_b64 exec, 1")
VM(f"buffer_store_dword v93, v94, {SDBG}, 0 offen sc1"); I("s_mov_b64 exec, -1")
E.end_cond(); E.label("L_notag")
for i in range(2, 8): ktab(i)
srd(SX, 16, 2097152); srd(SWD, 40, 1409024); srd(SWS, 46, WS_SIZE)
def warm():
    if not OPT["tw"]: return
    srd(SOUT, 42, 4194304)
    I("v_mov_b32 v92, 0"); I(f"s_lshl2_add_u32 {sT0}, {sC_}, {sW_}"); I(f"s_mul_i32 {sT0}, {sT0}, {152*1024}")
    I(f"s_lshr_b32 {sT2}, {sG_}, 1"); I(f"s_lshl_b32 {sT2}, {sT2}, 13"); I(f"s_add_u32 {sT0}, {sT0}, {sT2}"); I(f"s_and_b32 {sT2}, {sG_}, 1"); I(f"s_lshl_b32 {sT2}, {sT2}, 11"); I(f"s_add_u32 {sT0}, {sT0}, {sT2}")
    I(f"s_mov_b32 {sT2}, {WS_EB + 0x30000}"); I(f"s_lshl_b32 {sT3}, {sC_}, 18")
    I("s_mov_b64 exec, 1")
    for sr, so in ((SG, "0"), (SC, "0"), (SWD, "0"), (SWS, sT0), (SWS, sT2), (SOUT, sT3)):
        VM(f"buffer_load_dword v95, v92, {sr}, {so} offen sc1", "tw")
    I("s_mov_b64 exec, -1")
def setup1():
    I(f"s_mov_b32 {sSPIN}, 0"); I("s_mov_b32 s15, 0"); I(f"s_mul_i32 {sM6}, {sW_}, 6144")
    I(f"s_mul_i32 {sT0}, {sT1}, {32*2752}"); I(f"s_mul_i32 {sT2}, {sG_}, 192"); I(f"s_add_u32 {sT0}, {sT0}, {sT2}")
    I(f"s_mul_i32 {sT2}, {sG_}, 3"); I(f"s_mov_b32 {sT3}, 2752"); I(f"v_mov_b32 v90, {OOB}")
    for i in range(3):
        I(f"v_add_u32 v88, {64*i}, {vLANE}"); I("v_mul_u32_u24 v86, 43691, v88"); I("v_lshrrev_b32 v86, 19, v86")
        I("v_mul_u32_u24 v87, 12, v86"); I("v_sub_u32 v87, v88, v87")
        I(f"v_mul_lo_u32 v86, v86, {sT3}"); I("v_lshl_add_u32 v86, v87, 4, v86"); I(f"v_add_u32 v86, {sT0}, v86")
        I("v_lshrrev_b32 v87, 2, v87"); I(f"v_add_u32 v87, {sT2}, v87"); I("v_cmp_gt_u32 vcc, 43, v87")
        if i: I(f"v_subrev_u32 v86, {1024*i}, v86")
        I(f"v_cndmask_b32 {v(vGo[i])}, v90, v86, vcc")
    I(f"s_lshl2_add_u32 {sT0}, {sGL}, {sT1}"); I(f"s_lshl_b32 {sT2}, {sG_}, 1"); I(f"s_sub_u32 {sT0}, {sT0}, {sT2}"); I(f"s_lshl_b32 {sT0}, {sT0}, 14")
    I(f"v_add_u32 {v(vCo[0])}, {sT0}, {v(vSo[0])}"); I(f"v_add_u32 {v(vCo[1])}, {sT0}, {v(vSo[1])}")
    I(f"v_add_u32 {v(vCo[2])}, {2*7168}, {v(vCo[0])}"); I(f"v_add_u32 {v(vCo[3])}, {2*7168}, {v(vCo[1])}")

def setup1b():
    I(f"s_and_b32 {sT1}, {sW_}, 1")
    I("v_lshlrev_b32 v86, 4, v82"); I("v_lshl_add_u32 v86, v81, 10, v86"); I(f"v_and_b32 v87, 16, {vLANE}"); I("v_lshlrev_b32 v87, 2, v87"); I("v_xor_b32 v87, v86, v87")
    I(f"s_lshl_b32 {sT3}, {sGL}, 7"); I(f"v_add_u32 {v(vWo[0])}, {sT3}, v87")
    for q in range(1, 4): I(f"v_add_u32 {v(vWo[q])}, {7168*q}, {v(vWo[0])}")
    I(f"s_lshl1_add_u32 s13, {sC_}, {sGH}"); I(f"s_lshl2_add_u32 {sT0}, s13, {sW_}"); I(f"s_lshl_b32 {sT0}, {sT0}, 14"); I(f"s_add_u32 {sT0}, {sT0}, {sT3}")
    I(f"v_add_u32 {v(vXEo[0])}, {sT0}, v86"); I(f"v_add_u32 {v(vXEo[1])}, 7168, {v(vXEo[0])}")
    I(f"s_lshr_b32 {sT2}, {sW_}, 1"); I(f"s_lshl1_add_u32 {sT0}, s13, {sT2}"); I(f"s_mul_i32 {sT0}, {sT0}, {152*1024}"); I(f"s_lshl_b32 {sT3}, {sT1}, 12"); I(f"s_add_u32 {sT0}, {sT0}, {sT3}")
    I(f"v_lshl_add_u32 {v(vHo)}, {vLANE}, 4, {sT0}")
    I(f"s_cmp_eq_u32 {sW_}, 0"); I(f"s_cselect_b32 {sT2}, 16, 0"); I(f"v_cmp_gt_u32 vcc, {sT2}, {vLANE}")
    I(f"s_lshl_b32 {sT0}, {sC_}, 11"); I(f"s_lshl2_add_u32 {sT3}, {sG_}, {sT0}"); I(f"v_lshl_add_u32 v86, {vLANE}, 7, {sT3}")
    I(f"v_cndmask_b32 {v(vFLS)}, v90, v86, vcc")
    I(f"s_lshl_b32 {sT3}, {sG_}, 7"); I(f"s_add_u32 {sT3}, {sT3}, {sT0}"); I(f"v_lshl_add_u32 v86, {vLANE}, 2, {sT3}")
    I(f"v_cndmask_b32 {v(vFLP)}, v90, v86, vcc"); I(f"v_cndmask_b32 {v(vFLX)}, 0, -1, vcc")
    I(f"s_mov_b32 s20, {WS_FH}"); I(f"s_mov_b32 s21, {WS_FG}")

def setup2():
    o = []
    A = o.append
    A(f"s_lshl_b32 {sT0}, {sW_}, 10"); A(f"s_add_u32 {sT0}, {sT0}, {EQ}"); A(f"v_lshl_add_u32 {v(vEQA)}, {vLANE}, 3, {sT0}")
    A("v_mov_b32 v88, 0"); A("v_mov_b32 v89, 0"); A(lambda: DS(f"ds_write_b64 {v(vEQA)}, v[88:89]", "eqz"))
    A(f"v_lshl_add_u32 {v(vZA)}, v82, 3, {sT0}")
    A(f"s_lshl_b32 {sT0}, {sW_}, 9"); A(f"v_lshlrev_b32 v86, 11, v81"); A("v_lshl_add_u32 v86, v82, 6, v86"); A("v_lshrrev_b32 v87, 1, v82")
    A("v_lshl_add_u32 v86, v87, 4, v86"); A(f"v_add_u32 {v(vDA)}, {sT0}, v86")
    for j in range(1, 4): A(f"v_xor_b32 {v(vDA+j)}, {16*j}, {v(vDA)}")
    for j in range(4): A(f"v_add_u32 {v(vDB+j)}, {DUMPS[1]}, {v(vDA+j)}")
    A(f"v_lshlrev_b32 {v(vTAB)}, 6, v81"); A(f"v_add_u32 {v(vTAB)}, {RTAB}, {v(vTAB)}")
    A(f"s_lshl_b32 {sT0}, {sG_}, 13"); A(f"s_lshl_b32 {sT2}, {sW_}, 7"); A(f"s_add_u32 {sT0}, {sT0}, {sT2}"); A(f"s_add_u32 {sT0}, {sT0}, {WS_EB}")
    A(f"v_lshl_add_u32 v86, v82, 4, {sT0}")
    A(f"s_lshl_b32 {sT2}, {sC_}, 9"); A(f"v_add_u32 {v(vEST)}, {sT2}, v86"); A(lambda: (I("v_cmp_eq_u32 vcc, 7, v81"), I(f"v_cndmask_b32 {v(vEST)}, v90, {v(vEST)}, vcc")))
    A(f"s_sub_u32 {sT2}, {sC_}, 16"); A(f"v_lshl_add_u32 v87, v81, 1, {sT2}")
    A(f"v_lshl_add_u32 {v(vEF)}, v87, 9, v86"); A(f"v_add_u32 {v(vEF+1)}, 512, {v(vEF)}")
    A(lambda: (I("v_cmp_le_i32 vcc, 0, v87"), I(f"v_cndmask_b32 {v(vEF)}, v90, {v(vEF)}, vcc"), I(f"v_cndmask_b32 {v(vEX)}, 0, -1, vcc")))
    A(lambda: (I("v_cmp_le_i32 vcc, -1, v87"), I(f"v_cndmask_b32 {v(vEF+1)}, v90, {v(vEF+1)}, vcc"), I(f"v_cndmask_b32 {v(vEX+1)}, 0, -1, vcc")))
    A(f"s_mul_i32 {sT0}, {sW_}, 2608"); A(f"s_add_u32 {sT0}, {sT0}, {HS}")
    A("v_mul_u32_u24 v86, 336, v82"); A("v_lshl_add_u32 v86, v81, 5, v86"); A(f"v_add_u32 {v(vHSW)}, {sT0}, v86")
    A(f"v_bfe_u32 v86, {vLANE}, 2, 2"); A("v_mul_u32_u24 v86, 336, v86"); A(f"v_and_b32 v87, 32, {vLANE}"); A("v_lshl_add_u32 v86, v87, 1, v86")
    A(f"v_and_b32 v87, 1, {vLANE}"); A("v_lshl_add_u32 v86, v87, 5, v86"); A(f"v_and_b32 v87, 16, {vLANE}"); A("v_add_u32 v86, v86, v87")
    A(f"v_and_b32 v87, 2, {vLANE}"); A("v_lshl_add_u32 v86, v87, 2, v86"); A(f"v_add_u32 {v(vHSR)}, {sT0}, v86")
    A(f"s_mul_i32 {sT0}, {sC_}, {4*152}"); A(f"s_lshr_b32 {sT2}, {sG_}, 1"); A(f"s_lshl3_add_u32 {sT0}, {sT2}, {sT0}"); A(f"s_and_b32 {sT2}, {sG_}, 1")
    A(f"s_lshl1_add_u32 {sT0}, {sT2}, {sT0}"); A(f"s_lshl_b32 {sT0}, {sT0}, 10"); A(f"s_lshl_b32 {sT2}, {sW_}, 9"); A(f"s_add_u32 {sT0}, {sT0}, {sT2}")
    A(f"v_lshrrev_b32 v86, 5, {vLANE}"); A(f"v_mul_u32_u24 v86, {152*1024}, v86"); A(f"v_and_b32 v87, 31, {vLANE}"); A("v_lshl_add_u32 v86, v87, 4, v86"); A(f"v_add_u32 {v(vHSTo)}, {sT0}, v86")
    LOG2E = "0x3fb8aa3b"
    A(lambda: E.wait(vm="par"))
    o += ["v_lshlrev_b32 v70, 16, v70", "v_lshlrev_b32 v71, 16, v71", "v_lshlrev_b32 v72, 16, v72",
          f"v_mul_f32 v70, {LOG2E}, v70", "v_exp_f32 v70, v70", "v_mul_f32 v74, v71, v71"] + bf16r_ops(70, 70)
    o += ["v_mul_f32 v75, v70, v71", "v_mul_f32 v76, v70, v72", f"v_mul_f32 v75, {LOG2E}, v75", "v_exp_f32 v75, v75",
          "v_mul_f32 v76, 0.15915494, v76", "v_rndne_f32 v77, v76", "v_sub_f32 v76, v76, v77", "v_cos_f32 v77, v76", "v_sin_f32 v78, v76",
          "v_fmac_f32 v74, v72, v72", f"v_mul_f32 {v(vLR)}, v75, v77", "v_mul_f32 v78, v75, v78", "v_rcp_f32 v74, v74",
          f"v_add_f32 v77, -1.0, {v(vLR)}", "v_add_f32 v74, v74, v74",
          f"v_mul_f32 {v(vCR)}, v77, v71", f"v_fmac_f32 {v(vCR)}, v78, v72", f"v_mul_f32 {v(vCR)}, {v(vCR)}, v74",
          f"v_mul_f32 {v(vCR+1)}, v77, v72", f"v_fma_f32 {v(vCR+1)}, -v78, v71, {v(vCR+1)}", f"v_mul_f32 {v(vCR+1)}, {v(vCR+1)}, v74",
          f"v_sub_f32 {v(vLR+1)}, 0, v78"]
    o += csq_ops(70, vLR, 78) + csq_ops(72, 70, 78) + csq_ops(70, 72, 78) + csq_ops(vL16, 70, 78)
    o += csq_ops(70, vL16, 78) + csq_ops(72, 70, 78) + csq_ops(vL128, 72, 78) + csq_ops(vL256, vL128, 78)
    o += [f"v_mov_b32 {v(vPQ)}, {v(vCR)}", f"v_mov_b32 {v(vPQ+1)}, {v(vCR+1)}"]
    for bit, L in ((8, vL16), (16, 70), (32, 72)):
        o += [f"v_and_b32 v74, {bit}, {vLANE}", lambda L=L: (I("v_cmp_ne_u32 vcc, 0, v74"), I(f"v_cndmask_b32 v76, 1.0, {v(L)}, vcc"), I(f"v_cndmask_b32 v77, 0, {v(L+1)}, vcc"))]
        o += cmul_ops(vPQ, vPQ, 76, 78)
    def factor(F, Ls):
        r = []
        for n, (bit, L) in enumerate(zip((8, 16, 32), Ls)):
            d = F if n == 0 else 76
            r += [f"v_and_b32 v74, {bit}, {vLANE}", lambda L=L, d=d: (I("v_cmp_eq_u32 vcc, 0, v74"), I(f"v_cndmask_b32 {v(d)}, 1.0, {v(L)}, vcc"), I(f"v_cndmask_b32 {v(d+1)}, 0, {v(L+1)}, vcc"))]
            if n: r += cmul_ops(F, F, 76, 78)
        return r
    o += factor(vF16, (vL16, 70, 72))
    o += csq_ops(70, vL256, 78) + csq_ops(72, 70, 78) + factor(vF256, (vL256, 70, 72))
    return o
def allsum(a_, b_, t):
    o = [f"v_add_f32_dpp {v(t)}, {v(a_)}, {v(a_)} row_ror:8 row_mask:0xf bank_mask:0xf", f"v_add_f32_dpp {v(t+1)}, {v(b_)}, {v(b_)} row_ror:8 row_mask:0xf bank_mask:0xf",
         f"v_mov_b32 {v(a_)}, {v(t)}", f"v_mov_b32 {v(b_)}, {v(t+1)}",
         f"v_permlane16_swap_b32 {v(a_)}, {v(t)}", f"v_permlane16_swap_b32 {v(b_)}, {v(t+1)}",
         f"v_add_f32 {v(a_)}, {v(a_)}, {v(t)}", f"v_add_f32 {v(b_)}, {v(b_)}, {v(t+1)}",
         f"v_mov_b32 {v(t)}, {v(a_)}", f"v_mov_b32 {v(t+1)}, {v(b_)}",
         f"v_permlane32_swap_b32 {v(a_)}, {v(t)}", f"v_permlane32_swap_b32 {v(b_)}, {v(t+1)}",
         f"v_add_f32 {v(a_)}, {v(a_)}, {v(t)}", f"v_add_f32 {v(b_)}, {v(b_)}, {v(t+1)}"]
    return o
def cmul4(d, x, y):
    return [f"v_mul_f32 {v(d[0])}, {v(x[0])}, {v(y)}", f"v_mul_f32 {v(d[1])}, {v(x[0])}, {v(y+1)}",
            f"v_fma_f32 {v(d[0])}, -{v(x[1])}, {v(y+1)}, {v(d[0])}", f"v_fmac_f32 {v(d[1])}, {v(x[1])}, {v(y)}"]
def ssm1():
    o = []
    def rdd(j, comp): DS(f"ds_read_b128 {v((TI if comp else TR) + 4*j, 4)}, {v(vDB+j)} offset:{DUMPS[comp] - DUMPS[1]}", f"dr{j}"); note_read(f"DUMP{comp}")
    for j in range(4):
        o += [lambda j=j: DS(f"ds_read_b128 {v(RT + 4*j, 4)}, {v(vTAB)} offset:{16*j}", f"dr{j}"), lambda j=j: rdd(j, 0), lambda j=j: rdd(j, 1)]
    cur, nx = (vE, vE + 1), (vE2, vE2 + 1)
    for r in range(16):
        if r % 4 == 0: o.append(lambda j=r >> 2: E.wait(lg=f"dr{j}"))
        o += [f"v_mul_f32 {v(TR+r)}, {v(TR+r)}, {v(RT+r)}", f"v_mul_f32_e64 {v(TI+r)}, -{v(TI+r)}, {v(RT+r)}"]
        if r == 0: src = (TR, TI)
        else:
            o += cfma_ops(nx, vLR, src, TR + r, TI + r); src = nx; cur, nx = nx, cur
    assert src == (vE2, vE2 + 1)
    o += cmul4((60, 62), src, vF16) + allsum(60, 62, 64)
    o.append(lambda: (VM(f"buffer_store_dwordx4 v[60:63], {v(vEST)}, {SWS}, 0 offen sc1", "est"), lstamp("epub")))
    return o
def window():
    o = [lambda: DS(f"ds_write_b64 {v(vEQA)}, {v(vE2,2)} offset:{7*64}", "eqw")]
    o += [lambda i=i: DS(f"ds_read_b64 {v(TMP+2*i,2)}, {v(vEQA)} offset:{64*i}", "eq") for i in range(7)]
    for r in range(16):
        o += [f"v_mul_f32 v72, {v(vCR+1)}, {v(TI+r)}", f"v_mul_f32 {v(TI+r)}, {v(vCR)}, {v(TI+r)}",
              f"v_fmac_f32 {v(TI+r)}, {v(vCR+1)}, {v(TR+r)}", f"v_fma_f32 {v(TR+r)}, {v(vCR)}, {v(TR+r)}, -v72"]
    o.append(lambda: E.wait(lg="eq"))
    src = (TMP, TMP + 1); pp = [(vE2, vE2 + 1), (vE, vE + 1)]
    for i in range(1, 7):
        d = pp[i & 1]; o += cfma_ops(d, vL16, src, TMP + 2*i, TMP + 2*i + 1); src = d
    return o + cmul4((vP, vP + 1), src, vCR)
def efetch_issue():
    VM(f"buffer_load_dwordx4 v[64:67], {v(vEF)}, {SWS}, 0 offen sc1", "ef"); VM(f"buffer_load_dwordx4 v[68:71], {v(vEF+1)}, {SWS}, 0 offen sc1", "ef")
def ssm3():
    chk = [f"v_xor_b32 v72, v65, {v(vEX)}", f"v_xor_b32 v73, v67, {v(vEX)}", f"v_xor_b32 v74, v69, {v(vEX+1)}", "v_or3_b32 v72, v72, v73, v74",
           f"v_xor_b32 v73, v71, {v(vEX+1)}", "v_or_b32 v72, v72, v73", "v_cmp_ne_u32 vcc, 0, v72"]
    def check():
        E.wait(vm="ef")
        for c in chk: I(c)
        I("s_cbranch_vccnz L_slow_e"); E.label("L_back_e"); lstamp("eok")
        slow.extend(["L_slow_e:", f"  s_sleep {OPT['slq']}", f"  buffer_load_dwordx4 v[64:67], {v(vEF)}, {SWS}, 0 offen sc1", f"  buffer_load_dwordx4 v[68:71], {v(vEF+1)}, {SWS}, 0 offen sc1",
                     "  s_waitcnt vmcnt(0)"] + ["  " + c for c in chk] + spin_guard("L_back_e", 0x100) + ["  s_cbranch_vccnz L_slow_e", "  s_branch L_back_e"])
    o = [check] + cfma_ops((vE, vE + 1), vL128, (64, 66), 68, 70)
    o += cmul4((vE2, vE2 + 1), (vE, vE + 1), vF256) + allsum(vE2, vE2 + 1, 72)
    src = (vE2, vE2 + 1)
    o += cfma_ops((vE, vE + 1), vPQ, src, vP, vP + 1)
    src = (vE, vE + 1)
    for r in range(16):
        d = (TR + r, TI + r); o += cfma_ops(d, vLR, src, d[0], d[1]); src = d
        if r & 1: o += [f"v_cvt_pk_bf16_f32 {v(TMP + (r>>1))}, {v(TR+r-1)}, {v(TR+r)}", f"v_cvt_pk_bf16_f32 {v(TMP + 8 + (r>>1))}, {v(TI+r-1)}, {v(TI+r)}"]
    for comp in range(2):
        o += [lambda j=j, comp=comp: DS(f"ds_write_b128 {v(vHSW)}, {v(TMP + 8*comp + 4*j, 4)} offset:{16*j}", "hsw") for j in range(2)]
        for i in range(2):
            for ph in range(2):
                def rd(i=i, ph=ph, comp=comp):
                    DS(f"ds_read_b64_tr_b16 {v(RT + 8*comp + 4*i + 2*ph, 2)}, {v(vHSR)} offset:{4*ph*336 + 128*i}", f"hr{comp}{i}"); note_read("HS")
                o.append(rd)
    for comp in range(2):
        for i in range(2):
            def st(i=i, comp=comp):
                I(f"s_mov_b32 {sT0}, {2*i*152*1024 + comp*4096}"); E.wait(lg=f"hr{comp}{i}")
                VM(f"buffer_store_dwordx4 {v(RT + 8*comp + 4*i, 4)}, {v(vHSTo)}, {SWS}, {sT0} offen sc1", "hst")
            o.append(st)
    o.append(lambda: lstamp("hst"))
    return o
work = []
def pop_work(n):
    while n > 0 and work: runall([work.pop(0)]); n -= 1
def between(n=8): return lambda: pop_work(n)
live.append(items["OFT"])
I(f"v_and_b32 {v(vQR)}, 3, {vLANE}"); I(f"v_lshlrev_b32 {v(vQR)}, 2, {v(vQR)}"); I(f"v_add_u32 {v(vQR)}, {PRG}, {v(vQR)}"); I(f"v_mov_b32 {v(vQV)}, 0")
I(f"s_lshl_b32 {sT0}, {sW_}, 2"); I(f"s_add_u32 {sT0}, {sT0}, {PRG}"); I(f"v_mov_b32 {v(vQW)}, {sT0}")
issue("S2"); issue("S3"); lstamp("b0")
def hchk(word, st):
    off = {"PC": 0, "PD": 32}[word]; val = PCV[st] if word == "PC" else st
    chk_spin(val, vQR, vQT, off)
    em, lg = signals[(word, val)]; known[id(em)] = max(known[id(em)], lg)
published = [0]
def pub(ch):
    assert PHV[ch] > published[0]
    E.wait(vm=[n for c in CHUNKS[published[0]:PHV[ch]] for n in chunk_items(c)]); signal("PH", PHV[ch], vQW, vQV, 16); published[0] = PHV[ch]
def auto_pub(lead):
    best = None
    for c in CHUNKS[published[0]:]:
        if all(n in E.vm and done_issue.get(n) and len(E.vm) - E.last(E.vm, n) >= lead for n in chunk_items(c)): best = c
        else: break
    if best: pub(best)
def s47():
    for n in ("S4", "S5", "S6", "S7"): issue(n)
if OPT["xi"] < 0: s47()
pub("S2")
setup1()
I(f"s_lshl_b32 {sT0}, {sW_}, 11"); I(f"s_add_u32 {sT0}, {sT0}, {HS}"); I(f"v_lshl_add_u32 v86, {vLANE}, 4, {sT0}")
E.wait(vm="par"); DS("ds_write_b128 v86, v[4:7]", "oft"); I("v_mov_b32 v92, v86"); E.wait(lg="oft")
if OPT["xi"] >= 0: hchk("PC", "Xi"); s47()
w2 = setup2(); runall(w2[:OPT["w2a"]])
hchk("PC", "X"); lstamp("xd")
I("v_mov_b32 v91, 0"); VM(f"buffer_load_dword {v(vPOLL)}, v91, {SDBG}, 0 offen sc1", "tag")
issue("G0"); pub("S6"); runall(w2[OPT["w2a"]:OPT["w2b"]]); issue("G1"); runall(w2[OPT["w2b"]:]); pub("G0"); hchk("PC", "S3"); issue("G2"); pub("G1"); issue("G3"); setup1b()
tag_check("H", vPOLL, 88)
runall([f"v_mov_b32 v61, {sNON}", f"v_mov_b32 v63, {sNON}", f"v_and_b32 {v(vEX)}, {sNON}, {v(vEX)}", f"v_and_b32 {v(vEX+1)}, {sNON}, {v(vEX+1)}", f"v_and_b32 {v(vFLX)}, {sNON}, {v(vFLX)}",
        f"v_lshl_add_u32 {v(vUP)}, {vLANE}, 4, {sM4}"])
known[id(EC)] = max(known[id(EC)], signals[("PC", PCV["S5"])][1]); hplace("DUMP0"); hplace("DUMP1")
DS("ds_write_b64 v92, v[8:9] offset:1024", "oft"); DS("ds_write_b32 v92, v12 offset:1032", "oft"); DS("ds_write_b32 v92, v61 offset:1036", "oft")
runall(q_setup()); issue("C0"); issue("W0")
if OPT["w1e"]: issue("W4")
I(f"s_setprio {OPT['pb']}")
hchk("PC", "dump"); lstamp("bD")
def pass2():
    t0 = OPT["bd"] + 2
    s1, wn, s3 = ssm1(), window(), ssm3()
    ins = []
    def spread(name, ta, tb, pre=None):
        holder = {}
        n = 6 if name[0] == "G" else 4
        for k in range(n):
            def f(k=k):
                if k == 0:
                    if pre: hchk(*pre)
                    holder["ops"] = item_ops(name)
                holder["ops"][k]()
            ins.append((ta + (tb - ta) * k / n, f))
    ins.append((OPT["pg2"], lambda: (E.wait(lg="dr3"), pub("G2")))); ins.append((48, lambda: pub("G3")))
    ins.sort(key=lambda x: x[0])
    t = [float(t0)]
    def cyc(): return E.nvec * OPT["vc"] / 10.0 + (E.count + E.nops - E.nvec) * 4.0
    def adv(c0): t[0] += (cyc() - c0) / 33.0
    def run(ops):
        for op in ops:
            while ins and ins[0][0] <= t[0]:
                c0 = cyc(); ins.pop(0)[1](); adv(c0)
            c0 = cyc(); runall([op]); adv(c0)
    def idle_until(tt):
        while ins and ins[0][0] <= tt: t[0] = max(t[0], ins[0][0]); ins.pop(0)[1]()
        t[0] = max(t[0], tt)
    run(s1); tpub = t[0]
    k = 0
    while k < len(wn) and t[0] < tpub + OPT["efd"]: run([wn[k]]); k += 1
    efetch_issue(); lstamp("ef"); tf = t[0]
    run(wn[k:]); hchk("PC", "G1"); hplace("HS")
    tc = t[0]
    I(f"s_setprio {OPT['pc']}"); run(s3); ts = t[0]; assert not ins
    E.wait(vm="hst"); signal("PD", 2, vQW, vQV, 32); hchk("PD", 2); flag_send("s20"); lstamp("hflag")
    if OPT.get("log"): print(f"helper est: epub {tpub:.0f} efetch {tf:.0f} check {tc:.0f} stores {ts:.0f}", file=sys.stderr)
pass2()
issue("XE")
if not OPT["w1e"]: issue("W4")
pub("KX")
for name, kn in cplaced:
    save = dict(known); known.update({id(EC): 0, id(EH): 0})
    for w_, val in kn:
        em, lg = signals[(w_, val)]; known[id(em)] = max(known[id(em)], lg)
    hplace(name); done_issue[name] = True; known.update(save)
I(f"s_setprio {OPT['pd']}")
if OPT["ep"]:
    hchk("PC", "U0"); poll_issue("s20", "ph"); poll_check("s20", "ph", 0x10000); lstamp("okh"); pub("K0")
hchk("PC", "T"); lstamp("gT")
if not OPT["ep"]: poll_issue("s20", "ph")
I(f"s_mov_b32 s19, {WS_FP}")
for n_ in ("W1", "W2", "W3")[3 - OPT["wl"]:]: issue(n_)
unpark("C0")
if not OPT["ep"]: poll_check("s20", "ph", 0x10000); lstamp("okh"); pub("K0")
hchk("PC", "gsa"); flag_send("s19")
unpark("W0"); unpark("W4")
if OPT["gs"] < 0: hchk("PC", "gst"); flag_send("s21")
for k, bn in enumerate(bar_names[1:]):
    if bn == "bP1": poll_check("s19", "pa", 0x1)
    if bn == "bP2": hchk("PC", "pj"); poll_issue("s21", "pg"); poll_check("s21", "pg", 0x1000000); lstamp("okg")
    E.wait(vm=["W5"] if bn == "bP3" else (["W3"] if OPT["wl"] else []), lg=["upW4"]); E.barrier()
    known[id(EC)] = max(known[id(EC)], EC.barriers[k + 1][1])
    if bn == "bP0" and OPT["gs"] >= 0: hchk("PC", "gst"); flag_send("s21")
    if bn == "bP0": poll_issue("s19", "pa")
    if bn == "bP1": issue("W5")
    if bn == "bP3": assert known[id(EC)] >= min(items["C2"].last_read, 10**9)
    if bn == "bP4": assert known[id(EC)] >= items[RT2].last_read
assert len(EH.barriers) == len(EC.barriers)
dump_stamps("H")
E.label("L_end"); I("s_endpgm")

hdr = open("cdna_kernels/" + NAME + ".s.ref").read().split("; Override launch geometry")[0]
out = hdr
if OPT["lst"]: out += "; cstamps: " + " ".join(lnames["C"]) + "\n; hstamps: " + " ".join(lnames["H"]) + f"\n; rt: {OPT['rt']}\n"
out += f"; @launch grid=(256,1,1) block=(512,1,1) lds={LDS_BYTES}\n"
out += f'.amdgcn_target "amdgcn-amd-amdhsa--gfx950"\n.text\n.globl {NAME}_kernel\n.p2align 8\n.type {NAME}_kernel,@function\n'
kc = next(k for k, l in enumerate(EC.lines) if "v_and_b32 v90, 31" in l)
out += E0.text() + "\n".join(EC.lines[:kc]) + "\n  s_branch L_cmain\n" + EH.text() + "L_cmain:\n" + "\n".join(EC.lines[kc:]) + "\n" + "\n".join(slow) + "\n"
out += f"L_pad:\n.fill (37120 - (L_pad - {NAME}_kernel)) / 4, 4, 0xbf810000\n"
out += f""".section .rodata,"a"
.p2align 6
.amdhsa_kernel {NAME}_kernel
  .amdhsa_next_free_vgpr 256
  .amdhsa_next_free_sgpr 102
  .amdhsa_accum_offset 256
  .amdhsa_group_segment_fixed_size 0
  .amdhsa_kernarg_size 128
  .amdhsa_user_sgpr_count 2
  .amdhsa_user_sgpr_kernarg_segment_ptr 1
  .amdhsa_system_sgpr_workgroup_id_x 1
.end_amdhsa_kernel
"""
open(sys.argv[1], "w").write(out)
print(f"compute {EC.count}+{EC.nops} helper {EH.count}+{EH.nops} barriers {len(bar_names)}: {' '.join(bar_names)}", file=sys.stderr)
```

```python
import sys
from emit import Emitter
NAME = "parallel_sum__ssm_conv_s5__glu_gated_bilinear__prompt"
OPT = dict(lst=0, rt=1, D=4, D2=7, D3=6, NU=2, gfd=40, prio=1, bd=15, ipc=85, slp=2, slq=0, wl=2, ovr=0, dsp=3, efn=90, rot=8, lead=12, ge=0, gf=1, gg=5, gp=2, mw=0, ar=1, nr=8, bk=12, c34=1, f0=0, f2=1, pw=0, pd=2, nwt=0, a0=6, al=16, nb=60, gs=2, tw=0, osc=1, d64=0, w2a=20, w2b=110, pb=0, c1=117, c45=1, u0s=158, xi=-1, pc=2, map=0, xj=1, nd=2, skw=2, gj=7, pjd=16, ea=0, pl=14, w1e=0, xw=1, ct=1, stg=0, x3=0, wr=4, pg2=21, ep=0, vc=85, efd=35, ecd=20)
for a_ in sys.argv[2:]:
    k_, v_ = a_.split("="); OPT[k_] = int(v_)

WS_EB = 0xA00000; WS_FH = 0xA40000; WS_FG = 0xA48000; WS_ST = 0xC00000; WS_FP = 0xA50000; WS_PB = 0x1000000; WS_SIZE = 0x1800000
U8 = 8192; MISC = 18 * U8
RTAB = MISC; EQ = MISC + 1024; HS = MISC + 5120; XE = MISC + 5120
DUMP = 0
PRG = MISC + 15872
LDS_BYTES = 163840
OOB = 0x80000000
sW_, sC_, sG_, sGL, sGH, sJ0 = "s3", "s4", "s5", "s6", "s7", "s8"
sT0, sT1, sT2, sT3 = "s9", "s10", "s11", "s12"
SX, SS, SG, SC, SWD, SWS, SOUT, SDBG = ("s[48:51]", "s[52:55]", "s[56:59]", "s[60:63]", "s[64:67]", "s[68:71]", "s[72:75]", "s[76:79]")
sK = [f"s{80+i}" for i in range(8)]
sM4, sM2, sM6 = "s88", "s89", "s94"
sQW, sQHG, sSO = "s95", "s96", "s100"
sNON, sC10, sC01, sC11 = "s90", "s91", "s92", "s93"
sSPIN = "s97"; sSP2 = "s99"; sCL = "s101"
sCW = "s98"; WMUL = {4: 3, 2: 6, 1: 0}[OPT["wr"]]
sRA = "s52"
def q_setup(): return [f"s_add_u32 {sQW}, {sGL}, {sCL}"]
def q_h(so, i): I(f"s_add_u32 {so}, {sQW}, {i}"); I(f"s_and_b32 {so}, {so}, 3"); I(f"s_lshl2_add_u32 {so}, {sGH}, {so}")
def q_u(so, i):
    if i < 4: q_h(so, i); I(f"s_cmp_eq_u32 {so}, 7"); I(f"s_cselect_b32 {so}, 11, {so}")
    else: I(f"s_add_u32 {so}, {sQW}, {i}"); I(f"s_and_b32 {so}, {so}, 1"); I(f"s_lshl1_add_u32 {so}, {sGH}, {so}"); I(f"s_add_u32 {so}, {so}, 7")
def w_soff(so, i, tmp):
    q_u(tmp, i); I(f"s_lshl2_add_u32 {tmp}, {tmp}, {sW_}"); I(f"s_mul_i32 {so}, {tmp}, 3")
    I(f"s_cmp_ge_u32 {tmp}, 15"); I(f"s_cselect_b32 {sRA}, 44, 0"); I(f"s_cmp_ge_u32 {tmp}, 30"); I(f"s_cselect_b32 {sRA}, 88, {sRA}")
    I(f"s_sub_u32 {so}, {so}, {sRA}"); I(f"s_lshl_b32 {so}, {so}, 15")
vLANE = "v1"
MF = "v_mfma_f32_32x32x16_bf16"
def v(n, k=1): return f"v{n}" if k == 1 else f"v[{n}:{n+k-1}]"

EC, EH, E0 = Emitter(), Emitter(), Emitter()
E = E0
def I(t): return E.I(t)
def VM(t, tag=None): return E.VM(t, tag)
def DS(t, tag=None): return E.DS(t, tag)
slow = []
lnames = {"C": [], "H": []}
def lstamp(name):
    who = "C" if E is EC else "H"
    if OPT["lst"] and name in LSET[who] and len(lnames[who]) < 12:
        k = 24 + 2 * len(lnames[who]); lnames[who].append(name); I(f"{'s_memrealtime' if OPT['rt'] else 's_memtime'} s[{k}:{k+1}]")
LSETS = {0: ([], []),
         1: (["X6", "X7", "S0", "G0", "G4", "T", "J0", "J4", "snd", "kp", "last", "end"], ["b0", "xd", "bD", "epub", "ef", "eok", "hst", "hflag", "okh", "gT", "okg", "end"]),
         2: (["S0", "S2", "S4", "S6", "G0", "G1", "G2", "G3", "G4", "G5", "G6", "T"], ["b0", "xd", "bD", "epub", "ef", "eok", "hst", "hflag", "okh", "gT", "okg", "end"]),
         3: (["T", "K0", "J0", "J2", "J4", "J7", "snd", "J10", "J13", "kp", "last", "end"], ["b0", "xd", "bD", "epub", "ef", "eok", "hst", "hflag", "okh", "gT", "okg", "end"])}
LSETS[9] = ([], LSETS[1][1])
LSET = dict(zip("CH", LSETS[OPT["lst"]]))
def runall(ops):
    for op in ops:
        if isinstance(op, str): I(op)
        else: op()
def csq_ops(d, x, t):
    return [f"v_mul_f32 {v(t)}, {v(x+1)}, {v(x+1)}", f"v_add_f32 {v(t+1)}, {v(x)}, {v(x)}", f"v_fma_f32 {v(d)}, {v(x)}, {v(x)}, -{v(t)}", f"v_mul_f32 {v(d+1)}, {v(t+1)}, {v(x+1)}"]
def cmul_ops(d, x, y, t):
    return [f"v_mul_f32 {v(t)}, {v(x)}, {v(y)}", f"v_mul_f32 {v(t+1)}, {v(x)}, {v(y+1)}",
            f"v_fma_f32 {v(t)}, -{v(x+1)}, {v(y+1)}, {v(t)}", f"v_fma_f32 {v(d+1)}, {v(x+1)}, {v(y)}, {v(t+1)}", f"v_mov_b32 {v(d)}, {v(t)}"]
def cfma_ops(d, L, x, br, bi):
    return [f"v_fma_f32 {v(d[0])}, {v(L)}, {v(x[0])}, {v(br)}", f"v_fma_f32 {v(d[1])}, {v(L)}, {v(x[1])}, {v(bi)}",
            f"v_fma_f32 {v(d[0])}, -{v(L+1)}, {v(x[1])}, {v(d[0])}", f"v_fma_f32 {v(d[1])}, {v(L+1)}, {v(x[0])}, {v(d[1])}"]
def bf16r_ops(d, s): return [f"v_cvt_pk_bf16_f32 {v(d)}, {v(s)}, {v(s)}", f"v_and_b32 {v(d)}, 0xffff0000, {v(d)}"]
def srd(dst, lo, size):
    n = int(dst[2:dst.index(":")])
    I(f"s_mov_b64 s[{n}:{n+1}], s[{lo}:{lo+1}]"); I(f"s_mov_b32 s{n+2}, {size}"); I(f"s_mov_b32 s{n+3}, 0x20000")
def srd_sel(dst, p0, p1, size):
    n = int(dst[2:dst.index(":")])
    I(f"s_cselect_b64 s[{n}:{n+1}], s[{p1}:{p1+1}], s[{p0}:{p0+1}]"); I(f"s_mov_b32 s{n+2}, {size}"); I(f"s_mov_b32 s{n+3}, 0x20000")
def ktab(i):
    I(f"s_add_u32 {sK[i]}, {sJ0}, {i}"); I(f"s_and_b32 {sK[i]}, {sK[i]}, 7"); I(f"s_lshl_b32 {sK[i]}, {sK[i]}, 7")
def spin_guard(lbl_back, inc):
    return ([f"  s_add_u32 s15, s15, {inc}" if inc >= 0 else f"  s_bitset1_b32 s15, {-inc}"] if OPT["lst"] else []) + [f"  s_add_u32 {sSPIN}, {sSPIN}, 1", f"  s_cmp_gt_u32 {sSPIN}, 0x400000", f"  s_cbranch_scc1 {lbl_back}"]
def tag_check(who, vp, vz):
    E.wait(vm="tag"); I(f"v_readfirstlane_b32 {sNON}, {v(vp)}"); I(f"s_cmp_eq_u32 {sNON}, 0"); I(f"s_cbranch_scc1 L_slow_tag{who}"); E.label(f"L_back_tag{who}")
    slow.extend([f"L_slow_tag{who}:", "  s_sleep 1", f"  v_mov_b32 {v(vz)}, 0", f"  buffer_load_dword {v(vp)}, {v(vz)}, {SDBG}, 0 offen sc1", "  s_waitcnt vmcnt(0)",
                 f"  v_readfirstlane_b32 {sNON}, {v(vp)}"] + spin_guard(f"L_back_tag{who}", 1) +
                [f"  s_cmp_eq_u32 {sNON}, 0", f"  s_cbranch_scc1 L_slow_tag{who}", f"  s_branch L_back_tag{who}"])
signals = {}
def signal(word, val, va, vt, off):
    signals[(word, val)] = (E, E.lg_done)
    I(f"v_mov_b32 {v(vt)}, {val}"); DS(f"ds_write_b32 {v(va)}, {v(vt)} offset:{off}", "sig")
nchk = [0]
def chk_issue(va, vt, off):
    nchk[0] += 1; DS(f"ds_read_b32 {v(vt)}, {v(va)} offset:{off}", f"chk{nchk[0]}"); return f"chk{nchk[0]}"
def chk_test(tag, val, va, vt, off, inc):
    E.wait(lg=tag)
    I(f"v_cmp_gt_u32 vcc, {val}, {v(vt)}"); I(f"s_cbranch_vccnz L_slow_{tag}"); E.label(f"L_back_{tag}")
    slow.extend([f"L_slow_{tag}:", f"  ds_read_b32 {v(vt)}, {v(va)} offset:{off}", "  s_waitcnt lgkmcnt(0)", f"  v_cmp_gt_u32 vcc, {val}, {v(vt)}"]
                + spin_guard(f"L_back_{tag}", inc) + [f"  s_cbranch_vccnz L_slow_{tag}", f"  s_branch L_back_{tag}"])
def chk_spin(val, va, vt, off):
    nchk[0] += 1; lbl = f"L_spin{nchk[0]}"
    E.label(lbl)
    DS(f"ds_read_b32 {v(vt)}, {v(va)} offset:{off}", lbl); I(f"s_sub_u32 {sSP2}, {sSP2}, 1"); I("s_cbranch_scc1 L_end")
    E.wait_all(lg=True)
    I(f"v_cmp_gt_u32 vcc, {val}, {v(vt)}"); I(f"s_cbranch_vccnz {lbl}")
def dump_stamps(who):
    if not OPT["lst"]: return
    E.wait_all(vm=True); lstamp("end"); E.wait_all(lg=True)
    n = len(lnames[who])
    for k in range(n): I(f"v_writelane_b32 v2, s{24+2*k}, {k}")
    I(f"v_writelane_b32 v2, {n}, 61"); I("v_writelane_b32 v2, s15, 60"); I("v_writelane_b32 v2, s14, 63")
    I(f"s_lshl3_add_u32 {sT0}, s2, {sW_}"); I(f"s_add_u32 {sT0}, {sT0}, {4 if who == 'H' else 0}"); I(f"s_lshl_b32 {sT0}, {sT0}, 8"); I(f"s_add_u32 {sT0}, {sT0}, {WS_ST}")
    I(f"v_lshlrev_b32 v3, 2, {vLANE}")
    VM(f"buffer_store_dword v2, v3, {SWS}, {sT0} offen")

NU = OPT["NU"]; assert NU == 2

BASE_OF = {}
for i in range(8): BASE_OF[f"X{i}"] = (2 * (i & 3) * U8, 16384)
for i, u in enumerate(range(8, 16)): BASE_OF[f"S{i}"] = (u * U8, 8192)
for i, u in enumerate([0, 3, 6, 9, 0, 3, 12, 15]): BASE_OF[f"G{i}"] = (u * U8, 24576)
DUMPS = [16 * U8, 12 * U8]
BASE_OF["DUMP0"] = (DUMPS[0], 16384); BASE_OF["DUMP1"] = (DUMPS[1], 16384); BASE_OF["XE"] = (XE, 8192); BASE_OF["HS"] = (HS, 10432); BASE_OF["OFT"] = (HS, 8192)
slot_of = {"C1": 3, "C2": 4, "C3": 5, "W1": 0, "W2": 1, "W3": 2, "C0": 6, "W0": 7, "W4": 8, "W5": 3}
RT_ = {"C0": 168, "W0": 184, "W4": 200}
ND = OPT["nd"]
CO = ["C1", "C2", "C3", "C0"]; WO = ["W1", "W2", "W3", "W0", "W4", "W5"]
SK = [["W1"], ["W1", "W4"], []][OPT["skw"]]
jobs = [(t, "sk") for t in CO[:4-ND]] + [(t, "s") for t in CO[4-ND:]] + [(t, "sk" if t in SK else "s") for t in WO] + [(t, "k") for t in WO if t not in SK] + [(t, "k") for t in CO[4-ND:]]
NJ1 = 10
def chunk_items(ch):
    i = ch[1:]
    if ch[0] == "S": return [f"S{i}", f"S{int(i)+1}"]
    return {"K": ["XE"] if ch == "KX" else [], "G": [f"G{i}"]}[ch[0]]
RED = slot_of["C2"] * 16384; assert ND <= 2
CHUNKS = ["S0", "S2", "S4", "S6"] + [f"G{i}" for i in range(4)] + ["KX", "K0", "Kp"]
PHV = {c: k + 1 for k, c in enumerate(CHUNKS)}
CEV = {"G0": 25, "G1": 49, "G2": 74, "G3": 99, "G4": 122, "G5": 145, "U0": OPT["u0s"]}
STAGES = ["Xi", "X", "S3", "S5", "dump"] + sorted(CEV, key=CEV.get) + ["T", "gsa", "gst", "pj"]
PCV = {c: k + 1 for k, c in enumerate(STAGES)}
for n, s in slot_of.items(): BASE_OF[n] = (s * 16384, 16384)

class Item: pass
items = {}
for n, (b, sz) in BASE_OF.items():
    it = Item(); it.name, it.base, it.size = n, b, sz; it.first_bar = None; it.last_read = None; it.reader = None; items[n] = it
bar_names = []
def note_read(name):
    it = items[name]
    if it.first_bar is None: it.first_bar = len(E.barriers)
    it.last_read = len(E.lg); it.last_bar = len(E.barriers); it.reader = E

E = E0
E.label(f"{NAME}_kernel")
I("s_cmp_ge_u32 s2, 256"); I("s_cbranch_scc1 L_end")
I("s_load_dwordx16 s[16:31], s[0:1], 0")
I("s_getpc_b64 s[98:99]"); I(f"s_bfe_u32 {sT0}, s2, 0x20003"); I("v_lshrrev_b32 v80, 3, v0"); I(f"v_lshl_add_u32 v80, v80, 2, {sT0}"); I("v_lshlrev_b32 v80, 7, v80")
VM("global_load_dword v95, v80, s[98:99]", "code")
I("s_load_dwordx16 s[32:47], s[0:1], 64")
I("s_memrealtime s[14:15]")
I("v_lshrrev_b32 v80, 6, v0"); I(f"v_and_b32 {vLANE}, 63, v0"); I(f"v_readfirstlane_b32 {sT3}, v80")
sR8 = "s19" if False else None
if OPT["map"] == 0:
    I(f"s_bfe_u32 {sT0}, s2, 0x20001"); I(f"s_lshr_b32 {sCL}, s2, 6"); I(f"s_lshl2_add_u32 {sC_}, {sT0}, {sCL}")
    I(f"s_bfe_u32 {sGL}, s2, 0x30003"); I(f"s_lshl1_add_u32 {sJ0}, {sCL}, {sGL}")
    I(f"s_and_b32 {sGH}, s2, 1"); I(f"s_lshl3_add_u32 {sG_}, {sGH}, {sGL}"); I(f"s_mov_b32 {sQW}, {sGL}")
    if OPT["xj"]: I(f"s_add_u32 {sJ0}, {sJ0}, {sT0}")
else:
    I(f"s_and_b32 {sT0}, s2, 1"); I(f"s_lshr_b32 {sQW}, s2, 5"); I(f"s_lshl3_add_u32 {sC_}, {sT0}, {sQW}")
    I(f"s_bfe_u32 {sCL}, s2, 0x20003"); I(f"s_bfe_u32 {sT0}, s2, 0x20001"); I(f"s_lshl2_add_u32 {sG_}, {sT0}, {sCL}")
    I(f"s_and_b32 {sGL}, {sG_}, 7"); I(f"s_lshr_b32 {sGH}, {sG_}, 3"); I(f"s_lshl1_add_u32 {sJ0}, {sCL}, {sQW}")
for i in range(2): ktab(i)
I(f"s_and_b32 {sW_}, {sT3}, 3"); I(f"s_lshl_b32 {sM4}, {sW_}, 12")
I(f"v_lshrrev_b32 v81, 3, {vLANE}"); I(f"v_and_b32 v82, 7, {vLANE}")
I("v_lshrrev_b32 v84, 1, v81"); I("v_xor_b32 v83, v82, v84"); I("v_lshlrev_b32 v83, 4, v83"); I("v_xor_b32 v85, 64, v83")
I(f"v_lshlrev_b32 v78, 2, {vLANE}"); I("v_mov_b32 v79, 0"); I(f"v_add_u32 v78, {PRG}, v78"); DS("ds_write_b32 v78, v79", "prz")
I(f"s_mov_b32 {sSP2}, 0x1000000"); I(f"s_and_b32 {sCW}, {sCL}, {3 if OPT['wr'] == 4 else 1}")
I(f"s_cmp_ge_u32 {sT3}, 4"); I("s_cbranch_scc1 L_helper")

E = EC
vP1 = [2, 3, 4, 5]; vGT = 6; vNM = 7; vR2 = 0
FB0, NFB = 8, 6
ACCG = [32, 64, 96]; ACCU = [48, 80, 112]; ACC_R, ACC_I = 96, 112
XF = 128
vXo = [86, 87, 88, 89]
def cbar(name, vm=(), lg=()):
    E.wait(vm=vm, lg=lg); E.barrier(); bar_names.append(name)
I("v_and_b32 v84, 4, v81"); I("v_and_b32 v80, 3, v81"); I("v_lshl_add_u32 v84, v84, 2, v80")
I(f"s_lshl2_add_u32 {sT0}, {sC_}, {sW_}"); I(f"s_lshl_b32 {sT0}, {sT0}, 5")
I(f"v_add_lshl_u32 v84, v84, {sT0}, 10")
I(f"v_add_u32 {v(vXo[0])}, v84, v83"); I(f"v_add_u32 {v(vXo[1])}, v84, v85")
I(f"v_add_u32 {v(vXo[2])}, 6144, {v(vXo[0])}"); I(f"v_add_u32 {v(vXo[3])}, 9216, {v(vXo[1])}"); I(f"v_add_u32 {v(vXo[1])}, 3072, {v(vXo[1])}")
I("s_mov_b32 s50, 2097152"); I("s_mov_b32 s51, 0x20000")
E.wait_all(lg=True)
I("s_mov_b64 s[48:49], s[16:17]")
def X_issue(i):
    I(f"s_add_u32 m0, {sM4}, {items[f'X{i}'].base}")
    for q in range(4): VM(f"buffer_load_dwordx4 {v(vXo[q])}, {SX}, {sK[i]} offen" + (f" offset:{q*1024}" if q else "") + " lds", f"X{i}")
X_issue(0); X_issue(1)
if OPT["prio"] == 1: I("s_setprio 1")
for i in range(2, 8): ktab(i)
X_issue(2)
if OPT["x3"]: X_issue(3)
cbar("b0")
I(f"v_and_b32 v90, 31, {vLANE}"); I(f"v_lshrrev_b32 v91, 5, {vLANE}")
I("v_bfe_u32 v92, v90, 1, 3"); I("v_xor_b32 v92, v92, v91"); I("v_lshlrev_b32 v92, 4, v92"); I("v_lshl_add_u32 v92, v90, 7, v92")
I(f"v_add_u32 {v(vP1[0])}, {sM4}, v92")
for s in range(1, 4): I(f"v_xor_b32 {v(vP1[s])}, {32*s}, {v(vP1[0])}")
I(f"s_mov_b32 {sC11}, 0x3f803f80"); I(f"s_mov_b32 {sC10}, 0x00003f80"); I(f"s_mov_b32 {sC01}, 0x3f800000")
for r in range(64, 72): I(f"v_mov_b32 v{r}, 0")
srd(SWS, 46, WS_SIZE); srd(SOUT, 42, 4194304)
I(f"s_cmp_ge_u32 {sW_}, 2"); srd_sel(SG, 36, 38, 1409024); srd_sel(SC, 26, 28, 524288); I(f"s_mul_i32 {sM6}, {sW_}, 6144"); srd(SWD, 40, 1409024)
I(f"s_mov_b32 {sSPIN}, 0"); I("s_mov_b32 s15, 0"); I("s_mov_b64 s[22:23], s[32:33]"); I("s_mov_b64 s[20:21], s[40:41]")
I(f"v_bfe_u32 v92, {vLANE}, 2, 2"); I("v_lshl_add_u32 v92, v91, 3, v92"); I(f"v_mul_u32_u24 {v(vGT)}, 192, v92")
I(f"v_and_b32 v93, 16, {vLANE}"); I(f"v_lshl_add_u32 {v(vGT)}, v93, 1, {v(vGT)}")
I(f"v_and_b32 v93, 1, {vLANE}"); I(f"v_lshl_add_u32 {v(vGT)}, v93, 4, {v(vGT)}")
I(f"v_and_b32 v93, 2, {vLANE}"); I(f"v_lshl_add_u32 {v(vGT)}, v93, 2, {v(vGT)}")
I(f"s_lshl_b32 {sT0}, {sW_}, 7"); I(f"s_add_u32 {sT0}, {sT0}, {RTAB}")
I("v_bfe_u32 v93, v90, 2, 1"); I("v_lshlrev_b32 v94, 4, v93"); I("v_lshrrev_b32 v93, 3, v90"); I("v_lshl_add_u32 v94, v93, 2, v94")
I("v_and_b32 v93, 3, v90"); I("v_add_u32 v94, v94, v93"); I(f"v_lshl_add_u32 v94, v94, 2, {sT0}")
FR = dict(r=72, t=73, v=74, w=75)
I(f"v_and_b32 v72, 3, {vLANE}"); I("v_lshlrev_b32 v72, 2, v72"); I(f"v_add_u32 v72, {PRG}, v72")
I(f"s_lshl_b32 {sT0}, {sW_}, 2"); I(f"s_add_u32 {sT0}, {sT0}, {PRG}"); I(f"v_mov_b32 v75, {sT0}")
def csig(st): signal("PC", PCV[st], FR["w"], FR["v"], 0)
for i in range(8):
    it = items[f"X{i}"]
    E.wait(vm=it.name)
    for s in range(4):
        DS(f"ds_read_b128 {v(XF + 16*i + 4*s, 4)}, {v(vP1[s])} offset:{it.base & 0xffff}", f"xr{i}_{s}"); note_read(it.name)
    if not OPT["x3"] and i + 3 < 8: X_issue(i + 3)
    if OPT["x3"] and i + 4 < 8: E.wait(lg=f"xr{i}_3"); X_issue(i + 4)
    if i == OPT["xi"]: csig("Xi")
    if i == 4 and OPT["mw"]:
        I(f"s_cmp_eq_u32 {sW_}, 1"); I("s_cselect_b64 s[52:53], s[38:39], s[36:37]"); I(f"s_cmp_eq_u32 {sW_}, 2"); I("s_cselect_b64 s[52:53], s[40:41], s[52:53]")
        I(f"s_cmp_eq_u32 {sW_}, 3"); I("s_cselect_b64 s[52:53], s[26:27], s[52:53]"); I("s_mov_b32 s54, 1409024"); I("s_cselect_b32 s54, 524288, s54"); I("s_mov_b32 s55, 0x20000")
        I(f"s_cselect_b32 {sT0}, 16, 43"); I(f"s_mul_i32 {sT1}, s2, {sT0}"); I(f"s_sub_u32 {sT0}, {sT0}, 1"); I(f"v_min_u32 v76, {sT0}, {vLANE}"); I(f"v_add_lshl_u32 v76, v76, {sT1}, 7")
        VM("buffer_load_dword v77, v76, s[52:55], 0 offen", "mw")
        I("s_mov_b64 s[52:53], s[28:29]"); I(f"s_cmp_eq_u32 {sW_}, 3"); I("s_cselect_b32 s54, 524288, 0")
        VM("buffer_load_dword v77, v76, s[52:55], 0 offen", "mw")
    for s in range(4):
        E.wait(lg=f"xr{i}_{s}")
        for d in range(4):
            x = v(XF + 16*i + 4*s + d)
            I(f"v_dot2c_f32_bf16 v{64+d}, {sC11}, {x}"); I(f"v_dot2c_f32_bf16 v{68+d}, {x}, {x}")
    lstamp(f"X{i}")
csig("X"); gchk = {"S0": chk_issue(FR["r"], FR["t"], 16)}
I("v_add_f32 v64, v64, v65"); I("v_add_f32 v66, v66, v67"); I("v_add_f32 v68, v68, v69")
I("v_add_f32 v64, v64, v66"); I("v_add_f32 v70, v70, v71"); I("v_mov_b32 v65, v64"); I("v_add_f32 v68, v68, v70"); I("v_mov_b32 v69, v68")
I("v_permlane32_swap_b32 v64, v65"); I("v_permlane32_swap_b32 v68, v69")
I("v_add_f32 v64, v64, v65"); I("v_mul_f32 v64, 0x3b000000, v64")
runall(bf16r_ops(65, 64)); I(f"v_sub_f32 {v(vNM)}, 0, v65")
I(f"s_sub_u32 {sT0}, 65536, {sM4}")
for s in range(4): I(f"v_add_u32 {v(vP1[s])}, {sT0}, {v(vP1[s])}")
win = {"p1": 65536, "c1": 0, "gt": 0, "lin": 0, "wt": 0}
def burst(i):
    for d in range(16):
        x = v(XF + 16*i + d)
        I(f"v_dot2_f32_bf16 v{32+2*d}, {x}, {sC10}, {v(vNM)}"); I(f"v_dot2_f32_bf16 v{33+2*d}, {x}, {sC01}, {v(vNM)}")
qC, qB = [], []
marks = set()
def run_op(op):
    if isinstance(op, tuple):
        if op[0] == "hold": holdq[0] = op[1]
        else: marks.add(op[1])
    elif isinstance(op, str): I(op)
    else: op()
def need_mark(m):
    while m not in marks:
        q = next(q for q in (qC, qB) if ("mark", m) in [o for o in q if isinstance(o, tuple)])
        run_op(q.pop(0))
def cvt_ops(i):
    ops = []
    for d in range(16):
        ops.append(f"v_cvt_pk_bf16_f32 {v(XF + 16*i + d)}, v{32+2*d}, v{33+2*d}")
        if d & 3 == 3: ops.append(("mark", f"cen{4*i + (d>>2)}"))
    return ops
B = ["v_add_f32 v68, v68, v69", "v_mul_f32 v68, 0x3b000000, v68", "v_fma_f32 v68, -v64, v64, v68", "v_max_f32 v68, 0, v68"]
B += bf16r_ops(68, 68) + ["v_add_f32 v68, 0x3727c5ac, v68"] + bf16r_ops(68, 68) + ["v_sqrt_f32 v68, v68", lambda: DS("ds_write_b32 v94, v65 offset:512", "tabw")]
B += bf16r_ops(68, 68) + ["v_rcp_f32 v68, v68", lambda: DS("ds_write_b32 v94, v68", "tabw"), f"v_mul_f32 {v(vR2)}, v68, v68", ("mark", "tab")]
qB.extend(B)

class Slot: pass
slots = []
def add_slot(chunk, reads, mfma, needs=()):
    s = Slot(); s.chunk, s.reads, s.mfma, s.needs = chunk, reads, mfma, needs; slots.append(s)
for i in range(8):
    for s in range(4):
        f = 4*i + s
        for comp in range(2):
            acc = v(ACC_I if comp else ACC_R, 16)
            add_slot(f"S{i}", [("p1", f"S{i}", s, comp * 4096)], lambda b, f=f, acc=acc: f"{MF} {acc}, {v(XF+4*f,4)}, {v(b[0],4)}, {acc if f else 0}", needs=[f"cen{f}"])
P2 = len(slots)
order = [(0, s, u, m) for s in range(4) for u in range(2) for m in range(2)] + [(0, s, 2, m) for s in range(4) for m in range(2)]
order += [(i, s, u, m) for i in range(1, 8 - NU) for s in range(4) for u in range(3) for m in range(2)]
order += [(i, s, u, m) for u in range(3) for i in range(8 - NU, 8) for s in range(4) for m in range(2)]
unit_done = {}
for (i, s, u, m) in order:
    f = 4*i + s; acc = v((ACCU if m else ACCG)[u], 16)
    nd = (["tab"] if f == 0 else []) + (["dumped"] if (f, u) == (0, 2) else [])
    add_slot(f"G{i}", [("gt", f"G{i}", m * 12288 + 16*s*192 + 64*u)], lambda b, f=f, acc=acc: f"{MF} {acc}, {v(b[0],4)}, {v(XF+4*f,4)}, {acc if f else 0}", needs=nd)
    unit_done[u] = len(slots) - 1
P3 = len(slots)
ACC3 = 32; BASE = 48
vHST = 138; vDSK = 140; vHR, vWT, vXR, vTAB3, vOUT = 128, 129, 130, 131, 132
sHG = ["s16", "s17", "s18"]
EPO = 144; vC1 = [134, 135, 136, 137]; vC2 = [2, 3, 4, 5]
cGo = [128, 129, 130]; cCo = [132, 133, 134, 135]
ACC4 = 48; ACCS = [64, 80]
AQ = list(range(172, 256, 4)) + list(range(108, 128, 4))
BASE = 144; PX = 108
P3BUFS = list(range(8, 32, 4)) + [96, 100, 104]
vA = 139; vWT2 = 133; vA2 = 7; vPB = 0
aloads = []; started = set()
for n, (t, hv) in enumerate(jobs):
    if n == NJ1: P4 = len(slots)
    for s in range(4):
        idx = {}
        for h_ in hv: idx[h_] = len(aloads); aloads.append((f"a{len(aloads)}", AQ[len(aloads) % len(AQ)], t, s, h_, s == 0 and h_ == hv[0]))
        for a_ in range(2):
            rd = ("c1", t, s, a_) if t[0] == "C" else ("wt", t, 16*s*128, a_)
            for k_, h_ in enumerate(hv):
                r_ = ([ACC3, ACC4] if h_ == "k" else ACCS)[a_]; acc = v(r_, 16)
                z = r_ not in started; started.add(r_)
                tag, q = aloads[idx[h_]][:2]
                add_slot(f"J{n}", [rd] if k_ == 0 else [], lambda b, q=q, acc=acc, z=z: f"{MF} {acc}, {v(q,4)}, {v(b[0],4)}, {0 if z else acc}")
                slots[-1].atag = tag; slots[-1].arel = idx[h_] + 1 if a_ == 1 else None
M = len(slots)
first_slot = {}
for m, s in enumerate(slots): first_slot.setdefault(s.chunk, m)
pool = [FB0 + 4*k for k in range(NFB)]
def newfb(): return pool.pop(0)
def set_win(kind, regs, base, span):
    cur = win[kind]
    if not (cur <= base and base + span <= cur + 65536):
        new = min((base // 49152) * 49152, MISC - 65536)
        if not (new <= base and base + span <= new + 65536): new = base
        for r in regs: I(f"v_add_u32 {v(r)}, {(new - cur) & 0xffffffff}, {v(r)}")
        win[kind] = cur = new
    return cur
def emit_reads(m):
    s = slots[m]; s.bufs = []; s.tags = []; s.own = bool(s.reads)
    if not s.reads: s.bufs = slots[m-1].bufs
    for rd in s.reads:
        b = newfb(); s.bufs.append(b); tag = f"rd{m}_{rd[0]}"; s.tags.append(tag)
        kind, it = rd[0], items[rd[1]]
        if kind == "p1":
            w = set_win(kind, vP1, it.base, it.size); DS(f"ds_read_b128 {v(b,4)}, {v(vP1[rd[2]])} offset:{it.base - w + rd[3]}", tag)
        elif kind == "c1":
            w = set_win(kind, vC1 + vC2, it.base, it.size); DS(f"ds_read_b128 {v(b,4)}, {v((vC2 if rd[3] else vC1)[rd[2]])} offset:{it.base - w}", tag)
        else:
            regs, pitch = ([vGT], 192) if kind == "gt" else ([vWT, vWT2], 128)
            reg = regs[rd[3]] if kind == "wt" else vGT
            w = set_win(kind, regs, it.base, it.size)
            DS(f"ds_read_b64_tr_b16 {v(b,2)}, {v(reg)} offset:{it.base - w + rd[2]}", tag)
            DS(f"ds_read_b64_tr_b16 {v(b+2,2)}, {v(reg)} offset:{it.base - w + rd[2] + 4*pitch}", tag)
        note_read(it.name)
events = {}
def at(m, fn): events.setdefault(m, []).append(fn)
post = {8*i + 7: (lambda i=i: (need_mark(f"cen{4*i+7}"), burst(i + 2), qC.extend(cvt_ops(i + 2)))) for i in range(6)}
at(52, lambda: qB.extend([f"v_lshlrev_b32 {v(vNM)}, 6, {vLANE}", f"v_bfe_u32 v64, {vLANE}, 1, 2", f"v_lshl_add_u32 {v(vNM)}, v64, 4, {v(vNM)}",
                          f"v_add_u32 {v(vNM)}, {sM4}, {v(vNM)}", f"v_add_u32 {v(vNM)}, {DUMPS[1]}, {v(vNM)}", ("mark", "dadr")]))
dtag = {}
at(P2 - 1, lambda: dtag.__setitem__(0, chk_issue(FR["r"], FR["t"], 0)))
def dump_op(j, comp):
    need_mark("dadr")
    if (j, comp) == (0, 1): chk_test(dtag[0], PCV["S5"], FR["r"], FR["t"], 0, -12)
    if j and comp == 0: I(f"v_xor_b32 {v(vNM)}, {16 * (j ^ (j - 1))}, {v(vNM)}")
    DS(f"ds_write_b128 {v(vNM)}, {v((ACC_I if comp else ACC_R) + 4*j, 4)} offset:{DUMPS[comp] - DUMPS[1]}", "dump")
    if (j, comp) == (3, 1): marks.add("dumped")
def dump64(j, comp, hf):
    need_mark("dadr")
    if j and comp == 0 and hf == 0: I(f"v_xor_b32 {v(vNM)}, {16 * (j ^ (j - 1))}, {v(vNM)}")
    if comp == 0 and hf == 0: I(f"v_add_u32 {v(vP1[1])}, {DUMPS[0]}, {v(vNM)}")
    DS(f"ds_write_b64 {v(vNM if comp else vP1[1])}, {v((ACC_I if comp else ACC_R) + 4*j + 2*hf, 2)} offset:{8*hf}", "dump")
    if (j, comp, hf) == (3, 1, 1): marks.add("dumped")
if OPT["d64"]:
    for k in range(16): at(P2 + (k * 15) // 16, lambda k=k: dump64(k >> 2, (k >> 1) & 1, k & 1))
else:
    for k in range(8): at(P2 + 1 + (k * OPT["dsp"]) // 2, lambda k=k: dump_op(k >> 1, k & 1))
def fr_move():
    I(f"v_mov_b32 {v(vP1[0])}, v72"); I(f"v_mov_b32 {v(vP1[3])}, v75"); FR.update(r=vP1[0], t=vP1[1], v=vP1[2], w=vP1[3])
at(P2 - 2, fr_move)
if OPT["mw"]: at(P2 - 3, lambda: E.wait(vm="mw"))
at(31, lambda: csig("S3")); at(47, lambda: csig("S5"))
at(P2 + OPT["bd"], lambda: (need_mark("dumped"), E.wait(lg=["dump", "tabw"]), csig("dump")))
LAND = {"G2": ["G4"], "G3": ["G5", "G6"], "G4": ["G7"]}
for st, sl in CEV.items(): at(P2 + sl, lambda st=st: (E.wait(vm=LAND.get(st, []), lg=["cof2"] if st == "G1" else []), csig(st)))
GATE = {c: (16, PHV[c]) for c in CHUNKS[:8]}
GATE["S0"] = (16, PHV["S2"]); GATE["S4"] = (16, PHV["S6"])
GATE.update({"G4": (0, PCV["G2"]), "G5": (0, PCV["G3"]), "G6": (0, PCV["G4"])})
del GATE["S2"], GATE["S6"]
for c in list(GATE)[1:]: at(first_slot[c] - OPT["D"] - 6, lambda c=c: gchk.__setitem__(c, chk_issue(FR["r"], FR["t"], GATE[c][0])))
cplaced = []
cWo = [168, 169, 170, 171]
def c_offsets():
    I(f"s_lshl_b32 {sT0}, {sW_}, 11"); I(f"s_add_u32 {sT0}, {sT0}, {HS}"); I(f"v_lshl_add_u32 v136, {vLANE}, 4, {sT0}")
    DS("ds_read_b128 v[128:131], v136", "cof"); note_read("OFT")
at(P2 + 24, c_offsets)
at(P2 + 45, lambda: (DS("ds_read_b128 v[132:135], v136 offset:1024", "cof2"), note_read("OFT")))
at(P2 + 76, lambda: qB.extend([lambda: E.wait(lg="cof2"), f"v_readfirstlane_b32 {sNON}, v135", "v_mov_b32 v168, v134"] + [f"v_add_u32 v{168+q}, {7168*q}, v134" for q in range(1, 4)]
                              + ["v_add_u32 v134, 14336, v132", "v_add_u32 v135, 14336, v133"] + q_setup() + [("mark", "cw")]))
def c_load(name, ta, step2, gate=None):
    k = name[0]; i = int(name[1:]); base = items[name].base
    tag = {}
    if gate:
        off, val = (0, PCV[gate]) if gate in PCV else (32, gate)
        at(P2 + ta - 6, lambda: tag.__setitem__(0, chk_issue(FR["r"], 137, off)))
    n = 6 if k == "G" else 4
    for q in range(n):
        def op(q=q):
            if q == 0:
                E.wait(lg="cof")
                if gate: chk_test(tag[0], val, FR["r"], 137, off, -(13 + len(cplaced))); cknown.append(("PC" if off == 0 else "PD", val))
                cplaced.append((name, list(cknown)))
            if k == "G":
                if q % 3 == 0:
                    I(f"s_add_u32 m0, {sM6}, {base + 1024*q}")
                    I(f"s_mul_i32 {sSO}, {sK[i]}, 1376" if q == 0 else f"s_add_u32 {sSO}, {sSO}, {16*2752}")
                VM(f"buffer_load_dwordx4 {v(cGo[q%3])}, {SG}, {sSO} offen" + (f" offset:{(q%3)*1024}" if q % 3 else "") + " lds", name)
            else:
                if q == 0:
                    need_mark("cw"); I(f"s_add_u32 m0, {sM4}, {base}")
                    if k == "C": q_h(sSO, i); I(f"s_lshl_b32 {sSO}, {sSO}, 7")
                    else: w_soff(sSO, i, "s19")
                VM(f"buffer_load_dwordx4 {v((cCo if k == 'C' else cWo)[q])}, {SC if k == 'C' else SWD}, {sSO} offen" + (f" offset:{q*1024}" if q else "") + " lds", name)
        at(P2 + ta + (q * step2) // 2, op)
cknown = []
c_load("G4", 37, 5, "G0"); c_load("G6", 52, 4); c_load("G5", 64, 4, "G1"); c_load("G7", 77, 5); c_load("C1", 93, 4)
c_load("C2", OPT["c1"], 4); c_load("C3", OPT["c1"] + 8, 4);
if OPT["wl"] < 3: c_load("W1", 141, 4)
if OPT["wl"] < 2: c_load("W2", 156, 3, "G5"); c_load("W3", 162, 3)
def st_addr():
    o = [f"s_lshl2_add_u32 {sT0}, {sC_}, {sW_}", f"s_mul_i32 {sT0}, {sT0}, {152*1024}", f"v_lshl_add_u32 {v(vHST)}, {vLANE}, 4, {sT0}", f"s_lshl_b32 {sT0}, {sG_}, 11"]
    for uu in range(3):
        o += [f"s_add_u32 {sT3}, {sT0}, {65536 + 15*uu*2048}",
              lambda uu=uu: (I(f"s_cmp_lt_u32 {sG_}, {14 if uu == 2 else 15}"), I(f"s_cselect_b32 {sHG[uu]}, {sT3}, 0x40000000"))]
    o += [f"s_and_b32 {sT1}, {sW_}, 1", f"s_lshr_b32 {sT2}, {sW_}, 1", f"s_lshl1_add_u32 {sT0}, {sC_}, {sGH}", f"s_lshl1_add_u32 {sT0}, {sT0}, {sT2}",
          f"s_mul_i32 {sT0}, {sT0}, {152*1024}", f"s_lshl_b32 {sT3}, {sT1}, 12", f"s_add_u32 {sT0}, {sT0}, {sT3}", f"v_lshl_add_u32 {v(vA)}, {vLANE}, 4, {sT0}",
          f"v_lshlrev_b32 {v(vDSK)}, 16, v131",
          f"s_mul_i32 {sT0}, {sGH}, {4*152*1024}", f"s_sub_u32 {sT0}, {2*152*1024}, {sT0}", f"v_add_u32 {v(vA2)}, {sT0}, {v(vA)}", ("mark", "sta1")]
    return o
def st_addr2():
    o = [f"s_and_b32 {sT1}, {sW_}, 1", f"s_lshr_b32 {sT2}, {sW_}, 1", f"v_lshrrev_b32 v141, 5, {vLANE}", f"v_and_b32 v143, 31, {vLANE}"]
    o += [f"s_lshl1_add_u32 {sT3}, {sGL}, {sT1}"]
    o += [f"s_lshl_b32 {sT3}, {sT3}, 7", f"s_lshl1_add_u32 {sT0}, {sGH}, {sT2}", f"s_lshl2_add_u32 s13, {sC_}, {sT0}", "s_lshl_b32 s13, s13, 16", f"s_add_u32 s13, s13, {sT3}",
          "v_lshlrev_b32 v142, 15, v141", "v_lshl_add_u32 v142, v143, 2, v142", f"v_add_u32 {v(vOUT)}, s13, v142"]
    o += [f"s_lshl_b32 {sT0}, {sT0}, 7", f"s_add_u32 {sT0}, {sT0}, {RTAB}", f"v_lshl_add_u32 {v(vTAB3)}, v141, 6, {sT0}",
          f"s_lshl_b32 {sT0}, {sT1}, 6", f"s_lshl_b32 {sT3}, {sT2}, 12", f"s_add_u32 {sT3}, {sT3}, {sT0}", f"s_add_u32 {sT3}, {sT3}, {XE}",
          "v_lshlrev_b32 v142, 11, v141", "v_lshl_add_u32 v142, v143, 1, v142", f"v_add_u32 {v(vXR)}, {sT3}, v142",
          f"s_lshl_b32 {sT3}, {sW_}, 12", f"s_add_u32 {sT3}, {sT3}, {RED}", f"v_lshl_add_u32 {v(vHR)}, {vLANE}, 4, {sT3}"]
    o += [f"v_bfe_u32 v142, {vLANE}, 2, 2", "v_lshl_add_u32 v142, v141, 3, v142", "v_lshlrev_b32 v142, 7, v142",
          f"v_and_b32 v6, 16, {vLANE}", "v_lshl_add_u32 v142, v6, 1, v142", f"v_and_b32 v6, 3, {vLANE}", "v_lshl_add_u32 v142, v6, 3, v142",
          f"v_and_b32 v6, 8, {vLANE}", "v_lshlrev_b32 v6, 3, v6", f"v_xor_b32 v6, {sT0}, v6", f"s_lshl_b32 {sT3}, {sT1}, 13", f"v_add3_u32 {v(vWT)}, v142, v6, {sT3}", f"v_xor_b32 {v(vWT2)}, 64, {v(vWT)}"]
    o += [f"s_mul_i32 {sT0}, {sT1}, 12288", "v_bfe_u32 v142, v143, 1, 3", "v_xor_b32 v142, v142, v141", "v_lshlrev_b32 v142, 4, v142", "v_lshl_add_u32 v142, v143, 7, v142",
          f"v_add_u32 {v(vC1[0])}, {sT0}, v142"] + [f"v_xor_b32 {v(vC1[s])}, {32*s}, {v(vC1[0])}" for s in range(1, 4)] + [f"v_xor_b32 {v(vC2[s])}, 4096, {v(vC1[s])}" for s in range(4)] + [("mark", "sta")]
    return o
at(P2 + 120, lambda: qB.extend(st_addr()))
def glu_epi(u):
    ops = []; o = EPO + 8*u
    for j in range(8):
        g0, u0 = ACCG[u] + 2*j, ACCU[u] + 2*j
        ops += [f"v_mul_f32 {v(u0)}, {v(vR2)}, {v(u0)}", f"v_mul_f32 {v(u0+1)}, {v(vR2)}, {v(u0+1)}",
                f"v_mul_f32 {v(u0)}, {v(g0)}, {v(u0)}", f"v_mul_f32 {v(u0+1)}, {v(g0+1)}, {v(u0+1)}", f"v_cvt_pk_bf16_f32 {v(o+j)}, {v(u0)}, {v(u0+1)}"]
        if j & 3 == 3:
            ops.append(lambda fr=j >> 2: VM(f"buffer_store_dwordx4 {v(o + 4*fr, 4)}, {v(vHST)}, {SWS}, {sHG[u]} offen offset:{fr*1024} sc1", "gst" if u == 2 else "gsa"))
    return ops + [("mark", f"epi{u}")]
for u in range(2): at(unit_done[u] + 3, lambda u=u: qB.extend(glu_epi(u)))
def base_ops():
    ops = [f"v_mov_b32 {v(BASE+r)}, 0" for r in range(16)]
    def rdx(r): DS(f"ds_read_u16_d16_hi {v(BASE+r)}, {v(vXR)} offset:{128*r}", f"xe{r}"); note_read("XE")
    ops += [lambda r=r: rdx(r) for r in range(16)]
    R3, M3, t0, t1, p = 160, 164, 168, 169, 170
    rnd = [f"v_cvt_pk_bf16_f32 {v(p)}, {v(t0)}, {v(t1)}", f"v_lshlrev_b32 {v(t0)}, 16, {v(p)}", f"v_and_b32 {v(t1)}, 0xffff0000, {v(p)}"]
    for j in range(4):
        ops += [lambda j=j: DS(f"ds_read_b128 {v(R3,4)}, {v(vTAB3)} offset:{16*j}", f"r3{j}"), lambda j=j: DS(f"ds_read_b128 {v(M3,4)}, {v(vTAB3)} offset:{512+16*j}", f"m3{j}"),
                ("hold", 3), lambda j=j: E.wait(lg=f"m3{j}")]
        for e in (0, 2):
            r = 4*j + e
            ops += [f"v_sub_f32 {v(t0)}, {v(BASE+r)}, {v(M3+e)}", f"v_sub_f32 {v(t1)}, {v(BASE+r+1)}, {v(M3+1+e)}"] + rnd
            ops += [f"v_mul_f32 {v(t0)}, {v(t0)}, {v(R3+e)}", f"v_mul_f32 {v(t1)}, {v(t1)}, {v(R3+1+e)}"] + rnd
            ops += [f"v_mul_f32 {v(t0)}, {v(t0)}, {v(vDSK)}", f"v_mul_f32 {v(t1)}, {v(t1)}, {v(vDSK)}"] + rnd
            ops += [f"v_add_f32 {v(BASE+r)}, {v(BASE+r)}, {v(t0)}", f"v_add_f32 {v(BASE+r+1)}, {v(BASE+r+1)}, {v(t1)}"]
    return ops + [("mark", "base")]
holdq = [0]

def segment(lo, hi, Dof, lim, pre_bar):
    rn = lo; held = []
    for m in range(lo - 1, hi):
        c0 = E.count + E.nops
        if m >= lo:
            s = slots[m]
            for n in s.needs: need_mark(n)
            tags = list(s.tags)
            if m % 2 == 0 and m + 1 < hi: tags += slots[m+1].tags
            E.wait(vm=[s.atag] if m >= P3 else [], lg=tags)
            I(s.mfma(s.bufs)); c0 = E.count + E.nops
            if s.own: pool.extend(held); held = list(s.bufs)
            if m >= P3:
                if s.arel: adone[0] = max(adone[0], s.arel)
                a_issue(OPT["ar"])
            if first_slot[s.chunk] == m and m < P3: lstamp(s.chunk)
            if OPT["lst"] == 9 and m >= P2 + OPT["l0"] and (m - P2 - OPT["l0"]) % OPT["ld"] == 0: LSET["C"].append(f"m{m-P2}"); lstamp(f"m{m-P2}")
            for fn in events.get(m, []): fn()
        nr = 0
        while rn < hi and rn <= m + Dof(m) and len(pool) >= len(slots[rn].reads) and (nr < 2 or m < lo):
            ch = slots[rn].chunk
            if first_slot[ch] == rn:
                if pre_bar: pre_bar(ch)
                if ch in GATE:
                    chk_test(gchk[ch], GATE[ch][1], FR["r"], FR["t"], GATE[ch][0], -(list(GATE).index(ch) + 1))
                    cknown.append(("PC" if GATE[ch][0] == 0 else "PH", GATE[ch][1]))
            emit_reads(rn); rn += 1; nr += 1
        assert rn >= min(hi, m + 3), (m, rn)
        if m >= lo:
            n = 0
            while qC and (n < 3 or isinstance(qC[0], tuple)): run_op(qC.pop(0)); n += 1
            if holdq[0]: holdq[0] -= 1
            while qB and not holdq[0] and (E.count + E.nops - c0 < lim - (m & 1) or isinstance(qB[0], tuple)): run_op(qB.pop(0))
            if m in post: post[m]()
    pool.extend(held)
retired = set()
def D2(m): return OPT["D"]
anext = [0]; aok = {"C": False, "W": False, "L": False}; adone = [0]
def a_issue(n):
    while n > 0 and anext[0] < len(aloads):
        tag, q, t, s_, h_, first = aloads[anext[0]]
        if not aok["L" if t in ("W4", "W5") else t[0]] or anext[0] - adone[0] >= min(len(AQ), OPT["al"]): return
        if first:
            i = int(t[1:])
            if t[0] == "C": q_h(sSO, i); I(f"s_lshl_b32 {sSO}, {sSO}, 13")
            else:
                q_u(sSO, i); I(f"s_cmp_eq_u32 {sSO}, 11"); I(f"s_cselect_b32 {sSO}, 0x20000, {sSO}"); I(f"s_lshl_b32 {sSO}, {sSO}, 13"); I(f"s_add_u32 {sSO}, {sSO}, 65536")
        VM(f"buffer_load_dwordx4 {v(q,4)}, {v(vA if h_ == 'k' else vA2)}, {SWS}, {sSO} offen" + (f" offset:{s_*1024}" if s_ else "") + " sc1", tag)
        anext[0] += 1; n -= 1
if OPT["ea"]:
    etag = {}
    at(P2 + OPT["ea"] - 6, lambda: etag.__setitem__(0, chk_issue(FR["r"], FR["t"], 16)))
    at(P2 + OPT["ea"], lambda: (need_mark("sta1"), chk_test(etag[0], PHV["K0"], FR["r"], FR["t"], 16, -11), aok.__setitem__("C", True)))
    for m_ in range(OPT["ea"], 192): at(P2 + m_, lambda: a_issue(1) if anext[0] < 12 else None)
burst(0); runall([o for o in cvt_ops(0) if isinstance(o, str)]); marks.update(f"cen{k}" for k in range(4)); burst(1); qC.extend(cvt_ops(1))
segment(0, P3, D2, 6, None)
PBAR = {"J0": "P0", "J2": "P1", f"J{OPT['gj']}": "P2", "J8": "P3", "J12": "P4"}
def p3bar(ch):
    if ch in PBAR:
        cbar("b" + PBAR[ch], vm=[{0: "W3", 2: "W1", 3: "C3"}[OPT["wl"]]])
        if PBAR[ch] == "P1": aok["W"] = True
        if PBAR[ch] == "P2": aok["L"] = True
    lstamp(ch)
lstamp("T"); csig("T")
need_mark("epi1")
qB.extend(glu_epi(2)); need_mark("epi2")
pool[:] = P3BUFS
sa = st_addr2()
I(f"v_mov_b32 v106, {v(FR['r'])}"); I(f"v_mov_b32 v107, {v(FR['w'])}"); FR.update(r=106, w=107, t=104, v=105); P3BUFS.pop(); pool[:] = P3BUFS
for op in sa: run_op(op)
if OPT["ep"]:
    if not OPT["ea"]: chk_spin(PHV["K0"], FR["r"], FR["t"], 16); aok["C"] = True; a_issue(OPT["a0"])
    E.wait(vm="gsa"); csig("gsa"); a_issue(12)
else:
    E.wait(vm="gsa"); csig("gsa")
    chk_spin(PHV["K0"], FR["r"], FR["t"], 16); aok["C"] = True; a_issue(12)
lstamp("K0")
qB.extend([f"s_lshl4_add_u32 {sT0}, {sC_}, {sG_}", f"s_lshl2_add_u32 {sT0}, {sT0}, {sW_}", f"s_lshl_b32 {sT0}, {sT0}, 12", f"s_add_u32 s20, {sT0}, {WS_PB}", f"s_xor_b32 s21, s20, {8 << 14}",
           "s_mov_b32 s16, 0x07060500", "s_mov_b32 s17, 0x07060501", "s_mov_b32 s18, 0x07060502", "s_mov_b32 s22, 0x07060503", "s_mov_b32 s23, 0x0c0c0400", "s_mov_b32 s53, 0x05040100", f"v_lshlrev_b32 {v(vPB)}, 4, {vLANE}"] + base_ops())
if OPT["gs"] < 0: E.wait(vm="gst"); csig("gst")
else: at(P3 + OPT["gs"], lambda: (E.wait(vm="gst"), csig("gst")))
at(first_slot[f"J{OPT['gj']}"] - OPT["D3"] - OPT["pjd"], lambda: csig("pj"))
def reduce_pair(own, other, bar):
    for j in range(4): DS(f"ds_write_b128 {v(vHR)}, {v(other+4*j,4)} offset:{1024*j}", "red" + bar)
    I(f"v_xor_b32 {v(FR['t'])}, 4096, {v(vHR)}")
    cbar(bar, lg=["red" + bar])
    for j in range(4): DS(f"ds_read_b128 {v(other+4*j,4)}, {v(FR['t'])} offset:{1024*j}", f"rr{j}")
if OPT["ovr"]:
    at(P4, lambda: (lstamp("snd"), need_mark("base")))
    for j in range(4): at(P4 + 1 + j // 2, lambda j=j: DS(f"ds_write_b128 {v(vHR)}, {v(ACCS[1]+4*j,4)} offset:{1024*j}", "redbR1"))
    def r1_mid():
        I(f"v_xor_b32 v170, 4096, {v(vHR)}"); I(f"v_mov_b32 v171, {sNON}")
        cbar("bR1", lg=["redbR1"])
        for j in range(4): DS(f"ds_read_b128 {v(ACCS[1]+4*j,4)}, v170 offset:{1024*j}", f"rq{j}")
    def r1_fin(j):
        E.wait(lg=f"rq{j}")
        for e in range(4): I(f"v_add_f32 {v(ACCS[0]+4*j+e)}, {v(ACCS[0]+4*j+e)}, {v(ACCS[1]+4*j+e)}")
        for e in range(4): I(f"v_perm_b32 {v(ACCS[0]+4*j+e)}, {v(ACCS[0]+4*j+e)}, v171, {['s16', 's17', 's18', 's22'][e]}")
        VM(f"buffer_store_dwordx4 {v(ACCS[0]+4*j,4)}, {v(vPB)}, {SWS}, s21 offen offset:{1024*j} sc1", "pst")
    at(P4 + 5, r1_mid)
    for j in range(4): at(P4 + 7 + j, lambda j=j: r1_fin(j))
else:
    segment(P3, P4, lambda m: OPT["D3"], 8, p3bar)
    lstamp("snd")
    need_mark("base")
    reduce_pair(ACCS[0], ACCS[1], "bR1")
    I(f"v_mov_b32 v171, {sNON}")
    for j in range(4):
        E.wait(lg=f"rr{j}")
        for e in range(4): I(f"v_add_f32 {v(ACCS[0]+4*j+e)}, {v(ACCS[0]+4*j+e)}, {v(ACCS[1]+4*j+e)}")
        for e in range(4): I(f"v_perm_b32 {v(ACCS[0]+4*j+e)}, {v(ACCS[0]+4*j+e)}, v171, {['s16', 's17', 's18', 's22'][e]}")
        VM(f"buffer_store_dwordx4 {v(ACCS[0]+4*j,4)}, {v(vPB)}, {SWS}, s21 offen offset:{1024*j} sc1", "pst")
pl_ld = [f"buffer_load_dwordx4 {v(80+4*j,4)}, {v(vPB)}, {SWS}, s20 offen offset:{1024*j} sc1" for j in range(4)]
at(M - 1 - OPT["pl"], lambda: [VM(t_, "pld") for t_ in pl_ld])
segment(P3 if OPT["ovr"] else P4, M, lambda m: OPT["D3"], 8, p3bar)
assert not qC and not qB and anext[0] == len(aloads)
RT2 = jobs[10][0]; RED2 = slot_of[RT2] * 16384
I(f"v_add_u32 {v(vHR)}, {(RED2 - RED) & 0xffffffff}, {v(vHR)}")
reduce_pair(ACC3, ACC4, "bR2")
for r in range(16): I(f"v_add_f32 {v(ACC3+r)}, {v(ACC3+r)}, {v(BASE+r)}")
chkp = []
for j in range(4):
    b_ = 80 + 4*j
    chkp += [f"v_perm_b32 v65, v{b_+1}, v{b_}, s23", f"v_perm_b32 v66, v{b_+3}, v{b_+2}, s23", "v_perm_b32 v65, v66, v65, s53",
             "v_xor_b32 v64, v171, v65" if j == 0 else "v_xor_b32 v65, v171, v65"] + ([] if j == 0 else ["v_or_b32 v64, v64, v65"])
chkp.append("v_cmp_ne_u32 vcc, 0, v64")
E.wait(vm="pld")
for c_ in chkp: I(c_)
I("s_cbranch_vccnz L_slow_p"); E.label("L_back_p"); lstamp("kp")
slow.extend(["L_slow_p:", f"  s_sleep {OPT['slq']}"] + ["  " + t_ for t_ in pl_ld] + ["  s_waitcnt vmcnt(0)"] + ["  " + c_ for c_ in chkp] + spin_guard("L_back_p", -10) + ["  s_cbranch_vccnz L_slow_p", "  s_branch L_back_p"])
I("s_mov_b32 s16, 0xffffff00")
for r in range(16): I(f"v_and_b32 {v(80+r)}, s16, {v(80+r)}"); I(f"v_add_f32 {v(ACC3+r)}, {v(ACC3+r)}, {v(80 + r)}")
lstamp("last")
for r in range(16):
    if r % 4 == 0: E.wait(lg=f"rr{r>>2}")
    I(f"v_add_f32 {v(ACC3+r)}, {v(ACC3+r)}, {v(ACC4+r)}")
    if r % 2 == 0: I(f"s_mov_b32 {sT0}, {(r>>1)*4096}")
    VM(f"buffer_store_dword {v(ACC3+r)}, {v(vOUT)}, {SOUT}, {sT0} offen offset:{(r&1)*2048}" + (" sc1" if OPT["osc"] else ""), "out")
dump_stamps("C")
I("s_endpgm")

E = EH
E.label("L_helper")
vSo = [2, 3]; vGo = [4, 5, 6]; vCo = [8, 9, 10, 11]; vWo = [12, 13, 14, 15]; vHo = 16; vXEo = [17, 18]
vFLS, vFLP, vPOLL, vFLX = 19, 20, 21, 7
vLR, vCR, vL16, vL128, vL256, vPQ = 22, 24, 26, 28, 30, 32
vE, vE2, vP = 34, 36, 38
vEQA, vEST, vEF, vEX, vZA, vHSW, vHSR, vHSTo, vDA, vTAB = 40, 41, 42, 44, 46, 47, 48, 49, 50, 54
TR, TI, RT, TMP = 96, 112, 128, 144
vF16, vF256 = 56, 58
vQR, vQT, vQV, vQW = 160, 161, 162, 163
vDB = 164; vUP = 76
live = [items[f"X{i}"] for i in range(4, 8)]
known = {id(EC): 0, id(EH): 0}
def hplace(name):
    it = items[name]
    for o in list(live):
        if o.base < it.base + it.size and it.base < o.base + o.size:
            assert known[id(o.reader)] >= o.last_read, ("WAR", name, o.name)
            live.remove(o)
    live.append(it); return it
def adv11(s): I(f"s_add_u32 {s}, {s}, 1"); I(f"s_cmp_eq_u32 {s}, 11"); I(f"s_cselect_b32 {s}, 0, {s}")
cur_m0 = [None]
SOFF = {"G": "s16", "C": "s17", "W": "s18"}
def item_ops(name):
    k = name.rstrip("0123456789"); i = int(name[len(k):] or 0)
    so = SOFF.get(k)
    srd_, sm, voffs, pol = {"S": (SS, sM2, vSo, ""), "G": (SG, sM6, vGo, ""), "C": (SC, sM4, vCo, ""), "H": (SWS, sM4, [vHo]*4, " sc1"),
                            "W": (SWD, sM4, vWo, ""), "HG": (SWS, sM4, [vHo]*4, " sc1"), "XE": (SX, sM2, vXEo, "")}[k]
    prep = {"G": lambda: I(f"s_mul_i32 {so}, {sK[i]}, 1376"), "C": lambda: (q_h(so, i), I(f"s_lshl_b32 {so}, {so}, 7")),
            "W": lambda: w_soff(so, i, sSO)}.get(k, lambda: None)
    if so is None: so = "0" if k == "XE" else sK[i]
    ops = []
    for half in range(2 if k == "G" else 1):
        for q in range(len(voffs)):
            def op(half=half, q=q):
                if name in RT_:
                    if q == 0: prep()
                    VM(f"buffer_load_dwordx4 {v(RT_[name] + 4*q, 4)}, {v(voffs[q])}, {srd_}, {so} offen" + (f" offset:{q*1024}" if q else ""), name)
                    return
                if (half, q) == (0, 0): hplace(name)
                m0 = (sm, items[name].base + 3072 * half)
                if cur_m0[0] != m0: I(f"s_add_u32 m0, {sm}, {m0[1]}"); cur_m0[0] = m0
                if (half, q) == (0, 0): prep()
                if (half, q) == (1, 0): I(f"s_add_u32 {so}, {so}, {16*2752}")
                VM(f"buffer_load_dwordx4 {v(voffs[q])}, {srd_}, {so} offen" + (f" offset:{q*1024}" if q else "") + f"{pol} lds", name)
            ops.append(op)
    last = ops[-1]
    ops[-1] = lambda: (last(), done_issue.__setitem__(name, True))
    return ops
done_issue = {}
def issue(name, between=lambda: None):
    for op in item_ops(name): op(); between()
def unpark(name):
    hplace(name); E.wait(vm=name)
    I(f"v_add_u32 {v(vUP+1)}, {items[name].base}, {v(vUP)}")
    for q in range(4): DS(f"ds_write_b128 {v(vUP+1)}, {v(RT_[name] + 4*q, 4)} offset:{q*1024}", "up" + name)
def issue_mix(miss, *hits):
    mo = item_ops(miss); ho = [op for h in hits for op in item_ops(h)]
    for k, op in enumerate(mo):
        op()
        for h in ho[k * len(ho) // len(mo):(k + 1) * len(ho) // len(mo)]: h()
def flag_send(so): VM(f"buffer_store_dword v61, {v(vFLS)}, {SWS}, {so} offen sc1", "flag")
def poll_issue(so, tag): VM(f"buffer_load_dword {v(vPOLL)}, {v(vFLP)}, {SWS}, {so} offen sc1", tag)
def poll_check(so, tag, inc):
    E.wait(vm=tag)
    I(f"v_cmp_ne_u32 vcc, {v(vFLX)}, {v(vPOLL)}"); I(f"s_cbranch_vccnz L_slow_{tag}"); E.label(f"L_back_{tag}")
    slow.extend([f"L_slow_{tag}:", f"  s_sleep {OPT['slp']}", f"  buffer_load_dword {v(vPOLL)}, {v(vFLP)}, {SWS}, {so} offen sc1", "  s_waitcnt vmcnt(0)",
                 f"  v_cmp_ne_u32 vcc, {v(vFLX)}, {v(vPOLL)}"] + spin_guard(f"L_back_{tag}", inc) + [f"  s_cbranch_vccnz L_slow_{tag}", f"  s_branch L_back_{tag}"])
I(f"s_and_b32 {sT1}, {sW_}, 1"); I(f"s_lshl1_add_u32 {sT0}, {sG_}, {sT1}"); I(f"s_lshl_b32 {sT0}, {sT0}, 4")
I(f"v_add_lshl_u32 v84, v81, {sT0}, 10")
I(f"v_add_u32 {v(vSo[0])}, v84, v83"); I(f"v_add_u32 {v(vSo[1])}, v84, v85"); I(f"v_add_u32 {v(vSo[1])}, 7168, {v(vSo[1])}")
I(f"s_lshl_b32 {sM2}, {sW_}, 11")
E.wait_all(lg=True)
I(f"s_cmp_ge_u32 {sW_}, 2"); srd_sel(SS, 22, 24, 524288); srd_sel(SG, 36, 38, 1409024); srd_sel(SC, 26, 28, 524288)
issue("S0"); issue("S1"); E.barrier()
if OPT["prio"] == 2: I("s_setprio 1")
I(f"s_lshl2_add_u32 {sT0}, {sG_}, {sW_}"); I(f"s_lshl_b32 {sT0}, {sT0}, 3"); I(f"v_add_lshl_u32 v87, v82, {sT0}, 1")
VM("global_load_ushort v70, v87, s[30:31]", "par"); VM("global_load_ushort v71, v87, s[18:19]", "par"); VM("global_load_ushort v72, v87, s[20:21]", "par")
I(f"s_lshl1_add_u32 {sT0}, {sGL}, {sT1}"); I(f"s_lshl_b32 {sT0}, {sT0}, 5"); I(f"v_and_b32 v87, 31, {vLANE}"); I(f"v_add_lshl_u32 v87, v87, {sT0}, 1")
VM("global_load_ushort v7, v87, s[32:33]", "par")
srd(SDBG, 44, 256)
I(f"s_or_b32 {sT0}, s2, {sW_}"); I("s_cbranch_scc1 L_notag")
E.begin_cond()
I("s_or_b32 s13, s14, 1"); I("v_mov_b32 v93, s13"); I("v_mov_b32 v94, 0"); I("s_mov_b64 exec, 1")
VM(f"buffer_store_dword v93, v94, {SDBG}, 0 offen sc1"); I("s_mov_b64 exec, -1")
E.end_cond(); E.label("L_notag")
for i in range(2, 8): ktab(i)
srd(SX, 16, 2097152); srd(SWD, 40, 1409024); srd(SWS, 46, WS_SIZE)
def warm():
    if not OPT["tw"]: return
    srd(SOUT, 42, 4194304)
    I("v_mov_b32 v92, 0"); I(f"s_lshl2_add_u32 {sT0}, {sC_}, {sW_}"); I(f"s_mul_i32 {sT0}, {sT0}, {152*1024}")
    I(f"s_lshr_b32 {sT2}, {sG_}, 1"); I(f"s_lshl_b32 {sT2}, {sT2}, 13"); I(f"s_add_u32 {sT0}, {sT0}, {sT2}"); I(f"s_and_b32 {sT2}, {sG_}, 1"); I(f"s_lshl_b32 {sT2}, {sT2}, 11"); I(f"s_add_u32 {sT0}, {sT0}, {sT2}")
    I(f"s_mov_b32 {sT2}, {WS_EB + 0x30000}"); I(f"s_lshl_b32 {sT3}, {sC_}, 18")
    I("s_mov_b64 exec, 1")
    for sr, so in ((SG, "0"), (SC, "0"), (SWD, "0"), (SWS, sT0), (SWS, sT2), (SOUT, sT3)):
        VM(f"buffer_load_dword v95, v92, {sr}, {so} offen sc1", "tw")
    I("s_mov_b64 exec, -1")
def setup1():
    I(f"s_mov_b32 {sSPIN}, 0"); I("s_mov_b32 s15, 0"); I(f"s_mul_i32 {sM6}, {sW_}, 6144")
    I(f"s_mul_i32 {sT0}, {sT1}, {32*2752}"); I(f"s_mul_i32 {sT2}, {sG_}, 192"); I(f"s_add_u32 {sT0}, {sT0}, {sT2}")
    I(f"s_mul_i32 {sT2}, {sG_}, 3"); I(f"s_mov_b32 {sT3}, 2752"); I(f"v_mov_b32 v90, {OOB}")
    for i in range(3):
        I(f"v_add_u32 v88, {64*i}, {vLANE}"); I("v_mul_u32_u24 v86, 43691, v88"); I("v_lshrrev_b32 v86, 19, v86")
        I("v_mul_u32_u24 v87, 12, v86"); I("v_sub_u32 v87, v88, v87")
        I(f"v_mul_lo_u32 v86, v86, {sT3}"); I("v_lshl_add_u32 v86, v87, 4, v86"); I(f"v_add_u32 v86, {sT0}, v86")
        I("v_lshrrev_b32 v87, 2, v87"); I(f"v_add_u32 v87, {sT2}, v87"); I("v_cmp_gt_u32 vcc, 43, v87")
        if i: I(f"v_subrev_u32 v86, {1024*i}, v86")
        I(f"v_cndmask_b32 {v(vGo[i])}, v90, v86, vcc")
    I(f"s_lshl2_add_u32 {sT0}, {sGL}, {sT1}"); I(f"s_lshl_b32 {sT2}, {sG_}, 1"); I(f"s_sub_u32 {sT0}, {sT0}, {sT2}"); I(f"s_lshl_b32 {sT0}, {sT0}, 14")
    I(f"v_add_u32 {v(vCo[0])}, {sT0}, {v(vSo[0])}"); I(f"v_add_u32 {v(vCo[1])}, {sT0}, {v(vSo[1])}")
    I(f"v_add_u32 {v(vCo[2])}, {2*7168}, {v(vCo[0])}"); I(f"v_add_u32 {v(vCo[3])}, {2*7168}, {v(vCo[1])}")

def setup1b():
    I(f"s_and_b32 {sT1}, {sW_}, 1")
    I("v_lshlrev_b32 v86, 4, v82"); I("v_lshl_add_u32 v86, v81, 10, v86"); I(f"v_and_b32 v87, 16, {vLANE}"); I("v_lshlrev_b32 v87, 2, v87"); I("v_xor_b32 v87, v86, v87")
    I(f"s_lshl_b32 {sT3}, {sGL}, 7"); I(f"v_add_u32 {v(vWo[0])}, {sT3}, v87")
    for q in range(1, 4): I(f"v_add_u32 {v(vWo[q])}, {7168*q}, {v(vWo[0])}")
    I(f"s_lshl1_add_u32 s13, {sC_}, {sGH}"); I(f"s_lshl2_add_u32 {sT0}, s13, {sW_}"); I(f"s_lshl_b32 {sT0}, {sT0}, 14"); I(f"s_add_u32 {sT0}, {sT0}, {sT3}")
    I(f"v_add_u32 {v(vXEo[0])}, {sT0}, v86"); I(f"v_add_u32 {v(vXEo[1])}, 7168, {v(vXEo[0])}")
    I(f"s_lshr_b32 {sT2}, {sW_}, 1"); I(f"s_lshl1_add_u32 {sT0}, s13, {sT2}"); I(f"s_mul_i32 {sT0}, {sT0}, {152*1024}"); I(f"s_lshl_b32 {sT3}, {sT1}, 12"); I(f"s_add_u32 {sT0}, {sT0}, {sT3}")
    I(f"v_lshl_add_u32 {v(vHo)}, {vLANE}, 4, {sT0}")
    I(f"s_cmp_eq_u32 {sW_}, 0"); I(f"s_cselect_b32 {sT2}, 16, 0"); I(f"v_cmp_gt_u32 vcc, {sT2}, {vLANE}")
    I(f"s_lshl_b32 {sT0}, {sC_}, 11"); I(f"s_lshl2_add_u32 {sT3}, {sG_}, {sT0}"); I(f"v_lshl_add_u32 v86, {vLANE}, 7, {sT3}")
    I(f"v_cndmask_b32 {v(vFLS)}, v90, v86, vcc")
    I(f"s_lshl_b32 {sT3}, {sG_}, 7"); I(f"s_add_u32 {sT3}, {sT3}, {sT0}"); I(f"v_lshl_add_u32 v86, {vLANE}, 2, {sT3}")
    I(f"v_cndmask_b32 {v(vFLP)}, v90, v86, vcc"); I(f"v_cndmask_b32 {v(vFLX)}, 0, -1, vcc")
    I(f"s_mov_b32 s20, {WS_FH}"); I(f"s_mov_b32 s21, {WS_FG}")

def setup2():
    o = []
    A = o.append
    A(f"s_lshl_b32 {sT0}, {sW_}, 10"); A(f"s_add_u32 {sT0}, {sT0}, {EQ}"); A(f"v_lshl_add_u32 {v(vEQA)}, {vLANE}, 3, {sT0}")
    A("v_mov_b32 v88, 0"); A("v_mov_b32 v89, 0"); A(lambda: DS(f"ds_write_b64 {v(vEQA)}, v[88:89]", "eqz"))
    A(f"v_lshl_add_u32 {v(vZA)}, v82, 3, {sT0}")
    A(f"s_lshl_b32 {sT0}, {sW_}, 9"); A(f"v_lshlrev_b32 v86, 11, v81"); A("v_lshl_add_u32 v86, v82, 6, v86"); A("v_lshrrev_b32 v87, 1, v82")
    A("v_lshl_add_u32 v86, v87, 4, v86"); A(f"v_add_u32 {v(vDA)}, {sT0}, v86")
    for j in range(1, 4): A(f"v_xor_b32 {v(vDA+j)}, {16*j}, {v(vDA)}")
    for j in range(4): A(f"v_add_u32 {v(vDB+j)}, {DUMPS[1]}, {v(vDA+j)}")
    A(f"v_lshlrev_b32 {v(vTAB)}, 6, v81"); A(f"v_add_u32 {v(vTAB)}, {RTAB}, {v(vTAB)}")
    A(f"s_lshl_b32 {sT0}, {sG_}, 13"); A(f"s_lshl_b32 {sT2}, {sW_}, 7"); A(f"s_add_u32 {sT0}, {sT0}, {sT2}"); A(f"s_add_u32 {sT0}, {sT0}, {WS_EB}")
    A(f"v_lshl_add_u32 v86, v82, 4, {sT0}")
    A(f"s_lshl_b32 {sT2}, {sC_}, 9"); A(f"v_add_u32 {v(vEST)}, {sT2}, v86"); A(lambda: (I("v_cmp_eq_u32 vcc, 7, v81"), I(f"v_cndmask_b32 {v(vEST)}, v90, {v(vEST)}, vcc")))
    A(f"s_sub_u32 {sT2}, {sC_}, 16"); A(f"v_lshl_add_u32 v87, v81, 1, {sT2}")
    A(f"v_lshl_add_u32 {v(vEF)}, v87, 9, v86"); A(f"v_add_u32 {v(vEF+1)}, 512, {v(vEF)}")
    A(lambda: (I("v_cmp_le_i32 vcc, 0, v87"), I(f"v_cndmask_b32 {v(vEF)}, v90, {v(vEF)}, vcc"), I(f"v_cndmask_b32 {v(vEX)}, 0, -1, vcc")))
    A(lambda: (I("v_cmp_le_i32 vcc, -1, v87"), I(f"v_cndmask_b32 {v(vEF+1)}, v90, {v(vEF+1)}, vcc"), I(f"v_cndmask_b32 {v(vEX+1)}, 0, -1, vcc")))
    A(f"s_mul_i32 {sT0}, {sW_}, 2608"); A(f"s_add_u32 {sT0}, {sT0}, {HS}")
    A("v_mul_u32_u24 v86, 336, v82"); A("v_lshl_add_u32 v86, v81, 5, v86"); A(f"v_add_u32 {v(vHSW)}, {sT0}, v86")
    A(f"v_bfe_u32 v86, {vLANE}, 2, 2"); A("v_mul_u32_u24 v86, 336, v86"); A(f"v_and_b32 v87, 32, {vLANE}"); A("v_lshl_add_u32 v86, v87, 1, v86")
    A(f"v_and_b32 v87, 1, {vLANE}"); A("v_lshl_add_u32 v86, v87, 5, v86"); A(f"v_and_b32 v87, 16, {vLANE}"); A("v_add_u32 v86, v86, v87")
    A(f"v_and_b32 v87, 2, {vLANE}"); A("v_lshl_add_u32 v86, v87, 2, v86"); A(f"v_add_u32 {v(vHSR)}, {sT0}, v86")
    A(f"s_mul_i32 {sT0}, {sC_}, {4*152}"); A(f"s_lshr_b32 {sT2}, {sG_}, 1"); A(f"s_lshl3_add_u32 {sT0}, {sT2}, {sT0}"); A(f"s_and_b32 {sT2}, {sG_}, 1")
    A(f"s_lshl1_add_u32 {sT0}, {sT2}, {sT0}"); A(f"s_lshl_b32 {sT0}, {sT0}, 10"); A(f"s_lshl_b32 {sT2}, {sW_}, 9"); A(f"s_add_u32 {sT0}, {sT0}, {sT2}")
    A(f"v_lshrrev_b32 v86, 5, {vLANE}"); A(f"v_mul_u32_u24 v86, {152*1024}, v86"); A(f"v_and_b32 v87, 31, {vLANE}"); A("v_lshl_add_u32 v86, v87, 4, v86"); A(f"v_add_u32 {v(vHSTo)}, {sT0}, v86")
    LOG2E = "0x3fb8aa3b"
    A(lambda: E.wait(vm="par"))
    o += ["v_lshlrev_b32 v70, 16, v70", "v_lshlrev_b32 v71, 16, v71", "v_lshlrev_b32 v72, 16, v72",
          f"v_mul_f32 v70, {LOG2E}, v70", "v_exp_f32 v70, v70", "v_mul_f32 v74, v71, v71"] + bf16r_ops(70, 70)
    o += ["v_mul_f32 v75, v70, v71", "v_mul_f32 v76, v70, v72", f"v_mul_f32 v75, {LOG2E}, v75", "v_exp_f32 v75, v75",
          "v_mul_f32 v76, 0.15915494, v76", "v_rndne_f32 v77, v76", "v_sub_f32 v76, v76, v77", "v_cos_f32 v77, v76", "v_sin_f32 v78, v76",
          "v_fmac_f32 v74, v72, v72", f"v_mul_f32 {v(vLR)}, v75, v77", "v_mul_f32 v78, v75, v78", "v_rcp_f32 v74, v74",
          f"v_add_f32 v77, -1.0, {v(vLR)}", "v_add_f32 v74, v74, v74",
          f"v_mul_f32 {v(vCR)}, v77, v71", f"v_fmac_f32 {v(vCR)}, v78, v72", f"v_mul_f32 {v(vCR)}, {v(vCR)}, v74",
          f"v_mul_f32 {v(vCR+1)}, v77, v72", f"v_fma_f32 {v(vCR+1)}, -v78, v71, {v(vCR+1)}", f"v_mul_f32 {v(vCR+1)}, {v(vCR+1)}, v74",
          f"v_sub_f32 {v(vLR+1)}, 0, v78"]
    o += csq_ops(70, vLR, 78) + csq_ops(72, 70, 78) + csq_ops(70, 72, 78) + csq_ops(vL16, 70, 78)
    o += csq_ops(70, vL16, 78) + csq_ops(72, 70, 78) + csq_ops(vL128, 72, 78) + csq_ops(vL256, vL128, 78)
    o += [f"v_mov_b32 {v(vPQ)}, {v(vCR)}", f"v_mov_b32 {v(vPQ+1)}, {v(vCR+1)}"]
    for bit, L in ((8, vL16), (16, 70), (32, 72)):
        o += [f"v_and_b32 v74, {bit}, {vLANE}", lambda L=L: (I("v_cmp_ne_u32 vcc, 0, v74"), I(f"v_cndmask_b32 v76, 1.0, {v(L)}, vcc"), I(f"v_cndmask_b32 v77, 0, {v(L+1)}, vcc"))]
        o += cmul_ops(vPQ, vPQ, 76, 78)
    def factor(F, Ls):
        r = []
        for n, (bit, L) in enumerate(zip((8, 16, 32), Ls)):
            d = F if n == 0 else 76
            r += [f"v_and_b32 v74, {bit}, {vLANE}", lambda L=L, d=d: (I("v_cmp_eq_u32 vcc, 0, v74"), I(f"v_cndmask_b32 {v(d)}, 1.0, {v(L)}, vcc"), I(f"v_cndmask_b32 {v(d+1)}, 0, {v(L+1)}, vcc"))]
            if n: r += cmul_ops(F, F, 76, 78)
        return r
    o += factor(vF16, (vL16, 70, 72))
    o += csq_ops(70, vL256, 78) + csq_ops(72, 70, 78) + factor(vF256, (vL256, 70, 72))
    return o
def allsum(a_, b_, t):
    o = [f"v_add_f32_dpp {v(t)}, {v(a_)}, {v(a_)} row_ror:8 row_mask:0xf bank_mask:0xf", f"v_add_f32_dpp {v(t+1)}, {v(b_)}, {v(b_)} row_ror:8 row_mask:0xf bank_mask:0xf",
         f"v_mov_b32 {v(a_)}, {v(t)}", f"v_mov_b32 {v(b_)}, {v(t+1)}",
         f"v_permlane16_swap_b32 {v(a_)}, {v(t)}", f"v_permlane16_swap_b32 {v(b_)}, {v(t+1)}",
         f"v_add_f32 {v(a_)}, {v(a_)}, {v(t)}", f"v_add_f32 {v(b_)}, {v(b_)}, {v(t+1)}",
         f"v_mov_b32 {v(t)}, {v(a_)}", f"v_mov_b32 {v(t+1)}, {v(b_)}",
         f"v_permlane32_swap_b32 {v(a_)}, {v(t)}", f"v_permlane32_swap_b32 {v(b_)}, {v(t+1)}",
         f"v_add_f32 {v(a_)}, {v(a_)}, {v(t)}", f"v_add_f32 {v(b_)}, {v(b_)}, {v(t+1)}"]
    return o
def cmul4(d, x, y):
    return [f"v_mul_f32 {v(d[0])}, {v(x[0])}, {v(y)}", f"v_mul_f32 {v(d[1])}, {v(x[0])}, {v(y+1)}",
            f"v_fma_f32 {v(d[0])}, -{v(x[1])}, {v(y+1)}, {v(d[0])}", f"v_fmac_f32 {v(d[1])}, {v(x[1])}, {v(y)}"]
def ssm1():
    o = []
    def rdd(j, comp): DS(f"ds_read_b128 {v((TI if comp else TR) + 4*j, 4)}, {v(vDB+j)} offset:{DUMPS[comp] - DUMPS[1]}", f"dr{j}"); note_read(f"DUMP{comp}")
    for j in range(4):
        o += [lambda j=j: DS(f"ds_read_b128 {v(RT + 4*j, 4)}, {v(vTAB)} offset:{16*j}", f"dr{j}"), lambda j=j: rdd(j, 0), lambda j=j: rdd(j, 1)]
    cur, nx = (vE, vE + 1), (vE2, vE2 + 1)
    for r in range(16):
        if r % 4 == 0: o.append(lambda j=r >> 2: E.wait(lg=f"dr{j}"))
        o += [f"v_mul_f32 {v(TR+r)}, {v(TR+r)}, {v(RT+r)}", f"v_mul_f32_e64 {v(TI+r)}, -{v(TI+r)}, {v(RT+r)}"]
        if r == 0: src = (TR, TI)
        else:
            o += cfma_ops(nx, vLR, src, TR + r, TI + r); src = nx; cur, nx = nx, cur
    assert src == (vE2, vE2 + 1)
    o += cmul4((60, 62), src, vF16) + allsum(60, 62, 64)
    o.append(lambda: (VM(f"buffer_store_dwordx4 v[60:63], {v(vEST)}, {SWS}, 0 offen sc1", "est"), lstamp("epub")))
    return o
def window():
    o = [lambda: DS(f"ds_write_b64 {v(vEQA)}, {v(vE2,2)} offset:{7*64}", "eqw")]
    o += [lambda i=i: DS(f"ds_read_b64 {v(TMP+2*i,2)}, {v(vEQA)} offset:{64*i}", "eq") for i in range(7)]
    for r in range(16):
        o += [f"v_mul_f32 v72, {v(vCR+1)}, {v(TI+r)}", f"v_mul_f32 {v(TI+r)}, {v(vCR)}, {v(TI+r)}",
              f"v_fmac_f32 {v(TI+r)}, {v(vCR+1)}, {v(TR+r)}", f"v_fma_f32 {v(TR+r)}, {v(vCR)}, {v(TR+r)}, -v72"]
    o.append(lambda: E.wait(lg="eq"))
    src = (TMP, TMP + 1); pp = [(vE2, vE2 + 1), (vE, vE + 1)]
    for i in range(1, 7):
        d = pp[i & 1]; o += cfma_ops(d, vL16, src, TMP + 2*i, TMP + 2*i + 1); src = d
    return o + cmul4((vP, vP + 1), src, vCR)
def efetch_issue():
    VM(f"buffer_load_dwordx4 v[64:67], {v(vEF)}, {SWS}, 0 offen sc1", "ef"); VM(f"buffer_load_dwordx4 v[68:71], {v(vEF+1)}, {SWS}, 0 offen sc1", "ef")
def ssm3():
    chk = [f"v_xor_b32 v72, v65, {v(vEX)}", f"v_xor_b32 v73, v67, {v(vEX)}", f"v_xor_b32 v74, v69, {v(vEX+1)}", "v_or3_b32 v72, v72, v73, v74",
           f"v_xor_b32 v73, v71, {v(vEX+1)}", "v_or_b32 v72, v72, v73", "v_cmp_ne_u32 vcc, 0, v72"]
    def check():
        E.wait(vm="ef")
        for c in chk: I(c)
        I("s_cbranch_vccnz L_slow_e"); E.label("L_back_e"); lstamp("eok")
        slow.extend(["L_slow_e:", f"  s_sleep {OPT['slq']}", f"  buffer_load_dwordx4 v[64:67], {v(vEF)}, {SWS}, 0 offen sc1", f"  buffer_load_dwordx4 v[68:71], {v(vEF+1)}, {SWS}, 0 offen sc1",
                     "  s_waitcnt vmcnt(0)"] + ["  " + c for c in chk] + spin_guard("L_back_e", 0x100) + ["  s_cbranch_vccnz L_slow_e", "  s_branch L_back_e"])
    o = [check] + cfma_ops((vE, vE + 1), vL128, (64, 66), 68, 70)
    o += cmul4((vE2, vE2 + 1), (vE, vE + 1), vF256) + allsum(vE2, vE2 + 1, 72)
    src = (vE2, vE2 + 1)
    o += cfma_ops((vE, vE + 1), vPQ, src, vP, vP + 1)
    src = (vE, vE + 1)
    for r in range(16):
        d = (TR + r, TI + r); o += cfma_ops(d, vLR, src, d[0], d[1]); src = d
        if r & 1: o += [f"v_cvt_pk_bf16_f32 {v(TMP + (r>>1))}, {v(TR+r-1)}, {v(TR+r)}", f"v_cvt_pk_bf16_f32 {v(TMP + 8 + (r>>1))}, {v(TI+r-1)}, {v(TI+r)}"]
    for comp in range(2):
        o += [lambda j=j, comp=comp: DS(f"ds_write_b128 {v(vHSW)}, {v(TMP + 8*comp + 4*j, 4)} offset:{16*j}", "hsw") for j in range(2)]
        for i in range(2):
            for ph in range(2):
                def rd(i=i, ph=ph, comp=comp):
                    DS(f"ds_read_b64_tr_b16 {v(RT + 8*comp + 4*i + 2*ph, 2)}, {v(vHSR)} offset:{4*ph*336 + 128*i}", f"hr{comp}{i}"); note_read("HS")
                o.append(rd)
    for comp in range(2):
        for i in range(2):
            def st(i=i, comp=comp):
                I(f"s_mov_b32 {sT0}, {2*i*152*1024 + comp*4096}"); E.wait(lg=f"hr{comp}{i}")
                VM(f"buffer_store_dwordx4 {v(RT + 8*comp + 4*i, 4)}, {v(vHSTo)}, {SWS}, {sT0} offen sc1", "hst")
            o.append(st)
    o.append(lambda: lstamp("hst"))
    return o
work = []
def pop_work(n):
    while n > 0 and work: runall([work.pop(0)]); n -= 1
def between(n=8): return lambda: pop_work(n)
live.append(items["OFT"])
I(f"v_and_b32 {v(vQR)}, 3, {vLANE}"); I(f"v_lshlrev_b32 {v(vQR)}, 2, {v(vQR)}"); I(f"v_add_u32 {v(vQR)}, {PRG}, {v(vQR)}"); I(f"v_mov_b32 {v(vQV)}, 0")
I(f"s_lshl_b32 {sT0}, {sW_}, 2"); I(f"s_add_u32 {sT0}, {sT0}, {PRG}"); I(f"v_mov_b32 {v(vQW)}, {sT0}")
issue("S2"); issue("S3"); lstamp("b0")
def hchk(word, st):
    off = {"PC": 0, "PD": 32}[word]; val = PCV[st] if word == "PC" else st
    chk_spin(val, vQR, vQT, off)
    em, lg = signals[(word, val)]; known[id(em)] = max(known[id(em)], lg)
published = [0]
def pub(ch):
    assert PHV[ch] > published[0]
    E.wait(vm=[n for c in CHUNKS[published[0]:PHV[ch]] for n in chunk_items(c)]); signal("PH", PHV[ch], vQW, vQV, 16); published[0] = PHV[ch]
def auto_pub(lead):
    best = None
    for c in CHUNKS[published[0]:]:
        if all(n in E.vm and done_issue.get(n) and len(E.vm) - E.last(E.vm, n) >= lead for n in chunk_items(c)): best = c
        else: break
    if best: pub(best)
def s47():
    for n in ("S4", "S5", "S6", "S7"): issue(n)
if OPT["xi"] < 0: s47()
pub("S2")
setup1()
I(f"s_lshl_b32 {sT0}, {sW_}, 11"); I(f"s_add_u32 {sT0}, {sT0}, {HS}"); I(f"v_lshl_add_u32 v86, {vLANE}, 4, {sT0}")
E.wait(vm="par"); DS("ds_write_b128 v86, v[4:7]", "oft"); I("v_mov_b32 v92, v86"); E.wait(lg="oft")
if OPT["xi"] >= 0: hchk("PC", "Xi"); s47()
w2 = setup2(); runall(w2[:OPT["w2a"]])
hchk("PC", "X"); lstamp("xd")
I("v_mov_b32 v91, 0"); VM(f"buffer_load_dword {v(vPOLL)}, v91, {SDBG}, 0 offen sc1", "tag")
issue("G0"); pub("S6"); runall(w2[OPT["w2a"]:OPT["w2b"]]); issue("G1"); runall(w2[OPT["w2b"]:]); pub("G0"); hchk("PC", "S3"); issue("G2"); pub("G1"); issue("G3"); setup1b()
tag_check("H", vPOLL, 88)
runall([f"v_mov_b32 v61, {sNON}", f"v_mov_b32 v63, {sNON}", f"v_and_b32 {v(vEX)}, {sNON}, {v(vEX)}", f"v_and_b32 {v(vEX+1)}, {sNON}, {v(vEX+1)}", f"v_and_b32 {v(vFLX)}, {sNON}, {v(vFLX)}",
        f"v_lshl_add_u32 {v(vUP)}, {vLANE}, 4, {sM4}"])
known[id(EC)] = max(known[id(EC)], signals[("PC", PCV["S5"])][1]); hplace("DUMP0"); hplace("DUMP1")
DS("ds_write_b64 v92, v[8:9] offset:1024", "oft"); DS("ds_write_b32 v92, v12 offset:1032", "oft"); DS("ds_write_b32 v92, v61 offset:1036", "oft")
runall(q_setup()); issue("C0"); issue("W0")
if OPT["w1e"]: issue("W4")
I(f"s_setprio {OPT['pb']}")
hchk("PC", "dump"); lstamp("bD")
def pass2():
    t0 = OPT["bd"] + 2
    s1, wn, s3 = ssm1(), window(), ssm3()
    ins = []
    def spread(name, ta, tb, pre=None):
        holder = {}
        n = 6 if name[0] == "G" else 4
        for k in range(n):
            def f(k=k):
                if k == 0:
                    if pre: hchk(*pre)
                    holder["ops"] = item_ops(name)
                holder["ops"][k]()
            ins.append((ta + (tb - ta) * k / n, f))
    ins.append((OPT["pg2"], lambda: (E.wait(lg="dr3"), pub("G2")))); ins.append((48, lambda: pub("G3")))
    ins.sort(key=lambda x: x[0])
    t = [float(t0)]
    def cyc(): return E.nvec * OPT["vc"] / 10.0 + (E.count + E.nops - E.nvec) * 4.0
    def adv(c0): t[0] += (cyc() - c0) / 33.0
    def run(ops):
        for op in ops:
            while ins and ins[0][0] <= t[0]:
                c0 = cyc(); ins.pop(0)[1](); adv(c0)
            c0 = cyc(); runall([op]); adv(c0)
    def idle_until(tt):
        while ins and ins[0][0] <= tt: t[0] = max(t[0], ins[0][0]); ins.pop(0)[1]()
        t[0] = max(t[0], tt)
    run(s1); tpub = t[0]
    k = 0
    while k < len(wn) and t[0] < tpub + OPT["efd"]: run([wn[k]]); k += 1
    efetch_issue(); lstamp("ef"); tf = t[0]
    run(wn[k:]); hchk("PC", "G1"); hplace("HS")
    tc = t[0]
    I(f"s_setprio {OPT['pc']}"); run(s3); ts = t[0]; assert not ins
    E.wait(vm="hst"); signal("PD", 2, vQW, vQV, 32); hchk("PD", 2); flag_send("s20"); lstamp("hflag")
    if OPT.get("log"): print(f"helper est: epub {tpub:.0f} efetch {tf:.0f} check {tc:.0f} stores {ts:.0f}", file=sys.stderr)
pass2()
issue("XE")
if not OPT["w1e"]: issue("W4")
pub("KX")
for name, kn in cplaced:
    save = dict(known); known.update({id(EC): 0, id(EH): 0})
    for w_, val in kn:
        em, lg = signals[(w_, val)]; known[id(em)] = max(known[id(em)], lg)
    hplace(name); done_issue[name] = True; known.update(save)
I(f"s_setprio {OPT['pd']}")
if OPT["ep"]:
    hchk("PC", "U0"); poll_issue("s20", "ph"); poll_check("s20", "ph", 0x10000); lstamp("okh"); pub("K0")
hchk("PC", "T"); lstamp("gT")
if not OPT["ep"]: poll_issue("s20", "ph")
I(f"s_mov_b32 s19, {WS_FP}")
for n_ in ("W1", "W2", "W3")[3 - OPT["wl"]:]: issue(n_)
unpark("C0")
if not OPT["ep"]: poll_check("s20", "ph", 0x10000); lstamp("okh"); pub("K0")
hchk("PC", "gsa"); flag_send("s19")
unpark("W0"); unpark("W4")
if OPT["gs"] < 0: hchk("PC", "gst"); flag_send("s21")
for k, bn in enumerate(bar_names[1:]):
    if bn == "bP1": poll_check("s19", "pa", 0x1)
    if bn == "bP2": hchk("PC", "pj"); poll_issue("s21", "pg"); poll_check("s21", "pg", 0x1000000); lstamp("okg")
    E.wait(vm=["W5"] if bn == "bP3" else (["W3"] if OPT["wl"] else []), lg=["upW4"]); E.barrier()
    known[id(EC)] = max(known[id(EC)], EC.barriers[k + 1][1])
    if bn == "bP0" and OPT["gs"] >= 0: hchk("PC", "gst"); flag_send("s21")
    if bn == "bP0": poll_issue("s19", "pa")
    if bn == "bP1": issue("W5")
    if bn == "bP3": assert known[id(EC)] >= min(items["C2"].last_read, 10**9)
    if bn == "bP4": assert known[id(EC)] >= items[RT2].last_read
assert len(EH.barriers) == len(EC.barriers)
dump_stamps("H")
E.label("L_end"); I("s_endpgm")

hdr = open("cdna_kernels/" + NAME + ".s.ref").read().split("; Override launch geometry")[0]
out = hdr
if OPT["lst"]: out += "; cstamps: " + " ".join(lnames["C"]) + "\n; hstamps: " + " ".join(lnames["H"]) + f"\n; rt: {OPT['rt']}\n"
out += f"; @launch grid=(256,1,1) block=(512,1,1) lds={LDS_BYTES}\n"
out += f'.amdgcn_target "amdgcn-amd-amdhsa--gfx950"\n.text\n.globl {NAME}_kernel\n.p2align 8\n.type {NAME}_kernel,@function\n'
kc = next(k for k, l in enumerate(EC.lines) if "v_and_b32 v90, 31" in l)
out += E0.text() + "\n".join(EC.lines[:kc]) + "\n  s_branch L_cmain\n" + EH.text() + "L_cmain:\n" + "\n".join(EC.lines[kc:]) + "\n" + "\n".join(slow) + "\n"
out += f"L_pad:\n.fill (37120 - (L_pad - {NAME}_kernel)) / 4, 4, 0xbf810000\n"
out += f""".section .rodata,"a"
.p2align 6
.amdhsa_kernel {NAME}_kernel
  .amdhsa_next_free_vgpr 256
  .amdhsa_next_free_sgpr 102
  .amdhsa_accum_offset 256
  .amdhsa_group_segment_fixed_size 0
  .amdhsa_kernarg_size 128
  .amdhsa_user_sgpr_count 2
  .amdhsa_user_sgpr_kernarg_segment_ptr 1
  .amdhsa_system_sgpr_workgroup_id_x 1
.end_amdhsa_kernel
"""
open(sys.argv[1], "w").write(out)
print(f"compute {EC.count}+{EC.nops} helper {EH.count}+{EH.nops} barriers {len(bar_names)}: {' '.join(bar_names)}", file=sys.stderr)
```

```python
import sys
from emit import Emitter
NAME = "parallel_sum__ssm_conv_s5__glu_gated_bilinear__prompt"
OPT = dict(lst=0, rt=1, D=4, D2=7, D3=6, NU=2, gfd=40, prio=1, bd=15, ipc=85, slp=2, slq=0, wl=2, ovr=0, cp=0, dsp=3, efn=90, rot=8, lead=12, ge=0, gf=1, gg=5, gp=2, mw=0, ar=1, nr=8, bk=12, c34=1, f0=0, f2=1, pw=0, pd=2, nwt=0, a0=6, al=16, nb=60, gs=2, tw=0, osc=1, d64=0, w2a=20, w2b=110, pb=0, c1=117, c45=1, u0s=158, xi=-1, pc=2, map=0, xj=1, nd=2, skw=2, gj=7, pjd=16, ea=0, pl=14, w1e=0, xw=1, ct=1, stg=0, x3=0, wr=4, pg2=21, ep=0, vc=85, efd=35, ecd=20)
for a_ in sys.argv[2:]:
    k_, v_ = a_.split("="); OPT[k_] = int(v_)

WS_EB = 0xA00000; WS_FH = 0xA40000; WS_FG = 0xA48000; WS_ST = 0xC00000; WS_FP = 0xA50000; WS_PB = 0x1000000; WS_SIZE = 0x1800000
U8 = 8192; MISC = 18 * U8
RTAB = MISC; EQ = MISC + 1024; HS = MISC + 5120; XE = MISC + 5120
DUMP = 0
PRG = MISC + 15872
LDS_BYTES = 163840
OOB = 0x80000000
sW_, sC_, sG_, sGL, sGH, sJ0 = "s3", "s4", "s5", "s6", "s7", "s8"
sT0, sT1, sT2, sT3 = "s9", "s10", "s11", "s12"
SX, SS, SG, SC, SWD, SWS, SOUT, SDBG = ("s[48:51]", "s[52:55]", "s[56:59]", "s[60:63]", "s[64:67]", "s[68:71]", "s[72:75]", "s[76:79]")
sK = [f"s{80+i}" for i in range(8)]
sM4, sM2, sM6 = "s88", "s89", "s94"
sQW, sQHG, sSO = "s95", "s96", "s100"
sNON, sC10, sC01, sC11 = "s90", "s91", "s92", "s93"
sSPIN = "s97"; sSP2 = "s99"; sCL = "s101"
sCW = "s98"; WMUL = {4: 3, 2: 6, 1: 0}[OPT["wr"]]
sRA = "s52"
def q_setup(): return [f"s_add_u32 {sQW}, {sGL}, {sCL}"]
def q_h(so, i): I(f"s_add_u32 {so}, {sQW}, {i}"); I(f"s_and_b32 {so}, {so}, 3"); I(f"s_lshl2_add_u32 {so}, {sGH}, {so}")
def q_u(so, i):
    if i < 4: q_h(so, i); I(f"s_cmp_eq_u32 {so}, 7"); I(f"s_cselect_b32 {so}, 11, {so}")
    else: I(f"s_add_u32 {so}, {sQW}, {i}"); I(f"s_and_b32 {so}, {so}, 1"); I(f"s_lshl1_add_u32 {so}, {sGH}, {so}"); I(f"s_add_u32 {so}, {so}, 7")
def w_soff(so, i, tmp):
    q_u(tmp, i); I(f"s_lshl2_add_u32 {tmp}, {tmp}, {sW_}"); I(f"s_mul_i32 {so}, {tmp}, 3")
    I(f"s_cmp_ge_u32 {tmp}, 15"); I(f"s_cselect_b32 {sRA}, 44, 0"); I(f"s_cmp_ge_u32 {tmp}, 30"); I(f"s_cselect_b32 {sRA}, 88, {sRA}")
    I(f"s_sub_u32 {so}, {so}, {sRA}"); I(f"s_lshl_b32 {so}, {so}, 15")
vLANE = "v1"
MF = "v_mfma_f32_32x32x16_bf16"
def v(n, k=1): return f"v{n}" if k == 1 else f"v[{n}:{n+k-1}]"

EC, EH, E0 = Emitter(), Emitter(), Emitter()
E = E0
def I(t): return E.I(t)
def VM(t, tag=None): return E.VM(t, tag)
def DS(t, tag=None): return E.DS(t, tag)
slow = []
lnames = {"C": [], "H": []}
def lstamp(name):
    who = "C" if E is EC else "H"
    if OPT["lst"] and name in LSET[who] and len(lnames[who]) < 12:
        k = 24 + 2 * len(lnames[who]); lnames[who].append(name); I(f"{'s_memrealtime' if OPT['rt'] else 's_memtime'} s[{k}:{k+1}]")
LSETS = {0: ([], []),
         1: (["X6", "X7", "S0", "G0", "G4", "T", "J0", "J4", "snd", "kp", "last", "end"], ["b0", "xd", "bD", "epub", "ef", "eok", "hst", "hflag", "okh", "gT", "okg", "end"]),
         2: (["S0", "S2", "S4", "S6", "G0", "G1", "G2", "G3", "G4", "G5", "G6", "T"], ["b0", "xd", "bD", "epub", "ef", "eok", "hst", "hflag", "okh", "gT", "okg", "end"]),
         3: (["T", "K0", "J0", "J2", "J4", "J7", "snd", "J10", "J13", "kp", "last", "end"], ["b0", "xd", "bD", "epub", "ef", "eok", "hst", "hflag", "okh", "gT", "okg", "end"])}
LSETS[9] = ([], LSETS[1][1])
LSET = dict(zip("CH", LSETS[OPT["lst"]]))
def runall(ops):
    for op in ops:
        if isinstance(op, str): I(op)
        else: op()
def csq_ops(d, x, t):
    return [f"v_mul_f32 {v(t)}, {v(x+1)}, {v(x+1)}", f"v_add_f32 {v(t+1)}, {v(x)}, {v(x)}", f"v_fma_f32 {v(d)}, {v(x)}, {v(x)}, -{v(t)}", f"v_mul_f32 {v(d+1)}, {v(t+1)}, {v(x+1)}"]
def cmul_ops(d, x, y, t):
    return [f"v_mul_f32 {v(t)}, {v(x)}, {v(y)}", f"v_mul_f32 {v(t+1)}, {v(x)}, {v(y+1)}",
            f"v_fma_f32 {v(t)}, -{v(x+1)}, {v(y+1)}, {v(t)}", f"v_fma_f32 {v(d+1)}, {v(x+1)}, {v(y)}, {v(t+1)}", f"v_mov_b32 {v(d)}, {v(t)}"]
def cfma_ops(d, L, x, br, bi):
    return [f"v_fma_f32 {v(d[0])}, {v(L)}, {v(x[0])}, {v(br)}", f"v_fma_f32 {v(d[1])}, {v(L)}, {v(x[1])}, {v(bi)}",
            f"v_fma_f32 {v(d[0])}, -{v(L+1)}, {v(x[1])}, {v(d[0])}", f"v_fma_f32 {v(d[1])}, {v(L+1)}, {v(x[0])}, {v(d[1])}"]
def bf16r_ops(d, s): return [f"v_cvt_pk_bf16_f32 {v(d)}, {v(s)}, {v(s)}", f"v_and_b32 {v(d)}, 0xffff0000, {v(d)}"]
def srd(dst, lo, size):
    n = int(dst[2:dst.index(":")])
    I(f"s_mov_b64 s[{n}:{n+1}], s[{lo}:{lo+1}]"); I(f"s_mov_b32 s{n+2}, {size}"); I(f"s_mov_b32 s{n+3}, 0x20000")
def srd_sel(dst, p0, p1, size):
    n = int(dst[2:dst.index(":")])
    I(f"s_cselect_b64 s[{n}:{n+1}], s[{p1}:{p1+1}], s[{p0}:{p0+1}]"); I(f"s_mov_b32 s{n+2}, {size}"); I(f"s_mov_b32 s{n+3}, 0x20000")
def ktab(i):
    I(f"s_add_u32 {sK[i]}, {sJ0}, {i}"); I(f"s_and_b32 {sK[i]}, {sK[i]}, 7"); I(f"s_lshl_b32 {sK[i]}, {sK[i]}, 7")
def spin_guard(lbl_back, inc):
    return ([f"  s_add_u32 s15, s15, {inc}" if inc >= 0 else f"  s_bitset1_b32 s15, {-inc}"] if OPT["lst"] else []) + [f"  s_add_u32 {sSPIN}, {sSPIN}, 1", f"  s_cmp_gt_u32 {sSPIN}, 0x200000", f"  s_cbranch_scc1 {lbl_back}"]
def tag_check(who, vp, vz):
    E.wait(vm="tag"); I(f"v_readfirstlane_b32 {sNON}, {v(vp)}"); I(f"s_cmp_eq_u32 {sNON}, 0"); I(f"s_cbranch_scc1 L_slow_tag{who}"); E.label(f"L_back_tag{who}")
    slow.extend([f"L_slow_tag{who}:", "  s_sleep 1", f"  v_mov_b32 {v(vz)}, 0", f"  buffer_load_dword {v(vp)}, {v(vz)}, {SDBG}, 0 offen sc1", "  s_waitcnt vmcnt(0)",
                 f"  v_readfirstlane_b32 {sNON}, {v(vp)}"] + spin_guard(f"L_back_tag{who}", 1) +
                [f"  s_cmp_eq_u32 {sNON}, 0", f"  s_cbranch_scc1 L_slow_tag{who}", f"  s_branch L_back_tag{who}"])
signals = {}
def signal(word, val, va, vt, off):
    signals[(word, val)] = (E, E.lg_done)
    I(f"v_mov_b32 {v(vt)}, {val}"); DS(f"ds_write_b32 {v(va)}, {v(vt)} offset:{off}", "sig")
nchk = [0]
def chk_issue(va, vt, off):
    nchk[0] += 1; DS(f"ds_read_b32 {v(vt)}, {v(va)} offset:{off}", f"chk{nchk[0]}"); return f"chk{nchk[0]}"
def chk_test(tag, val, va, vt, off, inc):
    E.wait(lg=tag)
    I(f"v_cmp_gt_u32 vcc, {val}, {v(vt)}"); I(f"s_cbranch_vccnz L_slow_{tag}"); E.label(f"L_back_{tag}")
    slow.extend([f"L_slow_{tag}:", f"  ds_read_b32 {v(vt)}, {v(va)} offset:{off}", "  s_waitcnt lgkmcnt(0)", f"  v_cmp_gt_u32 vcc, {val}, {v(vt)}"]
                + spin_guard(f"L_back_{tag}", inc) + [f"  s_cbranch_vccnz L_slow_{tag}", f"  s_branch L_back_{tag}"])
def chk_spin(val, va, vt, off):
    nchk[0] += 1; lbl = f"L_spin{nchk[0]}"
    E.label(lbl)
    DS(f"ds_read_b32 {v(vt)}, {v(va)} offset:{off}", lbl); I(f"s_sub_u32 {sSP2}, {sSP2}, 1"); I("s_cbranch_scc1 L_end")
    E.wait_all(lg=True)
    I(f"v_cmp_gt_u32 vcc, {val}, {v(vt)}"); I(f"s_cbranch_vccnz {lbl}")
def dump_stamps(who):
    if not OPT["lst"]: return
    E.wait_all(vm=True); lstamp("end"); E.wait_all(lg=True)
    n = len(lnames[who])
    for k in range(n): I(f"v_writelane_b32 v2, s{24+2*k}, {k}")
    I(f"v_writelane_b32 v2, {n}, 61"); I("v_writelane_b32 v2, s15, 60"); I("v_writelane_b32 v2, s14, 63")
    I(f"s_lshl3_add_u32 {sT0}, s2, {sW_}"); I(f"s_add_u32 {sT0}, {sT0}, {4 if who == 'H' else 0}"); I(f"s_lshl_b32 {sT0}, {sT0}, 8"); I(f"s_add_u32 {sT0}, {sT0}, {WS_ST}")
    I(f"v_lshlrev_b32 v3, 2, {vLANE}")
    VM(f"buffer_store_dword v2, v3, {SWS}, {sT0} offen")

NU = OPT["NU"]; assert NU == 2

BASE_OF = {}
for i in range(8): BASE_OF[f"X{i}"] = (2 * (i & 3) * U8, 16384)
for i, u in enumerate(range(8, 16)): BASE_OF[f"S{i}"] = (u * U8, 8192)
for i, u in enumerate([0, 3, 6, 9, 0, 3, 12, 15]): BASE_OF[f"G{i}"] = (u * U8, 24576)
DUMPS = [16 * U8, 12 * U8]
BASE_OF["DUMP0"] = (DUMPS[0], 16384); BASE_OF["DUMP1"] = (DUMPS[1], 16384); BASE_OF["XE"] = (XE, 8192); BASE_OF["HS"] = (HS, 10432); BASE_OF["OFT"] = (HS, 8192)
slot_of = {"C1": 3, "C2": 4, "C3": 5, "W1": 0, "W2": 1, "W3": 2, "C0": 6, "W0": 7, "W4": 8, "W5": 3}
RT_ = {"C0": 168, "W0": 184, "W4": 200}
ND = OPT["nd"]
CO = ["C1", "C2", "C3", "C0"]; WO = ["W1", "W2", "W3", "W0", "W4", "W5"]
SK = [["W1"], ["W1", "W4"], []][OPT["skw"]]
jobs = [(t, "sk") for t in CO[:4-ND]] + [(t, "s") for t in CO[4-ND:]] + [(t, "sk" if t in SK else "s") for t in WO] + [(t, "k") for t in WO if t not in SK] + [(t, "k") for t in CO[4-ND:]]
NJ1 = 10
def chunk_items(ch):
    i = ch[1:]
    if ch[0] == "S": return [f"S{i}", f"S{int(i)+1}"]
    return {"K": ["XE"] if ch == "KX" else [], "G": [f"G{i}"]}[ch[0]]
RED = slot_of["C2"] * 16384; assert ND <= 2
CHUNKS = ["S0", "S2", "S4", "S6"] + [f"G{i}" for i in range(4)] + ["KX", "K0", "Kp"]
PHV = {c: k + 1 for k, c in enumerate(CHUNKS)}
CEV = {"G0": 25, "G1": 49, "G2": 74, "G3": 99, "G4": 122, "G5": 145, "U0": OPT["u0s"]}
STAGES = ["Xi", "X", "S3", "S5", "dump"] + sorted(CEV, key=CEV.get) + ["T", "gsa", "gst", "pj"]
PCV = {c: k + 1 for k, c in enumerate(STAGES)}
for n, s in slot_of.items(): BASE_OF[n] = (s * 16384, 16384)

class Item: pass
items = {}
for n, (b, sz) in BASE_OF.items():
    it = Item(); it.name, it.base, it.size = n, b, sz; it.first_bar = None; it.last_read = None; it.reader = None; items[n] = it
bar_names = []
def note_read(name):
    it = items[name]
    if it.first_bar is None: it.first_bar = len(E.barriers)
    it.last_read = len(E.lg); it.last_bar = len(E.barriers); it.reader = E

E = E0
E.label(f"{NAME}_kernel")
I("s_cmp_ge_u32 s2, 256"); I("s_cbranch_scc1 L_end")
I("s_load_dwordx16 s[16:31], s[0:1], 0")
I("s_getpc_b64 s[98:99]"); I(f"s_bfe_u32 {sT0}, s2, 0x20003"); I("v_lshrrev_b32 v80, 3, v0"); I(f"v_lshl_add_u32 v80, v80, 2, {sT0}"); I("v_lshlrev_b32 v80, 7, v80")
VM("global_load_dword v95, v80, s[98:99]", "code")
I("s_load_dwordx16 s[32:47], s[0:1], 64")
I("s_memrealtime s[14:15]")
I("v_lshrrev_b32 v80, 6, v0"); I(f"v_and_b32 {vLANE}, 63, v0"); I(f"v_readfirstlane_b32 {sT3}, v80")
sR8 = "s19" if False else None
if OPT["map"] == 0:
    I(f"s_bfe_u32 {sT0}, s2, 0x20001"); I(f"s_lshr_b32 {sCL}, s2, 6"); I(f"s_lshl2_add_u32 {sC_}, {sT0}, {sCL}")
    I(f"s_bfe_u32 {sGL}, s2, 0x30003"); I(f"s_lshl1_add_u32 {sJ0}, {sCL}, {sGL}")
    I(f"s_and_b32 {sGH}, s2, 1"); I(f"s_lshl3_add_u32 {sG_}, {sGH}, {sGL}"); I(f"s_mov_b32 {sQW}, {sGL}")
    if OPT["xj"]: I(f"s_add_u32 {sJ0}, {sJ0}, {sT0}")
else:
    I(f"s_and_b32 {sT0}, s2, 1"); I(f"s_lshr_b32 {sQW}, s2, 5"); I(f"s_lshl3_add_u32 {sC_}, {sT0}, {sQW}")
    I(f"s_bfe_u32 {sCL}, s2, 0x20003"); I(f"s_bfe_u32 {sT0}, s2, 0x20001"); I(f"s_lshl2_add_u32 {sG_}, {sT0}, {sCL}")
    I(f"s_and_b32 {sGL}, {sG_}, 7"); I(f"s_lshr_b32 {sGH}, {sG_}, 3"); I(f"s_lshl1_add_u32 {sJ0}, {sCL}, {sQW}")
for i in range(2): ktab(i)
I(f"s_and_b32 {sW_}, {sT3}, 3"); I(f"s_lshl_b32 {sM4}, {sW_}, 12")
I(f"v_lshrrev_b32 v81, 3, {vLANE}"); I(f"v_and_b32 v82, 7, {vLANE}")
I("v_lshrrev_b32 v84, 1, v81"); I("v_xor_b32 v83, v82, v84"); I("v_lshlrev_b32 v83, 4, v83"); I("v_xor_b32 v85, 64, v83")
I(f"v_lshlrev_b32 v78, 2, {vLANE}"); I("v_mov_b32 v79, 0"); I(f"v_add_u32 v78, {PRG}, v78"); DS("ds_write_b32 v78, v79", "prz")
I(f"s_mov_b32 {sSP2}, 0x1000000"); I(f"s_and_b32 {sCW}, {sCL}, {3 if OPT['wr'] == 4 else 1}")
I(f"s_cmp_ge_u32 {sT3}, 4"); I("s_cbranch_scc1 L_helper")

E = EC
vP1 = [2, 3, 4, 5]; vGT = 6; vNM = 7; vR2 = 0
FB0, NFB = 8, 6
ACCG = [32, 64, 96]; ACCU = [48, 80, 112]; ACC_R, ACC_I = 96, 112
XF = 128
vXo = [86, 87, 88, 89]
def cbar(name, vm=(), lg=()):
    E.wait(vm=vm, lg=lg); E.barrier(); bar_names.append(name)
I("v_and_b32 v84, 4, v81"); I("v_and_b32 v80, 3, v81"); I("v_lshl_add_u32 v84, v84, 2, v80")
I(f"s_lshl2_add_u32 {sT0}, {sC_}, {sW_}"); I(f"s_lshl_b32 {sT0}, {sT0}, 5")
I(f"v_add_lshl_u32 v84, v84, {sT0}, 10")
I(f"v_add_u32 {v(vXo[0])}, v84, v83"); I(f"v_add_u32 {v(vXo[1])}, v84, v85")
I(f"v_add_u32 {v(vXo[2])}, 6144, {v(vXo[0])}"); I(f"v_add_u32 {v(vXo[3])}, 9216, {v(vXo[1])}"); I(f"v_add_u32 {v(vXo[1])}, 3072, {v(vXo[1])}")
I("s_mov_b32 s50, 2097152"); I("s_mov_b32 s51, 0x20000")
E.wait_all(lg=True)
I("s_mov_b64 s[48:49], s[16:17]")
def X_issue(i):
    I(f"s_add_u32 m0, {sM4}, {items[f'X{i}'].base}")
    for q in range(4): VM(f"buffer_load_dwordx4 {v(vXo[q])}, {SX}, {sK[i]} offen" + (f" offset:{q*1024}" if q else "") + " lds", f"X{i}")
X_issue(0); X_issue(1)
if OPT["prio"] == 1: I("s_setprio 1")
for i in range(2, 8): ktab(i)
X_issue(2)
if OPT["x3"]: X_issue(3)
cbar("b0")
I(f"v_and_b32 v90, 31, {vLANE}"); I(f"v_lshrrev_b32 v91, 5, {vLANE}")
I("v_bfe_u32 v92, v90, 1, 3"); I("v_xor_b32 v92, v92, v91"); I("v_lshlrev_b32 v92, 4, v92"); I("v_lshl_add_u32 v92, v90, 7, v92")
I(f"v_add_u32 {v(vP1[0])}, {sM4}, v92")
for s in range(1, 4): I(f"v_xor_b32 {v(vP1[s])}, {32*s}, {v(vP1[0])}")
I(f"s_mov_b32 {sC11}, 0x3f803f80"); I(f"s_mov_b32 {sC10}, 0x00003f80"); I(f"s_mov_b32 {sC01}, 0x3f800000")
for r in range(64, 72): I(f"v_mov_b32 v{r}, 0")
srd(SWS, 46, WS_SIZE); srd(SOUT, 42, 4194304)
I(f"s_cmp_ge_u32 {sW_}, 2"); srd_sel(SG, 36, 38, 1409024); srd_sel(SC, 26, 28, 524288); I(f"s_mul_i32 {sM6}, {sW_}, 6144"); srd(SWD, 40, 1409024)
I(f"s_mov_b32 {sSPIN}, 0"); I("s_mov_b32 s15, 0"); I("s_mov_b64 s[22:23], s[32:33]"); I("s_mov_b64 s[20:21], s[40:41]")
I(f"v_bfe_u32 v92, {vLANE}, 2, 2"); I("v_lshl_add_u32 v92, v91, 3, v92"); I(f"v_mul_u32_u24 {v(vGT)}, 192, v92")
I(f"v_and_b32 v93, 16, {vLANE}"); I(f"v_lshl_add_u32 {v(vGT)}, v93, 1, {v(vGT)}")
I(f"v_and_b32 v93, 1, {vLANE}"); I(f"v_lshl_add_u32 {v(vGT)}, v93, 4, {v(vGT)}")
I(f"v_and_b32 v93, 2, {vLANE}"); I(f"v_lshl_add_u32 {v(vGT)}, v93, 2, {v(vGT)}")
I(f"s_lshl_b32 {sT0}, {sW_}, 7"); I(f"s_add_u32 {sT0}, {sT0}, {RTAB}")
I("v_bfe_u32 v93, v90, 2, 1"); I("v_lshlrev_b32 v94, 4, v93"); I("v_lshrrev_b32 v93, 3, v90"); I("v_lshl_add_u32 v94, v93, 2, v94")
I("v_and_b32 v93, 3, v90"); I("v_add_u32 v94, v94, v93"); I(f"v_lshl_add_u32 v94, v94, 2, {sT0}")
FR = dict(r=72, t=73, v=74, w=75)
I(f"v_and_b32 v72, 3, {vLANE}"); I("v_lshlrev_b32 v72, 2, v72"); I(f"v_add_u32 v72, {PRG}, v72")
I(f"s_lshl_b32 {sT0}, {sW_}, 2"); I(f"s_add_u32 {sT0}, {sT0}, {PRG}"); I(f"v_mov_b32 v75, {sT0}")
def csig(st): signal("PC", PCV[st], FR["w"], FR["v"], 0)
for i in range(8):
    it = items[f"X{i}"]
    E.wait(vm=it.name)
    for s in range(4):
        DS(f"ds_read_b128 {v(XF + 16*i + 4*s, 4)}, {v(vP1[s])} offset:{it.base & 0xffff}", f"xr{i}_{s}"); note_read(it.name)
    if not OPT["x3"] and i + 3 < 8: X_issue(i + 3)
    if OPT["x3"] and i + 4 < 8: E.wait(lg=f"xr{i}_3"); X_issue(i + 4)
    if i == OPT["xi"]: csig("Xi")
    if i == 4 and OPT["mw"]:
        I(f"s_cmp_eq_u32 {sW_}, 1"); I("s_cselect_b64 s[52:53], s[38:39], s[36:37]"); I(f"s_cmp_eq_u32 {sW_}, 2"); I("s_cselect_b64 s[52:53], s[40:41], s[52:53]")
        I(f"s_cmp_eq_u32 {sW_}, 3"); I("s_cselect_b64 s[52:53], s[26:27], s[52:53]"); I("s_mov_b32 s54, 1409024"); I("s_cselect_b32 s54, 524288, s54"); I("s_mov_b32 s55, 0x20000")
        I(f"s_cselect_b32 {sT0}, 16, 43"); I(f"s_mul_i32 {sT1}, s2, {sT0}"); I(f"s_sub_u32 {sT0}, {sT0}, 1"); I(f"v_min_u32 v76, {sT0}, {vLANE}"); I(f"v_add_lshl_u32 v76, v76, {sT1}, 7")
        VM("buffer_load_dword v77, v76, s[52:55], 0 offen", "mw")
        I("s_mov_b64 s[52:53], s[28:29]"); I(f"s_cmp_eq_u32 {sW_}, 3"); I("s_cselect_b32 s54, 524288, 0")
        VM("buffer_load_dword v77, v76, s[52:55], 0 offen", "mw")
    for s in range(4):
        E.wait(lg=f"xr{i}_{s}")
        for d in range(4):
            x = v(XF + 16*i + 4*s + d)
            I(f"v_dot2c_f32_bf16 v{64+d}, {sC11}, {x}"); I(f"v_dot2c_f32_bf16 v{68+d}, {x}, {x}")
    lstamp(f"X{i}")
csig("X"); gchk = {"S0": chk_issue(FR["r"], FR["t"], 16)}
I("v_add_f32 v64, v64, v65"); I("v_add_f32 v66, v66, v67"); I("v_add_f32 v68, v68, v69")
I("v_add_f32 v64, v64, v66"); I("v_add_f32 v70, v70, v71"); I("v_mov_b32 v65, v64"); I("v_add_f32 v68, v68, v70"); I("v_mov_b32 v69, v68")
I("v_permlane32_swap_b32 v64, v65"); I("v_permlane32_swap_b32 v68, v69")
I("v_add_f32 v64, v64, v65"); I("v_mul_f32 v64, 0x3b000000, v64")
runall(bf16r_ops(65, 64)); I(f"v_sub_f32 {v(vNM)}, 0, v65")
I(f"s_sub_u32 {sT0}, 65536, {sM4}")
for s in range(4): I(f"v_add_u32 {v(vP1[s])}, {sT0}, {v(vP1[s])}")
win = {"p1": 65536, "c1": 0, "gt": 0, "lin": 0, "wt": 0}
def burst(i):
    for d in range(16):
        x = v(XF + 16*i + d)
        I(f"v_dot2_f32_bf16 v{32+2*d}, {x}, {sC10}, {v(vNM)}"); I(f"v_dot2_f32_bf16 v{33+2*d}, {x}, {sC01}, {v(vNM)}")
qC, qB = [], []
marks = set()
def run_op(op):
    if isinstance(op, tuple):
        if op[0] == "hold": holdq[0] = op[1]
        else: marks.add(op[1])
    elif isinstance(op, str): I(op)
    else: op()
def need_mark(m):
    while m not in marks:
        q = next(q for q in (qC, qB) if ("mark", m) in [o for o in q if isinstance(o, tuple)])
        run_op(q.pop(0))
def cvt_ops(i):
    ops = []
    for d in range(16):
        ops.append(f"v_cvt_pk_bf16_f32 {v(XF + 16*i + d)}, v{32+2*d}, v{33+2*d}")
        if d & 3 == 3: ops.append(("mark", f"cen{4*i + (d>>2)}"))
    return ops
B = ["v_add_f32 v68, v68, v69", "v_mul_f32 v68, 0x3b000000, v68", "v_fma_f32 v68, -v64, v64, v68", "v_max_f32 v68, 0, v68"]
B += bf16r_ops(68, 68) + ["v_add_f32 v68, 0x3727c5ac, v68"] + bf16r_ops(68, 68) + ["v_sqrt_f32 v68, v68", lambda: DS("ds_write_b32 v94, v65 offset:512", "tabw")]
B += bf16r_ops(68, 68) + ["v_rcp_f32 v68, v68", lambda: DS("ds_write_b32 v94, v68", "tabw"), f"v_mul_f32 {v(vR2)}, v68, v68", ("mark", "tab")]
qB.extend(B)

class Slot: pass
slots = []
def add_slot(chunk, reads, mfma, needs=()):
    s = Slot(); s.chunk, s.reads, s.mfma, s.needs = chunk, reads, mfma, needs; slots.append(s)
for i in range(8):
    for s in range(4):
        f = 4*i + s
        for comp in range(2):
            acc = v(ACC_I if comp else ACC_R, 16)
            add_slot(f"S{i}", [("p1", f"S{i}", s, comp * 4096)], lambda b, f=f, acc=acc: f"{MF} {acc}, {v(XF+4*f,4)}, {v(b[0],4)}, {acc if f else 0}", needs=[f"cen{f}"])
P2 = len(slots)
order = [(0, s, u, m) for s in range(4) for u in range(2) for m in range(2)] + [(0, s, 2, m) for s in range(4) for m in range(2)]
order += [(i, s, u, m) for i in range(1, 8 - NU) for s in range(4) for u in range(3) for m in range(2)]
order += [(i, s, u, m) for u in range(3) for i in range(8 - NU, 8) for s in range(4) for m in range(2)]
unit_done = {}
for (i, s, u, m) in order:
    f = 4*i + s; acc = v((ACCU if m else ACCG)[u], 16)
    nd = (["tab"] if f == 0 else []) + (["dumped"] if (f, u) == (0, 2) else [])
    add_slot(f"G{i}", [("gt", f"G{i}", m * 12288 + 16*s*192 + 64*u)], lambda b, f=f, acc=acc: f"{MF} {acc}, {v(b[0],4)}, {v(XF+4*f,4)}, {acc if f else 0}", needs=nd)
    unit_done[u] = len(slots) - 1
P3 = len(slots)
ACC3 = 32; BASE = 48
vHST = 138; vDSK = 140; vHR, vWT, vXR, vTAB3, vOUT = 128, 129, 130, 131, 132
sHG = ["s16", "s17", "s18"]
EPO = 144; vC1 = [134, 135, 136, 137]; vC2 = [2, 3, 4, 5]
cGo = [128, 129, 130]; cCo = [132, 133, 134, 135]
ACC4 = 48; ACCS = [64, 80]
AQ = list(range(172, 256, 4)) + list(range(108, 128, 4))
BASE = 144; PX = 108
P3BUFS = list(range(8, 32, 4)) + [96, 100, 104]
vA = 139; vWT2 = 133; vA2 = 7; vPB = 0
aloads = []; started = set()
for n, (t, hv) in enumerate(jobs):
    if n == NJ1: P4 = len(slots)
    for s in range(4):
        idx = {}
        for h_ in hv: idx[h_] = len(aloads); aloads.append((f"a{len(aloads)}", AQ[len(aloads) % len(AQ)], t, s, h_, s == 0 and h_ == hv[0]))
        for a_ in range(2):
            rd = ("c1", t, s, a_) if t[0] == "C" else ("wt", t, 16*s*128, a_)
            for k_, h_ in enumerate(hv):
                r_ = ([ACC3, ACC4] if h_ == "k" else ACCS)[a_]; acc = v(r_, 16)
                z = r_ not in started; started.add(r_)
                tag, q = aloads[idx[h_]][:2]
                add_slot(f"J{n}", [rd] if k_ == 0 else [], lambda b, q=q, acc=acc, z=z: f"{MF} {acc}, {v(q,4)}, {v(b[0],4)}, {0 if z else acc}")
                slots[-1].atag = tag; slots[-1].arel = idx[h_] + 1 if a_ == 1 else None
M = len(slots)
first_slot = {}
for m, s in enumerate(slots): first_slot.setdefault(s.chunk, m)
pool = [FB0 + 4*k for k in range(NFB)]
def newfb(): return pool.pop(0)
def set_win(kind, regs, base, span):
    cur = win[kind]
    if not (cur <= base and base + span <= cur + 65536):
        new = min((base // 49152) * 49152, MISC - 65536)
        if not (new <= base and base + span <= new + 65536): new = base
        for r in regs: I(f"v_add_u32 {v(r)}, {(new - cur) & 0xffffffff}, {v(r)}")
        win[kind] = cur = new
    return cur
def emit_reads(m):
    s = slots[m]; s.bufs = []; s.tags = []; s.own = bool(s.reads)
    if not s.reads: s.bufs = slots[m-1].bufs
    for rd in s.reads:
        b = newfb(); s.bufs.append(b); tag = f"rd{m}_{rd[0]}"; s.tags.append(tag)
        kind, it = rd[0], items[rd[1]]
        if kind == "p1":
            w = set_win(kind, vP1, it.base, it.size); DS(f"ds_read_b128 {v(b,4)}, {v(vP1[rd[2]])} offset:{it.base - w + rd[3]}", tag)
        elif kind == "c1":
            w = set_win(kind, vC1 + vC2, it.base, it.size); DS(f"ds_read_b128 {v(b,4)}, {v((vC2 if rd[3] else vC1)[rd[2]])} offset:{it.base - w}", tag)
        else:
            regs, pitch = ([vGT], 192) if kind == "gt" else ([vWT, vWT2], 128)
            reg = regs[rd[3]] if kind == "wt" else vGT
            w = set_win(kind, regs, it.base, it.size)
            DS(f"ds_read_b64_tr_b16 {v(b,2)}, {v(reg)} offset:{it.base - w + rd[2]}", tag)
            DS(f"ds_read_b64_tr_b16 {v(b+2,2)}, {v(reg)} offset:{it.base - w + rd[2] + 4*pitch}", tag)
        note_read(it.name)
events = {}
def at(m, fn): events.setdefault(m, []).append(fn)
post = {8*i + 7: (lambda i=i: (need_mark(f"cen{4*i+7}"), burst(i + 2), qC.extend(cvt_ops(i + 2)))) for i in range(6)}
at(52, lambda: qB.extend([f"v_lshlrev_b32 {v(vNM)}, 6, {vLANE}", f"v_bfe_u32 v64, {vLANE}, 1, 2", f"v_lshl_add_u32 {v(vNM)}, v64, 4, {v(vNM)}",
                          f"v_add_u32 {v(vNM)}, {sM4}, {v(vNM)}", f"v_add_u32 {v(vNM)}, {DUMPS[1]}, {v(vNM)}", ("mark", "dadr")]))
dtag = {}
at(P2 - 1, lambda: dtag.__setitem__(0, chk_issue(FR["r"], FR["t"], 0)))
def dump_op(j, comp):
    need_mark("dadr")
    if (j, comp) == (0, 1): chk_test(dtag[0], PCV["S5"], FR["r"], FR["t"], 0, -12)
    if j and comp == 0: I(f"v_xor_b32 {v(vNM)}, {16 * (j ^ (j - 1))}, {v(vNM)}")
    DS(f"ds_write_b128 {v(vNM)}, {v((ACC_I if comp else ACC_R) + 4*j, 4)} offset:{DUMPS[comp] - DUMPS[1]}", "dump")
    if (j, comp) == (3, 1): marks.add("dumped")
def dump64(j, comp, hf):
    need_mark("dadr")
    if j and comp == 0 and hf == 0: I(f"v_xor_b32 {v(vNM)}, {16 * (j ^ (j - 1))}, {v(vNM)}")
    if comp == 0 and hf == 0: I(f"v_add_u32 {v(vP1[1])}, {DUMPS[0]}, {v(vNM)}")
    DS(f"ds_write_b64 {v(vNM if comp else vP1[1])}, {v((ACC_I if comp else ACC_R) + 4*j + 2*hf, 2)} offset:{8*hf}", "dump")
    if (j, comp, hf) == (3, 1, 1): marks.add("dumped")
if OPT["d64"]:
    for k in range(16): at(P2 + (k * 15) // 16, lambda k=k: dump64(k >> 2, (k >> 1) & 1, k & 1))
else:
    for k in range(8): at(P2 + 1 + (k * OPT["dsp"]) // 2, lambda k=k: dump_op(k >> 1, k & 1))
def fr_move():
    I(f"v_mov_b32 {v(vP1[0])}, v72"); I(f"v_mov_b32 {v(vP1[3])}, v75"); FR.update(r=vP1[0], t=vP1[1], v=vP1[2], w=vP1[3])
at(P2 - 2, fr_move)
if OPT["mw"]: at(P2 - 3, lambda: E.wait(vm="mw"))
at(31, lambda: csig("S3")); at(47, lambda: csig("S5"))
at(P2 + OPT["bd"], lambda: (need_mark("dumped"), E.wait(lg=["dump", "tabw"]), csig("dump")))
LAND = {"G2": ["G4"], "G3": ["G5", "G6"], "G4": ["G7"]}
for st, sl in CEV.items(): at(P2 + sl, lambda st=st: (E.wait(vm=LAND.get(st, []), lg=["cof2"] if st == "G1" else []), csig(st)))
GATE = {c: (16, PHV[c]) for c in CHUNKS[:8]}
GATE["S0"] = (16, PHV["S2"]); GATE["S4"] = (16, PHV["S6"])
GATE.update({"G4": (0, PCV["G2"]), "G5": (0, PCV["G3"]), "G6": (0, PCV["G4"])})
del GATE["S2"], GATE["S6"]
for c in list(GATE)[1:]: at(first_slot[c] - OPT["D"] - 6, lambda c=c: gchk.__setitem__(c, chk_issue(FR["r"], FR["t"], GATE[c][0])))
cplaced = []
cWo = [168, 169, 170, 171]
def c_offsets():
    I(f"s_lshl_b32 {sT0}, {sW_}, 11"); I(f"s_add_u32 {sT0}, {sT0}, {HS}"); I(f"v_lshl_add_u32 v136, {vLANE}, 4, {sT0}")
    DS("ds_read_b128 v[128:131], v136", "cof"); note_read("OFT")
at(P2 + 24, c_offsets)
at(P2 + 45, lambda: (DS("ds_read_b128 v[132:135], v136 offset:1024", "cof2"), note_read("OFT")))
at(P2 + 76, lambda: qB.extend([lambda: E.wait(lg="cof2"), f"v_readfirstlane_b32 {sNON}, v135", "v_mov_b32 v168, v134"] + [f"v_add_u32 v{168+q}, {7168*q}, v134" for q in range(1, 4)]
                              + ["v_add_u32 v134, 14336, v132", "v_add_u32 v135, 14336, v133"] + q_setup() + [("mark", "cw")]))
def c_load(name, ta, step2, gate=None):
    k = name[0]; i = int(name[1:]); base = items[name].base
    tag = {}
    if gate:
        off, val = (0, PCV[gate]) if gate in PCV else (32, gate)
        at(P2 + ta - 6, lambda: tag.__setitem__(0, chk_issue(FR["r"], 137, off)))
    n = 6 if k == "G" else 4
    for q in range(n):
        def op(q=q):
            if q == 0:
                E.wait(lg="cof")
                if gate: chk_test(tag[0], val, FR["r"], 137, off, -(13 + len(cplaced))); cknown.append(("PC" if off == 0 else "PD", val))
                cplaced.append((name, list(cknown)))
            if k == "G":
                if q % 3 == 0:
                    I(f"s_add_u32 m0, {sM6}, {base + 1024*q}")
                    I(f"s_mul_i32 {sSO}, {sK[i]}, 1376" if q == 0 else f"s_add_u32 {sSO}, {sSO}, {16*2752}")
                VM(f"buffer_load_dwordx4 {v(cGo[q%3])}, {SG}, {sSO} offen" + (f" offset:{(q%3)*1024}" if q % 3 else "") + " lds", name)
            else:
                if q == 0:
                    need_mark("cw"); I(f"s_add_u32 m0, {sM4}, {base}")
                    if k == "C": q_h(sSO, i); I(f"s_lshl_b32 {sSO}, {sSO}, 7")
                    else: w_soff(sSO, i, "s19")
                VM(f"buffer_load_dwordx4 {v((cCo if k == 'C' else cWo)[q])}, {SC if k == 'C' else SWD}, {sSO} offen" + (f" offset:{q*1024}" if q else "") + " lds", name)
        at(P2 + ta + (q * step2) // 2, op)
cknown = []
c_load("G4", 37, 5, "G0"); c_load("G6", 52, 4); c_load("G5", 64, 4, "G1"); c_load("G7", 77, 5); c_load("C1", 93, 4)
c_load("C2", OPT["c1"], 4); c_load("C3", OPT["c1"] + 8, 4);
if OPT["wl"] < 3: c_load("W1", 141, 4)
if OPT["wl"] < 2: c_load("W2", 156, 3, "G5"); c_load("W3", 162, 3)
def st_addr():
    o = [f"s_lshl2_add_u32 {sT0}, {sC_}, {sW_}", f"s_mul_i32 {sT0}, {sT0}, {152*1024}", f"v_lshl_add_u32 {v(vHST)}, {vLANE}, 4, {sT0}", f"s_lshl_b32 {sT0}, {sG_}, 11"]
    for uu in range(3):
        o += [f"s_add_u32 {sT3}, {sT0}, {65536 + 15*uu*2048}",
              lambda uu=uu: (I(f"s_cmp_lt_u32 {sG_}, {14 if uu == 2 else 15}"), I(f"s_cselect_b32 {sHG[uu]}, {sT3}, 0x40000000"))]
    o += [f"s_and_b32 {sT1}, {sW_}, 1", f"s_lshr_b32 {sT2}, {sW_}, 1", f"s_lshl1_add_u32 {sT0}, {sC_}, {sGH}", f"s_lshl1_add_u32 {sT0}, {sT0}, {sT2}",
          f"s_mul_i32 {sT0}, {sT0}, {152*1024}", f"s_lshl_b32 {sT3}, {sT1}, 12", f"s_add_u32 {sT0}, {sT0}, {sT3}", f"v_lshl_add_u32 {v(vA)}, {vLANE}, 4, {sT0}",
          f"v_lshlrev_b32 {v(vDSK)}, 16, v131",
          f"s_mul_i32 {sT0}, {sGH}, {4*152*1024}", f"s_sub_u32 {sT0}, {2*152*1024}, {sT0}", f"v_add_u32 {v(vA2)}, {sT0}, {v(vA)}", ("mark", "sta1")]
    return o
def st_addr2():
    o = [f"s_and_b32 {sT1}, {sW_}, 1", f"s_lshr_b32 {sT2}, {sW_}, 1", f"v_lshrrev_b32 v141, 5, {vLANE}", f"v_and_b32 v143, 31, {vLANE}"]
    o += [f"s_lshl1_add_u32 {sT3}, {sGL}, {sT1}"]
    o += [f"s_lshl_b32 {sT3}, {sT3}, 7", f"s_lshl1_add_u32 {sT0}, {sGH}, {sT2}", f"s_lshl2_add_u32 s13, {sC_}, {sT0}", "s_lshl_b32 s13, s13, 16", f"s_add_u32 s13, s13, {sT3}",
          "v_lshlrev_b32 v142, 15, v141", "v_lshl_add_u32 v142, v143, 2, v142", f"v_add_u32 {v(vOUT)}, s13, v142"]
    o += [f"s_lshl_b32 {sT0}, {sT0}, 7", f"s_add_u32 {sT0}, {sT0}, {RTAB}", f"v_lshl_add_u32 {v(vTAB3)}, v141, 6, {sT0}",
          f"s_lshl_b32 {sT0}, {sT1}, 6", f"s_lshl_b32 {sT3}, {sT2}, 12", f"s_add_u32 {sT3}, {sT3}, {sT0}", f"s_add_u32 {sT3}, {sT3}, {XE}",
          "v_lshlrev_b32 v142, 11, v141", "v_lshl_add_u32 v142, v143, 1, v142", f"v_add_u32 {v(vXR)}, {sT3}, v142",
          f"s_lshl_b32 {sT3}, {sW_}, 12", f"s_add_u32 {sT3}, {sT3}, {RED}", f"v_lshl_add_u32 {v(vHR)}, {vLANE}, 4, {sT3}"]
    o += [f"v_bfe_u32 v142, {vLANE}, 2, 2", "v_lshl_add_u32 v142, v141, 3, v142", "v_lshlrev_b32 v142, 7, v142",
          f"v_and_b32 v6, 16, {vLANE}", "v_lshl_add_u32 v142, v6, 1, v142", f"v_and_b32 v6, 3, {vLANE}", "v_lshl_add_u32 v142, v6, 3, v142",
          f"v_and_b32 v6, 8, {vLANE}", "v_lshlrev_b32 v6, 3, v6", f"v_xor_b32 v6, {sT0}, v6", f"s_lshl_b32 {sT3}, {sT1}, 13", f"v_add3_u32 {v(vWT)}, v142, v6, {sT3}", f"v_xor_b32 {v(vWT2)}, 64, {v(vWT)}"]
    o += [f"s_mul_i32 {sT0}, {sT1}, 12288", "v_bfe_u32 v142, v143, 1, 3", "v_xor_b32 v142, v142, v141", "v_lshlrev_b32 v142, 4, v142", "v_lshl_add_u32 v142, v143, 7, v142",
          f"v_add_u32 {v(vC1[0])}, {sT0}, v142"] + [f"v_xor_b32 {v(vC1[s])}, {32*s}, {v(vC1[0])}" for s in range(1, 4)] + [f"v_xor_b32 {v(vC2[s])}, 4096, {v(vC1[s])}" for s in range(4)] + [("mark", "sta")]
    return o
at(P2 + 120, lambda: qB.extend(st_addr()))
def glu_epi(u):
    ops = []; o = EPO + 8*u
    for j in range(8):
        g0, u0 = ACCG[u] + 2*j, ACCU[u] + 2*j
        ops += [f"v_mul_f32 {v(u0)}, {v(vR2)}, {v(u0)}", f"v_mul_f32 {v(u0+1)}, {v(vR2)}, {v(u0+1)}",
                f"v_mul_f32 {v(u0)}, {v(g0)}, {v(u0)}", f"v_mul_f32 {v(u0+1)}, {v(g0+1)}, {v(u0+1)}", f"v_cvt_pk_bf16_f32 {v(o+j)}, {v(u0)}, {v(u0+1)}"]
        if j & 3 == 3:
            ops.append(lambda fr=j >> 2: VM(f"buffer_store_dwordx4 {v(o + 4*fr, 4)}, {v(vHST)}, {SWS}, {sHG[u]} offen offset:{fr*1024} sc1", "gst" if u == 2 else "gsa"))
    return ops + [("mark", f"epi{u}")]
for u in range(2): at(unit_done[u] + 3, lambda u=u: qB.extend(glu_epi(u)))
def base_ops():
    ops = [f"v_mov_b32 {v(BASE+r)}, 0" for r in range(16)]
    def rdx(r): DS(f"ds_read_u16_d16_hi {v(BASE+r)}, {v(vXR)} offset:{128*r}", f"xe{r}"); note_read("XE")
    ops += [lambda r=r: rdx(r) for r in range(16)]
    R3, M3, t0, t1, p = 160, 164, 168, 169, 170
    rnd = [f"v_cvt_pk_bf16_f32 {v(p)}, {v(t0)}, {v(t1)}", f"v_lshlrev_b32 {v(t0)}, 16, {v(p)}", f"v_and_b32 {v(t1)}, 0xffff0000, {v(p)}"]
    for j in range(4):
        ops += [lambda j=j: DS(f"ds_read_b128 {v(R3,4)}, {v(vTAB3)} offset:{16*j}", f"r3{j}"), lambda j=j: DS(f"ds_read_b128 {v(M3,4)}, {v(vTAB3)} offset:{512+16*j}", f"m3{j}"),
                ("hold", 3), lambda j=j: E.wait(lg=f"m3{j}")]
        for e in (0, 2):
            r = 4*j + e
            ops += [f"v_sub_f32 {v(t0)}, {v(BASE+r)}, {v(M3+e)}", f"v_sub_f32 {v(t1)}, {v(BASE+r+1)}, {v(M3+1+e)}"] + rnd
            ops += [f"v_mul_f32 {v(t0)}, {v(t0)}, {v(R3+e)}", f"v_mul_f32 {v(t1)}, {v(t1)}, {v(R3+1+e)}"] + rnd
            ops += [f"v_mul_f32 {v(t0)}, {v(t0)}, {v(vDSK)}", f"v_mul_f32 {v(t1)}, {v(t1)}, {v(vDSK)}"] + rnd
            ops += [f"v_add_f32 {v(BASE+r)}, {v(BASE+r)}, {v(t0)}", f"v_add_f32 {v(BASE+r+1)}, {v(BASE+r+1)}, {v(t1)}"]
    return ops + [("mark", "base")]
holdq = [0]

def segment(lo, hi, Dof, lim, pre_bar):
    rn = lo; held = []
    for m in range(lo - 1, hi):
        c0 = E.count + E.nops
        if m >= lo:
            s = slots[m]
            for n in s.needs: need_mark(n)
            tags = list(s.tags)
            if m % 2 == 0 and m + 1 < hi: tags += slots[m+1].tags
            E.wait(vm=[s.atag] if m >= P3 else [], lg=tags)
            I(s.mfma(s.bufs)); c0 = E.count + E.nops
            if s.own: pool.extend(held); held = list(s.bufs)
            if m >= P3:
                if s.arel: adone[0] = max(adone[0], s.arel)
                a_issue(OPT["ar"])
            if first_slot[s.chunk] == m and m < P3: lstamp(s.chunk)
            if OPT["lst"] == 9 and m >= P2 + OPT["l0"] and (m - P2 - OPT["l0"]) % OPT["ld"] == 0: LSET["C"].append(f"m{m-P2}"); lstamp(f"m{m-P2}")
            for fn in events.get(m, []): fn()
        nr = 0
        while rn < hi and rn <= m + Dof(m) and len(pool) >= len(slots[rn].reads) and (nr < 2 or m < lo):
            ch = slots[rn].chunk
            if first_slot[ch] == rn:
                if pre_bar: pre_bar(ch)
                if ch in GATE:
                    chk_test(gchk[ch], GATE[ch][1], FR["r"], FR["t"], GATE[ch][0], -(list(GATE).index(ch) + 1))
                    cknown.append(("PC" if GATE[ch][0] == 0 else "PH", GATE[ch][1]))
            emit_reads(rn); rn += 1; nr += 1
        assert rn >= min(hi, m + 3), (m, rn)
        if m >= lo:
            n = 0
            while qC and (n < 3 or isinstance(qC[0], tuple)): run_op(qC.pop(0)); n += 1
            if holdq[0]: holdq[0] -= 1
            while qB and not holdq[0] and (E.count + E.nops - c0 < lim - (m & 1) or isinstance(qB[0], tuple)): run_op(qB.pop(0))
            if m in post: post[m]()
    pool.extend(held)
retired = set()
def D2(m): return OPT["D"]
anext = [0]; aok = {"C": False, "W": False, "L": False}; adone = [0]
def a_issue(n):
    while n > 0 and anext[0] < len(aloads):
        tag, q, t, s_, h_, first = aloads[anext[0]]
        if not aok["L" if t in ("W4", "W5") else t[0]] or anext[0] - adone[0] >= min(len(AQ), OPT["al"]): return
        if first:
            i = int(t[1:])
            if t[0] == "C": q_h(sSO, i); I(f"s_lshl_b32 {sSO}, {sSO}, 13")
            else:
                q_u(sSO, i); I(f"s_cmp_eq_u32 {sSO}, 11"); I(f"s_cselect_b32 {sSO}, 0x20000, {sSO}"); I(f"s_lshl_b32 {sSO}, {sSO}, 13"); I(f"s_add_u32 {sSO}, {sSO}, 65536")
        VM(f"buffer_load_dwordx4 {v(q,4)}, {v(vA if h_ == 'k' else vA2)}, {SWS}, {sSO} offen" + (f" offset:{s_*1024}" if s_ else "") + " sc1", tag)
        anext[0] += 1; n -= 1
if OPT["ea"]:
    etag = {}
    at(P2 + OPT["ea"] - 6, lambda: etag.__setitem__(0, chk_issue(FR["r"], FR["t"], 16)))
    at(P2 + OPT["ea"], lambda: (need_mark("sta1"), chk_test(etag[0], PHV["K0"], FR["r"], FR["t"], 16, -11), aok.__setitem__("C", True)))
    for m_ in range(OPT["ea"], 192): at(P2 + m_, lambda: a_issue(1) if anext[0] < 12 else None)
burst(0); runall([o for o in cvt_ops(0) if isinstance(o, str)]); marks.update(f"cen{k}" for k in range(4)); burst(1); qC.extend(cvt_ops(1))
segment(0, P3, D2, 6, None)
PBAR = {"J0": "P0", "J2": "P1", f"J{OPT['gj']}": "P2", "J8": "P3", "J12": "P4"}
def p3bar(ch):
    if ch in PBAR:
        cbar("b" + PBAR[ch], vm=[{0: "W3", 2: "W1", 3: "C3"}[OPT["wl"]]])
        if PBAR[ch] == "P1": aok["W"] = True
        if PBAR[ch] == "P2": aok["L"] = True
    lstamp(ch)
lstamp("T"); csig("T")
need_mark("epi1")
qB.extend(glu_epi(2)); need_mark("epi2")
pool[:] = P3BUFS
sa = st_addr2()
I(f"v_mov_b32 v106, {v(FR['r'])}"); I(f"v_mov_b32 v107, {v(FR['w'])}"); FR.update(r=106, w=107, t=104, v=105); P3BUFS.pop(); pool[:] = P3BUFS
for op in sa: run_op(op)
if OPT["ep"]:
    if not OPT["ea"]: chk_spin(PHV["K0"], FR["r"], FR["t"], 16); aok["C"] = True; a_issue(OPT["a0"])
    E.wait(vm="gsa"); csig("gsa"); a_issue(12)
else:
    E.wait(vm="gsa"); csig("gsa")
    chk_spin(PHV["K0"], FR["r"], FR["t"], 16); aok["C"] = True; a_issue(12)
lstamp("K0")
qB.extend([f"s_lshl4_add_u32 {sT0}, {sC_}, {sG_}", f"s_lshl2_add_u32 {sT0}, {sT0}, {sW_}", f"s_lshl_b32 {sT0}, {sT0}, 12", f"s_add_u32 s20, {sT0}, {WS_PB}", f"s_xor_b32 s21, s20, {8 << 14}",
           "s_mov_b32 s16, 0x07060500", "s_mov_b32 s17, 0x07060501", "s_mov_b32 s18, 0x07060502", "s_mov_b32 s22, 0x07060503", "s_mov_b32 s23, 0x0c0c0400", "s_mov_b32 s53, 0x05040100", f"v_lshlrev_b32 {v(vPB)}, 4, {vLANE}"] + base_ops())
if OPT["gs"] < 0: E.wait(vm="gst"); csig("gst")
else: at(P3 + OPT["gs"], lambda: (E.wait(vm="gst"), csig("gst")))
at(first_slot[f"J{OPT['gj']}"] - OPT["D3"] - OPT["pjd"], lambda: csig("pj"))
def reduce_pair(own, other, bar):
    for j in range(4): DS(f"ds_write_b128 {v(vHR)}, {v(other+4*j,4)} offset:{1024*j}", "red" + bar)
    I(f"v_xor_b32 {v(FR['t'])}, 4096, {v(vHR)}")
    cbar(bar, lg=["red" + bar])
    for j in range(4): DS(f"ds_read_b128 {v(other+4*j,4)}, {v(FR['t'])} offset:{1024*j}", f"rr{j}")
if OPT["ovr"]:
    at(P4, lambda: (lstamp("snd"), need_mark("base")))
    for j in range(4): at(P4 + 1 + j // 2, lambda j=j: DS(f"ds_write_b128 {v(vHR)}, {v(ACCS[1]+4*j,4)} offset:{1024*j}", "redbR1"))
    def r1_mid():
        I(f"v_xor_b32 v170, 4096, {v(vHR)}"); I(f"v_mov_b32 v171, {sNON}")
        cbar("bR1", lg=["redbR1"])
        for j in range(4): DS(f"ds_read_b128 {v(ACCS[1]+4*j,4)}, v170 offset:{1024*j}", f"rq{j}")
    def r1_fin(j):
        E.wait(lg=f"rq{j}")
        for e in range(4): I(f"v_add_f32 {v(ACCS[0]+4*j+e)}, {v(ACCS[0]+4*j+e)}, {v(ACCS[1]+4*j+e)}")
        for e in range(4): I(f"v_perm_b32 {v(ACCS[0]+4*j+e)}, {v(ACCS[0]+4*j+e)}, v171, {['s16', 's17', 's18', 's22'][e]}")
        VM(f"buffer_store_dwordx4 {v(ACCS[0]+4*j,4)}, {v(vPB)}, {SWS}, s21 offen offset:{1024*j} sc1", "pst")
    at(P4 + 5, r1_mid)
    for j in range(4): at(P4 + 7 + j, lambda j=j: r1_fin(j))
else:
    segment(P3, P4, lambda m: OPT["D3"], 8, p3bar)
    lstamp("snd")
    need_mark("base")
    reduce_pair(ACCS[0], ACCS[1], "bR1")
    I(f"v_mov_b32 v171, {sNON}")
    for j in range(4):
        E.wait(lg=f"rr{j}")
        for e in range(4): I(f"v_add_f32 {v(ACCS[0]+4*j+e)}, {v(ACCS[0]+4*j+e)}, {v(ACCS[1]+4*j+e)}")
        for e in range(4): I(f"v_perm_b32 {v(ACCS[0]+4*j+e)}, {v(ACCS[0]+4*j+e)}, v171, {['s16', 's17', 's18', 's22'][e]}")
        VM(f"buffer_store_dwordx4 {v(ACCS[0]+4*j,4)}, {v(vPB)}, {SWS}, s21 offen offset:{1024*j} sc1", "pst")
pl_ld = [f"buffer_load_dwordx4 {v(80+4*j,4)}, {v(vPB)}, {SWS}, s20 offen offset:{1024*j} sc1" for j in range(4)]
at(M - 1 - OPT["pl"], lambda: [VM(t_, "pld") for t_ in pl_ld])
segment(P3 if OPT["ovr"] else P4, M, lambda m: OPT["D3"], 8, p3bar)
assert not qC and not qB and anext[0] == len(aloads)
RT2 = jobs[10][0]; RED2 = slot_of[RT2] * 16384
I(f"v_add_u32 {v(vHR)}, {(RED2 - RED) & 0xffffffff}, {v(vHR)}")
reduce_pair(ACC3, ACC4, "bR2")
for r in range(16): I(f"v_add_f32 {v(ACC3+r)}, {v(ACC3+r)}, {v(BASE+r)}")
chkp = []
for j in range(4):
    b_ = 80 + 4*j
    chkp += [f"v_perm_b32 v65, v{b_+1}, v{b_}, s23", f"v_perm_b32 v66, v{b_+3}, v{b_+2}, s23", "v_perm_b32 v65, v66, v65, s53",
             "v_xor_b32 v64, v171, v65" if j == 0 else "v_xor_b32 v65, v171, v65"] + ([] if j == 0 else ["v_or_b32 v64, v64, v65"])
chkp.append("v_cmp_ne_u32 vcc, 0, v64")
E.wait(vm="pld")
for c_ in chkp: I(c_)
I("s_cbranch_vccnz L_slow_p"); E.label("L_back_p"); lstamp("kp")
slow.extend(["L_slow_p:", f"  s_sleep {OPT['slq']}"] + ["  " + t_ for t_ in pl_ld] + ["  s_waitcnt vmcnt(0)"] + ["  " + c_ for c_ in chkp] + spin_guard("L_back_p", -10) + ["  s_cbranch_vccnz L_slow_p", "  s_branch L_back_p"])
I("s_mov_b32 s16, 0xffffff00")
for r in range(16): I(f"v_and_b32 {v(80+r)}, s16, {v(80+r)}"); I(f"v_add_f32 {v(ACC3+r)}, {v(ACC3+r)}, {v(80 + r)}")
lstamp("last")
for r in range(16):
    if r % 4 == 0: E.wait(lg=f"rr{r>>2}")
    I(f"v_add_f32 {v(ACC3+r)}, {v(ACC3+r)}, {v(ACC4+r)}")
    if r % 2 == 0: I(f"s_mov_b32 {sT0}, {(r>>1)*4096}")
    VM(f"buffer_store_dword {v(ACC3+r)}, {v(vOUT)}, {SOUT}, {sT0} offen offset:{(r&1)*2048}" + (" sc1" if OPT["osc"] else ""), "out")
dump_stamps("C")
I("s_endpgm")

E = EH
E.label("L_helper")
vSo = [2, 3]; vGo = [4, 5, 6]; vCo = [8, 9, 10, 11]; vWo = [12, 13, 14, 15]; vHo = 16; vXEo = [17, 18]
vFLS, vFLP, vPOLL, vFLX = 19, 20, 21, 7
vLR, vCR, vL16, vL128, vL256, vPQ = 22, 24, 26, 28, 30, 32
vE, vE2, vP = 34, 36, 38
vEQA, vEST, vEF, vEX, vZA, vHSW, vHSR, vHSTo, vDA, vTAB = 40, 41, 42, 44, 46, 47, 48, 49, 50, 54
TR, TI, RT, TMP = 96, 112, 128, 144
vF16, vF256 = 56, 58
vQR, vQT, vQV, vQW = 160, 161, 162, 163
vDB = 164; vUP = 76
live = [items[f"X{i}"] for i in range(4, 8)]
known = {id(EC): 0, id(EH): 0}
def hplace(name):
    it = items[name]
    for o in list(live):
        if o.base < it.base + it.size and it.base < o.base + o.size:
            assert known[id(o.reader)] >= o.last_read, ("WAR", name, o.name)
            live.remove(o)
    live.append(it); return it
def adv11(s): I(f"s_add_u32 {s}, {s}, 1"); I(f"s_cmp_eq_u32 {s}, 11"); I(f"s_cselect_b32 {s}, 0, {s}")
cur_m0 = [None]
SOFF = {"G": "s16", "C": "s17", "W": "s18"}
def item_ops(name):
    k = name.rstrip("0123456789"); i = int(name[len(k):] or 0)
    so = SOFF.get(k)
    srd_, sm, voffs, pol = {"S": (SS, sM2, vSo, ""), "G": (SG, sM6, vGo, ""), "C": (SC, sM4, vCo, ""), "H": (SWS, sM4, [vHo]*4, " sc1"),
                            "W": (SWD, sM4, vWo, ""), "HG": (SWS, sM4, [vHo]*4, " sc1"), "XE": (SX, sM2, vXEo, "")}[k]
    prep = {"G": lambda: I(f"s_mul_i32 {so}, {sK[i]}, 1376"), "C": lambda: (q_h(so, i), I(f"s_lshl_b32 {so}, {so}, 7")),
            "W": lambda: w_soff(so, i, sSO)}.get(k, lambda: None)
    if so is None: so = "0" if k == "XE" else sK[i]
    ops = []
    for half in range(2 if k == "G" else 1):
        for q in range(len(voffs)):
            def op(half=half, q=q):
                if name in RT_:
                    if q == 0: prep()
                    VM(f"buffer_load_dwordx4 {v(RT_[name] + 4*q, 4)}, {v(voffs[q])}, {srd_}, {so} offen" + (f" offset:{q*1024}" if q else ""), name)
                    return
                if (half, q) == (0, 0): hplace(name)
                m0 = (sm, items[name].base + 3072 * half)
                if cur_m0[0] != m0: I(f"s_add_u32 m0, {sm}, {m0[1]}"); cur_m0[0] = m0
                if (half, q) == (0, 0): prep()
                if (half, q) == (1, 0): I(f"s_add_u32 {so}, {so}, {16*2752}")
                VM(f"buffer_load_dwordx4 {v(voffs[q])}, {srd_}, {so} offen" + (f" offset:{q*1024}" if q else "") + f"{pol} lds", name)
            ops.append(op)
    last = ops[-1]
    ops[-1] = lambda: (last(), done_issue.__setitem__(name, True))
    return ops
done_issue = {}
def issue(name, between=lambda: None):
    for op in item_ops(name): op(); between()
def unpark(name):
    hplace(name); E.wait(vm=name)
    I(f"v_add_u32 {v(vUP+1)}, {items[name].base}, {v(vUP)}")
    for q in range(4): DS(f"ds_write_b128 {v(vUP+1)}, {v(RT_[name] + 4*q, 4)} offset:{q*1024}", "up" + name)
def issue_mix(miss, *hits):
    mo = item_ops(miss); ho = [op for h in hits for op in item_ops(h)]
    for k, op in enumerate(mo):
        op()
        for h in ho[k * len(ho) // len(mo):(k + 1) * len(ho) // len(mo)]: h()
def flag_send(so): VM(f"buffer_store_dword v61, {v(vFLS)}, {SWS}, {so} offen sc1", "flag")
def poll_issue(so, tag): VM(f"buffer_load_dword {v(vPOLL)}, {v(vFLP)}, {SWS}, {so} offen sc1", tag)
def poll_check(so, tag, inc):
    E.wait(vm=tag)
    I(f"v_cmp_ne_u32 vcc, {v(vFLX)}, {v(vPOLL)}"); I(f"s_cbranch_vccnz L_slow_{tag}"); E.label(f"L_back_{tag}")
    slow.extend([f"L_slow_{tag}:", f"  s_sleep {OPT['slp']}", f"  buffer_load_dword {v(vPOLL)}, {v(vFLP)}, {SWS}, {so} offen sc1", "  s_waitcnt vmcnt(0)",
                 f"  v_cmp_ne_u32 vcc, {v(vFLX)}, {v(vPOLL)}"] + spin_guard(f"L_back_{tag}", inc) + [f"  s_cbranch_vccnz L_slow_{tag}", f"  s_branch L_back_{tag}"])
I(f"s_and_b32 {sT1}, {sW_}, 1"); I(f"s_lshl1_add_u32 {sT0}, {sG_}, {sT1}"); I(f"s_lshl_b32 {sT0}, {sT0}, 4")
I(f"v_add_lshl_u32 v84, v81, {sT0}, 10")
I(f"v_add_u32 {v(vSo[0])}, v84, v83"); I(f"v_add_u32 {v(vSo[1])}, v84, v85"); I(f"v_add_u32 {v(vSo[1])}, 7168, {v(vSo[1])}")
I(f"s_lshl_b32 {sM2}, {sW_}, 11")
E.wait_all(lg=True)
I(f"s_cmp_ge_u32 {sW_}, 2"); srd_sel(SS, 22, 24, 524288); srd_sel(SG, 36, 38, 1409024); srd_sel(SC, 26, 28, 524288)
issue("S0"); issue("S1"); E.barrier()
if OPT["prio"] == 2: I("s_setprio 1")
I(f"s_lshl2_add_u32 {sT0}, {sG_}, {sW_}"); I(f"s_lshl_b32 {sT0}, {sT0}, 3"); I(f"v_add_lshl_u32 v87, v82, {sT0}, 1")
VM("global_load_ushort v70, v87, s[30:31]", "par"); VM("global_load_ushort v71, v87, s[18:19]", "par"); VM("global_load_ushort v72, v87, s[20:21]", "par")
I(f"s_lshl1_add_u32 {sT0}, {sGL}, {sT1}"); I(f"s_lshl_b32 {sT0}, {sT0}, 5"); I(f"v_and_b32 v87, 31, {vLANE}"); I(f"v_add_lshl_u32 v87, v87, {sT0}, 1")
VM("global_load_ushort v7, v87, s[32:33]", "par")
srd(SDBG, 44, 256)
I(f"s_or_b32 {sT0}, s2, {sW_}"); I("s_cbranch_scc1 L_notag")
E.begin_cond()
I("s_or_b32 s13, s14, 1"); I("s_mul_i32 s13, s13, 0x9E3779B1"); I("v_mov_b32 v93, s13"); I("v_mov_b32 v94, 0"); I("s_mov_b64 exec, 1")
VM(f"buffer_store_dword v93, v94, {SDBG}, 0 offen sc1"); I("s_mov_b64 exec, -1")
E.end_cond(); E.label("L_notag")
for i in range(2, 8): ktab(i)
srd(SX, 16, 2097152); srd(SWD, 40, 1409024); srd(SWS, 46, WS_SIZE)
def warm():
    if not OPT["tw"]: return
    srd(SOUT, 42, 4194304)
    I("v_mov_b32 v92, 0"); I(f"s_lshl2_add_u32 {sT0}, {sC_}, {sW_}"); I(f"s_mul_i32 {sT0}, {sT0}, {152*1024}")
    I(f"s_lshr_b32 {sT2}, {sG_}, 1"); I(f"s_lshl_b32 {sT2}, {sT2}, 13"); I(f"s_add_u32 {sT0}, {sT0}, {sT2}"); I(f"s_and_b32 {sT2}, {sG_}, 1"); I(f"s_lshl_b32 {sT2}, {sT2}, 11"); I(f"s_add_u32 {sT0}, {sT0}, {sT2}")
    I(f"s_mov_b32 {sT2}, {WS_EB + 0x30000}"); I(f"s_lshl_b32 {sT3}, {sC_}, 18")
    I("s_mov_b64 exec, 1")
    for sr, so in ((SG, "0"), (SC, "0"), (SWD, "0"), (SWS, sT0), (SWS, sT2), (SOUT, sT3)):
        VM(f"buffer_load_dword v95, v92, {sr}, {so} offen sc1", "tw")
    I("s_mov_b64 exec, -1")
def setup1():
    I(f"s_mov_b32 {sSPIN}, 0"); I("s_mov_b32 s15, 0"); I(f"s_mul_i32 {sM6}, {sW_}, 6144")
    I(f"s_mul_i32 {sT0}, {sT1}, {32*2752}"); I(f"s_mul_i32 {sT2}, {sG_}, 192"); I(f"s_add_u32 {sT0}, {sT0}, {sT2}")
    I(f"s_mul_i32 {sT2}, {sG_}, 3"); I(f"s_mov_b32 {sT3}, 2752"); I(f"v_mov_b32 v90, {OOB}")
    for i in range(3):
        I(f"v_add_u32 v88, {64*i}, {vLANE}"); I("v_mul_u32_u24 v86, 43691, v88"); I("v_lshrrev_b32 v86, 19, v86")
        I("v_mul_u32_u24 v87, 12, v86"); I("v_sub_u32 v87, v88, v87")
        I(f"v_mul_lo_u32 v86, v86, {sT3}"); I("v_lshl_add_u32 v86, v87, 4, v86"); I(f"v_add_u32 v86, {sT0}, v86")
        I("v_lshrrev_b32 v87, 2, v87"); I(f"v_add_u32 v87, {sT2}, v87"); I("v_cmp_gt_u32 vcc, 43, v87")
        if i: I(f"v_subrev_u32 v86, {1024*i}, v86")
        I(f"v_cndmask_b32 {v(vGo[i])}, v90, v86, vcc")
    I(f"s_lshl2_add_u32 {sT0}, {sGL}, {sT1}"); I(f"s_lshl_b32 {sT2}, {sG_}, 1"); I(f"s_sub_u32 {sT0}, {sT0}, {sT2}"); I(f"s_lshl_b32 {sT0}, {sT0}, 14")
    I(f"v_add_u32 {v(vCo[0])}, {sT0}, {v(vSo[0])}"); I(f"v_add_u32 {v(vCo[1])}, {sT0}, {v(vSo[1])}")
    I(f"v_add_u32 {v(vCo[2])}, {2*7168}, {v(vCo[0])}"); I(f"v_add_u32 {v(vCo[3])}, {2*7168}, {v(vCo[1])}")

def setup1b():
    I(f"s_and_b32 {sT1}, {sW_}, 1")
    I("v_lshlrev_b32 v86, 4, v82"); I("v_lshl_add_u32 v86, v81, 10, v86"); I(f"v_and_b32 v87, 16, {vLANE}"); I("v_lshlrev_b32 v87, 2, v87"); I("v_xor_b32 v87, v86, v87")
    I(f"s_lshl_b32 {sT3}, {sGL}, 7"); I(f"v_add_u32 {v(vWo[0])}, {sT3}, v87")
    for q in range(1, 4): I(f"v_add_u32 {v(vWo[q])}, {7168*q}, {v(vWo[0])}")
    I(f"s_lshl1_add_u32 s13, {sC_}, {sGH}"); I(f"s_lshl2_add_u32 {sT0}, s13, {sW_}"); I(f"s_lshl_b32 {sT0}, {sT0}, 14"); I(f"s_add_u32 {sT0}, {sT0}, {sT3}")
    I(f"v_add_u32 {v(vXEo[0])}, {sT0}, v86"); I(f"v_add_u32 {v(vXEo[1])}, 7168, {v(vXEo[0])}")
    I(f"s_lshr_b32 {sT2}, {sW_}, 1"); I(f"s_lshl1_add_u32 {sT0}, s13, {sT2}"); I(f"s_mul_i32 {sT0}, {sT0}, {152*1024}"); I(f"s_lshl_b32 {sT3}, {sT1}, 12"); I(f"s_add_u32 {sT0}, {sT0}, {sT3}")
    I(f"v_lshl_add_u32 {v(vHo)}, {vLANE}, 4, {sT0}")
    I(f"s_cmp_eq_u32 {sW_}, 0"); I(f"s_cselect_b32 {sT2}, 16, 0"); I(f"v_cmp_gt_u32 vcc, {sT2}, {vLANE}")
    I(f"s_lshl_b32 {sT0}, {sC_}, 11"); I(f"s_lshl2_add_u32 {sT3}, {sG_}, {sT0}"); I(f"v_lshl_add_u32 v86, {vLANE}, 7, {sT3}")
    I(f"v_cndmask_b32 {v(vFLS)}, v90, v86, vcc")
    I(f"s_lshl_b32 {sT3}, {sG_}, 7"); I(f"s_add_u32 {sT3}, {sT3}, {sT0}"); I(f"v_lshl_add_u32 v86, {vLANE}, 2, {sT3}")
    I(f"v_cndmask_b32 {v(vFLP)}, v90, v86, vcc"); I(f"v_cndmask_b32 {v(vFLX)}, 0, -1, vcc")
    I(f"s_mov_b32 s20, {WS_FH}"); I(f"s_mov_b32 s21, {WS_FG}")

def setup2():
    o = []
    A = o.append
    A(f"s_lshl_b32 {sT0}, {sW_}, 10"); A(f"s_add_u32 {sT0}, {sT0}, {EQ}"); A(f"v_lshl_add_u32 {v(vEQA)}, {vLANE}, 3, {sT0}")
    A("v_mov_b32 v88, 0"); A("v_mov_b32 v89, 0"); A(lambda: DS(f"ds_write_b64 {v(vEQA)}, v[88:89]", "eqz"))
    A(f"v_lshl_add_u32 {v(vZA)}, v82, 3, {sT0}")
    A(f"s_lshl_b32 {sT0}, {sW_}, 9"); A(f"v_lshlrev_b32 v86, 11, v81"); A("v_lshl_add_u32 v86, v82, 6, v86"); A("v_lshrrev_b32 v87, 1, v82")
    A("v_lshl_add_u32 v86, v87, 4, v86"); A(f"v_add_u32 {v(vDA)}, {sT0}, v86")
    for j in range(1, 4): A(f"v_xor_b32 {v(vDA+j)}, {16*j}, {v(vDA)}")
    for j in range(4): A(f"v_add_u32 {v(vDB+j)}, {DUMPS[1]}, {v(vDA+j)}")
    A(f"v_lshlrev_b32 {v(vTAB)}, 6, v81"); A(f"v_add_u32 {v(vTAB)}, {RTAB}, {v(vTAB)}")
    A(f"s_lshl_b32 {sT0}, {sG_}, 13"); A(f"s_lshl_b32 {sT2}, {sW_}, 7"); A(f"s_add_u32 {sT0}, {sT0}, {sT2}"); A(f"s_add_u32 {sT0}, {sT0}, {WS_EB}")
    A(f"v_lshl_add_u32 v86, v82, 4, {sT0}")
    A(f"s_lshl_b32 {sT2}, {sC_}, 9"); A(f"v_add_u32 {v(vEST)}, {sT2}, v86"); A(lambda: (I("v_cmp_eq_u32 vcc, 7, v81"), I(f"v_cndmask_b32 {v(vEST)}, v90, {v(vEST)}, vcc")))
    A(f"s_sub_u32 {sT2}, {sC_}, 16"); A(f"v_lshl_add_u32 v87, v81, 1, {sT2}")
    A(f"v_lshl_add_u32 {v(vEF)}, v87, 9, v86"); A(f"v_add_u32 {v(vEF+1)}, 512, {v(vEF)}")
    A(lambda: (I("v_cmp_le_i32 vcc, 0, v87"), I(f"v_cndmask_b32 {v(vEF)}, v90, {v(vEF)}, vcc"), I(f"v_cndmask_b32 {v(vEX)}, 0, -1, vcc")))
    A(lambda: (I("v_cmp_le_i32 vcc, -1, v87"), I(f"v_cndmask_b32 {v(vEF+1)}, v90, {v(vEF+1)}, vcc"), I(f"v_cndmask_b32 {v(vEX+1)}, 0, -1, vcc")))
    A(f"s_mul_i32 {sT0}, {sW_}, 2608"); A(f"s_add_u32 {sT0}, {sT0}, {HS}")
    A("v_mul_u32_u24 v86, 336, v82"); A("v_lshl_add_u32 v86, v81, 5, v86"); A(f"v_add_u32 {v(vHSW)}, {sT0}, v86")
    A(f"v_bfe_u32 v86, {vLANE}, 2, 2"); A("v_mul_u32_u24 v86, 336, v86"); A(f"v_and_b32 v87, 32, {vLANE}"); A("v_lshl_add_u32 v86, v87, 1, v86")
    A(f"v_and_b32 v87, 1, {vLANE}"); A("v_lshl_add_u32 v86, v87, 5, v86"); A(f"v_and_b32 v87, 16, {vLANE}"); A("v_add_u32 v86, v86, v87")
    A(f"v_and_b32 v87, 2, {vLANE}"); A("v_lshl_add_u32 v86, v87, 2, v86"); A(f"v_add_u32 {v(vHSR)}, {sT0}, v86")
    A(f"s_mul_i32 {sT0}, {sC_}, {4*152}"); A(f"s_lshr_b32 {sT2}, {sG_}, 1"); A(f"s_lshl3_add_u32 {sT0}, {sT2}, {sT0}"); A(f"s_and_b32 {sT2}, {sG_}, 1")
    A(f"s_lshl1_add_u32 {sT0}, {sT2}, {sT0}"); A(f"s_lshl_b32 {sT0}, {sT0}, 10"); A(f"s_lshl_b32 {sT2}, {sW_}, 9"); A(f"s_add_u32 {sT0}, {sT0}, {sT2}")
    A(f"v_lshrrev_b32 v86, 5, {vLANE}"); A(f"v_mul_u32_u24 v86, {152*1024}, v86"); A(f"v_and_b32 v87, 31, {vLANE}"); A("v_lshl_add_u32 v86, v87, 4, v86"); A(f"v_add_u32 {v(vHSTo)}, {sT0}, v86")
    LOG2E = "0x3fb8aa3b"
    A(lambda: E.wait(vm="par"))
    o += ["v_lshlrev_b32 v70, 16, v70", "v_lshlrev_b32 v71, 16, v71", "v_lshlrev_b32 v72, 16, v72",
          f"v_mul_f32 v70, {LOG2E}, v70", "v_exp_f32 v70, v70", "v_mul_f32 v74, v71, v71"] + bf16r_ops(70, 70)
    o += ["v_mul_f32 v75, v70, v71", "v_mul_f32 v76, v70, v72", f"v_mul_f32 v75, {LOG2E}, v75", "v_exp_f32 v75, v75",
          "v_mul_f32 v76, 0.15915494, v76", "v_rndne_f32 v77, v76", "v_sub_f32 v76, v76, v77", "v_cos_f32 v77, v76", "v_sin_f32 v78, v76",
          "v_fmac_f32 v74, v72, v72", f"v_mul_f32 {v(vLR)}, v75, v77", "v_mul_f32 v78, v75, v78", "v_rcp_f32 v74, v74",
          f"v_add_f32 v77, -1.0, {v(vLR)}", "v_add_f32 v74, v74, v74",
          f"v_mul_f32 {v(vCR)}, v77, v71", f"v_fmac_f32 {v(vCR)}, v78, v72", f"v_mul_f32 {v(vCR)}, {v(vCR)}, v74",
          f"v_mul_f32 {v(vCR+1)}, v77, v72", f"v_fma_f32 {v(vCR+1)}, -v78, v71, {v(vCR+1)}", f"v_mul_f32 {v(vCR+1)}, {v(vCR+1)}, v74",
          f"v_sub_f32 {v(vLR+1)}, 0, v78"]
    o += csq_ops(70, vLR, 78) + csq_ops(72, 70, 78) + csq_ops(70, 72, 78) + csq_ops(vL16, 70, 78)
    o += csq_ops(70, vL16, 78) + csq_ops(72, 70, 78) + csq_ops(vL128, 72, 78) + csq_ops(vL256, vL128, 78)
    o += [f"v_mov_b32 {v(vPQ)}, {v(vCR)}", f"v_mov_b32 {v(vPQ+1)}, {v(vCR+1)}"]
    for bit, L in ((8, vL16), (16, 70), (32, 72)):
        o += [f"v_and_b32 v74, {bit}, {vLANE}", lambda L=L: (I("v_cmp_ne_u32 vcc, 0, v74"), I(f"v_cndmask_b32 v76, 1.0, {v(L)}, vcc"), I(f"v_cndmask_b32 v77, 0, {v(L+1)}, vcc"))]
        o += cmul_ops(vPQ, vPQ, 76, 78)
    def factor(F, Ls):
        r = []
        for n, (bit, L) in enumerate(zip((8, 16, 32), Ls)):
            d = F if n == 0 else 76
            r += [f"v_and_b32 v74, {bit}, {vLANE}", lambda L=L, d=d: (I("v_cmp_eq_u32 vcc, 0, v74"), I(f"v_cndmask_b32 {v(d)}, 1.0, {v(L)}, vcc"), I(f"v_cndmask_b32 {v(d+1)}, 0, {v(L+1)}, vcc"))]
            if n: r += cmul_ops(F, F, 76, 78)
        return r
    o += factor(vF16, (vL16, 70, 72))
    o += csq_ops(70, vL256, 78) + csq_ops(72, 70, 78) + factor(vF256, (vL256, 70, 72))
    return o
def allsum(a_, b_, t):
    o = [f"v_add_f32_dpp {v(t)}, {v(a_)}, {v(a_)} row_ror:8 row_mask:0xf bank_mask:0xf", f"v_add_f32_dpp {v(t+1)}, {v(b_)}, {v(b_)} row_ror:8 row_mask:0xf bank_mask:0xf",
         f"v_mov_b32 {v(a_)}, {v(t)}", f"v_mov_b32 {v(b_)}, {v(t+1)}",
         f"v_permlane16_swap_b32 {v(a_)}, {v(t)}", f"v_permlane16_swap_b32 {v(b_)}, {v(t+1)}",
         f"v_add_f32 {v(a_)}, {v(a_)}, {v(t)}", f"v_add_f32 {v(b_)}, {v(b_)}, {v(t+1)}",
         f"v_mov_b32 {v(t)}, {v(a_)}", f"v_mov_b32 {v(t+1)}, {v(b_)}",
         f"v_permlane32_swap_b32 {v(a_)}, {v(t)}", f"v_permlane32_swap_b32 {v(b_)}, {v(t+1)}",
         f"v_add_f32 {v(a_)}, {v(a_)}, {v(t)}", f"v_add_f32 {v(b_)}, {v(b_)}, {v(t+1)}"]
    return o
def cmul4(d, x, y):
    return [f"v_mul_f32 {v(d[0])}, {v(x[0])}, {v(y)}", f"v_mul_f32 {v(d[1])}, {v(x[0])}, {v(y+1)}",
            f"v_fma_f32 {v(d[0])}, -{v(x[1])}, {v(y+1)}, {v(d[0])}", f"v_fmac_f32 {v(d[1])}, {v(x[1])}, {v(y)}"]
def ssm1():
    o = []
    def rdd(j, comp): DS(f"ds_read_b128 {v((TI if comp else TR) + 4*j, 4)}, {v(vDB+j)} offset:{DUMPS[comp] - DUMPS[1]}", f"dr{j}"); note_read(f"DUMP{comp}")
    for j in range(4):
        o += [lambda j=j: DS(f"ds_read_b128 {v(RT + 4*j, 4)}, {v(vTAB)} offset:{16*j}", f"dr{j}"), lambda j=j: rdd(j, 0), lambda j=j: rdd(j, 1)]
    cur, nx = (vE, vE + 1), (vE2, vE2 + 1)
    for r in range(16):
        if r % 4 == 0: o.append(lambda j=r >> 2: E.wait(lg=f"dr{j}"))
        o += [f"v_mul_f32 {v(TR+r)}, {v(TR+r)}, {v(RT+r)}", f"v_mul_f32_e64 {v(TI+r)}, -{v(TI+r)}, {v(RT+r)}"]
        if r == 0: src = (TR, TI)
        else:
            o += cfma_ops(nx, vLR, src, TR + r, TI + r); src = nx; cur, nx = nx, cur
    assert src == (vE2, vE2 + 1)
    o += cmul4((60, 62), src, vF16) + allsum(60, 62, 64)
    o.append(lambda: (VM(f"buffer_store_dwordx4 v[60:63], {v(vEST)}, {SWS}, 0 offen sc1", "est"), lstamp("epub")))
    return o
def window():
    o = [lambda: DS(f"ds_write_b64 {v(vEQA)}, {v(vE2,2)} offset:{7*64}", "eqw")]
    o += [lambda i=i: DS(f"ds_read_b64 {v(TMP+2*i,2)}, {v(vEQA)} offset:{64*i}", "eq") for i in range(7)]
    for r in range(16):
        o += [f"v_mul_f32 v72, {v(vCR+1)}, {v(TI+r)}", f"v_mul_f32 {v(TI+r)}, {v(vCR)}, {v(TI+r)}",
              f"v_fmac_f32 {v(TI+r)}, {v(vCR+1)}, {v(TR+r)}", f"v_fma_f32 {v(TR+r)}, {v(vCR)}, {v(TR+r)}, -v72"]
    o.append(lambda: E.wait(lg="eq"))
    src = (TMP, TMP + 1); pp = [(vE2, vE2 + 1), (vE, vE + 1)]
    for i in range(1, 7):
        d = pp[i & 1]; o += cfma_ops(d, vL16, src, TMP + 2*i, TMP + 2*i + 1); src = d
    return o + cmul4((vP, vP + 1), src, vCR)
def efetch_issue():
    VM(f"buffer_load_dwordx4 v[64:67], {v(vEF)}, {SWS}, 0 offen sc1", "ef"); VM(f"buffer_load_dwordx4 v[68:71], {v(vEF+1)}, {SWS}, 0 offen sc1", "ef")
def ssm3():
    chk = [f"v_xor_b32 v72, v65, {v(vEX)}", f"v_xor_b32 v73, v67, {v(vEX)}", f"v_xor_b32 v74, v69, {v(vEX+1)}", "v_or3_b32 v72, v72, v73, v74",
           f"v_xor_b32 v73, v71, {v(vEX+1)}", "v_or_b32 v72, v72, v73", "v_cmp_ne_u32 vcc, 0, v72"]
    def check():
        E.wait(vm="ef")
        for c in chk: I(c)
        I("s_cbranch_vccnz L_slow_e"); E.label("L_back_e"); lstamp("eok")
        slow.extend(["L_slow_e:", f"  s_sleep {OPT['slq']}", f"  buffer_load_dwordx4 v[64:67], {v(vEF)}, {SWS}, 0 offen sc1", f"  buffer_load_dwordx4 v[68:71], {v(vEF+1)}, {SWS}, 0 offen sc1",
                     "  s_waitcnt vmcnt(0)"] + ["  " + c for c in chk] + spin_guard("L_back_e", 0x100) + ["  s_cbranch_vccnz L_slow_e", "  s_branch L_back_e"])
    o = [check] + cfma_ops((vE, vE + 1), vL128, (64, 66), 68, 70)
    o += cmul4((vE2, vE2 + 1), (vE, vE + 1), vF256) + allsum(vE2, vE2 + 1, 72)
    src = (vE2, vE2 + 1)
    o += cfma_ops((vE, vE + 1), vPQ, src, vP, vP + 1)
    src = (vE, vE + 1)
    for r in range(16):
        d = (TR + r, TI + r); o += cfma_ops(d, vLR, src, d[0], d[1]); src = d
        if r & 1: o += [f"v_cvt_pk_bf16_f32 {v(TMP + (r>>1))}, {v(TR+r-1)}, {v(TR+r)}", f"v_cvt_pk_bf16_f32 {v(TMP + 8 + (r>>1))}, {v(TI+r-1)}, {v(TI+r)}"]
    for comp in range(2):
        o += [lambda j=j, comp=comp: DS(f"ds_write_b128 {v(vHSW)}, {v(TMP + 8*comp + 4*j, 4)} offset:{16*j}", "hsw") for j in range(2)]
        for i in range(2):
            for ph in range(2):
                def rd(i=i, ph=ph, comp=comp):
                    DS(f"ds_read_b64_tr_b16 {v(RT + 8*comp + 4*i + 2*ph, 2)}, {v(vHSR)} offset:{4*ph*336 + 128*i}", f"hr{comp}{i}"); note_read("HS")
                o.append(rd)
    for comp in range(2):
        for i in range(2):
            def st(i=i, comp=comp):
                I(f"s_mov_b32 {sT0}, {2*i*152*1024 + comp*4096}"); E.wait(lg=f"hr{comp}{i}")
                VM(f"buffer_store_dwordx4 {v(RT + 8*comp + 4*i, 4)}, {v(vHSTo)}, {SWS}, {sT0} offen sc1", "hst")
            o.append(st)
    o.append(lambda: lstamp("hst"))
    return o
work = []
def pop_work(n):
    while n > 0 and work: runall([work.pop(0)]); n -= 1
def between(n=8): return lambda: pop_work(n)
live.append(items["OFT"])
I(f"v_and_b32 {v(vQR)}, 3, {vLANE}"); I(f"v_lshlrev_b32 {v(vQR)}, 2, {v(vQR)}"); I(f"v_add_u32 {v(vQR)}, {PRG}, {v(vQR)}"); I(f"v_mov_b32 {v(vQV)}, 0")
I(f"s_lshl_b32 {sT0}, {sW_}, 2"); I(f"s_add_u32 {sT0}, {sT0}, {PRG}"); I(f"v_mov_b32 {v(vQW)}, {sT0}")
issue("S2"); issue("S3"); lstamp("b0")
def hchk(word, st):
    off = {"PC": 0, "PD": 32}[word]; val = PCV[st] if word == "PC" else st
    chk_spin(val, vQR, vQT, off)
    em, lg = signals[(word, val)]; known[id(em)] = max(known[id(em)], lg)
published = [0]
def pub(ch):
    assert PHV[ch] > published[0]
    E.wait(vm=[n for c in CHUNKS[published[0]:PHV[ch]] for n in chunk_items(c)]); signal("PH", PHV[ch], vQW, vQV, 16); published[0] = PHV[ch]
def auto_pub(lead):
    best = None
    for c in CHUNKS[published[0]:]:
        if all(n in E.vm and done_issue.get(n) and len(E.vm) - E.last(E.vm, n) >= lead for n in chunk_items(c)): best = c
        else: break
    if best: pub(best)
def s47():
    for n in ("S4", "S5", "S6", "S7"): issue(n)
if OPT["xi"] < 0: s47()
pub("S2")
setup1()
I(f"s_lshl_b32 {sT0}, {sW_}, 11"); I(f"s_add_u32 {sT0}, {sT0}, {HS}"); I(f"v_lshl_add_u32 v86, {vLANE}, 4, {sT0}")
E.wait(vm="par"); DS("ds_write_b128 v86, v[4:7]", "oft"); I("v_mov_b32 v92, v86"); E.wait(lg="oft")
if OPT["xi"] >= 0: hchk("PC", "Xi"); s47()
w2 = setup2(); runall(w2[:OPT["w2a"]])
hchk("PC", "X"); lstamp("xd")
I("v_mov_b32 v91, 0"); VM(f"buffer_load_dword {v(vPOLL)}, v91, {SDBG}, 0 offen sc1", "tag")
issue("G0"); pub("S6"); runall(w2[OPT["w2a"]:OPT["w2b"]]); issue("G1"); runall(w2[OPT["w2b"]:]); pub("G0"); hchk("PC", "S3"); issue("G2"); pub("G1"); issue("G3"); setup1b()
tag_check("H", vPOLL, 88)
runall([f"v_mov_b32 v61, {sNON}", f"v_mov_b32 v63, {sNON}", f"v_and_b32 {v(vEX)}, {sNON}, {v(vEX)}", f"v_and_b32 {v(vEX+1)}, {sNON}, {v(vEX+1)}", f"v_and_b32 {v(vFLX)}, {sNON}, {v(vFLX)}",
        f"v_lshl_add_u32 {v(vUP)}, {vLANE}, 4, {sM4}"])
known[id(EC)] = max(known[id(EC)], signals[("PC", PCV["S5"])][1]); hplace("DUMP0"); hplace("DUMP1")
DS("ds_write_b64 v92, v[8:9] offset:1024", "oft"); DS("ds_write_b32 v92, v12 offset:1032", "oft"); DS("ds_write_b32 v92, v61 offset:1036", "oft")
runall(q_setup()); issue("C0"); issue("W0")
if OPT["w1e"]: issue("W4")
I(f"s_setprio {OPT['pb']}")
hchk("PC", "dump"); lstamp("bD")
ncp = [0]
def code_touch():
    ncp[0] += 1
    I("s_getpc_b64 s[54:55]"); E.label(f"L_pc{ncp[0]}")
    I(f"s_sub_u32 s54, s54, L_pc{ncp[0]}-{NAME}_kernel"); I("s_subb_u32 s55, s55, 0")
    I(f"s_and_b32 {sT0}, {sGL}, 3"); I("v_and_b32 v78, 0xfc, v0"); I(f"v_or_b32 v78, {sT0}, v78"); I("v_lshlrev_b32 v78, 7, v78")
    VM("global_load_dword v79, v78, s[54:55]", "code")
def pass2():
    t0 = OPT["bd"] + 2
    s1, wn, s3 = ssm1(), window(), ssm3()
    ins = []
    def spread(name, ta, tb, pre=None):
        holder = {}
        n = 6 if name[0] == "G" else 4
        for k in range(n):
            def f(k=k):
                if k == 0:
                    if pre: hchk(*pre)
                    holder["ops"] = item_ops(name)
                holder["ops"][k]()
            ins.append((ta + (tb - ta) * k / n, f))
    ins.append((OPT["pg2"], lambda: (E.wait(lg="dr3"), pub("G2")))); ins.append((48, lambda: pub("G3")))
    ins.sort(key=lambda x: x[0])
    t = [float(t0)]
    def cyc(): return E.nvec * OPT["vc"] / 10.0 + (E.count + E.nops - E.nvec) * 4.0
    def adv(c0): t[0] += (cyc() - c0) / 33.0
    def run(ops):
        for op in ops:
            while ins and ins[0][0] <= t[0]:
                c0 = cyc(); ins.pop(0)[1](); adv(c0)
            c0 = cyc(); runall([op]); adv(c0)
    def idle_until(tt):
        while ins and ins[0][0] <= tt: t[0] = max(t[0], ins[0][0]); ins.pop(0)[1]()
        t[0] = max(t[0], tt)
    run(s1); tpub = t[0]
    k = 0
    while k < len(wn) and t[0] < tpub + OPT["efd"]: run([wn[k]]); k += 1
    efetch_issue(); lstamp("ef"); tf = t[0]
    if OPT["cp"] & 1: code_touch()
    run(wn[k:]); hchk("PC", "G1"); hplace("HS")
    tc = t[0]
    I(f"s_setprio {OPT['pc']}"); run(s3); ts = t[0]; assert not ins
    E.wait(vm="hst"); signal("PD", 2, vQW, vQV, 32); hchk("PD", 2); flag_send("s20"); lstamp("hflag")
    if OPT.get("log"): print(f"helper est: epub {tpub:.0f} efetch {tf:.0f} check {tc:.0f} stores {ts:.0f}", file=sys.stderr)
pass2()
issue("XE")
if not OPT["w1e"]: issue("W4")
if OPT["cp"] & 2: code_touch()
pub("KX")
for name, kn in cplaced:
    save = dict(known); known.update({id(EC): 0, id(EH): 0})
    for w_, val in kn:
        em, lg = signals[(w_, val)]; known[id(em)] = max(known[id(em)], lg)
    hplace(name); done_issue[name] = True; known.update(save)
I(f"s_setprio {OPT['pd']}")
if OPT["ep"]:
    hchk("PC", "U0"); poll_issue("s20", "ph"); poll_check("s20", "ph", 0x10000); lstamp("okh"); pub("K0")
hchk("PC", "T"); lstamp("gT")
if not OPT["ep"]: poll_issue("s20", "ph")
I(f"s_mov_b32 s19, {WS_FP}")
for n_ in ("W1", "W2", "W3")[3 - OPT["wl"]:]: issue(n_)
unpark("C0")
if not OPT["ep"]: poll_check("s20", "ph", 0x10000); lstamp("okh"); pub("K0")
hchk("PC", "gsa"); flag_send("s19")
unpark("W0"); unpark("W4")
if OPT["gs"] < 0: hchk("PC", "gst"); flag_send("s21")
for k, bn in enumerate(bar_names[1:]):
    if bn == "bP1": poll_check("s19", "pa", 0x1)
    if bn == "bP2": hchk("PC", "pj"); poll_issue("s21", "pg"); poll_check("s21", "pg", 0x1000000); lstamp("okg")
    E.wait(vm=["W5"] if bn == "bP3" else (["W3"] if OPT["wl"] else []), lg=["upW4"]); E.barrier()
    known[id(EC)] = max(known[id(EC)], EC.barriers[k + 1][1])
    if bn == "bP0" and OPT["gs"] >= 0: hchk("PC", "gst"); flag_send("s21")
    if bn == "bP0": poll_issue("s19", "pa")
    if bn == "bP1": issue("W5")
    if bn == "bP3": assert known[id(EC)] >= min(items["C2"].last_read, 10**9)
    if bn == "bP4": assert known[id(EC)] >= items[RT2].last_read
assert len(EH.barriers) == len(EC.barriers)
dump_stamps("H")
E.label("L_end"); I("s_endpgm")

hdr = open("cdna_kernels/" + NAME + ".s.ref").read().split("; Override launch geometry")[0]
out = hdr
if OPT["lst"]: out += "; cstamps: " + " ".join(lnames["C"]) + "\n; hstamps: " + " ".join(lnames["H"]) + f"\n; rt: {OPT['rt']}\n"
out += f"; @launch grid=(256,1,1) block=(512,1,1) lds={LDS_BYTES}\n"
out += f'.amdgcn_target "amdgcn-amd-amdhsa--gfx950"\n.text\n.globl {NAME}_kernel\n.p2align 8\n.type {NAME}_kernel,@function\n'
kc = next(k for k, l in enumerate(EC.lines) if "v_and_b32 v90, 31" in l)
out += E0.text() + "\n".join(EC.lines[:kc]) + "\n  s_branch L_cmain\n" + EH.text() + "L_cmain:\n" + "\n".join(EC.lines[kc:]) + "\n" + "\n".join(slow) + "\n"
out += f"L_pad:\n.fill (37120 - (L_pad - {NAME}_kernel)) / 4, 4, 0xbf810000\n"
out += f""".section .rodata,"a"
.p2align 6
.amdhsa_kernel {NAME}_kernel
  .amdhsa_next_free_vgpr 256
  .amdhsa_next_free_sgpr 102
  .amdhsa_accum_offset 256
  .amdhsa_group_segment_fixed_size 0
  .amdhsa_kernarg_size 128
  .amdhsa_user_sgpr_count 2
  .amdhsa_user_sgpr_kernarg_segment_ptr 1
  .amdhsa_system_sgpr_workgroup_id_x 1
.end_amdhsa_kernel
"""
open(sys.argv[1], "w").write(out)
print(f"compute {EC.count}+{EC.nops} helper {EH.count}+{EH.nops} barriers {len(bar_names)}: {' '.join(bar_names)}", file=sys.stderr)
```

```python
import sys
from emit import Emitter
NAME = "parallel_sum__ssm_conv_s5__glu_gated_bilinear__prompt"
OPT = dict(lst=0, rt=1, D=4, D2=7, D3=6, NU=2, gfd=40, prio=1, bd=15, ipc=85, slp=2, slq=0, wl=2, ovr=0, cp=0, sp=0, dsp=3, efn=90, rot=8, lead=12, ge=0, gf=1, gg=5, gp=2, mw=0, ar=1, nr=8, bk=12, c34=1, f0=0, f2=1, pw=0, pd=2, nwt=0, a0=6, al=16, nb=60, gs=2, tw=0, osc=1, d64=0, w2a=20, w2b=110, pb=0, c1=117, c45=1, u0s=158, xi=-1, pc=2, map=0, xj=1, nd=2, skw=2, gj=7, pjd=16, ea=0, pl=14, w1e=0, xw=1, ct=1, stg=0, x3=0, wr=4, pg2=21, ep=0, vc=85, efd=35, ecd=20)
for a_ in sys.argv[2:]:
    k_, v_ = a_.split("="); OPT[k_] = int(v_)

WS_EB = 0xA00000; WS_FH = 0xA40000; WS_FG = 0xA48000; WS_ST = 0xC00000; WS_FP = 0xA50000; WS_PB = 0x1000000; WS_SIZE = 0x1800000
U8 = 8192; MISC = 18 * U8
RTAB = MISC; EQ = MISC + 1024; HS = MISC + 5120; XE = MISC + 5120
DUMP = 0
PRG = MISC + 15872
LDS_BYTES = 163840
OOB = 0x80000000
sW_, sC_, sG_, sGL, sGH, sJ0 = "s3", "s4", "s5", "s6", "s7", "s8"
sT0, sT1, sT2, sT3 = "s9", "s10", "s11", "s12"
SX, SS, SG, SC, SWD, SWS, SOUT, SDBG = ("s[48:51]", "s[52:55]", "s[56:59]", "s[60:63]", "s[64:67]", "s[68:71]", "s[72:75]", "s[76:79]")
sK = [f"s{80+i}" for i in range(8)]
sM4, sM2, sM6 = "s88", "s89", "s94"
sQW, sQHG, sSO = "s95", "s96", "s100"
sNON, sC10, sC01, sC11 = "s90", "s91", "s92", "s93"
sSPIN = "s97"; sSP2 = "s99"; sCL = "s101"
sCW = "s98"; WMUL = {4: 3, 2: 6, 1: 0}[OPT["wr"]]
sRA = "s52"
def q_setup(): return [f"s_add_u32 {sQW}, {sGL}, {sCL}"]
def q_h(so, i): I(f"s_add_u32 {so}, {sQW}, {i}"); I(f"s_and_b32 {so}, {so}, 3"); I(f"s_lshl2_add_u32 {so}, {sGH}, {so}")
def q_u(so, i):
    if i < 4: q_h(so, i); I(f"s_cmp_eq_u32 {so}, 7"); I(f"s_cselect_b32 {so}, 11, {so}")
    else: I(f"s_add_u32 {so}, {sQW}, {i}"); I(f"s_and_b32 {so}, {so}, 1"); I(f"s_lshl1_add_u32 {so}, {sGH}, {so}"); I(f"s_add_u32 {so}, {so}, 7")
def w_soff(so, i, tmp):
    q_u(tmp, i); I(f"s_lshl2_add_u32 {tmp}, {tmp}, {sW_}"); I(f"s_mul_i32 {so}, {tmp}, 3")
    I(f"s_cmp_ge_u32 {tmp}, 15"); I(f"s_cselect_b32 {sRA}, 44, 0"); I(f"s_cmp_ge_u32 {tmp}, 30"); I(f"s_cselect_b32 {sRA}, 88, {sRA}")
    I(f"s_sub_u32 {so}, {so}, {sRA}"); I(f"s_lshl_b32 {so}, {so}, 15")
vLANE = "v1"
MF = "v_mfma_f32_32x32x16_bf16"
def v(n, k=1): return f"v{n}" if k == 1 else f"v[{n}:{n+k-1}]"

EC, EH, E0 = Emitter(), Emitter(), Emitter()
E = E0
def I(t): return E.I(t)
def VM(t, tag=None): return E.VM(t, tag)
def DS(t, tag=None): return E.DS(t, tag)
slow = []
lnames = {"C": [], "H": []}
def lstamp(name):
    who = "C" if E is EC else "H"
    if OPT["lst"] and name in LSET[who] and len(lnames[who]) < 12:
        k = 24 + 2 * len(lnames[who]); lnames[who].append(name); I(f"{'s_memrealtime' if OPT['rt'] else 's_memtime'} s[{k}:{k+1}]")
LSETS = {0: ([], []),
         1: (["X6", "X7", "S0", "G0", "G4", "T", "J0", "J4", "snd", "kp", "last", "end"], ["b0", "xd", "bD", "epub", "ef", "eok", "hst", "hflag", "okh", "gT", "okg", "end"]),
         2: (["S0", "S2", "S4", "S6", "G0", "G1", "G2", "G3", "G4", "G5", "G6", "T"], ["b0", "xd", "bD", "epub", "ef", "eok", "hst", "hflag", "okh", "gT", "okg", "end"]),
         3: (["T", "K0", "J0", "J2", "J4", "J7", "snd", "J10", "J13", "kp", "last", "end"], ["b0", "xd", "bD", "epub", "ef", "eok", "hst", "hflag", "okh", "gT", "okg", "end"])}
LSETS[9] = ([], LSETS[1][1])
LSET = dict(zip("CH", LSETS[OPT["lst"]]))
def runall(ops):
    for op in ops:
        if isinstance(op, str): I(op)
        else: op()
def csq_ops(d, x, t):
    return [f"v_mul_f32 {v(t)}, {v(x+1)}, {v(x+1)}", f"v_add_f32 {v(t+1)}, {v(x)}, {v(x)}", f"v_fma_f32 {v(d)}, {v(x)}, {v(x)}, -{v(t)}", f"v_mul_f32 {v(d+1)}, {v(t+1)}, {v(x+1)}"]
def cmul_ops(d, x, y, t):
    return [f"v_mul_f32 {v(t)}, {v(x)}, {v(y)}", f"v_mul_f32 {v(t+1)}, {v(x)}, {v(y+1)}",
            f"v_fma_f32 {v(t)}, -{v(x+1)}, {v(y+1)}, {v(t)}", f"v_fma_f32 {v(d+1)}, {v(x+1)}, {v(y)}, {v(t+1)}", f"v_mov_b32 {v(d)}, {v(t)}"]
def cfma_ops(d, L, x, br, bi):
    return [f"v_fma_f32 {v(d[0])}, {v(L)}, {v(x[0])}, {v(br)}", f"v_fma_f32 {v(d[1])}, {v(L)}, {v(x[1])}, {v(bi)}",
            f"v_fma_f32 {v(d[0])}, -{v(L+1)}, {v(x[1])}, {v(d[0])}", f"v_fma_f32 {v(d[1])}, {v(L+1)}, {v(x[0])}, {v(d[1])}"]
def bf16r_ops(d, s): return [f"v_cvt_pk_bf16_f32 {v(d)}, {v(s)}, {v(s)}", f"v_and_b32 {v(d)}, 0xffff0000, {v(d)}"]
def srd(dst, lo, size):
    n = int(dst[2:dst.index(":")])
    I(f"s_mov_b64 s[{n}:{n+1}], s[{lo}:{lo+1}]"); I(f"s_mov_b32 s{n+2}, {size}"); I(f"s_mov_b32 s{n+3}, 0x20000")
def srd_sel(dst, p0, p1, size):
    n = int(dst[2:dst.index(":")])
    I(f"s_cselect_b64 s[{n}:{n+1}], s[{p1}:{p1+1}], s[{p0}:{p0+1}]"); I(f"s_mov_b32 s{n+2}, {size}"); I(f"s_mov_b32 s{n+3}, 0x20000")
def ktab(i):
    I(f"s_add_u32 {sK[i]}, {sJ0}, {i}"); I(f"s_and_b32 {sK[i]}, {sK[i]}, 7"); I(f"s_lshl_b32 {sK[i]}, {sK[i]}, 7")
def spin_guard(lbl_back, inc):
    return ([f"  s_add_u32 s15, s15, {inc}" if inc >= 0 else f"  s_bitset1_b32 s15, {-inc}"] if OPT["lst"] else []) + [f"  s_add_u32 {sSPIN}, {sSPIN}, 1", f"  s_cmp_gt_u32 {sSPIN}, 0x200000", f"  s_cbranch_scc1 {lbl_back}"]
def tag_check(who, vp, vz):
    E.wait(vm="tag"); I(f"v_readfirstlane_b32 {sNON}, {v(vp)}"); I(f"s_cmp_eq_u32 {sNON}, 0"); I(f"s_cbranch_scc1 L_slow_tag{who}"); E.label(f"L_back_tag{who}")
    slow.extend([f"L_slow_tag{who}:", "  s_sleep 1", f"  v_mov_b32 {v(vz)}, 0", f"  buffer_load_dword {v(vp)}, {v(vz)}, {SDBG}, 0 offen sc1", "  s_waitcnt vmcnt(0)",
                 f"  v_readfirstlane_b32 {sNON}, {v(vp)}"] + spin_guard(f"L_back_tag{who}", 1) +
                [f"  s_cmp_eq_u32 {sNON}, 0", f"  s_cbranch_scc1 L_slow_tag{who}", f"  s_branch L_back_tag{who}"])
signals = {}
def signal(word, val, va, vt, off):
    signals[(word, val)] = (E, E.lg_done)
    I(f"v_mov_b32 {v(vt)}, {val}"); DS(f"ds_write_b32 {v(va)}, {v(vt)} offset:{off}", "sig")
nchk = [0]
def chk_issue(va, vt, off):
    nchk[0] += 1; DS(f"ds_read_b32 {v(vt)}, {v(va)} offset:{off}", f"chk{nchk[0]}"); return f"chk{nchk[0]}"
def chk_test(tag, val, va, vt, off, inc):
    E.wait(lg=tag)
    I(f"v_cmp_gt_u32 vcc, {val}, {v(vt)}"); I(f"s_cbranch_vccnz L_slow_{tag}"); E.label(f"L_back_{tag}")
    slow.extend([f"L_slow_{tag}:", f"  ds_read_b32 {v(vt)}, {v(va)} offset:{off}", "  s_waitcnt lgkmcnt(0)", f"  v_cmp_gt_u32 vcc, {val}, {v(vt)}"]
                + spin_guard(f"L_back_{tag}", inc) + [f"  s_cbranch_vccnz L_slow_{tag}", f"  s_branch L_back_{tag}"])
def chk_spin(val, va, vt, off):
    nchk[0] += 1; lbl = f"L_spin{nchk[0]}"
    E.label(lbl)
    DS(f"ds_read_b32 {v(vt)}, {v(va)} offset:{off}", lbl); I(f"s_sub_u32 {sSP2}, {sSP2}, 1"); I("s_cbranch_scc1 L_end")
    E.wait_all(lg=True)
    I(f"v_cmp_gt_u32 vcc, {val}, {v(vt)}"); I(f"s_cbranch_vccnz {lbl}")
def dump_stamps(who):
    if not OPT["lst"]: return
    E.wait_all(vm=True); lstamp("end"); E.wait_all(lg=True)
    n = len(lnames[who])
    for k in range(n): I(f"v_writelane_b32 v2, s{24+2*k}, {k}")
    I(f"v_writelane_b32 v2, {n}, 61"); I("v_writelane_b32 v2, s15, 60"); I("v_writelane_b32 v2, s14, 63")
    I(f"s_lshl3_add_u32 {sT0}, s2, {sW_}"); I(f"s_add_u32 {sT0}, {sT0}, {4 if who == 'H' else 0}"); I(f"s_lshl_b32 {sT0}, {sT0}, 8"); I(f"s_add_u32 {sT0}, {sT0}, {WS_ST}")
    I(f"v_lshlrev_b32 v3, 2, {vLANE}")
    VM(f"buffer_store_dword v2, v3, {SWS}, {sT0} offen")

NU = OPT["NU"]; assert NU == 2

BASE_OF = {}
for i in range(8): BASE_OF[f"X{i}"] = (2 * (i & 3) * U8, 16384)
for i, u in enumerate(range(8, 16)): BASE_OF[f"S{i}"] = (u * U8, 8192)
for i, u in enumerate([0, 3, 6, 9, 0, 3, 12, 15]): BASE_OF[f"G{i}"] = (u * U8, 24576)
DUMPS = [16 * U8, 12 * U8]
BASE_OF["DUMP0"] = (DUMPS[0], 16384); BASE_OF["DUMP1"] = (DUMPS[1], 16384); BASE_OF["XE"] = (XE, 8192); BASE_OF["HS"] = (HS, 10432); BASE_OF["OFT"] = (HS, 8192)
slot_of = {"C1": 3, "C2": 4, "C3": 5, "W1": 0, "W2": 1, "W3": 2, "C0": 6, "W0": 7, "W4": 8, "W5": 3}
RT_ = {"C0": 168, "W0": 184, "W4": 200}
ND = OPT["nd"]
CO = ["C1", "C2", "C3", "C0"]; WO = ["W1", "W2", "W3", "W0", "W4", "W5"]
SK = [["W1"], ["W1", "W4"], []][OPT["skw"]]
jobs = [(t, "sk") for t in CO[:4-ND]] + [(t, "s") for t in CO[4-ND:]] + [(t, "sk" if t in SK else "s") for t in WO] + [(t, "k") for t in WO if t not in SK] + [(t, "k") for t in CO[4-ND:]]
NJ1 = 10
def chunk_items(ch):
    i = ch[1:]
    if ch[0] == "S": return [f"S{i}", f"S{int(i)+1}"]
    return {"K": ["XE"] if ch == "KX" else [], "G": [f"G{i}"]}[ch[0]]
RED = slot_of["C2"] * 16384; assert ND <= 2
CHUNKS = ["S0", "S2", "S4", "S6"] + [f"G{i}" for i in range(4)] + ["KX", "K0", "Kp"]
PHV = {c: k + 1 for k, c in enumerate(CHUNKS)}
CEV = {"G0": 25, "G1": 49, "G2": 74, "G3": 99, "G4": 122, "G5": 145, "U0": OPT["u0s"]}
STAGES = ["Xi", "X", "S3", "S5", "dump"] + sorted(CEV, key=CEV.get) + ["T", "gsa", "gst", "pj"]
PCV = {c: k + 1 for k, c in enumerate(STAGES)}
for n, s in slot_of.items(): BASE_OF[n] = (s * 16384, 16384)

class Item: pass
items = {}
for n, (b, sz) in BASE_OF.items():
    it = Item(); it.name, it.base, it.size = n, b, sz; it.first_bar = None; it.last_read = None; it.reader = None; items[n] = it
bar_names = []
def note_read(name):
    it = items[name]
    if it.first_bar is None: it.first_bar = len(E.barriers)
    it.last_read = len(E.lg); it.last_bar = len(E.barriers); it.reader = E

E = E0
E.label(f"{NAME}_kernel")
I("s_cmp_ge_u32 s2, 256"); I("s_cbranch_scc1 L_end")
I("s_load_dwordx16 s[16:31], s[0:1], 0")
I("s_getpc_b64 s[98:99]"); I(f"s_bfe_u32 {sT0}, s2, 0x20003"); I("v_lshrrev_b32 v80, 3, v0"); I(f"v_lshl_add_u32 v80, v80, 2, {sT0}"); I("v_lshlrev_b32 v80, 7, v80")
VM("global_load_dword v95, v80, s[98:99]", "code")
I("s_load_dwordx16 s[32:47], s[0:1], 64")
I("s_memrealtime s[14:15]")
I("v_lshrrev_b32 v80, 6, v0"); I(f"v_and_b32 {vLANE}, 63, v0"); I(f"v_readfirstlane_b32 {sT3}, v80")
sR8 = "s19" if False else None
if OPT["map"] == 0:
    I(f"s_bfe_u32 {sT0}, s2, 0x20001"); I(f"s_lshr_b32 {sCL}, s2, 6"); I(f"s_lshl2_add_u32 {sC_}, {sT0}, {sCL}")
    I(f"s_bfe_u32 {sGL}, s2, 0x30003"); I(f"s_lshl1_add_u32 {sJ0}, {sCL}, {sGL}")
    I(f"s_and_b32 {sGH}, s2, 1"); I(f"s_lshl3_add_u32 {sG_}, {sGH}, {sGL}"); I(f"s_mov_b32 {sQW}, {sGL}")
    if OPT["xj"]: I(f"s_add_u32 {sJ0}, {sJ0}, {sT0}")
else:
    I(f"s_and_b32 {sT0}, s2, 1"); I(f"s_lshr_b32 {sQW}, s2, 5"); I(f"s_lshl3_add_u32 {sC_}, {sT0}, {sQW}")
    I(f"s_bfe_u32 {sCL}, s2, 0x20003"); I(f"s_bfe_u32 {sT0}, s2, 0x20001"); I(f"s_lshl2_add_u32 {sG_}, {sT0}, {sCL}")
    I(f"s_and_b32 {sGL}, {sG_}, 7"); I(f"s_lshr_b32 {sGH}, {sG_}, 3"); I(f"s_lshl1_add_u32 {sJ0}, {sCL}, {sQW}")
for i in range(2): ktab(i)
I(f"s_and_b32 {sW_}, {sT3}, 3"); I(f"s_lshl_b32 {sM4}, {sW_}, 12")
I(f"v_lshrrev_b32 v81, 3, {vLANE}"); I(f"v_and_b32 v82, 7, {vLANE}")
I("v_lshrrev_b32 v84, 1, v81"); I("v_xor_b32 v83, v82, v84"); I("v_lshlrev_b32 v83, 4, v83"); I("v_xor_b32 v85, 64, v83")
I(f"v_lshlrev_b32 v78, 2, {vLANE}"); I("v_mov_b32 v79, 0"); I(f"v_add_u32 v78, {PRG}, v78"); DS("ds_write_b32 v78, v79", "prz")
I(f"s_mov_b32 {sSP2}, 0x1000000"); I(f"s_and_b32 {sCW}, {sCL}, {3 if OPT['wr'] == 4 else 1}")
I(f"s_cmp_ge_u32 {sT3}, 4"); I("s_cbranch_scc1 L_helper")

E = EC
vP1 = [2, 3, 4, 5]; vGT = 6; vNM = 7; vR2 = 0
FB0, NFB = 8, 6
ACCG = [32, 64, 96]; ACCU = [48, 80, 112]; ACC_R, ACC_I = 96, 112
XF = 128
vXo = [86, 87, 88, 89]
def cbar(name, vm=(), lg=()):
    E.wait(vm=vm, lg=lg); E.barrier(); bar_names.append(name)
I("v_and_b32 v84, 4, v81"); I("v_and_b32 v80, 3, v81"); I("v_lshl_add_u32 v84, v84, 2, v80")
I(f"s_lshl2_add_u32 {sT0}, {sC_}, {sW_}"); I(f"s_lshl_b32 {sT0}, {sT0}, 5")
I(f"v_add_lshl_u32 v84, v84, {sT0}, 10")
I(f"v_add_u32 {v(vXo[0])}, v84, v83"); I(f"v_add_u32 {v(vXo[1])}, v84, v85")
I(f"v_add_u32 {v(vXo[2])}, 6144, {v(vXo[0])}"); I(f"v_add_u32 {v(vXo[3])}, 9216, {v(vXo[1])}"); I(f"v_add_u32 {v(vXo[1])}, 3072, {v(vXo[1])}")
I("s_mov_b32 s50, 2097152"); I("s_mov_b32 s51, 0x20000")
E.wait_all(lg=True)
I("s_mov_b64 s[48:49], s[16:17]")
def X_issue(i):
    I(f"s_add_u32 m0, {sM4}, {items[f'X{i}'].base}")
    for q in range(4): VM(f"buffer_load_dwordx4 {v(vXo[q])}, {SX}, {sK[i]} offen" + (f" offset:{q*1024}" if q else "") + " lds", f"X{i}")
X_issue(0); X_issue(1)
if OPT["prio"] == 1: I("s_setprio 1")
for i in range(2, 8): ktab(i)
X_issue(2)
if OPT["x3"]: X_issue(3)
cbar("b0")
I(f"v_and_b32 v90, 31, {vLANE}"); I(f"v_lshrrev_b32 v91, 5, {vLANE}")
I("v_bfe_u32 v92, v90, 1, 3"); I("v_xor_b32 v92, v92, v91"); I("v_lshlrev_b32 v92, 4, v92"); I("v_lshl_add_u32 v92, v90, 7, v92")
I(f"v_add_u32 {v(vP1[0])}, {sM4}, v92")
for s in range(1, 4): I(f"v_xor_b32 {v(vP1[s])}, {32*s}, {v(vP1[0])}")
I(f"s_mov_b32 {sC11}, 0x3f803f80"); I(f"s_mov_b32 {sC10}, 0x00003f80"); I(f"s_mov_b32 {sC01}, 0x3f800000")
for r in range(64, 72): I(f"v_mov_b32 v{r}, 0")
srd(SWS, 46, WS_SIZE); srd(SOUT, 42, 4194304)
I(f"s_cmp_ge_u32 {sW_}, 2"); srd_sel(SG, 36, 38, 1409024); srd_sel(SC, 26, 28, 524288); I(f"s_mul_i32 {sM6}, {sW_}, 6144"); srd(SWD, 40, 1409024)
I(f"s_mov_b32 {sSPIN}, 0"); I("s_mov_b32 s15, 0"); I("s_mov_b64 s[22:23], s[32:33]"); I("s_mov_b64 s[20:21], s[40:41]")
I(f"v_bfe_u32 v92, {vLANE}, 2, 2"); I("v_lshl_add_u32 v92, v91, 3, v92"); I(f"v_mul_u32_u24 {v(vGT)}, 192, v92")
I(f"v_and_b32 v93, 16, {vLANE}"); I(f"v_lshl_add_u32 {v(vGT)}, v93, 1, {v(vGT)}")
I(f"v_and_b32 v93, 1, {vLANE}"); I(f"v_lshl_add_u32 {v(vGT)}, v93, 4, {v(vGT)}")
I(f"v_and_b32 v93, 2, {vLANE}"); I(f"v_lshl_add_u32 {v(vGT)}, v93, 2, {v(vGT)}")
I(f"s_lshl_b32 {sT0}, {sW_}, 7"); I(f"s_add_u32 {sT0}, {sT0}, {RTAB}")
I("v_bfe_u32 v93, v90, 2, 1"); I("v_lshlrev_b32 v94, 4, v93"); I("v_lshrrev_b32 v93, 3, v90"); I("v_lshl_add_u32 v94, v93, 2, v94")
I("v_and_b32 v93, 3, v90"); I("v_add_u32 v94, v94, v93"); I(f"v_lshl_add_u32 v94, v94, 2, {sT0}")
FR = dict(r=72, t=73, v=74, w=75)
I(f"v_and_b32 v72, 3, {vLANE}"); I("v_lshlrev_b32 v72, 2, v72"); I(f"v_add_u32 v72, {PRG}, v72")
I(f"s_lshl_b32 {sT0}, {sW_}, 2"); I(f"s_add_u32 {sT0}, {sT0}, {PRG}"); I(f"v_mov_b32 v75, {sT0}")
def csig(st): signal("PC", PCV[st], FR["w"], FR["v"], 0)
for i in range(8):
    it = items[f"X{i}"]
    E.wait(vm=it.name)
    for s in range(4):
        DS(f"ds_read_b128 {v(XF + 16*i + 4*s, 4)}, {v(vP1[s])} offset:{it.base & 0xffff}", f"xr{i}_{s}"); note_read(it.name)
    if not OPT["x3"] and i + 3 < 8: X_issue(i + 3)
    if OPT["x3"] and i + 4 < 8: E.wait(lg=f"xr{i}_3"); X_issue(i + 4)
    if i == OPT["xi"]: csig("Xi")
    if i == 4 and OPT["mw"]:
        I(f"s_cmp_eq_u32 {sW_}, 1"); I("s_cselect_b64 s[52:53], s[38:39], s[36:37]"); I(f"s_cmp_eq_u32 {sW_}, 2"); I("s_cselect_b64 s[52:53], s[40:41], s[52:53]")
        I(f"s_cmp_eq_u32 {sW_}, 3"); I("s_cselect_b64 s[52:53], s[26:27], s[52:53]"); I("s_mov_b32 s54, 1409024"); I("s_cselect_b32 s54, 524288, s54"); I("s_mov_b32 s55, 0x20000")
        I(f"s_cselect_b32 {sT0}, 16, 43"); I(f"s_mul_i32 {sT1}, s2, {sT0}"); I(f"s_sub_u32 {sT0}, {sT0}, 1"); I(f"v_min_u32 v76, {sT0}, {vLANE}"); I(f"v_add_lshl_u32 v76, v76, {sT1}, 7")
        VM("buffer_load_dword v77, v76, s[52:55], 0 offen", "mw")
        I("s_mov_b64 s[52:53], s[28:29]"); I(f"s_cmp_eq_u32 {sW_}, 3"); I("s_cselect_b32 s54, 524288, 0")
        VM("buffer_load_dword v77, v76, s[52:55], 0 offen", "mw")
    for s in range(4):
        E.wait(lg=f"xr{i}_{s}")
        for d in range(4):
            x = v(XF + 16*i + 4*s + d)
            I(f"v_dot2c_f32_bf16 v{64+d}, {sC11}, {x}"); I(f"v_dot2c_f32_bf16 v{68+d}, {x}, {x}")
    lstamp(f"X{i}")
csig("X"); gchk = {"S0": chk_issue(FR["r"], FR["t"], 16)}
I("v_add_f32 v64, v64, v65"); I("v_add_f32 v66, v66, v67"); I("v_add_f32 v68, v68, v69")
I("v_add_f32 v64, v64, v66"); I("v_add_f32 v70, v70, v71"); I("v_mov_b32 v65, v64"); I("v_add_f32 v68, v68, v70"); I("v_mov_b32 v69, v68")
I("v_permlane32_swap_b32 v64, v65"); I("v_permlane32_swap_b32 v68, v69")
I("v_add_f32 v64, v64, v65"); I("v_mul_f32 v64, 0x3b000000, v64")
runall(bf16r_ops(65, 64)); I(f"v_sub_f32 {v(vNM)}, 0, v65")
I(f"s_sub_u32 {sT0}, 65536, {sM4}")
for s in range(4): I(f"v_add_u32 {v(vP1[s])}, {sT0}, {v(vP1[s])}")
win = {"p1": 65536, "c1": 0, "gt": 0, "lin": 0, "wt": 0}
def burst(i):
    for d in range(16):
        x = v(XF + 16*i + d)
        I(f"v_dot2_f32_bf16 v{32+2*d}, {x}, {sC10}, {v(vNM)}"); I(f"v_dot2_f32_bf16 v{33+2*d}, {x}, {sC01}, {v(vNM)}")
qC, qB = [], []
marks = set()
def run_op(op):
    if isinstance(op, tuple):
        if op[0] == "hold": holdq[0] = op[1]
        else: marks.add(op[1])
    elif isinstance(op, str): I(op)
    else: op()
def need_mark(m):
    while m not in marks:
        q = next(q for q in (qC, qB) if ("mark", m) in [o for o in q if isinstance(o, tuple)])
        run_op(q.pop(0))
def cvt_ops(i):
    ops = []
    for d in range(16):
        ops.append(f"v_cvt_pk_bf16_f32 {v(XF + 16*i + d)}, v{32+2*d}, v{33+2*d}")
        if d & 3 == 3: ops.append(("mark", f"cen{4*i + (d>>2)}"))
    return ops
B = ["v_add_f32 v68, v68, v69", "v_mul_f32 v68, 0x3b000000, v68", "v_fma_f32 v68, -v64, v64, v68", "v_max_f32 v68, 0, v68"]
B += bf16r_ops(68, 68) + ["v_add_f32 v68, 0x3727c5ac, v68"] + bf16r_ops(68, 68) + ["v_sqrt_f32 v68, v68", lambda: DS("ds_write_b32 v94, v65 offset:512", "tabw")]
B += bf16r_ops(68, 68) + ["v_rcp_f32 v68, v68", lambda: DS("ds_write_b32 v94, v68", "tabw"), f"v_mul_f32 {v(vR2)}, v68, v68", ("mark", "tab")]
qB.extend(B)

class Slot: pass
slots = []
def add_slot(chunk, reads, mfma, needs=()):
    s = Slot(); s.chunk, s.reads, s.mfma, s.needs = chunk, reads, mfma, needs; slots.append(s)
for i in range(8):
    for s in range(4):
        f = 4*i + s
        for comp in range(2):
            acc = v(ACC_I if comp else ACC_R, 16)
            add_slot(f"S{i}", [("p1", f"S{i}", s, comp * 4096)], lambda b, f=f, acc=acc: f"{MF} {acc}, {v(XF+4*f,4)}, {v(b[0],4)}, {acc if f else 0}", needs=[f"cen{f}"])
P2 = len(slots)
order = [(0, s, u, m) for s in range(4) for u in range(2) for m in range(2)] + [(0, s, 2, m) for s in range(4) for m in range(2)]
order += [(i, s, u, m) for i in range(1, 8 - NU) for s in range(4) for u in range(3) for m in range(2)]
order += [(i, s, u, m) for u in range(3) for i in range(8 - NU, 8) for s in range(4) for m in range(2)]
unit_done = {}
for (i, s, u, m) in order:
    f = 4*i + s; acc = v((ACCU if m else ACCG)[u], 16)
    nd = (["tab"] if f == 0 else []) + (["dumped"] if (f, u) == (0, 2) else [])
    add_slot(f"G{i}", [("gt", f"G{i}", m * 12288 + 16*s*192 + 64*u)], lambda b, f=f, acc=acc: f"{MF} {acc}, {v(b[0],4)}, {v(XF+4*f,4)}, {acc if f else 0}", needs=nd)
    unit_done[u] = len(slots) - 1
P3 = len(slots)
ACC3 = 32; BASE = 48
vHST = 138; vDSK = 140; vHR, vWT, vXR, vTAB3, vOUT = 128, 129, 130, 131, 132
sHG = ["s16", "s17", "s18"]
EPO = 144; vC1 = [134, 135, 136, 137]; vC2 = [2, 3, 4, 5]
cGo = [128, 129, 130]; cCo = [132, 133, 134, 135]
ACC4 = 48; ACCS = [64, 80]
AQ = list(range(172, 256, 4)) + list(range(108, 128, 4))
BASE = 144; PX = 108
P3BUFS = list(range(8, 32, 4)) + [96, 100, 104]
vA = 139; vWT2 = 133; vA2 = 7; vPB = 0
aloads = []; started = set()
for n, (t, hv) in enumerate(jobs):
    if n == NJ1: P4 = len(slots)
    for s in range(4):
        idx = {}
        for h_ in hv: idx[h_] = len(aloads); aloads.append((f"a{len(aloads)}", AQ[len(aloads) % len(AQ)], t, s, h_, s == 0 and h_ == hv[0]))
        for a_ in range(2):
            rd = ("c1", t, s, a_) if t[0] == "C" else ("wt", t, 16*s*128, a_)
            for k_, h_ in enumerate(hv):
                r_ = ([ACC3, ACC4] if h_ == "k" else ACCS)[a_]; acc = v(r_, 16)
                z = r_ not in started; started.add(r_)
                tag, q = aloads[idx[h_]][:2]
                add_slot(f"J{n}", [rd] if k_ == 0 else [], lambda b, q=q, acc=acc, z=z: f"{MF} {acc}, {v(q,4)}, {v(b[0],4)}, {0 if z else acc}")
                slots[-1].atag = tag; slots[-1].arel = idx[h_] + 1 if a_ == 1 else None
M = len(slots)
first_slot = {}
for m, s in enumerate(slots): first_slot.setdefault(s.chunk, m)
pool = [FB0 + 4*k for k in range(NFB)]
def newfb(): return pool.pop(0)
def set_win(kind, regs, base, span):
    cur = win[kind]
    if not (cur <= base and base + span <= cur + 65536):
        new = min((base // 49152) * 49152, MISC - 65536)
        if not (new <= base and base + span <= new + 65536): new = base
        for r in regs: I(f"v_add_u32 {v(r)}, {(new - cur) & 0xffffffff}, {v(r)}")
        win[kind] = cur = new
    return cur
def emit_reads(m):
    s = slots[m]; s.bufs = []; s.tags = []; s.own = bool(s.reads)
    if not s.reads: s.bufs = slots[m-1].bufs
    for rd in s.reads:
        b = newfb(); s.bufs.append(b); tag = f"rd{m}_{rd[0]}"; s.tags.append(tag)
        kind, it = rd[0], items[rd[1]]
        if kind == "p1":
            w = set_win(kind, vP1, it.base, it.size); DS(f"ds_read_b128 {v(b,4)}, {v(vP1[rd[2]])} offset:{it.base - w + rd[3]}", tag)
        elif kind == "c1":
            w = set_win(kind, vC1 + vC2, it.base, it.size); DS(f"ds_read_b128 {v(b,4)}, {v((vC2 if rd[3] else vC1)[rd[2]])} offset:{it.base - w}", tag)
        else:
            regs, pitch = ([vGT], 192) if kind == "gt" else ([vWT, vWT2], 128)
            reg = regs[rd[3]] if kind == "wt" else vGT
            w = set_win(kind, regs, it.base, it.size)
            DS(f"ds_read_b64_tr_b16 {v(b,2)}, {v(reg)} offset:{it.base - w + rd[2]}", tag)
            DS(f"ds_read_b64_tr_b16 {v(b+2,2)}, {v(reg)} offset:{it.base - w + rd[2] + 4*pitch}", tag)
        note_read(it.name)
events = {}
def at(m, fn): events.setdefault(m, []).append(fn)
post = {8*i + 7: (lambda i=i: (need_mark(f"cen{4*i+7}"), burst(i + 2), qC.extend(cvt_ops(i + 2)))) for i in range(6)}
at(52, lambda: qB.extend([f"v_lshlrev_b32 {v(vNM)}, 6, {vLANE}", f"v_bfe_u32 v64, {vLANE}, 1, 2", f"v_lshl_add_u32 {v(vNM)}, v64, 4, {v(vNM)}",
                          f"v_add_u32 {v(vNM)}, {sM4}, {v(vNM)}", f"v_add_u32 {v(vNM)}, {DUMPS[1]}, {v(vNM)}", ("mark", "dadr")]))
dtag = {}
at(P2 - 1, lambda: dtag.__setitem__(0, chk_issue(FR["r"], FR["t"], 0)))
def dump_op(j, comp):
    need_mark("dadr")
    if (j, comp) == (0, 1): chk_test(dtag[0], PCV["S5"], FR["r"], FR["t"], 0, -12)
    if j and comp == 0: I(f"v_xor_b32 {v(vNM)}, {16 * (j ^ (j - 1))}, {v(vNM)}")
    DS(f"ds_write_b128 {v(vNM)}, {v((ACC_I if comp else ACC_R) + 4*j, 4)} offset:{DUMPS[comp] - DUMPS[1]}", "dump")
    if (j, comp) == (3, 1): marks.add("dumped")
def dump64(j, comp, hf):
    need_mark("dadr")
    if j and comp == 0 and hf == 0: I(f"v_xor_b32 {v(vNM)}, {16 * (j ^ (j - 1))}, {v(vNM)}")
    if comp == 0 and hf == 0: I(f"v_add_u32 {v(vP1[1])}, {DUMPS[0]}, {v(vNM)}")
    DS(f"ds_write_b64 {v(vNM if comp else vP1[1])}, {v((ACC_I if comp else ACC_R) + 4*j + 2*hf, 2)} offset:{8*hf}", "dump")
    if (j, comp, hf) == (3, 1, 1): marks.add("dumped")
if OPT["d64"]:
    for k in range(16): at(P2 + (k * 15) // 16, lambda k=k: dump64(k >> 2, (k >> 1) & 1, k & 1))
else:
    for k in range(8): at(P2 + 1 + (k * OPT["dsp"]) // 2, lambda k=k: dump_op(k >> 1, k & 1))
def fr_move():
    I(f"v_mov_b32 {v(vP1[0])}, v72"); I(f"v_mov_b32 {v(vP1[3])}, v75"); FR.update(r=vP1[0], t=vP1[1], v=vP1[2], w=vP1[3])
at(P2 - 2, fr_move)
if OPT["mw"]: at(P2 - 3, lambda: E.wait(vm="mw"))
at(31, lambda: csig("S3")); at(47, lambda: csig("S5"))
at(P2 + OPT["bd"], lambda: (need_mark("dumped"), E.wait(lg=["dump", "tabw"]), csig("dump")))
LAND = {"G2": ["G4"], "G3": ["G5", "G6"], "G4": ["G7"]}
for st, sl in CEV.items(): at(P2 + sl, lambda st=st: (E.wait(vm=LAND.get(st, []), lg=["cof2"] if st == "G1" else []), csig(st)))
GATE = {c: (16, PHV[c]) for c in CHUNKS[:8]}
GATE["S0"] = (16, PHV["S2"]); GATE["S4"] = (16, PHV["S6"])
GATE.update({"G4": (0, PCV["G2"]), "G5": (0, PCV["G3"]), "G6": (0, PCV["G4"])})
del GATE["S2"], GATE["S6"]
for c in list(GATE)[1:]: at(first_slot[c] - OPT["D"] - 6, lambda c=c: gchk.__setitem__(c, chk_issue(FR["r"], FR["t"], GATE[c][0])))
cplaced = []
cWo = [168, 169, 170, 171]
def c_offsets():
    I(f"s_lshl_b32 {sT0}, {sW_}, 11"); I(f"s_add_u32 {sT0}, {sT0}, {HS}"); I(f"v_lshl_add_u32 v136, {vLANE}, 4, {sT0}")
    DS("ds_read_b128 v[128:131], v136", "cof"); note_read("OFT")
at(P2 + 24, c_offsets)
at(P2 + 45, lambda: (DS("ds_read_b128 v[132:135], v136 offset:1024", "cof2"), note_read("OFT")))
at(P2 + 76, lambda: qB.extend([lambda: E.wait(lg="cof2"), f"v_readfirstlane_b32 {sNON}, v135", "v_mov_b32 v168, v134"] + [f"v_add_u32 v{168+q}, {7168*q}, v134" for q in range(1, 4)]
                              + ["v_add_u32 v134, 14336, v132", "v_add_u32 v135, 14336, v133"] + q_setup() + [("mark", "cw")]))
def c_load(name, ta, step2, gate=None):
    k = name[0]; i = int(name[1:]); base = items[name].base
    tag = {}
    if gate:
        off, val = (0, PCV[gate]) if gate in PCV else (32, gate)
        at(P2 + ta - 6, lambda: tag.__setitem__(0, chk_issue(FR["r"], 137, off)))
    n = 6 if k == "G" else 4
    for q in range(n):
        def op(q=q):
            if q == 0:
                E.wait(lg="cof")
                if gate: chk_test(tag[0], val, FR["r"], 137, off, -(13 + len(cplaced))); cknown.append(("PC" if off == 0 else "PD", val))
                cplaced.append((name, list(cknown)))
            if k == "G":
                if q % 3 == 0:
                    I(f"s_add_u32 m0, {sM6}, {base + 1024*q}")
                    I(f"s_mul_i32 {sSO}, {sK[i]}, 1376" if q == 0 else f"s_add_u32 {sSO}, {sSO}, {16*2752}")
                VM(f"buffer_load_dwordx4 {v(cGo[q%3])}, {SG}, {sSO} offen" + (f" offset:{(q%3)*1024}" if q % 3 else "") + " lds", name)
            else:
                if q == 0:
                    need_mark("cw"); I(f"s_add_u32 m0, {sM4}, {base}")
                    if k == "C": q_h(sSO, i); I(f"s_lshl_b32 {sSO}, {sSO}, 7")
                    else: w_soff(sSO, i, "s19")
                VM(f"buffer_load_dwordx4 {v((cCo if k == 'C' else cWo)[q])}, {SC if k == 'C' else SWD}, {sSO} offen" + (f" offset:{q*1024}" if q else "") + " lds", name)
        at(P2 + ta + (q * step2) // 2, op)
cknown = []
c_load("G4", 37, 5, "G0"); c_load("G6", 52, 4); c_load("G5", 64, 4, "G1"); c_load("G7", 77, 5); c_load("C1", 93, 4)
c_load("C2", OPT["c1"], 4); c_load("C3", OPT["c1"] + 8, 4);
if OPT["wl"] < 3: c_load("W1", 141, 4)
if OPT["wl"] < 2: c_load("W2", 156, 3, "G5"); c_load("W3", 162, 3)
def st_addr():
    o = [f"s_lshl2_add_u32 {sT0}, {sC_}, {sW_}", f"s_mul_i32 {sT0}, {sT0}, {152*1024}", f"v_lshl_add_u32 {v(vHST)}, {vLANE}, 4, {sT0}", f"s_lshl_b32 {sT0}, {sG_}, 11"]
    for uu in range(3):
        o += [f"s_add_u32 {sT3}, {sT0}, {65536 + 15*uu*2048}",
              lambda uu=uu: (I(f"s_cmp_lt_u32 {sG_}, {14 if uu == 2 else 15}"), I(f"s_cselect_b32 {sHG[uu]}, {sT3}, 0x40000000"))]
    o += [f"s_and_b32 {sT1}, {sW_}, 1", f"s_lshr_b32 {sT2}, {sW_}, 1", f"s_lshl1_add_u32 {sT0}, {sC_}, {sGH}", f"s_lshl1_add_u32 {sT0}, {sT0}, {sT2}",
          f"s_mul_i32 {sT0}, {sT0}, {152*1024}", f"s_lshl_b32 {sT3}, {sT1}, 12", f"s_add_u32 {sT0}, {sT0}, {sT3}", f"v_lshl_add_u32 {v(vA)}, {vLANE}, 4, {sT0}",
          f"v_lshlrev_b32 {v(vDSK)}, 16, v131",
          f"s_mul_i32 {sT0}, {sGH}, {4*152*1024}", f"s_sub_u32 {sT0}, {2*152*1024}, {sT0}", f"v_add_u32 {v(vA2)}, {sT0}, {v(vA)}", ("mark", "sta1")]
    return o
def st_addr2():
    o = [f"s_and_b32 {sT1}, {sW_}, 1", f"s_lshr_b32 {sT2}, {sW_}, 1", f"v_lshrrev_b32 v141, 5, {vLANE}", f"v_and_b32 v143, 31, {vLANE}"]
    o += [f"s_lshl1_add_u32 {sT3}, {sGL}, {sT1}"]
    o += [f"s_lshl_b32 {sT3}, {sT3}, 7", f"s_lshl1_add_u32 {sT0}, {sGH}, {sT2}", f"s_lshl2_add_u32 s13, {sC_}, {sT0}", "s_lshl_b32 s13, s13, 16", f"s_add_u32 s13, s13, {sT3}",
          "v_lshlrev_b32 v142, 15, v141", "v_lshl_add_u32 v142, v143, 2, v142", f"v_add_u32 {v(vOUT)}, s13, v142"]
    o += [f"s_lshl_b32 {sT0}, {sT0}, 7", f"s_add_u32 {sT0}, {sT0}, {RTAB}", f"v_lshl_add_u32 {v(vTAB3)}, v141, 6, {sT0}",
          f"s_lshl_b32 {sT0}, {sT1}, 6", f"s_lshl_b32 {sT3}, {sT2}, 12", f"s_add_u32 {sT3}, {sT3}, {sT0}", f"s_add_u32 {sT3}, {sT3}, {XE}",
          "v_lshlrev_b32 v142, 11, v141", "v_lshl_add_u32 v142, v143, 1, v142", f"v_add_u32 {v(vXR)}, {sT3}, v142",
          f"s_lshl_b32 {sT3}, {sW_}, 12", f"s_add_u32 {sT3}, {sT3}, {RED}", f"v_lshl_add_u32 {v(vHR)}, {vLANE}, 4, {sT3}"]
    o += [f"v_bfe_u32 v142, {vLANE}, 2, 2", "v_lshl_add_u32 v142, v141, 3, v142", "v_lshlrev_b32 v142, 7, v142",
          f"v_and_b32 v6, 16, {vLANE}", "v_lshl_add_u32 v142, v6, 1, v142", f"v_and_b32 v6, 3, {vLANE}", "v_lshl_add_u32 v142, v6, 3, v142",
          f"v_and_b32 v6, 8, {vLANE}", "v_lshlrev_b32 v6, 3, v6", f"v_xor_b32 v6, {sT0}, v6", f"s_lshl_b32 {sT3}, {sT1}, 13", f"v_add3_u32 {v(vWT)}, v142, v6, {sT3}", f"v_xor_b32 {v(vWT2)}, 64, {v(vWT)}"]
    o += [f"s_mul_i32 {sT0}, {sT1}, 12288", "v_bfe_u32 v142, v143, 1, 3", "v_xor_b32 v142, v142, v141", "v_lshlrev_b32 v142, 4, v142", "v_lshl_add_u32 v142, v143, 7, v142",
          f"v_add_u32 {v(vC1[0])}, {sT0}, v142"] + [f"v_xor_b32 {v(vC1[s])}, {32*s}, {v(vC1[0])}" for s in range(1, 4)] + [f"v_xor_b32 {v(vC2[s])}, 4096, {v(vC1[s])}" for s in range(4)] + [("mark", "sta")]
    return o
at(P2 + 120, lambda: qB.extend(st_addr()))
def glu_epi(u):
    ops = []; o = EPO + 8*u
    for j in range(8):
        g0, u0 = ACCG[u] + 2*j, ACCU[u] + 2*j
        ops += [f"v_mul_f32 {v(u0)}, {v(vR2)}, {v(u0)}", f"v_mul_f32 {v(u0+1)}, {v(vR2)}, {v(u0+1)}",
                f"v_mul_f32 {v(u0)}, {v(g0)}, {v(u0)}", f"v_mul_f32 {v(u0+1)}, {v(g0+1)}, {v(u0+1)}", f"v_cvt_pk_bf16_f32 {v(o+j)}, {v(u0)}, {v(u0+1)}"]
        if j & 3 == 3:
            ops.append(lambda fr=j >> 2: VM(f"buffer_store_dwordx4 {v(o + 4*fr, 4)}, {v(vHST)}, {SWS}, {sHG[u]} offen offset:{fr*1024} sc1", "gst" if u == 2 else "gsa"))
    return ops + [("mark", f"epi{u}")]
for u in range(2): at(unit_done[u] + 3, lambda u=u: qB.extend(glu_epi(u)))
def base_ops():
    ops = [f"v_mov_b32 {v(BASE+r)}, 0" for r in range(16)]
    def rdx(r): DS(f"ds_read_u16_d16_hi {v(BASE+r)}, {v(vXR)} offset:{128*r}", f"xe{r}"); note_read("XE")
    ops += [lambda r=r: rdx(r) for r in range(16)]
    R3, M3, t0, t1, p = 160, 164, 168, 169, 170
    rnd = [f"v_cvt_pk_bf16_f32 {v(p)}, {v(t0)}, {v(t1)}", f"v_lshlrev_b32 {v(t0)}, 16, {v(p)}", f"v_and_b32 {v(t1)}, 0xffff0000, {v(p)}"]
    for j in range(4):
        ops += [lambda j=j: DS(f"ds_read_b128 {v(R3,4)}, {v(vTAB3)} offset:{16*j}", f"r3{j}"), lambda j=j: DS(f"ds_read_b128 {v(M3,4)}, {v(vTAB3)} offset:{512+16*j}", f"m3{j}"),
                ("hold", 3), lambda j=j: E.wait(lg=f"m3{j}")]
        for e in (0, 2):
            r = 4*j + e
            ops += [f"v_sub_f32 {v(t0)}, {v(BASE+r)}, {v(M3+e)}", f"v_sub_f32 {v(t1)}, {v(BASE+r+1)}, {v(M3+1+e)}"] + rnd
            ops += [f"v_mul_f32 {v(t0)}, {v(t0)}, {v(R3+e)}", f"v_mul_f32 {v(t1)}, {v(t1)}, {v(R3+1+e)}"] + rnd
            ops += [f"v_mul_f32 {v(t0)}, {v(t0)}, {v(vDSK)}", f"v_mul_f32 {v(t1)}, {v(t1)}, {v(vDSK)}"] + rnd
            ops += [f"v_add_f32 {v(BASE+r)}, {v(BASE+r)}, {v(t0)}", f"v_add_f32 {v(BASE+r+1)}, {v(BASE+r+1)}, {v(t1)}"]
    return ops + [("mark", "base")]
holdq = [0]

def segment(lo, hi, Dof, lim, pre_bar):
    rn = lo; held = []
    for m in range(lo - 1, hi):
        c0 = E.count + E.nops
        if m >= lo:
            s = slots[m]
            for n in s.needs: need_mark(n)
            tags = list(s.tags)
            if m % 2 == 0 and m + 1 < hi: tags += slots[m+1].tags
            E.wait(vm=[s.atag] if m >= P3 else [], lg=tags)
            I(s.mfma(s.bufs)); c0 = E.count + E.nops
            if s.own: pool.extend(held); held = list(s.bufs)
            if m >= P3:
                if s.arel: adone[0] = max(adone[0], s.arel)
                a_issue(OPT["ar"])
            if first_slot[s.chunk] == m and m < P3: lstamp(s.chunk)
            if OPT["lst"] == 9 and m >= P2 + OPT["l0"] and (m - P2 - OPT["l0"]) % OPT["ld"] == 0: LSET["C"].append(f"m{m-P2}"); lstamp(f"m{m-P2}")
            for fn in events.get(m, []): fn()
        nr = 0
        while rn < hi and rn <= m + Dof(m) and len(pool) >= len(slots[rn].reads) and (nr < 2 or m < lo):
            ch = slots[rn].chunk
            if first_slot[ch] == rn:
                if pre_bar: pre_bar(ch)
                if ch in GATE:
                    chk_test(gchk[ch], GATE[ch][1], FR["r"], FR["t"], GATE[ch][0], -(list(GATE).index(ch) + 1))
                    cknown.append(("PC" if GATE[ch][0] == 0 else "PH", GATE[ch][1]))
            emit_reads(rn); rn += 1; nr += 1
        assert rn >= min(hi, m + 3), (m, rn)
        if m >= lo:
            n = 0
            while qC and (n < 3 or isinstance(qC[0], tuple)): run_op(qC.pop(0)); n += 1
            if holdq[0]: holdq[0] -= 1
            while qB and not holdq[0] and (E.count + E.nops - c0 < lim - (m & 1) or isinstance(qB[0], tuple)): run_op(qB.pop(0))
            if m in post: post[m]()
    pool.extend(held)
retired = set()
def D2(m): return OPT["D"]
anext = [0]; aok = {"C": False, "W": False, "L": False}; adone = [0]
def a_issue(n):
    while n > 0 and anext[0] < len(aloads):
        tag, q, t, s_, h_, first = aloads[anext[0]]
        if not aok["L" if t in ("W4", "W5") else t[0]] or anext[0] - adone[0] >= min(len(AQ), OPT["al"]): return
        if first:
            i = int(t[1:])
            if t[0] == "C": q_h(sSO, i); I(f"s_lshl_b32 {sSO}, {sSO}, 13")
            else:
                q_u(sSO, i); I(f"s_cmp_eq_u32 {sSO}, 11"); I(f"s_cselect_b32 {sSO}, 0x20000, {sSO}"); I(f"s_lshl_b32 {sSO}, {sSO}, 13"); I(f"s_add_u32 {sSO}, {sSO}, 65536")
        VM(f"buffer_load_dwordx4 {v(q,4)}, {v(vA if h_ == 'k' else vA2)}, {SWS}, {sSO} offen" + (f" offset:{s_*1024}" if s_ else "") + " sc1", tag)
        anext[0] += 1; n -= 1
if OPT["ea"]:
    etag = {}
    at(P2 + OPT["ea"] - 6, lambda: etag.__setitem__(0, chk_issue(FR["r"], FR["t"], 16)))
    at(P2 + OPT["ea"], lambda: (need_mark("sta1"), chk_test(etag[0], PHV["K0"], FR["r"], FR["t"], 16, -11), aok.__setitem__("C", True)))
    for m_ in range(OPT["ea"], 192): at(P2 + m_, lambda: a_issue(1) if anext[0] < 12 else None)
burst(0); runall([o for o in cvt_ops(0) if isinstance(o, str)]); marks.update(f"cen{k}" for k in range(4)); burst(1); qC.extend(cvt_ops(1))
segment(0, P3, D2, 6, None)
PBAR = {"J0": "P0", "J2": "P1", f"J{OPT['gj']}": "P2", "J8": "P3", "J12": "P4"}
def p3bar(ch):
    if ch in PBAR:
        cbar("b" + PBAR[ch], vm=[{0: "W3", 2: "W1", 3: "C3"}[OPT["wl"]]])
        if PBAR[ch] == "P1": aok["W"] = True
        if PBAR[ch] == "P2": aok["L"] = True
    lstamp(ch)
lstamp("T"); csig("T")
need_mark("epi1")
qB.extend(glu_epi(2)); need_mark("epi2")
pool[:] = P3BUFS
sa = st_addr2()
I(f"v_mov_b32 v106, {v(FR['r'])}"); I(f"v_mov_b32 v107, {v(FR['w'])}"); FR.update(r=106, w=107, t=104, v=105); P3BUFS.pop(); pool[:] = P3BUFS
for op in sa: run_op(op)
if OPT["ep"]:
    if not OPT["ea"]: chk_spin(PHV["K0"], FR["r"], FR["t"], 16); aok["C"] = True; a_issue(OPT["a0"])
    E.wait(vm="gsa"); csig("gsa"); a_issue(12)
else:
    E.wait(vm="gsa"); csig("gsa")
    chk_spin(PHV["K0"], FR["r"], FR["t"], 16); aok["C"] = True; a_issue(12)
lstamp("K0")
qB.extend([f"s_lshl4_add_u32 {sT0}, {sC_}, {sG_}", f"s_lshl2_add_u32 {sT0}, {sT0}, {sW_}", f"s_lshl_b32 {sT0}, {sT0}, 12", f"s_add_u32 s20, {sT0}, {WS_PB}", f"s_xor_b32 s21, s20, {8 << 14}",
           "s_mov_b32 s16, 0x07060500", "s_mov_b32 s17, 0x07060501", "s_mov_b32 s18, 0x07060502", "s_mov_b32 s22, 0x07060503", "s_mov_b32 s23, 0x0c0c0400", "s_mov_b32 s53, 0x05040100", f"v_lshlrev_b32 {v(vPB)}, 4, {vLANE}"] + base_ops())
if OPT["gs"] < 0: E.wait(vm="gst"); csig("gst")
else: at(P3 + OPT["gs"], lambda: (E.wait(vm="gst"), csig("gst")))
at(first_slot[f"J{OPT['gj']}"] - OPT["D3"] - OPT["pjd"], lambda: csig("pj"))
def reduce_pair(own, other, bar):
    for j in range(4): DS(f"ds_write_b128 {v(vHR)}, {v(other+4*j,4)} offset:{1024*j}", "red" + bar)
    I(f"v_xor_b32 {v(FR['t'])}, 4096, {v(vHR)}")
    cbar(bar, lg=["red" + bar])
    for j in range(4): DS(f"ds_read_b128 {v(other+4*j,4)}, {v(FR['t'])} offset:{1024*j}", f"rr{j}")
if OPT["ovr"]:
    at(P4, lambda: (lstamp("snd"), need_mark("base")))
    for j in range(4): at(P4 + 1 + j // 2, lambda j=j: DS(f"ds_write_b128 {v(vHR)}, {v(ACCS[1]+4*j,4)} offset:{1024*j}", "redbR1"))
    def r1_mid():
        I(f"v_xor_b32 v170, 4096, {v(vHR)}"); I(f"v_mov_b32 v171, {sNON}")
        cbar("bR1", lg=["redbR1"])
        for j in range(4): DS(f"ds_read_b128 {v(ACCS[1]+4*j,4)}, v170 offset:{1024*j}", f"rq{j}")
    def r1_fin(j):
        E.wait(lg=f"rq{j}")
        for e in range(4): I(f"v_add_f32 {v(ACCS[0]+4*j+e)}, {v(ACCS[0]+4*j+e)}, {v(ACCS[1]+4*j+e)}")
        for e in range(4): I(f"v_perm_b32 {v(ACCS[0]+4*j+e)}, {v(ACCS[0]+4*j+e)}, v171, {['s16', 's17', 's18', 's22'][e]}")
        VM(f"buffer_store_dwordx4 {v(ACCS[0]+4*j,4)}, {v(vPB)}, {SWS}, s21 offen offset:{1024*j} sc1", "pst")
    at(P4 + 5, r1_mid)
    for j in range(4): at(P4 + 7 + j, lambda j=j: r1_fin(j))
else:
    segment(P3, P4, lambda m: OPT["D3"], 8, p3bar)
    lstamp("snd")
    need_mark("base")
    reduce_pair(ACCS[0], ACCS[1], "bR1")
    I(f"v_mov_b32 v171, {sNON}")
    for j in range(4):
        E.wait(lg=f"rr{j}")
        for e in range(4): I(f"v_add_f32 {v(ACCS[0]+4*j+e)}, {v(ACCS[0]+4*j+e)}, {v(ACCS[1]+4*j+e)}")
        for e in range(4): I(f"v_perm_b32 {v(ACCS[0]+4*j+e)}, {v(ACCS[0]+4*j+e)}, v171, {['s16', 's17', 's18', 's22'][e]}")
        VM(f"buffer_store_dwordx4 {v(ACCS[0]+4*j,4)}, {v(vPB)}, {SWS}, s21 offen offset:{1024*j} sc1", "pst")
pl_ld = [f"buffer_load_dwordx4 {v(80+4*j,4)}, {v(vPB)}, {SWS}, s20 offen offset:{1024*j} sc1" for j in range(4)]
at(M - 1 - OPT["pl"], lambda: [VM(t_, "pld") for t_ in pl_ld])
segment(P3 if OPT["ovr"] else P4, M, lambda m: OPT["D3"], 8, p3bar)
assert not qC and not qB and anext[0] == len(aloads)
RT2 = jobs[10][0]; RED2 = slot_of[RT2] * 16384
I(f"v_add_u32 {v(vHR)}, {(RED2 - RED) & 0xffffffff}, {v(vHR)}")
reduce_pair(ACC3, ACC4, "bR2")
for r in range(16): I(f"v_add_f32 {v(ACC3+r)}, {v(ACC3+r)}, {v(BASE+r)}")
chkp = []
for j in range(4):
    b_ = 80 + 4*j
    chkp += [f"v_perm_b32 v65, v{b_+1}, v{b_}, s23", f"v_perm_b32 v66, v{b_+3}, v{b_+2}, s23", "v_perm_b32 v65, v66, v65, s53",
             "v_xor_b32 v64, v171, v65" if j == 0 else "v_xor_b32 v65, v171, v65"] + ([] if j == 0 else ["v_or_b32 v64, v64, v65"])
chkp.append("v_cmp_ne_u32 vcc, 0, v64")
E.wait(vm="pld")
for c_ in chkp: I(c_)
I("s_cbranch_vccnz L_slow_p"); E.label("L_back_p"); lstamp("kp")
slow.extend(["L_slow_p:", ] + ["  " + t_ for t_ in pl_ld] + ["  s_waitcnt vmcnt(0)"] + ["  " + c_ for c_ in chkp] + spin_guard("L_back_p", -10) + ["  s_cbranch_vccnz L_slow_p", "  s_branch L_back_p"])
I("s_mov_b32 s16, 0xffffff00")
for r in range(16): I(f"v_and_b32 {v(80+r)}, s16, {v(80+r)}"); I(f"v_add_f32 {v(ACC3+r)}, {v(ACC3+r)}, {v(80 + r)}")
lstamp("last")
for r in range(16):
    if r % 4 == 0: E.wait(lg=f"rr{r>>2}")
    I(f"v_add_f32 {v(ACC3+r)}, {v(ACC3+r)}, {v(ACC4+r)}")
    if r % 2 == 0: I(f"s_mov_b32 {sT0}, {(r>>1)*4096}")
    VM(f"buffer_store_dword {v(ACC3+r)}, {v(vOUT)}, {SOUT}, {sT0} offen offset:{(r&1)*2048}" + (" sc1" if OPT["osc"] else ""), "out")
dump_stamps("C")
I("s_endpgm")

E = EH
E.label("L_helper")
vSo = [2, 3]; vGo = [4, 5, 6]; vCo = [8, 9, 10, 11]; vWo = [12, 13, 14, 15]; vHo = 16; vXEo = [17, 18]
vFLS, vFLP, vPOLL, vFLX = 19, 20, 21, 7
vLR, vCR, vL16, vL128, vL256, vPQ = 22, 24, 26, 28, 30, 32
vE, vE2, vP = 34, 36, 38
vEQA, vEST, vEF, vEX, vZA, vHSW, vHSR, vHSTo, vDA, vTAB = 40, 41, 42, 44, 46, 47, 48, 49, 50, 54
TR, TI, RT, TMP = 96, 112, 128, 144
vF16, vF256 = 56, 58
vQR, vQT, vQV, vQW = 160, 161, 162, 163
vDB = 164; vUP = 76
live = [items[f"X{i}"] for i in range(4, 8)]
known = {id(EC): 0, id(EH): 0}
def hplace(name):
    it = items[name]
    for o in list(live):
        if o.base < it.base + it.size and it.base < o.base + o.size:
            assert known[id(o.reader)] >= o.last_read, ("WAR", name, o.name)
            live.remove(o)
    live.append(it); return it
def adv11(s): I(f"s_add_u32 {s}, {s}, 1"); I(f"s_cmp_eq_u32 {s}, 11"); I(f"s_cselect_b32 {s}, 0, {s}")
cur_m0 = [None]
SOFF = {"G": "s16", "C": "s17", "W": "s18"}
def item_ops(name):
    k = name.rstrip("0123456789"); i = int(name[len(k):] or 0)
    so = SOFF.get(k)
    srd_, sm, voffs, pol = {"S": (SS, sM2, vSo, ""), "G": (SG, sM6, vGo, ""), "C": (SC, sM4, vCo, ""), "H": (SWS, sM4, [vHo]*4, " sc1"),
                            "W": (SWD, sM4, vWo, ""), "HG": (SWS, sM4, [vHo]*4, " sc1"), "XE": (SX, sM2, vXEo, "")}[k]
    prep = {"G": lambda: I(f"s_mul_i32 {so}, {sK[i]}, 1376"), "C": lambda: (q_h(so, i), I(f"s_lshl_b32 {so}, {so}, 7")),
            "W": lambda: w_soff(so, i, sSO)}.get(k, lambda: None)
    if so is None: so = "0" if k == "XE" else sK[i]
    ops = []
    for half in range(2 if k == "G" else 1):
        for q in range(len(voffs)):
            def op(half=half, q=q):
                if name in RT_:
                    if q == 0: prep()
                    VM(f"buffer_load_dwordx4 {v(RT_[name] + 4*q, 4)}, {v(voffs[q])}, {srd_}, {so} offen" + (f" offset:{q*1024}" if q else ""), name)
                    return
                if (half, q) == (0, 0): hplace(name)
                m0 = (sm, items[name].base + 3072 * half)
                if cur_m0[0] != m0: I(f"s_add_u32 m0, {sm}, {m0[1]}"); cur_m0[0] = m0
                if (half, q) == (0, 0): prep()
                if (half, q) == (1, 0): I(f"s_add_u32 {so}, {so}, {16*2752}")
                VM(f"buffer_load_dwordx4 {v(voffs[q])}, {srd_}, {so} offen" + (f" offset:{q*1024}" if q else "") + f"{pol} lds", name)
            ops.append(op)
    last = ops[-1]
    ops[-1] = lambda: (last(), done_issue.__setitem__(name, True))
    return ops
done_issue = {}
def issue(name, between=lambda: None):
    for op in item_ops(name): op(); between()
def unpark(name):
    hplace(name); E.wait(vm=name)
    I(f"v_add_u32 {v(vUP+1)}, {items[name].base}, {v(vUP)}")
    for q in range(4): DS(f"ds_write_b128 {v(vUP+1)}, {v(RT_[name] + 4*q, 4)} offset:{q*1024}", "up" + name)
def issue_mix(miss, *hits):
    mo = item_ops(miss); ho = [op for h in hits for op in item_ops(h)]
    for k, op in enumerate(mo):
        op()
        for h in ho[k * len(ho) // len(mo):(k + 1) * len(ho) // len(mo)]: h()
def flag_send(so): VM(f"buffer_store_dword v61, {v(vFLS)}, {SWS}, {so} offen sc1", "flag")
MBOX = {"s20": WS_FH - WS_FH, "s21": WS_FG - WS_FH, "s19": WS_FP - WS_FH}
def poll_issue(so, tag):
    if OPT["sp"]: I(f"s_load_dwordx16 s[32:47], s[72:73], {MBOX[so]} glc")
    else: VM(f"buffer_load_dword {v(vPOLL)}, {v(vFLP)}, {SWS}, {so} offen sc1", tag)
def poll_check(so, tag, inc):
    if OPT["sp"]:
        E.wait_all(lg=True)
        I(f"s_mov_b32 s74, {sNON}"); I(f"s_mov_b32 s75, {sNON}")
        for k in range(8): I(f"s_xor_b64 s[{32+2*k}:{33+2*k}], s[{32+2*k}:{33+2*k}], s[74:75]")
        for a_, b_ in ((32, 34), (36, 38), (40, 42), (44, 46), (32, 36), (40, 44), (32, 40)): I(f"s_or_b64 s[{a_}:{a_+1}], s[{a_}:{a_+1}], s[{b_}:{b_+1}]")
        I(f"s_cbranch_scc1 L_slow_{tag}"); E.label(f"L_back_{tag}")
    else:
        E.wait(vm=tag)
        I(f"v_cmp_ne_u32 vcc, {v(vFLX)}, {v(vPOLL)}"); I(f"s_cbranch_vccnz L_slow_{tag}"); E.label(f"L_back_{tag}")
    slow.extend([f"L_slow_{tag}:", f"  s_sleep {OPT['slp']}", f"  buffer_load_dword {v(vPOLL)}, {v(vFLP)}, {SWS}, {so} offen sc1", "  s_waitcnt vmcnt(0)",
                 f"  v_cmp_ne_u32 vcc, {v(vFLX)}, {v(vPOLL)}"] + spin_guard(f"L_back_{tag}", inc) + [f"  s_cbranch_vccnz L_slow_{tag}", f"  s_branch L_back_{tag}"])
I(f"s_and_b32 {sT1}, {sW_}, 1"); I(f"s_lshl1_add_u32 {sT0}, {sG_}, {sT1}"); I(f"s_lshl_b32 {sT0}, {sT0}, 4")
I(f"v_add_lshl_u32 v84, v81, {sT0}, 10")
I(f"v_add_u32 {v(vSo[0])}, v84, v83"); I(f"v_add_u32 {v(vSo[1])}, v84, v85"); I(f"v_add_u32 {v(vSo[1])}, 7168, {v(vSo[1])}")
I(f"s_lshl_b32 {sM2}, {sW_}, 11")
E.wait_all(lg=True)
I(f"s_cmp_ge_u32 {sW_}, 2"); srd_sel(SS, 22, 24, 524288); srd_sel(SG, 36, 38, 1409024); srd_sel(SC, 26, 28, 524288)
issue("S0"); issue("S1"); E.barrier()
if OPT["prio"] == 2: I("s_setprio 1")
I(f"s_lshl2_add_u32 {sT0}, {sG_}, {sW_}"); I(f"s_lshl_b32 {sT0}, {sT0}, 3"); I(f"v_add_lshl_u32 v87, v82, {sT0}, 1")
VM("global_load_ushort v70, v87, s[30:31]", "par"); VM("global_load_ushort v71, v87, s[18:19]", "par"); VM("global_load_ushort v72, v87, s[20:21]", "par")
I(f"s_lshl1_add_u32 {sT0}, {sGL}, {sT1}"); I(f"s_lshl_b32 {sT0}, {sT0}, 5"); I(f"v_and_b32 v87, 31, {vLANE}"); I(f"v_add_lshl_u32 v87, v87, {sT0}, 1")
VM("global_load_ushort v7, v87, s[32:33]", "par")
srd(SDBG, 44, 256)
I(f"s_or_b32 {sT0}, s2, {sW_}"); I("s_cbranch_scc1 L_notag")
E.begin_cond()
I("s_or_b32 s13, s14, 1"); I("s_mul_i32 s13, s13, 0x9E3779B1"); I("v_mov_b32 v93, s13"); I("v_mov_b32 v94, 0"); I("s_mov_b64 exec, 1")
VM(f"buffer_store_dword v93, v94, {SDBG}, 0 offen sc1"); I("s_mov_b64 exec, -1")
E.end_cond(); E.label("L_notag")
for i in range(2, 8): ktab(i)
srd(SX, 16, 2097152); srd(SWD, 40, 1409024); srd(SWS, 46, WS_SIZE)
if OPT["sp"]:
    I(f"s_lshl4_add_u32 {sT0}, {sC_}, {sG_}"); I(f"s_lshl_b32 {sT0}, {sT0}, 7"); I(f"s_add_u32 {sT0}, {sT0}, {WS_FH}"); I(f"s_add_u32 s72, s46, {sT0}"); I("s_addc_u32 s73, s47, 0")
def warm():
    if not OPT["tw"]: return
    srd(SOUT, 42, 4194304)
    I("v_mov_b32 v92, 0"); I(f"s_lshl2_add_u32 {sT0}, {sC_}, {sW_}"); I(f"s_mul_i32 {sT0}, {sT0}, {152*1024}")
    I(f"s_lshr_b32 {sT2}, {sG_}, 1"); I(f"s_lshl_b32 {sT2}, {sT2}, 13"); I(f"s_add_u32 {sT0}, {sT0}, {sT2}"); I(f"s_and_b32 {sT2}, {sG_}, 1"); I(f"s_lshl_b32 {sT2}, {sT2}, 11"); I(f"s_add_u32 {sT0}, {sT0}, {sT2}")
    I(f"s_mov_b32 {sT2}, {WS_EB + 0x30000}"); I(f"s_lshl_b32 {sT3}, {sC_}, 18")
    I("s_mov_b64 exec, 1")
    for sr, so in ((SG, "0"), (SC, "0"), (SWD, "0"), (SWS, sT0), (SWS, sT2), (SOUT, sT3)):
        VM(f"buffer_load_dword v95, v92, {sr}, {so} offen sc1", "tw")
    I("s_mov_b64 exec, -1")
def setup1():
    I(f"s_mov_b32 {sSPIN}, 0"); I("s_mov_b32 s15, 0"); I(f"s_mul_i32 {sM6}, {sW_}, 6144")
    I(f"s_mul_i32 {sT0}, {sT1}, {32*2752}"); I(f"s_mul_i32 {sT2}, {sG_}, 192"); I(f"s_add_u32 {sT0}, {sT0}, {sT2}")
    I(f"s_mul_i32 {sT2}, {sG_}, 3"); I(f"s_mov_b32 {sT3}, 2752"); I(f"v_mov_b32 v90, {OOB}")
    for i in range(3):
        I(f"v_add_u32 v88, {64*i}, {vLANE}"); I("v_mul_u32_u24 v86, 43691, v88"); I("v_lshrrev_b32 v86, 19, v86")
        I("v_mul_u32_u24 v87, 12, v86"); I("v_sub_u32 v87, v88, v87")
        I(f"v_mul_lo_u32 v86, v86, {sT3}"); I("v_lshl_add_u32 v86, v87, 4, v86"); I(f"v_add_u32 v86, {sT0}, v86")
        I("v_lshrrev_b32 v87, 2, v87"); I(f"v_add_u32 v87, {sT2}, v87"); I("v_cmp_gt_u32 vcc, 43, v87")
        if i: I(f"v_subrev_u32 v86, {1024*i}, v86")
        I(f"v_cndmask_b32 {v(vGo[i])}, v90, v86, vcc")
    I(f"s_lshl2_add_u32 {sT0}, {sGL}, {sT1}"); I(f"s_lshl_b32 {sT2}, {sG_}, 1"); I(f"s_sub_u32 {sT0}, {sT0}, {sT2}"); I(f"s_lshl_b32 {sT0}, {sT0}, 14")
    I(f"v_add_u32 {v(vCo[0])}, {sT0}, {v(vSo[0])}"); I(f"v_add_u32 {v(vCo[1])}, {sT0}, {v(vSo[1])}")
    I(f"v_add_u32 {v(vCo[2])}, {2*7168}, {v(vCo[0])}"); I(f"v_add_u32 {v(vCo[3])}, {2*7168}, {v(vCo[1])}")

def setup1b():
    I(f"s_and_b32 {sT1}, {sW_}, 1")
    I("v_lshlrev_b32 v86, 4, v82"); I("v_lshl_add_u32 v86, v81, 10, v86"); I(f"v_and_b32 v87, 16, {vLANE}"); I("v_lshlrev_b32 v87, 2, v87"); I("v_xor_b32 v87, v86, v87")
    I(f"s_lshl_b32 {sT3}, {sGL}, 7"); I(f"v_add_u32 {v(vWo[0])}, {sT3}, v87")
    for q in range(1, 4): I(f"v_add_u32 {v(vWo[q])}, {7168*q}, {v(vWo[0])}")
    I(f"s_lshl1_add_u32 s13, {sC_}, {sGH}"); I(f"s_lshl2_add_u32 {sT0}, s13, {sW_}"); I(f"s_lshl_b32 {sT0}, {sT0}, 14"); I(f"s_add_u32 {sT0}, {sT0}, {sT3}")
    I(f"v_add_u32 {v(vXEo[0])}, {sT0}, v86"); I(f"v_add_u32 {v(vXEo[1])}, 7168, {v(vXEo[0])}")
    I(f"s_lshr_b32 {sT2}, {sW_}, 1"); I(f"s_lshl1_add_u32 {sT0}, s13, {sT2}"); I(f"s_mul_i32 {sT0}, {sT0}, {152*1024}"); I(f"s_lshl_b32 {sT3}, {sT1}, 12"); I(f"s_add_u32 {sT0}, {sT0}, {sT3}")
    I(f"v_lshl_add_u32 {v(vHo)}, {vLANE}, 4, {sT0}")
    I(f"s_cmp_eq_u32 {sW_}, 0"); I(f"s_cselect_b32 {sT2}, 16, 0"); I(f"v_cmp_gt_u32 vcc, {sT2}, {vLANE}")
    I(f"s_lshl_b32 {sT0}, {sC_}, 11"); I(f"s_lshl2_add_u32 {sT3}, {sG_}, {sT0}"); I(f"v_lshl_add_u32 v86, {vLANE}, 7, {sT3}")
    I(f"v_cndmask_b32 {v(vFLS)}, v90, v86, vcc")
    I(f"s_lshl_b32 {sT3}, {sG_}, 7"); I(f"s_add_u32 {sT3}, {sT3}, {sT0}"); I(f"v_lshl_add_u32 v86, {vLANE}, 2, {sT3}")
    I(f"v_cndmask_b32 {v(vFLP)}, v90, v86, vcc"); I(f"v_cndmask_b32 {v(vFLX)}, 0, -1, vcc")
    I(f"s_mov_b32 s20, {WS_FH}"); I(f"s_mov_b32 s21, {WS_FG}")

def setup2():
    o = []
    A = o.append
    A(f"s_lshl_b32 {sT0}, {sW_}, 10"); A(f"s_add_u32 {sT0}, {sT0}, {EQ}"); A(f"v_lshl_add_u32 {v(vEQA)}, {vLANE}, 3, {sT0}")
    A("v_mov_b32 v88, 0"); A("v_mov_b32 v89, 0"); A(lambda: DS(f"ds_write_b64 {v(vEQA)}, v[88:89]", "eqz"))
    A(f"v_lshl_add_u32 {v(vZA)}, v82, 3, {sT0}")
    A(f"s_lshl_b32 {sT0}, {sW_}, 9"); A(f"v_lshlrev_b32 v86, 11, v81"); A("v_lshl_add_u32 v86, v82, 6, v86"); A("v_lshrrev_b32 v87, 1, v82")
    A("v_lshl_add_u32 v86, v87, 4, v86"); A(f"v_add_u32 {v(vDA)}, {sT0}, v86")
    for j in range(1, 4): A(f"v_xor_b32 {v(vDA+j)}, {16*j}, {v(vDA)}")
    for j in range(4): A(f"v_add_u32 {v(vDB+j)}, {DUMPS[1]}, {v(vDA+j)}")
    A(f"v_lshlrev_b32 {v(vTAB)}, 6, v81"); A(f"v_add_u32 {v(vTAB)}, {RTAB}, {v(vTAB)}")
    A(f"s_lshl_b32 {sT0}, {sG_}, 13"); A(f"s_lshl_b32 {sT2}, {sW_}, 7"); A(f"s_add_u32 {sT0}, {sT0}, {sT2}"); A(f"s_add_u32 {sT0}, {sT0}, {WS_EB}")
    A(f"v_lshl_add_u32 v86, v82, 4, {sT0}")
    A(f"s_lshl_b32 {sT2}, {sC_}, 9"); A(f"v_add_u32 {v(vEST)}, {sT2}, v86"); A(lambda: (I("v_cmp_eq_u32 vcc, 7, v81"), I(f"v_cndmask_b32 {v(vEST)}, v90, {v(vEST)}, vcc")))
    A(f"s_sub_u32 {sT2}, {sC_}, 16"); A(f"v_lshl_add_u32 v87, v81, 1, {sT2}")
    A(f"v_lshl_add_u32 {v(vEF)}, v87, 9, v86"); A(f"v_add_u32 {v(vEF+1)}, 512, {v(vEF)}")
    A(lambda: (I("v_cmp_le_i32 vcc, 0, v87"), I(f"v_cndmask_b32 {v(vEF)}, v90, {v(vEF)}, vcc"), I(f"v_cndmask_b32 {v(vEX)}, 0, -1, vcc")))
    A(lambda: (I("v_cmp_le_i32 vcc, -1, v87"), I(f"v_cndmask_b32 {v(vEF+1)}, v90, {v(vEF+1)}, vcc"), I(f"v_cndmask_b32 {v(vEX+1)}, 0, -1, vcc")))
    A(f"s_mul_i32 {sT0}, {sW_}, 2608"); A(f"s_add_u32 {sT0}, {sT0}, {HS}")
    A("v_mul_u32_u24 v86, 336, v82"); A("v_lshl_add_u32 v86, v81, 5, v86"); A(f"v_add_u32 {v(vHSW)}, {sT0}, v86")
    A(f"v_bfe_u32 v86, {vLANE}, 2, 2"); A("v_mul_u32_u24 v86, 336, v86"); A(f"v_and_b32 v87, 32, {vLANE}"); A("v_lshl_add_u32 v86, v87, 1, v86")
    A(f"v_and_b32 v87, 1, {vLANE}"); A("v_lshl_add_u32 v86, v87, 5, v86"); A(f"v_and_b32 v87, 16, {vLANE}"); A("v_add_u32 v86, v86, v87")
    A(f"v_and_b32 v87, 2, {vLANE}"); A("v_lshl_add_u32 v86, v87, 2, v86"); A(f"v_add_u32 {v(vHSR)}, {sT0}, v86")
    A(f"s_mul_i32 {sT0}, {sC_}, {4*152}"); A(f"s_lshr_b32 {sT2}, {sG_}, 1"); A(f"s_lshl3_add_u32 {sT0}, {sT2}, {sT0}"); A(f"s_and_b32 {sT2}, {sG_}, 1")
    A(f"s_lshl1_add_u32 {sT0}, {sT2}, {sT0}"); A(f"s_lshl_b32 {sT0}, {sT0}, 10"); A(f"s_lshl_b32 {sT2}, {sW_}, 9"); A(f"s_add_u32 {sT0}, {sT0}, {sT2}")
    A(f"v_lshrrev_b32 v86, 5, {vLANE}"); A(f"v_mul_u32_u24 v86, {152*1024}, v86"); A(f"v_and_b32 v87, 31, {vLANE}"); A("v_lshl_add_u32 v86, v87, 4, v86"); A(f"v_add_u32 {v(vHSTo)}, {sT0}, v86")
    LOG2E = "0x3fb8aa3b"
    A(lambda: E.wait(vm="par"))
    o += ["v_lshlrev_b32 v70, 16, v70", "v_lshlrev_b32 v71, 16, v71", "v_lshlrev_b32 v72, 16, v72",
          f"v_mul_f32 v70, {LOG2E}, v70", "v_exp_f32 v70, v70", "v_mul_f32 v74, v71, v71"] + bf16r_ops(70, 70)
    o += ["v_mul_f32 v75, v70, v71", "v_mul_f32 v76, v70, v72", f"v_mul_f32 v75, {LOG2E}, v75", "v_exp_f32 v75, v75",
          "v_mul_f32 v76, 0.15915494, v76", "v_rndne_f32 v77, v76", "v_sub_f32 v76, v76, v77", "v_cos_f32 v77, v76", "v_sin_f32 v78, v76",
          "v_fmac_f32 v74, v72, v72", f"v_mul_f32 {v(vLR)}, v75, v77", "v_mul_f32 v78, v75, v78", "v_rcp_f32 v74, v74",
          f"v_add_f32 v77, -1.0, {v(vLR)}", "v_add_f32 v74, v74, v74",
          f"v_mul_f32 {v(vCR)}, v77, v71", f"v_fmac_f32 {v(vCR)}, v78, v72", f"v_mul_f32 {v(vCR)}, {v(vCR)}, v74",
          f"v_mul_f32 {v(vCR+1)}, v77, v72", f"v_fma_f32 {v(vCR+1)}, -v78, v71, {v(vCR+1)}", f"v_mul_f32 {v(vCR+1)}, {v(vCR+1)}, v74",
          f"v_sub_f32 {v(vLR+1)}, 0, v78"]
    o += csq_ops(70, vLR, 78) + csq_ops(72, 70, 78) + csq_ops(70, 72, 78) + csq_ops(vL16, 70, 78)
    o += csq_ops(70, vL16, 78) + csq_ops(72, 70, 78) + csq_ops(vL128, 72, 78) + csq_ops(vL256, vL128, 78)
    o += [f"v_mov_b32 {v(vPQ)}, {v(vCR)}", f"v_mov_b32 {v(vPQ+1)}, {v(vCR+1)}"]
    for bit, L in ((8, vL16), (16, 70), (32, 72)):
        o += [f"v_and_b32 v74, {bit}, {vLANE}", lambda L=L: (I("v_cmp_ne_u32 vcc, 0, v74"), I(f"v_cndmask_b32 v76, 1.0, {v(L)}, vcc"), I(f"v_cndmask_b32 v77, 0, {v(L+1)}, vcc"))]
        o += cmul_ops(vPQ, vPQ, 76, 78)
    def factor(F, Ls):
        r = []
        for n, (bit, L) in enumerate(zip((8, 16, 32), Ls)):
            d = F if n == 0 else 76
            r += [f"v_and_b32 v74, {bit}, {vLANE}", lambda L=L, d=d: (I("v_cmp_eq_u32 vcc, 0, v74"), I(f"v_cndmask_b32 {v(d)}, 1.0, {v(L)}, vcc"), I(f"v_cndmask_b32 {v(d+1)}, 0, {v(L+1)}, vcc"))]
            if n: r += cmul_ops(F, F, 76, 78)
        return r
    o += factor(vF16, (vL16, 70, 72))
    o += csq_ops(70, vL256, 78) + csq_ops(72, 70, 78) + factor(vF256, (vL256, 70, 72))
    return o
def allsum(a_, b_, t):
    o = [f"v_add_f32_dpp {v(t)}, {v(a_)}, {v(a_)} row_ror:8 row_mask:0xf bank_mask:0xf", f"v_add_f32_dpp {v(t+1)}, {v(b_)}, {v(b_)} row_ror:8 row_mask:0xf bank_mask:0xf",
         f"v_mov_b32 {v(a_)}, {v(t)}", f"v_mov_b32 {v(b_)}, {v(t+1)}",
         f"v_permlane16_swap_b32 {v(a_)}, {v(t)}", f"v_permlane16_swap_b32 {v(b_)}, {v(t+1)}",
         f"v_add_f32 {v(a_)}, {v(a_)}, {v(t)}", f"v_add_f32 {v(b_)}, {v(b_)}, {v(t+1)}",
         f"v_mov_b32 {v(t)}, {v(a_)}", f"v_mov_b32 {v(t+1)}, {v(b_)}",
         f"v_permlane32_swap_b32 {v(a_)}, {v(t)}", f"v_permlane32_swap_b32 {v(b_)}, {v(t+1)}",
         f"v_add_f32 {v(a_)}, {v(a_)}, {v(t)}", f"v_add_f32 {v(b_)}, {v(b_)}, {v(t+1)}"]
    return o
def cmul4(d, x, y):
    return [f"v_mul_f32 {v(d[0])}, {v(x[0])}, {v(y)}", f"v_mul_f32 {v(d[1])}, {v(x[0])}, {v(y+1)}",
            f"v_fma_f32 {v(d[0])}, -{v(x[1])}, {v(y+1)}, {v(d[0])}", f"v_fmac_f32 {v(d[1])}, {v(x[1])}, {v(y)}"]
def ssm1():
    o = []
    def rdd(j, comp): DS(f"ds_read_b128 {v((TI if comp else TR) + 4*j, 4)}, {v(vDB+j)} offset:{DUMPS[comp] - DUMPS[1]}", f"dr{j}"); note_read(f"DUMP{comp}")
    for j in range(4):
        o += [lambda j=j: DS(f"ds_read_b128 {v(RT + 4*j, 4)}, {v(vTAB)} offset:{16*j}", f"dr{j}"), lambda j=j: rdd(j, 0), lambda j=j: rdd(j, 1)]
    cur, nx = (vE, vE + 1), (vE2, vE2 + 1)
    for r in range(16):
        if r % 4 == 0: o.append(lambda j=r >> 2: E.wait(lg=f"dr{j}"))
        o += [f"v_mul_f32 {v(TR+r)}, {v(TR+r)}, {v(RT+r)}", f"v_mul_f32_e64 {v(TI+r)}, -{v(TI+r)}, {v(RT+r)}"]
        if r == 0: src = (TR, TI)
        else:
            o += cfma_ops(nx, vLR, src, TR + r, TI + r); src = nx; cur, nx = nx, cur
    assert src == (vE2, vE2 + 1)
    o += cmul4((60, 62), src, vF16) + allsum(60, 62, 64)
    o.append(lambda: (VM(f"buffer_store_dwordx4 v[60:63], {v(vEST)}, {SWS}, 0 offen sc1", "est"), lstamp("epub")))
    return o
def window():
    o = [lambda: DS(f"ds_write_b64 {v(vEQA)}, {v(vE2,2)} offset:{7*64}", "eqw")]
    o += [lambda i=i: DS(f"ds_read_b64 {v(TMP+2*i,2)}, {v(vEQA)} offset:{64*i}", "eq") for i in range(7)]
    for r in range(16):
        o += [f"v_mul_f32 v72, {v(vCR+1)}, {v(TI+r)}", f"v_mul_f32 {v(TI+r)}, {v(vCR)}, {v(TI+r)}",
              f"v_fmac_f32 {v(TI+r)}, {v(vCR+1)}, {v(TR+r)}", f"v_fma_f32 {v(TR+r)}, {v(vCR)}, {v(TR+r)}, -v72"]
    o.append(lambda: E.wait(lg="eq"))
    src = (TMP, TMP + 1); pp = [(vE2, vE2 + 1), (vE, vE + 1)]
    for i in range(1, 7):
        d = pp[i & 1]; o += cfma_ops(d, vL16, src, TMP + 2*i, TMP + 2*i + 1); src = d
    return o + cmul4((vP, vP + 1), src, vCR)
def efetch_issue():
    VM(f"buffer_load_dwordx4 v[64:67], {v(vEF)}, {SWS}, 0 offen sc1", "ef"); VM(f"buffer_load_dwordx4 v[68:71], {v(vEF+1)}, {SWS}, 0 offen sc1", "ef")
def ssm3():
    chk = [f"v_xor_b32 v72, v65, {v(vEX)}", f"v_xor_b32 v73, v67, {v(vEX)}", f"v_xor_b32 v74, v69, {v(vEX+1)}", "v_or3_b32 v72, v72, v73, v74",
           f"v_xor_b32 v73, v71, {v(vEX+1)}", "v_or_b32 v72, v72, v73", "v_cmp_ne_u32 vcc, 0, v72"]
    def check():
        E.wait(vm="ef")
        for c in chk: I(c)
        I("s_cbranch_vccnz L_slow_e"); E.label("L_back_e"); lstamp("eok")
        slow.extend(["L_slow_e:",  f"  buffer_load_dwordx4 v[64:67], {v(vEF)}, {SWS}, 0 offen sc1", f"  buffer_load_dwordx4 v[68:71], {v(vEF+1)}, {SWS}, 0 offen sc1",
                     "  s_waitcnt vmcnt(0)"] + ["  " + c for c in chk] + spin_guard("L_back_e", 0x100) + ["  s_cbranch_vccnz L_slow_e", "  s_branch L_back_e"])
    o = [check] + cfma_ops((vE, vE + 1), vL128, (64, 66), 68, 70)
    o += cmul4((vE2, vE2 + 1), (vE, vE + 1), vF256) + allsum(vE2, vE2 + 1, 72)
    src = (vE2, vE2 + 1)
    o += cfma_ops((vE, vE + 1), vPQ, src, vP, vP + 1)
    src = (vE, vE + 1)
    for r in range(16):
        d = (TR + r, TI + r); o += cfma_ops(d, vLR, src, d[0], d[1]); src = d
        if r & 1: o += [f"v_cvt_pk_bf16_f32 {v(TMP + (r>>1))}, {v(TR+r-1)}, {v(TR+r)}", f"v_cvt_pk_bf16_f32 {v(TMP + 8 + (r>>1))}, {v(TI+r-1)}, {v(TI+r)}"]
    for comp in range(2):
        o += [lambda j=j, comp=comp: DS(f"ds_write_b128 {v(vHSW)}, {v(TMP + 8*comp + 4*j, 4)} offset:{16*j}", "hsw") for j in range(2)]
        for i in range(2):
            for ph in range(2):
                def rd(i=i, ph=ph, comp=comp):
                    DS(f"ds_read_b64_tr_b16 {v(RT + 8*comp + 4*i + 2*ph, 2)}, {v(vHSR)} offset:{4*ph*336 + 128*i}", f"hr{comp}{i}"); note_read("HS")
                o.append(rd)
    for comp in range(2):
        for i in range(2):
            def st(i=i, comp=comp):
                I(f"s_mov_b32 {sT0}, {2*i*152*1024 + comp*4096}"); E.wait(lg=f"hr{comp}{i}")
                VM(f"buffer_store_dwordx4 {v(RT + 8*comp + 4*i, 4)}, {v(vHSTo)}, {SWS}, {sT0} offen sc1", "hst")
            o.append(st)
    o.append(lambda: lstamp("hst"))
    return o
work = []
def pop_work(n):
    while n > 0 and work: runall([work.pop(0)]); n -= 1
def between(n=8): return lambda: pop_work(n)
live.append(items["OFT"])
I(f"v_and_b32 {v(vQR)}, 3, {vLANE}"); I(f"v_lshlrev_b32 {v(vQR)}, 2, {v(vQR)}"); I(f"v_add_u32 {v(vQR)}, {PRG}, {v(vQR)}"); I(f"v_mov_b32 {v(vQV)}, 0")
I(f"s_lshl_b32 {sT0}, {sW_}, 2"); I(f"s_add_u32 {sT0}, {sT0}, {PRG}"); I(f"v_mov_b32 {v(vQW)}, {sT0}")
issue("S2"); issue("S3"); lstamp("b0")
def hchk(word, st):
    off = {"PC": 0, "PD": 32}[word]; val = PCV[st] if word == "PC" else st
    chk_spin(val, vQR, vQT, off)
    em, lg = signals[(word, val)]; known[id(em)] = max(known[id(em)], lg)
published = [0]
def pub(ch):
    assert PHV[ch] > published[0]
    E.wait(vm=[n for c in CHUNKS[published[0]:PHV[ch]] for n in chunk_items(c)]); signal("PH", PHV[ch], vQW, vQV, 16); published[0] = PHV[ch]
def auto_pub(lead):
    best = None
    for c in CHUNKS[published[0]:]:
        if all(n in E.vm and done_issue.get(n) and len(E.vm) - E.last(E.vm, n) >= lead for n in chunk_items(c)): best = c
        else: break
    if best: pub(best)
def s47():
    for n in ("S4", "S5", "S6", "S7"): issue(n)
if OPT["xi"] < 0: s47()
pub("S2")
setup1()
I(f"s_lshl_b32 {sT0}, {sW_}, 11"); I(f"s_add_u32 {sT0}, {sT0}, {HS}"); I(f"v_lshl_add_u32 v86, {vLANE}, 4, {sT0}")
E.wait(vm="par"); DS("ds_write_b128 v86, v[4:7]", "oft"); I("v_mov_b32 v92, v86"); E.wait(lg="oft")
if OPT["xi"] >= 0: hchk("PC", "Xi"); s47()
w2 = setup2(); runall(w2[:OPT["w2a"]])
hchk("PC", "X"); lstamp("xd")
I("v_mov_b32 v91, 0"); VM(f"buffer_load_dword {v(vPOLL)}, v91, {SDBG}, 0 offen sc1", "tag")
issue("G0"); pub("S6"); runall(w2[OPT["w2a"]:OPT["w2b"]]); issue("G1"); runall(w2[OPT["w2b"]:]); pub("G0"); hchk("PC", "S3"); issue("G2"); pub("G1"); issue("G3"); setup1b()
tag_check("H", vPOLL, 88)
runall([f"v_mov_b32 v61, {sNON}", f"v_mov_b32 v63, {sNON}", f"v_and_b32 {v(vEX)}, {sNON}, {v(vEX)}", f"v_and_b32 {v(vEX+1)}, {sNON}, {v(vEX+1)}", f"v_and_b32 {v(vFLX)}, {sNON}, {v(vFLX)}",
        f"v_lshl_add_u32 {v(vUP)}, {vLANE}, 4, {sM4}"])
known[id(EC)] = max(known[id(EC)], signals[("PC", PCV["S5"])][1]); hplace("DUMP0"); hplace("DUMP1")
DS("ds_write_b64 v92, v[8:9] offset:1024", "oft"); DS("ds_write_b32 v92, v12 offset:1032", "oft"); DS("ds_write_b32 v92, v61 offset:1036", "oft")
runall(q_setup()); issue("C0"); issue("W0")
if OPT["w1e"]: issue("W4")
I(f"s_setprio {OPT['pb']}")
hchk("PC", "dump"); lstamp("bD")
ncp = [0]
def code_touch():
    ncp[0] += 1
    I("s_getpc_b64 s[54:55]"); E.label(f"L_pc{ncp[0]}")
    I(f"s_sub_u32 s54, s54, L_pc{ncp[0]}-{NAME}_kernel"); I("s_subb_u32 s55, s55, 0")
    I(f"s_and_b32 {sT0}, {sGL}, 3"); I("v_and_b32 v78, 0xfc, v0"); I(f"v_or_b32 v78, {sT0}, v78"); I("v_lshlrev_b32 v78, 7, v78")
    VM("global_load_dword v79, v78, s[54:55]", "code")
def pass2():
    t0 = OPT["bd"] + 2
    s1, wn, s3 = ssm1(), window(), ssm3()
    ins = []
    def spread(name, ta, tb, pre=None):
        holder = {}
        n = 6 if name[0] == "G" else 4
        for k in range(n):
            def f(k=k):
                if k == 0:
                    if pre: hchk(*pre)
                    holder["ops"] = item_ops(name)
                holder["ops"][k]()
            ins.append((ta + (tb - ta) * k / n, f))
    ins.append((OPT["pg2"], lambda: (E.wait(lg="dr3"), pub("G2")))); ins.append((48, lambda: pub("G3")))
    ins.sort(key=lambda x: x[0])
    t = [float(t0)]
    def cyc(): return E.nvec * OPT["vc"] / 10.0 + (E.count + E.nops - E.nvec) * 4.0
    def adv(c0): t[0] += (cyc() - c0) / 33.0
    def run(ops):
        for op in ops:
            while ins and ins[0][0] <= t[0]:
                c0 = cyc(); ins.pop(0)[1](); adv(c0)
            c0 = cyc(); runall([op]); adv(c0)
    def idle_until(tt):
        while ins and ins[0][0] <= tt: t[0] = max(t[0], ins[0][0]); ins.pop(0)[1]()
        t[0] = max(t[0], tt)
    run(s1); tpub = t[0]
    k = 0
    while k < len(wn) and t[0] < tpub + OPT["efd"]: run([wn[k]]); k += 1
    efetch_issue(); lstamp("ef"); tf = t[0]
    if OPT["cp"] & 1: code_touch()
    run(wn[k:]); hchk("PC", "G1"); hplace("HS")
    tc = t[0]
    I(f"s_setprio {OPT['pc']}"); run(s3); ts = t[0]; assert not ins
    E.wait(vm="hst"); signal("PD", 2, vQW, vQV, 32); hchk("PD", 2); flag_send("s20"); lstamp("hflag")
    if OPT.get("log"): print(f"helper est: epub {tpub:.0f} efetch {tf:.0f} check {tc:.0f} stores {ts:.0f}", file=sys.stderr)
pass2()
issue("XE")
if not OPT["w1e"]: issue("W4")
if OPT["cp"] & 2: code_touch()
pub("KX")
for name, kn in cplaced:
    save = dict(known); known.update({id(EC): 0, id(EH): 0})
    for w_, val in kn:
        em, lg = signals[(w_, val)]; known[id(em)] = max(known[id(em)], lg)
    hplace(name); done_issue[name] = True; known.update(save)
I(f"s_setprio {OPT['pd']}")
if OPT["ep"]:
    hchk("PC", "U0"); poll_issue("s20", "ph"); poll_check("s20", "ph", 0x10000); lstamp("okh"); pub("K0")
hchk("PC", "T"); lstamp("gT")
if not OPT["ep"]: poll_issue("s20", "ph")
if not OPT["ep"] and OPT["sp"] == 2: poll_check("s20", "ph", 0x10000); pub("K0")
I(f"s_mov_b32 s19, {WS_FP}")
for n_ in ("W1", "W2", "W3")[3 - OPT["wl"]:]: issue(n_)
unpark("C0")
if not OPT["ep"] and OPT["sp"] != 2: poll_check("s20", "ph", 0x10000); lstamp("okh"); pub("K0")
hchk("PC", "gsa"); flag_send("s19")
unpark("W0"); unpark("W4")
if OPT["gs"] < 0: hchk("PC", "gst"); flag_send("s21")
for k, bn in enumerate(bar_names[1:]):
    if bn == "bP1": poll_check("s19", "pa", 0x1)
    if bn == "bP2": hchk("PC", "pj"); poll_issue("s21", "pg"); poll_check("s21", "pg", 0x1000000); lstamp("okg")
    E.wait(vm=["W5"] if bn == "bP3" else (["W3"] if OPT["wl"] else []), lg=["upW4"]); E.barrier()
    known[id(EC)] = max(known[id(EC)], EC.barriers[k + 1][1])
    if bn == "bP0" and OPT["gs"] >= 0: hchk("PC", "gst"); flag_send("s21")
    if bn == "bP0": poll_issue("s19", "pa")
    if bn == "bP1": issue("W5")
    if bn == "bP3": assert known[id(EC)] >= min(items["C2"].last_read, 10**9)
    if bn == "bP4": assert known[id(EC)] >= items[RT2].last_read
assert len(EH.barriers) == len(EC.barriers)
dump_stamps("H")
E.label("L_end"); I("s_endpgm")

hdr = open("cdna_kernels/" + NAME + ".s.ref").read().split("; Override launch geometry")[0]
out = hdr
if OPT["lst"]: out += "; cstamps: " + " ".join(lnames["C"]) + "\n; hstamps: " + " ".join(lnames["H"]) + f"\n; rt: {OPT['rt']}\n"
out += f"; @launch grid=(256,1,1) block=(512,1,1) lds={LDS_BYTES}\n"
out += f'.amdgcn_target "amdgcn-amd-amdhsa--gfx950"\n.text\n.globl {NAME}_kernel\n.p2align 8\n.type {NAME}_kernel,@function\n'
kc = next(k for k, l in enumerate(EC.lines) if "v_and_b32 v90, 31" in l)
out += E0.text() + "\n".join(EC.lines[:kc]) + "\n  s_branch L_cmain\n" + EH.text() + "L_cmain:\n" + "\n".join(EC.lines[kc:]) + "\n" + "\n".join(slow) + "\n"
out += f"L_pad:\n.fill (37120 - (L_pad - {NAME}_kernel)) / 4, 4, 0xbf810000\n"
out += f""".section .rodata,"a"
.p2align 6
.amdhsa_kernel {NAME}_kernel
  .amdhsa_next_free_vgpr 256
  .amdhsa_next_free_sgpr 102
  .amdhsa_accum_offset 256
  .amdhsa_group_segment_fixed_size 0
  .amdhsa_kernarg_size 128
  .amdhsa_user_sgpr_count 2
  .amdhsa_user_sgpr_kernarg_segment_ptr 1
  .amdhsa_system_sgpr_workgroup_id_x 1
.end_amdhsa_kernel
"""
open(sys.argv[1], "w").write(out)
print(f"compute {EC.count}+{EC.nops} helper {EH.count}+{EH.nops} barriers {len(bar_names)}: {' '.join(bar_names)}", file=sys.stderr)
```

```python
import sys
from emit import Emitter
NAME = "parallel_sum__ssm_conv_s5__glu_gated_bilinear__prompt"
OPT = dict(lst=0, rt=1, D=4, D2=7, D3=6, NU=2, gfd=40, prio=1, bd=15, ipc=85, slp=2, slq=0, wl=2, ovr=0, cp=0, sp=2, dsp=3, efn=90, rot=8, lead=12, ge=0, gf=1, gg=5, gp=2, mw=0, ar=1, nr=8, bk=12, c34=1, f0=0, f2=1, pw=0, pd=2, nwt=0, a0=6, al=16, nb=60, gs=8, tw=0, osc=1, d64=0, w2a=20, w2b=110, pb=0, c1=117, c45=1, u0s=158, xi=-1, pc=2, map=0, xj=1, nd=2, skw=2, gj=7, pjd=10, ea=0, pl=14, w1e=0, xw=1, ct=1, stg=0, x3=0, wr=4, pg2=21, ep=0, vc=85, efd=35, ecd=20)
for a_ in sys.argv[2:]:
    k_, v_ = a_.split("="); OPT[k_] = int(v_)

WS_EB = 0xA00000; WS_FH = 0xA40000; WS_FG = 0xA48000; WS_ST = 0xC00000; WS_FP = 0xA50000; WS_PB = 0x1000000; WS_SIZE = 0x1800000
U8 = 8192; MISC = 18 * U8
RTAB = MISC; EQ = MISC + 1024; HS = MISC + 5120; XE = MISC + 5120
DUMP = 0
PRG = MISC + 15872
LDS_BYTES = 163840
OOB = 0x80000000
sW_, sC_, sG_, sGL, sGH, sJ0 = "s3", "s4", "s5", "s6", "s7", "s8"
sT0, sT1, sT2, sT3 = "s9", "s10", "s11", "s12"
SX, SS, SG, SC, SWD, SWS, SOUT, SDBG = ("s[48:51]", "s[52:55]", "s[56:59]", "s[60:63]", "s[64:67]", "s[68:71]", "s[72:75]", "s[76:79]")
sK = [f"s{80+i}" for i in range(8)]
sM4, sM2, sM6 = "s88", "s89", "s94"
sQW, sQHG, sSO = "s95", "s96", "s100"
sNON, sC10, sC01, sC11 = "s90", "s91", "s92", "s93"
sSPIN = "s97"; sSP2 = "s99"; sCL = "s101"
sCW = "s98"; WMUL = {4: 3, 2: 6, 1: 0}[OPT["wr"]]
sRA = "s52"
def q_setup(): return [f"s_add_u32 {sQW}, {sGL}, {sCL}"]
def q_h(so, i): I(f"s_add_u32 {so}, {sQW}, {i}"); I(f"s_and_b32 {so}, {so}, 3"); I(f"s_lshl2_add_u32 {so}, {sGH}, {so}")
def q_u(so, i):
    if i < 4: q_h(so, i); I(f"s_cmp_eq_u32 {so}, 7"); I(f"s_cselect_b32 {so}, 11, {so}")
    else: I(f"s_add_u32 {so}, {sQW}, {i}"); I(f"s_and_b32 {so}, {so}, 1"); I(f"s_lshl1_add_u32 {so}, {sGH}, {so}"); I(f"s_add_u32 {so}, {so}, 7")
def w_soff(so, i, tmp):
    q_u(tmp, i); I(f"s_lshl2_add_u32 {tmp}, {tmp}, {sW_}"); I(f"s_mul_i32 {so}, {tmp}, 3")
    I(f"s_cmp_ge_u32 {tmp}, 15"); I(f"s_cselect_b32 {sRA}, 44, 0"); I(f"s_cmp_ge_u32 {tmp}, 30"); I(f"s_cselect_b32 {sRA}, 88, {sRA}")
    I(f"s_sub_u32 {so}, {so}, {sRA}"); I(f"s_lshl_b32 {so}, {so}, 15")
vLANE = "v1"
MF = "v_mfma_f32_32x32x16_bf16"
def v(n, k=1): return f"v{n}" if k == 1 else f"v[{n}:{n+k-1}]"

EC, EH, E0 = Emitter(), Emitter(), Emitter()
E = E0
def I(t): return E.I(t)
def VM(t, tag=None): return E.VM(t, tag)
def DS(t, tag=None): return E.DS(t, tag)
slow = []
lnames = {"C": [], "H": []}
def lstamp(name):
    who = "C" if E is EC else "H"
    if OPT["lst"] and name in LSET[who] and len(lnames[who]) < 12:
        k = 24 + 2 * len(lnames[who]); lnames[who].append(name); I(f"{'s_memrealtime' if OPT['rt'] else 's_memtime'} s[{k}:{k+1}]")
LSETS = {0: ([], []),
         1: (["X6", "X7", "S0", "G0", "G4", "T", "J0", "J4", "snd", "kp", "last", "end"], ["b0", "xd", "bD", "epub", "ef", "eok", "hst", "hflag", "okh", "gT", "okg", "end"]),
         2: (["S0", "S2", "S4", "S6", "G0", "G1", "G2", "G3", "G4", "G5", "G6", "T"], ["b0", "xd", "bD", "epub", "ef", "eok", "hst", "hflag", "okh", "gT", "okg", "end"]),
         3: (["T", "K0", "J0", "J2", "J4", "J7", "snd", "J10", "J13", "kp", "last", "end"], ["b0", "xd", "bD", "epub", "ef", "eok", "hst", "hflag", "okh", "gT", "okg", "end"])}
LSETS[9] = ([], LSETS[1][1])
LSET = dict(zip("CH", LSETS[OPT["lst"]])); LSET["H"] = ["hflag", "okh", "gT", "end"]
def runall(ops):
    for op in ops:
        if isinstance(op, str): I(op)
        else: op()
def csq_ops(d, x, t):
    return [f"v_mul_f32 {v(t)}, {v(x+1)}, {v(x+1)}", f"v_add_f32 {v(t+1)}, {v(x)}, {v(x)}", f"v_fma_f32 {v(d)}, {v(x)}, {v(x)}, -{v(t)}", f"v_mul_f32 {v(d+1)}, {v(t+1)}, {v(x+1)}"]
def cmul_ops(d, x, y, t):
    return [f"v_mul_f32 {v(t)}, {v(x)}, {v(y)}", f"v_mul_f32 {v(t+1)}, {v(x)}, {v(y+1)}",
            f"v_fma_f32 {v(t)}, -{v(x+1)}, {v(y+1)}, {v(t)}", f"v_fma_f32 {v(d+1)}, {v(x+1)}, {v(y)}, {v(t+1)}", f"v_mov_b32 {v(d)}, {v(t)}"]
def cfma_ops(d, L, x, br, bi):
    return [f"v_fma_f32 {v(d[0])}, {v(L)}, {v(x[0])}, {v(br)}", f"v_fma_f32 {v(d[1])}, {v(L)}, {v(x[1])}, {v(bi)}",
            f"v_fma_f32 {v(d[0])}, -{v(L+1)}, {v(x[1])}, {v(d[0])}", f"v_fma_f32 {v(d[1])}, {v(L+1)}, {v(x[0])}, {v(d[1])}"]
def bf16r_ops(d, s): return [f"v_cvt_pk_bf16_f32 {v(d)}, {v(s)}, {v(s)}", f"v_and_b32 {v(d)}, 0xffff0000, {v(d)}"]
def srd(dst, lo, size):
    n = int(dst[2:dst.index(":")])
    I(f"s_mov_b64 s[{n}:{n+1}], s[{lo}:{lo+1}]"); I(f"s_mov_b32 s{n+2}, {size}"); I(f"s_mov_b32 s{n+3}, 0x20000")
def srd_sel(dst, p0, p1, size):
    n = int(dst[2:dst.index(":")])
    I(f"s_cselect_b64 s[{n}:{n+1}], s[{p1}:{p1+1}], s[{p0}:{p0+1}]"); I(f"s_mov_b32 s{n+2}, {size}"); I(f"s_mov_b32 s{n+3}, 0x20000")
def ktab(i):
    I(f"s_add_u32 {sK[i]}, {sJ0}, {i}"); I(f"s_and_b32 {sK[i]}, {sK[i]}, 7"); I(f"s_lshl_b32 {sK[i]}, {sK[i]}, 7")
def spin_guard(lbl_back, inc):
    return ([f"  s_add_u32 s15, s15, {inc}" if inc >= 0 else f"  s_bitset1_b32 s15, {-inc}"] if OPT["lst"] else []) + [f"  s_add_u32 {sSPIN}, {sSPIN}, 1", f"  s_cmp_gt_u32 {sSPIN}, 0x200000", f"  s_cbranch_scc1 {lbl_back}"]
def tag_check(who, vp, vz):
    E.wait(vm="tag"); I(f"v_readfirstlane_b32 {sNON}, {v(vp)}"); I(f"s_cmp_eq_u32 {sNON}, 0"); I(f"s_cbranch_scc1 L_slow_tag{who}"); E.label(f"L_back_tag{who}")
    slow.extend([f"L_slow_tag{who}:", "  s_sleep 1", f"  v_mov_b32 {v(vz)}, 0", f"  buffer_load_dword {v(vp)}, {v(vz)}, {SDBG}, 0 offen sc1", "  s_waitcnt vmcnt(0)",
                 f"  v_readfirstlane_b32 {sNON}, {v(vp)}"] + spin_guard(f"L_back_tag{who}", 1) +
                [f"  s_cmp_eq_u32 {sNON}, 0", f"  s_cbranch_scc1 L_slow_tag{who}", f"  s_branch L_back_tag{who}"])
signals = {}
def signal(word, val, va, vt, off):
    signals[(word, val)] = (E, E.lg_done)
    I(f"v_mov_b32 {v(vt)}, {val}"); DS(f"ds_write_b32 {v(va)}, {v(vt)} offset:{off}", "sig")
nchk = [0]
def chk_issue(va, vt, off):
    nchk[0] += 1; DS(f"ds_read_b32 {v(vt)}, {v(va)} offset:{off}", f"chk{nchk[0]}"); return f"chk{nchk[0]}"
def chk_test(tag, val, va, vt, off, inc):
    E.wait(lg=tag)
    I(f"v_cmp_gt_u32 vcc, {val}, {v(vt)}"); I(f"s_cbranch_vccnz L_slow_{tag}"); E.label(f"L_back_{tag}")
    slow.extend([f"L_slow_{tag}:", f"  ds_read_b32 {v(vt)}, {v(va)} offset:{off}", "  s_waitcnt lgkmcnt(0)", f"  v_cmp_gt_u32 vcc, {val}, {v(vt)}"]
                + spin_guard(f"L_back_{tag}", inc) + [f"  s_cbranch_vccnz L_slow_{tag}", f"  s_branch L_back_{tag}"])
def chk_spin(val, va, vt, off):
    nchk[0] += 1; lbl = f"L_spin{nchk[0]}"
    E.label(lbl)
    DS(f"ds_read_b32 {v(vt)}, {v(va)} offset:{off}", lbl); I(f"s_sub_u32 {sSP2}, {sSP2}, 1"); I("s_cbranch_scc1 L_end")
    E.wait_all(lg=True)
    I(f"v_cmp_gt_u32 vcc, {val}, {v(vt)}"); I(f"s_cbranch_vccnz {lbl}")
def dump_stamps(who):
    if not OPT["lst"]: return
    E.wait_all(vm=True); lstamp("end"); E.wait_all(lg=True)
    n = len(lnames[who])
    for k in range(n): I(f"v_writelane_b32 v2, s{24+2*k}, {k}")
    I(f"v_writelane_b32 v2, {n}, 61"); I("v_writelane_b32 v2, s15, 60"); I("v_writelane_b32 v2, s14, 63")
    I(f"s_lshl3_add_u32 {sT0}, s2, {sW_}"); I(f"s_add_u32 {sT0}, {sT0}, {4 if who == 'H' else 0}"); I(f"s_lshl_b32 {sT0}, {sT0}, 8"); I(f"s_add_u32 {sT0}, {sT0}, {WS_ST}")
    I(f"v_lshlrev_b32 v3, 2, {vLANE}")
    VM(f"buffer_store_dword v2, v3, {SWS}, {sT0} offen")

NU = OPT["NU"]; assert NU == 2

BASE_OF = {}
for i in range(8): BASE_OF[f"X{i}"] = (2 * (i & 3) * U8, 16384)
for i, u in enumerate(range(8, 16)): BASE_OF[f"S{i}"] = (u * U8, 8192)
for i, u in enumerate([0, 3, 6, 9, 0, 3, 12, 15]): BASE_OF[f"G{i}"] = (u * U8, 24576)
DUMPS = [16 * U8, 12 * U8]
BASE_OF["DUMP0"] = (DUMPS[0], 16384); BASE_OF["DUMP1"] = (DUMPS[1], 16384); BASE_OF["XE"] = (XE, 8192); BASE_OF["HS"] = (HS, 10432); BASE_OF["OFT"] = (HS, 8192)
slot_of = {"C1": 3, "C2": 4, "C3": 5, "W1": 0, "W2": 1, "W3": 2, "C0": 6, "W0": 7, "W4": 8, "W5": 3}
RT_ = {"C0": 168, "W0": 184, "W4": 200}
ND = OPT["nd"]
CO = ["C1", "C2", "C3", "C0"]; WO = ["W1", "W2", "W3", "W0", "W4", "W5"]
SK = [["W1"], ["W1", "W4"], []][OPT["skw"]]
jobs = [(t, "sk") for t in CO[:4-ND]] + [(t, "s") for t in CO[4-ND:]] + [(t, "sk" if t in SK else "s") for t in WO] + [(t, "k") for t in WO if t not in SK] + [(t, "k") for t in CO[4-ND:]]
NJ1 = 10
def chunk_items(ch):
    i = ch[1:]
    if ch[0] == "S": return [f"S{i}", f"S{int(i)+1}"]
    return {"K": ["XE"] if ch == "KX" else [], "G": [f"G{i}"]}[ch[0]]
RED = slot_of["C2"] * 16384; assert ND <= 2
CHUNKS = ["S0", "S2", "S4", "S6"] + [f"G{i}" for i in range(4)] + ["KX", "K0", "Kp"]
PHV = {c: k + 1 for k, c in enumerate(CHUNKS)}
CEV = {"G0": 25, "G1": 49, "G2": 74, "G3": 99, "G4": 122, "G5": 145, "U0": OPT["u0s"]}
STAGES = ["Xi", "X", "S3", "S5", "dump"] + sorted(CEV, key=CEV.get) + ["T", "gsa", "gst", "pj"]
PCV = {c: k + 1 for k, c in enumerate(STAGES)}
for n, s in slot_of.items(): BASE_OF[n] = (s * 16384, 16384)

class Item: pass
items = {}
for n, (b, sz) in BASE_OF.items():
    it = Item(); it.name, it.base, it.size = n, b, sz; it.first_bar = None; it.last_read = None; it.reader = None; items[n] = it
bar_names = []
def note_read(name):
    it = items[name]
    if it.first_bar is None: it.first_bar = len(E.barriers)
    it.last_read = len(E.lg); it.last_bar = len(E.barriers); it.reader = E

E = E0
E.label(f"{NAME}_kernel")
I("s_cmp_ge_u32 s2, 256"); I("s_cbranch_scc1 L_end")
I("s_load_dwordx16 s[16:31], s[0:1], 0")
I("s_getpc_b64 s[98:99]"); I(f"s_bfe_u32 {sT0}, s2, 0x20003"); I("v_lshrrev_b32 v80, 3, v0"); I(f"v_lshl_add_u32 v80, v80, 2, {sT0}"); I("v_lshlrev_b32 v80, 7, v80")
VM("global_load_dword v95, v80, s[98:99]", "code")
I("s_load_dwordx16 s[32:47], s[0:1], 64")
I("s_memrealtime s[14:15]")
I("v_lshrrev_b32 v80, 6, v0"); I(f"v_and_b32 {vLANE}, 63, v0"); I(f"v_readfirstlane_b32 {sT3}, v80")
sR8 = "s19" if False else None
if OPT["map"] == 0:
    I(f"s_bfe_u32 {sT0}, s2, 0x20001"); I(f"s_lshr_b32 {sCL}, s2, 6"); I(f"s_lshl2_add_u32 {sC_}, {sT0}, {sCL}")
    I(f"s_bfe_u32 {sGL}, s2, 0x30003"); I(f"s_lshl1_add_u32 {sJ0}, {sCL}, {sGL}")
    I(f"s_and_b32 {sGH}, s2, 1"); I(f"s_lshl3_add_u32 {sG_}, {sGH}, {sGL}"); I(f"s_mov_b32 {sQW}, {sGL}")
    if OPT["xj"]: I(f"s_add_u32 {sJ0}, {sJ0}, {sT0}")
else:
    I(f"s_and_b32 {sT0}, s2, 1"); I(f"s_lshr_b32 {sQW}, s2, 5"); I(f"s_lshl3_add_u32 {sC_}, {sT0}, {sQW}")
    I(f"s_bfe_u32 {sCL}, s2, 0x20003"); I(f"s_bfe_u32 {sT0}, s2, 0x20001"); I(f"s_lshl2_add_u32 {sG_}, {sT0}, {sCL}")
    I(f"s_and_b32 {sGL}, {sG_}, 7"); I(f"s_lshr_b32 {sGH}, {sG_}, 3"); I(f"s_lshl1_add_u32 {sJ0}, {sCL}, {sQW}")
for i in range(2): ktab(i)
I(f"s_and_b32 {sW_}, {sT3}, 3"); I(f"s_lshl_b32 {sM4}, {sW_}, 12")
I(f"v_lshrrev_b32 v81, 3, {vLANE}"); I(f"v_and_b32 v82, 7, {vLANE}")
I("v_lshrrev_b32 v84, 1, v81"); I("v_xor_b32 v83, v82, v84"); I("v_lshlrev_b32 v83, 4, v83"); I("v_xor_b32 v85, 64, v83")
I(f"v_lshlrev_b32 v78, 2, {vLANE}"); I("v_mov_b32 v79, 0"); I(f"v_add_u32 v78, {PRG}, v78"); DS("ds_write_b32 v78, v79", "prz")
I(f"s_mov_b32 {sSP2}, 0x1000000"); I(f"s_and_b32 {sCW}, {sCL}, {3 if OPT['wr'] == 4 else 1}")
I(f"s_cmp_ge_u32 {sT3}, 4"); I("s_cbranch_scc1 L_helper")

E = EC
vP1 = [2, 3, 4, 5]; vGT = 6; vNM = 7; vR2 = 0
FB0, NFB = 8, 6
ACCG = [32, 64, 96]; ACCU = [48, 80, 112]; ACC_R, ACC_I = 96, 112
XF = 128
vXo = [86, 87, 88, 89]
def cbar(name, vm=(), lg=()):
    E.wait(vm=vm, lg=lg); E.barrier(); bar_names.append(name)
I("v_and_b32 v84, 4, v81"); I("v_and_b32 v80, 3, v81"); I("v_lshl_add_u32 v84, v84, 2, v80")
I(f"s_lshl2_add_u32 {sT0}, {sC_}, {sW_}"); I(f"s_lshl_b32 {sT0}, {sT0}, 5")
I(f"v_add_lshl_u32 v84, v84, {sT0}, 10")
I(f"v_add_u32 {v(vXo[0])}, v84, v83"); I(f"v_add_u32 {v(vXo[1])}, v84, v85")
I(f"v_add_u32 {v(vXo[2])}, 6144, {v(vXo[0])}"); I(f"v_add_u32 {v(vXo[3])}, 9216, {v(vXo[1])}"); I(f"v_add_u32 {v(vXo[1])}, 3072, {v(vXo[1])}")
I("s_mov_b32 s50, 2097152"); I("s_mov_b32 s51, 0x20000")
E.wait_all(lg=True)
I("s_mov_b64 s[48:49], s[16:17]")
def X_issue(i):
    I(f"s_add_u32 m0, {sM4}, {items[f'X{i}'].base}")
    for q in range(4): VM(f"buffer_load_dwordx4 {v(vXo[q])}, {SX}, {sK[i]} offen" + (f" offset:{q*1024}" if q else "") + " lds", f"X{i}")
X_issue(0); X_issue(1)
if OPT["prio"] == 1: I("s_setprio 1")
for i in range(2, 8): ktab(i)
X_issue(2)
if OPT["x3"]: X_issue(3)
cbar("b0")
I(f"v_and_b32 v90, 31, {vLANE}"); I(f"v_lshrrev_b32 v91, 5, {vLANE}")
I("v_bfe_u32 v92, v90, 1, 3"); I("v_xor_b32 v92, v92, v91"); I("v_lshlrev_b32 v92, 4, v92"); I("v_lshl_add_u32 v92, v90, 7, v92")
I(f"v_add_u32 {v(vP1[0])}, {sM4}, v92")
for s in range(1, 4): I(f"v_xor_b32 {v(vP1[s])}, {32*s}, {v(vP1[0])}")
I(f"s_mov_b32 {sC11}, 0x3f803f80"); I(f"s_mov_b32 {sC10}, 0x00003f80"); I(f"s_mov_b32 {sC01}, 0x3f800000")
for r in range(64, 72): I(f"v_mov_b32 v{r}, 0")
srd(SWS, 46, WS_SIZE); srd(SOUT, 42, 4194304)
I(f"s_cmp_ge_u32 {sW_}, 2"); srd_sel(SG, 36, 38, 1409024); srd_sel(SC, 26, 28, 524288); I(f"s_mul_i32 {sM6}, {sW_}, 6144"); srd(SWD, 40, 1409024)
I(f"s_mov_b32 {sSPIN}, 0"); I("s_mov_b32 s15, 0"); I("s_mov_b64 s[22:23], s[32:33]"); I("s_mov_b64 s[20:21], s[40:41]")
I(f"v_bfe_u32 v92, {vLANE}, 2, 2"); I("v_lshl_add_u32 v92, v91, 3, v92"); I(f"v_mul_u32_u24 {v(vGT)}, 192, v92")
I(f"v_and_b32 v93, 16, {vLANE}"); I(f"v_lshl_add_u32 {v(vGT)}, v93, 1, {v(vGT)}")
I(f"v_and_b32 v93, 1, {vLANE}"); I(f"v_lshl_add_u32 {v(vGT)}, v93, 4, {v(vGT)}")
I(f"v_and_b32 v93, 2, {vLANE}"); I(f"v_lshl_add_u32 {v(vGT)}, v93, 2, {v(vGT)}")
I(f"s_lshl_b32 {sT0}, {sW_}, 7"); I(f"s_add_u32 {sT0}, {sT0}, {RTAB}")
I("v_bfe_u32 v93, v90, 2, 1"); I("v_lshlrev_b32 v94, 4, v93"); I("v_lshrrev_b32 v93, 3, v90"); I("v_lshl_add_u32 v94, v93, 2, v94")
I("v_and_b32 v93, 3, v90"); I("v_add_u32 v94, v94, v93"); I(f"v_lshl_add_u32 v94, v94, 2, {sT0}")
FR = dict(r=72, t=73, v=74, w=75)
I(f"v_and_b32 v72, 3, {vLANE}"); I("v_lshlrev_b32 v72, 2, v72"); I(f"v_add_u32 v72, {PRG}, v72")
I(f"s_lshl_b32 {sT0}, {sW_}, 2"); I(f"s_add_u32 {sT0}, {sT0}, {PRG}"); I(f"v_mov_b32 v75, {sT0}")
def csig(st): signal("PC", PCV[st], FR["w"], FR["v"], 0)
for i in range(8):
    it = items[f"X{i}"]
    E.wait(vm=it.name)
    for s in range(4):
        DS(f"ds_read_b128 {v(XF + 16*i + 4*s, 4)}, {v(vP1[s])} offset:{it.base & 0xffff}", f"xr{i}_{s}"); note_read(it.name)
    if not OPT["x3"] and i + 3 < 8: X_issue(i + 3)
    if OPT["x3"] and i + 4 < 8: E.wait(lg=f"xr{i}_3"); X_issue(i + 4)
    if i == OPT["xi"]: csig("Xi")
    if i == 4 and OPT["mw"]:
        I(f"s_cmp_eq_u32 {sW_}, 1"); I("s_cselect_b64 s[52:53], s[38:39], s[36:37]"); I(f"s_cmp_eq_u32 {sW_}, 2"); I("s_cselect_b64 s[52:53], s[40:41], s[52:53]")
        I(f"s_cmp_eq_u32 {sW_}, 3"); I("s_cselect_b64 s[52:53], s[26:27], s[52:53]"); I("s_mov_b32 s54, 1409024"); I("s_cselect_b32 s54, 524288, s54"); I("s_mov_b32 s55, 0x20000")
        I(f"s_cselect_b32 {sT0}, 16, 43"); I(f"s_mul_i32 {sT1}, s2, {sT0}"); I(f"s_sub_u32 {sT0}, {sT0}, 1"); I(f"v_min_u32 v76, {sT0}, {vLANE}"); I(f"v_add_lshl_u32 v76, v76, {sT1}, 7")
        VM("buffer_load_dword v77, v76, s[52:55], 0 offen", "mw")
        I("s_mov_b64 s[52:53], s[28:29]"); I(f"s_cmp_eq_u32 {sW_}, 3"); I("s_cselect_b32 s54, 524288, 0")
        VM("buffer_load_dword v77, v76, s[52:55], 0 offen", "mw")
    for s in range(4):
        E.wait(lg=f"xr{i}_{s}")
        for d in range(4):
            x = v(XF + 16*i + 4*s + d)
            I(f"v_dot2c_f32_bf16 v{64+d}, {sC11}, {x}"); I(f"v_dot2c_f32_bf16 v{68+d}, {x}, {x}")
    lstamp(f"X{i}")
csig("X"); gchk = {"S0": chk_issue(FR["r"], FR["t"], 16)}
I("v_add_f32 v64, v64, v65"); I("v_add_f32 v66, v66, v67"); I("v_add_f32 v68, v68, v69")
I("v_add_f32 v64, v64, v66"); I("v_add_f32 v70, v70, v71"); I("v_mov_b32 v65, v64"); I("v_add_f32 v68, v68, v70"); I("v_mov_b32 v69, v68")
I("v_permlane32_swap_b32 v64, v65"); I("v_permlane32_swap_b32 v68, v69")
I("v_add_f32 v64, v64, v65"); I("v_mul_f32 v64, 0x3b000000, v64")
runall(bf16r_ops(65, 64)); I(f"v_sub_f32 {v(vNM)}, 0, v65")
I(f"s_sub_u32 {sT0}, 65536, {sM4}")
for s in range(4): I(f"v_add_u32 {v(vP1[s])}, {sT0}, {v(vP1[s])}")
win = {"p1": 65536, "c1": 0, "gt": 0, "lin": 0, "wt": 0}
def burst(i):
    for d in range(16):
        x = v(XF + 16*i + d)
        I(f"v_dot2_f32_bf16 v{32+2*d}, {x}, {sC10}, {v(vNM)}"); I(f"v_dot2_f32_bf16 v{33+2*d}, {x}, {sC01}, {v(vNM)}")
qC, qB = [], []
marks = set()
def run_op(op):
    if isinstance(op, tuple):
        if op[0] == "hold": holdq[0] = op[1]
        else: marks.add(op[1])
    elif isinstance(op, str): I(op)
    else: op()
def need_mark(m):
    while m not in marks:
        q = next(q for q in (qC, qB) if ("mark", m) in [o for o in q if isinstance(o, tuple)])
        run_op(q.pop(0))
def cvt_ops(i):
    ops = []
    for d in range(16):
        ops.append(f"v_cvt_pk_bf16_f32 {v(XF + 16*i + d)}, v{32+2*d}, v{33+2*d}")
        if d & 3 == 3: ops.append(("mark", f"cen{4*i + (d>>2)}"))
    return ops
B = ["v_add_f32 v68, v68, v69", "v_mul_f32 v68, 0x3b000000, v68", "v_fma_f32 v68, -v64, v64, v68", "v_max_f32 v68, 0, v68"]
B += bf16r_ops(68, 68) + ["v_add_f32 v68, 0x3727c5ac, v68"] + bf16r_ops(68, 68) + ["v_sqrt_f32 v68, v68", lambda: DS("ds_write_b32 v94, v65 offset:512", "tabw")]
B += bf16r_ops(68, 68) + ["v_rcp_f32 v68, v68", lambda: DS("ds_write_b32 v94, v68", "tabw"), f"v_mul_f32 {v(vR2)}, v68, v68", ("mark", "tab")]
qB.extend(B)

class Slot: pass
slots = []
def add_slot(chunk, reads, mfma, needs=()):
    s = Slot(); s.chunk, s.reads, s.mfma, s.needs = chunk, reads, mfma, needs; slots.append(s)
for i in range(8):
    for s in range(4):
        f = 4*i + s
        for comp in range(2):
            acc = v(ACC_I if comp else ACC_R, 16)
            add_slot(f"S{i}", [("p1", f"S{i}", s, comp * 4096)], lambda b, f=f, acc=acc: f"{MF} {acc}, {v(XF+4*f,4)}, {v(b[0],4)}, {acc if f else 0}", needs=[f"cen{f}"])
P2 = len(slots)
order = [(0, s, u, m) for s in range(4) for u in range(2) for m in range(2)] + [(0, s, 2, m) for s in range(4) for m in range(2)]
order += [(i, s, u, m) for i in range(1, 8 - NU) for s in range(4) for u in range(3) for m in range(2)]
order += [(i, s, u, m) for u in range(3) for i in range(8 - NU, 8) for s in range(4) for m in range(2)]
unit_done = {}
for (i, s, u, m) in order:
    f = 4*i + s; acc = v((ACCU if m else ACCG)[u], 16)
    nd = (["tab"] if f == 0 else []) + (["dumped"] if (f, u) == (0, 2) else [])
    add_slot(f"G{i}", [("gt", f"G{i}", m * 12288 + 16*s*192 + 64*u)], lambda b, f=f, acc=acc: f"{MF} {acc}, {v(b[0],4)}, {v(XF+4*f,4)}, {acc if f else 0}", needs=nd)
    unit_done[u] = len(slots) - 1
P3 = len(slots)
ACC3 = 32; BASE = 48
vHST = 138; vDSK = 140; vHR, vWT, vXR, vTAB3, vOUT = 128, 129, 130, 131, 132
sHG = ["s16", "s17", "s18"]
EPO = 144; vC1 = [134, 135, 136, 137]; vC2 = [2, 3, 4, 5]
cGo = [128, 129, 130]; cCo = [132, 133, 134, 135]
ACC4 = 48; ACCS = [64, 80]
AQ = list(range(172, 256, 4)) + list(range(108, 128, 4))
BASE = 144; PX = 108
P3BUFS = list(range(8, 32, 4)) + [96, 100, 104]
vA = 139; vWT2 = 133; vA2 = 7; vPB = 0
aloads = []; started = set()
for n, (t, hv) in enumerate(jobs):
    if n == NJ1: P4 = len(slots)
    for s in range(4):
        idx = {}
        for h_ in hv: idx[h_] = len(aloads); aloads.append((f"a{len(aloads)}", AQ[len(aloads) % len(AQ)], t, s, h_, s == 0 and h_ == hv[0]))
        for a_ in range(2):
            rd = ("c1", t, s, a_) if t[0] == "C" else ("wt", t, 16*s*128, a_)
            for k_, h_ in enumerate(hv):
                r_ = ([ACC3, ACC4] if h_ == "k" else ACCS)[a_]; acc = v(r_, 16)
                z = r_ not in started; started.add(r_)
                tag, q = aloads[idx[h_]][:2]
                add_slot(f"J{n}", [rd] if k_ == 0 else [], lambda b, q=q, acc=acc, z=z: f"{MF} {acc}, {v(q,4)}, {v(b[0],4)}, {0 if z else acc}")
                slots[-1].atag = tag; slots[-1].arel = idx[h_] + 1 if a_ == 1 else None
M = len(slots)
first_slot = {}
for m, s in enumerate(slots): first_slot.setdefault(s.chunk, m)
pool = [FB0 + 4*k for k in range(NFB)]
def newfb(): return pool.pop(0)
def set_win(kind, regs, base, span):
    cur = win[kind]
    if not (cur <= base and base + span <= cur + 65536):
        new = min((base // 49152) * 49152, MISC - 65536)
        if not (new <= base and base + span <= new + 65536): new = base
        for r in regs: I(f"v_add_u32 {v(r)}, {(new - cur) & 0xffffffff}, {v(r)}")
        win[kind] = cur = new
    return cur
def emit_reads(m):
    s = slots[m]; s.bufs = []; s.tags = []; s.own = bool(s.reads)
    if not s.reads: s.bufs = slots[m-1].bufs
    for rd in s.reads:
        b = newfb(); s.bufs.append(b); tag = f"rd{m}_{rd[0]}"; s.tags.append(tag)
        kind, it = rd[0], items[rd[1]]
        if kind == "p1":
            w = set_win(kind, vP1, it.base, it.size); DS(f"ds_read_b128 {v(b,4)}, {v(vP1[rd[2]])} offset:{it.base - w + rd[3]}", tag)
        elif kind == "c1":
            w = set_win(kind, vC1 + vC2, it.base, it.size); DS(f"ds_read_b128 {v(b,4)}, {v((vC2 if rd[3] else vC1)[rd[2]])} offset:{it.base - w}", tag)
        else:
            regs, pitch = ([vGT], 192) if kind == "gt" else ([vWT, vWT2], 128)
            reg = regs[rd[3]] if kind == "wt" else vGT
            w = set_win(kind, regs, it.base, it.size)
            DS(f"ds_read_b64_tr_b16 {v(b,2)}, {v(reg)} offset:{it.base - w + rd[2]}", tag)
            DS(f"ds_read_b64_tr_b16 {v(b+2,2)}, {v(reg)} offset:{it.base - w + rd[2] + 4*pitch}", tag)
        note_read(it.name)
events = {}
def at(m, fn): events.setdefault(m, []).append(fn)
post = {8*i + 7: (lambda i=i: (need_mark(f"cen{4*i+7}"), burst(i + 2), qC.extend(cvt_ops(i + 2)))) for i in range(6)}
at(52, lambda: qB.extend([f"v_lshlrev_b32 {v(vNM)}, 6, {vLANE}", f"v_bfe_u32 v64, {vLANE}, 1, 2", f"v_lshl_add_u32 {v(vNM)}, v64, 4, {v(vNM)}",
                          f"v_add_u32 {v(vNM)}, {sM4}, {v(vNM)}", f"v_add_u32 {v(vNM)}, {DUMPS[1]}, {v(vNM)}", ("mark", "dadr")]))
dtag = {}
at(P2 - 1, lambda: dtag.__setitem__(0, chk_issue(FR["r"], FR["t"], 0)))
def dump_op(j, comp):
    need_mark("dadr")
    if (j, comp) == (0, 1): chk_test(dtag[0], PCV["S5"], FR["r"], FR["t"], 0, -12)
    if j and comp == 0: I(f"v_xor_b32 {v(vNM)}, {16 * (j ^ (j - 1))}, {v(vNM)}")
    DS(f"ds_write_b128 {v(vNM)}, {v((ACC_I if comp else ACC_R) + 4*j, 4)} offset:{DUMPS[comp] - DUMPS[1]}", "dump")
    if (j, comp) == (3, 1): marks.add("dumped")
def dump64(j, comp, hf):
    need_mark("dadr")
    if j and comp == 0 and hf == 0: I(f"v_xor_b32 {v(vNM)}, {16 * (j ^ (j - 1))}, {v(vNM)}")
    if comp == 0 and hf == 0: I(f"v_add_u32 {v(vP1[1])}, {DUMPS[0]}, {v(vNM)}")
    DS(f"ds_write_b64 {v(vNM if comp else vP1[1])}, {v((ACC_I if comp else ACC_R) + 4*j + 2*hf, 2)} offset:{8*hf}", "dump")
    if (j, comp, hf) == (3, 1, 1): marks.add("dumped")
if OPT["d64"]:
    for k in range(16): at(P2 + (k * 15) // 16, lambda k=k: dump64(k >> 2, (k >> 1) & 1, k & 1))
else:
    for k in range(8): at(P2 + 1 + (k * OPT["dsp"]) // 2, lambda k=k: dump_op(k >> 1, k & 1))
def fr_move():
    I(f"v_mov_b32 {v(vP1[0])}, v72"); I(f"v_mov_b32 {v(vP1[3])}, v75"); FR.update(r=vP1[0], t=vP1[1], v=vP1[2], w=vP1[3])
at(P2 - 2, fr_move)
if OPT["mw"]: at(P2 - 3, lambda: E.wait(vm="mw"))
at(31, lambda: csig("S3")); at(47, lambda: csig("S5"))
at(P2 + OPT["bd"], lambda: (need_mark("dumped"), E.wait(lg=["dump", "tabw"]), csig("dump")))
LAND = {"G2": ["G4"], "G3": ["G5", "G6"], "G4": ["G7"]}
for st, sl in CEV.items(): at(P2 + sl, lambda st=st: (E.wait(vm=LAND.get(st, []), lg=["cof2"] if st == "G1" else []), csig(st)))
GATE = {c: (16, PHV[c]) for c in CHUNKS[:8]}
GATE["S0"] = (16, PHV["S2"]); GATE["S4"] = (16, PHV["S6"])
GATE.update({"G4": (0, PCV["G2"]), "G5": (0, PCV["G3"]), "G6": (0, PCV["G4"])})
del GATE["S2"], GATE["S6"]
for c in list(GATE)[1:]: at(first_slot[c] - OPT["D"] - 6, lambda c=c: gchk.__setitem__(c, chk_issue(FR["r"], FR["t"], GATE[c][0])))
cplaced = []
cWo = [168, 169, 170, 171]
def c_offsets():
    I(f"s_lshl_b32 {sT0}, {sW_}, 11"); I(f"s_add_u32 {sT0}, {sT0}, {HS}"); I(f"v_lshl_add_u32 v136, {vLANE}, 4, {sT0}")
    DS("ds_read_b128 v[128:131], v136", "cof"); note_read("OFT")
at(P2 + 24, c_offsets)
at(P2 + 45, lambda: (DS("ds_read_b128 v[132:135], v136 offset:1024", "cof2"), note_read("OFT")))
at(P2 + 76, lambda: qB.extend([lambda: E.wait(lg="cof2"), f"v_readfirstlane_b32 {sNON}, v135", "v_mov_b32 v168, v134"] + [f"v_add_u32 v{168+q}, {7168*q}, v134" for q in range(1, 4)]
                              + ["v_add_u32 v134, 14336, v132", "v_add_u32 v135, 14336, v133"] + q_setup() + [("mark", "cw")]))
def c_load(name, ta, step2, gate=None):
    k = name[0]; i = int(name[1:]); base = items[name].base
    tag = {}
    if gate:
        off, val = (0, PCV[gate]) if gate in PCV else (32, gate)
        at(P2 + ta - 6, lambda: tag.__setitem__(0, chk_issue(FR["r"], 137, off)))
    n = 6 if k == "G" else 4
    for q in range(n):
        def op(q=q):
            if q == 0:
                E.wait(lg="cof")
                if gate: chk_test(tag[0], val, FR["r"], 137, off, -(13 + len(cplaced))); cknown.append(("PC" if off == 0 else "PD", val))
                cplaced.append((name, list(cknown)))
            if k == "G":
                if q % 3 == 0:
                    I(f"s_add_u32 m0, {sM6}, {base + 1024*q}")
                    I(f"s_mul_i32 {sSO}, {sK[i]}, 1376" if q == 0 else f"s_add_u32 {sSO}, {sSO}, {16*2752}")
                VM(f"buffer_load_dwordx4 {v(cGo[q%3])}, {SG}, {sSO} offen" + (f" offset:{(q%3)*1024}" if q % 3 else "") + " lds", name)
            else:
                if q == 0:
                    need_mark("cw"); I(f"s_add_u32 m0, {sM4}, {base}")
                    if k == "C": q_h(sSO, i); I(f"s_lshl_b32 {sSO}, {sSO}, 7")
                    else: w_soff(sSO, i, "s19")
                VM(f"buffer_load_dwordx4 {v((cCo if k == 'C' else cWo)[q])}, {SC if k == 'C' else SWD}, {sSO} offen" + (f" offset:{q*1024}" if q else "") + " lds", name)
        at(P2 + ta + (q * step2) // 2, op)
cknown = []
c_load("G4", 37, 5, "G0"); c_load("G6", 52, 4); c_load("G5", 64, 4, "G1"); c_load("G7", 77, 5); c_load("C1", 93, 4)
c_load("C2", OPT["c1"], 4); c_load("C3", OPT["c1"] + 8, 4);
if OPT["wl"] < 3: c_load("W1", 141, 4)
if OPT["wl"] < 2: c_load("W2", 156, 3, "G5"); c_load("W3", 162, 3)
def st_addr():
    o = [f"s_lshl2_add_u32 {sT0}, {sC_}, {sW_}", f"s_mul_i32 {sT0}, {sT0}, {152*1024}", f"v_lshl_add_u32 {v(vHST)}, {vLANE}, 4, {sT0}", f"s_lshl_b32 {sT0}, {sG_}, 11"]
    for uu in range(3):
        o += [f"s_add_u32 {sT3}, {sT0}, {65536 + 15*uu*2048}",
              lambda uu=uu: (I(f"s_cmp_lt_u32 {sG_}, {14 if uu == 2 else 15}"), I(f"s_cselect_b32 {sHG[uu]}, {sT3}, 0x40000000"))]
    o += [f"s_and_b32 {sT1}, {sW_}, 1", f"s_lshr_b32 {sT2}, {sW_}, 1", f"s_lshl1_add_u32 {sT0}, {sC_}, {sGH}", f"s_lshl1_add_u32 {sT0}, {sT0}, {sT2}",
          f"s_mul_i32 {sT0}, {sT0}, {152*1024}", f"s_lshl_b32 {sT3}, {sT1}, 12", f"s_add_u32 {sT0}, {sT0}, {sT3}", f"v_lshl_add_u32 {v(vA)}, {vLANE}, 4, {sT0}",
          f"v_lshlrev_b32 {v(vDSK)}, 16, v131",
          f"s_mul_i32 {sT0}, {sGH}, {4*152*1024}", f"s_sub_u32 {sT0}, {2*152*1024}, {sT0}", f"v_add_u32 {v(vA2)}, {sT0}, {v(vA)}", ("mark", "sta1")]
    return o
def st_addr2():
    o = [f"s_and_b32 {sT1}, {sW_}, 1", f"s_lshr_b32 {sT2}, {sW_}, 1", f"v_lshrrev_b32 v141, 5, {vLANE}", f"v_and_b32 v143, 31, {vLANE}"]
    o += [f"s_lshl1_add_u32 {sT3}, {sGL}, {sT1}"]
    o += [f"s_lshl_b32 {sT3}, {sT3}, 7", f"s_lshl1_add_u32 {sT0}, {sGH}, {sT2}", f"s_lshl2_add_u32 s13, {sC_}, {sT0}", "s_lshl_b32 s13, s13, 16", f"s_add_u32 s13, s13, {sT3}",
          "v_lshlrev_b32 v142, 15, v141", "v_lshl_add_u32 v142, v143, 2, v142", f"v_add_u32 {v(vOUT)}, s13, v142"]
    o += [f"s_lshl_b32 {sT0}, {sT0}, 7", f"s_add_u32 {sT0}, {sT0}, {RTAB}", f"v_lshl_add_u32 {v(vTAB3)}, v141, 6, {sT0}",
          f"s_lshl_b32 {sT0}, {sT1}, 6", f"s_lshl_b32 {sT3}, {sT2}, 12", f"s_add_u32 {sT3}, {sT3}, {sT0}", f"s_add_u32 {sT3}, {sT3}, {XE}",
          "v_lshlrev_b32 v142, 11, v141", "v_lshl_add_u32 v142, v143, 1, v142", f"v_add_u32 {v(vXR)}, {sT3}, v142",
          f"s_lshl_b32 {sT3}, {sW_}, 12", f"s_add_u32 {sT3}, {sT3}, {RED}", f"v_lshl_add_u32 {v(vHR)}, {vLANE}, 4, {sT3}"]
    o += [f"v_bfe_u32 v142, {vLANE}, 2, 2", "v_lshl_add_u32 v142, v141, 3, v142", "v_lshlrev_b32 v142, 7, v142",
          f"v_and_b32 v6, 16, {vLANE}", "v_lshl_add_u32 v142, v6, 1, v142", f"v_and_b32 v6, 3, {vLANE}", "v_lshl_add_u32 v142, v6, 3, v142",
          f"v_and_b32 v6, 8, {vLANE}", "v_lshlrev_b32 v6, 3, v6", f"v_xor_b32 v6, {sT0}, v6", f"s_lshl_b32 {sT3}, {sT1}, 13", f"v_add3_u32 {v(vWT)}, v142, v6, {sT3}", f"v_xor_b32 {v(vWT2)}, 64, {v(vWT)}"]
    o += [f"s_mul_i32 {sT0}, {sT1}, 12288", "v_bfe_u32 v142, v143, 1, 3", "v_xor_b32 v142, v142, v141", "v_lshlrev_b32 v142, 4, v142", "v_lshl_add_u32 v142, v143, 7, v142",
          f"v_add_u32 {v(vC1[0])}, {sT0}, v142"] + [f"v_xor_b32 {v(vC1[s])}, {32*s}, {v(vC1[0])}" for s in range(1, 4)] + [f"v_xor_b32 {v(vC2[s])}, 4096, {v(vC1[s])}" for s in range(4)] + [("mark", "sta")]
    return o
at(P2 + 120, lambda: qB.extend(st_addr()))
def glu_epi(u):
    ops = []; o = EPO + 8*u
    for j in range(8):
        g0, u0 = ACCG[u] + 2*j, ACCU[u] + 2*j
        ops += [f"v_mul_f32 {v(u0)}, {v(vR2)}, {v(u0)}", f"v_mul_f32 {v(u0+1)}, {v(vR2)}, {v(u0+1)}",
                f"v_mul_f32 {v(u0)}, {v(g0)}, {v(u0)}", f"v_mul_f32 {v(u0+1)}, {v(g0+1)}, {v(u0+1)}", f"v_cvt_pk_bf16_f32 {v(o+j)}, {v(u0)}, {v(u0+1)}"]
        if j & 3 == 3:
            ops.append(lambda fr=j >> 2: VM(f"buffer_store_dwordx4 {v(o + 4*fr, 4)}, {v(vHST)}, {SWS}, {sHG[u]} offen offset:{fr*1024} sc1", "gst" if u == 2 else "gsa"))
    return ops + [("mark", f"epi{u}")]
for u in range(2): at(unit_done[u] + 3, lambda u=u: qB.extend(glu_epi(u)))
def base_ops():
    ops = [f"v_mov_b32 {v(BASE+r)}, 0" for r in range(16)]
    def rdx(r): DS(f"ds_read_u16_d16_hi {v(BASE+r)}, {v(vXR)} offset:{128*r}", f"xe{r}"); note_read("XE")
    ops += [lambda r=r: rdx(r) for r in range(16)]
    R3, M3, t0, t1, p = 160, 164, 168, 169, 170
    rnd = [f"v_cvt_pk_bf16_f32 {v(p)}, {v(t0)}, {v(t1)}", f"v_lshlrev_b32 {v(t0)}, 16, {v(p)}", f"v_and_b32 {v(t1)}, 0xffff0000, {v(p)}"]
    for j in range(4):
        ops += [lambda j=j: DS(f"ds_read_b128 {v(R3,4)}, {v(vTAB3)} offset:{16*j}", f"r3{j}"), lambda j=j: DS(f"ds_read_b128 {v(M3,4)}, {v(vTAB3)} offset:{512+16*j}", f"m3{j}"),
                ("hold", 3), lambda j=j: E.wait(lg=f"m3{j}")]
        for e in (0, 2):
            r = 4*j + e
            ops += [f"v_sub_f32 {v(t0)}, {v(BASE+r)}, {v(M3+e)}", f"v_sub_f32 {v(t1)}, {v(BASE+r+1)}, {v(M3+1+e)}"] + rnd
            ops += [f"v_mul_f32 {v(t0)}, {v(t0)}, {v(R3+e)}", f"v_mul_f32 {v(t1)}, {v(t1)}, {v(R3+1+e)}"] + rnd
            ops += [f"v_mul_f32 {v(t0)}, {v(t0)}, {v(vDSK)}", f"v_mul_f32 {v(t1)}, {v(t1)}, {v(vDSK)}"] + rnd
            ops += [f"v_add_f32 {v(BASE+r)}, {v(BASE+r)}, {v(t0)}", f"v_add_f32 {v(BASE+r+1)}, {v(BASE+r+1)}, {v(t1)}"]
    return ops + [("mark", "base")]
holdq = [0]

def segment(lo, hi, Dof, lim, pre_bar):
    rn = lo; held = []
    for m in range(lo - 1, hi):
        c0 = E.count + E.nops
        if m >= lo:
            s = slots[m]
            for n in s.needs: need_mark(n)
            tags = list(s.tags)
            if m % 2 == 0 and m + 1 < hi: tags += slots[m+1].tags
            E.wait(vm=[s.atag] if m >= P3 else [], lg=tags)
            I(s.mfma(s.bufs)); c0 = E.count + E.nops
            if s.own: pool.extend(held); held = list(s.bufs)
            if m >= P3:
                if s.arel: adone[0] = max(adone[0], s.arel)
                a_issue(OPT["ar"])
            if first_slot[s.chunk] == m and m < P3: lstamp(s.chunk)
            if OPT["lst"] == 9 and m >= P2 + OPT["l0"] and (m - P2 - OPT["l0"]) % OPT["ld"] == 0: LSET["C"].append(f"m{m-P2}"); lstamp(f"m{m-P2}")
            for fn in events.get(m, []): fn()
        nr = 0
        while rn < hi and rn <= m + Dof(m) and len(pool) >= len(slots[rn].reads) and (nr < 2 or m < lo):
            ch = slots[rn].chunk
            if first_slot[ch] == rn:
                if pre_bar: pre_bar(ch)
                if ch in GATE:
                    chk_test(gchk[ch], GATE[ch][1], FR["r"], FR["t"], GATE[ch][0], -(list(GATE).index(ch) + 1))
                    cknown.append(("PC" if GATE[ch][0] == 0 else "PH", GATE[ch][1]))
            emit_reads(rn); rn += 1; nr += 1
        assert rn >= min(hi, m + 3), (m, rn)
        if m >= lo:
            n = 0
            while qC and (n < 3 or isinstance(qC[0], tuple)): run_op(qC.pop(0)); n += 1
            if holdq[0]: holdq[0] -= 1
            while qB and not holdq[0] and (E.count + E.nops - c0 < lim - (m & 1) or isinstance(qB[0], tuple)): run_op(qB.pop(0))
            if m in post: post[m]()
    pool.extend(held)
retired = set()
def D2(m): return OPT["D"]
anext = [0]; aok = {"C": False, "W": False, "L": False}; adone = [0]
def a_issue(n):
    while n > 0 and anext[0] < len(aloads):
        tag, q, t, s_, h_, first = aloads[anext[0]]
        if not aok["L" if t in ("W4", "W5") else t[0]] or anext[0] - adone[0] >= min(len(AQ), OPT["al"]): return
        if first:
            i = int(t[1:])
            if t[0] == "C": q_h(sSO, i); I(f"s_lshl_b32 {sSO}, {sSO}, 13")
            else:
                q_u(sSO, i); I(f"s_cmp_eq_u32 {sSO}, 11"); I(f"s_cselect_b32 {sSO}, 0x20000, {sSO}"); I(f"s_lshl_b32 {sSO}, {sSO}, 13"); I(f"s_add_u32 {sSO}, {sSO}, 65536")
        VM(f"buffer_load_dwordx4 {v(q,4)}, {v(vA if h_ == 'k' else vA2)}, {SWS}, {sSO} offen" + (f" offset:{s_*1024}" if s_ else "") + " sc1", tag)
        anext[0] += 1; n -= 1
if OPT["ea"]:
    etag = {}
    at(P2 + OPT["ea"] - 6, lambda: etag.__setitem__(0, chk_issue(FR["r"], FR["t"], 16)))
    at(P2 + OPT["ea"], lambda: (need_mark("sta1"), chk_test(etag[0], PHV["K0"], FR["r"], FR["t"], 16, -11), aok.__setitem__("C", True)))
    for m_ in range(OPT["ea"], 192): at(P2 + m_, lambda: a_issue(1) if anext[0] < 12 else None)
burst(0); runall([o for o in cvt_ops(0) if isinstance(o, str)]); marks.update(f"cen{k}" for k in range(4)); burst(1); qC.extend(cvt_ops(1))
segment(0, P3, D2, 6, None)
PBAR = {"J0": "P0", "J2": "P1", f"J{OPT['gj']}": "P2", "J8": "P3", "J12": "P4"}
def p3bar(ch):
    if ch in PBAR:
        cbar("b" + PBAR[ch], vm=[{0: "W3", 2: "W1", 3: "C3"}[OPT["wl"]]])
        if PBAR[ch] == "P1": aok["W"] = True
        if PBAR[ch] == "P2": aok["L"] = True
    lstamp(ch)
lstamp("T"); csig("T")
need_mark("epi1")
qB.extend(glu_epi(2)); need_mark("epi2")
pool[:] = P3BUFS
sa = st_addr2()
I(f"v_mov_b32 v106, {v(FR['r'])}"); I(f"v_mov_b32 v107, {v(FR['w'])}"); FR.update(r=106, w=107, t=104, v=105); P3BUFS.pop(); pool[:] = P3BUFS
for op in sa: run_op(op)
if OPT["ep"]:
    if not OPT["ea"]: chk_spin(PHV["K0"], FR["r"], FR["t"], 16); aok["C"] = True; a_issue(OPT["a0"])
    E.wait(vm="gsa"); csig("gsa"); a_issue(12)
else:
    E.wait(vm="gsa"); csig("gsa")
    chk_spin(PHV["K0"], FR["r"], FR["t"], 16); aok["C"] = True; a_issue(12)
lstamp("K0")
qB.extend([f"s_lshl4_add_u32 {sT0}, {sC_}, {sG_}", f"s_lshl2_add_u32 {sT0}, {sT0}, {sW_}", f"s_lshl_b32 {sT0}, {sT0}, 12", f"s_add_u32 s20, {sT0}, {WS_PB}", f"s_xor_b32 s21, s20, {8 << 14}",
           "s_mov_b32 s16, 0x07060500", "s_mov_b32 s17, 0x07060501", "s_mov_b32 s18, 0x07060502", "s_mov_b32 s22, 0x07060503", "s_mov_b32 s23, 0x0c0c0400", "s_mov_b32 s53, 0x05040100", f"v_lshlrev_b32 {v(vPB)}, 4, {vLANE}"] + base_ops())
if OPT["gs"] < 0: E.wait(vm="gst"); csig("gst")
else: at(P3 + OPT["gs"], lambda: (E.wait(vm="gst"), csig("gst")))
at(first_slot[f"J{OPT['gj']}"] - OPT["D3"] - OPT["pjd"], lambda: csig("pj"))
def reduce_pair(own, other, bar):
    for j in range(4): DS(f"ds_write_b128 {v(vHR)}, {v(other+4*j,4)} offset:{1024*j}", "red" + bar)
    I(f"v_xor_b32 {v(FR['t'])}, 4096, {v(vHR)}")
    cbar(bar, lg=["red" + bar])
    for j in range(4): DS(f"ds_read_b128 {v(other+4*j,4)}, {v(FR['t'])} offset:{1024*j}", f"rr{j}")
if OPT["ovr"]:
    at(P4, lambda: (lstamp("snd"), need_mark("base")))
    for j in range(4): at(P4 + 1 + j // 2, lambda j=j: DS(f"ds_write_b128 {v(vHR)}, {v(ACCS[1]+4*j,4)} offset:{1024*j}", "redbR1"))
    def r1_mid():
        I(f"v_xor_b32 v170, 4096, {v(vHR)}"); I(f"v_mov_b32 v171, {sNON}")
        cbar("bR1", lg=["redbR1"])
        for j in range(4): DS(f"ds_read_b128 {v(ACCS[1]+4*j,4)}, v170 offset:{1024*j}", f"rq{j}")
    def r1_fin(j):
        E.wait(lg=f"rq{j}")
        for e in range(4): I(f"v_add_f32 {v(ACCS[0]+4*j+e)}, {v(ACCS[0]+4*j+e)}, {v(ACCS[1]+4*j+e)}")
        for e in range(4): I(f"v_perm_b32 {v(ACCS[0]+4*j+e)}, {v(ACCS[0]+4*j+e)}, v171, {['s16', 's17', 's18', 's22'][e]}")
        VM(f"buffer_store_dwordx4 {v(ACCS[0]+4*j,4)}, {v(vPB)}, {SWS}, s21 offen offset:{1024*j} sc1", "pst")
    at(P4 + 5, r1_mid)
    for j in range(4): at(P4 + 7 + j, lambda j=j: r1_fin(j))
else:
    segment(P3, P4, lambda m: OPT["D3"], 8, p3bar)
    lstamp("snd")
    need_mark("base")
    reduce_pair(ACCS[0], ACCS[1], "bR1")
    I(f"v_mov_b32 v171, {sNON}")
    for j in range(4):
        E.wait(lg=f"rr{j}")
        for e in range(4): I(f"v_add_f32 {v(ACCS[0]+4*j+e)}, {v(ACCS[0]+4*j+e)}, {v(ACCS[1]+4*j+e)}")
        for e in range(4): I(f"v_perm_b32 {v(ACCS[0]+4*j+e)}, {v(ACCS[0]+4*j+e)}, v171, {['s16', 's17', 's18', 's22'][e]}")
        VM(f"buffer_store_dwordx4 {v(ACCS[0]+4*j,4)}, {v(vPB)}, {SWS}, s21 offen offset:{1024*j} sc1", "pst")
pl_ld = [f"buffer_load_dwordx4 {v(80+4*j,4)}, {v(vPB)}, {SWS}, s20 offen offset:{1024*j} sc1" for j in range(4)]
at(M - 1 - OPT["pl"], lambda: [VM(t_, "pld") for t_ in pl_ld])
segment(P3 if OPT["ovr"] else P4, M, lambda m: OPT["D3"], 8, p3bar)
assert not qC and not qB and anext[0] == len(aloads)
RT2 = jobs[10][0]; RED2 = slot_of[RT2] * 16384
I(f"v_add_u32 {v(vHR)}, {(RED2 - RED) & 0xffffffff}, {v(vHR)}")
reduce_pair(ACC3, ACC4, "bR2")
for r in range(16): I(f"v_add_f32 {v(ACC3+r)}, {v(ACC3+r)}, {v(BASE+r)}")
chkp = []
for j in range(4):
    b_ = 80 + 4*j
    chkp += [f"v_perm_b32 v65, v{b_+1}, v{b_}, s23", f"v_perm_b32 v66, v{b_+3}, v{b_+2}, s23", "v_perm_b32 v65, v66, v65, s53",
             "v_xor_b32 v64, v171, v65" if j == 0 else "v_xor_b32 v65, v171, v65"] + ([] if j == 0 else ["v_or_b32 v64, v64, v65"])
chkp.append("v_cmp_ne_u32 vcc, 0, v64")
E.wait(vm="pld")
for c_ in chkp: I(c_)
I("s_cbranch_vccnz L_slow_p"); E.label("L_back_p"); lstamp("kp")
slow.extend(["L_slow_p:", ] + ["  " + t_ for t_ in pl_ld] + ["  s_waitcnt vmcnt(0)"] + ["  " + c_ for c_ in chkp] + spin_guard("L_back_p", -10) + ["  s_cbranch_vccnz L_slow_p", "  s_branch L_back_p"])
I("s_mov_b32 s16, 0xffffff00")
for r in range(16): I(f"v_and_b32 {v(80+r)}, s16, {v(80+r)}"); I(f"v_add_f32 {v(ACC3+r)}, {v(ACC3+r)}, {v(80 + r)}")
lstamp("last")
for r in range(16):
    if r % 4 == 0: E.wait(lg=f"rr{r>>2}")
    I(f"v_add_f32 {v(ACC3+r)}, {v(ACC3+r)}, {v(ACC4+r)}")
    if r % 2 == 0: I(f"s_mov_b32 {sT0}, {(r>>1)*4096}")
    VM(f"buffer_store_dword {v(ACC3+r)}, {v(vOUT)}, {SOUT}, {sT0} offen offset:{(r&1)*2048}" + (" sc1" if OPT["osc"] else ""), "out")
dump_stamps("C")
I("s_endpgm")

E = EH
E.label("L_helper")
vSo = [2, 3]; vGo = [4, 5, 6]; vCo = [8, 9, 10, 11]; vWo = [12, 13, 14, 15]; vHo = 16; vXEo = [17, 18]
vFLS, vFLP, vPOLL, vFLX = 19, 20, 21, 7
vLR, vCR, vL16, vL128, vL256, vPQ = 22, 24, 26, 28, 30, 32
vE, vE2, vP = 34, 36, 38
vEQA, vEST, vEF, vEX, vZA, vHSW, vHSR, vHSTo, vDA, vTAB = 40, 41, 42, 44, 46, 47, 48, 49, 50, 54
TR, TI, RT, TMP = 96, 112, 128, 144
vF16, vF256 = 56, 58
vQR, vQT, vQV, vQW = 160, 161, 162, 163
vDB = 164; vUP = 76
live = [items[f"X{i}"] for i in range(4, 8)]
known = {id(EC): 0, id(EH): 0}
def hplace(name):
    it = items[name]
    for o in list(live):
        if o.base < it.base + it.size and it.base < o.base + o.size:
            assert known[id(o.reader)] >= o.last_read, ("WAR", name, o.name)
            live.remove(o)
    live.append(it); return it
def adv11(s): I(f"s_add_u32 {s}, {s}, 1"); I(f"s_cmp_eq_u32 {s}, 11"); I(f"s_cselect_b32 {s}, 0, {s}")
cur_m0 = [None]
SOFF = {"G": "s16", "C": "s17", "W": "s18"}
def item_ops(name):
    k = name.rstrip("0123456789"); i = int(name[len(k):] or 0)
    so = SOFF.get(k)
    srd_, sm, voffs, pol = {"S": (SS, sM2, vSo, ""), "G": (SG, sM6, vGo, ""), "C": (SC, sM4, vCo, ""), "H": (SWS, sM4, [vHo]*4, " sc1"),
                            "W": (SWD, sM4, vWo, ""), "HG": (SWS, sM4, [vHo]*4, " sc1"), "XE": (SX, sM2, vXEo, "")}[k]
    prep = {"G": lambda: I(f"s_mul_i32 {so}, {sK[i]}, 1376"), "C": lambda: (q_h(so, i), I(f"s_lshl_b32 {so}, {so}, 7")),
            "W": lambda: w_soff(so, i, sSO)}.get(k, lambda: None)
    if so is None: so = "0" if k == "XE" else sK[i]
    ops = []
    for half in range(2 if k == "G" else 1):
        for q in range(len(voffs)):
            def op(half=half, q=q):
                if name in RT_:
                    if q == 0: prep()
                    VM(f"buffer_load_dwordx4 {v(RT_[name] + 4*q, 4)}, {v(voffs[q])}, {srd_}, {so} offen" + (f" offset:{q*1024}" if q else ""), name)
                    return
                if (half, q) == (0, 0): hplace(name)
                m0 = (sm, items[name].base + 3072 * half)
                if cur_m0[0] != m0: I(f"s_add_u32 m0, {sm}, {m0[1]}"); cur_m0[0] = m0
                if (half, q) == (0, 0): prep()
                if (half, q) == (1, 0): I(f"s_add_u32 {so}, {so}, {16*2752}")
                VM(f"buffer_load_dwordx4 {v(voffs[q])}, {srd_}, {so} offen" + (f" offset:{q*1024}" if q else "") + f"{pol} lds", name)
            ops.append(op)
    last = ops[-1]
    ops[-1] = lambda: (last(), done_issue.__setitem__(name, True))
    return ops
done_issue = {}
def issue(name, between=lambda: None):
    for op in item_ops(name): op(); between()
def unpark(name):
    hplace(name); E.wait(vm=name)
    I(f"v_add_u32 {v(vUP+1)}, {items[name].base}, {v(vUP)}")
    for q in range(4): DS(f"ds_write_b128 {v(vUP+1)}, {v(RT_[name] + 4*q, 4)} offset:{q*1024}", "up" + name)
def issue_mix(miss, *hits):
    mo = item_ops(miss); ho = [op for h in hits for op in item_ops(h)]
    for k, op in enumerate(mo):
        op()
        for h in ho[k * len(ho) // len(mo):(k + 1) * len(ho) // len(mo)]: h()
def flag_send(so): VM(f"buffer_store_dword v61, {v(vFLS)}, {SWS}, {so} offen sc1", "flag")
MBOX = {"s20": WS_FH - WS_FH, "s21": WS_FG - WS_FH, "s19": WS_FP - WS_FH}
def poll_issue(so, tag): pass
def poll_check(so, tag, inc):
    E.wait_all(lg=True)
    I(f"s_cmp_lg_u32 {sW_}, 0"); I(f"s_cbranch_scc1 L_back_{tag}")
    E.begin_cond()
    E.label(f"L_poll_{tag}")
    I(f"s_load_dwordx16 s[32:47], s[72:73], {MBOX[so]} glc"); I(f"s_sub_u32 {sSP2}, {sSP2}, 8"); I("s_cbranch_scc1 L_end"); I("s_waitcnt lgkmcnt(0)")
    for k in range(8): I(f"s_xor_b64 s[{32+2*k}:{33+2*k}], s[{32+2*k}:{33+2*k}], s[74:75]")
    for a_, b_ in ((32, 34), (36, 38), (40, 42), (44, 46), (32, 36), (40, 44), (32, 40)): I(f"s_or_b64 s[{a_}:{a_+1}], s[{a_}:{a_+1}], s[{b_}:{b_+1}]")
    I(f"s_cbranch_scc1 L_poll_{tag}")
    E.end_cond(); E.label(f"L_back_{tag}")
I(f"s_and_b32 {sT1}, {sW_}, 1"); I(f"s_lshl1_add_u32 {sT0}, {sG_}, {sT1}"); I(f"s_lshl_b32 {sT0}, {sT0}, 4")
I(f"v_add_lshl_u32 v84, v81, {sT0}, 10")
I(f"v_add_u32 {v(vSo[0])}, v84, v83"); I(f"v_add_u32 {v(vSo[1])}, v84, v85"); I(f"v_add_u32 {v(vSo[1])}, 7168, {v(vSo[1])}")
I(f"s_lshl_b32 {sM2}, {sW_}, 11")
E.wait_all(lg=True)
I(f"s_cmp_ge_u32 {sW_}, 2"); srd_sel(SS, 22, 24, 524288); srd_sel(SG, 36, 38, 1409024); srd_sel(SC, 26, 28, 524288)
issue("S0"); issue("S1"); E.barrier()
if OPT["prio"] == 2: I("s_setprio 1")
I(f"s_lshl2_add_u32 {sT0}, {sG_}, {sW_}"); I(f"s_lshl_b32 {sT0}, {sT0}, 3"); I(f"v_add_lshl_u32 v87, v82, {sT0}, 1")
VM("global_load_ushort v70, v87, s[30:31]", "par"); VM("global_load_ushort v71, v87, s[18:19]", "par"); VM("global_load_ushort v72, v87, s[20:21]", "par")
I(f"s_lshl1_add_u32 {sT0}, {sGL}, {sT1}"); I(f"s_lshl_b32 {sT0}, {sT0}, 5"); I(f"v_and_b32 v87, 31, {vLANE}"); I(f"v_add_lshl_u32 v87, v87, {sT0}, 1")
VM("global_load_ushort v7, v87, s[32:33]", "par")
srd(SDBG, 44, 256)
I(f"s_or_b32 {sT0}, s2, {sW_}"); I("s_cbranch_scc1 L_notag")
E.begin_cond()
I("s_or_b32 s13, s14, 1"); I("s_mul_i32 s13, s13, 0x9E3779B1"); I("v_mov_b32 v93, s13"); I("v_mov_b32 v94, 0"); I("s_mov_b64 exec, 1")
VM(f"buffer_store_dword v93, v94, {SDBG}, 0 offen sc1"); I("s_mov_b64 exec, -1")
E.end_cond(); E.label("L_notag")
for i in range(2, 8): ktab(i)
srd(SX, 16, 2097152); srd(SWD, 40, 1409024); srd(SWS, 46, WS_SIZE)
if OPT["sp"]:
    I(f"s_lshl4_add_u32 {sT0}, {sC_}, {sG_}"); I(f"s_lshl_b32 {sT0}, {sT0}, 7"); I(f"s_add_u32 {sT0}, {sT0}, {WS_FH}"); I(f"s_add_u32 s72, s46, {sT0}"); I("s_addc_u32 s73, s47, 0")
def warm():
    if not OPT["tw"]: return
    srd(SOUT, 42, 4194304)
    I("v_mov_b32 v92, 0"); I(f"s_lshl2_add_u32 {sT0}, {sC_}, {sW_}"); I(f"s_mul_i32 {sT0}, {sT0}, {152*1024}")
    I(f"s_lshr_b32 {sT2}, {sG_}, 1"); I(f"s_lshl_b32 {sT2}, {sT2}, 13"); I(f"s_add_u32 {sT0}, {sT0}, {sT2}"); I(f"s_and_b32 {sT2}, {sG_}, 1"); I(f"s_lshl_b32 {sT2}, {sT2}, 11"); I(f"s_add_u32 {sT0}, {sT0}, {sT2}")
    I(f"s_mov_b32 {sT2}, {WS_EB + 0x30000}"); I(f"s_lshl_b32 {sT3}, {sC_}, 18")
    I("s_mov_b64 exec, 1")
    for sr, so in ((SG, "0"), (SC, "0"), (SWD, "0"), (SWS, sT0), (SWS, sT2), (SOUT, sT3)):
        VM(f"buffer_load_dword v95, v92, {sr}, {so} offen sc1", "tw")
    I("s_mov_b64 exec, -1")
def setup1():
    I(f"s_mov_b32 {sSPIN}, 0"); I("s_mov_b32 s15, 0"); I(f"s_mul_i32 {sM6}, {sW_}, 6144")
    I(f"s_mul_i32 {sT0}, {sT1}, {32*2752}"); I(f"s_mul_i32 {sT2}, {sG_}, 192"); I(f"s_add_u32 {sT0}, {sT0}, {sT2}")
    I(f"s_mul_i32 {sT2}, {sG_}, 3"); I(f"s_mov_b32 {sT3}, 2752"); I(f"v_mov_b32 v90, {OOB}")
    for i in range(3):
        I(f"v_add_u32 v88, {64*i}, {vLANE}"); I("v_mul_u32_u24 v86, 43691, v88"); I("v_lshrrev_b32 v86, 19, v86")
        I("v_mul_u32_u24 v87, 12, v86"); I("v_sub_u32 v87, v88, v87")
        I(f"v_mul_lo_u32 v86, v86, {sT3}"); I("v_lshl_add_u32 v86, v87, 4, v86"); I(f"v_add_u32 v86, {sT0}, v86")
        I("v_lshrrev_b32 v87, 2, v87"); I(f"v_add_u32 v87, {sT2}, v87"); I("v_cmp_gt_u32 vcc, 43, v87")
        if i: I(f"v_subrev_u32 v86, {1024*i}, v86")
        I(f"v_cndmask_b32 {v(vGo[i])}, v90, v86, vcc")
    I(f"s_lshl2_add_u32 {sT0}, {sGL}, {sT1}"); I(f"s_lshl_b32 {sT2}, {sG_}, 1"); I(f"s_sub_u32 {sT0}, {sT0}, {sT2}"); I(f"s_lshl_b32 {sT0}, {sT0}, 14")
    I(f"v_add_u32 {v(vCo[0])}, {sT0}, {v(vSo[0])}"); I(f"v_add_u32 {v(vCo[1])}, {sT0}, {v(vSo[1])}")
    I(f"v_add_u32 {v(vCo[2])}, {2*7168}, {v(vCo[0])}"); I(f"v_add_u32 {v(vCo[3])}, {2*7168}, {v(vCo[1])}")

def setup1b():
    I(f"s_and_b32 {sT1}, {sW_}, 1")
    I("v_lshlrev_b32 v86, 4, v82"); I("v_lshl_add_u32 v86, v81, 10, v86"); I(f"v_and_b32 v87, 16, {vLANE}"); I("v_lshlrev_b32 v87, 2, v87"); I("v_xor_b32 v87, v86, v87")
    I(f"s_lshl_b32 {sT3}, {sGL}, 7"); I(f"v_add_u32 {v(vWo[0])}, {sT3}, v87")
    for q in range(1, 4): I(f"v_add_u32 {v(vWo[q])}, {7168*q}, {v(vWo[0])}")
    I(f"s_lshl1_add_u32 s13, {sC_}, {sGH}"); I(f"s_lshl2_add_u32 {sT0}, s13, {sW_}"); I(f"s_lshl_b32 {sT0}, {sT0}, 14"); I(f"s_add_u32 {sT0}, {sT0}, {sT3}")
    I(f"v_add_u32 {v(vXEo[0])}, {sT0}, v86"); I(f"v_add_u32 {v(vXEo[1])}, 7168, {v(vXEo[0])}")
    I(f"s_lshr_b32 {sT2}, {sW_}, 1"); I(f"s_lshl1_add_u32 {sT0}, s13, {sT2}"); I(f"s_mul_i32 {sT0}, {sT0}, {152*1024}"); I(f"s_lshl_b32 {sT3}, {sT1}, 12"); I(f"s_add_u32 {sT0}, {sT0}, {sT3}")
    I(f"v_lshl_add_u32 {v(vHo)}, {vLANE}, 4, {sT0}")
    I(f"s_cmp_eq_u32 {sW_}, 0"); I(f"s_cselect_b32 {sT2}, 16, 0"); I(f"v_cmp_gt_u32 vcc, {sT2}, {vLANE}")
    I(f"s_lshl_b32 {sT0}, {sC_}, 11"); I(f"s_lshl2_add_u32 {sT3}, {sG_}, {sT0}"); I(f"v_lshl_add_u32 v86, {vLANE}, 7, {sT3}")
    I(f"v_cndmask_b32 {v(vFLS)}, v90, v86, vcc")
    I(f"s_lshl_b32 {sT3}, {sG_}, 7"); I(f"s_add_u32 {sT3}, {sT3}, {sT0}"); I(f"v_lshl_add_u32 v86, {vLANE}, 2, {sT3}")
    I(f"v_cndmask_b32 {v(vFLP)}, v90, v86, vcc"); I(f"v_cndmask_b32 {v(vFLX)}, 0, -1, vcc")
    I(f"s_mov_b32 s20, {WS_FH}"); I(f"s_mov_b32 s21, {WS_FG}")

def setup2():
    o = []
    A = o.append
    A(f"s_lshl_b32 {sT0}, {sW_}, 10"); A(f"s_add_u32 {sT0}, {sT0}, {EQ}"); A(f"v_lshl_add_u32 {v(vEQA)}, {vLANE}, 3, {sT0}")
    A("v_mov_b32 v88, 0"); A("v_mov_b32 v89, 0"); A(lambda: DS(f"ds_write_b64 {v(vEQA)}, v[88:89]", "eqz"))
    A(f"v_lshl_add_u32 {v(vZA)}, v82, 3, {sT0}")
    A(f"s_lshl_b32 {sT0}, {sW_}, 9"); A(f"v_lshlrev_b32 v86, 11, v81"); A("v_lshl_add_u32 v86, v82, 6, v86"); A("v_lshrrev_b32 v87, 1, v82")
    A("v_lshl_add_u32 v86, v87, 4, v86"); A(f"v_add_u32 {v(vDA)}, {sT0}, v86")
    for j in range(1, 4): A(f"v_xor_b32 {v(vDA+j)}, {16*j}, {v(vDA)}")
    for j in range(4): A(f"v_add_u32 {v(vDB+j)}, {DUMPS[1]}, {v(vDA+j)}")
    A(f"v_lshlrev_b32 {v(vTAB)}, 6, v81"); A(f"v_add_u32 {v(vTAB)}, {RTAB}, {v(vTAB)}")
    A(f"s_lshl_b32 {sT0}, {sG_}, 13"); A(f"s_lshl_b32 {sT2}, {sW_}, 7"); A(f"s_add_u32 {sT0}, {sT0}, {sT2}"); A(f"s_add_u32 {sT0}, {sT0}, {WS_EB}")
    A(f"v_lshl_add_u32 v86, v82, 4, {sT0}")
    A(f"s_lshl_b32 {sT2}, {sC_}, 9"); A(f"v_add_u32 {v(vEST)}, {sT2}, v86"); A(lambda: (I("v_cmp_eq_u32 vcc, 7, v81"), I(f"v_cndmask_b32 {v(vEST)}, v90, {v(vEST)}, vcc")))
    A(f"s_sub_u32 {sT2}, {sC_}, 16"); A(f"v_lshl_add_u32 v87, v81, 1, {sT2}")
    A(f"v_lshl_add_u32 {v(vEF)}, v87, 9, v86"); A(f"v_add_u32 {v(vEF+1)}, 512, {v(vEF)}")
    A(lambda: (I("v_cmp_le_i32 vcc, 0, v87"), I(f"v_cndmask_b32 {v(vEF)}, v90, {v(vEF)}, vcc"), I(f"v_cndmask_b32 {v(vEX)}, 0, -1, vcc")))
    A(lambda: (I("v_cmp_le_i32 vcc, -1, v87"), I(f"v_cndmask_b32 {v(vEF+1)}, v90, {v(vEF+1)}, vcc"), I(f"v_cndmask_b32 {v(vEX+1)}, 0, -1, vcc")))
    A(f"s_mul_i32 {sT0}, {sW_}, 2608"); A(f"s_add_u32 {sT0}, {sT0}, {HS}")
    A("v_mul_u32_u24 v86, 336, v82"); A("v_lshl_add_u32 v86, v81, 5, v86"); A(f"v_add_u32 {v(vHSW)}, {sT0}, v86")
    A(f"v_bfe_u32 v86, {vLANE}, 2, 2"); A("v_mul_u32_u24 v86, 336, v86"); A(f"v_and_b32 v87, 32, {vLANE}"); A("v_lshl_add_u32 v86, v87, 1, v86")
    A(f"v_and_b32 v87, 1, {vLANE}"); A("v_lshl_add_u32 v86, v87, 5, v86"); A(f"v_and_b32 v87, 16, {vLANE}"); A("v_add_u32 v86, v86, v87")
    A(f"v_and_b32 v87, 2, {vLANE}"); A("v_lshl_add_u32 v86, v87, 2, v86"); A(f"v_add_u32 {v(vHSR)}, {sT0}, v86")
    A(f"s_mul_i32 {sT0}, {sC_}, {4*152}"); A(f"s_lshr_b32 {sT2}, {sG_}, 1"); A(f"s_lshl3_add_u32 {sT0}, {sT2}, {sT0}"); A(f"s_and_b32 {sT2}, {sG_}, 1")
    A(f"s_lshl1_add_u32 {sT0}, {sT2}, {sT0}"); A(f"s_lshl_b32 {sT0}, {sT0}, 10"); A(f"s_lshl_b32 {sT2}, {sW_}, 9"); A(f"s_add_u32 {sT0}, {sT0}, {sT2}")
    A(f"v_lshrrev_b32 v86, 5, {vLANE}"); A(f"v_mul_u32_u24 v86, {152*1024}, v86"); A(f"v_and_b32 v87, 31, {vLANE}"); A("v_lshl_add_u32 v86, v87, 4, v86"); A(f"v_add_u32 {v(vHSTo)}, {sT0}, v86")
    LOG2E = "0x3fb8aa3b"
    A(lambda: E.wait(vm="par"))
    o += ["v_lshlrev_b32 v70, 16, v70", "v_lshlrev_b32 v71, 16, v71", "v_lshlrev_b32 v72, 16, v72",
          f"v_mul_f32 v70, {LOG2E}, v70", "v_exp_f32 v70, v70", "v_mul_f32 v74, v71, v71"] + bf16r_ops(70, 70)
    o += ["v_mul_f32 v75, v70, v71", "v_mul_f32 v76, v70, v72", f"v_mul_f32 v75, {LOG2E}, v75", "v_exp_f32 v75, v75",
          "v_mul_f32 v76, 0.15915494, v76", "v_rndne_f32 v77, v76", "v_sub_f32 v76, v76, v77", "v_cos_f32 v77, v76", "v_sin_f32 v78, v76",
          "v_fmac_f32 v74, v72, v72", f"v_mul_f32 {v(vLR)}, v75, v77", "v_mul_f32 v78, v75, v78", "v_rcp_f32 v74, v74",
          f"v_add_f32 v77, -1.0, {v(vLR)}", "v_add_f32 v74, v74, v74",
          f"v_mul_f32 {v(vCR)}, v77, v71", f"v_fmac_f32 {v(vCR)}, v78, v72", f"v_mul_f32 {v(vCR)}, {v(vCR)}, v74",
          f"v_mul_f32 {v(vCR+1)}, v77, v72", f"v_fma_f32 {v(vCR+1)}, -v78, v71, {v(vCR+1)}", f"v_mul_f32 {v(vCR+1)}, {v(vCR+1)}, v74",
          f"v_sub_f32 {v(vLR+1)}, 0, v78"]
    o += csq_ops(70, vLR, 78) + csq_ops(72, 70, 78) + csq_ops(70, 72, 78) + csq_ops(vL16, 70, 78)
    o += csq_ops(70, vL16, 78) + csq_ops(72, 70, 78) + csq_ops(vL128, 72, 78) + csq_ops(vL256, vL128, 78)
    o += [f"v_mov_b32 {v(vPQ)}, {v(vCR)}", f"v_mov_b32 {v(vPQ+1)}, {v(vCR+1)}"]
    for bit, L in ((8, vL16), (16, 70), (32, 72)):
        o += [f"v_and_b32 v74, {bit}, {vLANE}", lambda L=L: (I("v_cmp_ne_u32 vcc, 0, v74"), I(f"v_cndmask_b32 v76, 1.0, {v(L)}, vcc"), I(f"v_cndmask_b32 v77, 0, {v(L+1)}, vcc"))]
        o += cmul_ops(vPQ, vPQ, 76, 78)
    def factor(F, Ls):
        r = []
        for n, (bit, L) in enumerate(zip((8, 16, 32), Ls)):
            d = F if n == 0 else 76
            r += [f"v_and_b32 v74, {bit}, {vLANE}", lambda L=L, d=d: (I("v_cmp_eq_u32 vcc, 0, v74"), I(f"v_cndmask_b32 {v(d)}, 1.0, {v(L)}, vcc"), I(f"v_cndmask_b32 {v(d+1)}, 0, {v(L+1)}, vcc"))]
            if n: r += cmul_ops(F, F, 76, 78)
        return r
    o += factor(vF16, (vL16, 70, 72))
    o += csq_ops(70, vL256, 78) + csq_ops(72, 70, 78) + factor(vF256, (vL256, 70, 72))
    return o
def allsum(a_, b_, t):
    o = [f"v_add_f32_dpp {v(t)}, {v(a_)}, {v(a_)} row_ror:8 row_mask:0xf bank_mask:0xf", f"v_add_f32_dpp {v(t+1)}, {v(b_)}, {v(b_)} row_ror:8 row_mask:0xf bank_mask:0xf",
         f"v_mov_b32 {v(a_)}, {v(t)}", f"v_mov_b32 {v(b_)}, {v(t+1)}",
         f"v_permlane16_swap_b32 {v(a_)}, {v(t)}", f"v_permlane16_swap_b32 {v(b_)}, {v(t+1)}",
         f"v_add_f32 {v(a_)}, {v(a_)}, {v(t)}", f"v_add_f32 {v(b_)}, {v(b_)}, {v(t+1)}",
         f"v_mov_b32 {v(t)}, {v(a_)}", f"v_mov_b32 {v(t+1)}, {v(b_)}",
         f"v_permlane32_swap_b32 {v(a_)}, {v(t)}", f"v_permlane32_swap_b32 {v(b_)}, {v(t+1)}",
         f"v_add_f32 {v(a_)}, {v(a_)}, {v(t)}", f"v_add_f32 {v(b_)}, {v(b_)}, {v(t+1)}"]
    return o
def cmul4(d, x, y):
    return [f"v_mul_f32 {v(d[0])}, {v(x[0])}, {v(y)}", f"v_mul_f32 {v(d[1])}, {v(x[0])}, {v(y+1)}",
            f"v_fma_f32 {v(d[0])}, -{v(x[1])}, {v(y+1)}, {v(d[0])}", f"v_fmac_f32 {v(d[1])}, {v(x[1])}, {v(y)}"]
def ssm1():
    o = []
    def rdd(j, comp): DS(f"ds_read_b128 {v((TI if comp else TR) + 4*j, 4)}, {v(vDB+j)} offset:{DUMPS[comp] - DUMPS[1]}", f"dr{j}"); note_read(f"DUMP{comp}")
    for j in range(4):
        o += [lambda j=j: DS(f"ds_read_b128 {v(RT + 4*j, 4)}, {v(vTAB)} offset:{16*j}", f"dr{j}"), lambda j=j: rdd(j, 0), lambda j=j: rdd(j, 1)]
    cur, nx = (vE, vE + 1), (vE2, vE2 + 1)
    for r in range(16):
        if r % 4 == 0: o.append(lambda j=r >> 2: E.wait(lg=f"dr{j}"))
        o += [f"v_mul_f32 {v(TR+r)}, {v(TR+r)}, {v(RT+r)}", f"v_mul_f32_e64 {v(TI+r)}, -{v(TI+r)}, {v(RT+r)}"]
        if r == 0: src = (TR, TI)
        else:
            o += cfma_ops(nx, vLR, src, TR + r, TI + r); src = nx; cur, nx = nx, cur
    assert src == (vE2, vE2 + 1)
    o += cmul4((60, 62), src, vF16) + allsum(60, 62, 64)
    o.append(lambda: (VM(f"buffer_store_dwordx4 v[60:63], {v(vEST)}, {SWS}, 0 offen sc1", "est"), lstamp("epub")))
    return o
def window():
    o = [lambda: DS(f"ds_write_b64 {v(vEQA)}, {v(vE2,2)} offset:{7*64}", "eqw")]
    o += [lambda i=i: DS(f"ds_read_b64 {v(TMP+2*i,2)}, {v(vEQA)} offset:{64*i}", "eq") for i in range(7)]
    for r in range(16):
        o += [f"v_mul_f32 v72, {v(vCR+1)}, {v(TI+r)}", f"v_mul_f32 {v(TI+r)}, {v(vCR)}, {v(TI+r)}",
              f"v_fmac_f32 {v(TI+r)}, {v(vCR+1)}, {v(TR+r)}", f"v_fma_f32 {v(TR+r)}, {v(vCR)}, {v(TR+r)}, -v72"]
    o.append(lambda: E.wait(lg="eq"))
    src = (TMP, TMP + 1); pp = [(vE2, vE2 + 1), (vE, vE + 1)]
    for i in range(1, 7):
        d = pp[i & 1]; o += cfma_ops(d, vL16, src, TMP + 2*i, TMP + 2*i + 1); src = d
    return o + cmul4((vP, vP + 1), src, vCR)
def efetch_issue():
    VM(f"buffer_load_dwordx4 v[64:67], {v(vEF)}, {SWS}, 0 offen sc1", "ef"); VM(f"buffer_load_dwordx4 v[68:71], {v(vEF+1)}, {SWS}, 0 offen sc1", "ef")
def ssm3():
    chk = [f"v_xor_b32 v72, v65, {v(vEX)}", f"v_xor_b32 v73, v67, {v(vEX)}", f"v_xor_b32 v74, v69, {v(vEX+1)}", "v_or3_b32 v72, v72, v73, v74",
           f"v_xor_b32 v73, v71, {v(vEX+1)}", "v_or_b32 v72, v72, v73", "v_cmp_ne_u32 vcc, 0, v72"]
    def check():
        E.wait(vm="ef")
        for c in chk: I(c)
        I("s_cbranch_vccnz L_slow_e"); E.label("L_back_e"); lstamp("eok")
        slow.extend(["L_slow_e:",  f"  buffer_load_dwordx4 v[64:67], {v(vEF)}, {SWS}, 0 offen sc1", f"  buffer_load_dwordx4 v[68:71], {v(vEF+1)}, {SWS}, 0 offen sc1",
                     "  s_waitcnt vmcnt(0)"] + ["  " + c for c in chk] + spin_guard("L_back_e", 0x100) + ["  s_cbranch_vccnz L_slow_e", "  s_branch L_back_e"])
    o = [check] + cfma_ops((vE, vE + 1), vL128, (64, 66), 68, 70)
    o += cmul4((vE2, vE2 + 1), (vE, vE + 1), vF256) + allsum(vE2, vE2 + 1, 72)
    src = (vE2, vE2 + 1)
    o += cfma_ops((vE, vE + 1), vPQ, src, vP, vP + 1)
    src = (vE, vE + 1)
    for r in range(16):
        d = (TR + r, TI + r); o += cfma_ops(d, vLR, src, d[0], d[1]); src = d
        if r & 1: o += [f"v_cvt_pk_bf16_f32 {v(TMP + (r>>1))}, {v(TR+r-1)}, {v(TR+r)}", f"v_cvt_pk_bf16_f32 {v(TMP + 8 + (r>>1))}, {v(TI+r-1)}, {v(TI+r)}"]
    for comp in range(2):
        o += [lambda j=j, comp=comp: DS(f"ds_write_b128 {v(vHSW)}, {v(TMP + 8*comp + 4*j, 4)} offset:{16*j}", "hsw") for j in range(2)]
        for i in range(2):
            for ph in range(2):
                def rd(i=i, ph=ph, comp=comp):
                    DS(f"ds_read_b64_tr_b16 {v(RT + 8*comp + 4*i + 2*ph, 2)}, {v(vHSR)} offset:{4*ph*336 + 128*i}", f"hr{comp}{i}"); note_read("HS")
                o.append(rd)
    for comp in range(2):
        for i in range(2):
            def st(i=i, comp=comp):
                I(f"s_mov_b32 {sT0}, {2*i*152*1024 + comp*4096}"); E.wait(lg=f"hr{comp}{i}")
                VM(f"buffer_store_dwordx4 {v(RT + 8*comp + 4*i, 4)}, {v(vHSTo)}, {SWS}, {sT0} offen sc1", "hst")
            o.append(st)
    o.append(lambda: lstamp("hst"))
    return o
work = []
def pop_work(n):
    while n > 0 and work: runall([work.pop(0)]); n -= 1
def between(n=8): return lambda: pop_work(n)
live.append(items["OFT"])
I(f"v_and_b32 {v(vQR)}, 3, {vLANE}"); I(f"v_lshlrev_b32 {v(vQR)}, 2, {v(vQR)}"); I(f"v_add_u32 {v(vQR)}, {PRG}, {v(vQR)}"); I(f"v_mov_b32 {v(vQV)}, 0")
I(f"s_lshl_b32 {sT0}, {sW_}, 2"); I(f"s_add_u32 {sT0}, {sT0}, {PRG}"); I(f"v_mov_b32 {v(vQW)}, {sT0}")
issue("S2"); issue("S3"); lstamp("b0")
def hchk(word, st):
    off = {"PC": 0, "PD": 32}[word]; val = PCV[st] if word == "PC" else st
    chk_spin(val, vQR, vQT, off)
    em, lg = signals[(word, val)]; known[id(em)] = max(known[id(em)], lg)
published = [0]
def pub(ch):
    assert PHV[ch] > published[0]
    E.wait(vm=[n for c in CHUNKS[published[0]:PHV[ch]] for n in chunk_items(c)]); signal("PH", PHV[ch], vQW, vQV, 16); published[0] = PHV[ch]
def auto_pub(lead):
    best = None
    for c in CHUNKS[published[0]:]:
        if all(n in E.vm and done_issue.get(n) and len(E.vm) - E.last(E.vm, n) >= lead for n in chunk_items(c)): best = c
        else: break
    if best: pub(best)
def s47():
    for n in ("S4", "S5", "S6", "S7"): issue(n)
if OPT["xi"] < 0: s47()
pub("S2")
setup1()
I(f"s_lshl_b32 {sT0}, {sW_}, 11"); I(f"s_add_u32 {sT0}, {sT0}, {HS}"); I(f"v_lshl_add_u32 v86, {vLANE}, 4, {sT0}")
E.wait(vm="par"); DS("ds_write_b128 v86, v[4:7]", "oft"); I("v_mov_b32 v92, v86"); E.wait(lg="oft")
if OPT["xi"] >= 0: hchk("PC", "Xi"); s47()
w2 = setup2(); runall(w2[:OPT["w2a"]])
hchk("PC", "X"); lstamp("xd")
I("v_mov_b32 v91, 0"); VM(f"buffer_load_dword {v(vPOLL)}, v91, {SDBG}, 0 offen sc1", "tag")
issue("G0"); pub("S6"); runall(w2[OPT["w2a"]:OPT["w2b"]]); issue("G1"); runall(w2[OPT["w2b"]:]); pub("G0"); hchk("PC", "S3"); issue("G2"); pub("G1"); issue("G3"); setup1b()
tag_check("H", vPOLL, 88)
I(f"s_mov_b32 s74, {sNON}"); I(f"s_mov_b32 s75, {sNON}")
runall([f"v_mov_b32 v61, {sNON}", f"v_mov_b32 v63, {sNON}", f"v_and_b32 {v(vEX)}, {sNON}, {v(vEX)}", f"v_and_b32 {v(vEX+1)}, {sNON}, {v(vEX+1)}", f"v_and_b32 {v(vFLX)}, {sNON}, {v(vFLX)}",
        f"v_lshl_add_u32 {v(vUP)}, {vLANE}, 4, {sM4}"])
known[id(EC)] = max(known[id(EC)], signals[("PC", PCV["S5"])][1]); hplace("DUMP0"); hplace("DUMP1")
DS("ds_write_b64 v92, v[8:9] offset:1024", "oft"); DS("ds_write_b32 v92, v12 offset:1032", "oft"); DS("ds_write_b32 v92, v61 offset:1036", "oft")
runall(q_setup()); issue("C0"); issue("W0")
if OPT["w1e"]: issue("W4")
I(f"s_setprio {OPT['pb']}")
hchk("PC", "dump"); lstamp("bD")
ncp = [0]
def code_touch():
    ncp[0] += 1
    I("s_getpc_b64 s[54:55]"); E.label(f"L_pc{ncp[0]}")
    I(f"s_sub_u32 s54, s54, L_pc{ncp[0]}-{NAME}_kernel"); I("s_subb_u32 s55, s55, 0")
    I(f"s_and_b32 {sT0}, {sGL}, 3"); I("v_and_b32 v78, 0xfc, v0"); I(f"v_or_b32 v78, {sT0}, v78"); I("v_lshlrev_b32 v78, 7, v78")
    VM("global_load_dword v79, v78, s[54:55]", "code")
def pass2():
    t0 = OPT["bd"] + 2
    s1, wn, s3 = ssm1(), window(), ssm3()
    ins = []
    def spread(name, ta, tb, pre=None):
        holder = {}
        n = 6 if name[0] == "G" else 4
        for k in range(n):
            def f(k=k):
                if k == 0:
                    if pre: hchk(*pre)
                    holder["ops"] = item_ops(name)
                holder["ops"][k]()
            ins.append((ta + (tb - ta) * k / n, f))
    ins.append((OPT["pg2"], lambda: (E.wait(lg="dr3"), pub("G2")))); ins.append((48, lambda: pub("G3")))
    ins.sort(key=lambda x: x[0])
    t = [float(t0)]
    def cyc(): return E.nvec * OPT["vc"] / 10.0 + (E.count + E.nops - E.nvec) * 4.0
    def adv(c0): t[0] += (cyc() - c0) / 33.0
    def run(ops):
        for op in ops:
            while ins and ins[0][0] <= t[0]:
                c0 = cyc(); ins.pop(0)[1](); adv(c0)
            c0 = cyc(); runall([op]); adv(c0)
    def idle_until(tt):
        while ins and ins[0][0] <= tt: t[0] = max(t[0], ins[0][0]); ins.pop(0)[1]()
        t[0] = max(t[0], tt)
    run(s1); tpub = t[0]
    k = 0
    while k < len(wn) and t[0] < tpub + OPT["efd"]: run([wn[k]]); k += 1
    efetch_issue(); lstamp("ef"); tf = t[0]
    if OPT["cp"] & 1: code_touch()
    run(wn[k:]); hchk("PC", "G1"); hplace("HS")
    tc = t[0]
    I(f"s_setprio {OPT['pc']}"); run(s3); ts = t[0]; assert not ins
    E.wait(vm="hst"); signal("PD", 2, vQW, vQV, 32); hchk("PD", 2); flag_send("s20"); lstamp("hflag")
    if OPT.get("log"): print(f"helper est: epub {tpub:.0f} efetch {tf:.0f} check {tc:.0f} stores {ts:.0f}", file=sys.stderr)
pass2()
issue("XE")
if not OPT["w1e"]: issue("W4")
if OPT["cp"] & 2: code_touch()
pub("KX")
for name, kn in cplaced:
    save = dict(known); known.update({id(EC): 0, id(EH): 0})
    for w_, val in kn:
        em, lg = signals[(w_, val)]; known[id(em)] = max(known[id(em)], lg)
    hplace(name); done_issue[name] = True; known.update(save)
I(f"s_setprio {OPT['pd']}")
if OPT["ep"]:
    hchk("PC", "U0"); poll_issue("s20", "ph"); poll_check("s20", "ph", 0x10000); lstamp("okh"); pub("K0")
hchk("PC", "T"); lstamp("gT")
if not OPT["ep"]: poll_issue("s20", "ph")
if not OPT["ep"] and OPT["sp"] == 2: poll_check("s20", "ph", 0x10000); pub("K0")
I(f"s_mov_b32 s19, {WS_FP}")
for n_ in ("W1", "W2", "W3")[3 - OPT["wl"]:]: issue(n_)
unpark("C0")
if not OPT["ep"] and OPT["sp"] != 2: poll_check("s20", "ph", 0x10000); lstamp("okh"); pub("K0")
hchk("PC", "gsa"); flag_send("s19")
unpark("W0"); unpark("W4")
if OPT["gs"] < 0: hchk("PC", "gst"); flag_send("s21")
for k, bn in enumerate(bar_names[1:]):
    if bn == "bP1": poll_check("s19", "pa", 0x1)
    if bn == "bP2": hchk("PC", "pj"); poll_issue("s21", "pg"); poll_check("s21", "pg", 0x1000000); lstamp("okg")
    E.wait(vm=["W5"] if bn == "bP3" else (["W3"] if OPT["wl"] else []), lg=["upW4"]); E.barrier()
    known[id(EC)] = max(known[id(EC)], EC.barriers[k + 1][1])
    if bn == "bP0" and OPT["gs"] >= 0: hchk("PC", "gst"); flag_send("s21")
    if bn == "bP0": poll_issue("s19", "pa")
    if bn == "bP1": issue("W5")
    if bn == "bP3": assert known[id(EC)] >= min(items["C2"].last_read, 10**9)
    if bn == "bP4": assert known[id(EC)] >= items[RT2].last_read
assert len(EH.barriers) == len(EC.barriers)
dump_stamps("H")
E.label("L_end"); I("s_endpgm")

hdr = open("cdna_kernels/" + NAME + ".s.ref").read().split("; Override launch geometry")[0]
out = hdr
if OPT["lst"]: out += "; cstamps: " + " ".join(lnames["C"]) + "\n; hstamps: " + " ".join(lnames["H"]) + f"\n; rt: {OPT['rt']}\n"
out += f"; @launch grid=(256,1,1) block=(512,1,1) lds={LDS_BYTES}\n"
out += f'.amdgcn_target "amdgcn-amd-amdhsa--gfx950"\n.text\n.globl {NAME}_kernel\n.p2align 8\n.type {NAME}_kernel,@function\n'
kc = next(k for k, l in enumerate(EC.lines) if "v_and_b32 v90, 31" in l)
out += E0.text() + "\n".join(EC.lines[:kc]) + "\n  s_branch L_cmain\n" + EH.text() + "L_cmain:\n" + "\n".join(EC.lines[kc:]) + "\n" + "\n".join(slow) + "\n"
out += f"L_pad:\n.fill (37120 - (L_pad - {NAME}_kernel)) / 4, 4, 0xbf810000\n"
out += f""".section .rodata,"a"
.p2align 6
.amdhsa_kernel {NAME}_kernel
  .amdhsa_next_free_vgpr 256
  .amdhsa_next_free_sgpr 102
  .amdhsa_accum_offset 256
  .amdhsa_group_segment_fixed_size 0
  .amdhsa_kernarg_size 128
  .amdhsa_user_sgpr_count 2
  .amdhsa_user_sgpr_kernarg_segment_ptr 1
  .amdhsa_system_sgpr_workgroup_id_x 1
.end_amdhsa_kernel
"""
open(sys.argv[1], "w").write(out)
print(f"compute {EC.count}+{EC.nops} helper {EH.count}+{EH.nops} barriers {len(bar_names)}: {' '.join(bar_names)}", file=sys.stderr)
```

```python
import sys
from emit import Emitter
NAME = "parallel_sum__ssm_conv_s5__glu_gated_bilinear__prompt"
OPT = dict(lst=0, rt=1, D=4, D2=7, D3=6, NU=2, gfd=40, prio=1, bd=15, ipc=85, slp=2, slq=0, wl=2, ovr=0, cp=0, sp=2, dsp=3, efn=90, rot=8, lead=12, ge=0, gf=1, gg=5, gp=2, mw=0, ar=1, nr=8, bk=12, c34=1, f0=0, f2=1, pw=0, pd=0, nwt=0, a0=6, al=16, nb=60, gs=0, tw=0, osc=1, d64=0, w2a=20, w2b=110, pb=0, c1=117, c45=1, u0s=170, xi=-1, pc=2, map=0, xj=1, nd=2, skw=2, gj=7, pjd=10, ea=0, pl=14, w1e=0, xw=1, ct=1, stg=0, x3=0, wr=4, pg2=21, ep=1, ord=1, ka=20, kb=56, ab=2, u0=1, vc=85, efd=35, ecd=20)
for a_ in sys.argv[2:]:
    k_, v_ = a_.split("="); OPT[k_] = int(v_)

WS_EB = 0xA00000; WS_FH = 0xA40000; WS_FG = 0xA48000; WS_ST = 0xC00000; WS_FP = 0xA50000; WS_PB = 0x1000000; WS_SIZE = 0x1800000
U8 = 8192; MISC = 18 * U8
RTAB = MISC; EQ = MISC + 1024; HS = MISC + 5120; XE = MISC + 5120
DUMP = 0
PRG = MISC + 15872
LDS_BYTES = 163840
OOB = 0x80000000
sW_, sC_, sG_, sGL, sGH, sJ0 = "s3", "s4", "s5", "s6", "s7", "s8"
sT0, sT1, sT2, sT3 = "s9", "s10", "s11", "s12"
SX, SS, SG, SC, SWD, SWS, SOUT, SDBG = ("s[48:51]", "s[52:55]", "s[56:59]", "s[60:63]", "s[64:67]", "s[68:71]", "s[72:75]", "s[76:79]")
sK = [f"s{80+i}" for i in range(8)]
sM4, sM2, sM6 = "s88", "s89", "s94"
sQW, sQHG, sSO = "s95", "s96", "s100"
sNON, sC10, sC01, sC11 = "s90", "s91", "s92", "s93"
sSPIN = "s97"; sSP2 = "s99"; sCL = "s101"
sCW = "s98"; WMUL = {4: 3, 2: 6, 1: 0}[OPT["wr"]]
sRA = "s52"
def q_setup(): return [f"s_add_u32 {sQW}, {sGL}, {sCL}"]
def q_h(so, i): I(f"s_add_u32 {so}, {sQW}, {i}"); I(f"s_and_b32 {so}, {so}, 3"); I(f"s_lshl2_add_u32 {so}, {sGH}, {so}")
def q_u(so, i):
    if i < 4: q_h(so, i); I(f"s_cmp_eq_u32 {so}, 7"); I(f"s_cselect_b32 {so}, 11, {so}")
    else: I(f"s_add_u32 {so}, {sQW}, {i}"); I(f"s_and_b32 {so}, {so}, 1"); I(f"s_lshl1_add_u32 {so}, {sGH}, {so}"); I(f"s_add_u32 {so}, {so}, 7")
def w_soff(so, i, tmp):
    q_u(tmp, i); I(f"s_lshl2_add_u32 {tmp}, {tmp}, {sW_}"); I(f"s_mul_i32 {so}, {tmp}, 3")
    I(f"s_cmp_ge_u32 {tmp}, 15"); I(f"s_cselect_b32 {sRA}, 44, 0"); I(f"s_cmp_ge_u32 {tmp}, 30"); I(f"s_cselect_b32 {sRA}, 88, {sRA}")
    I(f"s_sub_u32 {so}, {so}, {sRA}"); I(f"s_lshl_b32 {so}, {so}, 15")
vLANE = "v1"
MF = "v_mfma_f32_32x32x16_bf16"
def v(n, k=1): return f"v{n}" if k == 1 else f"v[{n}:{n+k-1}]"

EC, EH, E0 = Emitter(), Emitter(), Emitter()
E = E0
def I(t): return E.I(t)
def VM(t, tag=None): return E.VM(t, tag)
def DS(t, tag=None): return E.DS(t, tag)
slow = []
lnames = {"C": [], "H": []}
def lstamp(name):
    who = "C" if E is EC else "H"
    if OPT["lst"] and name in LSET[who] and len(lnames[who]) < 12:
        k = 24 + 2 * len(lnames[who]); lnames[who].append(name); I(f"{'s_memrealtime' if OPT['rt'] else 's_memtime'} s[{k}:{k+1}]")
LSETS = {0: ([], []),
         1: (["X6", "X7", "S0", "G0", "G4", "T", "J0", "J4", "snd", "kp", "last", "end"], ["b0", "xd", "bD", "epub", "ef", "eok", "hst", "hflag", "okh", "gT", "okg", "end"]),
         2: (["S0", "S2", "S4", "S6", "G0", "G1", "G2", "G3", "G4", "G5", "G6", "T"], ["b0", "xd", "bD", "epub", "ef", "eok", "hst", "hflag", "okh", "gT", "okg", "end"]),
         3: (["T", "K0", "J0", "J2", "J4", "J7", "snd", "J10", "J13", "kp", "last", "end"], ["b0", "xd", "bD", "epub", "ef", "eok", "hst", "hflag", "okh", "gT", "okg", "end"])}
LSETS[9] = ([], LSETS[1][1])
LSETS[4] = (["T", "e2", "k0", "ga", "K0", "J0", "J1", "J2", "J3", "J4", "J5", "J6"], [])
LSETS[5] = (["J6", "J7", "J8", "J9", "snd", "J10", "J12", "J14", "J16", "J17", "kp", "last"], [])
LSET = dict(zip("CH", LSETS[OPT["lst"]])); LSET["H"] = ["okh", "fa", "oka", "okg"]
def runall(ops):
    for op in ops:
        if isinstance(op, str): I(op)
        else: op()
def csq_ops(d, x, t):
    return [f"v_mul_f32 {v(t)}, {v(x+1)}, {v(x+1)}", f"v_add_f32 {v(t+1)}, {v(x)}, {v(x)}", f"v_fma_f32 {v(d)}, {v(x)}, {v(x)}, -{v(t)}", f"v_mul_f32 {v(d+1)}, {v(t+1)}, {v(x+1)}"]
def cmul_ops(d, x, y, t):
    return [f"v_mul_f32 {v(t)}, {v(x)}, {v(y)}", f"v_mul_f32 {v(t+1)}, {v(x)}, {v(y+1)}",
            f"v_fma_f32 {v(t)}, -{v(x+1)}, {v(y+1)}, {v(t)}", f"v_fma_f32 {v(d+1)}, {v(x+1)}, {v(y)}, {v(t+1)}", f"v_mov_b32 {v(d)}, {v(t)}"]
def cfma_ops(d, L, x, br, bi):
    return [f"v_fma_f32 {v(d[0])}, {v(L)}, {v(x[0])}, {v(br)}", f"v_fma_f32 {v(d[1])}, {v(L)}, {v(x[1])}, {v(bi)}",
            f"v_fma_f32 {v(d[0])}, -{v(L+1)}, {v(x[1])}, {v(d[0])}", f"v_fma_f32 {v(d[1])}, {v(L+1)}, {v(x[0])}, {v(d[1])}"]
def bf16r_ops(d, s): return [f"v_cvt_pk_bf16_f32 {v(d)}, {v(s)}, {v(s)}", f"v_and_b32 {v(d)}, 0xffff0000, {v(d)}"]
def srd(dst, lo, size):
    n = int(dst[2:dst.index(":")])
    I(f"s_mov_b64 s[{n}:{n+1}], s[{lo}:{lo+1}]"); I(f"s_mov_b32 s{n+2}, {size}"); I(f"s_mov_b32 s{n+3}, 0x20000")
def srd_sel(dst, p0, p1, size):
    n = int(dst[2:dst.index(":")])
    I(f"s_cselect_b64 s[{n}:{n+1}], s[{p1}:{p1+1}], s[{p0}:{p0+1}]"); I(f"s_mov_b32 s{n+2}, {size}"); I(f"s_mov_b32 s{n+3}, 0x20000")
def ktab(i):
    I(f"s_add_u32 {sK[i]}, {sJ0}, {i}"); I(f"s_and_b32 {sK[i]}, {sK[i]}, 7"); I(f"s_lshl_b32 {sK[i]}, {sK[i]}, 7")
def spin_guard(lbl_back, inc):
    return ([f"  s_add_u32 s15, s15, {inc}" if inc >= 0 else f"  s_bitset1_b32 s15, {-inc}"] if OPT["lst"] else []) + [f"  s_add_u32 {sSPIN}, {sSPIN}, 1", f"  s_cmp_gt_u32 {sSPIN}, 0x200000", f"  s_cbranch_scc1 {lbl_back}"]
def tag_check(who, vp, vz):
    E.wait(vm="tag"); I(f"v_readfirstlane_b32 {sNON}, {v(vp)}"); I(f"s_cmp_eq_u32 {sNON}, 0"); I(f"s_cbranch_scc1 L_slow_tag{who}"); E.label(f"L_back_tag{who}")
    slow.extend([f"L_slow_tag{who}:", "  s_sleep 1", f"  v_mov_b32 {v(vz)}, 0", f"  buffer_load_dword {v(vp)}, {v(vz)}, {SDBG}, 0 offen sc1", "  s_waitcnt vmcnt(0)",
                 f"  v_readfirstlane_b32 {sNON}, {v(vp)}"] + spin_guard(f"L_back_tag{who}", 1) +
                [f"  s_cmp_eq_u32 {sNON}, 0", f"  s_cbranch_scc1 L_slow_tag{who}", f"  s_branch L_back_tag{who}"])
signals = {}
def signal(word, val, va, vt, off):
    signals[(word, val)] = (E, E.lg_done)
    I(f"v_mov_b32 {v(vt)}, {val}"); DS(f"ds_write_b32 {v(va)}, {v(vt)} offset:{off}", "sig")
nchk = [0]
def chk_issue(va, vt, off):
    nchk[0] += 1; DS(f"ds_read_b32 {v(vt)}, {v(va)} offset:{off}", f"chk{nchk[0]}"); return f"chk{nchk[0]}"
def chk_test(tag, val, va, vt, off, inc):
    E.wait(lg=tag)
    I(f"v_cmp_gt_u32 vcc, {val}, {v(vt)}"); I(f"s_cbranch_vccnz L_slow_{tag}"); E.label(f"L_back_{tag}")
    slow.extend([f"L_slow_{tag}:", f"  ds_read_b32 {v(vt)}, {v(va)} offset:{off}", "  s_waitcnt lgkmcnt(0)", f"  v_cmp_gt_u32 vcc, {val}, {v(vt)}"]
                + spin_guard(f"L_back_{tag}", inc) + [f"  s_cbranch_vccnz L_slow_{tag}", f"  s_branch L_back_{tag}"])
def chk_spin(val, va, vt, off):
    nchk[0] += 1; lbl = f"L_spin{nchk[0]}"
    E.label(lbl)
    DS(f"ds_read_b32 {v(vt)}, {v(va)} offset:{off}", lbl); I(f"s_sub_u32 {sSP2}, {sSP2}, 1"); I("s_cbranch_scc1 L_end")
    E.wait_all(lg=True)
    I(f"v_cmp_gt_u32 vcc, {val}, {v(vt)}"); I(f"s_cbranch_vccnz {lbl}")
def dump_stamps(who):
    if not OPT["lst"]: return
    E.wait_all(vm=True); lstamp("end"); E.wait_all(lg=True)
    n = len(lnames[who])
    for k in range(n): I(f"v_writelane_b32 v2, s{24+2*k}, {k}")
    I(f"v_writelane_b32 v2, {n}, 61"); I("v_writelane_b32 v2, s15, 60"); I("v_writelane_b32 v2, s14, 63")
    I(f"s_lshl3_add_u32 {sT0}, s2, {sW_}"); I(f"s_add_u32 {sT0}, {sT0}, {4 if who == 'H' else 0}"); I(f"s_lshl_b32 {sT0}, {sT0}, 8"); I(f"s_add_u32 {sT0}, {sT0}, {WS_ST}")
    I(f"v_lshlrev_b32 v3, 2, {vLANE}")
    VM(f"buffer_store_dword v2, v3, {SWS}, {sT0} offen")

NU = OPT["NU"]; assert NU == 2

BASE_OF = {}
for i in range(8): BASE_OF[f"X{i}"] = (2 * (i & 3) * U8, 16384)
for i, u in enumerate(range(8, 16)): BASE_OF[f"S{i}"] = (u * U8, 8192)
for i, u in enumerate([0, 3, 6, 9, 0, 3, 12, 15]): BASE_OF[f"G{i}"] = (u * U8, 24576)
DUMPS = [16 * U8, 12 * U8]
BASE_OF["DUMP0"] = (DUMPS[0], 16384); BASE_OF["DUMP1"] = (DUMPS[1], 16384); BASE_OF["XE"] = (XE, 8192); BASE_OF["HS"] = (HS, 10432); BASE_OF["OFT"] = (HS, 8192)
slot_of = {"C1": 3, "C2": 4, "C3": 5, "W1": 0, "W2": 1, "W3": 2, "C0": 6, "W0": 7, "W4": 8, "W5": 3}
RT_ = {"C0": 168, "W0": 184, "W4": 200}
ND = OPT["nd"]
CO = ["C1", "C2", "C3", "C0"]; WO = ["W1", "W2", "W3", "W0", "W4", "W5"]
SK = [["W1"], ["W1", "W4"], []][OPT["skw"]]
jobs = [(t, "sk") for t in CO[:4-ND]] + [(t, "s") for t in CO[4-ND:]] + [(t, "sk" if t in SK else "s") for t in WO] + [(t, "k") for t in WO if t not in SK] + [(t, "k") for t in CO[4-ND:]]
NJ1 = 10
def chunk_items(ch):
    i = ch[1:]
    if ch[0] == "S": return [f"S{i}", f"S{int(i)+1}"]
    return {"K": ["XE"] if ch == "KX" else [], "G": [f"G{i}"]}[ch[0]]
RED = slot_of["C2"] * 16384; assert ND <= 2
CHUNKS = ["S0", "S2", "S4", "S6"] + [f"G{i}" for i in range(4)] + ["KX", "K0", "KA", "KB"]
PHV = {c: k + 1 for k, c in enumerate(CHUNKS)}
CEV = {"G0": 25, "G1": 49, "G2": 74, "G3": 99, "G4": 122, "G5": 145, "U0": OPT["u0s"]}
STAGES = ["Xi", "X", "S3", "S5", "dump"] + sorted(CEV, key=CEV.get) + ["T", "gsa", "gst", "pj"]
PCV = {c: k + 1 for k, c in enumerate(STAGES)}
for n, s in slot_of.items(): BASE_OF[n] = (s * 16384, 16384)

class Item: pass
items = {}
for n, (b, sz) in BASE_OF.items():
    it = Item(); it.name, it.base, it.size = n, b, sz; it.first_bar = None; it.last_read = None; it.reader = None; items[n] = it
bar_names = []
def note_read(name):
    it = items[name]
    if it.first_bar is None: it.first_bar = len(E.barriers)
    it.last_read = len(E.lg); it.last_bar = len(E.barriers); it.reader = E

E = E0
E.label(f"{NAME}_kernel")
I("s_cmp_ge_u32 s2, 256"); I("s_cbranch_scc1 L_end")
I("s_load_dwordx16 s[16:31], s[0:1], 0")
I("s_getpc_b64 s[98:99]"); I(f"s_bfe_u32 {sT0}, s2, 0x20003"); I("v_lshrrev_b32 v80, 3, v0"); I(f"v_lshl_add_u32 v80, v80, 2, {sT0}"); I("v_lshlrev_b32 v80, 7, v80")
VM("global_load_dword v95, v80, s[98:99]", "code")
I("s_load_dwordx16 s[32:47], s[0:1], 64")
I("s_memrealtime s[14:15]")
I("v_lshrrev_b32 v80, 6, v0"); I(f"v_and_b32 {vLANE}, 63, v0"); I(f"v_readfirstlane_b32 {sT3}, v80")
sR8 = "s19" if False else None
if OPT["map"] == 0:
    I(f"s_bfe_u32 {sT0}, s2, 0x20001"); I(f"s_lshr_b32 {sCL}, s2, 6"); I(f"s_lshl2_add_u32 {sC_}, {sT0}, {sCL}")
    I(f"s_bfe_u32 {sGL}, s2, 0x30003"); I(f"s_lshl1_add_u32 {sJ0}, {sCL}, {sGL}")
    I(f"s_and_b32 {sGH}, s2, 1"); I(f"s_lshl3_add_u32 {sG_}, {sGH}, {sGL}"); I(f"s_mov_b32 {sQW}, {sGL}")
    if OPT["xj"]: I(f"s_add_u32 {sJ0}, {sJ0}, {sT0}")
else:
    I(f"s_and_b32 {sT0}, s2, 1"); I(f"s_lshr_b32 {sQW}, s2, 5"); I(f"s_lshl3_add_u32 {sC_}, {sT0}, {sQW}")
    I(f"s_bfe_u32 {sCL}, s2, 0x20003"); I(f"s_bfe_u32 {sT0}, s2, 0x20001"); I(f"s_lshl2_add_u32 {sG_}, {sT0}, {sCL}")
    I(f"s_and_b32 {sGL}, {sG_}, 7"); I(f"s_lshr_b32 {sGH}, {sG_}, 3"); I(f"s_lshl1_add_u32 {sJ0}, {sCL}, {sQW}")
for i in range(2): ktab(i)
I(f"s_and_b32 {sW_}, {sT3}, 3"); I(f"s_lshl_b32 {sM4}, {sW_}, 12")
I(f"v_lshrrev_b32 v81, 3, {vLANE}"); I(f"v_and_b32 v82, 7, {vLANE}")
I("v_lshrrev_b32 v84, 1, v81"); I("v_xor_b32 v83, v82, v84"); I("v_lshlrev_b32 v83, 4, v83"); I("v_xor_b32 v85, 64, v83")
I(f"v_lshlrev_b32 v78, 2, {vLANE}"); I("v_mov_b32 v79, 0"); I(f"v_add_u32 v78, {PRG}, v78"); DS("ds_write_b32 v78, v79", "prz")
I(f"s_mov_b32 {sSP2}, 0x1000000"); I(f"s_and_b32 {sCW}, {sCL}, {3 if OPT['wr'] == 4 else 1}")
I(f"s_cmp_ge_u32 {sT3}, 4"); I("s_cbranch_scc1 L_helper")

E = EC
vP1 = [2, 3, 4, 5]; vGT = 6; vNM = 7; vR2 = 0
FB0, NFB = 8, 6
ACCG = [32, 64, 96]; ACCU = [48, 80, 112]; ACC_R, ACC_I = 96, 112
XF = 128
vXo = [86, 87, 88, 89]
def cbar(name, vm=(), lg=()):
    E.wait(vm=vm, lg=lg); E.barrier(); bar_names.append(name)
I("v_and_b32 v84, 4, v81"); I("v_and_b32 v80, 3, v81"); I("v_lshl_add_u32 v84, v84, 2, v80")
I(f"s_lshl2_add_u32 {sT0}, {sC_}, {sW_}"); I(f"s_lshl_b32 {sT0}, {sT0}, 5")
I(f"v_add_lshl_u32 v84, v84, {sT0}, 10")
I(f"v_add_u32 {v(vXo[0])}, v84, v83"); I(f"v_add_u32 {v(vXo[1])}, v84, v85")
I(f"v_add_u32 {v(vXo[2])}, 6144, {v(vXo[0])}"); I(f"v_add_u32 {v(vXo[3])}, 9216, {v(vXo[1])}"); I(f"v_add_u32 {v(vXo[1])}, 3072, {v(vXo[1])}")
I("s_mov_b32 s50, 2097152"); I("s_mov_b32 s51, 0x20000")
E.wait_all(lg=True)
I("s_mov_b64 s[48:49], s[16:17]")
def X_issue(i):
    I(f"s_add_u32 m0, {sM4}, {items[f'X{i}'].base}")
    for q in range(4): VM(f"buffer_load_dwordx4 {v(vXo[q])}, {SX}, {sK[i]} offen" + (f" offset:{q*1024}" if q else "") + " lds", f"X{i}")
X_issue(0); X_issue(1)
if OPT["prio"] == 1: I("s_setprio 1")
for i in range(2, 8): ktab(i)
X_issue(2)
if OPT["x3"]: X_issue(3)
cbar("b0")
I(f"v_and_b32 v90, 31, {vLANE}"); I(f"v_lshrrev_b32 v91, 5, {vLANE}")
I("v_bfe_u32 v92, v90, 1, 3"); I("v_xor_b32 v92, v92, v91"); I("v_lshlrev_b32 v92, 4, v92"); I("v_lshl_add_u32 v92, v90, 7, v92")
I(f"v_add_u32 {v(vP1[0])}, {sM4}, v92")
for s in range(1, 4): I(f"v_xor_b32 {v(vP1[s])}, {32*s}, {v(vP1[0])}")
I(f"s_mov_b32 {sC11}, 0x3f803f80"); I(f"s_mov_b32 {sC10}, 0x00003f80"); I(f"s_mov_b32 {sC01}, 0x3f800000")
for r in range(64, 72): I(f"v_mov_b32 v{r}, 0")
srd(SWS, 46, WS_SIZE); srd(SOUT, 42, 4194304)
I(f"s_cmp_ge_u32 {sW_}, 2"); srd_sel(SG, 36, 38, 1409024); srd_sel(SC, 26, 28, 524288); I(f"s_mul_i32 {sM6}, {sW_}, 6144"); srd(SWD, 40, 1409024)
I(f"s_mov_b32 {sSPIN}, 0"); I("s_mov_b32 s15, 0"); I("s_mov_b64 s[22:23], s[32:33]"); I("s_mov_b64 s[20:21], s[40:41]")
I(f"v_bfe_u32 v92, {vLANE}, 2, 2"); I("v_lshl_add_u32 v92, v91, 3, v92"); I(f"v_mul_u32_u24 {v(vGT)}, 192, v92")
I(f"v_and_b32 v93, 16, {vLANE}"); I(f"v_lshl_add_u32 {v(vGT)}, v93, 1, {v(vGT)}")
I(f"v_and_b32 v93, 1, {vLANE}"); I(f"v_lshl_add_u32 {v(vGT)}, v93, 4, {v(vGT)}")
I(f"v_and_b32 v93, 2, {vLANE}"); I(f"v_lshl_add_u32 {v(vGT)}, v93, 2, {v(vGT)}")
I(f"s_lshl_b32 {sT0}, {sW_}, 7"); I(f"s_add_u32 {sT0}, {sT0}, {RTAB}")
I("v_bfe_u32 v93, v90, 2, 1"); I("v_lshlrev_b32 v94, 4, v93"); I("v_lshrrev_b32 v93, 3, v90"); I("v_lshl_add_u32 v94, v93, 2, v94")
I("v_and_b32 v93, 3, v90"); I("v_add_u32 v94, v94, v93"); I(f"v_lshl_add_u32 v94, v94, 2, {sT0}")
FR = dict(r=72, t=73, v=74, w=75)
I(f"v_and_b32 v72, 3, {vLANE}"); I("v_lshlrev_b32 v72, 2, v72"); I(f"v_add_u32 v72, {PRG}, v72")
I(f"s_lshl_b32 {sT0}, {sW_}, 2"); I(f"s_add_u32 {sT0}, {sT0}, {PRG}"); I(f"v_mov_b32 v75, {sT0}")
def csig(st): signal("PC", PCV[st], FR["w"], FR["v"], 0)
for i in range(8):
    it = items[f"X{i}"]
    E.wait(vm=it.name)
    for s in range(4):
        DS(f"ds_read_b128 {v(XF + 16*i + 4*s, 4)}, {v(vP1[s])} offset:{it.base & 0xffff}", f"xr{i}_{s}"); note_read(it.name)
    if not OPT["x3"] and i + 3 < 8: X_issue(i + 3)
    if OPT["x3"] and i + 4 < 8: E.wait(lg=f"xr{i}_3"); X_issue(i + 4)
    if i == OPT["xi"]: csig("Xi")
    if i == 4 and OPT["mw"]:
        I(f"s_cmp_eq_u32 {sW_}, 1"); I("s_cselect_b64 s[52:53], s[38:39], s[36:37]"); I(f"s_cmp_eq_u32 {sW_}, 2"); I("s_cselect_b64 s[52:53], s[40:41], s[52:53]")
        I(f"s_cmp_eq_u32 {sW_}, 3"); I("s_cselect_b64 s[52:53], s[26:27], s[52:53]"); I("s_mov_b32 s54, 1409024"); I("s_cselect_b32 s54, 524288, s54"); I("s_mov_b32 s55, 0x20000")
        I(f"s_cselect_b32 {sT0}, 16, 43"); I(f"s_mul_i32 {sT1}, s2, {sT0}"); I(f"s_sub_u32 {sT0}, {sT0}, 1"); I(f"v_min_u32 v76, {sT0}, {vLANE}"); I(f"v_add_lshl_u32 v76, v76, {sT1}, 7")
        VM("buffer_load_dword v77, v76, s[52:55], 0 offen", "mw")
        I("s_mov_b64 s[52:53], s[28:29]"); I(f"s_cmp_eq_u32 {sW_}, 3"); I("s_cselect_b32 s54, 524288, 0")
        VM("buffer_load_dword v77, v76, s[52:55], 0 offen", "mw")
    for s in range(4):
        E.wait(lg=f"xr{i}_{s}")
        for d in range(4):
            x = v(XF + 16*i + 4*s + d)
            I(f"v_dot2c_f32_bf16 v{64+d}, {sC11}, {x}"); I(f"v_dot2c_f32_bf16 v{68+d}, {x}, {x}")
    lstamp(f"X{i}")
csig("X"); gchk = {"S0": chk_issue(FR["r"], FR["t"], 16)}
I("v_add_f32 v64, v64, v65"); I("v_add_f32 v66, v66, v67"); I("v_add_f32 v68, v68, v69")
I("v_add_f32 v64, v64, v66"); I("v_add_f32 v70, v70, v71"); I("v_mov_b32 v65, v64"); I("v_add_f32 v68, v68, v70"); I("v_mov_b32 v69, v68")
I("v_permlane32_swap_b32 v64, v65"); I("v_permlane32_swap_b32 v68, v69")
I("v_add_f32 v64, v64, v65"); I("v_mul_f32 v64, 0x3b000000, v64")
runall(bf16r_ops(65, 64)); I(f"v_sub_f32 {v(vNM)}, 0, v65")
I(f"s_sub_u32 {sT0}, 65536, {sM4}")
for s in range(4): I(f"v_add_u32 {v(vP1[s])}, {sT0}, {v(vP1[s])}")
win = {"p1": 65536, "c1": 0, "gt": 0, "lin": 0, "wt": 0}
def burst(i):
    for d in range(16):
        x = v(XF + 16*i + d)
        I(f"v_dot2_f32_bf16 v{32+2*d}, {x}, {sC10}, {v(vNM)}"); I(f"v_dot2_f32_bf16 v{33+2*d}, {x}, {sC01}, {v(vNM)}")
qC, qB = [], []
marks = set()
def run_op(op):
    if isinstance(op, tuple):
        if op[0] == "hold": holdq[0] = op[1]
        else: marks.add(op[1])
    elif isinstance(op, str): I(op)
    else: op()
def need_mark(m):
    while m not in marks:
        q = next(q for q in (qC, qB) if ("mark", m) in [o for o in q if isinstance(o, tuple)])
        run_op(q.pop(0))
def cvt_ops(i):
    ops = []
    for d in range(16):
        ops.append(f"v_cvt_pk_bf16_f32 {v(XF + 16*i + d)}, v{32+2*d}, v{33+2*d}")
        if d & 3 == 3: ops.append(("mark", f"cen{4*i + (d>>2)}"))
    return ops
B = ["v_add_f32 v68, v68, v69", "v_mul_f32 v68, 0x3b000000, v68", "v_fma_f32 v68, -v64, v64, v68", "v_max_f32 v68, 0, v68"]
B += bf16r_ops(68, 68) + ["v_add_f32 v68, 0x3727c5ac, v68"] + bf16r_ops(68, 68) + ["v_sqrt_f32 v68, v68", lambda: DS("ds_write_b32 v94, v65 offset:512", "tabw")]
B += bf16r_ops(68, 68) + ["v_rcp_f32 v68, v68", lambda: DS("ds_write_b32 v94, v68", "tabw"), f"v_mul_f32 {v(vR2)}, v68, v68", ("mark", "tab")]
qB.extend(B)

class Slot: pass
slots = []
def add_slot(chunk, reads, mfma, needs=()):
    s = Slot(); s.chunk, s.reads, s.mfma, s.needs = chunk, reads, mfma, needs; slots.append(s)
for i in range(8):
    for s in range(4):
        f = 4*i + s
        for comp in range(2):
            acc = v(ACC_I if comp else ACC_R, 16)
            add_slot(f"S{i}", [("p1", f"S{i}", s, comp * 4096)], lambda b, f=f, acc=acc: f"{MF} {acc}, {v(XF+4*f,4)}, {v(b[0],4)}, {acc if f else 0}", needs=[f"cen{f}"])
P2 = len(slots)
order = [(0, s, u, m) for s in range(4) for u in range(2) for m in range(2)] + [(0, s, 2, m) for s in range(4) for m in range(2)]
order += [(i, s, u, m) for i in range(1, 8 - NU) for s in range(4) for u in range(3) for m in range(2)]
order += [(i, s, u, m) for u in range(3) for i in range(8 - NU, 8) for s in range(4) for m in range(2)]
unit_done = {}
for (i, s, u, m) in order:
    f = 4*i + s; acc = v((ACCU if m else ACCG)[u], 16)
    nd = (["tab"] if f == 0 else []) + (["dumped"] if (f, u) == (0, 2) else [])
    add_slot(f"G{i}", [("gt", f"G{i}", m * 12288 + 16*s*192 + 64*u)], lambda b, f=f, acc=acc: f"{MF} {acc}, {v(b[0],4)}, {v(XF+4*f,4)}, {acc if f else 0}", needs=nd)
    unit_done[u] = len(slots) - 1
P3 = len(slots)
ACC3 = 32; BASE = 48
vHST = 138; vDSK = 140; vHR, vWT, vXR, vTAB3, vOUT = 128, 129, 130, 131, 132
sHG = ["s16", "s17", "s18"]
EPO = 144; vC1 = [134, 135, 136, 137]; vC2 = [2, 3, 4, 5]
cGo = [128, 129, 130]; cCo = [132, 133, 134, 135]
ACC4 = 48; ACCS = [64, 80]
AQ = list(range(172, 256, 4)) + list(range(108, 128, 4))
BASE = 144; PX = 108
P3BUFS = list(range(8, 32, 4)) + [96, 100, 104]
vA = 139; vWT2 = 133; vA2 = 7; vPB = 0
aloads = []; started = set()
for n, (t, hv) in enumerate(jobs):
    if n == NJ1: P4 = len(slots)
    for s in range(4):
        idx = {}
        for h_ in hv: idx[h_] = len(aloads); aloads.append((f"a{len(aloads)}", AQ[len(aloads) % len(AQ)], t, s, h_, s == 0 and h_ == hv[0]))
        for a_ in range(2):
            rd = ("c1", t, s, a_) if t[0] == "C" else ("wt", t, 16*s*128, a_)
            for k_, h_ in enumerate(hv):
                r_ = ([ACC3, ACC4] if h_ == "k" else ACCS)[a_]; acc = v(r_, 16)
                z = r_ not in started; started.add(r_)
                tag, q = aloads[idx[h_]][:2]
                add_slot(f"J{n}", [rd] if k_ == 0 else [], lambda b, q=q, acc=acc, z=z: f"{MF} {acc}, {v(q,4)}, {v(b[0],4)}, {0 if z else acc}")
                slots[-1].atag = tag; slots[-1].arel = idx[h_] + 1 if a_ == 1 else None
M = len(slots)
first_slot = {}
for m, s in enumerate(slots): first_slot.setdefault(s.chunk, m)
pool = [FB0 + 4*k for k in range(NFB)]
def newfb(): return pool.pop(0)
def set_win(kind, regs, base, span):
    cur = win[kind]
    if not (cur <= base and base + span <= cur + 65536):
        new = min((base // 49152) * 49152, MISC - 65536)
        if not (new <= base and base + span <= new + 65536): new = base
        for r in regs: I(f"v_add_u32 {v(r)}, {(new - cur) & 0xffffffff}, {v(r)}")
        win[kind] = cur = new
    return cur
def emit_reads(m):
    s = slots[m]; s.bufs = []; s.tags = []; s.own = bool(s.reads)
    if not s.reads: s.bufs = slots[m-1].bufs
    for rd in s.reads:
        b = newfb(); s.bufs.append(b); tag = f"rd{m}_{rd[0]}"; s.tags.append(tag)
        kind, it = rd[0], items[rd[1]]
        if kind == "p1":
            w = set_win(kind, vP1, it.base, it.size); DS(f"ds_read_b128 {v(b,4)}, {v(vP1[rd[2]])} offset:{it.base - w + rd[3]}", tag)
        elif kind == "c1":
            w = set_win(kind, vC1 + vC2, it.base, it.size); DS(f"ds_read_b128 {v(b,4)}, {v((vC2 if rd[3] else vC1)[rd[2]])} offset:{it.base - w}", tag)
        else:
            regs, pitch = ([vGT], 192) if kind == "gt" else ([vWT, vWT2], 128)
            reg = regs[rd[3]] if kind == "wt" else vGT
            w = set_win(kind, regs, it.base, it.size)
            DS(f"ds_read_b64_tr_b16 {v(b,2)}, {v(reg)} offset:{it.base - w + rd[2]}", tag)
            DS(f"ds_read_b64_tr_b16 {v(b+2,2)}, {v(reg)} offset:{it.base - w + rd[2] + 4*pitch}", tag)
        note_read(it.name)
events = {}
def at(m, fn): events.setdefault(m, []).append(fn)
post = {8*i + 7: (lambda i=i: (need_mark(f"cen{4*i+7}"), burst(i + 2), qC.extend(cvt_ops(i + 2)))) for i in range(6)}
at(52, lambda: qB.extend([f"v_lshlrev_b32 {v(vNM)}, 6, {vLANE}", f"v_bfe_u32 v64, {vLANE}, 1, 2", f"v_lshl_add_u32 {v(vNM)}, v64, 4, {v(vNM)}",
                          f"v_add_u32 {v(vNM)}, {sM4}, {v(vNM)}", f"v_add_u32 {v(vNM)}, {DUMPS[1]}, {v(vNM)}", ("mark", "dadr")]))
dtag = {}
at(P2 - 1, lambda: dtag.__setitem__(0, chk_issue(FR["r"], FR["t"], 0)))
def dump_op(j, comp):
    need_mark("dadr")
    if (j, comp) == (0, 1): chk_test(dtag[0], PCV["S5"], FR["r"], FR["t"], 0, -12)
    if j and comp == 0: I(f"v_xor_b32 {v(vNM)}, {16 * (j ^ (j - 1))}, {v(vNM)}")
    DS(f"ds_write_b128 {v(vNM)}, {v((ACC_I if comp else ACC_R) + 4*j, 4)} offset:{DUMPS[comp] - DUMPS[1]}", "dump")
    if (j, comp) == (3, 1): marks.add("dumped")
def dump64(j, comp, hf):
    need_mark("dadr")
    if j and comp == 0 and hf == 0: I(f"v_xor_b32 {v(vNM)}, {16 * (j ^ (j - 1))}, {v(vNM)}")
    if comp == 0 and hf == 0: I(f"v_add_u32 {v(vP1[1])}, {DUMPS[0]}, {v(vNM)}")
    DS(f"ds_write_b64 {v(vNM if comp else vP1[1])}, {v((ACC_I if comp else ACC_R) + 4*j + 2*hf, 2)} offset:{8*hf}", "dump")
    if (j, comp, hf) == (3, 1, 1): marks.add("dumped")
if OPT["d64"]:
    for k in range(16): at(P2 + (k * 15) // 16, lambda k=k: dump64(k >> 2, (k >> 1) & 1, k & 1))
else:
    for k in range(8): at(P2 + 1 + (k * OPT["dsp"]) // 2, lambda k=k: dump_op(k >> 1, k & 1))
def fr_move():
    I(f"v_mov_b32 {v(vP1[0])}, v72"); I(f"v_mov_b32 {v(vP1[3])}, v75"); FR.update(r=vP1[0], t=vP1[1], v=vP1[2], w=vP1[3])
at(P2 - 2, fr_move)
if OPT["mw"]: at(P2 - 3, lambda: E.wait(vm="mw"))
at(31, lambda: csig("S3")); at(47, lambda: csig("S5"))
at(P2 + OPT["bd"], lambda: (need_mark("dumped"), E.wait(lg=["dump", "tabw"]), csig("dump")))
LAND = {"G2": ["G4"], "G3": ["G5", "G6"], "G4": ["G7"]}
for st, sl in CEV.items(): at(P2 + sl, lambda st=st: (E.wait(vm=LAND.get(st, []), lg=["cof2"] if st == "G1" else []), csig(st)))
GATE = {c: (16, PHV[c]) for c in CHUNKS[:8]}
GATE["S0"] = (16, PHV["S2"]); GATE["S4"] = (16, PHV["S6"])
GATE.update({"G4": (0, PCV["G2"]), "G5": (0, PCV["G3"]), "G6": (0, PCV["G4"])})
del GATE["S2"], GATE["S6"]
for c in list(GATE)[1:]: at(first_slot[c] - OPT["D"] - 6, lambda c=c: gchk.__setitem__(c, chk_issue(FR["r"], FR["t"], GATE[c][0])))
cplaced = []
cWo = [168, 169, 170, 171]
def c_offsets():
    I(f"s_lshl_b32 {sT0}, {sW_}, 11"); I(f"s_add_u32 {sT0}, {sT0}, {HS}"); I(f"v_lshl_add_u32 v136, {vLANE}, 4, {sT0}")
    DS("ds_read_b128 v[128:131], v136", "cof"); note_read("OFT")
at(P2 + 24, c_offsets)
at(P2 + 45, lambda: (DS("ds_read_b128 v[132:135], v136 offset:1024", "cof2"), note_read("OFT")))
at(P2 + 76, lambda: qB.extend([lambda: E.wait(lg="cof2"), f"v_readfirstlane_b32 {sNON}, v135", "v_mov_b32 v168, v134"] + [f"v_add_u32 v{168+q}, {7168*q}, v134" for q in range(1, 4)]
                              + ["v_add_u32 v134, 14336, v132", "v_add_u32 v135, 14336, v133"] + q_setup() + [("mark", "cw")]))
def c_load(name, ta, step2, gate=None):
    k = name[0]; i = int(name[1:]); base = items[name].base
    tag = {}
    if gate:
        off, val = (0, PCV[gate]) if gate in PCV else (32, gate)
        at(P2 + ta - 6, lambda: tag.__setitem__(0, chk_issue(FR["r"], 137, off)))
    n = 6 if k == "G" else 4
    for q in range(n):
        def op(q=q):
            if q == 0:
                E.wait(lg="cof")
                if gate: chk_test(tag[0], val, FR["r"], 137, off, -(13 + len(cplaced))); cknown.append(("PC" if off == 0 else "PD", val))
                cplaced.append((name, list(cknown)))
            if k == "G":
                if q % 3 == 0:
                    I(f"s_add_u32 m0, {sM6}, {base + 1024*q}")
                    I(f"s_mul_i32 {sSO}, {sK[i]}, 1376" if q == 0 else f"s_add_u32 {sSO}, {sSO}, {16*2752}")
                VM(f"buffer_load_dwordx4 {v(cGo[q%3])}, {SG}, {sSO} offen" + (f" offset:{(q%3)*1024}" if q % 3 else "") + " lds", name)
            else:
                if q == 0:
                    need_mark("cw"); I(f"s_add_u32 m0, {sM4}, {base}")
                    if k == "C": q_h(sSO, i); I(f"s_lshl_b32 {sSO}, {sSO}, 7")
                    else: w_soff(sSO, i, "s19")
                VM(f"buffer_load_dwordx4 {v((cCo if k == 'C' else cWo)[q])}, {SC if k == 'C' else SWD}, {sSO} offen" + (f" offset:{q*1024}" if q else "") + " lds", name)
        at(P2 + ta + (q * step2) // 2, op)
cknown = []
c_load("G4", 37, 5, "G0"); c_load("G6", 52, 4); c_load("G5", 64, 4, "G1"); c_load("G7", 77, 5); c_load("C1", 93, 4)
c_load("C2", OPT["c1"], 4); c_load("C3", OPT["c1"] + 8, 4);
if OPT["wl"] < 3: c_load("W1", 141, 4)
if OPT["wl"] < 2: c_load("W2", 156, 3, "G5"); c_load("W3", 162, 3)
def st_addr():
    o = [f"s_lshl2_add_u32 {sT0}, {sC_}, {sW_}", f"s_mul_i32 {sT0}, {sT0}, {152*1024}", f"v_lshl_add_u32 {v(vHST)}, {vLANE}, 4, {sT0}", f"s_lshl_b32 {sT0}, {sG_}, 11"]
    for uu in range(3):
        o += [f"s_add_u32 {sT3}, {sT0}, {65536 + 15*uu*2048}",
              lambda uu=uu: (I(f"s_cmp_lt_u32 {sG_}, {14 if uu == 2 else 15}"), I(f"s_cselect_b32 {sHG[uu]}, {sT3}, 0x40000000"))]
    o += [f"s_and_b32 {sT1}, {sW_}, 1", f"s_lshr_b32 {sT2}, {sW_}, 1", f"s_lshl1_add_u32 {sT0}, {sC_}, {sGH}", f"s_lshl1_add_u32 {sT0}, {sT0}, {sT2}",
          f"s_mul_i32 {sT0}, {sT0}, {152*1024}", f"s_lshl_b32 {sT3}, {sT1}, 12", f"s_add_u32 {sT0}, {sT0}, {sT3}", f"v_lshl_add_u32 {v(vA)}, {vLANE}, 4, {sT0}",
          f"v_lshlrev_b32 {v(vDSK)}, 16, v131",
          f"s_mul_i32 {sT0}, {sGH}, {4*152*1024}", f"s_sub_u32 {sT0}, {2*152*1024}, {sT0}", f"v_add_u32 {v(vA2)}, {sT0}, {v(vA)}", ("mark", "sta1")]
    return o
def st_addr2():
    o = [f"s_and_b32 {sT1}, {sW_}, 1", f"s_lshr_b32 {sT2}, {sW_}, 1", f"v_lshrrev_b32 v141, 5, {vLANE}", f"v_and_b32 v143, 31, {vLANE}"]
    o += [f"s_lshl1_add_u32 {sT3}, {sGL}, {sT1}"]
    o += [f"s_lshl_b32 {sT3}, {sT3}, 7", f"s_lshl1_add_u32 {sT0}, {sGH}, {sT2}", f"s_lshl2_add_u32 s13, {sC_}, {sT0}", "s_lshl_b32 s13, s13, 16", f"s_add_u32 s13, s13, {sT3}",
          "v_lshlrev_b32 v142, 15, v141", "v_lshl_add_u32 v142, v143, 2, v142", f"v_add_u32 {v(vOUT)}, s13, v142"]
    o += [f"s_lshl_b32 {sT0}, {sT0}, 7", f"s_add_u32 {sT0}, {sT0}, {RTAB}", f"v_lshl_add_u32 {v(vTAB3)}, v141, 6, {sT0}",
          f"s_lshl_b32 {sT0}, {sT1}, 6", f"s_lshl_b32 {sT3}, {sT2}, 12", f"s_add_u32 {sT3}, {sT3}, {sT0}", f"s_add_u32 {sT3}, {sT3}, {XE}",
          "v_lshlrev_b32 v142, 11, v141", "v_lshl_add_u32 v142, v143, 1, v142", f"v_add_u32 {v(vXR)}, {sT3}, v142",
          f"s_lshl_b32 {sT3}, {sW_}, 12", f"s_add_u32 {sT3}, {sT3}, {RED}", f"v_lshl_add_u32 {v(vHR)}, {vLANE}, 4, {sT3}"]
    o += [f"v_bfe_u32 v142, {vLANE}, 2, 2", "v_lshl_add_u32 v142, v141, 3, v142", "v_lshlrev_b32 v142, 7, v142",
          f"v_and_b32 v6, 16, {vLANE}", "v_lshl_add_u32 v142, v6, 1, v142", f"v_and_b32 v6, 3, {vLANE}", "v_lshl_add_u32 v142, v6, 3, v142",
          f"v_and_b32 v6, 8, {vLANE}", "v_lshlrev_b32 v6, 3, v6", f"v_xor_b32 v6, {sT0}, v6", f"s_lshl_b32 {sT3}, {sT1}, 13", f"v_add3_u32 {v(vWT)}, v142, v6, {sT3}", f"v_xor_b32 {v(vWT2)}, 64, {v(vWT)}"]
    o += [f"s_mul_i32 {sT0}, {sT1}, 12288", "v_bfe_u32 v142, v143, 1, 3", "v_xor_b32 v142, v142, v141", "v_lshlrev_b32 v142, 4, v142", "v_lshl_add_u32 v142, v143, 7, v142",
          f"v_add_u32 {v(vC1[0])}, {sT0}, v142"] + [f"v_xor_b32 {v(vC1[s])}, {32*s}, {v(vC1[0])}" for s in range(1, 4)] + [f"v_xor_b32 {v(vC2[s])}, 4096, {v(vC1[s])}" for s in range(4)] + [("mark", "sta")]
    return o
at(P2 + 120, lambda: qB.extend(st_addr()))
def glu_epi(u):
    ops = []; o = EPO + 8*u
    for j in range(8):
        g0, u0 = ACCG[u] + 2*j, ACCU[u] + 2*j
        ops += [f"v_mul_f32 {v(u0)}, {v(vR2)}, {v(u0)}", f"v_mul_f32 {v(u0+1)}, {v(vR2)}, {v(u0+1)}",
                f"v_mul_f32 {v(u0)}, {v(g0)}, {v(u0)}", f"v_mul_f32 {v(u0+1)}, {v(g0+1)}, {v(u0+1)}", f"v_cvt_pk_bf16_f32 {v(o+j)}, {v(u0)}, {v(u0+1)}"]
        if j & 3 == 3:
            ops.append(lambda fr=j >> 2: VM(f"buffer_store_dwordx4 {v(o + 4*fr, 4)}, {v(vHST)}, {SWS}, {sHG[u]} offen offset:{fr*1024} sc1", "gst" if u == 2 else "gsa"))
    return ops + [("mark", f"epi{u}")]
for u in range(2): at(unit_done[u] + 3, lambda u=u: qB.extend(glu_epi(u)))
def base_ops():
    ops = [f"v_mov_b32 {v(BASE+r)}, 0" for r in range(16)]
    def rdx(r): DS(f"ds_read_u16_d16_hi {v(BASE+r)}, {v(vXR)} offset:{128*r}", f"xe{r}"); note_read("XE")
    ops += [lambda r=r: rdx(r) for r in range(16)]
    R3, M3, t0, t1, p = 160, 164, 168, 169, 170
    rnd = [f"v_cvt_pk_bf16_f32 {v(p)}, {v(t0)}, {v(t1)}", f"v_lshlrev_b32 {v(t0)}, 16, {v(p)}", f"v_and_b32 {v(t1)}, 0xffff0000, {v(p)}"]
    for j in range(4):
        ops += [lambda j=j: DS(f"ds_read_b128 {v(R3,4)}, {v(vTAB3)} offset:{16*j}", f"r3{j}"), lambda j=j: DS(f"ds_read_b128 {v(M3,4)}, {v(vTAB3)} offset:{512+16*j}", f"m3{j}"),
                ("hold", 3), lambda j=j: E.wait(lg=f"m3{j}")]
        for e in (0, 2):
            r = 4*j + e
            ops += [f"v_sub_f32 {v(t0)}, {v(BASE+r)}, {v(M3+e)}", f"v_sub_f32 {v(t1)}, {v(BASE+r+1)}, {v(M3+1+e)}"] + rnd
            ops += [f"v_mul_f32 {v(t0)}, {v(t0)}, {v(R3+e)}", f"v_mul_f32 {v(t1)}, {v(t1)}, {v(R3+1+e)}"] + rnd
            ops += [f"v_mul_f32 {v(t0)}, {v(t0)}, {v(vDSK)}", f"v_mul_f32 {v(t1)}, {v(t1)}, {v(vDSK)}"] + rnd
            ops += [f"v_add_f32 {v(BASE+r)}, {v(BASE+r)}, {v(t0)}", f"v_add_f32 {v(BASE+r+1)}, {v(BASE+r+1)}, {v(t1)}"]
    return ops + [("mark", "base")]
holdq = [0]

def segment(lo, hi, Dof, lim, pre_bar):
    rn = lo; held = []
    for m in range(lo - 1, hi):
        c0 = E.count + E.nops
        if m >= lo:
            s = slots[m]
            for n in s.needs: need_mark(n)
            tags = list(s.tags)
            if m % 2 == 0 and m + 1 < hi: tags += slots[m+1].tags
            E.wait(vm=[s.atag] if m >= P3 else [], lg=tags)
            I(s.mfma(s.bufs)); c0 = E.count + E.nops
            if s.own: pool.extend(held); held = list(s.bufs)
            if m >= P3:
                if s.arel: adone[0] = max(adone[0], s.arel)
                a_issue(OPT["ar"])
            if first_slot[s.chunk] == m and m < P3: lstamp(s.chunk)
            if OPT["lst"] == 9 and m >= P2 + OPT["l0"] and (m - P2 - OPT["l0"]) % OPT["ld"] == 0: LSET["C"].append(f"m{m-P2}"); lstamp(f"m{m-P2}")
            for fn in events.get(m, []): fn()
        nr = 0
        while rn < hi and rn <= m + Dof(m) and len(pool) >= len(slots[rn].reads) and (nr < 2 or m < lo):
            ch = slots[rn].chunk
            if first_slot[ch] == rn:
                if pre_bar: pre_bar(ch)
                if ch in GATE:
                    chk_test(gchk[ch], GATE[ch][1], FR["r"], FR["t"], GATE[ch][0], -(list(GATE).index(ch) + 1))
                    cknown.append(("PC" if GATE[ch][0] == 0 else "PH", GATE[ch][1]))
            emit_reads(rn); rn += 1; nr += 1
        assert rn >= min(hi, m + 3), (m, rn)
        if m >= lo:
            n = 0
            while qC and (n < 3 or isinstance(qC[0], tuple)): run_op(qC.pop(0)); n += 1
            if holdq[0]: holdq[0] -= 1
            while qB and not holdq[0] and (E.count + E.nops - c0 < lim - (m & 1) or isinstance(qB[0], tuple)): run_op(qB.pop(0))
            if m in post: post[m]()
    pool.extend(held)
retired = set()
def D2(m): return OPT["D"]
anext = [0]; aok = {"C": False, "W": False, "L": False}; adone = [0]
def a_issue(n):
    while n > 0 and anext[0] < len(aloads):
        tag, q, t, s_, h_, first = aloads[anext[0]]
        if not aok["L" if t in ("W4", "W5") else t[0]] or anext[0] - adone[0] >= min(len(AQ), OPT["al"]): return
        if first:
            i = int(t[1:])
            if t[0] == "C": q_h(sSO, i); I(f"s_lshl_b32 {sSO}, {sSO}, 13")
            else:
                q_u(sSO, i); I(f"s_cmp_eq_u32 {sSO}, 11"); I(f"s_cselect_b32 {sSO}, 0x20000, {sSO}"); I(f"s_lshl_b32 {sSO}, {sSO}, 13"); I(f"s_add_u32 {sSO}, {sSO}, 65536")
        VM(f"buffer_load_dwordx4 {v(q,4)}, {v(vA if h_ == 'k' else vA2)}, {SWS}, {sSO} offen" + (f" offset:{s_*1024}" if s_ else "") + " sc1", tag)
        anext[0] += 1; n -= 1
if OPT["ea"]:
    etag = {}
    at(P2 + OPT["ea"] - 6, lambda: etag.__setitem__(0, chk_issue(FR["r"], FR["t"], 16)))
    at(P2 + OPT["ea"], lambda: (need_mark("sta1"), chk_test(etag[0], PHV["K0"], FR["r"], FR["t"], 16, -11), aok.__setitem__("C", True)))
    for m_ in range(OPT["ea"], 192): at(P2 + m_, lambda: a_issue(1) if anext[0] < 12 else None)
burst(0); runall([o for o in cvt_ops(0) if isinstance(o, str)]); marks.update(f"cen{k}" for k in range(4)); burst(1); qC.extend(cvt_ops(1))
segment(0, P3, D2, 6, None)
PBAR = {"J0": "P0", "J5" if OPT["wl"] < 3 else "J4": "P2", "J8": "P3", "J12": "P4"}
def p3bar(ch):
    if ch in PBAR: cbar("b" + PBAR[ch], vm=[{0: "W3", 2: "W1", 3: "C3"}[OPT["wl"]]])
    lstamp(ch)
for key, val, sl in (("W", "KA", OPT["ka"]), ("L", "KB", OPT["kb"])):
    tg = {}
    at(P3 + sl - 4, lambda tg=tg: tg.__setitem__(0, chk_issue(FR["r"], FR["t"], 16)))
    at(P3 + sl, lambda tg=tg, key=key, val=val: (chk_test(tg[0], PHV[val], FR["r"], FR["t"], 16, -(18 if key == "W" else 19)), aok.__setitem__(key, True), a_issue(OPT["ab"])))
lstamp("T"); csig("T")
need_mark("epi1")
qB.extend(glu_epi(2)); need_mark("epi2"); lstamp("e2")
pool[:] = P3BUFS
sa = st_addr2()
I(f"v_mov_b32 v106, {v(FR['r'])}"); I(f"v_mov_b32 v107, {v(FR['w'])}"); FR.update(r=106, w=107, t=104, v=105); P3BUFS.pop(); pool[:] = P3BUFS
if OPT["ord"] == 0:
    for op in sa: run_op(op)
if not OPT["ea"]: chk_spin(PHV["K0"], FR["r"], FR["t"], 16); aok["C"] = True
lstamp("k0"); a_issue(OPT["a0"])
if OPT["ord"] == 1:
    for op in sa: run_op(op)
E.wait(vm="gsa"); csig("gsa"); lstamp("ga"); a_issue(12)
lstamp("K0")
qB.extend([f"s_lshl4_add_u32 {sT0}, {sC_}, {sG_}", f"s_lshl2_add_u32 {sT0}, {sT0}, {sW_}", f"s_lshl_b32 {sT0}, {sT0}, 12", f"s_add_u32 s20, {sT0}, {WS_PB}", f"s_xor_b32 s21, s20, {8 << 14}",
           "s_mov_b32 s16, 0x07060500", "s_mov_b32 s17, 0x07060501", "s_mov_b32 s18, 0x07060502", "s_mov_b32 s22, 0x07060503", "s_mov_b32 s23, 0x0c0c0400", "s_mov_b32 s53, 0x05040100", f"v_lshlrev_b32 {v(vPB)}, 4, {vLANE}"] + base_ops())
if OPT["gs"] < 0: E.wait(vm="gst"); csig("gst")
else: at(P3 + OPT["gs"], lambda: (E.wait(vm="gst"), csig("gst")))
def reduce_pair(own, other, bar):
    for j in range(4): DS(f"ds_write_b128 {v(vHR)}, {v(other+4*j,4)} offset:{1024*j}", "red" + bar)
    I(f"v_xor_b32 {v(FR['t'])}, 4096, {v(vHR)}")
    cbar(bar, lg=["red" + bar])
    for j in range(4): DS(f"ds_read_b128 {v(other+4*j,4)}, {v(FR['t'])} offset:{1024*j}", f"rr{j}")
if OPT["ovr"]:
    at(P4, lambda: (lstamp("snd"), need_mark("base")))
    for j in range(4): at(P4 + 1 + j // 2, lambda j=j: DS(f"ds_write_b128 {v(vHR)}, {v(ACCS[1]+4*j,4)} offset:{1024*j}", "redbR1"))
    def r1_mid():
        I(f"v_xor_b32 v170, 4096, {v(vHR)}"); I(f"v_mov_b32 v171, {sNON}")
        cbar("bR1", lg=["redbR1"])
        for j in range(4): DS(f"ds_read_b128 {v(ACCS[1]+4*j,4)}, v170 offset:{1024*j}", f"rq{j}")
    def r1_fin(j):
        E.wait(lg=f"rq{j}")
        for e in range(4): I(f"v_add_f32 {v(ACCS[0]+4*j+e)}, {v(ACCS[0]+4*j+e)}, {v(ACCS[1]+4*j+e)}")
        for e in range(4): I(f"v_perm_b32 {v(ACCS[0]+4*j+e)}, {v(ACCS[0]+4*j+e)}, v171, {['s16', 's17', 's18', 's22'][e]}")
        VM(f"buffer_store_dwordx4 {v(ACCS[0]+4*j,4)}, {v(vPB)}, {SWS}, s21 offen offset:{1024*j} sc1", "pst")
    at(P4 + 5, r1_mid)
    for j in range(4): at(P4 + 7 + j, lambda j=j: r1_fin(j))
else:
    segment(P3, P4, lambda m: OPT["D3"], 8, p3bar)
    lstamp("snd")
    need_mark("base")
    reduce_pair(ACCS[0], ACCS[1], "bR1")
    I(f"v_mov_b32 v171, {sNON}")
    for j in range(4):
        E.wait(lg=f"rr{j}")
        for e in range(4): I(f"v_add_f32 {v(ACCS[0]+4*j+e)}, {v(ACCS[0]+4*j+e)}, {v(ACCS[1]+4*j+e)}")
        for e in range(4): I(f"v_perm_b32 {v(ACCS[0]+4*j+e)}, {v(ACCS[0]+4*j+e)}, v171, {['s16', 's17', 's18', 's22'][e]}")
        VM(f"buffer_store_dwordx4 {v(ACCS[0]+4*j,4)}, {v(vPB)}, {SWS}, s21 offen offset:{1024*j} sc1", "pst")
pl_ld = [f"buffer_load_dwordx4 {v(80+4*j,4)}, {v(vPB)}, {SWS}, s20 offen offset:{1024*j} sc1" for j in range(4)]
at(M - 1 - OPT["pl"], lambda: [VM(t_, "pld") for t_ in pl_ld])
segment(P3 if OPT["ovr"] else P4, M, lambda m: OPT["D3"], 8, p3bar)
assert not qC and not qB and anext[0] == len(aloads)
RT2 = jobs[10][0]; RED2 = slot_of[RT2] * 16384
I(f"v_add_u32 {v(vHR)}, {(RED2 - RED) & 0xffffffff}, {v(vHR)}")
reduce_pair(ACC3, ACC4, "bR2")
for r in range(16): I(f"v_add_f32 {v(ACC3+r)}, {v(ACC3+r)}, {v(BASE+r)}")
chkp = []
for j in range(4):
    b_ = 80 + 4*j
    chkp += [f"v_perm_b32 v65, v{b_+1}, v{b_}, s23", f"v_perm_b32 v66, v{b_+3}, v{b_+2}, s23", "v_perm_b32 v65, v66, v65, s53",
             "v_xor_b32 v64, v171, v65" if j == 0 else "v_xor_b32 v65, v171, v65"] + ([] if j == 0 else ["v_or_b32 v64, v64, v65"])
chkp.append("v_cmp_ne_u32 vcc, 0, v64")
E.wait(vm="pld")
for c_ in chkp: I(c_)
I("s_cbranch_vccnz L_slow_p"); E.label("L_back_p"); lstamp("kp")
slow.extend(["L_slow_p:", ] + ["  " + t_ for t_ in pl_ld] + ["  s_waitcnt vmcnt(0)"] + ["  " + c_ for c_ in chkp] + spin_guard("L_back_p", -10) + ["  s_cbranch_vccnz L_slow_p", "  s_branch L_back_p"])
I("s_mov_b32 s16, 0xffffff00")
for r in range(16): I(f"v_and_b32 {v(80+r)}, s16, {v(80+r)}"); I(f"v_add_f32 {v(ACC3+r)}, {v(ACC3+r)}, {v(80 + r)}")
lstamp("last")
for r in range(16):
    if r % 4 == 0: E.wait(lg=f"rr{r>>2}")
    I(f"v_add_f32 {v(ACC3+r)}, {v(ACC3+r)}, {v(ACC4+r)}")
    if r % 2 == 0: I(f"s_mov_b32 {sT0}, {(r>>1)*4096}")
    VM(f"buffer_store_dword {v(ACC3+r)}, {v(vOUT)}, {SOUT}, {sT0} offen offset:{(r&1)*2048}" + (" sc1" if OPT["osc"] else ""), "out")
dump_stamps("C")
I("s_endpgm")

E = EH
E.label("L_helper")
vSo = [2, 3]; vGo = [4, 5, 6]; vCo = [8, 9, 10, 11]; vWo = [12, 13, 14, 15]; vHo = 16; vXEo = [17, 18]
vFLS, vFLP, vPOLL, vFLX = 19, 20, 21, 7
vLR, vCR, vL16, vL128, vL256, vPQ = 22, 24, 26, 28, 30, 32
vE, vE2, vP = 34, 36, 38
vEQA, vEST, vEF, vEX, vZA, vHSW, vHSR, vHSTo, vDA, vTAB = 40, 41, 42, 44, 46, 47, 48, 49, 50, 54
TR, TI, RT, TMP = 96, 112, 128, 144
vF16, vF256 = 56, 58
vQR, vQT, vQV, vQW = 160, 161, 162, 163
vDB = 164; vUP = 76
live = [items[f"X{i}"] for i in range(4, 8)]
known = {id(EC): 0, id(EH): 0}
def hplace(name):
    it = items[name]
    for o in list(live):
        if o.base < it.base + it.size and it.base < o.base + o.size:
            assert known[id(o.reader)] >= o.last_read, ("WAR", name, o.name)
            live.remove(o)
    live.append(it); return it
def adv11(s): I(f"s_add_u32 {s}, {s}, 1"); I(f"s_cmp_eq_u32 {s}, 11"); I(f"s_cselect_b32 {s}, 0, {s}")
cur_m0 = [None]
SOFF = {"G": "s16", "C": "s17", "W": "s18"}
def item_ops(name):
    k = name.rstrip("0123456789"); i = int(name[len(k):] or 0)
    so = SOFF.get(k)
    srd_, sm, voffs, pol = {"S": (SS, sM2, vSo, ""), "G": (SG, sM6, vGo, ""), "C": (SC, sM4, vCo, ""), "H": (SWS, sM4, [vHo]*4, " sc1"),
                            "W": (SWD, sM4, vWo, ""), "HG": (SWS, sM4, [vHo]*4, " sc1"), "XE": (SX, sM2, vXEo, "")}[k]
    prep = {"G": lambda: I(f"s_mul_i32 {so}, {sK[i]}, 1376"), "C": lambda: (q_h(so, i), I(f"s_lshl_b32 {so}, {so}, 7")),
            "W": lambda: w_soff(so, i, sSO)}.get(k, lambda: None)
    if so is None: so = "0" if k == "XE" else sK[i]
    ops = []
    for half in range(2 if k == "G" else 1):
        for q in range(len(voffs)):
            def op(half=half, q=q):
                if name in RT_:
                    if q == 0: prep()
                    VM(f"buffer_load_dwordx4 {v(RT_[name] + 4*q, 4)}, {v(voffs[q])}, {srd_}, {so} offen" + (f" offset:{q*1024}" if q else ""), name)
                    return
                if (half, q) == (0, 0): hplace(name)
                m0 = (sm, items[name].base + 3072 * half)
                if cur_m0[0] != m0: I(f"s_add_u32 m0, {sm}, {m0[1]}"); cur_m0[0] = m0
                if (half, q) == (0, 0): prep()
                if (half, q) == (1, 0): I(f"s_add_u32 {so}, {so}, {16*2752}")
                VM(f"buffer_load_dwordx4 {v(voffs[q])}, {srd_}, {so} offen" + (f" offset:{q*1024}" if q else "") + f"{pol} lds", name)
            ops.append(op)
    last = ops[-1]
    ops[-1] = lambda: (last(), done_issue.__setitem__(name, True))
    return ops
done_issue = {}
def issue(name, between=lambda: None):
    for op in item_ops(name): op(); between()
def unpark(name):
    hplace(name); E.wait(vm=name)
    I(f"v_add_u32 {v(vUP+1)}, {items[name].base}, {v(vUP)}")
    for q in range(4): DS(f"ds_write_b128 {v(vUP+1)}, {v(RT_[name] + 4*q, 4)} offset:{q*1024}", "up" + name)
def issue_mix(miss, *hits):
    mo = item_ops(miss); ho = [op for h in hits for op in item_ops(h)]
    for k, op in enumerate(mo):
        op()
        for h in ho[k * len(ho) // len(mo):(k + 1) * len(ho) // len(mo)]: h()
def flag_send(so): VM(f"buffer_store_dword v61, {v(vFLS)}, {SWS}, {so} offen sc1", "flag")
MBOX = {"s20": WS_FH - WS_FH, "s21": WS_FG - WS_FH, "s19": WS_FP - WS_FH}
def poll_issue(so, tag): pass
def poll_check(so, tag, inc):
    E.wait_all(lg=True)
    I(f"s_cmp_lg_u32 {sW_}, 0"); I(f"s_cbranch_scc1 L_back_{tag}")
    E.begin_cond()
    E.label(f"L_poll_{tag}")
    I(f"s_load_dwordx16 s[32:47], s[72:73], {MBOX[so]} glc"); I(f"s_sub_u32 {sSP2}, {sSP2}, 8"); I("s_cbranch_scc1 L_end"); I("s_waitcnt lgkmcnt(0)")
    for k in range(8): I(f"s_xor_b64 s[{32+2*k}:{33+2*k}], s[{32+2*k}:{33+2*k}], s[74:75]")
    for a_, b_ in ((32, 34), (36, 38), (40, 42), (44, 46), (32, 36), (40, 44), (32, 40)): I(f"s_or_b64 s[{a_}:{a_+1}], s[{a_}:{a_+1}], s[{b_}:{b_+1}]")
    I(f"s_cbranch_scc1 L_poll_{tag}")
    E.end_cond(); E.label(f"L_back_{tag}")
I(f"s_and_b32 {sT1}, {sW_}, 1"); I(f"s_lshl1_add_u32 {sT0}, {sG_}, {sT1}"); I(f"s_lshl_b32 {sT0}, {sT0}, 4")
I(f"v_add_lshl_u32 v84, v81, {sT0}, 10")
I(f"v_add_u32 {v(vSo[0])}, v84, v83"); I(f"v_add_u32 {v(vSo[1])}, v84, v85"); I(f"v_add_u32 {v(vSo[1])}, 7168, {v(vSo[1])}")
I(f"s_lshl_b32 {sM2}, {sW_}, 11")
E.wait_all(lg=True)
I(f"s_cmp_ge_u32 {sW_}, 2"); srd_sel(SS, 22, 24, 524288); srd_sel(SG, 36, 38, 1409024); srd_sel(SC, 26, 28, 524288)
issue("S0"); issue("S1"); E.barrier()
if OPT["prio"] == 2: I("s_setprio 1")
I(f"s_lshl2_add_u32 {sT0}, {sG_}, {sW_}"); I(f"s_lshl_b32 {sT0}, {sT0}, 3"); I(f"v_add_lshl_u32 v87, v82, {sT0}, 1")
VM("global_load_ushort v70, v87, s[30:31]", "par"); VM("global_load_ushort v71, v87, s[18:19]", "par"); VM("global_load_ushort v72, v87, s[20:21]", "par")
I(f"s_lshl1_add_u32 {sT0}, {sGL}, {sT1}"); I(f"s_lshl_b32 {sT0}, {sT0}, 5"); I(f"v_and_b32 v87, 31, {vLANE}"); I(f"v_add_lshl_u32 v87, v87, {sT0}, 1")
VM("global_load_ushort v7, v87, s[32:33]", "par")
srd(SDBG, 44, 256)
I(f"s_or_b32 {sT0}, s2, {sW_}"); I("s_cbranch_scc1 L_notag")
E.begin_cond()
I("s_or_b32 s13, s14, 1"); I("s_mul_i32 s13, s13, 0x9E3779B1"); I("v_mov_b32 v93, s13"); I("v_mov_b32 v94, 0"); I("s_mov_b64 exec, 1")
VM(f"buffer_store_dword v93, v94, {SDBG}, 0 offen sc1"); I("s_mov_b64 exec, -1")
E.end_cond(); E.label("L_notag")
for i in range(2, 8): ktab(i)
srd(SX, 16, 2097152); srd(SWD, 40, 1409024); srd(SWS, 46, WS_SIZE)
if OPT["sp"]:
    I(f"s_lshl4_add_u32 {sT0}, {sC_}, {sG_}"); I(f"s_lshl_b32 {sT0}, {sT0}, 7"); I(f"s_add_u32 {sT0}, {sT0}, {WS_FH}"); I(f"s_add_u32 s72, s46, {sT0}"); I("s_addc_u32 s73, s47, 0")
def warm():
    if not OPT["tw"]: return
    srd(SOUT, 42, 4194304)
    I("v_mov_b32 v92, 0"); I(f"s_lshl2_add_u32 {sT0}, {sC_}, {sW_}"); I(f"s_mul_i32 {sT0}, {sT0}, {152*1024}")
    I(f"s_lshr_b32 {sT2}, {sG_}, 1"); I(f"s_lshl_b32 {sT2}, {sT2}, 13"); I(f"s_add_u32 {sT0}, {sT0}, {sT2}"); I(f"s_and_b32 {sT2}, {sG_}, 1"); I(f"s_lshl_b32 {sT2}, {sT2}, 11"); I(f"s_add_u32 {sT0}, {sT0}, {sT2}")
    I(f"s_mov_b32 {sT2}, {WS_EB + 0x30000}"); I(f"s_lshl_b32 {sT3}, {sC_}, 18")
    I("s_mov_b64 exec, 1")
    for sr, so in ((SG, "0"), (SC, "0"), (SWD, "0"), (SWS, sT0), (SWS, sT2), (SOUT, sT3)):
        VM(f"buffer_load_dword v95, v92, {sr}, {so} offen sc1", "tw")
    I("s_mov_b64 exec, -1")
def setup1():
    I(f"s_mov_b32 {sSPIN}, 0"); I("s_mov_b32 s15, 0"); I(f"s_mul_i32 {sM6}, {sW_}, 6144")
    I(f"s_mul_i32 {sT0}, {sT1}, {32*2752}"); I(f"s_mul_i32 {sT2}, {sG_}, 192"); I(f"s_add_u32 {sT0}, {sT0}, {sT2}")
    I(f"s_mul_i32 {sT2}, {sG_}, 3"); I(f"s_mov_b32 {sT3}, 2752"); I(f"v_mov_b32 v90, {OOB}")
    for i in range(3):
        I(f"v_add_u32 v88, {64*i}, {vLANE}"); I("v_mul_u32_u24 v86, 43691, v88"); I("v_lshrrev_b32 v86, 19, v86")
        I("v_mul_u32_u24 v87, 12, v86"); I("v_sub_u32 v87, v88, v87")
        I(f"v_mul_lo_u32 v86, v86, {sT3}"); I("v_lshl_add_u32 v86, v87, 4, v86"); I(f"v_add_u32 v86, {sT0}, v86")
        I("v_lshrrev_b32 v87, 2, v87"); I(f"v_add_u32 v87, {sT2}, v87"); I("v_cmp_gt_u32 vcc, 43, v87")
        if i: I(f"v_subrev_u32 v86, {1024*i}, v86")
        I(f"v_cndmask_b32 {v(vGo[i])}, v90, v86, vcc")
    I(f"s_lshl2_add_u32 {sT0}, {sGL}, {sT1}"); I(f"s_lshl_b32 {sT2}, {sG_}, 1"); I(f"s_sub_u32 {sT0}, {sT0}, {sT2}"); I(f"s_lshl_b32 {sT0}, {sT0}, 14")
    I(f"v_add_u32 {v(vCo[0])}, {sT0}, {v(vSo[0])}"); I(f"v_add_u32 {v(vCo[1])}, {sT0}, {v(vSo[1])}")
    I(f"v_add_u32 {v(vCo[2])}, {2*7168}, {v(vCo[0])}"); I(f"v_add_u32 {v(vCo[3])}, {2*7168}, {v(vCo[1])}")

def setup1b():
    I(f"s_and_b32 {sT1}, {sW_}, 1")
    I("v_lshlrev_b32 v86, 4, v82"); I("v_lshl_add_u32 v86, v81, 10, v86"); I(f"v_and_b32 v87, 16, {vLANE}"); I("v_lshlrev_b32 v87, 2, v87"); I("v_xor_b32 v87, v86, v87")
    I(f"s_lshl_b32 {sT3}, {sGL}, 7"); I(f"v_add_u32 {v(vWo[0])}, {sT3}, v87")
    for q in range(1, 4): I(f"v_add_u32 {v(vWo[q])}, {7168*q}, {v(vWo[0])}")
    I(f"s_lshl1_add_u32 s13, {sC_}, {sGH}"); I(f"s_lshl2_add_u32 {sT0}, s13, {sW_}"); I(f"s_lshl_b32 {sT0}, {sT0}, 14"); I(f"s_add_u32 {sT0}, {sT0}, {sT3}")
    I(f"v_add_u32 {v(vXEo[0])}, {sT0}, v86"); I(f"v_add_u32 {v(vXEo[1])}, 7168, {v(vXEo[0])}")
    I(f"s_lshr_b32 {sT2}, {sW_}, 1"); I(f"s_lshl1_add_u32 {sT0}, s13, {sT2}"); I(f"s_mul_i32 {sT0}, {sT0}, {152*1024}"); I(f"s_lshl_b32 {sT3}, {sT1}, 12"); I(f"s_add_u32 {sT0}, {sT0}, {sT3}")
    I(f"v_lshl_add_u32 {v(vHo)}, {vLANE}, 4, {sT0}")
    I(f"s_cmp_eq_u32 {sW_}, 0"); I(f"s_cselect_b32 {sT2}, 16, 0"); I(f"v_cmp_gt_u32 vcc, {sT2}, {vLANE}")
    I(f"s_lshl_b32 {sT0}, {sC_}, 11"); I(f"s_lshl2_add_u32 {sT3}, {sG_}, {sT0}"); I(f"v_lshl_add_u32 v86, {vLANE}, 7, {sT3}")
    I(f"v_cndmask_b32 {v(vFLS)}, v90, v86, vcc")
    I(f"s_lshl_b32 {sT3}, {sG_}, 7"); I(f"s_add_u32 {sT3}, {sT3}, {sT0}"); I(f"v_lshl_add_u32 v86, {vLANE}, 2, {sT3}")
    I(f"v_cndmask_b32 {v(vFLP)}, v90, v86, vcc"); I(f"v_cndmask_b32 {v(vFLX)}, 0, -1, vcc")
    I(f"s_mov_b32 s20, {WS_FH}"); I(f"s_mov_b32 s21, {WS_FG}")

def setup2():
    o = []
    A = o.append
    A(f"s_lshl_b32 {sT0}, {sW_}, 10"); A(f"s_add_u32 {sT0}, {sT0}, {EQ}"); A(f"v_lshl_add_u32 {v(vEQA)}, {vLANE}, 3, {sT0}")
    A("v_mov_b32 v88, 0"); A("v_mov_b32 v89, 0"); A(lambda: DS(f"ds_write_b64 {v(vEQA)}, v[88:89]", "eqz"))
    A(f"v_lshl_add_u32 {v(vZA)}, v82, 3, {sT0}")
    A(f"s_lshl_b32 {sT0}, {sW_}, 9"); A(f"v_lshlrev_b32 v86, 11, v81"); A("v_lshl_add_u32 v86, v82, 6, v86"); A("v_lshrrev_b32 v87, 1, v82")
    A("v_lshl_add_u32 v86, v87, 4, v86"); A(f"v_add_u32 {v(vDA)}, {sT0}, v86")
    for j in range(1, 4): A(f"v_xor_b32 {v(vDA+j)}, {16*j}, {v(vDA)}")
    for j in range(4): A(f"v_add_u32 {v(vDB+j)}, {DUMPS[1]}, {v(vDA+j)}")
    A(f"v_lshlrev_b32 {v(vTAB)}, 6, v81"); A(f"v_add_u32 {v(vTAB)}, {RTAB}, {v(vTAB)}")
    A(f"s_lshl_b32 {sT0}, {sG_}, 13"); A(f"s_lshl_b32 {sT2}, {sW_}, 7"); A(f"s_add_u32 {sT0}, {sT0}, {sT2}"); A(f"s_add_u32 {sT0}, {sT0}, {WS_EB}")
    A(f"v_lshl_add_u32 v86, v82, 4, {sT0}")
    A(f"s_lshl_b32 {sT2}, {sC_}, 9"); A(f"v_add_u32 {v(vEST)}, {sT2}, v86"); A(lambda: (I("v_cmp_eq_u32 vcc, 7, v81"), I(f"v_cndmask_b32 {v(vEST)}, v90, {v(vEST)}, vcc")))
    A(f"s_sub_u32 {sT2}, {sC_}, 16"); A(f"v_lshl_add_u32 v87, v81, 1, {sT2}")
    A(f"v_lshl_add_u32 {v(vEF)}, v87, 9, v86"); A(f"v_add_u32 {v(vEF+1)}, 512, {v(vEF)}")
    A(lambda: (I("v_cmp_le_i32 vcc, 0, v87"), I(f"v_cndmask_b32 {v(vEF)}, v90, {v(vEF)}, vcc"), I(f"v_cndmask_b32 {v(vEX)}, 0, -1, vcc")))
    A(lambda: (I("v_cmp_le_i32 vcc, -1, v87"), I(f"v_cndmask_b32 {v(vEF+1)}, v90, {v(vEF+1)}, vcc"), I(f"v_cndmask_b32 {v(vEX+1)}, 0, -1, vcc")))
    A(f"s_mul_i32 {sT0}, {sW_}, 2608"); A(f"s_add_u32 {sT0}, {sT0}, {HS}")
    A("v_mul_u32_u24 v86, 336, v82"); A("v_lshl_add_u32 v86, v81, 5, v86"); A(f"v_add_u32 {v(vHSW)}, {sT0}, v86")
    A(f"v_bfe_u32 v86, {vLANE}, 2, 2"); A("v_mul_u32_u24 v86, 336, v86"); A(f"v_and_b32 v87, 32, {vLANE}"); A("v_lshl_add_u32 v86, v87, 1, v86")
    A(f"v_and_b32 v87, 1, {vLANE}"); A("v_lshl_add_u32 v86, v87, 5, v86"); A(f"v_and_b32 v87, 16, {vLANE}"); A("v_add_u32 v86, v86, v87")
    A(f"v_and_b32 v87, 2, {vLANE}"); A("v_lshl_add_u32 v86, v87, 2, v86"); A(f"v_add_u32 {v(vHSR)}, {sT0}, v86")
    A(f"s_mul_i32 {sT0}, {sC_}, {4*152}"); A(f"s_lshr_b32 {sT2}, {sG_}, 1"); A(f"s_lshl3_add_u32 {sT0}, {sT2}, {sT0}"); A(f"s_and_b32 {sT2}, {sG_}, 1")
    A(f"s_lshl1_add_u32 {sT0}, {sT2}, {sT0}"); A(f"s_lshl_b32 {sT0}, {sT0}, 10"); A(f"s_lshl_b32 {sT2}, {sW_}, 9"); A(f"s_add_u32 {sT0}, {sT0}, {sT2}")
    A(f"v_lshrrev_b32 v86, 5, {vLANE}"); A(f"v_mul_u32_u24 v86, {152*1024}, v86"); A(f"v_and_b32 v87, 31, {vLANE}"); A("v_lshl_add_u32 v86, v87, 4, v86"); A(f"v_add_u32 {v(vHSTo)}, {sT0}, v86")
    LOG2E = "0x3fb8aa3b"
    A(lambda: E.wait(vm="par"))
    o += ["v_lshlrev_b32 v70, 16, v70", "v_lshlrev_b32 v71, 16, v71", "v_lshlrev_b32 v72, 16, v72",
          f"v_mul_f32 v70, {LOG2E}, v70", "v_exp_f32 v70, v70", "v_mul_f32 v74, v71, v71"] + bf16r_ops(70, 70)
    o += ["v_mul_f32 v75, v70, v71", "v_mul_f32 v76, v70, v72", f"v_mul_f32 v75, {LOG2E}, v75", "v_exp_f32 v75, v75",
          "v_mul_f32 v76, 0.15915494, v76", "v_rndne_f32 v77, v76", "v_sub_f32 v76, v76, v77", "v_cos_f32 v77, v76", "v_sin_f32 v78, v76",
          "v_fmac_f32 v74, v72, v72", f"v_mul_f32 {v(vLR)}, v75, v77", "v_mul_f32 v78, v75, v78", "v_rcp_f32 v74, v74",
          f"v_add_f32 v77, -1.0, {v(vLR)}", "v_add_f32 v74, v74, v74",
          f"v_mul_f32 {v(vCR)}, v77, v71", f"v_fmac_f32 {v(vCR)}, v78, v72", f"v_mul_f32 {v(vCR)}, {v(vCR)}, v74",
          f"v_mul_f32 {v(vCR+1)}, v77, v72", f"v_fma_f32 {v(vCR+1)}, -v78, v71, {v(vCR+1)}", f"v_mul_f32 {v(vCR+1)}, {v(vCR+1)}, v74",
          f"v_sub_f32 {v(vLR+1)}, 0, v78"]
    o += csq_ops(70, vLR, 78) + csq_ops(72, 70, 78) + csq_ops(70, 72, 78) + csq_ops(vL16, 70, 78)
    o += csq_ops(70, vL16, 78) + csq_ops(72, 70, 78) + csq_ops(vL128, 72, 78) + csq_ops(vL256, vL128, 78)
    o += [f"v_mov_b32 {v(vPQ)}, {v(vCR)}", f"v_mov_b32 {v(vPQ+1)}, {v(vCR+1)}"]
    for bit, L in ((8, vL16), (16, 70), (32, 72)):
        o += [f"v_and_b32 v74, {bit}, {vLANE}", lambda L=L: (I("v_cmp_ne_u32 vcc, 0, v74"), I(f"v_cndmask_b32 v76, 1.0, {v(L)}, vcc"), I(f"v_cndmask_b32 v77, 0, {v(L+1)}, vcc"))]
        o += cmul_ops(vPQ, vPQ, 76, 78)
    def factor(F, Ls):
        r = []
        for n, (bit, L) in enumerate(zip((8, 16, 32), Ls)):
            d = F if n == 0 else 76
            r += [f"v_and_b32 v74, {bit}, {vLANE}", lambda L=L, d=d: (I("v_cmp_eq_u32 vcc, 0, v74"), I(f"v_cndmask_b32 {v(d)}, 1.0, {v(L)}, vcc"), I(f"v_cndmask_b32 {v(d+1)}, 0, {v(L+1)}, vcc"))]
            if n: r += cmul_ops(F, F, 76, 78)
        return r
    o += factor(vF16, (vL16, 70, 72))
    o += csq_ops(70, vL256, 78) + csq_ops(72, 70, 78) + factor(vF256, (vL256, 70, 72))
    return o
def allsum(a_, b_, t):
    o = [f"v_add_f32_dpp {v(t)}, {v(a_)}, {v(a_)} row_ror:8 row_mask:0xf bank_mask:0xf", f"v_add_f32_dpp {v(t+1)}, {v(b_)}, {v(b_)} row_ror:8 row_mask:0xf bank_mask:0xf",
         f"v_mov_b32 {v(a_)}, {v(t)}", f"v_mov_b32 {v(b_)}, {v(t+1)}",
         f"v_permlane16_swap_b32 {v(a_)}, {v(t)}", f"v_permlane16_swap_b32 {v(b_)}, {v(t+1)}",
         f"v_add_f32 {v(a_)}, {v(a_)}, {v(t)}", f"v_add_f32 {v(b_)}, {v(b_)}, {v(t+1)}",
         f"v_mov_b32 {v(t)}, {v(a_)}", f"v_mov_b32 {v(t+1)}, {v(b_)}",
         f"v_permlane32_swap_b32 {v(a_)}, {v(t)}", f"v_permlane32_swap_b32 {v(b_)}, {v(t+1)}",
         f"v_add_f32 {v(a_)}, {v(a_)}, {v(t)}", f"v_add_f32 {v(b_)}, {v(b_)}, {v(t+1)}"]
    return o
def cmul4(d, x, y):
    return [f"v_mul_f32 {v(d[0])}, {v(x[0])}, {v(y)}", f"v_mul_f32 {v(d[1])}, {v(x[0])}, {v(y+1)}",
            f"v_fma_f32 {v(d[0])}, -{v(x[1])}, {v(y+1)}, {v(d[0])}", f"v_fmac_f32 {v(d[1])}, {v(x[1])}, {v(y)}"]
def ssm1():
    o = []
    def rdd(j, comp): DS(f"ds_read_b128 {v((TI if comp else TR) + 4*j, 4)}, {v(vDB+j)} offset:{DUMPS[comp] - DUMPS[1]}", f"dr{j}"); note_read(f"DUMP{comp}")
    for j in range(4):
        o += [lambda j=j: DS(f"ds_read_b128 {v(RT + 4*j, 4)}, {v(vTAB)} offset:{16*j}", f"dr{j}"), lambda j=j: rdd(j, 0), lambda j=j: rdd(j, 1)]
    cur, nx = (vE, vE + 1), (vE2, vE2 + 1)
    for r in range(16):
        if r % 4 == 0: o.append(lambda j=r >> 2: E.wait(lg=f"dr{j}"))
        o += [f"v_mul_f32 {v(TR+r)}, {v(TR+r)}, {v(RT+r)}", f"v_mul_f32_e64 {v(TI+r)}, -{v(TI+r)}, {v(RT+r)}"]
        if r == 0: src = (TR, TI)
        else:
            o += cfma_ops(nx, vLR, src, TR + r, TI + r); src = nx; cur, nx = nx, cur
    assert src == (vE2, vE2 + 1)
    o += cmul4((60, 62), src, vF16) + allsum(60, 62, 64)
    o.append(lambda: (VM(f"buffer_store_dwordx4 v[60:63], {v(vEST)}, {SWS}, 0 offen sc1", "est"), lstamp("epub")))
    return o
def window():
    o = [lambda: DS(f"ds_write_b64 {v(vEQA)}, {v(vE2,2)} offset:{7*64}", "eqw")]
    o += [lambda i=i: DS(f"ds_read_b64 {v(TMP+2*i,2)}, {v(vEQA)} offset:{64*i}", "eq") for i in range(7)]
    for r in range(16):
        o += [f"v_mul_f32 v72, {v(vCR+1)}, {v(TI+r)}", f"v_mul_f32 {v(TI+r)}, {v(vCR)}, {v(TI+r)}",
              f"v_fmac_f32 {v(TI+r)}, {v(vCR+1)}, {v(TR+r)}", f"v_fma_f32 {v(TR+r)}, {v(vCR)}, {v(TR+r)}, -v72"]
    o.append(lambda: E.wait(lg="eq"))
    src = (TMP, TMP + 1); pp = [(vE2, vE2 + 1), (vE, vE + 1)]
    for i in range(1, 7):
        d = pp[i & 1]; o += cfma_ops(d, vL16, src, TMP + 2*i, TMP + 2*i + 1); src = d
    return o + cmul4((vP, vP + 1), src, vCR)
def efetch_issue():
    VM(f"buffer_load_dwordx4 v[64:67], {v(vEF)}, {SWS}, 0 offen sc1", "ef"); VM(f"buffer_load_dwordx4 v[68:71], {v(vEF+1)}, {SWS}, 0 offen sc1", "ef")
def ssm3():
    chk = [f"v_xor_b32 v72, v65, {v(vEX)}", f"v_xor_b32 v73, v67, {v(vEX)}", f"v_xor_b32 v74, v69, {v(vEX+1)}", "v_or3_b32 v72, v72, v73, v74",
           f"v_xor_b32 v73, v71, {v(vEX+1)}", "v_or_b32 v72, v72, v73", "v_cmp_ne_u32 vcc, 0, v72"]
    def check():
        E.wait(vm="ef")
        for c in chk: I(c)
        I("s_cbranch_vccnz L_slow_e"); E.label("L_back_e"); lstamp("eok")
        slow.extend(["L_slow_e:",  f"  buffer_load_dwordx4 v[64:67], {v(vEF)}, {SWS}, 0 offen sc1", f"  buffer_load_dwordx4 v[68:71], {v(vEF+1)}, {SWS}, 0 offen sc1",
                     "  s_waitcnt vmcnt(0)"] + ["  " + c for c in chk] + spin_guard("L_back_e", 0x100) + ["  s_cbranch_vccnz L_slow_e", "  s_branch L_back_e"])
    o = [check] + cfma_ops((vE, vE + 1), vL128, (64, 66), 68, 70)
    o += cmul4((vE2, vE2 + 1), (vE, vE + 1), vF256) + allsum(vE2, vE2 + 1, 72)
    src = (vE2, vE2 + 1)
    o += cfma_ops((vE, vE + 1), vPQ, src, vP, vP + 1)
    src = (vE, vE + 1)
    for r in range(16):
        d = (TR + r, TI + r); o += cfma_ops(d, vLR, src, d[0], d[1]); src = d
        if r & 1: o += [f"v_cvt_pk_bf16_f32 {v(TMP + (r>>1))}, {v(TR+r-1)}, {v(TR+r)}", f"v_cvt_pk_bf16_f32 {v(TMP + 8 + (r>>1))}, {v(TI+r-1)}, {v(TI+r)}"]
    for comp in range(2):
        o += [lambda j=j, comp=comp: DS(f"ds_write_b128 {v(vHSW)}, {v(TMP + 8*comp + 4*j, 4)} offset:{16*j}", "hsw") for j in range(2)]
        for i in range(2):
            for ph in range(2):
                def rd(i=i, ph=ph, comp=comp):
                    DS(f"ds_read_b64_tr_b16 {v(RT + 8*comp + 4*i + 2*ph, 2)}, {v(vHSR)} offset:{4*ph*336 + 128*i}", f"hr{comp}{i}"); note_read("HS")
                o.append(rd)
    for comp in range(2):
        for i in range(2):
            def st(i=i, comp=comp):
                I(f"s_mov_b32 {sT0}, {2*i*152*1024 + comp*4096}"); E.wait(lg=f"hr{comp}{i}")
                VM(f"buffer_store_dwordx4 {v(RT + 8*comp + 4*i, 4)}, {v(vHSTo)}, {SWS}, {sT0} offen sc1", "hst")
            o.append(st)
    o.append(lambda: lstamp("hst"))
    return o
work = []
def pop_work(n):
    while n > 0 and work: runall([work.pop(0)]); n -= 1
def between(n=8): return lambda: pop_work(n)
live.append(items["OFT"])
I(f"v_and_b32 {v(vQR)}, 3, {vLANE}"); I(f"v_lshlrev_b32 {v(vQR)}, 2, {v(vQR)}"); I(f"v_add_u32 {v(vQR)}, {PRG}, {v(vQR)}"); I(f"v_mov_b32 {v(vQV)}, 0")
I(f"s_lshl_b32 {sT0}, {sW_}, 2"); I(f"s_add_u32 {sT0}, {sT0}, {PRG}"); I(f"v_mov_b32 {v(vQW)}, {sT0}")
issue("S2"); issue("S3"); lstamp("b0")
def hchk(word, st):
    off = {"PC": 0, "PD": 32}[word]; val = PCV[st] if word == "PC" else st
    chk_spin(val, vQR, vQT, off)
    em, lg = signals[(word, val)]; known[id(em)] = max(known[id(em)], lg)
published = [0]
def pub(ch):
    assert PHV[ch] > published[0]
    E.wait(vm=[n for c in CHUNKS[published[0]:PHV[ch]] for n in chunk_items(c)]); signal("PH", PHV[ch], vQW, vQV, 16); published[0] = PHV[ch]
def auto_pub(lead):
    best = None
    for c in CHUNKS[published[0]:]:
        if all(n in E.vm and done_issue.get(n) and len(E.vm) - E.last(E.vm, n) >= lead for n in chunk_items(c)): best = c
        else: break
    if best: pub(best)
def s47():
    for n in ("S4", "S5", "S6", "S7"): issue(n)
if OPT["xi"] < 0: s47()
pub("S2")
setup1()
I(f"s_lshl_b32 {sT0}, {sW_}, 11"); I(f"s_add_u32 {sT0}, {sT0}, {HS}"); I(f"v_lshl_add_u32 v86, {vLANE}, 4, {sT0}")
E.wait(vm="par"); DS("ds_write_b128 v86, v[4:7]", "oft"); I("v_mov_b32 v92, v86"); E.wait(lg="oft")
if OPT["xi"] >= 0: hchk("PC", "Xi"); s47()
w2 = setup2(); runall(w2[:OPT["w2a"]])
hchk("PC", "X"); lstamp("xd")
I("v_mov_b32 v91, 0"); VM(f"buffer_load_dword {v(vPOLL)}, v91, {SDBG}, 0 offen sc1", "tag")
issue("G0"); pub("S6"); runall(w2[OPT["w2a"]:OPT["w2b"]]); issue("G1"); runall(w2[OPT["w2b"]:]); pub("G0"); hchk("PC", "S3"); issue("G2"); pub("G1"); issue("G3"); setup1b()
tag_check("H", vPOLL, 88)
I(f"s_mov_b32 s74, {sNON}"); I(f"s_mov_b32 s75, {sNON}")
runall([f"v_mov_b32 v61, {sNON}", f"v_mov_b32 v63, {sNON}", f"v_and_b32 {v(vEX)}, {sNON}, {v(vEX)}", f"v_and_b32 {v(vEX+1)}, {sNON}, {v(vEX+1)}", f"v_and_b32 {v(vFLX)}, {sNON}, {v(vFLX)}",
        f"v_lshl_add_u32 {v(vUP)}, {vLANE}, 4, {sM4}"])
known[id(EC)] = max(known[id(EC)], signals[("PC", PCV["S5"])][1]); hplace("DUMP0"); hplace("DUMP1")
DS("ds_write_b64 v92, v[8:9] offset:1024", "oft"); DS("ds_write_b32 v92, v12 offset:1032", "oft"); DS("ds_write_b32 v92, v61 offset:1036", "oft")
runall(q_setup()); issue("C0"); issue("W0")
if OPT["w1e"]: issue("W4")
I(f"s_setprio {OPT['pb']}")
hchk("PC", "dump"); lstamp("bD")
ncp = [0]
def code_touch():
    ncp[0] += 1
    I("s_getpc_b64 s[54:55]"); E.label(f"L_pc{ncp[0]}")
    I(f"s_sub_u32 s54, s54, L_pc{ncp[0]}-{NAME}_kernel"); I("s_subb_u32 s55, s55, 0")
    I(f"s_and_b32 {sT0}, {sGL}, 3"); I("v_and_b32 v78, 0xfc, v0"); I(f"v_or_b32 v78, {sT0}, v78"); I("v_lshlrev_b32 v78, 7, v78")
    VM("global_load_dword v79, v78, s[54:55]", "code")
def pass2():
    t0 = OPT["bd"] + 2
    s1, wn, s3 = ssm1(), window(), ssm3()
    ins = []
    def spread(name, ta, tb, pre=None):
        holder = {}
        n = 6 if name[0] == "G" else 4
        for k in range(n):
            def f(k=k):
                if k == 0:
                    if pre: hchk(*pre)
                    holder["ops"] = item_ops(name)
                holder["ops"][k]()
            ins.append((ta + (tb - ta) * k / n, f))
    ins.append((OPT["pg2"], lambda: (E.wait(lg="dr3"), pub("G2")))); ins.append((48, lambda: pub("G3")))
    ins.sort(key=lambda x: x[0])
    t = [float(t0)]
    def cyc(): return E.nvec * OPT["vc"] / 10.0 + (E.count + E.nops - E.nvec) * 4.0
    def adv(c0): t[0] += (cyc() - c0) / 33.0
    def run(ops):
        for op in ops:
            while ins and ins[0][0] <= t[0]:
                c0 = cyc(); ins.pop(0)[1](); adv(c0)
            c0 = cyc(); runall([op]); adv(c0)
    def idle_until(tt):
        while ins and ins[0][0] <= tt: t[0] = max(t[0], ins[0][0]); ins.pop(0)[1]()
        t[0] = max(t[0], tt)
    run(s1); tpub = t[0]
    k = 0
    while k < len(wn) and t[0] < tpub + OPT["efd"]: run([wn[k]]); k += 1
    efetch_issue(); lstamp("ef"); tf = t[0]
    if OPT["cp"] & 1: code_touch()
    run(wn[k:]); hchk("PC", "G1"); hplace("HS")
    tc = t[0]
    I(f"s_setprio {OPT['pc']}"); run(s3); ts = t[0]; assert not ins
    E.wait(vm="hst"); signal("PD", 2, vQW, vQV, 32); hchk("PD", 2); flag_send("s20"); lstamp("hflag")
    if OPT.get("log"): print(f"helper est: epub {tpub:.0f} efetch {tf:.0f} check {tc:.0f} stores {ts:.0f}", file=sys.stderr)
pass2()
issue("XE")
if not OPT["w1e"]: issue("W4")
if OPT["cp"] & 2: code_touch()
pub("KX")
for name, kn in cplaced:
    save = dict(known); known.update({id(EC): 0, id(EH): 0})
    for w_, val in kn:
        em, lg = signals[(w_, val)]; known[id(em)] = max(known[id(em)], lg)
    hplace(name); done_issue[name] = True; known.update(save)
I(f"s_setprio {OPT['pd']}")
if OPT["ep"]:
    hchk("PC", "U0"); poll_issue("s20", "ph"); poll_check("s20", "ph", 0x10000); lstamp("okh"); pub("K0")
I(f"s_mov_b32 s19, {WS_FP}")
hchk("PC", "T"); lstamp("gT")
unpark("C0"); I("s_setprio 2")
hchk("PC", "gsa"); flag_send("s19"); lstamp("fa"); I(f"s_setprio {OPT['pd']}")
wl_ = list(("W1", "W2", "W3")[3 - OPT["wl"]:])
if OPT["u0"]: unpark("W0")
for k, bn in enumerate(bar_names[1:]):
    E.wait(vm={"bP3": ["W5"], "bP2": wl_}.get(bn, []), lg={"bP0": ["upC0"], "bP2": ["upW0"], "bP3": ["upW4"]}.get(bn, [])); E.barrier()
    known[id(EC)] = max(known[id(EC)], EC.barriers[k + 1][1])
    if bn == "bP0":
        poll_check("s19", "pa", 0x1); lstamp("oka"); pub("KA")
        I("s_setprio 2"); hchk("PC", "gst"); flag_send("s21"); I(f"s_setprio {OPT['pd']}")
        for n_ in wl_: issue(n_)
        if not OPT["u0"]: unpark("W0")
        poll_check("s21", "pg", 0x1000000); lstamp("okg"); pub("KB")
    if bn == "bP2": issue("W5"); unpark("W4")
    if bn == "bP3": assert known[id(EC)] >= min(items["C2"].last_read, 10**9)
    if bn == "bP4": assert known[id(EC)] >= items[RT2].last_read
assert len(EH.barriers) == len(EC.barriers)
dump_stamps("H")
E.label("L_end"); I("s_endpgm")

hdr = open("cdna_kernels/" + NAME + ".s.ref").read().split("; Override launch geometry")[0]
out = hdr
if OPT["lst"]: out += "; cstamps: " + " ".join(lnames["C"]) + "\n; hstamps: " + " ".join(lnames["H"]) + f"\n; rt: {OPT['rt']}\n"
out += f"; @launch grid=(256,1,1) block=(512,1,1) lds={LDS_BYTES}\n"
out += f'.amdgcn_target "amdgcn-amd-amdhsa--gfx950"\n.text\n.globl {NAME}_kernel\n.p2align 8\n.type {NAME}_kernel,@function\n'
kc = next(k for k, l in enumerate(EC.lines) if "v_and_b32 v90, 31" in l)
out += E0.text() + "\n".join(EC.lines[:kc]) + "\n  s_branch L_cmain\n" + EH.text() + "L_cmain:\n" + "\n".join(EC.lines[kc:]) + "\n" + "\n".join(slow) + "\n"
out += f"L_pad:\n.fill (37120 - (L_pad - {NAME}_kernel)) / 4, 4, 0xbf810000\n"
out += f""".section .rodata,"a"
.p2align 6
.amdhsa_kernel {NAME}_kernel
  .amdhsa_next_free_vgpr 256
  .amdhsa_next_free_sgpr 102
  .amdhsa_accum_offset 256
  .amdhsa_group_segment_fixed_size 0
  .amdhsa_kernarg_size 128
  .amdhsa_user_sgpr_count 2
  .amdhsa_user_sgpr_kernarg_segment_ptr 1
  .amdhsa_system_sgpr_workgroup_id_x 1
.end_amdhsa_kernel
"""
open(sys.argv[1], "w").write(out)
print(f"compute {EC.count}+{EC.nops} helper {EH.count}+{EH.nops} barriers {len(bar_names)}: {' '.join(bar_names)}", file=sys.stderr)
```

```python
import sys
from emit import Emitter
NAME = "parallel_sum__ssm_conv_s5__glu_gated_bilinear__prompt"
OPT = dict(lst=0, rt=1, D=4, D2=7, D3=6, NU=2, gfd=40, prio=1, bd=15, ipc=85, slp=2, slq=0, wl=2, ovr=0, cp=0, sp=2, dsp=3, efn=90, rot=8, lead=12, ge=0, gf=1, gg=5, gp=2, mw=0, ar=1, nr=8, bk=12, c34=1, f0=0, f2=1, pw=0, pd=2, nwt=0, a0=6, al=16, nb=60, gs=0, tw=0, osc=1, d64=0, w2a=20, w2b=110, pb=0, c1=117, c45=1, u0s=170, xi=-1, pc=2, map=0, xj=1, nd=2, skw=2, gj=7, pjd=10, ea=0, pl=14, w1e=0, xw=1, ct=1, stg=0, x3=0, wr=4, pg2=21, ep=1, ord=1, ka=20, kb=56, ab=2, u0=1, vc=85, efd=35, ecd=20)
for a_ in sys.argv[2:]:
    k_, v_ = a_.split("="); OPT[k_] = int(v_)

WS_EB = 0xA00000; WS_FH = 0xA40000; WS_FG = 0xA48000; WS_ST = 0xC00000; WS_FP = 0xA50000; WS_PB = 0x1000000; WS_SIZE = 0x1800000
U8 = 8192; MISC = 18 * U8
RTAB = MISC; EQ = MISC + 1024; HS = MISC + 5120; XE = MISC + 5120
DUMP = 0
PRG = MISC + 15872
LDS_BYTES = 163840
OOB = 0x80000000
sW_, sC_, sG_, sGL, sGH, sJ0 = "s3", "s4", "s5", "s6", "s7", "s8"
sT0, sT1, sT2, sT3 = "s9", "s10", "s11", "s12"
SX, SS, SG, SC, SWD, SWS, SOUT, SDBG = ("s[48:51]", "s[52:55]", "s[56:59]", "s[60:63]", "s[64:67]", "s[68:71]", "s[72:75]", "s[76:79]")
sK = [f"s{80+i}" for i in range(8)]
sM4, sM2, sM6 = "s88", "s89", "s94"
sQW, sQHG, sSO = "s95", "s96", "s100"
sNON, sC10, sC01, sC11 = "s90", "s91", "s92", "s93"
sSPIN = "s97"; sSP2 = "s99"; sCL = "s101"
sCW = "s98"; WMUL = {4: 3, 2: 6, 1: 0}[OPT["wr"]]
sRA = "s52"
def q_setup(): return [f"s_add_u32 {sQW}, {sGL}, {sCL}"]
def q_h(so, i): I(f"s_add_u32 {so}, {sQW}, {i}"); I(f"s_and_b32 {so}, {so}, 3"); I(f"s_lshl2_add_u32 {so}, {sGH}, {so}")
def q_u(so, i):
    if i < 4: q_h(so, i); I(f"s_cmp_eq_u32 {so}, 7"); I(f"s_cselect_b32 {so}, 11, {so}")
    else: I(f"s_add_u32 {so}, {sQW}, {i}"); I(f"s_and_b32 {so}, {so}, 1"); I(f"s_lshl1_add_u32 {so}, {sGH}, {so}"); I(f"s_add_u32 {so}, {so}, 7")
def w_soff(so, i, tmp):
    q_u(tmp, i); I(f"s_lshl2_add_u32 {tmp}, {tmp}, {sW_}"); I(f"s_mul_i32 {so}, {tmp}, 3")
    I(f"s_cmp_ge_u32 {tmp}, 15"); I(f"s_cselect_b32 {sRA}, 44, 0"); I(f"s_cmp_ge_u32 {tmp}, 30"); I(f"s_cselect_b32 {sRA}, 88, {sRA}")
    I(f"s_sub_u32 {so}, {so}, {sRA}"); I(f"s_lshl_b32 {so}, {so}, 15")
vLANE = "v1"
MF = "v_mfma_f32_32x32x16_bf16"
def v(n, k=1): return f"v{n}" if k == 1 else f"v[{n}:{n+k-1}]"

EC, EH, E0 = Emitter(), Emitter(), Emitter()
E = E0
def I(t): return E.I(t)
def VM(t, tag=None): return E.VM(t, tag)
def DS(t, tag=None): return E.DS(t, tag)
slow = []
lnames = {"C": [], "H": []}
def lstamp(name):
    who = "C" if E is EC else "H"
    if OPT["lst"] and name in LSET[who] and len(lnames[who]) < 12:
        k = 24 + 2 * len(lnames[who]); lnames[who].append(name); I(f"{'s_memrealtime' if OPT['rt'] else 's_memtime'} s[{k}:{k+1}]")
LSETS = {0: ([], []),
         1: (["X6", "X7", "S0", "G0", "G4", "T", "J0", "J4", "snd", "kp", "last", "end"], ["b0", "xd", "bD", "epub", "ef", "eok", "hst", "hflag", "okh", "gT", "okg", "end"]),
         2: (["S0", "S2", "S4", "S6", "G0", "G1", "G2", "G3", "G4", "G5", "G6", "T"], ["b0", "xd", "bD", "epub", "ef", "eok", "hst", "hflag", "okh", "gT", "okg", "end"]),
         3: (["T", "K0", "J0", "J2", "J4", "J7", "snd", "J10", "J13", "kp", "last", "end"], ["b0", "xd", "bD", "epub", "ef", "eok", "hst", "hflag", "okh", "gT", "okg", "end"])}
LSETS[9] = ([], LSETS[1][1])
LSETS[4] = (["T", "e2", "k0", "ga", "K0", "J0", "J1", "J2", "J3", "J4", "J5", "J6"], [])
LSETS[5] = (["J6", "J7", "J8", "J9", "snd", "J10", "J12", "J14", "J16", "J17", "kp", "last"], [])
LSET = dict(zip("CH", LSETS[OPT["lst"]])); LSET["H"] = ["okh", "fa", "oka", "okg"]
def runall(ops):
    for op in ops:
        if isinstance(op, str): I(op)
        else: op()
def csq_ops(d, x, t):
    return [f"v_mul_f32 {v(t)}, {v(x+1)}, {v(x+1)}", f"v_add_f32 {v(t+1)}, {v(x)}, {v(x)}", f"v_fma_f32 {v(d)}, {v(x)}, {v(x)}, -{v(t)}", f"v_mul_f32 {v(d+1)}, {v(t+1)}, {v(x+1)}"]
def cmul_ops(d, x, y, t):
    return [f"v_mul_f32 {v(t)}, {v(x)}, {v(y)}", f"v_mul_f32 {v(t+1)}, {v(x)}, {v(y+1)}",
            f"v_fma_f32 {v(t)}, -{v(x+1)}, {v(y+1)}, {v(t)}", f"v_fma_f32 {v(d+1)}, {v(x+1)}, {v(y)}, {v(t+1)}", f"v_mov_b32 {v(d)}, {v(t)}"]
def cfma_ops(d, L, x, br, bi):
    return [f"v_fma_f32 {v(d[0])}, {v(L)}, {v(x[0])}, {v(br)}", f"v_fma_f32 {v(d[1])}, {v(L)}, {v(x[1])}, {v(bi)}",
            f"v_fma_f32 {v(d[0])}, -{v(L+1)}, {v(x[1])}, {v(d[0])}", f"v_fma_f32 {v(d[1])}, {v(L+1)}, {v(x[0])}, {v(d[1])}"]
def bf16r_ops(d, s): return [f"v_cvt_pk_bf16_f32 {v(d)}, {v(s)}, {v(s)}", f"v_and_b32 {v(d)}, 0xffff0000, {v(d)}"]
def srd(dst, lo, size):
    n = int(dst[2:dst.index(":")])
    I(f"s_mov_b64 s[{n}:{n+1}], s[{lo}:{lo+1}]"); I(f"s_mov_b32 s{n+2}, {size}"); I(f"s_mov_b32 s{n+3}, 0x20000")
def srd_sel(dst, p0, p1, size):
    n = int(dst[2:dst.index(":")])
    I(f"s_cselect_b64 s[{n}:{n+1}], s[{p1}:{p1+1}], s[{p0}:{p0+1}]"); I(f"s_mov_b32 s{n+2}, {size}"); I(f"s_mov_b32 s{n+3}, 0x20000")
def ktab(i):
    I(f"s_add_u32 {sK[i]}, {sJ0}, {i}"); I(f"s_and_b32 {sK[i]}, {sK[i]}, 7"); I(f"s_lshl_b32 {sK[i]}, {sK[i]}, 7")
def spin_guard(lbl_back, inc):
    return ([f"  s_add_u32 s15, s15, {inc}" if inc >= 0 else f"  s_bitset1_b32 s15, {-inc}"] if OPT["lst"] else []) + [f"  s_add_u32 {sSPIN}, {sSPIN}, 1", f"  s_cmp_gt_u32 {sSPIN}, 0x200000", f"  s_cbranch_scc1 {lbl_back}"]
def tag_check(who, vp, vz):
    E.wait(vm="tag"); I(f"v_readfirstlane_b32 {sNON}, {v(vp)}"); I(f"s_cmp_eq_u32 {sNON}, 0"); I(f"s_cbranch_scc1 L_slow_tag{who}"); E.label(f"L_back_tag{who}")
    slow.extend([f"L_slow_tag{who}:", "  s_sleep 1", f"  v_mov_b32 {v(vz)}, 0", f"  buffer_load_dword {v(vp)}, {v(vz)}, {SDBG}, 0 offen sc1", "  s_waitcnt vmcnt(0)",
                 f"  v_readfirstlane_b32 {sNON}, {v(vp)}"] + spin_guard(f"L_back_tag{who}", 1) +
                [f"  s_cmp_eq_u32 {sNON}, 0", f"  s_cbranch_scc1 L_slow_tag{who}", f"  s_branch L_back_tag{who}"])
signals = {}
def signal(word, val, va, vt, off):
    signals[(word, val)] = (E, E.lg_done)
    I(f"v_mov_b32 {v(vt)}, {val}"); DS(f"ds_write_b32 {v(va)}, {v(vt)} offset:{off}", "sig")
nchk = [0]
def chk_issue(va, vt, off):
    nchk[0] += 1; DS(f"ds_read_b32 {v(vt)}, {v(va)} offset:{off}", f"chk{nchk[0]}"); return f"chk{nchk[0]}"
def chk_test(tag, val, va, vt, off, inc):
    E.wait(lg=tag)
    I(f"v_cmp_gt_u32 vcc, {val}, {v(vt)}"); I(f"s_cbranch_vccnz L_slow_{tag}"); E.label(f"L_back_{tag}")
    slow.extend([f"L_slow_{tag}:", f"  ds_read_b32 {v(vt)}, {v(va)} offset:{off}", "  s_waitcnt lgkmcnt(0)", f"  v_cmp_gt_u32 vcc, {val}, {v(vt)}"]
                + spin_guard(f"L_back_{tag}", inc) + [f"  s_cbranch_vccnz L_slow_{tag}", f"  s_branch L_back_{tag}"])
def chk_spin(val, va, vt, off):
    nchk[0] += 1; lbl = f"L_spin{nchk[0]}"
    E.label(lbl)
    DS(f"ds_read_b32 {v(vt)}, {v(va)} offset:{off}", lbl); I(f"s_sub_u32 {sSP2}, {sSP2}, 1"); I("s_cbranch_scc1 L_end")
    E.wait_all(lg=True)
    I(f"v_cmp_gt_u32 vcc, {val}, {v(vt)}"); I(f"s_cbranch_vccnz {lbl}")
def dump_stamps(who):
    if not OPT["lst"]: return
    E.wait_all(vm=True); lstamp("end"); E.wait_all(lg=True)
    n = len(lnames[who])
    for k in range(n): I(f"v_writelane_b32 v2, s{24+2*k}, {k}")
    I(f"v_writelane_b32 v2, {n}, 61"); I("v_writelane_b32 v2, s15, 60"); I("v_writelane_b32 v2, s14, 63")
    I(f"s_lshl3_add_u32 {sT0}, s2, {sW_}"); I(f"s_add_u32 {sT0}, {sT0}, {4 if who == 'H' else 0}"); I(f"s_lshl_b32 {sT0}, {sT0}, 8"); I(f"s_add_u32 {sT0}, {sT0}, {WS_ST}")
    I(f"v_lshlrev_b32 v3, 2, {vLANE}")
    VM(f"buffer_store_dword v2, v3, {SWS}, {sT0} offen")

NU = OPT["NU"]; assert NU == 2

BASE_OF = {}
for i in range(8): BASE_OF[f"X{i}"] = (2 * (i & 3) * U8, 16384)
for i, u in enumerate(range(8, 16)): BASE_OF[f"S{i}"] = (u * U8, 8192)
for i, u in enumerate([0, 3, 6, 9, 0, 3, 12, 15]): BASE_OF[f"G{i}"] = (u * U8, 24576)
DUMPS = [16 * U8, 12 * U8]
BASE_OF["DUMP0"] = (DUMPS[0], 16384); BASE_OF["DUMP1"] = (DUMPS[1], 16384); BASE_OF["XE"] = (XE, 8192); BASE_OF["HS"] = (HS, 10432); BASE_OF["OFT"] = (HS, 8192)
slot_of = {"C1": 3, "C2": 4, "C3": 5, "W1": 0, "W2": 1, "W3": 2, "C0": 6, "W0": 7, "W4": 8, "W5": 3}
RT_ = {"C0": 168, "W0": 184, "W4": 200}
ND = OPT["nd"]
CO = ["C1", "C2", "C3", "C0"]; WO = ["W1", "W2", "W3", "W0", "W4", "W5"]
SK = [["W1"], ["W1", "W4"], []][OPT["skw"]]
jobs = [(t, "sk") for t in CO[:4-ND]] + [(t, "s") for t in CO[4-ND:]] + [(t, "sk" if t in SK else "s") for t in WO] + [(t, "k") for t in WO if t not in SK] + [(t, "k") for t in CO[4-ND:]]
NJ1 = 10
def chunk_items(ch):
    i = ch[1:]
    if ch[0] == "S": return [f"S{i}", f"S{int(i)+1}"]
    return {"K": ["XE"] if ch == "KX" else [], "G": [f"G{i}"]}[ch[0]]
RED = slot_of["C2"] * 16384; assert ND <= 2
CHUNKS = ["S0", "S2", "S4", "S6"] + [f"G{i}" for i in range(4)] + ["KX", "K0", "KA", "KB"]
PHV = {c: k + 1 for k, c in enumerate(CHUNKS)}
CEV = {"G0": 25, "G1": 49, "G2": 74, "G3": 99, "G4": 122, "G5": 145, "U0": OPT["u0s"]}
STAGES = ["Xi", "X", "S3", "S5", "dump"] + sorted(CEV, key=CEV.get) + ["T", "gsa", "gst", "pj"]
PCV = {c: k + 1 for k, c in enumerate(STAGES)}
for n, s in slot_of.items(): BASE_OF[n] = (s * 16384, 16384)

class Item: pass
items = {}
for n, (b, sz) in BASE_OF.items():
    it = Item(); it.name, it.base, it.size = n, b, sz; it.first_bar = None; it.last_read = None; it.reader = None; items[n] = it
bar_names = []
def note_read(name):
    it = items[name]
    if it.first_bar is None: it.first_bar = len(E.barriers)
    it.last_read = len(E.lg); it.last_bar = len(E.barriers); it.reader = E

E = E0
E.label(f"{NAME}_kernel")
I("s_cmp_ge_u32 s2, 256"); I("s_cbranch_scc1 L_end")
I("s_load_dwordx16 s[16:31], s[0:1], 0")
I("s_getpc_b64 s[98:99]"); I(f"s_bfe_u32 {sT0}, s2, 0x20003"); I("v_lshrrev_b32 v80, 3, v0"); I(f"v_lshl_add_u32 v80, v80, 2, {sT0}"); I("v_lshlrev_b32 v80, 7, v80")
VM("global_load_dword v95, v80, s[98:99]", "code")
I("s_load_dwordx16 s[32:47], s[0:1], 64")
I("s_memrealtime s[14:15]")
I("v_lshrrev_b32 v80, 6, v0"); I(f"v_and_b32 {vLANE}, 63, v0"); I(f"v_readfirstlane_b32 {sT3}, v80")
sR8 = "s19" if False else None
if OPT["map"] == 0:
    I(f"s_bfe_u32 {sT0}, s2, 0x20001"); I(f"s_lshr_b32 {sCL}, s2, 6"); I(f"s_lshl2_add_u32 {sC_}, {sT0}, {sCL}")
    I(f"s_bfe_u32 {sGL}, s2, 0x30003"); I(f"s_lshl1_add_u32 {sJ0}, {sCL}, {sGL}")
    I(f"s_and_b32 {sGH}, s2, 1"); I(f"s_lshl3_add_u32 {sG_}, {sGH}, {sGL}"); I(f"s_mov_b32 {sQW}, {sGL}")
    if OPT["xj"]: I(f"s_add_u32 {sJ0}, {sJ0}, {sT0}")
else:
    I(f"s_and_b32 {sT0}, s2, 1"); I(f"s_lshr_b32 {sQW}, s2, 5"); I(f"s_lshl3_add_u32 {sC_}, {sT0}, {sQW}")
    I(f"s_bfe_u32 {sCL}, s2, 0x20003"); I(f"s_bfe_u32 {sT0}, s2, 0x20001"); I(f"s_lshl2_add_u32 {sG_}, {sT0}, {sCL}")
    I(f"s_and_b32 {sGL}, {sG_}, 7"); I(f"s_lshr_b32 {sGH}, {sG_}, 3"); I(f"s_lshl1_add_u32 {sJ0}, {sCL}, {sQW}")
for i in range(2): ktab(i)
I(f"s_and_b32 {sW_}, {sT3}, 3"); I(f"s_lshl_b32 {sM4}, {sW_}, 12")
I(f"v_lshrrev_b32 v81, 3, {vLANE}"); I(f"v_and_b32 v82, 7, {vLANE}")
I("v_lshrrev_b32 v84, 1, v81"); I("v_xor_b32 v83, v82, v84"); I("v_lshlrev_b32 v83, 4, v83"); I("v_xor_b32 v85, 64, v83")
I(f"v_lshlrev_b32 v78, 2, {vLANE}"); I("v_mov_b32 v79, 0"); I(f"v_add_u32 v78, {PRG}, v78"); DS("ds_write_b32 v78, v79", "prz")
I(f"s_mov_b32 {sSP2}, 0x1000000"); I(f"s_and_b32 {sCW}, {sCL}, {3 if OPT['wr'] == 4 else 1}")
I(f"s_cmp_ge_u32 {sT3}, 4"); I("s_cbranch_scc1 L_helper")

E = EC
vP1 = [2, 3, 4, 5]; vGT = 6; vNM = 7; vR2 = 0
FB0, NFB = 8, 6
ACCG = [32, 64, 96]; ACCU = [48, 80, 112]; ACC_R, ACC_I = 96, 112
XF = 128
vXo = [86, 87, 88, 89]
def cbar(name, vm=(), lg=()):
    E.wait(vm=vm, lg=lg); E.barrier(); bar_names.append(name)
I("v_and_b32 v84, 4, v81"); I("v_and_b32 v80, 3, v81"); I("v_lshl_add_u32 v84, v84, 2, v80")
I(f"s_lshl2_add_u32 {sT0}, {sC_}, {sW_}"); I(f"s_lshl_b32 {sT0}, {sT0}, 5")
I(f"v_add_lshl_u32 v84, v84, {sT0}, 10")
I(f"v_add_u32 {v(vXo[0])}, v84, v83"); I(f"v_add_u32 {v(vXo[1])}, v84, v85")
I(f"v_add_u32 {v(vXo[2])}, 6144, {v(vXo[0])}"); I(f"v_add_u32 {v(vXo[3])}, 9216, {v(vXo[1])}"); I(f"v_add_u32 {v(vXo[1])}, 3072, {v(vXo[1])}")
I("s_mov_b32 s50, 2097152"); I("s_mov_b32 s51, 0x20000")
E.wait_all(lg=True)
I("s_mov_b64 s[48:49], s[16:17]")
def X_issue(i):
    I(f"s_add_u32 m0, {sM4}, {items[f'X{i}'].base}")
    for q in range(4): VM(f"buffer_load_dwordx4 {v(vXo[q])}, {SX}, {sK[i]} offen" + (f" offset:{q*1024}" if q else "") + " lds", f"X{i}")
X_issue(0); X_issue(1)
if OPT["prio"] == 1: I("s_setprio 1")
for i in range(2, 8): ktab(i)
X_issue(2)
if OPT["x3"]: X_issue(3)
cbar("b0")
I(f"v_and_b32 v90, 31, {vLANE}"); I(f"v_lshrrev_b32 v91, 5, {vLANE}")
I("v_bfe_u32 v92, v90, 1, 3"); I("v_xor_b32 v92, v92, v91"); I("v_lshlrev_b32 v92, 4, v92"); I("v_lshl_add_u32 v92, v90, 7, v92")
I(f"v_add_u32 {v(vP1[0])}, {sM4}, v92")
for s in range(1, 4): I(f"v_xor_b32 {v(vP1[s])}, {32*s}, {v(vP1[0])}")
I(f"s_mov_b32 {sC11}, 0x3f803f80"); I(f"s_mov_b32 {sC10}, 0x00003f80"); I(f"s_mov_b32 {sC01}, 0x3f800000")
for r in range(64, 72): I(f"v_mov_b32 v{r}, 0")
srd(SWS, 46, WS_SIZE); srd(SOUT, 42, 4194304)
I(f"s_cmp_ge_u32 {sW_}, 2"); srd_sel(SG, 36, 38, 1409024); srd_sel(SC, 26, 28, 524288); I(f"s_mul_i32 {sM6}, {sW_}, 6144"); srd(SWD, 40, 1409024)
I(f"s_mov_b32 {sSPIN}, 0"); I("s_mov_b32 s15, 0"); I("s_mov_b64 s[22:23], s[32:33]"); I("s_mov_b64 s[20:21], s[40:41]")
I(f"v_bfe_u32 v92, {vLANE}, 2, 2"); I("v_lshl_add_u32 v92, v91, 3, v92"); I(f"v_mul_u32_u24 {v(vGT)}, 192, v92")
I(f"v_and_b32 v93, 16, {vLANE}"); I(f"v_lshl_add_u32 {v(vGT)}, v93, 1, {v(vGT)}")
I(f"v_and_b32 v93, 1, {vLANE}"); I(f"v_lshl_add_u32 {v(vGT)}, v93, 4, {v(vGT)}")
I(f"v_and_b32 v93, 2, {vLANE}"); I(f"v_lshl_add_u32 {v(vGT)}, v93, 2, {v(vGT)}")
I(f"s_lshl_b32 {sT0}, {sW_}, 7"); I(f"s_add_u32 {sT0}, {sT0}, {RTAB}")
I("v_bfe_u32 v93, v90, 2, 1"); I("v_lshlrev_b32 v94, 4, v93"); I("v_lshrrev_b32 v93, 3, v90"); I("v_lshl_add_u32 v94, v93, 2, v94")
I("v_and_b32 v93, 3, v90"); I("v_add_u32 v94, v94, v93"); I(f"v_lshl_add_u32 v94, v94, 2, {sT0}")
FR = dict(r=72, t=73, v=74, w=75)
I(f"v_and_b32 v72, 3, {vLANE}"); I("v_lshlrev_b32 v72, 2, v72"); I(f"v_add_u32 v72, {PRG}, v72")
I(f"s_lshl_b32 {sT0}, {sW_}, 2"); I(f"s_add_u32 {sT0}, {sT0}, {PRG}"); I(f"v_mov_b32 v75, {sT0}")
def csig(st): signal("PC", PCV[st], FR["w"], FR["v"], 0)
for i in range(8):
    it = items[f"X{i}"]
    E.wait(vm=it.name)
    for s in range(4):
        DS(f"ds_read_b128 {v(XF + 16*i + 4*s, 4)}, {v(vP1[s])} offset:{it.base & 0xffff}", f"xr{i}_{s}"); note_read(it.name)
    if not OPT["x3"] and i + 3 < 8: X_issue(i + 3)
    if OPT["x3"] and i + 4 < 8: E.wait(lg=f"xr{i}_3"); X_issue(i + 4)
    if i == OPT["xi"]: csig("Xi")
    if i == 4 and OPT["mw"]:
        I(f"s_cmp_eq_u32 {sW_}, 1"); I("s_cselect_b64 s[52:53], s[38:39], s[36:37]"); I(f"s_cmp_eq_u32 {sW_}, 2"); I("s_cselect_b64 s[52:53], s[40:41], s[52:53]")
        I(f"s_cmp_eq_u32 {sW_}, 3"); I("s_cselect_b64 s[52:53], s[26:27], s[52:53]"); I("s_mov_b32 s54, 1409024"); I("s_cselect_b32 s54, 524288, s54"); I("s_mov_b32 s55, 0x20000")
        I(f"s_cselect_b32 {sT0}, 16, 43"); I(f"s_mul_i32 {sT1}, s2, {sT0}"); I(f"s_sub_u32 {sT0}, {sT0}, 1"); I(f"v_min_u32 v76, {sT0}, {vLANE}"); I(f"v_add_lshl_u32 v76, v76, {sT1}, 7")
        VM("buffer_load_dword v77, v76, s[52:55], 0 offen", "mw")
        I("s_mov_b64 s[52:53], s[28:29]"); I(f"s_cmp_eq_u32 {sW_}, 3"); I("s_cselect_b32 s54, 524288, 0")
        VM("buffer_load_dword v77, v76, s[52:55], 0 offen", "mw")
    for s in range(4):
        E.wait(lg=f"xr{i}_{s}")
        for d in range(4):
            x = v(XF + 16*i + 4*s + d)
            I(f"v_dot2c_f32_bf16 v{64+d}, {sC11}, {x}"); I(f"v_dot2c_f32_bf16 v{68+d}, {x}, {x}")
    lstamp(f"X{i}")
csig("X"); gchk = {"S0": chk_issue(FR["r"], FR["t"], 16)}
I("v_add_f32 v64, v64, v65"); I("v_add_f32 v66, v66, v67"); I("v_add_f32 v68, v68, v69")
I("v_add_f32 v64, v64, v66"); I("v_add_f32 v70, v70, v71"); I("v_mov_b32 v65, v64"); I("v_add_f32 v68, v68, v70"); I("v_mov_b32 v69, v68")
I("v_permlane32_swap_b32 v64, v65"); I("v_permlane32_swap_b32 v68, v69")
I("v_add_f32 v64, v64, v65"); I("v_mul_f32 v64, 0x3b000000, v64")
runall(bf16r_ops(65, 64)); I(f"v_sub_f32 {v(vNM)}, 0, v65")
I(f"s_sub_u32 {sT0}, 65536, {sM4}")
for s in range(4): I(f"v_add_u32 {v(vP1[s])}, {sT0}, {v(vP1[s])}")
win = {"p1": 65536, "c1": 0, "gt": 0, "lin": 0, "wt": 0}
def burst(i):
    for d in range(16):
        x = v(XF + 16*i + d)
        I(f"v_dot2_f32_bf16 v{32+2*d}, {x}, {sC10}, {v(vNM)}"); I(f"v_dot2_f32_bf16 v{33+2*d}, {x}, {sC01}, {v(vNM)}")
qC, qB = [], []
marks = set()
def run_op(op):
    if isinstance(op, tuple):
        if op[0] == "hold": holdq[0] = op[1]
        else: marks.add(op[1])
    elif isinstance(op, str): I(op)
    else: op()
def need_mark(m):
    while m not in marks:
        q = next(q for q in (qC, qB) if ("mark", m) in [o for o in q if isinstance(o, tuple)])
        run_op(q.pop(0))
def cvt_ops(i):
    ops = []
    for d in range(16):
        ops.append(f"v_cvt_pk_bf16_f32 {v(XF + 16*i + d)}, v{32+2*d}, v{33+2*d}")
        if d & 3 == 3: ops.append(("mark", f"cen{4*i + (d>>2)}"))
    return ops
B = ["v_add_f32 v68, v68, v69", "v_mul_f32 v68, 0x3b000000, v68", "v_fma_f32 v68, -v64, v64, v68", "v_max_f32 v68, 0, v68"]
B += bf16r_ops(68, 68) + ["v_add_f32 v68, 0x3727c5ac, v68"] + bf16r_ops(68, 68) + ["v_sqrt_f32 v68, v68", lambda: DS("ds_write_b32 v94, v65 offset:512", "tabw")]
B += bf16r_ops(68, 68) + ["v_rcp_f32 v68, v68", lambda: DS("ds_write_b32 v94, v68", "tabw"), f"v_mul_f32 {v(vR2)}, v68, v68", ("mark", "tab")]
qB.extend(B)

class Slot: pass
slots = []
def add_slot(chunk, reads, mfma, needs=()):
    s = Slot(); s.chunk, s.reads, s.mfma, s.needs = chunk, reads, mfma, needs; slots.append(s)
for i in range(8):
    for s in range(4):
        f = 4*i + s
        for comp in range(2):
            acc = v(ACC_I if comp else ACC_R, 16)
            add_slot(f"S{i}", [("p1", f"S{i}", s, comp * 4096)], lambda b, f=f, acc=acc: f"{MF} {acc}, {v(XF+4*f,4)}, {v(b[0],4)}, {acc if f else 0}", needs=[f"cen{f}"])
P2 = len(slots)
order = [(0, s, u, m) for s in range(4) for u in range(2) for m in range(2)] + [(0, s, 2, m) for s in range(4) for m in range(2)]
order += [(i, s, u, m) for i in range(1, 8 - NU) for s in range(4) for u in range(3) for m in range(2)]
order += [(i, s, u, m) for u in range(3) for i in range(8 - NU, 8) for s in range(4) for m in range(2)]
unit_done = {}
for (i, s, u, m) in order:
    f = 4*i + s; acc = v((ACCU if m else ACCG)[u], 16)
    nd = (["tab"] if f == 0 else []) + (["dumped"] if (f, u) == (0, 2) else [])
    add_slot(f"G{i}", [("gt", f"G{i}", m * 12288 + 16*s*192 + 64*u)], lambda b, f=f, acc=acc: f"{MF} {acc}, {v(b[0],4)}, {v(XF+4*f,4)}, {acc if f else 0}", needs=nd)
    unit_done[u] = len(slots) - 1
P3 = len(slots)
ACC3 = 32; BASE = 48
vHST = 138; vDSK = 140; vHR, vWT, vXR, vTAB3, vOUT = 128, 129, 130, 131, 132
sHG = ["s16", "s17", "s18"]
EPO = 144; vC1 = [134, 135, 136, 137]; vC2 = [2, 3, 4, 5]
cGo = [128, 129, 130]; cCo = [132, 133, 134, 135]
ACC4 = 48; ACCS = [64, 80]
AQ = list(range(172, 256, 4)) + list(range(108, 128, 4))
BASE = 144; PX = 108
P3BUFS = list(range(8, 32, 4)) + [96, 100, 104]
vA = 139; vWT2 = 133; vA2 = 7; vPB = 0
aloads = []; started = set()
for n, (t, hv) in enumerate(jobs):
    if n == NJ1: P4 = len(slots)
    for s in range(4):
        idx = {}
        for h_ in hv: idx[h_] = len(aloads); aloads.append((f"a{len(aloads)}", AQ[len(aloads) % len(AQ)], t, s, h_, s == 0 and h_ == hv[0]))
        for a_ in range(2):
            rd = ("c1", t, s, a_) if t[0] == "C" else ("wt", t, 16*s*128, a_)
            for k_, h_ in enumerate(hv):
                r_ = ([ACC3, ACC4] if h_ == "k" else ACCS)[a_]; acc = v(r_, 16)
                z = r_ not in started; started.add(r_)
                tag, q = aloads[idx[h_]][:2]
                add_slot(f"J{n}", [rd] if k_ == 0 else [], lambda b, q=q, acc=acc, z=z: f"{MF} {acc}, {v(q,4)}, {v(b[0],4)}, {0 if z else acc}")
                slots[-1].atag = tag; slots[-1].arel = idx[h_] + 1 if a_ == 1 else None
M = len(slots)
first_slot = {}
for m, s in enumerate(slots): first_slot.setdefault(s.chunk, m)
pool = [FB0 + 4*k for k in range(NFB)]
def newfb(): return pool.pop(0)
def set_win(kind, regs, base, span):
    cur = win[kind]
    if not (cur <= base and base + span <= cur + 65536):
        new = min((base // 49152) * 49152, MISC - 65536)
        if not (new <= base and base + span <= new + 65536): new = base
        for r in regs: I(f"v_add_u32 {v(r)}, {(new - cur) & 0xffffffff}, {v(r)}")
        win[kind] = cur = new
    return cur
def emit_reads(m):
    s = slots[m]; s.bufs = []; s.tags = []; s.own = bool(s.reads)
    if not s.reads: s.bufs = slots[m-1].bufs
    for rd in s.reads:
        b = newfb(); s.bufs.append(b); tag = f"rd{m}_{rd[0]}"; s.tags.append(tag)
        kind, it = rd[0], items[rd[1]]
        if kind == "p1":
            w = set_win(kind, vP1, it.base, it.size); DS(f"ds_read_b128 {v(b,4)}, {v(vP1[rd[2]])} offset:{it.base - w + rd[3]}", tag)
        elif kind == "c1":
            w = set_win(kind, vC1 + vC2, it.base, it.size); DS(f"ds_read_b128 {v(b,4)}, {v((vC2 if rd[3] else vC1)[rd[2]])} offset:{it.base - w}", tag)
        else:
            regs, pitch = ([vGT], 192) if kind == "gt" else ([vWT, vWT2], 128)
            reg = regs[rd[3]] if kind == "wt" else vGT
            w = set_win(kind, regs, it.base, it.size)
            DS(f"ds_read_b64_tr_b16 {v(b,2)}, {v(reg)} offset:{it.base - w + rd[2]}", tag)
            DS(f"ds_read_b64_tr_b16 {v(b+2,2)}, {v(reg)} offset:{it.base - w + rd[2] + 4*pitch}", tag)
        note_read(it.name)
events = {}
def at(m, fn): events.setdefault(m, []).append(fn)
post = {8*i + 7: (lambda i=i: (need_mark(f"cen{4*i+7}"), burst(i + 2), qC.extend(cvt_ops(i + 2)))) for i in range(6)}
at(52, lambda: qB.extend([f"v_lshlrev_b32 {v(vNM)}, 6, {vLANE}", f"v_bfe_u32 v64, {vLANE}, 1, 2", f"v_lshl_add_u32 {v(vNM)}, v64, 4, {v(vNM)}",
                          f"v_add_u32 {v(vNM)}, {sM4}, {v(vNM)}", f"v_add_u32 {v(vNM)}, {DUMPS[1]}, {v(vNM)}", ("mark", "dadr")]))
dtag = {}
at(P2 - 1, lambda: dtag.__setitem__(0, chk_issue(FR["r"], FR["t"], 0)))
def dump_op(j, comp):
    need_mark("dadr")
    if (j, comp) == (0, 1): chk_test(dtag[0], PCV["S5"], FR["r"], FR["t"], 0, -12)
    if j and comp == 0: I(f"v_xor_b32 {v(vNM)}, {16 * (j ^ (j - 1))}, {v(vNM)}")
    DS(f"ds_write_b128 {v(vNM)}, {v((ACC_I if comp else ACC_R) + 4*j, 4)} offset:{DUMPS[comp] - DUMPS[1]}", "dump")
    if (j, comp) == (3, 1): marks.add("dumped")
def dump64(j, comp, hf):
    need_mark("dadr")
    if j and comp == 0 and hf == 0: I(f"v_xor_b32 {v(vNM)}, {16 * (j ^ (j - 1))}, {v(vNM)}")
    if comp == 0 and hf == 0: I(f"v_add_u32 {v(vP1[1])}, {DUMPS[0]}, {v(vNM)}")
    DS(f"ds_write_b64 {v(vNM if comp else vP1[1])}, {v((ACC_I if comp else ACC_R) + 4*j + 2*hf, 2)} offset:{8*hf}", "dump")
    if (j, comp, hf) == (3, 1, 1): marks.add("dumped")
if OPT["d64"]:
    for k in range(16): at(P2 + (k * 15) // 16, lambda k=k: dump64(k >> 2, (k >> 1) & 1, k & 1))
else:
    for k in range(8): at(P2 + 1 + (k * OPT["dsp"]) // 2, lambda k=k: dump_op(k >> 1, k & 1))
def fr_move():
    I(f"v_mov_b32 {v(vP1[0])}, v72"); I(f"v_mov_b32 {v(vP1[3])}, v75"); FR.update(r=vP1[0], t=vP1[1], v=vP1[2], w=vP1[3])
at(P2 - 2, fr_move)
if OPT["mw"]: at(P2 - 3, lambda: E.wait(vm="mw"))
at(31, lambda: csig("S3")); at(47, lambda: csig("S5"))
at(P2 + OPT["bd"], lambda: (need_mark("dumped"), E.wait(lg=["dump", "tabw"]), csig("dump")))
LAND = {"G2": ["G4"], "G3": ["G5", "G6"], "G4": ["G7"]}
for st, sl in CEV.items(): at(P2 + sl, lambda st=st: (E.wait(vm=LAND.get(st, []), lg=["cof2"] if st == "G1" else []), csig(st)))
GATE = {c: (16, PHV[c]) for c in CHUNKS[:8]}
GATE["S0"] = (16, PHV["S2"]); GATE["S4"] = (16, PHV["S6"])
GATE.update({"G4": (0, PCV["G2"]), "G5": (0, PCV["G3"]), "G6": (0, PCV["G4"])})
del GATE["S2"], GATE["S6"]
for c in list(GATE)[1:]: at(first_slot[c] - OPT["D"] - 6, lambda c=c: gchk.__setitem__(c, chk_issue(FR["r"], FR["t"], GATE[c][0])))
cplaced = []
cWo = [168, 169, 170, 171]
def c_offsets():
    I(f"s_lshl_b32 {sT0}, {sW_}, 11"); I(f"s_add_u32 {sT0}, {sT0}, {HS}"); I(f"v_lshl_add_u32 v136, {vLANE}, 4, {sT0}")
    DS("ds_read_b128 v[128:131], v136", "cof"); note_read("OFT")
at(P2 + 24, c_offsets)
at(P2 + 45, lambda: (DS("ds_read_b128 v[132:135], v136 offset:1024", "cof2"), note_read("OFT")))
at(P2 + 76, lambda: qB.extend([lambda: E.wait(lg="cof2"), f"v_readfirstlane_b32 {sNON}, v135", "v_mov_b32 v168, v134"] + [f"v_add_u32 v{168+q}, {7168*q}, v134" for q in range(1, 4)]
                              + ["v_add_u32 v134, 14336, v132", "v_add_u32 v135, 14336, v133"] + q_setup() + [("mark", "cw")]))
def c_load(name, ta, step2, gate=None):
    k = name[0]; i = int(name[1:]); base = items[name].base
    tag = {}
    if gate:
        off, val = (0, PCV[gate]) if gate in PCV else (32, gate)
        at(P2 + ta - 6, lambda: tag.__setitem__(0, chk_issue(FR["r"], 137, off)))
    n = 6 if k == "G" else 4
    for q in range(n):
        def op(q=q):
            if q == 0:
                E.wait(lg="cof")
                if gate: chk_test(tag[0], val, FR["r"], 137, off, -(13 + len(cplaced))); cknown.append(("PC" if off == 0 else "PD", val))
                cplaced.append((name, list(cknown)))
            if k == "G":
                if q % 3 == 0:
                    I(f"s_add_u32 m0, {sM6}, {base + 1024*q}")
                    I(f"s_mul_i32 {sSO}, {sK[i]}, 1376" if q == 0 else f"s_add_u32 {sSO}, {sSO}, {16*2752}")
                VM(f"buffer_load_dwordx4 {v(cGo[q%3])}, {SG}, {sSO} offen" + (f" offset:{(q%3)*1024}" if q % 3 else "") + " lds", name)
            else:
                if q == 0:
                    need_mark("cw"); I(f"s_add_u32 m0, {sM4}, {base}")
                    if k == "C": q_h(sSO, i); I(f"s_lshl_b32 {sSO}, {sSO}, 7")
                    else: w_soff(sSO, i, "s19")
                VM(f"buffer_load_dwordx4 {v((cCo if k == 'C' else cWo)[q])}, {SC if k == 'C' else SWD}, {sSO} offen" + (f" offset:{q*1024}" if q else "") + " lds", name)
        at(P2 + ta + (q * step2) // 2, op)
cknown = []
c_load("G4", 37, 5, "G0"); c_load("G6", 52, 4); c_load("G5", 64, 4, "G1"); c_load("G7", 77, 5); c_load("C1", 93, 4)
c_load("C2", OPT["c1"], 4); c_load("C3", OPT["c1"] + 8, 4);
if OPT["wl"] < 3: c_load("W1", 141, 4)
if OPT["wl"] < 2: c_load("W2", 156, 3, "G5"); c_load("W3", 162, 3)
def st_addr():
    o = [f"s_lshl2_add_u32 {sT0}, {sC_}, {sW_}", f"s_mul_i32 {sT0}, {sT0}, {152*1024}", f"v_lshl_add_u32 {v(vHST)}, {vLANE}, 4, {sT0}", f"s_lshl_b32 {sT0}, {sG_}, 11"]
    for uu in range(3):
        o += [f"s_add_u32 {sT3}, {sT0}, {65536 + 15*uu*2048}",
              lambda uu=uu: (I(f"s_cmp_lt_u32 {sG_}, {14 if uu == 2 else 15}"), I(f"s_cselect_b32 {sHG[uu]}, {sT3}, 0x40000000"))]
    o += [f"s_and_b32 {sT1}, {sW_}, 1", f"s_lshr_b32 {sT2}, {sW_}, 1", f"s_lshl1_add_u32 {sT0}, {sC_}, {sGH}", f"s_lshl1_add_u32 {sT0}, {sT0}, {sT2}",
          f"s_mul_i32 {sT0}, {sT0}, {152*1024}", f"s_lshl_b32 {sT3}, {sT1}, 12", f"s_add_u32 {sT0}, {sT0}, {sT3}", f"v_lshl_add_u32 {v(vA)}, {vLANE}, 4, {sT0}",
          f"v_lshlrev_b32 {v(vDSK)}, 16, v131",
          f"s_mul_i32 {sT0}, {sGH}, {4*152*1024}", f"s_sub_u32 {sT0}, {2*152*1024}, {sT0}", f"v_add_u32 {v(vA2)}, {sT0}, {v(vA)}", ("mark", "sta1")]
    return o
def st_addr2():
    o = [f"s_and_b32 {sT1}, {sW_}, 1", f"s_lshr_b32 {sT2}, {sW_}, 1", f"v_lshrrev_b32 v141, 5, {vLANE}", f"v_and_b32 v143, 31, {vLANE}"]
    o += [f"s_lshl1_add_u32 {sT3}, {sGL}, {sT1}"]
    o += [f"s_lshl_b32 {sT3}, {sT3}, 7", f"s_lshl1_add_u32 {sT0}, {sGH}, {sT2}", f"s_lshl2_add_u32 s13, {sC_}, {sT0}", "s_lshl_b32 s13, s13, 16", f"s_add_u32 s13, s13, {sT3}",
          "v_lshlrev_b32 v142, 15, v141", "v_lshl_add_u32 v142, v143, 2, v142", f"v_add_u32 {v(vOUT)}, s13, v142"]
    o += [f"s_lshl_b32 {sT0}, {sT0}, 7", f"s_add_u32 {sT0}, {sT0}, {RTAB}", f"v_lshl_add_u32 {v(vTAB3)}, v141, 6, {sT0}",
          f"s_lshl_b32 {sT0}, {sT1}, 6", f"s_lshl_b32 {sT3}, {sT2}, 12", f"s_add_u32 {sT3}, {sT3}, {sT0}", f"s_add_u32 {sT3}, {sT3}, {XE}",
          "v_lshlrev_b32 v142, 11, v141", "v_lshl_add_u32 v142, v143, 1, v142", f"v_add_u32 {v(vXR)}, {sT3}, v142",
          f"s_lshl_b32 {sT3}, {sW_}, 12", f"s_add_u32 {sT3}, {sT3}, {RED}", f"v_lshl_add_u32 {v(vHR)}, {vLANE}, 4, {sT3}"]
    o += [f"v_bfe_u32 v142, {vLANE}, 2, 2", "v_lshl_add_u32 v142, v141, 3, v142", "v_lshlrev_b32 v142, 7, v142",
          f"v_and_b32 v6, 16, {vLANE}", "v_lshl_add_u32 v142, v6, 1, v142", f"v_and_b32 v6, 3, {vLANE}", "v_lshl_add_u32 v142, v6, 3, v142",
          f"v_and_b32 v6, 8, {vLANE}", "v_lshlrev_b32 v6, 3, v6", f"v_xor_b32 v6, {sT0}, v6", f"s_lshl_b32 {sT3}, {sT1}, 13", f"v_add3_u32 {v(vWT)}, v142, v6, {sT3}", f"v_xor_b32 {v(vWT2)}, 64, {v(vWT)}"]
    o += [f"s_mul_i32 {sT0}, {sT1}, 12288", "v_bfe_u32 v142, v143, 1, 3", "v_xor_b32 v142, v142, v141", "v_lshlrev_b32 v142, 4, v142", "v_lshl_add_u32 v142, v143, 7, v142",
          f"v_add_u32 {v(vC1[0])}, {sT0}, v142"] + [f"v_xor_b32 {v(vC1[s])}, {32*s}, {v(vC1[0])}" for s in range(1, 4)] + [f"v_xor_b32 {v(vC2[s])}, 4096, {v(vC1[s])}" for s in range(4)] + [("mark", "sta")]
    return o
at(P2 + 120, lambda: qB.extend(st_addr()))
def glu_epi(u):
    ops = []; o = EPO + 8*u
    for j in range(8):
        g0, u0 = ACCG[u] + 2*j, ACCU[u] + 2*j
        ops += [f"v_mul_f32 {v(u0)}, {v(vR2)}, {v(u0)}", f"v_mul_f32 {v(u0+1)}, {v(vR2)}, {v(u0+1)}",
                f"v_mul_f32 {v(u0)}, {v(g0)}, {v(u0)}", f"v_mul_f32 {v(u0+1)}, {v(g0+1)}, {v(u0+1)}", f"v_cvt_pk_bf16_f32 {v(o+j)}, {v(u0)}, {v(u0+1)}"]
        if j & 3 == 3:
            ops.append(lambda fr=j >> 2: VM(f"buffer_store_dwordx4 {v(o + 4*fr, 4)}, {v(vHST)}, {SWS}, {sHG[u]} offen offset:{fr*1024} sc1", "gst" if u == 2 else "gsa"))
    return ops + [("mark", f"epi{u}")]
for u in range(2): at(unit_done[u] + 3, lambda u=u: qB.extend(glu_epi(u)))
def base_ops():
    ops = [f"v_mov_b32 {v(BASE+r)}, 0" for r in range(16)]
    def rdx(r): DS(f"ds_read_u16_d16_hi {v(BASE+r)}, {v(vXR)} offset:{128*r}", f"xe{r}"); note_read("XE")
    ops += [lambda r=r: rdx(r) for r in range(16)]
    R3, M3, t0, t1, p = 160, 164, 168, 169, 170
    rnd = [f"v_cvt_pk_bf16_f32 {v(p)}, {v(t0)}, {v(t1)}", f"v_lshlrev_b32 {v(t0)}, 16, {v(p)}", f"v_and_b32 {v(t1)}, 0xffff0000, {v(p)}"]
    for j in range(4):
        ops += [lambda j=j: DS(f"ds_read_b128 {v(R3,4)}, {v(vTAB3)} offset:{16*j}", f"r3{j}"), lambda j=j: DS(f"ds_read_b128 {v(M3,4)}, {v(vTAB3)} offset:{512+16*j}", f"m3{j}"),
                ("hold", 3), lambda j=j: E.wait(lg=f"m3{j}")]
        for e in (0, 2):
            r = 4*j + e
            ops += [f"v_sub_f32 {v(t0)}, {v(BASE+r)}, {v(M3+e)}", f"v_sub_f32 {v(t1)}, {v(BASE+r+1)}, {v(M3+1+e)}"] + rnd
            ops += [f"v_mul_f32 {v(t0)}, {v(t0)}, {v(R3+e)}", f"v_mul_f32 {v(t1)}, {v(t1)}, {v(R3+1+e)}"] + rnd
            ops += [f"v_mul_f32 {v(t0)}, {v(t0)}, {v(vDSK)}", f"v_mul_f32 {v(t1)}, {v(t1)}, {v(vDSK)}"] + rnd
            ops += [f"v_add_f32 {v(BASE+r)}, {v(BASE+r)}, {v(t0)}", f"v_add_f32 {v(BASE+r+1)}, {v(BASE+r+1)}, {v(t1)}"]
    return ops + [("mark", "base")]
holdq = [0]

def segment(lo, hi, Dof, lim, pre_bar):
    rn = lo; held = []
    for m in range(lo - 1, hi):
        c0 = E.count + E.nops
        if m >= lo:
            s = slots[m]
            for n in s.needs: need_mark(n)
            tags = list(s.tags)
            if m % 2 == 0 and m + 1 < hi: tags += slots[m+1].tags
            E.wait(vm=[s.atag] if m >= P3 else [], lg=tags)
            I(s.mfma(s.bufs)); c0 = E.count + E.nops
            if s.own: pool.extend(held); held = list(s.bufs)
            if m >= P3:
                if s.arel: adone[0] = max(adone[0], s.arel)
                a_issue(OPT["ar"])
            if first_slot[s.chunk] == m and m < P3: lstamp(s.chunk)
            if OPT["lst"] == 9 and m >= P2 + OPT["l0"] and (m - P2 - OPT["l0"]) % OPT["ld"] == 0: LSET["C"].append(f"m{m-P2}"); lstamp(f"m{m-P2}")
            for fn in events.get(m, []): fn()
        nr = 0
        while rn < hi and rn <= m + Dof(m) and len(pool) >= len(slots[rn].reads) and (nr < 2 or m < lo):
            ch = slots[rn].chunk
            if first_slot[ch] == rn:
                if pre_bar: pre_bar(ch)
                if ch in GATE:
                    chk_test(gchk[ch], GATE[ch][1], FR["r"], FR["t"], GATE[ch][0], -(list(GATE).index(ch) + 1))
                    cknown.append(("PC" if GATE[ch][0] == 0 else "PH", GATE[ch][1]))
            emit_reads(rn); rn += 1; nr += 1
        assert rn >= min(hi, m + 3), (m, rn)
        if m >= lo:
            n = 0
            while qC and (n < 3 or isinstance(qC[0], tuple)): run_op(qC.pop(0)); n += 1
            if holdq[0]: holdq[0] -= 1
            while qB and not holdq[0] and (E.count + E.nops - c0 < lim - (m & 1) or isinstance(qB[0], tuple)): run_op(qB.pop(0))
            if m in post: post[m]()
    pool.extend(held)
retired = set()
def D2(m): return OPT["D"]
anext = [0]; aok = {"C": False, "W": False, "L": False}; adone = [0]
def a_issue(n):
    while n > 0 and anext[0] < len(aloads):
        tag, q, t, s_, h_, first = aloads[anext[0]]
        if not aok["L" if t in ("W4", "W5") else t[0]] or anext[0] - adone[0] >= min(len(AQ), OPT["al"]): return
        if first:
            i = int(t[1:])
            if t[0] == "C": q_h(sSO, i); I(f"s_lshl_b32 {sSO}, {sSO}, 13")
            else:
                q_u(sSO, i); I(f"s_cmp_eq_u32 {sSO}, 11"); I(f"s_cselect_b32 {sSO}, 0x20000, {sSO}"); I(f"s_lshl_b32 {sSO}, {sSO}, 13"); I(f"s_add_u32 {sSO}, {sSO}, 65536")
        VM(f"buffer_load_dwordx4 {v(q,4)}, {v(vA if h_ == 'k' else vA2)}, {SWS}, {sSO} offen" + (f" offset:{s_*1024}" if s_ else "") + " sc1", tag)
        anext[0] += 1; n -= 1
if OPT["ea"]:
    etag = {}
    at(P2 + OPT["ea"] - 6, lambda: etag.__setitem__(0, chk_issue(FR["r"], FR["t"], 16)))
    at(P2 + OPT["ea"], lambda: (need_mark("sta1"), chk_test(etag[0], PHV["K0"], FR["r"], FR["t"], 16, -11), aok.__setitem__("C", True)))
    for m_ in range(OPT["ea"], 192): at(P2 + m_, lambda: a_issue(1) if anext[0] < 12 else None)
burst(0); runall([o for o in cvt_ops(0) if isinstance(o, str)]); marks.update(f"cen{k}" for k in range(4)); burst(1); qC.extend(cvt_ops(1))
segment(0, P3, D2, 6, None)
PBAR = {"J0": "P0", "J5" if OPT["wl"] < 3 else "J4": "P2", "J8": "P3", "J12": "P4"}
def p3bar(ch):
    if ch in PBAR: cbar("b" + PBAR[ch], vm=[{0: "W3", 2: "W1", 3: "C3"}[OPT["wl"]]])
    lstamp(ch)
for key, val, sl in (("W", "KA", OPT["ka"]), ("L", "KB", OPT["kb"])):
    tg = {}
    at(P3 + sl - 4, lambda tg=tg: tg.__setitem__(0, chk_issue(FR["r"], FR["t"], 16)))
    at(P3 + sl, lambda tg=tg, key=key, val=val: (chk_test(tg[0], PHV[val], FR["r"], FR["t"], 16, -(18 if key == "W" else 19)), aok.__setitem__(key, True), a_issue(OPT["ab"])))
lstamp("T"); csig("T")
need_mark("epi1")
qB.extend(glu_epi(2)); need_mark("epi2"); lstamp("e2")
pool[:] = P3BUFS
sa = st_addr2()
I(f"v_mov_b32 v106, {v(FR['r'])}"); I(f"v_mov_b32 v107, {v(FR['w'])}"); FR.update(r=106, w=107, t=104, v=105); P3BUFS.pop(); pool[:] = P3BUFS
if OPT["ord"] == 0:
    for op in sa: run_op(op)
if not OPT["ea"]: chk_spin(PHV["K0"], FR["r"], FR["t"], 16); aok["C"] = True
lstamp("k0"); a_issue(OPT["a0"])
if OPT["ord"] == 1:
    for op in sa: run_op(op)
E.wait(vm="gsa"); csig("gsa"); lstamp("ga"); a_issue(12)
lstamp("K0")
qB.extend([f"s_lshl4_add_u32 {sT0}, {sC_}, {sG_}", f"s_lshl2_add_u32 {sT0}, {sT0}, {sW_}", f"s_lshl_b32 {sT0}, {sT0}, 12", f"s_add_u32 s20, {sT0}, {WS_PB}", f"s_xor_b32 s21, s20, {8 << 14}",
           "s_mov_b32 s16, 0x07060500", "s_mov_b32 s17, 0x07060501", "s_mov_b32 s18, 0x07060502", "s_mov_b32 s22, 0x07060503", "s_mov_b32 s23, 0x0c0c0400", "s_mov_b32 s53, 0x05040100", f"v_lshlrev_b32 {v(vPB)}, 4, {vLANE}"] + base_ops())
if OPT["gs"] < 0: E.wait(vm="gst"); csig("gst")
else: at(P3 + OPT["gs"], lambda: (E.wait(vm="gst"), csig("gst")))
def reduce_pair(own, other, bar):
    for j in range(4): DS(f"ds_write_b128 {v(vHR)}, {v(other+4*j,4)} offset:{1024*j}", "red" + bar)
    I(f"v_xor_b32 {v(FR['t'])}, 4096, {v(vHR)}")
    cbar(bar, lg=["red" + bar])
    for j in range(4): DS(f"ds_read_b128 {v(other+4*j,4)}, {v(FR['t'])} offset:{1024*j}", f"rr{j}")
if OPT["ovr"]:
    at(P4, lambda: (lstamp("snd"), need_mark("base")))
    for j in range(4): at(P4 + 1 + j // 2, lambda j=j: DS(f"ds_write_b128 {v(vHR)}, {v(ACCS[1]+4*j,4)} offset:{1024*j}", "redbR1"))
    def r1_mid():
        I(f"v_xor_b32 v170, 4096, {v(vHR)}"); I(f"v_mov_b32 v171, {sNON}")
        cbar("bR1", lg=["redbR1"])
        for j in range(4): DS(f"ds_read_b128 {v(ACCS[1]+4*j,4)}, v170 offset:{1024*j}", f"rq{j}")
    def r1_fin(j):
        E.wait(lg=f"rq{j}")
        for e in range(4): I(f"v_add_f32 {v(ACCS[0]+4*j+e)}, {v(ACCS[0]+4*j+e)}, {v(ACCS[1]+4*j+e)}")
        for e in range(4): I(f"v_perm_b32 {v(ACCS[0]+4*j+e)}, {v(ACCS[0]+4*j+e)}, v171, {['s16', 's17', 's18', 's22'][e]}")
        VM(f"buffer_store_dwordx4 {v(ACCS[0]+4*j,4)}, {v(vPB)}, {SWS}, s21 offen offset:{1024*j} sc1", "pst")
    at(P4 + 5, r1_mid)
    for j in range(4): at(P4 + 7 + j, lambda j=j: r1_fin(j))
else:
    segment(P3, P4, lambda m: OPT["D3"], 8, p3bar)
    lstamp("snd")
    need_mark("base")
    reduce_pair(ACCS[0], ACCS[1], "bR1")
    I(f"v_mov_b32 v171, {sNON}")
    for j in range(4):
        E.wait(lg=f"rr{j}")
        for e in range(4): I(f"v_add_f32 {v(ACCS[0]+4*j+e)}, {v(ACCS[0]+4*j+e)}, {v(ACCS[1]+4*j+e)}")
        for e in range(4): I(f"v_perm_b32 {v(ACCS[0]+4*j+e)}, {v(ACCS[0]+4*j+e)}, v171, {['s16', 's17', 's18', 's22'][e]}")
        VM(f"buffer_store_dwordx4 {v(ACCS[0]+4*j,4)}, {v(vPB)}, {SWS}, s21 offen offset:{1024*j} sc1", "pst")
pl_ld = [f"buffer_load_dwordx4 {v(80+4*j,4)}, {v(vPB)}, {SWS}, s20 offen offset:{1024*j} sc1" for j in range(4)]
at(M - 1 - OPT["pl"], lambda: [VM(t_, "pld") for t_ in pl_ld])
segment(P3 if OPT["ovr"] else P4, M, lambda m: OPT["D3"], 8, p3bar)
assert not qC and not qB and anext[0] == len(aloads)
RT2 = jobs[10][0]; RED2 = slot_of[RT2] * 16384
I(f"v_add_u32 {v(vHR)}, {(RED2 - RED) & 0xffffffff}, {v(vHR)}")
reduce_pair(ACC3, ACC4, "bR2")
for r in range(16): I(f"v_add_f32 {v(ACC3+r)}, {v(ACC3+r)}, {v(BASE+r)}")
chkp = []
for j in range(4):
    b_ = 80 + 4*j
    chkp += [f"v_perm_b32 v65, v{b_+1}, v{b_}, s23", f"v_perm_b32 v66, v{b_+3}, v{b_+2}, s23", "v_perm_b32 v65, v66, v65, s53",
             "v_xor_b32 v64, v171, v65" if j == 0 else "v_xor_b32 v65, v171, v65"] + ([] if j == 0 else ["v_or_b32 v64, v64, v65"])
chkp.append("v_cmp_ne_u32 vcc, 0, v64")
E.wait(vm="pld")
for c_ in chkp: I(c_)
I("s_cbranch_vccnz L_slow_p"); E.label("L_back_p"); lstamp("kp")
slow.extend(["L_slow_p:", ] + ["  " + t_ for t_ in pl_ld] + ["  s_waitcnt vmcnt(0)"] + ["  " + c_ for c_ in chkp] + spin_guard("L_back_p", -10) + ["  s_cbranch_vccnz L_slow_p", "  s_branch L_back_p"])
I("s_mov_b32 s16, 0xffffff00")
for r in range(16): I(f"v_and_b32 {v(80+r)}, s16, {v(80+r)}"); I(f"v_add_f32 {v(ACC3+r)}, {v(ACC3+r)}, {v(80 + r)}")
lstamp("last")
for r in range(16):
    if r % 4 == 0: E.wait(lg=f"rr{r>>2}")
    I(f"v_add_f32 {v(ACC3+r)}, {v(ACC3+r)}, {v(ACC4+r)}")
    if r % 2 == 0: I(f"s_mov_b32 {sT0}, {(r>>1)*4096}")
    VM(f"buffer_store_dword {v(ACC3+r)}, {v(vOUT)}, {SOUT}, {sT0} offen offset:{(r&1)*2048}" + (" sc1" if OPT["osc"] else ""), "out")
dump_stamps("C")
I("s_endpgm")

E = EH
E.label("L_helper")
vSo = [2, 3]; vGo = [4, 5, 6]; vCo = [8, 9, 10, 11]; vWo = [12, 13, 14, 15]; vHo = 16; vXEo = [17, 18]
vFLS, vFLP, vPOLL, vFLX = 19, 20, 21, 7
vLR, vCR, vL16, vL128, vL256, vPQ = 22, 24, 26, 28, 30, 32
vE, vE2, vP = 34, 36, 38
vEQA, vEST, vEF, vEX, vZA, vHSW, vHSR, vHSTo, vDA, vTAB = 40, 41, 42, 44, 46, 47, 48, 49, 50, 54
TR, TI, RT, TMP = 96, 112, 128, 144
vF16, vF256 = 56, 58
vQR, vQT, vQV, vQW = 160, 161, 162, 163
vDB = 164; vUP = 76
live = [items[f"X{i}"] for i in range(4, 8)]
known = {id(EC): 0, id(EH): 0}
def hplace(name):
    it = items[name]
    for o in list(live):
        if o.base < it.base + it.size and it.base < o.base + o.size:
            assert known[id(o.reader)] >= o.last_read, ("WAR", name, o.name)
            live.remove(o)
    live.append(it); return it
def adv11(s): I(f"s_add_u32 {s}, {s}, 1"); I(f"s_cmp_eq_u32 {s}, 11"); I(f"s_cselect_b32 {s}, 0, {s}")
cur_m0 = [None]
SOFF = {"G": "s16", "C": "s17", "W": "s18"}
def item_ops(name):
    k = name.rstrip("0123456789"); i = int(name[len(k):] or 0)
    so = SOFF.get(k)
    srd_, sm, voffs, pol = {"S": (SS, sM2, vSo, ""), "G": (SG, sM6, vGo, ""), "C": (SC, sM4, vCo, ""), "H": (SWS, sM4, [vHo]*4, " sc1"),
                            "W": (SWD, sM4, vWo, ""), "HG": (SWS, sM4, [vHo]*4, " sc1"), "XE": (SX, sM2, vXEo, "")}[k]
    prep = {"G": lambda: I(f"s_mul_i32 {so}, {sK[i]}, 1376"), "C": lambda: (q_h(so, i), I(f"s_lshl_b32 {so}, {so}, 7")),
            "W": lambda: w_soff(so, i, sSO)}.get(k, lambda: None)
    if so is None: so = "0" if k == "XE" else sK[i]
    ops = []
    for half in range(2 if k == "G" else 1):
        for q in range(len(voffs)):
            def op(half=half, q=q):
                if name in RT_:
                    if q == 0: prep()
                    VM(f"buffer_load_dwordx4 {v(RT_[name] + 4*q, 4)}, {v(voffs[q])}, {srd_}, {so} offen" + (f" offset:{q*1024}" if q else ""), name)
                    return
                if (half, q) == (0, 0): hplace(name)
                m0 = (sm, items[name].base + 3072 * half)
                if cur_m0[0] != m0: I(f"s_add_u32 m0, {sm}, {m0[1]}"); cur_m0[0] = m0
                if (half, q) == (0, 0): prep()
                if (half, q) == (1, 0): I(f"s_add_u32 {so}, {so}, {16*2752}")
                VM(f"buffer_load_dwordx4 {v(voffs[q])}, {srd_}, {so} offen" + (f" offset:{q*1024}" if q else "") + f"{pol} lds", name)
            ops.append(op)
    last = ops[-1]
    ops[-1] = lambda: (last(), done_issue.__setitem__(name, True))
    return ops
done_issue = {}
def issue(name, between=lambda: None):
    for op in item_ops(name): op(); between()
def unpark(name):
    hplace(name); E.wait(vm=name)
    I(f"v_add_u32 {v(vUP+1)}, {items[name].base}, {v(vUP)}")
    for q in range(4): DS(f"ds_write_b128 {v(vUP+1)}, {v(RT_[name] + 4*q, 4)} offset:{q*1024}", "up" + name)
def issue_mix(miss, *hits):
    mo = item_ops(miss); ho = [op for h in hits for op in item_ops(h)]
    for k, op in enumerate(mo):
        op()
        for h in ho[k * len(ho) // len(mo):(k + 1) * len(ho) // len(mo)]: h()
def flag_send(so): VM(f"buffer_store_dword v61, {v(vFLS)}, {SWS}, {so} offen sc1", "flag")
MBOX = {"s20": WS_FH - WS_FH, "s21": WS_FG - WS_FH, "s19": WS_FP - WS_FH}
def poll_issue(so, tag): pass
def poll_check(so, tag, inc):
    E.wait_all(lg=True)
    I(f"s_cmp_lg_u32 {sW_}, 0"); I(f"s_cbranch_scc1 L_back_{tag}")
    E.begin_cond()
    E.label(f"L_poll_{tag}")
    I(f"s_load_dwordx16 s[32:47], s[72:73], {MBOX[so]} glc"); I(f"s_sub_u32 {sSP2}, {sSP2}, 8"); I("s_cbranch_scc1 L_end"); I("s_waitcnt lgkmcnt(0)")
    for k in range(8): I(f"s_xor_b64 s[{32+2*k}:{33+2*k}], s[{32+2*k}:{33+2*k}], s[74:75]")
    for a_, b_ in ((32, 34), (36, 38), (40, 42), (44, 46), (32, 36), (40, 44), (32, 40)): I(f"s_or_b64 s[{a_}:{a_+1}], s[{a_}:{a_+1}], s[{b_}:{b_+1}]")
    I(f"s_cbranch_scc1 L_poll_{tag}")
    E.end_cond(); E.label(f"L_back_{tag}")
I(f"s_and_b32 {sT1}, {sW_}, 1"); I(f"s_lshl1_add_u32 {sT0}, {sG_}, {sT1}"); I(f"s_lshl_b32 {sT0}, {sT0}, 4")
I(f"v_add_lshl_u32 v84, v81, {sT0}, 10")
I(f"v_add_u32 {v(vSo[0])}, v84, v83"); I(f"v_add_u32 {v(vSo[1])}, v84, v85"); I(f"v_add_u32 {v(vSo[1])}, 7168, {v(vSo[1])}")
I(f"s_lshl_b32 {sM2}, {sW_}, 11")
E.wait_all(lg=True)
I(f"s_cmp_ge_u32 {sW_}, 2"); srd_sel(SS, 22, 24, 524288); srd_sel(SG, 36, 38, 1409024); srd_sel(SC, 26, 28, 524288)
issue("S0"); issue("S1"); E.barrier()
if OPT["prio"] == 2: I("s_setprio 1")
I(f"s_lshl2_add_u32 {sT0}, {sG_}, {sW_}"); I(f"s_lshl_b32 {sT0}, {sT0}, 3"); I(f"v_add_lshl_u32 v87, v82, {sT0}, 1")
VM("global_load_ushort v70, v87, s[30:31]", "par"); VM("global_load_ushort v71, v87, s[18:19]", "par"); VM("global_load_ushort v72, v87, s[20:21]", "par")
I(f"s_lshl1_add_u32 {sT0}, {sGL}, {sT1}"); I(f"s_lshl_b32 {sT0}, {sT0}, 5"); I(f"v_and_b32 v87, 31, {vLANE}"); I(f"v_add_lshl_u32 v87, v87, {sT0}, 1")
VM("global_load_ushort v7, v87, s[32:33]", "par")
srd(SDBG, 44, 256)
I(f"s_or_b32 {sT0}, s2, {sW_}"); I("s_cbranch_scc1 L_notag")
E.begin_cond()
I("s_or_b32 s13, s14, 1"); I("s_mul_i32 s13, s13, 0x9E3779B1"); I("v_mov_b32 v93, s13"); I("v_mov_b32 v94, 0"); I("s_mov_b64 exec, 1")
VM(f"buffer_store_dword v93, v94, {SDBG}, 0 offen sc1"); I("s_mov_b64 exec, -1")
E.end_cond(); E.label("L_notag")
for i in range(2, 8): ktab(i)
srd(SX, 16, 2097152); srd(SWD, 40, 1409024); srd(SWS, 46, WS_SIZE)
if OPT["sp"]:
    I(f"s_lshl4_add_u32 {sT0}, {sC_}, {sG_}"); I(f"s_lshl_b32 {sT0}, {sT0}, 7"); I(f"s_add_u32 {sT0}, {sT0}, {WS_FH}"); I(f"s_add_u32 s72, s46, {sT0}"); I("s_addc_u32 s73, s47, 0")
def warm():
    if not OPT["tw"]: return
    srd(SOUT, 42, 4194304)
    I("v_mov_b32 v92, 0"); I(f"s_lshl2_add_u32 {sT0}, {sC_}, {sW_}"); I(f"s_mul_i32 {sT0}, {sT0}, {152*1024}")
    I(f"s_lshr_b32 {sT2}, {sG_}, 1"); I(f"s_lshl_b32 {sT2}, {sT2}, 13"); I(f"s_add_u32 {sT0}, {sT0}, {sT2}"); I(f"s_and_b32 {sT2}, {sG_}, 1"); I(f"s_lshl_b32 {sT2}, {sT2}, 11"); I(f"s_add_u32 {sT0}, {sT0}, {sT2}")
    I(f"s_mov_b32 {sT2}, {WS_EB + 0x30000}"); I(f"s_lshl_b32 {sT3}, {sC_}, 18")
    I("s_mov_b64 exec, 1")
    for sr, so in ((SG, "0"), (SC, "0"), (SWD, "0"), (SWS, sT0), (SWS, sT2), (SOUT, sT3)):
        VM(f"buffer_load_dword v95, v92, {sr}, {so} offen sc1", "tw")
    I("s_mov_b64 exec, -1")
def setup1():
    I(f"s_mov_b32 {sSPIN}, 0"); I("s_mov_b32 s15, 0"); I(f"s_mul_i32 {sM6}, {sW_}, 6144")
    I(f"s_mul_i32 {sT0}, {sT1}, {32*2752}"); I(f"s_mul_i32 {sT2}, {sG_}, 192"); I(f"s_add_u32 {sT0}, {sT0}, {sT2}")
    I(f"s_mul_i32 {sT2}, {sG_}, 3"); I(f"s_mov_b32 {sT3}, 2752"); I(f"v_mov_b32 v90, {OOB}")
    for i in range(3):
        I(f"v_add_u32 v88, {64*i}, {vLANE}"); I("v_mul_u32_u24 v86, 43691, v88"); I("v_lshrrev_b32 v86, 19, v86")
        I("v_mul_u32_u24 v87, 12, v86"); I("v_sub_u32 v87, v88, v87")
        I(f"v_mul_lo_u32 v86, v86, {sT3}"); I("v_lshl_add_u32 v86, v87, 4, v86"); I(f"v_add_u32 v86, {sT0}, v86")
        I("v_lshrrev_b32 v87, 2, v87"); I(f"v_add_u32 v87, {sT2}, v87"); I("v_cmp_gt_u32 vcc, 43, v87")
        if i: I(f"v_subrev_u32 v86, {1024*i}, v86")
        I(f"v_cndmask_b32 {v(vGo[i])}, v90, v86, vcc")
    I(f"s_lshl2_add_u32 {sT0}, {sGL}, {sT1}"); I(f"s_lshl_b32 {sT2}, {sG_}, 1"); I(f"s_sub_u32 {sT0}, {sT0}, {sT2}"); I(f"s_lshl_b32 {sT0}, {sT0}, 14")
    I(f"v_add_u32 {v(vCo[0])}, {sT0}, {v(vSo[0])}"); I(f"v_add_u32 {v(vCo[1])}, {sT0}, {v(vSo[1])}")
    I(f"v_add_u32 {v(vCo[2])}, {2*7168}, {v(vCo[0])}"); I(f"v_add_u32 {v(vCo[3])}, {2*7168}, {v(vCo[1])}")

def setup1b():
    I(f"s_and_b32 {sT1}, {sW_}, 1")
    I("v_lshlrev_b32 v86, 4, v82"); I("v_lshl_add_u32 v86, v81, 10, v86"); I(f"v_and_b32 v87, 16, {vLANE}"); I("v_lshlrev_b32 v87, 2, v87"); I("v_xor_b32 v87, v86, v87")
    I(f"s_lshl_b32 {sT3}, {sGL}, 7"); I(f"v_add_u32 {v(vWo[0])}, {sT3}, v87")
    for q in range(1, 4): I(f"v_add_u32 {v(vWo[q])}, {7168*q}, {v(vWo[0])}")
    I(f"s_lshl1_add_u32 s13, {sC_}, {sGH}"); I(f"s_lshl2_add_u32 {sT0}, s13, {sW_}"); I(f"s_lshl_b32 {sT0}, {sT0}, 14"); I(f"s_add_u32 {sT0}, {sT0}, {sT3}")
    I(f"v_add_u32 {v(vXEo[0])}, {sT0}, v86"); I(f"v_add_u32 {v(vXEo[1])}, 7168, {v(vXEo[0])}")
    I(f"s_lshr_b32 {sT2}, {sW_}, 1"); I(f"s_lshl1_add_u32 {sT0}, s13, {sT2}"); I(f"s_mul_i32 {sT0}, {sT0}, {152*1024}"); I(f"s_lshl_b32 {sT3}, {sT1}, 12"); I(f"s_add_u32 {sT0}, {sT0}, {sT3}")
    I(f"v_lshl_add_u32 {v(vHo)}, {vLANE}, 4, {sT0}")
    I(f"s_cmp_eq_u32 {sW_}, 0"); I(f"s_cselect_b32 {sT2}, 16, 0"); I(f"v_cmp_gt_u32 vcc, {sT2}, {vLANE}")
    I(f"s_lshl_b32 {sT0}, {sC_}, 11"); I(f"s_lshl2_add_u32 {sT3}, {sG_}, {sT0}"); I(f"v_lshl_add_u32 v86, {vLANE}, 7, {sT3}")
    I(f"v_cndmask_b32 {v(vFLS)}, v90, v86, vcc")
    I(f"s_lshl_b32 {sT3}, {sG_}, 7"); I(f"s_add_u32 {sT3}, {sT3}, {sT0}"); I(f"v_lshl_add_u32 v86, {vLANE}, 2, {sT3}")
    I(f"v_cndmask_b32 {v(vFLP)}, v90, v86, vcc"); I(f"v_cndmask_b32 {v(vFLX)}, 0, -1, vcc")
    I(f"s_mov_b32 s20, {WS_FH}"); I(f"s_mov_b32 s21, {WS_FG}")

def setup2():
    o = []
    A = o.append
    A(f"s_lshl_b32 {sT0}, {sW_}, 10"); A(f"s_add_u32 {sT0}, {sT0}, {EQ}"); A(f"v_lshl_add_u32 {v(vEQA)}, {vLANE}, 3, {sT0}")
    A("v_mov_b32 v88, 0"); A("v_mov_b32 v89, 0"); A(lambda: DS(f"ds_write_b64 {v(vEQA)}, v[88:89]", "eqz"))
    A(f"v_lshl_add_u32 {v(vZA)}, v82, 3, {sT0}")
    A(f"s_lshl_b32 {sT0}, {sW_}, 9"); A(f"v_lshlrev_b32 v86, 11, v81"); A("v_lshl_add_u32 v86, v82, 6, v86"); A("v_lshrrev_b32 v87, 1, v82")
    A("v_lshl_add_u32 v86, v87, 4, v86"); A(f"v_add_u32 {v(vDA)}, {sT0}, v86")
    for j in range(1, 4): A(f"v_xor_b32 {v(vDA+j)}, {16*j}, {v(vDA)}")
    for j in range(4): A(f"v_add_u32 {v(vDB+j)}, {DUMPS[1]}, {v(vDA+j)}")
    A(f"v_lshlrev_b32 {v(vTAB)}, 6, v81"); A(f"v_add_u32 {v(vTAB)}, {RTAB}, {v(vTAB)}")
    A(f"s_lshl_b32 {sT0}, {sG_}, 13"); A(f"s_lshl_b32 {sT2}, {sW_}, 7"); A(f"s_add_u32 {sT0}, {sT0}, {sT2}"); A(f"s_add_u32 {sT0}, {sT0}, {WS_EB}")
    A(f"v_lshl_add_u32 v86, v82, 4, {sT0}")
    A(f"s_lshl_b32 {sT2}, {sC_}, 9"); A(f"v_add_u32 {v(vEST)}, {sT2}, v86"); A(lambda: (I("v_cmp_eq_u32 vcc, 7, v81"), I(f"v_cndmask_b32 {v(vEST)}, v90, {v(vEST)}, vcc")))
    A(f"s_sub_u32 {sT2}, {sC_}, 16"); A(f"v_lshl_add_u32 v87, v81, 1, {sT2}")
    A(f"v_lshl_add_u32 {v(vEF)}, v87, 9, v86"); A(f"v_add_u32 {v(vEF+1)}, 512, {v(vEF)}")
    A(lambda: (I("v_cmp_le_i32 vcc, 0, v87"), I(f"v_cndmask_b32 {v(vEF)}, v90, {v(vEF)}, vcc"), I(f"v_cndmask_b32 {v(vEX)}, 0, -1, vcc")))
    A(lambda: (I("v_cmp_le_i32 vcc, -1, v87"), I(f"v_cndmask_b32 {v(vEF+1)}, v90, {v(vEF+1)}, vcc"), I(f"v_cndmask_b32 {v(vEX+1)}, 0, -1, vcc")))
    A(f"s_mul_i32 {sT0}, {sW_}, 2608"); A(f"s_add_u32 {sT0}, {sT0}, {HS}")
    A("v_mul_u32_u24 v86, 336, v82"); A("v_lshl_add_u32 v86, v81, 5, v86"); A(f"v_add_u32 {v(vHSW)}, {sT0}, v86")
    A(f"v_bfe_u32 v86, {vLANE}, 2, 2"); A("v_mul_u32_u24 v86, 336, v86"); A(f"v_and_b32 v87, 32, {vLANE}"); A("v_lshl_add_u32 v86, v87, 1, v86")
    A(f"v_and_b32 v87, 1, {vLANE}"); A("v_lshl_add_u32 v86, v87, 5, v86"); A(f"v_and_b32 v87, 16, {vLANE}"); A("v_add_u32 v86, v86, v87")
    A(f"v_and_b32 v87, 2, {vLANE}"); A("v_lshl_add_u32 v86, v87, 2, v86"); A(f"v_add_u32 {v(vHSR)}, {sT0}, v86")
    A(f"s_mul_i32 {sT0}, {sC_}, {4*152}"); A(f"s_lshr_b32 {sT2}, {sG_}, 1"); A(f"s_lshl3_add_u32 {sT0}, {sT2}, {sT0}"); A(f"s_and_b32 {sT2}, {sG_}, 1")
    A(f"s_lshl1_add_u32 {sT0}, {sT2}, {sT0}"); A(f"s_lshl_b32 {sT0}, {sT0}, 10"); A(f"s_lshl_b32 {sT2}, {sW_}, 9"); A(f"s_add_u32 {sT0}, {sT0}, {sT2}")
    A(f"v_lshrrev_b32 v86, 5, {vLANE}"); A(f"v_mul_u32_u24 v86, {152*1024}, v86"); A(f"v_and_b32 v87, 31, {vLANE}"); A("v_lshl_add_u32 v86, v87, 4, v86"); A(f"v_add_u32 {v(vHSTo)}, {sT0}, v86")
    LOG2E = "0x3fb8aa3b"
    A(lambda: E.wait(vm="par"))
    o += ["v_lshlrev_b32 v70, 16, v70", "v_lshlrev_b32 v71, 16, v71", "v_lshlrev_b32 v72, 16, v72",
          f"v_mul_f32 v70, {LOG2E}, v70", "v_exp_f32 v70, v70", "v_mul_f32 v74, v71, v71"] + bf16r_ops(70, 70)
    o += ["v_mul_f32 v75, v70, v71", "v_mul_f32 v76, v70, v72", f"v_mul_f32 v75, {LOG2E}, v75", "v_exp_f32 v75, v75",
          "v_mul_f32 v76, 0.15915494, v76", "v_rndne_f32 v77, v76", "v_sub_f32 v76, v76, v77", "v_cos_f32 v77, v76", "v_sin_f32 v78, v76",
          "v_fmac_f32 v74, v72, v72", f"v_mul_f32 {v(vLR)}, v75, v77", "v_mul_f32 v78, v75, v78", "v_rcp_f32 v74, v74",
          f"v_add_f32 v77, -1.0, {v(vLR)}", "v_add_f32 v74, v74, v74",
          f"v_mul_f32 {v(vCR)}, v77, v71", f"v_fmac_f32 {v(vCR)}, v78, v72", f"v_mul_f32 {v(vCR)}, {v(vCR)}, v74",
          f"v_mul_f32 {v(vCR+1)}, v77, v72", f"v_fma_f32 {v(vCR+1)}, -v78, v71, {v(vCR+1)}", f"v_mul_f32 {v(vCR+1)}, {v(vCR+1)}, v74",
          f"v_sub_f32 {v(vLR+1)}, 0, v78"]
    o += csq_ops(70, vLR, 78) + csq_ops(72, 70, 78) + csq_ops(70, 72, 78) + csq_ops(vL16, 70, 78)
    o += csq_ops(70, vL16, 78) + csq_ops(72, 70, 78) + csq_ops(vL128, 72, 78) + csq_ops(vL256, vL128, 78)
    o += [f"v_mov_b32 {v(vPQ)}, {v(vCR)}", f"v_mov_b32 {v(vPQ+1)}, {v(vCR+1)}"]
    for bit, L in ((8, vL16), (16, 70), (32, 72)):
        o += [f"v_and_b32 v74, {bit}, {vLANE}", lambda L=L: (I("v_cmp_ne_u32 vcc, 0, v74"), I(f"v_cndmask_b32 v76, 1.0, {v(L)}, vcc"), I(f"v_cndmask_b32 v77, 0, {v(L+1)}, vcc"))]
        o += cmul_ops(vPQ, vPQ, 76, 78)
    def factor(F, Ls):
        r = []
        for n, (bit, L) in enumerate(zip((8, 16, 32), Ls)):
            d = F if n == 0 else 76
            r += [f"v_and_b32 v74, {bit}, {vLANE}", lambda L=L, d=d: (I("v_cmp_eq_u32 vcc, 0, v74"), I(f"v_cndmask_b32 {v(d)}, 1.0, {v(L)}, vcc"), I(f"v_cndmask_b32 {v(d+1)}, 0, {v(L+1)}, vcc"))]
            if n: r += cmul_ops(F, F, 76, 78)
        return r
    o += factor(vF16, (vL16, 70, 72))
    o += csq_ops(70, vL256, 78) + csq_ops(72, 70, 78) + factor(vF256, (vL256, 70, 72))
    return o
def allsum(a_, b_, t):
    o = [f"v_add_f32_dpp {v(t)}, {v(a_)}, {v(a_)} row_ror:8 row_mask:0xf bank_mask:0xf", f"v_add_f32_dpp {v(t+1)}, {v(b_)}, {v(b_)} row_ror:8 row_mask:0xf bank_mask:0xf",
         f"v_mov_b32 {v(a_)}, {v(t)}", f"v_mov_b32 {v(b_)}, {v(t+1)}",
         f"v_permlane16_swap_b32 {v(a_)}, {v(t)}", f"v_permlane16_swap_b32 {v(b_)}, {v(t+1)}",
         f"v_add_f32 {v(a_)}, {v(a_)}, {v(t)}", f"v_add_f32 {v(b_)}, {v(b_)}, {v(t+1)}",
         f"v_mov_b32 {v(t)}, {v(a_)}", f"v_mov_b32 {v(t+1)}, {v(b_)}",
         f"v_permlane32_swap_b32 {v(a_)}, {v(t)}", f"v_permlane32_swap_b32 {v(b_)}, {v(t+1)}",
         f"v_add_f32 {v(a_)}, {v(a_)}, {v(t)}", f"v_add_f32 {v(b_)}, {v(b_)}, {v(t+1)}"]
    return o
def cmul4(d, x, y):
    return [f"v_mul_f32 {v(d[0])}, {v(x[0])}, {v(y)}", f"v_mul_f32 {v(d[1])}, {v(x[0])}, {v(y+1)}",
            f"v_fma_f32 {v(d[0])}, -{v(x[1])}, {v(y+1)}, {v(d[0])}", f"v_fmac_f32 {v(d[1])}, {v(x[1])}, {v(y)}"]
def ssm1():
    o = []
    def rdd(j, comp): DS(f"ds_read_b128 {v((TI if comp else TR) + 4*j, 4)}, {v(vDB+j)} offset:{DUMPS[comp] - DUMPS[1]}", f"dr{j}"); note_read(f"DUMP{comp}")
    for j in range(4):
        o += [lambda j=j: DS(f"ds_read_b128 {v(RT + 4*j, 4)}, {v(vTAB)} offset:{16*j}", f"dr{j}"), lambda j=j: rdd(j, 0), lambda j=j: rdd(j, 1)]
    cur, nx = (vE, vE + 1), (vE2, vE2 + 1)
    for r in range(16):
        if r % 4 == 0: o.append(lambda j=r >> 2: E.wait(lg=f"dr{j}"))
        o += [f"v_mul_f32 {v(TR+r)}, {v(TR+r)}, {v(RT+r)}", f"v_mul_f32_e64 {v(TI+r)}, -{v(TI+r)}, {v(RT+r)}"]
        if r == 0: src = (TR, TI)
        else:
            o += cfma_ops(nx, vLR, src, TR + r, TI + r); src = nx; cur, nx = nx, cur
    assert src == (vE2, vE2 + 1)
    o += cmul4((60, 62), src, vF16) + allsum(60, 62, 64)
    o.append(lambda: (VM(f"buffer_store_dwordx4 v[60:63], {v(vEST)}, {SWS}, 0 offen sc1", "est"), lstamp("epub")))
    return o
def window():
    o = [lambda: DS(f"ds_write_b64 {v(vEQA)}, {v(vE2,2)} offset:{7*64}", "eqw")]
    o += [lambda i=i: DS(f"ds_read_b64 {v(TMP+2*i,2)}, {v(vEQA)} offset:{64*i}", "eq") for i in range(7)]
    for r in range(16):
        o += [f"v_mul_f32 v72, {v(vCR+1)}, {v(TI+r)}", f"v_mul_f32 {v(TI+r)}, {v(vCR)}, {v(TI+r)}",
              f"v_fmac_f32 {v(TI+r)}, {v(vCR+1)}, {v(TR+r)}", f"v_fma_f32 {v(TR+r)}, {v(vCR)}, {v(TR+r)}, -v72"]
    o.append(lambda: E.wait(lg="eq"))
    src = (TMP, TMP + 1); pp = [(vE2, vE2 + 1), (vE, vE + 1)]
    for i in range(1, 7):
        d = pp[i & 1]; o += cfma_ops(d, vL16, src, TMP + 2*i, TMP + 2*i + 1); src = d
    return o + cmul4((vP, vP + 1), src, vCR)
def efetch_issue():
    VM(f"buffer_load_dwordx4 v[64:67], {v(vEF)}, {SWS}, 0 offen sc1", "ef"); VM(f"buffer_load_dwordx4 v[68:71], {v(vEF+1)}, {SWS}, 0 offen sc1", "ef")
def ssm3():
    chk = [f"v_xor_b32 v72, v65, {v(vEX)}", f"v_xor_b32 v73, v67, {v(vEX)}", f"v_xor_b32 v74, v69, {v(vEX+1)}", "v_or3_b32 v72, v72, v73, v74",
           f"v_xor_b32 v73, v71, {v(vEX+1)}", "v_or_b32 v72, v72, v73", "v_cmp_ne_u32 vcc, 0, v72"]
    def check():
        E.wait(vm="ef")
        for c in chk: I(c)
        I("s_cbranch_vccnz L_slow_e"); E.label("L_back_e"); lstamp("eok")
        slow.extend(["L_slow_e:",  f"  buffer_load_dwordx4 v[64:67], {v(vEF)}, {SWS}, 0 offen sc1", f"  buffer_load_dwordx4 v[68:71], {v(vEF+1)}, {SWS}, 0 offen sc1",
                     "  s_waitcnt vmcnt(0)"] + ["  " + c for c in chk] + spin_guard("L_back_e", 0x100) + ["  s_cbranch_vccnz L_slow_e", "  s_branch L_back_e"])
    o = [check] + cfma_ops((vE, vE + 1), vL128, (64, 66), 68, 70)
    o += cmul4((vE2, vE2 + 1), (vE, vE + 1), vF256) + allsum(vE2, vE2 + 1, 72)
    src = (vE2, vE2 + 1)
    o += cfma_ops((vE, vE + 1), vPQ, src, vP, vP + 1)
    src = (vE, vE + 1)
    for r in range(16):
        d = (TR + r, TI + r); o += cfma_ops(d, vLR, src, d[0], d[1]); src = d
        if r & 1: o += [f"v_cvt_pk_bf16_f32 {v(TMP + (r>>1))}, {v(TR+r-1)}, {v(TR+r)}", f"v_cvt_pk_bf16_f32 {v(TMP + 8 + (r>>1))}, {v(TI+r-1)}, {v(TI+r)}"]
    for comp in range(2):
        o += [lambda j=j, comp=comp: DS(f"ds_write_b128 {v(vHSW)}, {v(TMP + 8*comp + 4*j, 4)} offset:{16*j}", "hsw") for j in range(2)]
        for i in range(2):
            for ph in range(2):
                def rd(i=i, ph=ph, comp=comp):
                    DS(f"ds_read_b64_tr_b16 {v(RT + 8*comp + 4*i + 2*ph, 2)}, {v(vHSR)} offset:{4*ph*336 + 128*i}", f"hr{comp}{i}"); note_read("HS")
                o.append(rd)
    for comp in range(2):
        for i in range(2):
            def st(i=i, comp=comp):
                I(f"s_mov_b32 {sT0}, {2*i*152*1024 + comp*4096}"); E.wait(lg=f"hr{comp}{i}")
                VM(f"buffer_store_dwordx4 {v(RT + 8*comp + 4*i, 4)}, {v(vHSTo)}, {SWS}, {sT0} offen sc1", "hst")
            o.append(st)
    o.append(lambda: lstamp("hst"))
    return o
work = []
def pop_work(n):
    while n > 0 and work: runall([work.pop(0)]); n -= 1
def between(n=8): return lambda: pop_work(n)
live.append(items["OFT"])
I(f"v_and_b32 {v(vQR)}, 3, {vLANE}"); I(f"v_lshlrev_b32 {v(vQR)}, 2, {v(vQR)}"); I(f"v_add_u32 {v(vQR)}, {PRG}, {v(vQR)}"); I(f"v_mov_b32 {v(vQV)}, 0")
I(f"s_lshl_b32 {sT0}, {sW_}, 2"); I(f"s_add_u32 {sT0}, {sT0}, {PRG}"); I(f"v_mov_b32 {v(vQW)}, {sT0}")
issue("S2"); issue("S3"); lstamp("b0")
def hchk(word, st):
    off = {"PC": 0, "PD": 32}[word]; val = PCV[st] if word == "PC" else st
    chk_spin(val, vQR, vQT, off)
    em, lg = signals[(word, val)]; known[id(em)] = max(known[id(em)], lg)
published = [0]
def pub(ch):
    assert PHV[ch] > published[0]
    E.wait(vm=[n for c in CHUNKS[published[0]:PHV[ch]] for n in chunk_items(c)]); signal("PH", PHV[ch], vQW, vQV, 16); published[0] = PHV[ch]
def auto_pub(lead):
    best = None
    for c in CHUNKS[published[0]:]:
        if all(n in E.vm and done_issue.get(n) and len(E.vm) - E.last(E.vm, n) >= lead for n in chunk_items(c)): best = c
        else: break
    if best: pub(best)
def s47():
    for n in ("S4", "S5", "S6", "S7"): issue(n)
if OPT["xi"] < 0: s47()
pub("S2")
setup1()
I(f"s_lshl_b32 {sT0}, {sW_}, 11"); I(f"s_add_u32 {sT0}, {sT0}, {HS}"); I(f"v_lshl_add_u32 v86, {vLANE}, 4, {sT0}")
E.wait(vm="par"); DS("ds_write_b128 v86, v[4:7]", "oft"); I("v_mov_b32 v92, v86"); E.wait(lg="oft")
if OPT["xi"] >= 0: hchk("PC", "Xi"); s47()
w2 = setup2(); runall(w2[:OPT["w2a"]])
hchk("PC", "X"); lstamp("xd")
I("v_mov_b32 v91, 0"); VM(f"buffer_load_dword {v(vPOLL)}, v91, {SDBG}, 0 offen sc1", "tag")
issue("G0"); pub("S6"); runall(w2[OPT["w2a"]:OPT["w2b"]]); issue("G1"); runall(w2[OPT["w2b"]:]); pub("G0"); hchk("PC", "S3"); issue("G2"); pub("G1"); issue("G3"); setup1b()
tag_check("H", vPOLL, 88)
I(f"s_mov_b32 s74, {sNON}"); I(f"s_mov_b32 s75, {sNON}")
runall([f"v_mov_b32 v61, {sNON}", f"v_mov_b32 v63, {sNON}", f"v_and_b32 {v(vEX)}, {sNON}, {v(vEX)}", f"v_and_b32 {v(vEX+1)}, {sNON}, {v(vEX+1)}", f"v_and_b32 {v(vFLX)}, {sNON}, {v(vFLX)}",
        f"v_lshl_add_u32 {v(vUP)}, {vLANE}, 4, {sM4}"])
known[id(EC)] = max(known[id(EC)], signals[("PC", PCV["S5"])][1]); hplace("DUMP0"); hplace("DUMP1")
DS("ds_write_b64 v92, v[8:9] offset:1024", "oft"); DS("ds_write_b32 v92, v12 offset:1032", "oft"); DS("ds_write_b32 v92, v61 offset:1036", "oft")
runall(q_setup()); issue("C0"); issue("W0")
if OPT["w1e"]: issue("W4")
I(f"s_setprio {OPT['pb']}")
hchk("PC", "dump"); lstamp("bD")
ncp = [0]
def code_touch():
    ncp[0] += 1
    I("s_getpc_b64 s[54:55]"); E.label(f"L_pc{ncp[0]}")
    I(f"s_sub_u32 s54, s54, L_pc{ncp[0]}-{NAME}_kernel"); I("s_subb_u32 s55, s55, 0")
    I(f"s_and_b32 {sT0}, {sGL}, 3"); I("v_and_b32 v78, 0xfc, v0"); I(f"v_or_b32 v78, {sT0}, v78"); I("v_lshlrev_b32 v78, 7, v78")
    VM("global_load_dword v79, v78, s[54:55]", "code")
def pass2():
    t0 = OPT["bd"] + 2
    s1, wn, s3 = ssm1(), window(), ssm3()
    ins = []
    def spread(name, ta, tb, pre=None):
        holder = {}
        n = 6 if name[0] == "G" else 4
        for k in range(n):
            def f(k=k):
                if k == 0:
                    if pre: hchk(*pre)
                    holder["ops"] = item_ops(name)
                holder["ops"][k]()
            ins.append((ta + (tb - ta) * k / n, f))
    ins.append((OPT["pg2"], lambda: (E.wait(lg="dr3"), pub("G2")))); ins.append((48, lambda: pub("G3")))
    ins.sort(key=lambda x: x[0])
    t = [float(t0)]
    def cyc(): return E.nvec * OPT["vc"] / 10.0 + (E.count + E.nops - E.nvec) * 4.0
    def adv(c0): t[0] += (cyc() - c0) / 33.0
    def run(ops):
        for op in ops:
            while ins and ins[0][0] <= t[0]:
                c0 = cyc(); ins.pop(0)[1](); adv(c0)
            c0 = cyc(); runall([op]); adv(c0)
    def idle_until(tt):
        while ins and ins[0][0] <= tt: t[0] = max(t[0], ins[0][0]); ins.pop(0)[1]()
        t[0] = max(t[0], tt)
    run(s1); tpub = t[0]
    k = 0
    while k < len(wn) and t[0] < tpub + OPT["efd"]: run([wn[k]]); k += 1
    efetch_issue(); lstamp("ef"); tf = t[0]
    if OPT["cp"] & 1: code_touch()
    run(wn[k:]); hchk("PC", "G1"); hplace("HS")
    tc = t[0]
    I(f"s_setprio {OPT['pc']}"); run(s3); ts = t[0]; assert not ins
    E.wait(vm="hst"); signal("PD", 2, vQW, vQV, 32); hchk("PD", 2); flag_send("s20"); lstamp("hflag")
    if OPT.get("log"): print(f"helper est: epub {tpub:.0f} efetch {tf:.0f} check {tc:.0f} stores {ts:.0f}", file=sys.stderr)
pass2()
issue("XE")
if not OPT["w1e"]: issue("W4")
if OPT["cp"] & 2: code_touch()
pub("KX")
for name, kn in cplaced:
    save = dict(known); known.update({id(EC): 0, id(EH): 0})
    for w_, val in kn:
        em, lg = signals[(w_, val)]; known[id(em)] = max(known[id(em)], lg)
    hplace(name); done_issue[name] = True; known.update(save)
I(f"s_setprio {OPT['pd']}")
if OPT["ep"]:
    hchk("PC", "U0"); poll_issue("s20", "ph"); poll_check("s20", "ph", 0x10000); lstamp("okh"); pub("K0")
I(f"s_mov_b32 s19, {WS_FP}")
hchk("PC", "T"); lstamp("gT")
unpark("C0"); I("s_setprio 2")
hchk("PC", "gsa"); flag_send("s19"); lstamp("fa"); I(f"s_setprio {OPT['pd']}")
wl_ = list(("W1", "W2", "W3")[3 - OPT["wl"]:])
if OPT["u0"]: unpark("W0")
for k, bn in enumerate(bar_names[1:]):
    E.wait(vm={"bP3": ["W5"], "bP2": wl_}.get(bn, []), lg={"bP0": ["upC0"], "bP2": ["upW0"], "bP3": ["upW4"]}.get(bn, [])); E.barrier()
    known[id(EC)] = max(known[id(EC)], EC.barriers[k + 1][1])
    if bn == "bP0":
        poll_check("s19", "pa", 0x1); lstamp("oka"); pub("KA")
        I("s_setprio 2"); hchk("PC", "gst"); flag_send("s21"); I(f"s_setprio {OPT['pd']}")
        for n_ in wl_: issue(n_)
        if not OPT["u0"]: unpark("W0")
        poll_check("s21", "pg", 0x1000000); lstamp("okg"); pub("KB")
    if bn == "bP2": issue("W5"); unpark("W4")
    if bn == "bP3": assert known[id(EC)] >= min(items["C2"].last_read, 10**9)
    if bn == "bP4": assert known[id(EC)] >= items[RT2].last_read
assert len(EH.barriers) == len(EC.barriers)
dump_stamps("H")
E.label("L_end"); I("s_endpgm")

DOC = """; Fused LayerNorm + S5 scan + bilinear GLU, one launch, 256 workgroups (one per CU), written by dev/gen15.py.
;                        then the output GEMM for 128 rows x 64 columns over one half of K; the partner
;                        workgroup (c, g^8) holds the other half and the two swap 64x64 partial tiles.
;   waves 4-7 (helper):  LDS-DMA loads, exact chunked scan (local end states exchanged between row blocks),
;                        hand-off flags.  Every hand-off carries a per-launch tag published through d_debug.
"""
hdr = open("cdna_kernels/" + NAME + ".s.ref").read().split("; Override launch geometry")[0]
out = hdr
if OPT["lst"]: out += "; cstamps: " + " ".join(lnames["C"]) + "\n; hstamps: " + " ".join(lnames["H"]) + f"\n; rt: {OPT['rt']}\n"
out += f"; @launch grid=(256,1,1) block=(512,1,1) lds={LDS_BYTES}\n"
out += DOC
out += f'.amdgcn_target "amdgcn-amd-amdhsa--gfx950"\n.text\n.globl {NAME}_kernel\n.p2align 8\n.type {NAME}_kernel,@function\n'
kc = next(k for k, l in enumerate(EC.lines) if "v_and_b32 v90, 31" in l)
out += E0.text() + "\n".join(EC.lines[:kc]) + "\n  s_branch L_cmain\n" + EH.text() + "L_cmain:\n" + "\n".join(EC.lines[kc:]) + "\n" + "\n".join(slow) + "\n"
out += f"L_pad:\n.fill (37120 - (L_pad - {NAME}_kernel)) / 4, 4, 0xbf810000\n"
out += f""".section .rodata,"a"
.p2align 6
.amdhsa_kernel {NAME}_kernel
  .amdhsa_next_free_vgpr 256
  .amdhsa_next_free_sgpr 102
  .amdhsa_accum_offset 256
  .amdhsa_group_segment_fixed_size 0
  .amdhsa_kernarg_size 128
  .amdhsa_user_sgpr_count 2
  .amdhsa_user_sgpr_kernarg_segment_ptr 1
  .amdhsa_system_sgpr_workgroup_id_x 1
.end_amdhsa_kernel
"""
open(sys.argv[1], "w").write(out)
print(f"compute {EC.count}+{EC.nops} helper {EH.count}+{EH.nops} barriers {len(bar_names)}: {' '.join(bar_names)}", file=sys.stderr)
```

```python
import sys
from emit import Emitter
NAME = "parallel_sum__ssm_conv_s5__glu_gated_bilinear__prompt"
OPT = dict(lst=0, rt=1, D=4, D2=7, D3=6, NU=2, gfd=40, prio=1, bd=15, ipc=85, slp=2, slq=0, wl=2, ovr=0, cp=0, sp=2, dsp=3, efn=90, rot=8, lead=12, ge=0, gf=1, gg=5, gp=2, mw=0, ar=1, nr=8, bk=12, c34=1, f0=0, f2=1, pw=0, pd=2, nwt=0, a0=6, al=16, nb=60, gs=0, tw=0, osc=1, d64=0, w2a=20, w2b=110, pb=0, c1=117, c45=1, u0s=170, xi=-1, pc=2, map=0, xj=1, nd=2, skw=2, gj=7, pjd=10, ea=0, pl=14, w1e=0, xw=1, ct=1, stg=0, x3=0, wr=4, pg2=21, ep=1, ord=1, ka=20, kb=56, ab=2, u0=1, pls=0, vc=85, efd=35, ecd=20)
for a_ in sys.argv[2:]:
    k_, v_ = a_.split("="); OPT[k_] = int(v_)

WS_EB = 0xA00000; WS_FH = 0xA40000; WS_FG = 0xA48000; WS_ST = 0xC00000; WS_FP = 0xA50000; WS_PB = 0x1000000; WS_SIZE = 0x1800000
U8 = 8192; MISC = 18 * U8
RTAB = MISC; EQ = MISC + 1024; HS = MISC + 5120; XE = MISC + 5120
DUMP = 0
PRG = MISC + 15872
LDS_BYTES = 163840
OOB = 0x80000000
sW_, sC_, sG_, sGL, sGH, sJ0 = "s3", "s4", "s5", "s6", "s7", "s8"
sT0, sT1, sT2, sT3 = "s9", "s10", "s11", "s12"
SX, SS, SG, SC, SWD, SWS, SOUT, SDBG = ("s[48:51]", "s[52:55]", "s[56:59]", "s[60:63]", "s[64:67]", "s[68:71]", "s[72:75]", "s[76:79]")
sK = [f"s{80+i}" for i in range(8)]
sM4, sM2, sM6 = "s88", "s89", "s94"
sQW, sQHG, sSO = "s95", "s96", "s100"
sNON, sC10, sC01, sC11 = "s90", "s91", "s92", "s93"
sSPIN = "s97"; sSP2 = "s99"; sCL = "s101"
sCW = "s98"; WMUL = {4: 3, 2: 6, 1: 0}[OPT["wr"]]
sRA = "s52"
def q_setup(): return [f"s_add_u32 {sQW}, {sGL}, {sCL}", f"s_mul_i32 {sRA}, {sGH}, {6*8192}", f"s_add_u32 {sRA}, {sRA}, 65536"]
def q_h(so, i): I(f"s_add_u32 {so}, {sQW}, {i}"); I(f"s_and_b32 {so}, {so}, 3"); I(f"s_lshl2_add_u32 {so}, {sGH}, {so}")
def q_u(so, i):
    I(f"s_add_u32 {so}, {sQW}, {i}"); I(f"s_and_b32 {so}, {so}, {3 if i < 4 else 1}")
    if i >= 4: I(f"s_add_u32 {so}, {so}, 4")
def w_soff(so, i, tmp):
    q_u(tmp, i); I(f"s_lshl2_add_u32 {tmp}, {tmp}, {sW_}"); I(f"s_and_b32 {so}, {tmp}, 7"); I(f"s_lshl3_add_u32 {so}, {sGH}, {so}"); I(f"s_mul_i32 {so}, {so}, 3")
    I(f"s_lshr_b32 {tmp}, {tmp}, 3"); I(f"s_add_u32 {so}, {so}, {tmp}"); I(f"s_lshl_b32 {so}, {so}, 15")
STP = [" sc1", "", " nt"][OPT["pls"]]
vLANE = "v1"
MF = "v_mfma_f32_32x32x16_bf16"
def v(n, k=1): return f"v{n}" if k == 1 else f"v[{n}:{n+k-1}]"

EC, EH, E0 = Emitter(), Emitter(), Emitter()
E = E0
def I(t): return E.I(t)
def VM(t, tag=None): return E.VM(t, tag)
def DS(t, tag=None): return E.DS(t, tag)
slow = []
lnames = {"C": [], "H": []}
def lstamp(name):
    who = "C" if E is EC else "H"
    if OPT["lst"] and name in LSET[who] and len(lnames[who]) < 12:
        k = 24 + 2 * len(lnames[who]); lnames[who].append(name); I(f"{'s_memrealtime' if OPT['rt'] else 's_memtime'} s[{k}:{k+1}]")
LSETS = {0: ([], []),
         1: (["X6", "X7", "S0", "G0", "G4", "T", "J0", "J4", "snd", "kp", "last", "end"], ["b0", "xd", "bD", "epub", "ef", "eok", "hst", "hflag", "okh", "gT", "okg", "end"]),
         2: (["S0", "S2", "S4", "S6", "G0", "G1", "G2", "G3", "G4", "G5", "G6", "T"], ["b0", "xd", "bD", "epub", "ef", "eok", "hst", "hflag", "okh", "gT", "okg", "end"]),
         3: (["T", "K0", "J0", "J2", "J4", "J7", "snd", "J10", "J13", "kp", "last", "end"], ["b0", "xd", "bD", "epub", "ef", "eok", "hst", "hflag", "okh", "gT", "okg", "end"])}
LSETS[9] = ([], LSETS[1][1])
LSETS[4] = (["T", "e2", "k0", "ga", "K0", "J0", "J1", "J2", "J3", "J4", "J5", "J6"], [])
LSETS[5] = (["J6", "J7", "J8", "J9", "snd", "J10", "J12", "J14", "J16", "J17", "kp", "last"], [])
LSET = dict(zip("CH", LSETS[OPT["lst"]])); LSET["H"] = ["bD", "epub", "eok", "hst", "hflag", "okh", "fa", "oka"]
def runall(ops):
    for op in ops:
        if isinstance(op, str): I(op)
        else: op()
def csq_ops(d, x, t):
    return [f"v_mul_f32 {v(t)}, {v(x+1)}, {v(x+1)}", f"v_add_f32 {v(t+1)}, {v(x)}, {v(x)}", f"v_fma_f32 {v(d)}, {v(x)}, {v(x)}, -{v(t)}", f"v_mul_f32 {v(d+1)}, {v(t+1)}, {v(x+1)}"]
def cmul_ops(d, x, y, t):
    return [f"v_mul_f32 {v(t)}, {v(x)}, {v(y)}", f"v_mul_f32 {v(t+1)}, {v(x)}, {v(y+1)}",
            f"v_fma_f32 {v(t)}, -{v(x+1)}, {v(y+1)}, {v(t)}", f"v_fma_f32 {v(d+1)}, {v(x+1)}, {v(y)}, {v(t+1)}", f"v_mov_b32 {v(d)}, {v(t)}"]
def cfma_ops(d, L, x, br, bi):
    return [f"v_fma_f32 {v(d[0])}, {v(L)}, {v(x[0])}, {v(br)}", f"v_fma_f32 {v(d[1])}, {v(L)}, {v(x[1])}, {v(bi)}",
            f"v_fma_f32 {v(d[0])}, -{v(L+1)}, {v(x[1])}, {v(d[0])}", f"v_fma_f32 {v(d[1])}, {v(L+1)}, {v(x[0])}, {v(d[1])}"]
def bf16r_ops(d, s): return [f"v_cvt_pk_bf16_f32 {v(d)}, {v(s)}, {v(s)}", f"v_and_b32 {v(d)}, 0xffff0000, {v(d)}"]
def srd(dst, lo, size):
    n = int(dst[2:dst.index(":")])
    I(f"s_mov_b64 s[{n}:{n+1}], s[{lo}:{lo+1}]"); I(f"s_mov_b32 s{n+2}, {size}"); I(f"s_mov_b32 s{n+3}, 0x20000")
def srd_sel(dst, p0, p1, size):
    n = int(dst[2:dst.index(":")])
    I(f"s_cselect_b64 s[{n}:{n+1}], s[{p1}:{p1+1}], s[{p0}:{p0+1}]"); I(f"s_mov_b32 s{n+2}, {size}"); I(f"s_mov_b32 s{n+3}, 0x20000")
def ktab(i):
    I(f"s_add_u32 {sK[i]}, {sJ0}, {i}"); I(f"s_and_b32 {sK[i]}, {sK[i]}, 7"); I(f"s_lshl_b32 {sK[i]}, {sK[i]}, 7")
def spin_guard(lbl_back, inc):
    return ([f"  s_add_u32 s15, s15, {inc}" if inc >= 0 else f"  s_bitset1_b32 s15, {-inc}"] if OPT["lst"] else []) + [f"  s_add_u32 {sSPIN}, {sSPIN}, 1", f"  s_cmp_gt_u32 {sSPIN}, 0x200000", f"  s_cbranch_scc1 {lbl_back}"]
def tag_check(who, vp, vz):
    E.wait(vm="tag"); I(f"v_readfirstlane_b32 {sNON}, {v(vp)}"); I(f"s_cmp_eq_u32 {sNON}, 0"); I(f"s_cbranch_scc1 L_slow_tag{who}"); E.label(f"L_back_tag{who}")
    slow.extend([f"L_slow_tag{who}:", "  s_sleep 1", f"  v_mov_b32 {v(vz)}, 0", f"  buffer_load_dword {v(vp)}, {v(vz)}, {SDBG}, 0 offen sc1", "  s_waitcnt vmcnt(0)",
                 f"  v_readfirstlane_b32 {sNON}, {v(vp)}"] + spin_guard(f"L_back_tag{who}", 1) +
                [f"  s_cmp_eq_u32 {sNON}, 0", f"  s_cbranch_scc1 L_slow_tag{who}", f"  s_branch L_back_tag{who}"])
signals = {}
def signal(word, val, va, vt, off):
    signals[(word, val)] = (E, E.lg_done)
    I(f"v_mov_b32 {v(vt)}, {val}"); DS(f"ds_write_b32 {v(va)}, {v(vt)} offset:{off}", "sig")
nchk = [0]
def chk_issue(va, vt, off):
    nchk[0] += 1; DS(f"ds_read_b32 {v(vt)}, {v(va)} offset:{off}", f"chk{nchk[0]}"); return f"chk{nchk[0]}"
def chk_test(tag, val, va, vt, off, inc):
    E.wait(lg=tag)
    I(f"v_cmp_gt_u32 vcc, {val}, {v(vt)}"); I(f"s_cbranch_vccnz L_slow_{tag}"); E.label(f"L_back_{tag}")
    slow.extend([f"L_slow_{tag}:", f"  ds_read_b32 {v(vt)}, {v(va)} offset:{off}", "  s_waitcnt lgkmcnt(0)", f"  v_cmp_gt_u32 vcc, {val}, {v(vt)}"]
                + spin_guard(f"L_back_{tag}", inc) + [f"  s_cbranch_vccnz L_slow_{tag}", f"  s_branch L_back_{tag}"])
def chk_spin(val, va, vt, off):
    nchk[0] += 1; lbl = f"L_spin{nchk[0]}"
    E.label(lbl)
    DS(f"ds_read_b32 {v(vt)}, {v(va)} offset:{off}", lbl); I(f"s_sub_u32 {sSP2}, {sSP2}, 1"); I("s_cbranch_scc1 L_end")
    E.wait_all(lg=True)
    I(f"v_cmp_gt_u32 vcc, {val}, {v(vt)}"); I(f"s_cbranch_vccnz {lbl}")
def dump_stamps(who):
    if not OPT["lst"]: return
    E.wait_all(vm=True); lstamp("end"); E.wait_all(lg=True)
    n = len(lnames[who])
    for k in range(n): I(f"v_writelane_b32 v2, s{24+2*k}, {k}")
    I(f"v_writelane_b32 v2, {n}, 61"); I("v_writelane_b32 v2, s15, 60"); I("v_writelane_b32 v2, s14, 63")
    I(f"s_lshl3_add_u32 {sT0}, s2, {sW_}"); I(f"s_add_u32 {sT0}, {sT0}, {4 if who == 'H' else 0}"); I(f"s_lshl_b32 {sT0}, {sT0}, 8"); I(f"s_add_u32 {sT0}, {sT0}, {WS_ST}")
    I(f"v_lshlrev_b32 v3, 2, {vLANE}")
    VM(f"buffer_store_dword v2, v3, {SWS}, {sT0} offen")

NU = OPT["NU"]; assert NU == 2

BASE_OF = {}
for i in range(8): BASE_OF[f"X{i}"] = (2 * (i & 3) * U8, 16384)
for i, u in enumerate(range(8, 16)): BASE_OF[f"S{i}"] = (u * U8, 8192)
for i, u in enumerate([0, 3, 6, 9, 0, 3, 12, 15]): BASE_OF[f"G{i}"] = (u * U8, 24576)
DUMPS = [16 * U8, 12 * U8]
BASE_OF["DUMP0"] = (DUMPS[0], 16384); BASE_OF["DUMP1"] = (DUMPS[1], 16384); BASE_OF["XE"] = (XE, 8192); BASE_OF["HS"] = (HS, 10432); BASE_OF["OFT"] = (HS, 8192)
slot_of = {"C1": 3, "C2": 4, "C3": 5, "W1": 0, "W2": 1, "W3": 2, "C0": 6, "W0": 7, "W4": 8, "W5": 3}
RT_ = {"C0": 168, "W0": 184, "W4": 200}
ND = OPT["nd"]
CO = ["C1", "C2", "C3", "C0"]; WO = ["W1", "W2", "W3", "W0", "W4", "W5"]
SK = [["W1"], ["W1", "W4"], []][OPT["skw"]]
jobs = [(t, "sk") for t in CO[:4-ND]] + [(t, "s") for t in CO[4-ND:]] + [(t, "sk" if t in SK else "s") for t in WO] + [(t, "k") for t in WO if t not in SK] + [(t, "k") for t in CO[4-ND:]]
NJ1 = 10
def chunk_items(ch):
    i = ch[1:]
    if ch[0] == "S": return [f"S{i}", f"S{int(i)+1}"]
    return {"K": ["XE"] if ch == "KX" else [], "G": [f"G{i}"]}[ch[0]]
RED = slot_of["C2"] * 16384; assert ND <= 2
CHUNKS = ["S0", "S2", "S4", "S6"] + [f"G{i}" for i in range(4)] + ["KX", "K0", "KA", "KB"]
PHV = {c: k + 1 for k, c in enumerate(CHUNKS)}
CEV = {"G0": 25, "G1": 49, "G2": 74, "G3": 99, "G4": 122, "G5": 145, "U0": OPT["u0s"]}
STAGES = ["Xi", "X", "S3", "S5", "dump"] + sorted(CEV, key=CEV.get) + ["T", "gsa", "gst", "pj"]
PCV = {c: k + 1 for k, c in enumerate(STAGES)}
for n, s in slot_of.items(): BASE_OF[n] = (s * 16384, 16384)

class Item: pass
items = {}
for n, (b, sz) in BASE_OF.items():
    it = Item(); it.name, it.base, it.size = n, b, sz; it.first_bar = None; it.last_read = None; it.reader = None; items[n] = it
bar_names = []
def note_read(name):
    it = items[name]
    if it.first_bar is None: it.first_bar = len(E.barriers)
    it.last_read = len(E.lg); it.last_bar = len(E.barriers); it.reader = E

E = E0
E.label(f"{NAME}_kernel")
I("s_cmp_ge_u32 s2, 256"); I("s_cbranch_scc1 L_end")
I("s_load_dwordx16 s[16:31], s[0:1], 0")
I("s_getpc_b64 s[98:99]"); I(f"s_bfe_u32 {sT0}, s2, 0x20003"); I("v_lshrrev_b32 v80, 3, v0"); I(f"v_lshl_add_u32 v80, v80, 2, {sT0}"); I("v_lshlrev_b32 v80, 7, v80")
VM("global_load_dword v95, v80, s[98:99]", "code")
I("s_load_dwordx16 s[32:47], s[0:1], 64")
I("s_memrealtime s[14:15]")
I("v_lshrrev_b32 v80, 6, v0"); I(f"v_and_b32 {vLANE}, 63, v0"); I(f"v_readfirstlane_b32 {sT3}, v80")
sR8 = "s19" if False else None
if OPT["map"] == 0:
    I(f"s_bfe_u32 {sT0}, s2, 0x20001"); I(f"s_lshr_b32 {sCL}, s2, 6"); I(f"s_lshl2_add_u32 {sC_}, {sT0}, {sCL}")
    I(f"s_bfe_u32 {sGL}, s2, 0x30003"); I(f"s_lshl1_add_u32 {sJ0}, {sCL}, {sGL}")
    I(f"s_and_b32 {sGH}, s2, 1"); I(f"s_lshl3_add_u32 {sG_}, {sGH}, {sGL}"); I(f"s_mov_b32 {sQW}, {sGL}")
    if OPT["xj"]: I(f"s_add_u32 {sJ0}, {sJ0}, {sT0}")
else:
    I(f"s_and_b32 {sT0}, s2, 1"); I(f"s_lshr_b32 {sQW}, s2, 5"); I(f"s_lshl3_add_u32 {sC_}, {sT0}, {sQW}")
    I(f"s_bfe_u32 {sCL}, s2, 0x20003"); I(f"s_bfe_u32 {sT0}, s2, 0x20001"); I(f"s_lshl2_add_u32 {sG_}, {sT0}, {sCL}")
    I(f"s_and_b32 {sGL}, {sG_}, 7"); I(f"s_lshr_b32 {sGH}, {sG_}, 3"); I(f"s_lshl1_add_u32 {sJ0}, {sCL}, {sQW}")
for i in range(2): ktab(i)
I(f"s_and_b32 {sW_}, {sT3}, 3"); I(f"s_lshl_b32 {sM4}, {sW_}, 12")
I(f"v_lshrrev_b32 v81, 3, {vLANE}"); I(f"v_and_b32 v82, 7, {vLANE}")
I("v_lshrrev_b32 v84, 1, v81"); I("v_xor_b32 v83, v82, v84"); I("v_lshlrev_b32 v83, 4, v83"); I("v_xor_b32 v85, 64, v83")
I(f"v_lshlrev_b32 v78, 2, {vLANE}"); I("v_mov_b32 v79, 0"); I(f"v_add_u32 v78, {PRG}, v78"); DS("ds_write_b32 v78, v79", "prz")
I(f"s_mov_b32 {sSP2}, 0x1000000"); I(f"s_and_b32 {sCW}, {sCL}, {3 if OPT['wr'] == 4 else 1}")
I(f"s_cmp_ge_u32 {sT3}, 4"); I("s_cbranch_scc1 L_helper")

E = EC
vP1 = [2, 3, 4, 5]; vGT = 6; vNM = 7; vR2 = 0
FB0, NFB = 8, 6
ACCG = [32, 64, 96]; ACCU = [48, 80, 112]; ACC_R, ACC_I = 96, 112
XF = 128
vXo = [86, 87, 88, 89]
def cbar(name, vm=(), lg=()):
    E.wait(vm=vm, lg=lg); E.barrier(); bar_names.append(name)
I("v_and_b32 v84, 4, v81"); I("v_and_b32 v80, 3, v81"); I("v_lshl_add_u32 v84, v84, 2, v80")
I(f"s_lshl2_add_u32 {sT0}, {sC_}, {sW_}"); I(f"s_lshl_b32 {sT0}, {sT0}, 5")
I(f"v_add_lshl_u32 v84, v84, {sT0}, 10")
I(f"v_add_u32 {v(vXo[0])}, v84, v83"); I(f"v_add_u32 {v(vXo[1])}, v84, v85")
I(f"v_add_u32 {v(vXo[2])}, 6144, {v(vXo[0])}"); I(f"v_add_u32 {v(vXo[3])}, 9216, {v(vXo[1])}"); I(f"v_add_u32 {v(vXo[1])}, 3072, {v(vXo[1])}")
I("s_mov_b32 s50, 2097152"); I("s_mov_b32 s51, 0x20000")
E.wait_all(lg=True)
I("s_mov_b64 s[48:49], s[16:17]")
def X_issue(i):
    I(f"s_add_u32 m0, {sM4}, {items[f'X{i}'].base}")
    for q in range(4): VM(f"buffer_load_dwordx4 {v(vXo[q])}, {SX}, {sK[i]} offen" + (f" offset:{q*1024}" if q else "") + " lds", f"X{i}")
X_issue(0); X_issue(1)
if OPT["prio"] == 1: I("s_setprio 1")
for i in range(2, 8): ktab(i)
X_issue(2)
if OPT["x3"]: X_issue(3)
cbar("b0")
I(f"v_and_b32 v90, 31, {vLANE}"); I(f"v_lshrrev_b32 v91, 5, {vLANE}")
I("v_bfe_u32 v92, v90, 1, 3"); I("v_xor_b32 v92, v92, v91"); I("v_lshlrev_b32 v92, 4, v92"); I("v_lshl_add_u32 v92, v90, 7, v92")
I(f"v_add_u32 {v(vP1[0])}, {sM4}, v92")
for s in range(1, 4): I(f"v_xor_b32 {v(vP1[s])}, {32*s}, {v(vP1[0])}")
I(f"s_mov_b32 {sC11}, 0x3f803f80"); I(f"s_mov_b32 {sC10}, 0x00003f80"); I(f"s_mov_b32 {sC01}, 0x3f800000")
for r in range(64, 72): I(f"v_mov_b32 v{r}, 0")
srd(SWS, 46, WS_SIZE); srd(SOUT, 42, 4194304)
I(f"s_cmp_ge_u32 {sW_}, 2"); srd_sel(SG, 36, 38, 1409024); srd_sel(SC, 26, 28, 524288); I(f"s_mul_i32 {sM6}, {sW_}, 6144"); srd(SWD, 40, 1409024)
I(f"s_mov_b32 {sSPIN}, 0"); I("s_mov_b32 s15, 0"); I("s_mov_b64 s[22:23], s[32:33]"); I("s_mov_b64 s[20:21], s[40:41]")
I(f"v_bfe_u32 v92, {vLANE}, 2, 2"); I("v_lshl_add_u32 v92, v91, 3, v92"); I(f"v_mul_u32_u24 {v(vGT)}, 192, v92")
I(f"v_and_b32 v93, 16, {vLANE}"); I(f"v_lshl_add_u32 {v(vGT)}, v93, 1, {v(vGT)}")
I(f"v_and_b32 v93, 1, {vLANE}"); I(f"v_lshl_add_u32 {v(vGT)}, v93, 4, {v(vGT)}")
I(f"v_and_b32 v93, 2, {vLANE}"); I(f"v_lshl_add_u32 {v(vGT)}, v93, 2, {v(vGT)}")
I(f"s_lshl_b32 {sT0}, {sW_}, 7"); I(f"s_add_u32 {sT0}, {sT0}, {RTAB}")
I("v_bfe_u32 v93, v90, 2, 1"); I("v_lshlrev_b32 v94, 4, v93"); I("v_lshrrev_b32 v93, 3, v90"); I("v_lshl_add_u32 v94, v93, 2, v94")
I("v_and_b32 v93, 3, v90"); I("v_add_u32 v94, v94, v93"); I(f"v_lshl_add_u32 v94, v94, 2, {sT0}")
FR = dict(r=72, t=73, v=74, w=75)
I(f"v_and_b32 v72, 3, {vLANE}"); I("v_lshlrev_b32 v72, 2, v72"); I(f"v_add_u32 v72, {PRG}, v72")
I(f"s_lshl_b32 {sT0}, {sW_}, 2"); I(f"s_add_u32 {sT0}, {sT0}, {PRG}"); I(f"v_mov_b32 v75, {sT0}")
def csig(st): signal("PC", PCV[st], FR["w"], FR["v"], 0)
for i in range(8):
    it = items[f"X{i}"]
    E.wait(vm=it.name)
    for s in range(4):
        DS(f"ds_read_b128 {v(XF + 16*i + 4*s, 4)}, {v(vP1[s])} offset:{it.base & 0xffff}", f"xr{i}_{s}"); note_read(it.name)
    if not OPT["x3"] and i + 3 < 8: X_issue(i + 3)
    if OPT["x3"] and i + 4 < 8: E.wait(lg=f"xr{i}_3"); X_issue(i + 4)
    if i == OPT["xi"]: csig("Xi")
    if i == 4 and OPT["mw"]:
        I(f"s_cmp_eq_u32 {sW_}, 1"); I("s_cselect_b64 s[52:53], s[38:39], s[36:37]"); I(f"s_cmp_eq_u32 {sW_}, 2"); I("s_cselect_b64 s[52:53], s[40:41], s[52:53]")
        I(f"s_cmp_eq_u32 {sW_}, 3"); I("s_cselect_b64 s[52:53], s[26:27], s[52:53]"); I("s_mov_b32 s54, 1409024"); I("s_cselect_b32 s54, 524288, s54"); I("s_mov_b32 s55, 0x20000")
        I(f"s_cselect_b32 {sT0}, 16, 43"); I(f"s_mul_i32 {sT1}, s2, {sT0}"); I(f"s_sub_u32 {sT0}, {sT0}, 1"); I(f"v_min_u32 v76, {sT0}, {vLANE}"); I(f"v_add_lshl_u32 v76, v76, {sT1}, 7")
        VM("buffer_load_dword v77, v76, s[52:55], 0 offen", "mw")
        I("s_mov_b64 s[52:53], s[28:29]"); I(f"s_cmp_eq_u32 {sW_}, 3"); I("s_cselect_b32 s54, 524288, 0")
        VM("buffer_load_dword v77, v76, s[52:55], 0 offen", "mw")
    for s in range(4):
        E.wait(lg=f"xr{i}_{s}")
        for d in range(4):
            x = v(XF + 16*i + 4*s + d)
            I(f"v_dot2c_f32_bf16 v{64+d}, {sC11}, {x}"); I(f"v_dot2c_f32_bf16 v{68+d}, {x}, {x}")
    lstamp(f"X{i}")
csig("X"); gchk = {"S0": chk_issue(FR["r"], FR["t"], 16)}
I("v_add_f32 v64, v64, v65"); I("v_add_f32 v66, v66, v67"); I("v_add_f32 v68, v68, v69")
I("v_add_f32 v64, v64, v66"); I("v_add_f32 v70, v70, v71"); I("v_mov_b32 v65, v64"); I("v_add_f32 v68, v68, v70"); I("v_mov_b32 v69, v68")
I("v_permlane32_swap_b32 v64, v65"); I("v_permlane32_swap_b32 v68, v69")
I("v_add_f32 v64, v64, v65"); I("v_mul_f32 v64, 0x3b000000, v64")
runall(bf16r_ops(65, 64)); I(f"v_sub_f32 {v(vNM)}, 0, v65")
I(f"s_sub_u32 {sT0}, 65536, {sM4}")
for s in range(4): I(f"v_add_u32 {v(vP1[s])}, {sT0}, {v(vP1[s])}")
win = {"p1": 65536, "c1": 0, "gt": 0, "lin": 0, "wt": 0}
def burst(i):
    for d in range(16):
        x = v(XF + 16*i + d)
        I(f"v_dot2_f32_bf16 v{32+2*d}, {x}, {sC10}, {v(vNM)}"); I(f"v_dot2_f32_bf16 v{33+2*d}, {x}, {sC01}, {v(vNM)}")
qC, qB = [], []
marks = set()
def run_op(op):
    if isinstance(op, tuple):
        if op[0] == "hold": holdq[0] = op[1]
        else: marks.add(op[1])
    elif isinstance(op, str): I(op)
    else: op()
def need_mark(m):
    while m not in marks:
        q = next(q for q in (qC, qB) if ("mark", m) in [o for o in q if isinstance(o, tuple)])
        run_op(q.pop(0))
def cvt_ops(i):
    ops = []
    for d in range(16):
        ops.append(f"v_cvt_pk_bf16_f32 {v(XF + 16*i + d)}, v{32+2*d}, v{33+2*d}")
        if d & 3 == 3: ops.append(("mark", f"cen{4*i + (d>>2)}"))
    return ops
B = ["v_add_f32 v68, v68, v69", "v_mul_f32 v68, 0x3b000000, v68", "v_fma_f32 v68, -v64, v64, v68", "v_max_f32 v68, 0, v68"]
B += bf16r_ops(68, 68) + ["v_add_f32 v68, 0x3727c5ac, v68"] + bf16r_ops(68, 68) + ["v_sqrt_f32 v68, v68", lambda: DS("ds_write_b32 v94, v65 offset:512", "tabw")]
B += bf16r_ops(68, 68) + ["v_rcp_f32 v68, v68", lambda: DS("ds_write_b32 v94, v68", "tabw"), f"v_mul_f32 {v(vR2)}, v68, v68", ("mark", "tab")]
qB.extend(B)

class Slot: pass
slots = []
def add_slot(chunk, reads, mfma, needs=()):
    s = Slot(); s.chunk, s.reads, s.mfma, s.needs = chunk, reads, mfma, needs; slots.append(s)
for i in range(8):
    for s in range(4):
        f = 4*i + s
        for comp in range(2):
            acc = v(ACC_I if comp else ACC_R, 16)
            add_slot(f"S{i}", [("p1", f"S{i}", s, comp * 4096)], lambda b, f=f, acc=acc: f"{MF} {acc}, {v(XF+4*f,4)}, {v(b[0],4)}, {acc if f else 0}", needs=[f"cen{f}"])
P2 = len(slots)
order = [(0, s, u, m) for s in range(4) for u in range(2) for m in range(2)] + [(0, s, 2, m) for s in range(4) for m in range(2)]
order += [(i, s, u, m) for i in range(1, 8 - NU) for s in range(4) for u in range(3) for m in range(2)]
order += [(i, s, u, m) for u in range(3) for i in range(8 - NU, 8) for s in range(4) for m in range(2)]
unit_done = {}
for (i, s, u, m) in order:
    f = 4*i + s; acc = v((ACCU if m else ACCG)[u], 16)
    nd = (["tab"] if f == 0 else []) + (["dumped"] if (f, u) == (0, 2) else [])
    add_slot(f"G{i}", [("gt", f"G{i}", m * 12288 + 16*s*192 + 64*u)], lambda b, f=f, acc=acc: f"{MF} {acc}, {v(b[0],4)}, {v(XF+4*f,4)}, {acc if f else 0}", needs=nd)
    unit_done[u] = len(slots) - 1
P3 = len(slots)
ACC3 = 32; BASE = 48
vHST = 138; vDSK = 140; vHR, vWT, vXR, vTAB3, vOUT = 128, 129, 130, 131, 132
sHG = ["s16", "s17", "s18"]
EPO = 144; vC1 = [134, 135, 136, 137]; vC2 = [2, 3, 4, 5]
cGo = [128, 129, 130]; cCo = [132, 133, 134, 135]
ACC4 = 48; ACCS = [64, 80]
AQ = list(range(172, 256, 4)) + list(range(108, 128, 4))
BASE = 144; PX = 108
P3BUFS = list(range(8, 32, 4)) + [96, 100, 104]
vA = 139; vWT2 = 133; vA2 = 7; vPB = 0
aloads = []; started = set()
for n, (t, hv) in enumerate(jobs):
    if n == NJ1: P4 = len(slots)
    for s in range(4):
        idx = {}
        for h_ in hv: idx[h_] = len(aloads); aloads.append((f"a{len(aloads)}", AQ[len(aloads) % len(AQ)], t, s, h_, s == 0 and h_ == hv[0]))
        for a_ in range(2):
            rd = ("c1", t, s, a_) if t[0] == "C" else ("wt", t, 16*s*128, a_)
            for k_, h_ in enumerate(hv):
                r_ = ([ACC3, ACC4] if h_ == "k" else ACCS)[a_]; acc = v(r_, 16)
                z = r_ not in started; started.add(r_)
                tag, q = aloads[idx[h_]][:2]
                add_slot(f"J{n}", [rd] if k_ == 0 else [], lambda b, q=q, acc=acc, z=z: f"{MF} {acc}, {v(q,4)}, {v(b[0],4)}, {0 if z else acc}")
                slots[-1].atag = tag; slots[-1].arel = idx[h_] + 1 if a_ == 1 else None
M = len(slots)
first_slot = {}
for m, s in enumerate(slots): first_slot.setdefault(s.chunk, m)
pool = [FB0 + 4*k for k in range(NFB)]
def newfb(): return pool.pop(0)
def set_win(kind, regs, base, span):
    cur = win[kind]
    if not (cur <= base and base + span <= cur + 65536):
        new = min((base // 49152) * 49152, MISC - 65536)
        if not (new <= base and base + span <= new + 65536): new = base
        for r in regs: I(f"v_add_u32 {v(r)}, {(new - cur) & 0xffffffff}, {v(r)}")
        win[kind] = cur = new
    return cur
def emit_reads(m):
    s = slots[m]; s.bufs = []; s.tags = []; s.own = bool(s.reads)
    if not s.reads: s.bufs = slots[m-1].bufs
    for rd in s.reads:
        b = newfb(); s.bufs.append(b); tag = f"rd{m}_{rd[0]}"; s.tags.append(tag)
        kind, it = rd[0], items[rd[1]]
        if kind == "p1":
            w = set_win(kind, vP1, it.base, it.size); DS(f"ds_read_b128 {v(b,4)}, {v(vP1[rd[2]])} offset:{it.base - w + rd[3]}", tag)
        elif kind == "c1":
            w = set_win(kind, vC1 + vC2, it.base, it.size); DS(f"ds_read_b128 {v(b,4)}, {v((vC2 if rd[3] else vC1)[rd[2]])} offset:{it.base - w}", tag)
        else:
            regs, pitch = ([vGT], 192) if kind == "gt" else ([vWT, vWT2], 128)
            reg = regs[rd[3]] if kind == "wt" else vGT
            w = set_win(kind, regs, it.base, it.size)
            DS(f"ds_read_b64_tr_b16 {v(b,2)}, {v(reg)} offset:{it.base - w + rd[2]}", tag)
            DS(f"ds_read_b64_tr_b16 {v(b+2,2)}, {v(reg)} offset:{it.base - w + rd[2] + 4*pitch}", tag)
        note_read(it.name)
events = {}
def at(m, fn): events.setdefault(m, []).append(fn)
post = {8*i + 7: (lambda i=i: (need_mark(f"cen{4*i+7}"), burst(i + 2), qC.extend(cvt_ops(i + 2)))) for i in range(6)}
at(52, lambda: qB.extend([f"v_lshlrev_b32 {v(vNM)}, 6, {vLANE}", f"v_bfe_u32 v64, {vLANE}, 1, 2", f"v_lshl_add_u32 {v(vNM)}, v64, 4, {v(vNM)}",
                          f"v_add_u32 {v(vNM)}, {sM4}, {v(vNM)}", f"v_add_u32 {v(vNM)}, {DUMPS[1]}, {v(vNM)}", ("mark", "dadr")]))
dtag = {}
at(P2 - 1, lambda: dtag.__setitem__(0, chk_issue(FR["r"], FR["t"], 0)))
def dump_op(j, comp):
    need_mark("dadr")
    if (j, comp) == (0, 1): chk_test(dtag[0], PCV["S5"], FR["r"], FR["t"], 0, -12)
    if j and comp == 0: I(f"v_xor_b32 {v(vNM)}, {16 * (j ^ (j - 1))}, {v(vNM)}")
    DS(f"ds_write_b128 {v(vNM)}, {v((ACC_I if comp else ACC_R) + 4*j, 4)} offset:{DUMPS[comp] - DUMPS[1]}", "dump")
    if (j, comp) == (3, 1): marks.add("dumped")
def dump64(j, comp, hf):
    need_mark("dadr")
    if j and comp == 0 and hf == 0: I(f"v_xor_b32 {v(vNM)}, {16 * (j ^ (j - 1))}, {v(vNM)}")
    if comp == 0 and hf == 0: I(f"v_add_u32 {v(vP1[1])}, {DUMPS[0]}, {v(vNM)}")
    DS(f"ds_write_b64 {v(vNM if comp else vP1[1])}, {v((ACC_I if comp else ACC_R) + 4*j + 2*hf, 2)} offset:{8*hf}", "dump")
    if (j, comp, hf) == (3, 1, 1): marks.add("dumped")
if OPT["d64"]:
    for k in range(16): at(P2 + (k * 15) // 16, lambda k=k: dump64(k >> 2, (k >> 1) & 1, k & 1))
else:
    for k in range(8): at(P2 + 1 + (k * OPT["dsp"]) // 2, lambda k=k: dump_op(k >> 1, k & 1))
def fr_move():
    I(f"v_mov_b32 {v(vP1[0])}, v72"); I(f"v_mov_b32 {v(vP1[3])}, v75"); FR.update(r=vP1[0], t=vP1[1], v=vP1[2], w=vP1[3])
at(P2 - 2, fr_move)
if OPT["mw"]: at(P2 - 3, lambda: E.wait(vm="mw"))
at(31, lambda: csig("S3")); at(47, lambda: csig("S5"))
at(P2 + OPT["bd"], lambda: (need_mark("dumped"), E.wait(lg=["dump", "tabw"]), csig("dump")))
LAND = {"G2": ["G4"], "G3": ["G5", "G6"], "G4": ["G7"]}
for st, sl in CEV.items(): at(P2 + sl, lambda st=st: (E.wait(vm=LAND.get(st, []), lg=["cof2"] if st == "G1" else []), csig(st)))
GATE = {c: (16, PHV[c]) for c in CHUNKS[:8]}
GATE["S0"] = (16, PHV["S2"]); GATE["S4"] = (16, PHV["S6"])
GATE.update({"G4": (0, PCV["G2"]), "G5": (0, PCV["G3"]), "G6": (0, PCV["G4"])})
del GATE["S2"], GATE["S6"]
for c in list(GATE)[1:]: at(first_slot[c] - OPT["D"] - 6, lambda c=c: gchk.__setitem__(c, chk_issue(FR["r"], FR["t"], GATE[c][0])))
cplaced = []
cWo = [168, 169, 170, 171]
def c_offsets():
    I(f"s_lshl_b32 {sT0}, {sW_}, 11"); I(f"s_add_u32 {sT0}, {sT0}, {HS}"); I(f"v_lshl_add_u32 v136, {vLANE}, 4, {sT0}")
    DS("ds_read_b128 v[128:131], v136", "cof"); note_read("OFT")
at(P2 + 24, c_offsets)
at(P2 + 45, lambda: (DS("ds_read_b128 v[132:135], v136 offset:1024", "cof2"), note_read("OFT")))
at(P2 + 76, lambda: qB.extend([lambda: E.wait(lg="cof2"), f"v_readfirstlane_b32 {sNON}, v135", "v_mov_b32 v168, v134"] + [f"v_add_u32 v{168+q}, {7168*q}, v134" for q in range(1, 4)]
                              + ["v_add_u32 v134, 14336, v132", "v_add_u32 v135, 14336, v133"] + q_setup() + [("mark", "cw")]))
def c_load(name, ta, step2, gate=None):
    k = name[0]; i = int(name[1:]); base = items[name].base
    tag = {}
    if gate:
        off, val = (0, PCV[gate]) if gate in PCV else (32, gate)
        at(P2 + ta - 6, lambda: tag.__setitem__(0, chk_issue(FR["r"], 137, off)))
    n = 6 if k == "G" else 4
    for q in range(n):
        def op(q=q):
            if q == 0:
                E.wait(lg="cof")
                if gate: chk_test(tag[0], val, FR["r"], 137, off, -(13 + len(cplaced))); cknown.append(("PC" if off == 0 else "PD", val))
                cplaced.append((name, list(cknown)))
            if k == "G":
                if q % 3 == 0:
                    I(f"s_add_u32 m0, {sM6}, {base + 1024*q}")
                    I(f"s_mul_i32 {sSO}, {sK[i]}, 1376" if q == 0 else f"s_add_u32 {sSO}, {sSO}, {16*2752}")
                VM(f"buffer_load_dwordx4 {v(cGo[q%3])}, {SG}, {sSO} offen" + (f" offset:{(q%3)*1024}" if q % 3 else "") + " lds", name)
            else:
                if q == 0:
                    need_mark("cw"); I(f"s_add_u32 m0, {sM4}, {base}")
                    if k == "C": q_h(sSO, i); I(f"s_lshl_b32 {sSO}, {sSO}, 7")
                    else: w_soff(sSO, i, "s19")
                VM(f"buffer_load_dwordx4 {v((cCo if k == 'C' else cWo)[q])}, {SC if k == 'C' else SWD}, {sSO} offen" + (f" offset:{q*1024}" if q else "") + " lds", name)
        at(P2 + ta + (q * step2) // 2, op)
cknown = []
c_load("G4", 37, 5, "G0"); c_load("G6", 52, 4); c_load("G5", 64, 4, "G1"); c_load("G7", 77, 5); c_load("C1", 93, 4)
c_load("C2", OPT["c1"], 4); c_load("C3", OPT["c1"] + 8, 4);
if OPT["wl"] < 3: c_load("W1", 141, 4)
if OPT["wl"] < 2: c_load("W2", 156, 3, "G5"); c_load("W3", 162, 3)
def st_addr():
    o = [f"s_lshl2_add_u32 {sT0}, {sC_}, {sW_}", f"s_mul_i32 {sT0}, {sT0}, {160*1024}", f"v_lshl_add_u32 {v(vHST)}, {vLANE}, 4, {sT0}", f"s_lshl_b32 {sT0}, {sGL}, 11", f"s_add_u32 {sT0}, {sT0}, {sRA}"]
    o += [f"s_add_u32 {sHG[uu]}, {sT0}, {8*uu*2048}" for uu in range(3)]
    o += [f"s_and_b32 {sT1}, {sW_}, 1", f"s_lshr_b32 {sT2}, {sW_}, 1", f"s_lshl1_add_u32 {sT0}, {sC_}, {sGH}", f"s_lshl1_add_u32 {sT0}, {sT0}, {sT2}",
          f"s_mul_i32 {sT0}, {sT0}, {160*1024}", f"s_lshl_b32 {sT3}, {sT1}, 12", f"s_add_u32 {sT0}, {sT0}, {sT3}", f"v_lshl_add_u32 {v(vA)}, {vLANE}, 4, {sT0}",
          f"v_lshlrev_b32 {v(vDSK)}, 16, v131",
          f"s_mul_i32 {sT0}, {sGH}, {4*160*1024}", f"s_sub_u32 {sT0}, {2*160*1024}, {sT0}", f"v_add_u32 {v(vA2)}, {sT0}, {v(vA)}", ("mark", "sta1")]
    return o
def st_addr2():
    o = [f"s_and_b32 {sT1}, {sW_}, 1", f"s_lshr_b32 {sT2}, {sW_}, 1", f"v_lshrrev_b32 v141, 5, {vLANE}", f"v_and_b32 v143, 31, {vLANE}"]
    o += [f"s_lshl1_add_u32 {sT3}, {sGL}, {sT1}"]
    o += [f"s_lshl_b32 {sT3}, {sT3}, 7", f"s_lshl1_add_u32 {sT0}, {sGH}, {sT2}", f"s_lshl2_add_u32 s13, {sC_}, {sT0}", "s_lshl_b32 s13, s13, 16", f"s_add_u32 s13, s13, {sT3}",
          "v_lshlrev_b32 v142, 15, v141", "v_lshl_add_u32 v142, v143, 2, v142", f"v_add_u32 {v(vOUT)}, s13, v142"]
    o += [f"s_lshl_b32 {sT0}, {sT0}, 7", f"s_add_u32 {sT0}, {sT0}, {RTAB}", f"v_lshl_add_u32 {v(vTAB3)}, v141, 6, {sT0}",
          f"s_lshl_b32 {sT0}, {sT1}, 6", f"s_lshl_b32 {sT3}, {sT2}, 12", f"s_add_u32 {sT3}, {sT3}, {sT0}", f"s_add_u32 {sT3}, {sT3}, {XE}",
          "v_lshlrev_b32 v142, 11, v141", "v_lshl_add_u32 v142, v143, 1, v142", f"v_add_u32 {v(vXR)}, {sT3}, v142",
          f"s_lshl_b32 {sT3}, {sW_}, 12", f"s_add_u32 {sT3}, {sT3}, {RED}", f"v_lshl_add_u32 {v(vHR)}, {vLANE}, 4, {sT3}"]
    o += [f"v_bfe_u32 v142, {vLANE}, 2, 2", "v_lshl_add_u32 v142, v141, 3, v142", "v_lshlrev_b32 v142, 7, v142",
          f"v_and_b32 v6, 16, {vLANE}", "v_lshl_add_u32 v142, v6, 1, v142", f"v_and_b32 v6, 3, {vLANE}", "v_lshl_add_u32 v142, v6, 3, v142",
          f"v_and_b32 v6, 8, {vLANE}", "v_lshlrev_b32 v6, 3, v6", f"v_xor_b32 v6, {sT0}, v6", f"s_lshl_b32 {sT3}, {sT1}, 13", f"v_add3_u32 {v(vWT)}, v142, v6, {sT3}", f"v_xor_b32 {v(vWT2)}, 64, {v(vWT)}"]
    o += [f"s_mul_i32 {sT0}, {sT1}, 12288", "v_bfe_u32 v142, v143, 1, 3", "v_xor_b32 v142, v142, v141", "v_lshlrev_b32 v142, 4, v142", "v_lshl_add_u32 v142, v143, 7, v142",
          f"v_add_u32 {v(vC1[0])}, {sT0}, v142"] + [f"v_xor_b32 {v(vC1[s])}, {32*s}, {v(vC1[0])}" for s in range(1, 4)] + [f"v_xor_b32 {v(vC2[s])}, 4096, {v(vC1[s])}" for s in range(4)] + [("mark", "sta")]
    return o
at(P2 + 120, lambda: qB.extend(st_addr()))
def glu_epi(u):
    ops = []; o = EPO + 8*u
    for j in range(8):
        g0, u0 = ACCG[u] + 2*j, ACCU[u] + 2*j
        ops += [f"v_mul_f32 {v(u0)}, {v(vR2)}, {v(u0)}", f"v_mul_f32 {v(u0+1)}, {v(vR2)}, {v(u0+1)}",
                f"v_mul_f32 {v(u0)}, {v(g0)}, {v(u0)}", f"v_mul_f32 {v(u0+1)}, {v(g0+1)}, {v(u0+1)}", f"v_cvt_pk_bf16_f32 {v(o+j)}, {v(u0)}, {v(u0+1)}"]
        if j & 3 == 3:
            ops.append(lambda fr=j >> 2: VM(f"buffer_store_dwordx4 {v(o + 4*fr, 4)}, {v(vHST)}, {SWS}, {sHG[u]} offen offset:{fr*1024}" + STP, "gst" if u == 2 else "gsa"))
    return ops + [("mark", f"epi{u}")]
for u in range(2): at(unit_done[u] + 3, lambda u=u: qB.extend(glu_epi(u)))
def base_ops():
    ops = [f"v_mov_b32 {v(BASE+r)}, 0" for r in range(16)]
    def rdx(r): DS(f"ds_read_u16_d16_hi {v(BASE+r)}, {v(vXR)} offset:{128*r}", f"xe{r}"); note_read("XE")
    ops += [lambda r=r: rdx(r) for r in range(16)]
    R3, M3, t0, t1, p = 160, 164, 168, 169, 170
    rnd = [f"v_cvt_pk_bf16_f32 {v(p)}, {v(t0)}, {v(t1)}", f"v_lshlrev_b32 {v(t0)}, 16, {v(p)}", f"v_and_b32 {v(t1)}, 0xffff0000, {v(p)}"]
    for j in range(4):
        ops += [lambda j=j: DS(f"ds_read_b128 {v(R3,4)}, {v(vTAB3)} offset:{16*j}", f"r3{j}"), lambda j=j: DS(f"ds_read_b128 {v(M3,4)}, {v(vTAB3)} offset:{512+16*j}", f"m3{j}"),
                ("hold", 3), lambda j=j: E.wait(lg=f"m3{j}")]
        for e in (0, 2):
            r = 4*j + e
            ops += [f"v_sub_f32 {v(t0)}, {v(BASE+r)}, {v(M3+e)}", f"v_sub_f32 {v(t1)}, {v(BASE+r+1)}, {v(M3+1+e)}"] + rnd
            ops += [f"v_mul_f32 {v(t0)}, {v(t0)}, {v(R3+e)}", f"v_mul_f32 {v(t1)}, {v(t1)}, {v(R3+1+e)}"] + rnd
            ops += [f"v_mul_f32 {v(t0)}, {v(t0)}, {v(vDSK)}", f"v_mul_f32 {v(t1)}, {v(t1)}, {v(vDSK)}"] + rnd
            ops += [f"v_add_f32 {v(BASE+r)}, {v(BASE+r)}, {v(t0)}", f"v_add_f32 {v(BASE+r+1)}, {v(BASE+r+1)}, {v(t1)}"]
    return ops + [("mark", "base")]
holdq = [0]

def segment(lo, hi, Dof, lim, pre_bar):
    rn = lo; held = []
    for m in range(lo - 1, hi):
        c0 = E.count + E.nops
        if m >= lo:
            s = slots[m]
            for n in s.needs: need_mark(n)
            tags = list(s.tags)
            if m % 2 == 0 and m + 1 < hi: tags += slots[m+1].tags
            E.wait(vm=[s.atag] if m >= P3 else [], lg=tags)
            I(s.mfma(s.bufs)); c0 = E.count + E.nops
            if s.own: pool.extend(held); held = list(s.bufs)
            if m >= P3:
                if s.arel: adone[0] = max(adone[0], s.arel)
                a_issue(OPT["ar"])
            if first_slot[s.chunk] == m and m < P3: lstamp(s.chunk)
            if OPT["lst"] == 9 and m >= P2 + OPT["l0"] and (m - P2 - OPT["l0"]) % OPT["ld"] == 0: LSET["C"].append(f"m{m-P2}"); lstamp(f"m{m-P2}")
            for fn in events.get(m, []): fn()
        nr = 0
        while rn < hi and rn <= m + Dof(m) and len(pool) >= len(slots[rn].reads) and (nr < 2 or m < lo):
            ch = slots[rn].chunk
            if first_slot[ch] == rn:
                if pre_bar: pre_bar(ch)
                if ch in GATE:
                    chk_test(gchk[ch], GATE[ch][1], FR["r"], FR["t"], GATE[ch][0], -(list(GATE).index(ch) + 1))
                    cknown.append(("PC" if GATE[ch][0] == 0 else "PH", GATE[ch][1]))
            emit_reads(rn); rn += 1; nr += 1
        assert rn >= min(hi, m + 3), (m, rn)
        if m >= lo:
            n = 0
            while qC and (n < 3 or isinstance(qC[0], tuple)): run_op(qC.pop(0)); n += 1
            if holdq[0]: holdq[0] -= 1
            while qB and not holdq[0] and (E.count + E.nops - c0 < lim - (m & 1) or isinstance(qB[0], tuple)): run_op(qB.pop(0))
            if m in post: post[m]()
    pool.extend(held)
retired = set()
def D2(m): return OPT["D"]
anext = [0]; aok = {"C": False, "W": False, "L": False}; adone = [0]
def a_issue(n):
    while n > 0 and anext[0] < len(aloads):
        tag, q, t, s_, h_, first = aloads[anext[0]]
        if not aok["L" if t in ("W4", "W5") else t[0]] or anext[0] - adone[0] >= min(len(AQ), OPT["al"]): return
        if first:
            i = int(t[1:])
            if t[0] == "C": q_h(sSO, i); I(f"s_lshl_b32 {sSO}, {sSO}, 13")
            else:
                q_u(sSO, i); I(f"s_lshl_b32 {sSO}, {sSO}, 13"); I(f"s_add_u32 {sSO}, {sSO}, {sRA}")
        VM(f"buffer_load_dwordx4 {v(q,4)}, {v(vA if h_ == 'k' else vA2)}, {SWS}, {sSO} offen" + (f" offset:{s_*1024}" if s_ else "") + " sc1", tag)
        anext[0] += 1; n -= 1
if OPT["ea"]:
    etag = {}
    at(P2 + OPT["ea"] - 6, lambda: etag.__setitem__(0, chk_issue(FR["r"], FR["t"], 16)))
    at(P2 + OPT["ea"], lambda: (need_mark("sta1"), chk_test(etag[0], PHV["K0"], FR["r"], FR["t"], 16, -11), aok.__setitem__("C", True)))
    for m_ in range(OPT["ea"], 192): at(P2 + m_, lambda: a_issue(1) if anext[0] < 12 else None)
burst(0); runall([o for o in cvt_ops(0) if isinstance(o, str)]); marks.update(f"cen{k}" for k in range(4)); burst(1); qC.extend(cvt_ops(1))
segment(0, P3, D2, 6, None)
PBAR = {"J0": "P0", "J5" if OPT["wl"] < 3 else "J4": "P2", "J8": "P3", "J12": "P4"}
def p3bar(ch):
    if ch in PBAR: cbar("b" + PBAR[ch], vm=[{0: "W3", 2: "W1", 3: "C3"}[OPT["wl"]]])
    lstamp(ch)
for key, val, sl in (("W", "KA", OPT["ka"]), ("L", "KB", OPT["kb"])):
    tg = {}
    at(P3 + sl - 4, lambda tg=tg: tg.__setitem__(0, chk_issue(FR["r"], FR["t"], 16)))
    at(P3 + sl, lambda tg=tg, key=key, val=val: (chk_test(tg[0], PHV[val], FR["r"], FR["t"], 16, -(18 if key == "W" else 19)), aok.__setitem__(key, True), a_issue(OPT["ab"])))
lstamp("T"); csig("T")
need_mark("epi1")
qB.extend(glu_epi(2)); need_mark("epi2"); lstamp("e2")
pool[:] = P3BUFS
sa = st_addr2()
I(f"v_mov_b32 v106, {v(FR['r'])}"); I(f"v_mov_b32 v107, {v(FR['w'])}"); FR.update(r=106, w=107, t=104, v=105); P3BUFS.pop(); pool[:] = P3BUFS
if OPT["ord"] == 0:
    for op in sa: run_op(op)
if not OPT["ea"]: chk_spin(PHV["K0"], FR["r"], FR["t"], 16); aok["C"] = True
lstamp("k0"); a_issue(OPT["a0"])
if OPT["ord"] == 1:
    for op in sa: run_op(op)
E.wait(vm="gsa"); csig("gsa"); lstamp("ga"); a_issue(12)
lstamp("K0")
qB.extend([f"s_lshl4_add_u32 {sT0}, {sC_}, {sG_}", f"s_lshl2_add_u32 {sT0}, {sT0}, {sW_}", f"s_lshl_b32 {sT0}, {sT0}, 12", f"s_add_u32 s20, {sT0}, {WS_PB}", f"s_xor_b32 s21, s20, {8 << 14}",
           "s_mov_b32 s16, 0x07060500", "s_mov_b32 s17, 0x07060501", "s_mov_b32 s18, 0x07060502", "s_mov_b32 s22, 0x07060503", "s_mov_b32 s23, 0x0c0c0400", "s_mov_b32 s53, 0x05040100", f"v_lshlrev_b32 {v(vPB)}, 4, {vLANE}"] + base_ops())
if OPT["gs"] < 0: E.wait(vm="gst"); csig("gst")
else: at(P3 + OPT["gs"], lambda: (E.wait(vm="gst"), csig("gst")))
def reduce_pair(own, other, bar):
    for j in range(4): DS(f"ds_write_b128 {v(vHR)}, {v(other+4*j,4)} offset:{1024*j}", "red" + bar)
    I(f"v_xor_b32 {v(FR['t'])}, 4096, {v(vHR)}")
    cbar(bar, lg=["red" + bar])
    for j in range(4): DS(f"ds_read_b128 {v(other+4*j,4)}, {v(FR['t'])} offset:{1024*j}", f"rr{j}")
if OPT["ovr"]:
    at(P4, lambda: (lstamp("snd"), need_mark("base")))
    for j in range(4): at(P4 + 1 + j // 2, lambda j=j: DS(f"ds_write_b128 {v(vHR)}, {v(ACCS[1]+4*j,4)} offset:{1024*j}", "redbR1"))
    def r1_mid():
        I(f"v_xor_b32 v170, 4096, {v(vHR)}"); I(f"v_mov_b32 v171, {sNON}")
        cbar("bR1", lg=["redbR1"])
        for j in range(4): DS(f"ds_read_b128 {v(ACCS[1]+4*j,4)}, v170 offset:{1024*j}", f"rq{j}")
    def r1_fin(j):
        E.wait(lg=f"rq{j}")
        for e in range(4): I(f"v_add_f32 {v(ACCS[0]+4*j+e)}, {v(ACCS[0]+4*j+e)}, {v(ACCS[1]+4*j+e)}")
        for e in range(4): I(f"v_perm_b32 {v(ACCS[0]+4*j+e)}, {v(ACCS[0]+4*j+e)}, v171, {['s16', 's17', 's18', 's22'][e]}")
        VM(f"buffer_store_dwordx4 {v(ACCS[0]+4*j,4)}, {v(vPB)}, {SWS}, s21 offen offset:{1024*j} sc1", "pst")
    at(P4 + 5, r1_mid)
    for j in range(4): at(P4 + 7 + j, lambda j=j: r1_fin(j))
else:
    segment(P3, P4, lambda m: OPT["D3"], 8, p3bar)
    lstamp("snd")
    need_mark("base")
    reduce_pair(ACCS[0], ACCS[1], "bR1")
    I(f"v_mov_b32 v171, {sNON}")
    for j in range(4):
        E.wait(lg=f"rr{j}")
        for e in range(4): I(f"v_add_f32 {v(ACCS[0]+4*j+e)}, {v(ACCS[0]+4*j+e)}, {v(ACCS[1]+4*j+e)}")
        for e in range(4): I(f"v_perm_b32 {v(ACCS[0]+4*j+e)}, {v(ACCS[0]+4*j+e)}, v171, {['s16', 's17', 's18', 's22'][e]}")
        VM(f"buffer_store_dwordx4 {v(ACCS[0]+4*j,4)}, {v(vPB)}, {SWS}, s21 offen offset:{1024*j} sc1", "pst")
pl_ld = [f"buffer_load_dwordx4 {v(80+4*j,4)}, {v(vPB)}, {SWS}, s20 offen offset:{1024*j} sc1" for j in range(4)]
at(M - 1 - OPT["pl"], lambda: [VM(t_, "pld") for t_ in pl_ld])
segment(P3 if OPT["ovr"] else P4, M, lambda m: OPT["D3"], 8, p3bar)
assert not qC and not qB and anext[0] == len(aloads)
RT2 = jobs[10][0]; RED2 = slot_of[RT2] * 16384
I(f"v_add_u32 {v(vHR)}, {(RED2 - RED) & 0xffffffff}, {v(vHR)}")
reduce_pair(ACC3, ACC4, "bR2")
for r in range(16): I(f"v_add_f32 {v(ACC3+r)}, {v(ACC3+r)}, {v(BASE+r)}")
chkp = []
for j in range(4):
    b_ = 80 + 4*j
    chkp += [f"v_perm_b32 v65, v{b_+1}, v{b_}, s23", f"v_perm_b32 v66, v{b_+3}, v{b_+2}, s23", "v_perm_b32 v65, v66, v65, s53",
             "v_xor_b32 v64, v171, v65" if j == 0 else "v_xor_b32 v65, v171, v65"] + ([] if j == 0 else ["v_or_b32 v64, v64, v65"])
chkp.append("v_cmp_ne_u32 vcc, 0, v64")
E.wait(vm="pld")
for c_ in chkp: I(c_)
I("s_cbranch_vccnz L_slow_p"); E.label("L_back_p"); lstamp("kp")
slow.extend(["L_slow_p:", ] + ["  " + t_ for t_ in pl_ld] + ["  s_waitcnt vmcnt(0)"] + ["  " + c_ for c_ in chkp] + spin_guard("L_back_p", -10) + ["  s_cbranch_vccnz L_slow_p", "  s_branch L_back_p"])
I("s_mov_b32 s16, 0xffffff00")
for r in range(16): I(f"v_and_b32 {v(80+r)}, s16, {v(80+r)}"); I(f"v_add_f32 {v(ACC3+r)}, {v(ACC3+r)}, {v(80 + r)}")
lstamp("last")
for r in range(16):
    if r % 4 == 0: E.wait(lg=f"rr{r>>2}")
    I(f"v_add_f32 {v(ACC3+r)}, {v(ACC3+r)}, {v(ACC4+r)}")
    if r % 2 == 0: I(f"s_mov_b32 {sT0}, {(r>>1)*4096}")
    VM(f"buffer_store_dword {v(ACC3+r)}, {v(vOUT)}, {SOUT}, {sT0} offen offset:{(r&1)*2048}" + (" sc1" if OPT["osc"] else ""), "out")
dump_stamps("C")
I("s_endpgm")

E = EH
E.label("L_helper")
vSo = [2, 3]; vGo = [4, 5, 6]; vCo = [8, 9, 10, 11]; vWo = [12, 13, 14, 15]; vHo = 16; vXEo = [17, 18]
vFLS, vFLP, vPOLL, vFLX = 19, 20, 21, 7
vLR, vCR, vL16, vL128, vL256, vPQ = 22, 24, 26, 28, 30, 32
vE, vE2, vP = 34, 36, 38
vEQA, vEST, vEF, vEX, vZA, vHSW, vHSR, vHSTo, vDA, vTAB = 40, 41, 42, 44, 46, 47, 48, 49, 50, 54
TR, TI, RT, TMP = 96, 112, 128, 144
vF16, vF256 = 56, 58
vQR, vQT, vQV, vQW = 160, 161, 162, 163
vDB = 164; vUP = 76
live = [items[f"X{i}"] for i in range(4, 8)]
known = {id(EC): 0, id(EH): 0}
def hplace(name):
    it = items[name]
    for o in list(live):
        if o.base < it.base + it.size and it.base < o.base + o.size:
            assert known[id(o.reader)] >= o.last_read, ("WAR", name, o.name)
            live.remove(o)
    live.append(it); return it
def adv11(s): I(f"s_add_u32 {s}, {s}, 1"); I(f"s_cmp_eq_u32 {s}, 11"); I(f"s_cselect_b32 {s}, 0, {s}")
cur_m0 = [None]
SOFF = {"G": "s16", "C": "s17", "W": "s18"}
def item_ops(name):
    k = name.rstrip("0123456789"); i = int(name[len(k):] or 0)
    so = SOFF.get(k)
    srd_, sm, voffs, pol = {"S": (SS, sM2, vSo, ""), "G": (SG, sM6, vGo, ""), "C": (SC, sM4, vCo, ""), "H": (SWS, sM4, [vHo]*4, " sc1"),
                            "W": (SWD, sM4, vWo, ""), "HG": (SWS, sM4, [vHo]*4, " sc1"), "XE": (SX, sM2, vXEo, "")}[k]
    prep = {"G": lambda: I(f"s_mul_i32 {so}, {sK[i]}, 1376"), "C": lambda: (q_h(so, i), I(f"s_lshl_b32 {so}, {so}, 7")),
            "W": lambda: w_soff(so, i, sSO)}.get(k, lambda: None)
    if so is None: so = "0" if k == "XE" else sK[i]
    ops = []
    for half in range(2 if k == "G" else 1):
        for q in range(len(voffs)):
            def op(half=half, q=q):
                if name in RT_:
                    if q == 0: prep()
                    VM(f"buffer_load_dwordx4 {v(RT_[name] + 4*q, 4)}, {v(voffs[q])}, {srd_}, {so} offen" + (f" offset:{q*1024}" if q else ""), name)
                    return
                if (half, q) == (0, 0): hplace(name)
                m0 = (sm, items[name].base + 3072 * half)
                if cur_m0[0] != m0: I(f"s_add_u32 m0, {sm}, {m0[1]}"); cur_m0[0] = m0
                if (half, q) == (0, 0): prep()
                if (half, q) == (1, 0): I(f"s_add_u32 {so}, {so}, {16*2752}")
                VM(f"buffer_load_dwordx4 {v(voffs[q])}, {srd_}, {so} offen" + (f" offset:{q*1024}" if q else "") + f"{pol} lds", name)
            ops.append(op)
    last = ops[-1]
    ops[-1] = lambda: (last(), done_issue.__setitem__(name, True))
    return ops
done_issue = {}
def issue(name, between=lambda: None):
    for op in item_ops(name): op(); between()
def unpark(name):
    hplace(name); E.wait(vm=name)
    I(f"v_add_u32 {v(vUP+1)}, {items[name].base}, {v(vUP)}")
    for q in range(4): DS(f"ds_write_b128 {v(vUP+1)}, {v(RT_[name] + 4*q, 4)} offset:{q*1024}", "up" + name)
def issue_mix(miss, *hits):
    mo = item_ops(miss); ho = [op for h in hits for op in item_ops(h)]
    for k, op in enumerate(mo):
        op()
        for h in ho[k * len(ho) // len(mo):(k + 1) * len(ho) // len(mo)]: h()
def flag_send(so): VM(f"buffer_store_dword v61, {v(vFLS)}, {SWS}, {so} offen sc1", "flag")
MBOX = {"s20": WS_FH - WS_FH, "s21": WS_FG - WS_FH, "s19": WS_FP - WS_FH}
def poll_issue(so, tag): pass
def poll_check(so, tag, inc):
    E.wait_all(lg=True)
    I(f"s_cmp_lg_u32 {sW_}, 0"); I(f"s_cbranch_scc1 L_back_{tag}")
    E.begin_cond()
    E.label(f"L_poll_{tag}")
    I(f"s_load_dwordx8 s[40:47], s[72:73], {MBOX[so]} glc"); I(f"s_sub_u32 {sSP2}, {sSP2}, 8"); I("s_cbranch_scc1 L_end"); I("s_waitcnt lgkmcnt(0)")
    for k in range(4, 8): I(f"s_xor_b64 s[{32+2*k}:{33+2*k}], s[{32+2*k}:{33+2*k}], s[74:75]")
    for a_, b_ in ((40, 42), (44, 46), (40, 44)): I(f"s_or_b64 s[{a_}:{a_+1}], s[{a_}:{a_+1}], s[{b_}:{b_+1}]")
    I(f"s_cbranch_scc1 L_poll_{tag}")
    E.end_cond(); E.label(f"L_back_{tag}")
I(f"s_and_b32 {sT1}, {sW_}, 1"); I(f"s_lshl1_add_u32 {sT0}, {sG_}, {sT1}"); I(f"s_lshl_b32 {sT0}, {sT0}, 4")
I(f"v_add_lshl_u32 v84, v81, {sT0}, 10")
I(f"v_add_u32 {v(vSo[0])}, v84, v83"); I(f"v_add_u32 {v(vSo[1])}, v84, v85"); I(f"v_add_u32 {v(vSo[1])}, 7168, {v(vSo[1])}")
I(f"s_lshl_b32 {sM2}, {sW_}, 11")
E.wait_all(lg=True)
I(f"s_cmp_ge_u32 {sW_}, 2"); srd_sel(SS, 22, 24, 524288); srd_sel(SG, 36, 38, 1409024); srd_sel(SC, 26, 28, 524288)
issue("S0"); issue("S1"); E.barrier()
if OPT["prio"] == 2: I("s_setprio 1")
I(f"s_lshl2_add_u32 {sT0}, {sG_}, {sW_}"); I(f"s_lshl_b32 {sT0}, {sT0}, 3"); I(f"v_add_lshl_u32 v87, v82, {sT0}, 1")
VM("global_load_ushort v70, v87, s[30:31]", "par"); VM("global_load_ushort v71, v87, s[18:19]", "par"); VM("global_load_ushort v72, v87, s[20:21]", "par")
I(f"s_lshl1_add_u32 {sT0}, {sGL}, {sT1}"); I(f"s_lshl_b32 {sT0}, {sT0}, 5"); I(f"v_and_b32 v87, 31, {vLANE}"); I(f"v_add_lshl_u32 v87, v87, {sT0}, 1")
VM("global_load_ushort v7, v87, s[32:33]", "par")
srd(SDBG, 44, 256)
I(f"s_or_b32 {sT0}, s2, {sW_}"); I("s_cbranch_scc1 L_notag")
E.begin_cond()
I("s_or_b32 s13, s14, 1"); I("s_mul_i32 s13, s13, 0x9E3779B1"); I("v_mov_b32 v93, s13"); I("v_mov_b32 v94, 0"); I("s_mov_b64 exec, 1")
VM(f"buffer_store_dword v93, v94, {SDBG}, 0 offen sc1"); I("s_mov_b64 exec, -1")
E.end_cond(); E.label("L_notag")
for i in range(2, 8): ktab(i)
srd(SX, 16, 2097152); srd(SWD, 40, 1409024); srd(SWS, 46, WS_SIZE)
if OPT["sp"]:
    I(f"s_lshl4_add_u32 {sT0}, {sC_}, {sG_}"); I(f"s_lshl_b32 {sT0}, {sT0}, 7"); I(f"s_add_u32 {sT0}, {sT0}, {WS_FH}"); I(f"s_add_u32 s72, s46, {sT0}"); I("s_addc_u32 s73, s47, 0")
def warm():
    if not OPT["tw"]: return
    srd(SOUT, 42, 4194304)
    I("v_mov_b32 v92, 0"); I(f"s_lshl2_add_u32 {sT0}, {sC_}, {sW_}"); I(f"s_mul_i32 {sT0}, {sT0}, {160*1024}")
    I(f"s_lshr_b32 {sT2}, {sG_}, 1"); I(f"s_lshl_b32 {sT2}, {sT2}, 13"); I(f"s_add_u32 {sT0}, {sT0}, {sT2}"); I(f"s_and_b32 {sT2}, {sG_}, 1"); I(f"s_lshl_b32 {sT2}, {sT2}, 11"); I(f"s_add_u32 {sT0}, {sT0}, {sT2}")
    I(f"s_mov_b32 {sT2}, {WS_EB + 0x30000}"); I(f"s_lshl_b32 {sT3}, {sC_}, 18")
    I("s_mov_b64 exec, 1")
    for sr, so in ((SG, "0"), (SC, "0"), (SWD, "0"), (SWS, sT0), (SWS, sT2), (SOUT, sT3)):
        VM(f"buffer_load_dword v95, v92, {sr}, {so} offen sc1", "tw")
    I("s_mov_b64 exec, -1")
def setup1():
    I(f"s_mov_b32 {sSPIN}, 0"); I("s_mov_b32 s15, 0"); I(f"s_mul_i32 {sM6}, {sW_}, 6144")
    I(f"s_mul_i32 {sT0}, {sT1}, {32*2752}"); I(f"s_mul_i32 {sT2}, {sG_}, 192"); I(f"s_add_u32 {sT0}, {sT0}, {sT2}")
    I(f"s_mul_i32 {sT2}, {sG_}, 3"); I(f"s_mov_b32 {sT3}, 2752"); I(f"v_mov_b32 v90, {OOB}")
    for i in range(3):
        I(f"v_add_u32 v88, {64*i}, {vLANE}"); I("v_mul_u32_u24 v86, 43691, v88"); I("v_lshrrev_b32 v86, 19, v86")
        I("v_mul_u32_u24 v87, 12, v86"); I("v_sub_u32 v87, v88, v87")
        I(f"v_mul_lo_u32 v86, v86, {sT3}"); I("v_lshl_add_u32 v86, v87, 4, v86"); I(f"v_add_u32 v86, {sT0}, v86")
        I("v_lshrrev_b32 v87, 2, v87"); I(f"v_add_u32 v87, {sT2}, v87"); I("v_cmp_gt_u32 vcc, 43, v87")
        if i: I(f"v_subrev_u32 v86, {1024*i}, v86")
        I(f"v_cndmask_b32 {v(vGo[i])}, v90, v86, vcc")
    I(f"s_lshl2_add_u32 {sT0}, {sGL}, {sT1}"); I(f"s_lshl_b32 {sT2}, {sG_}, 1"); I(f"s_sub_u32 {sT0}, {sT0}, {sT2}"); I(f"s_lshl_b32 {sT0}, {sT0}, 14")
    I(f"v_add_u32 {v(vCo[0])}, {sT0}, {v(vSo[0])}"); I(f"v_add_u32 {v(vCo[1])}, {sT0}, {v(vSo[1])}")
    I(f"v_add_u32 {v(vCo[2])}, {2*7168}, {v(vCo[0])}"); I(f"v_add_u32 {v(vCo[3])}, {2*7168}, {v(vCo[1])}")

def setup1b():
    I(f"s_and_b32 {sT1}, {sW_}, 1")
    I("v_lshlrev_b32 v86, 4, v82"); I("v_lshl_add_u32 v86, v81, 10, v86"); I(f"v_and_b32 v87, 16, {vLANE}"); I("v_lshlrev_b32 v87, 2, v87"); I("v_xor_b32 v87, v86, v87")
    I(f"s_lshl_b32 {sT3}, {sGL}, 7"); I(f"v_add_u32 {v(vWo[0])}, {sT3}, v87")
    for q in range(1, 4): I(f"v_add_u32 {v(vWo[q])}, {7168*q}, {v(vWo[0])}")
    I(f"s_lshl1_add_u32 s13, {sC_}, {sGH}"); I(f"s_lshl2_add_u32 {sT0}, s13, {sW_}"); I(f"s_lshl_b32 {sT0}, {sT0}, 14"); I(f"s_add_u32 {sT0}, {sT0}, {sT3}")
    I(f"v_add_u32 {v(vXEo[0])}, {sT0}, v86"); I(f"v_add_u32 {v(vXEo[1])}, 7168, {v(vXEo[0])}")
    I(f"s_lshr_b32 {sT2}, {sW_}, 1"); I(f"s_lshl1_add_u32 {sT0}, s13, {sT2}"); I(f"s_mul_i32 {sT0}, {sT0}, {160*1024}"); I(f"s_lshl_b32 {sT3}, {sT1}, 12"); I(f"s_add_u32 {sT0}, {sT0}, {sT3}")
    I(f"v_lshl_add_u32 {v(vHo)}, {vLANE}, 4, {sT0}")
    I(f"s_cmp_eq_u32 {sW_}, 0"); I(f"s_cselect_b32 {sT2}, 8, 0"); I(f"v_cmp_gt_u32 vcc, {sT2}, {vLANE}")
    I(f"s_lshl1_add_u32 {sT0}, {sC_}, {sGH}"); I(f"s_lshl_b32 {sT0}, {sT0}, 10"); I(f"s_lshl2_add_u32 {sT3}, {sGL}, {sT0}"); I(f"v_lshl_add_u32 v86, {vLANE}, 7, {sT3}")
    I(f"v_cndmask_b32 {v(vFLS)}, v90, v86, vcc")
    I(f"s_mov_b32 s20, {WS_FH}"); I(f"s_mov_b32 s21, {WS_FG}")

def setup2():
    o = []
    A = o.append
    A(f"s_lshl_b32 {sT0}, {sW_}, 10"); A(f"s_add_u32 {sT0}, {sT0}, {EQ}"); A(f"v_lshl_add_u32 {v(vEQA)}, {vLANE}, 3, {sT0}")
    A("v_mov_b32 v88, 0"); A("v_mov_b32 v89, 0"); A(lambda: DS(f"ds_write_b64 {v(vEQA)}, v[88:89]", "eqz"))
    A(f"v_lshl_add_u32 {v(vZA)}, v82, 3, {sT0}")
    A(f"s_lshl_b32 {sT0}, {sW_}, 9"); A(f"v_lshlrev_b32 v86, 11, v81"); A("v_lshl_add_u32 v86, v82, 6, v86"); A("v_lshrrev_b32 v87, 1, v82")
    A("v_lshl_add_u32 v86, v87, 4, v86"); A(f"v_add_u32 {v(vDA)}, {sT0}, v86")
    for j in range(1, 4): A(f"v_xor_b32 {v(vDA+j)}, {16*j}, {v(vDA)}")
    for j in range(4): A(f"v_add_u32 {v(vDB+j)}, {DUMPS[1]}, {v(vDA+j)}")
    A(f"v_lshlrev_b32 {v(vTAB)}, 6, v81"); A(f"v_add_u32 {v(vTAB)}, {RTAB}, {v(vTAB)}")
    A(f"s_lshl_b32 {sT0}, {sG_}, 13"); A(f"s_lshl_b32 {sT2}, {sW_}, 7"); A(f"s_add_u32 {sT0}, {sT0}, {sT2}"); A(f"s_add_u32 {sT0}, {sT0}, {WS_EB}")
    A(f"v_lshl_add_u32 v86, v82, 4, {sT0}")
    A(f"s_lshl_b32 {sT2}, {sC_}, 9"); A(f"v_add_u32 {v(vEST)}, {sT2}, v86"); A(lambda: (I("v_cmp_eq_u32 vcc, 7, v81"), I(f"v_cndmask_b32 {v(vEST)}, v90, {v(vEST)}, vcc")))
    A(f"s_sub_u32 {sT2}, {sC_}, 16"); A(f"v_lshl_add_u32 v87, v81, 1, {sT2}")
    A(f"v_lshl_add_u32 {v(vEF)}, v87, 9, v86"); A(f"v_add_u32 {v(vEF+1)}, 512, {v(vEF)}")
    A(lambda: (I("v_cmp_le_i32 vcc, 0, v87"), I(f"v_cndmask_b32 {v(vEF)}, v90, {v(vEF)}, vcc"), I(f"v_cndmask_b32 {v(vEX)}, 0, -1, vcc")))
    A(lambda: (I("v_cmp_le_i32 vcc, -1, v87"), I(f"v_cndmask_b32 {v(vEF+1)}, v90, {v(vEF+1)}, vcc"), I(f"v_cndmask_b32 {v(vEX+1)}, 0, -1, vcc")))
    A(f"s_mul_i32 {sT0}, {sW_}, 2608"); A(f"s_add_u32 {sT0}, {sT0}, {HS}")
    A("v_mul_u32_u24 v86, 336, v82"); A("v_lshl_add_u32 v86, v81, 5, v86"); A(f"v_add_u32 {v(vHSW)}, {sT0}, v86")
    A(f"v_bfe_u32 v86, {vLANE}, 2, 2"); A("v_mul_u32_u24 v86, 336, v86"); A(f"v_and_b32 v87, 32, {vLANE}"); A("v_lshl_add_u32 v86, v87, 1, v86")
    A(f"v_and_b32 v87, 1, {vLANE}"); A("v_lshl_add_u32 v86, v87, 5, v86"); A(f"v_and_b32 v87, 16, {vLANE}"); A("v_add_u32 v86, v86, v87")
    A(f"v_and_b32 v87, 2, {vLANE}"); A("v_lshl_add_u32 v86, v87, 2, v86"); A(f"v_add_u32 {v(vHSR)}, {sT0}, v86")
    A(f"s_mul_i32 {sT0}, {sC_}, {4*160}"); A(f"s_lshr_b32 {sT2}, {sG_}, 1"); A(f"s_lshl3_add_u32 {sT0}, {sT2}, {sT0}"); A(f"s_and_b32 {sT2}, {sG_}, 1")
    A(f"s_lshl1_add_u32 {sT0}, {sT2}, {sT0}"); A(f"s_lshl_b32 {sT0}, {sT0}, 10"); A(f"s_lshl_b32 {sT2}, {sW_}, 9"); A(f"s_add_u32 {sT0}, {sT0}, {sT2}")
    A(f"v_lshrrev_b32 v86, 5, {vLANE}"); A(f"v_mul_u32_u24 v86, {160*1024}, v86"); A(f"v_and_b32 v87, 31, {vLANE}"); A("v_lshl_add_u32 v86, v87, 4, v86"); A(f"v_add_u32 {v(vHSTo)}, {sT0}, v86")
    LOG2E = "0x3fb8aa3b"
    A(lambda: E.wait(vm="par"))
    o += ["v_lshlrev_b32 v70, 16, v70", "v_lshlrev_b32 v71, 16, v71", "v_lshlrev_b32 v72, 16, v72",
          f"v_mul_f32 v70, {LOG2E}, v70", "v_exp_f32 v70, v70", "v_mul_f32 v74, v71, v71"] + bf16r_ops(70, 70)
    o += ["v_mul_f32 v75, v70, v71", "v_mul_f32 v76, v70, v72", f"v_mul_f32 v75, {LOG2E}, v75", "v_exp_f32 v75, v75",
          "v_mul_f32 v76, 0.15915494, v76", "v_rndne_f32 v77, v76", "v_sub_f32 v76, v76, v77", "v_cos_f32 v77, v76", "v_sin_f32 v78, v76",
          "v_fmac_f32 v74, v72, v72", f"v_mul_f32 {v(vLR)}, v75, v77", "v_mul_f32 v78, v75, v78", "v_rcp_f32 v74, v74",
          f"v_add_f32 v77, -1.0, {v(vLR)}", "v_add_f32 v74, v74, v74",
          f"v_mul_f32 {v(vCR)}, v77, v71", f"v_fmac_f32 {v(vCR)}, v78, v72", f"v_mul_f32 {v(vCR)}, {v(vCR)}, v74",
          f"v_mul_f32 {v(vCR+1)}, v77, v72", f"v_fma_f32 {v(vCR+1)}, -v78, v71, {v(vCR+1)}", f"v_mul_f32 {v(vCR+1)}, {v(vCR+1)}, v74",
          f"v_sub_f32 {v(vLR+1)}, 0, v78"]
    o += csq_ops(70, vLR, 78) + csq_ops(72, 70, 78) + csq_ops(70, 72, 78) + csq_ops(vL16, 70, 78)
    o += csq_ops(70, vL16, 78) + csq_ops(72, 70, 78) + csq_ops(vL128, 72, 78) + csq_ops(vL256, vL128, 78)
    o += [f"v_mov_b32 {v(vPQ)}, {v(vCR)}", f"v_mov_b32 {v(vPQ+1)}, {v(vCR+1)}"]
    for bit, L in ((8, vL16), (16, 70), (32, 72)):
        o += [f"v_and_b32 v74, {bit}, {vLANE}", lambda L=L: (I("v_cmp_ne_u32 vcc, 0, v74"), I(f"v_cndmask_b32 v76, 1.0, {v(L)}, vcc"), I(f"v_cndmask_b32 v77, 0, {v(L+1)}, vcc"))]
        o += cmul_ops(vPQ, vPQ, 76, 78)
    def factor(F, Ls):
        r = []
        for n, (bit, L) in enumerate(zip((8, 16, 32), Ls)):
            d = F if n == 0 else 76
            r += [f"v_and_b32 v74, {bit}, {vLANE}", lambda L=L, d=d: (I("v_cmp_eq_u32 vcc, 0, v74"), I(f"v_cndmask_b32 {v(d)}, 1.0, {v(L)}, vcc"), I(f"v_cndmask_b32 {v(d+1)}, 0, {v(L+1)}, vcc"))]
            if n: r += cmul_ops(F, F, 76, 78)
        return r
    o += factor(vF16, (vL16, 70, 72))
    o += csq_ops(70, vL256, 78) + csq_ops(72, 70, 78) + factor(vF256, (vL256, 70, 72))
    return o
def allsum(a_, b_, t):
    o = [f"v_add_f32_dpp {v(t)}, {v(a_)}, {v(a_)} row_ror:8 row_mask:0xf bank_mask:0xf", f"v_add_f32_dpp {v(t+1)}, {v(b_)}, {v(b_)} row_ror:8 row_mask:0xf bank_mask:0xf",
         f"v_mov_b32 {v(a_)}, {v(t)}", f"v_mov_b32 {v(b_)}, {v(t+1)}",
         f"v_permlane16_swap_b32 {v(a_)}, {v(t)}", f"v_permlane16_swap_b32 {v(b_)}, {v(t+1)}",
         f"v_add_f32 {v(a_)}, {v(a_)}, {v(t)}", f"v_add_f32 {v(b_)}, {v(b_)}, {v(t+1)}",
         f"v_mov_b32 {v(t)}, {v(a_)}", f"v_mov_b32 {v(t+1)}, {v(b_)}",
         f"v_permlane32_swap_b32 {v(a_)}, {v(t)}", f"v_permlane32_swap_b32 {v(b_)}, {v(t+1)}",
         f"v_add_f32 {v(a_)}, {v(a_)}, {v(t)}", f"v_add_f32 {v(b_)}, {v(b_)}, {v(t+1)}"]
    return o
def cmul4(d, x, y):
    return [f"v_mul_f32 {v(d[0])}, {v(x[0])}, {v(y)}", f"v_mul_f32 {v(d[1])}, {v(x[0])}, {v(y+1)}",
            f"v_fma_f32 {v(d[0])}, -{v(x[1])}, {v(y+1)}, {v(d[0])}", f"v_fmac_f32 {v(d[1])}, {v(x[1])}, {v(y)}"]
def ssm1():
    o = []
    def rdd(j, comp): DS(f"ds_read_b128 {v((TI if comp else TR) + 4*j, 4)}, {v(vDB+j)} offset:{DUMPS[comp] - DUMPS[1]}", f"dr{j}"); note_read(f"DUMP{comp}")
    for j in range(4):
        o += [lambda j=j: DS(f"ds_read_b128 {v(RT + 4*j, 4)}, {v(vTAB)} offset:{16*j}", f"dr{j}"), lambda j=j: rdd(j, 0), lambda j=j: rdd(j, 1)]
    cur, nx = (vE, vE + 1), (vE2, vE2 + 1)
    for r in range(16):
        if r % 4 == 0: o.append(lambda j=r >> 2: E.wait(lg=f"dr{j}"))
        o += [f"v_mul_f32 {v(TR+r)}, {v(TR+r)}, {v(RT+r)}", f"v_mul_f32_e64 {v(TI+r)}, -{v(TI+r)}, {v(RT+r)}"]
        if r == 0: src = (TR, TI)
        else:
            o += cfma_ops(nx, vLR, src, TR + r, TI + r); src = nx; cur, nx = nx, cur
    assert src == (vE2, vE2 + 1)
    o += cmul4((60, 62), src, vF16) + allsum(60, 62, 64)
    o.append(lambda: (VM(f"buffer_store_dwordx4 v[60:63], {v(vEST)}, {SWS}, 0 offen sc1", "est"), lstamp("epub")))
    return o
def window():
    o = [lambda: DS(f"ds_write_b64 {v(vEQA)}, {v(vE2,2)} offset:{7*64}", "eqw")]
    o += [lambda i=i: DS(f"ds_read_b64 {v(TMP+2*i,2)}, {v(vEQA)} offset:{64*i}", "eq") for i in range(7)]
    for r in range(16):
        o += [f"v_mul_f32 v72, {v(vCR+1)}, {v(TI+r)}", f"v_mul_f32 {v(TI+r)}, {v(vCR)}, {v(TI+r)}",
              f"v_fmac_f32 {v(TI+r)}, {v(vCR+1)}, {v(TR+r)}", f"v_fma_f32 {v(TR+r)}, {v(vCR)}, {v(TR+r)}, -v72"]
    o.append(lambda: E.wait(lg="eq"))
    src = (TMP, TMP + 1); pp = [(vE2, vE2 + 1), (vE, vE + 1)]
    for i in range(1, 7):
        d = pp[i & 1]; o += cfma_ops(d, vL16, src, TMP + 2*i, TMP + 2*i + 1); src = d
    return o + cmul4((vP, vP + 1), src, vCR)
def efetch_issue():
    VM(f"buffer_load_dwordx4 v[64:67], {v(vEF)}, {SWS}, 0 offen sc1", "ef"); VM(f"buffer_load_dwordx4 v[68:71], {v(vEF+1)}, {SWS}, 0 offen sc1", "ef")
def ssm3():
    chk = [f"v_xor_b32 v72, v65, {v(vEX)}", f"v_xor_b32 v73, v67, {v(vEX)}", f"v_xor_b32 v74, v69, {v(vEX+1)}", "v_or3_b32 v72, v72, v73, v74",
           f"v_xor_b32 v73, v71, {v(vEX+1)}", "v_or_b32 v72, v72, v73", "v_cmp_ne_u32 vcc, 0, v72"]
    def check():
        E.wait(vm="ef")
        for c in chk: I(c)
        I("s_cbranch_vccnz L_slow_e"); E.label("L_back_e"); lstamp("eok")
        slow.extend(["L_slow_e:",  f"  buffer_load_dwordx4 v[64:67], {v(vEF)}, {SWS}, 0 offen sc1", f"  buffer_load_dwordx4 v[68:71], {v(vEF+1)}, {SWS}, 0 offen sc1",
                     "  s_waitcnt vmcnt(0)"] + ["  " + c for c in chk] + spin_guard("L_back_e", 0x100) + ["  s_cbranch_vccnz L_slow_e", "  s_branch L_back_e"])
    o = [check] + cfma_ops((vE, vE + 1), vL128, (64, 66), 68, 70)
    o += cmul4((vE2, vE2 + 1), (vE, vE + 1), vF256) + allsum(vE2, vE2 + 1, 72)
    src = (vE2, vE2 + 1)
    o += cfma_ops((vE, vE + 1), vPQ, src, vP, vP + 1)
    src = (vE, vE + 1)
    for r in range(16):
        d = (TR + r, TI + r); o += cfma_ops(d, vLR, src, d[0], d[1]); src = d
        if r & 1: o += [f"v_cvt_pk_bf16_f32 {v(TMP + (r>>1))}, {v(TR+r-1)}, {v(TR+r)}", f"v_cvt_pk_bf16_f32 {v(TMP + 8 + (r>>1))}, {v(TI+r-1)}, {v(TI+r)}"]
    for comp in range(2):
        o += [lambda j=j, comp=comp: DS(f"ds_write_b128 {v(vHSW)}, {v(TMP + 8*comp + 4*j, 4)} offset:{16*j}", "hsw") for j in range(2)]
        for i in range(2):
            for ph in range(2):
                def rd(i=i, ph=ph, comp=comp):
                    DS(f"ds_read_b64_tr_b16 {v(RT + 8*comp + 4*i + 2*ph, 2)}, {v(vHSR)} offset:{4*ph*336 + 128*i}", f"hr{comp}{i}"); note_read("HS")
                o.append(rd)
    for comp in range(2):
        for i in range(2):
            def st(i=i, comp=comp):
                I(f"s_mov_b32 {sT0}, {2*i*160*1024 + comp*4096}"); E.wait(lg=f"hr{comp}{i}")
                VM(f"buffer_store_dwordx4 {v(RT + 8*comp + 4*i, 4)}, {v(vHSTo)}, {SWS}, {sT0} offen" + STP, "hst")
            o.append(st)
    o.append(lambda: lstamp("hst"))
    return o
work = []
def pop_work(n):
    while n > 0 and work: runall([work.pop(0)]); n -= 1
def between(n=8): return lambda: pop_work(n)
live.append(items["OFT"])
I(f"v_and_b32 {v(vQR)}, 3, {vLANE}"); I(f"v_lshlrev_b32 {v(vQR)}, 2, {v(vQR)}"); I(f"v_add_u32 {v(vQR)}, {PRG}, {v(vQR)}"); I(f"v_mov_b32 {v(vQV)}, 0")
I(f"s_lshl_b32 {sT0}, {sW_}, 2"); I(f"s_add_u32 {sT0}, {sT0}, {PRG}"); I(f"v_mov_b32 {v(vQW)}, {sT0}")
issue("S2"); issue("S3"); lstamp("b0")
def hchk(word, st):
    off = {"PC": 0, "PD": 32}[word]; val = PCV[st] if word == "PC" else st
    chk_spin(val, vQR, vQT, off)
    em, lg = signals[(word, val)]; known[id(em)] = max(known[id(em)], lg)
published = [0]
def pub(ch):
    assert PHV[ch] > published[0]
    E.wait(vm=[n for c in CHUNKS[published[0]:PHV[ch]] for n in chunk_items(c)]); signal("PH", PHV[ch], vQW, vQV, 16); published[0] = PHV[ch]
def auto_pub(lead):
    best = None
    for c in CHUNKS[published[0]:]:
        if all(n in E.vm and done_issue.get(n) and len(E.vm) - E.last(E.vm, n) >= lead for n in chunk_items(c)): best = c
        else: break
    if best: pub(best)
def s47():
    for n in ("S4", "S5", "S6", "S7"): issue(n)
if OPT["xi"] < 0: s47()
pub("S2")
setup1()
I(f"s_lshl_b32 {sT0}, {sW_}, 11"); I(f"s_add_u32 {sT0}, {sT0}, {HS}"); I(f"v_lshl_add_u32 v86, {vLANE}, 4, {sT0}")
E.wait(vm="par"); DS("ds_write_b128 v86, v[4:7]", "oft"); I("v_mov_b32 v92, v86"); E.wait(lg="oft")
if OPT["xi"] >= 0: hchk("PC", "Xi"); s47()
w2 = setup2(); runall(w2[:OPT["w2a"]])
hchk("PC", "X"); lstamp("xd")
I("v_mov_b32 v91, 0"); VM(f"buffer_load_dword {v(vPOLL)}, v91, {SDBG}, 0 offen sc1", "tag")
issue("G0"); pub("S6"); runall(w2[OPT["w2a"]:OPT["w2b"]]); issue("G1"); runall(w2[OPT["w2b"]:]); pub("G0"); hchk("PC", "S3"); issue("G2"); pub("G1"); issue("G3"); setup1b()
tag_check("H", vPOLL, 88)
I(f"s_mov_b32 s74, {sNON}"); I(f"s_mov_b32 s75, {sNON}")
runall([f"v_mov_b32 v61, {sNON}", f"v_mov_b32 v63, {sNON}", f"v_and_b32 {v(vEX)}, {sNON}, {v(vEX)}", f"v_and_b32 {v(vEX+1)}, {sNON}, {v(vEX+1)}",
        f"v_lshl_add_u32 {v(vUP)}, {vLANE}, 4, {sM4}"])
known[id(EC)] = max(known[id(EC)], signals[("PC", PCV["S5"])][1]); hplace("DUMP0"); hplace("DUMP1")
DS("ds_write_b64 v92, v[8:9] offset:1024", "oft"); DS("ds_write_b32 v92, v12 offset:1032", "oft"); DS("ds_write_b32 v92, v61 offset:1036", "oft")
runall(q_setup()); issue("C0"); issue("W0")
if OPT["w1e"]: issue("W4")
I(f"s_setprio {OPT['pb']}")
hchk("PC", "dump"); lstamp("bD")
ncp = [0]
def code_touch():
    ncp[0] += 1
    I("s_getpc_b64 s[54:55]"); E.label(f"L_pc{ncp[0]}")
    I(f"s_sub_u32 s54, s54, L_pc{ncp[0]}-{NAME}_kernel"); I("s_subb_u32 s55, s55, 0")
    I(f"s_and_b32 {sT0}, {sGL}, 3"); I("v_and_b32 v78, 0xfc, v0"); I(f"v_or_b32 v78, {sT0}, v78"); I("v_lshlrev_b32 v78, 7, v78")
    VM("global_load_dword v79, v78, s[54:55]", "code")
def pass2():
    t0 = OPT["bd"] + 2
    s1, wn, s3 = ssm1(), window(), ssm3()
    ins = []
    def spread(name, ta, tb, pre=None):
        holder = {}
        n = 6 if name[0] == "G" else 4
        for k in range(n):
            def f(k=k):
                if k == 0:
                    if pre: hchk(*pre)
                    holder["ops"] = item_ops(name)
                holder["ops"][k]()
            ins.append((ta + (tb - ta) * k / n, f))
    ins.append((OPT["pg2"], lambda: (E.wait(lg="dr3"), pub("G2")))); ins.append((48, lambda: pub("G3")))
    ins.sort(key=lambda x: x[0])
    t = [float(t0)]
    def cyc(): return E.nvec * OPT["vc"] / 10.0 + (E.count + E.nops - E.nvec) * 4.0
    def adv(c0): t[0] += (cyc() - c0) / 33.0
    def run(ops):
        for op in ops:
            while ins and ins[0][0] <= t[0]:
                c0 = cyc(); ins.pop(0)[1](); adv(c0)
            c0 = cyc(); runall([op]); adv(c0)
    def idle_until(tt):
        while ins and ins[0][0] <= tt: t[0] = max(t[0], ins[0][0]); ins.pop(0)[1]()
        t[0] = max(t[0], tt)
    run(s1); tpub = t[0]
    k = 0
    while k < len(wn) and t[0] < tpub + OPT["efd"]: run([wn[k]]); k += 1
    efetch_issue(); lstamp("ef"); tf = t[0]
    if OPT["cp"] & 1: code_touch()
    run(wn[k:]); hchk("PC", "G1"); hplace("HS")
    tc = t[0]
    I(f"s_setprio {OPT['pc']}"); run(s3); ts = t[0]; assert not ins
    E.wait(vm="hst"); signal("PD", 2, vQW, vQV, 32); hchk("PD", 2); flag_send("s20"); lstamp("hflag")
    if OPT.get("log"): print(f"helper est: epub {tpub:.0f} efetch {tf:.0f} check {tc:.0f} stores {ts:.0f}", file=sys.stderr)
pass2()
issue("XE")
if not OPT["w1e"]: issue("W4")
if OPT["cp"] & 2: code_touch()
pub("KX")
for name, kn in cplaced:
    save = dict(known); known.update({id(EC): 0, id(EH): 0})
    for w_, val in kn:
        em, lg = signals[(w_, val)]; known[id(em)] = max(known[id(em)], lg)
    hplace(name); done_issue[name] = True; known.update(save)
I(f"s_setprio {OPT['pd']}")
if OPT["ep"]:
    hchk("PC", "U0"); poll_issue("s20", "ph"); poll_check("s20", "ph", 0x10000); lstamp("okh"); pub("K0")
I(f"s_mov_b32 s19, {WS_FP}")
hchk("PC", "T"); lstamp("gT")
unpark("C0"); I("s_setprio 2")
hchk("PC", "gsa"); flag_send("s19"); lstamp("fa"); I(f"s_setprio {OPT['pd']}")
wl_ = list(("W1", "W2", "W3")[3 - OPT["wl"]:])
if OPT["u0"]: unpark("W0")
for k, bn in enumerate(bar_names[1:]):
    E.wait(vm={"bP3": ["W5"], "bP2": wl_}.get(bn, []), lg={"bP0": ["upC0"], "bP2": ["upW0"], "bP3": ["upW4"]}.get(bn, [])); E.barrier()
    known[id(EC)] = max(known[id(EC)], EC.barriers[k + 1][1])
    if bn == "bP0":
        poll_check("s19", "pa", 0x1); lstamp("oka"); pub("KA")
        I("s_setprio 2"); hchk("PC", "gst"); flag_send("s21"); I(f"s_setprio {OPT['pd']}")
        for n_ in wl_: issue(n_)
        if not OPT["u0"]: unpark("W0")
        poll_check("s21", "pg", 0x1000000); lstamp("okg"); pub("KB")
    if bn == "bP2": issue("W5"); unpark("W4")
    if bn == "bP3": assert known[id(EC)] >= min(items["C2"].last_read, 10**9)
    if bn == "bP4": assert known[id(EC)] >= items[RT2].last_read
assert len(EH.barriers) == len(EC.barriers)
dump_stamps("H")
E.label("L_end"); I("s_endpgm")

DOC = """; Fused LayerNorm + S5 scan + bilinear GLU, one launch, 256 workgroups (one per CU), written by dev/gen15.py.
;                        then the output GEMM for 128 rows x 64 columns over one half of K; the partner
;                        workgroup (c, g^8) holds the other half and the two swap 64x64 partial tiles.
;   waves 4-7 (helper):  LDS-DMA loads, exact chunked scan (local end states exchanged between row blocks),
;                        hand-off flags.  Every hand-off carries a per-launch tag published through d_debug.
"""
hdr = open("cdna_kernels/" + NAME + ".s.ref").read().split("; Override launch geometry")[0]
out = hdr
if OPT["lst"]: out += "; cstamps: " + " ".join(lnames["C"]) + "\n; hstamps: " + " ".join(lnames["H"]) + f"\n; rt: {OPT['rt']}\n"
out += f"; @launch grid=(256,1,1) block=(512,1,1) lds={LDS_BYTES}\n"
out += DOC
out += f'.amdgcn_target "amdgcn-amd-amdhsa--gfx950"\n.text\n.globl {NAME}_kernel\n.p2align 8\n.type {NAME}_kernel,@function\n'
kc = next(k for k, l in enumerate(EC.lines) if "v_and_b32 v90, 31" in l)
out += E0.text() + "\n".join(EC.lines[:kc]) + "\n  s_branch L_cmain\n" + EH.text() + "L_cmain:\n" + "\n".join(EC.lines[kc:]) + "\n" + "\n".join(slow) + "\n"
out += f"L_pad:\n.fill (37120 - (L_pad - {NAME}_kernel)) / 4, 4, 0xbf810000\n"
out += f""".section .rodata,"a"
.p2align 6
.amdhsa_kernel {NAME}_kernel
  .amdhsa_next_free_vgpr 256
  .amdhsa_next_free_sgpr 102
  .amdhsa_accum_offset 256
  .amdhsa_group_segment_fixed_size 0
  .amdhsa_kernarg_size 128
  .amdhsa_user_sgpr_count 2
  .amdhsa_user_sgpr_kernarg_segment_ptr 1
  .amdhsa_system_sgpr_workgroup_id_x 1
.end_amdhsa_kernel
"""
open(sys.argv[1], "w").write(out)
print(f"compute {EC.count}+{EC.nops} helper {EH.count}+{EH.nops} barriers {len(bar_names)}: {' '.join(bar_names)}", file=sys.stderr)
```

```python
import sys
from emit import Emitter
NAME = "parallel_sum__ssm_conv_s5__glu_gated_bilinear__prompt"
OPT = dict(lst=0, rt=1, D=4, D2=7, D3=6, NU=2, gfd=40, prio=1, bd=15, ipc=85, slp=2, slq=0, wl=2, ovr=0, cp=0, sp=2, dsp=3, efn=90, rot=8, lead=12, ge=0, gf=1, gg=5, gp=2, mw=0, ar=1, nr=8, bk=12, c34=1, f0=0, f2=1, pw=0, pd=2, nwt=0, a0=6, al=16, nb=60, gs=0, tw=0, osc=1, d64=0, w2a=20, w2b=110, pb=0, c1=117, c45=1, u0s=170, xi=-1, pc=2, map=0, xj=1, nd=2, skw=2, gj=7, pjd=10, ea=0, pl=14, w1e=0, xw=1, ct=1, stg=0, x3=0, wr=4, pg2=21, ep=1, ord=1, ka=20, kb=56, ab=2, u0=1, pls=0, pll=0, bal=1, vc=85, efd=35, ecd=20)
for a_ in sys.argv[2:]:
    k_, v_ = a_.split("="); OPT[k_] = int(v_)

WS_EB = 0xA00000; WS_FH = 0xA40000; WS_FG = 0xA48000; WS_ST = 0xC00000; WS_FP = 0xA50000; WS_PB = 0x1000000; WS_SIZE = 0x1800000
U8 = 8192; MISC = 18 * U8
RTAB = MISC; EQ = MISC + 1024; HS = MISC + 5120; XE = MISC + 5120
DUMP = 0
PRG = MISC + 15872
LDS_BYTES = 163840
OOB = 0x80000000
sW_, sC_, sG_, sGL, sGH, sJ0 = "s3", "s4", "s5", "s6", "s7", "s8"
sT0, sT1, sT2, sT3 = "s9", "s10", "s11", "s12"
SX, SS, SG, SC, SWD, SWS, SOUT, SDBG = ("s[48:51]", "s[52:55]", "s[56:59]", "s[60:63]", "s[64:67]", "s[68:71]", "s[72:75]", "s[76:79]")
sK = [f"s{80+i}" for i in range(8)]
sM4, sM2, sM6 = "s88", "s89", "s94"
sQW, sQHG, sSO = "s95", "s96", "s100"
sNON, sC10, sC01, sC11 = "s90", "s91", "s92", "s93"
sSPIN = "s97"; sSP2 = "s99"; sCL = "s101"
sCW = "s98"; WMUL = {4: 3, 2: 6, 1: 0}[OPT["wr"]]
sRA = "s52"
def q_setup(): return [f"s_add_u32 {sQW}, {sGL}, {sCL}", f"s_mul_i32 {sRA}, {sGH}, {6*8192}", f"s_add_u32 {sRA}, {sRA}, 65536"]
def q_h(so, i): I(f"s_add_u32 {so}, {sQW}, {i}"); I(f"s_and_b32 {so}, {so}, 3"); I(f"s_lshl2_add_u32 {so}, {sGH}, {so}")
def q_u(so, i):
    I(f"s_add_u32 {so}, {sQW}, {i}"); I(f"s_and_b32 {so}, {so}, {3 if i < 4 else 1}")
    if i >= 4: I(f"s_add_u32 {so}, {so}, 4")
def w_soff(so, i, tmp):
    q_u(tmp, i); I(f"s_lshl2_add_u32 {tmp}, {tmp}, {sW_}"); I(f"s_and_b32 {so}, {tmp}, 7"); I(f"s_lshl3_add_u32 {so}, {sGH}, {so}"); I(f"s_mul_i32 {so}, {so}, 3")
    I(f"s_lshr_b32 {tmp}, {tmp}, 3"); I(f"s_add_u32 {so}, {so}, {tmp}")
    if OPT["bal"]:
        I(f"s_sub_u32 {tmp}, {so}, 22"); I(f"s_cmp_lt_u32 {tmp}, 2"); I(f"s_cselect_b32 {so}, 64, {so}"); I(f"s_lshl_b32 {tmp}, {sGH}, 1"); I(f"s_sub_u32 {so}, {so}, {tmp}")
    I(f"s_lshl_b32 {so}, {so}, 15")
STP = [" sc1", "", " nt"][OPT["pls"]]
vLANE = "v1"
MF = "v_mfma_f32_32x32x16_bf16"
def v(n, k=1): return f"v{n}" if k == 1 else f"v[{n}:{n+k-1}]"

EC, EH, E0 = Emitter(), Emitter(), Emitter()
E = E0
def I(t): return E.I(t)
def VM(t, tag=None): return E.VM(t, tag)
def DS(t, tag=None): return E.DS(t, tag)
slow = []
lnames = {"C": [], "H": []}
def lstamp(name):
    who = "C" if E is EC else "H"
    if OPT["lst"] and name in LSET[who] and len(lnames[who]) < 12:
        k = 24 + 2 * len(lnames[who]); lnames[who].append(name); I(f"{'s_memrealtime' if OPT['rt'] else 's_memtime'} s[{k}:{k+1}]")
LSETS = {0: ([], []),
         1: (["X6", "X7", "S0", "G0", "G4", "T", "J0", "J4", "snd", "kp", "last", "end"], ["b0", "xd", "bD", "epub", "ef", "eok", "hst", "hflag", "okh", "gT", "okg", "end"]),
         2: (["S0", "S2", "S4", "S6", "G0", "G1", "G2", "G3", "G4", "G5", "G6", "T"], ["b0", "xd", "bD", "epub", "ef", "eok", "hst", "hflag", "okh", "gT", "okg", "end"]),
         3: (["T", "K0", "J0", "J2", "J4", "J7", "snd", "J10", "J13", "kp", "last", "end"], ["b0", "xd", "bD", "epub", "ef", "eok", "hst", "hflag", "okh", "gT", "okg", "end"])}
LSETS[9] = ([], LSETS[1][1])
LSETS[4] = (["T", "e2", "k0", "ga", "K0", "J0", "J1", "J2", "J3", "J4", "J5", "J6"], [])
LSETS[5] = (["J6", "J7", "J8", "J9", "snd", "J10", "J12", "J14", "J16", "J17", "kp", "last"], [])
LSET = dict(zip("CH", LSETS[OPT["lst"]])); LSET["H"] = ["bD", "epub", "eok", "hst", "hflag", "okh", "fa", "oka"]
def runall(ops):
    for op in ops:
        if isinstance(op, str): I(op)
        else: op()
def csq_ops(d, x, t):
    return [f"v_mul_f32 {v(t)}, {v(x+1)}, {v(x+1)}", f"v_add_f32 {v(t+1)}, {v(x)}, {v(x)}", f"v_fma_f32 {v(d)}, {v(x)}, {v(x)}, -{v(t)}", f"v_mul_f32 {v(d+1)}, {v(t+1)}, {v(x+1)}"]
def cmul_ops(d, x, y, t):
    return [f"v_mul_f32 {v(t)}, {v(x)}, {v(y)}", f"v_mul_f32 {v(t+1)}, {v(x)}, {v(y+1)}",
            f"v_fma_f32 {v(t)}, -{v(x+1)}, {v(y+1)}, {v(t)}", f"v_fma_f32 {v(d+1)}, {v(x+1)}, {v(y)}, {v(t+1)}", f"v_mov_b32 {v(d)}, {v(t)}"]
def cfma_ops(d, L, x, br, bi):
    return [f"v_fma_f32 {v(d[0])}, {v(L)}, {v(x[0])}, {v(br)}", f"v_fma_f32 {v(d[1])}, {v(L)}, {v(x[1])}, {v(bi)}",
            f"v_fma_f32 {v(d[0])}, -{v(L+1)}, {v(x[1])}, {v(d[0])}", f"v_fma_f32 {v(d[1])}, {v(L+1)}, {v(x[0])}, {v(d[1])}"]
def bf16r_ops(d, s): return [f"v_cvt_pk_bf16_f32 {v(d)}, {v(s)}, {v(s)}", f"v_and_b32 {v(d)}, 0xffff0000, {v(d)}"]
def srd(dst, lo, size):
    n = int(dst[2:dst.index(":")])
    I(f"s_mov_b64 s[{n}:{n+1}], s[{lo}:{lo+1}]"); I(f"s_mov_b32 s{n+2}, {size}"); I(f"s_mov_b32 s{n+3}, 0x20000")
def srd_sel(dst, p0, p1, size):
    n = int(dst[2:dst.index(":")])
    I(f"s_cselect_b64 s[{n}:{n+1}], s[{p1}:{p1+1}], s[{p0}:{p0+1}]"); I(f"s_mov_b32 s{n+2}, {size}"); I(f"s_mov_b32 s{n+3}, 0x20000")
def ktab(i):
    I(f"s_add_u32 {sK[i]}, {sJ0}, {i}"); I(f"s_and_b32 {sK[i]}, {sK[i]}, 7"); I(f"s_lshl_b32 {sK[i]}, {sK[i]}, 7")
def spin_guard(lbl_back, inc):
    return ([f"  s_add_u32 s15, s15, {inc}" if inc >= 0 else f"  s_bitset1_b32 s15, {-inc}"] if OPT["lst"] else []) + [f"  s_add_u32 {sSPIN}, {sSPIN}, 1", f"  s_cmp_gt_u32 {sSPIN}, 0x200000", f"  s_cbranch_scc1 {lbl_back}"]
def tag_check(who, vp, vz):
    E.wait(vm="tag"); I(f"v_readfirstlane_b32 {sNON}, {v(vp)}"); I(f"s_cmp_eq_u32 {sNON}, 0"); I(f"s_cbranch_scc1 L_slow_tag{who}"); E.label(f"L_back_tag{who}")
    slow.extend([f"L_slow_tag{who}:", "  s_sleep 1", f"  v_mov_b32 {v(vz)}, 0", f"  buffer_load_dword {v(vp)}, {v(vz)}, {SDBG}, 0 offen sc1", "  s_waitcnt vmcnt(0)",
                 f"  v_readfirstlane_b32 {sNON}, {v(vp)}"] + spin_guard(f"L_back_tag{who}", 1) +
                [f"  s_cmp_eq_u32 {sNON}, 0", f"  s_cbranch_scc1 L_slow_tag{who}", f"  s_branch L_back_tag{who}"])
signals = {}
def signal(word, val, va, vt, off):
    signals[(word, val)] = (E, E.lg_done)
    I(f"v_mov_b32 {v(vt)}, {val}"); DS(f"ds_write_b32 {v(va)}, {v(vt)} offset:{off}", "sig")
nchk = [0]
def chk_issue(va, vt, off):
    nchk[0] += 1; DS(f"ds_read_b32 {v(vt)}, {v(va)} offset:{off}", f"chk{nchk[0]}"); return f"chk{nchk[0]}"
def chk_test(tag, val, va, vt, off, inc):
    E.wait(lg=tag)
    I(f"v_cmp_gt_u32 vcc, {val}, {v(vt)}"); I(f"s_cbranch_vccnz L_slow_{tag}"); E.label(f"L_back_{tag}")
    slow.extend([f"L_slow_{tag}:", f"  ds_read_b32 {v(vt)}, {v(va)} offset:{off}", "  s_waitcnt lgkmcnt(0)", f"  v_cmp_gt_u32 vcc, {val}, {v(vt)}"]
                + spin_guard(f"L_back_{tag}", inc) + [f"  s_cbranch_vccnz L_slow_{tag}", f"  s_branch L_back_{tag}"])
def chk_spin(val, va, vt, off):
    nchk[0] += 1; lbl = f"L_spin{nchk[0]}"
    E.label(lbl)
    DS(f"ds_read_b32 {v(vt)}, {v(va)} offset:{off}", lbl); I(f"s_sub_u32 {sSP2}, {sSP2}, 1"); I("s_cbranch_scc1 L_end")
    E.wait_all(lg=True)
    I(f"v_cmp_gt_u32 vcc, {val}, {v(vt)}"); I(f"s_cbranch_vccnz {lbl}")
def dump_stamps(who):
    if not OPT["lst"]: return
    E.wait_all(vm=True); lstamp("end"); E.wait_all(lg=True)
    n = len(lnames[who])
    for k in range(n): I(f"v_writelane_b32 v2, s{24+2*k}, {k}")
    I(f"v_writelane_b32 v2, {n}, 61"); I("v_writelane_b32 v2, s15, 60"); I("v_writelane_b32 v2, s14, 63")
    I(f"s_lshl3_add_u32 {sT0}, s2, {sW_}"); I(f"s_add_u32 {sT0}, {sT0}, {4 if who == 'H' else 0}"); I(f"s_lshl_b32 {sT0}, {sT0}, 8"); I(f"s_add_u32 {sT0}, {sT0}, {WS_ST}")
    I(f"v_lshlrev_b32 v3, 2, {vLANE}")
    VM(f"buffer_store_dword v2, v3, {SWS}, {sT0} offen")

NU = OPT["NU"]; assert NU == 2

BASE_OF = {}
for i in range(8): BASE_OF[f"X{i}"] = (2 * (i & 3) * U8, 16384)
for i, u in enumerate(range(8, 16)): BASE_OF[f"S{i}"] = (u * U8, 8192)
for i, u in enumerate([0, 3, 6, 9, 0, 3, 12, 15]): BASE_OF[f"G{i}"] = (u * U8, 24576)
DUMPS = [16 * U8, 12 * U8]
BASE_OF["DUMP0"] = (DUMPS[0], 16384); BASE_OF["DUMP1"] = (DUMPS[1], 16384); BASE_OF["XE"] = (XE, 8192); BASE_OF["HS"] = (HS, 10432); BASE_OF["OFT"] = (HS, 8192)
slot_of = {"C1": 3, "C2": 4, "C3": 5, "W1": 0, "W2": 1, "W3": 2, "C0": 6, "W0": 7, "W4": 8, "W5": 3}
RT_ = {"C0": 168, "W0": 184, "W4": 200}
ND = OPT["nd"]
CO = ["C1", "C2", "C3", "C0"]; WO = ["W1", "W2", "W3", "W0", "W4", "W5"]
SK = [["W1"], ["W1", "W4"], []][OPT["skw"]]
jobs = [(t, "sk") for t in CO[:4-ND]] + [(t, "s") for t in CO[4-ND:]] + [(t, "sk" if t in SK else "s") for t in WO] + [(t, "k") for t in WO if t not in SK] + [(t, "k") for t in CO[4-ND:]]
NJ1 = 10
def chunk_items(ch):
    i = ch[1:]
    if ch[0] == "S": return [f"S{i}", f"S{int(i)+1}"]
    return {"K": ["XE"] if ch == "KX" else [], "G": [f"G{i}"]}[ch[0]]
RED = slot_of["C2"] * 16384; assert ND <= 2
CHUNKS = ["S0", "S2", "S4", "S6"] + [f"G{i}" for i in range(4)] + ["KX", "K0", "KA", "KB"]
PHV = {c: k + 1 for k, c in enumerate(CHUNKS)}
CEV = {"G0": 25, "G1": 49, "G2": 74, "G3": 99, "G4": 122, "G5": 145, "U0": OPT["u0s"]}
STAGES = ["Xi", "X", "S3", "S5", "dump"] + sorted(CEV, key=CEV.get) + ["T", "gsa", "gst", "pj"]
PCV = {c: k + 1 for k, c in enumerate(STAGES)}
for n, s in slot_of.items(): BASE_OF[n] = (s * 16384, 16384)

class Item: pass
items = {}
for n, (b, sz) in BASE_OF.items():
    it = Item(); it.name, it.base, it.size = n, b, sz; it.first_bar = None; it.last_read = None; it.reader = None; items[n] = it
bar_names = []
def note_read(name):
    it = items[name]
    if it.first_bar is None: it.first_bar = len(E.barriers)
    it.last_read = len(E.lg); it.last_bar = len(E.barriers); it.reader = E

E = E0
E.label(f"{NAME}_kernel")
I("s_cmp_ge_u32 s2, 256"); I("s_cbranch_scc1 L_end")
I("s_load_dwordx16 s[16:31], s[0:1], 0")
I("s_getpc_b64 s[98:99]"); I(f"s_bfe_u32 {sT0}, s2, 0x20003"); I("v_lshrrev_b32 v80, 3, v0"); I(f"v_lshl_add_u32 v80, v80, 2, {sT0}"); I("v_lshlrev_b32 v80, 7, v80")
VM("global_load_dword v95, v80, s[98:99]", "code")
I("s_load_dwordx16 s[32:47], s[0:1], 64")
I("s_memrealtime s[14:15]")
I("v_lshrrev_b32 v80, 6, v0"); I(f"v_and_b32 {vLANE}, 63, v0"); I(f"v_readfirstlane_b32 {sT3}, v80")
sR8 = "s19" if False else None
if OPT["map"] == 0:
    I(f"s_bfe_u32 {sT0}, s2, 0x20001"); I(f"s_lshr_b32 {sCL}, s2, 6"); I(f"s_lshl2_add_u32 {sC_}, {sT0}, {sCL}")
    I(f"s_bfe_u32 {sGL}, s2, 0x30003"); I(f"s_lshl1_add_u32 {sJ0}, {sCL}, {sGL}")
    I(f"s_and_b32 {sGH}, s2, 1"); I(f"s_lshl3_add_u32 {sG_}, {sGH}, {sGL}"); I(f"s_mov_b32 {sQW}, {sGL}")
    if OPT["xj"]: I(f"s_add_u32 {sJ0}, {sJ0}, {sT0}")
else:
    I(f"s_and_b32 {sT0}, s2, 1"); I(f"s_lshr_b32 {sQW}, s2, 5"); I(f"s_lshl3_add_u32 {sC_}, {sT0}, {sQW}")
    I(f"s_bfe_u32 {sCL}, s2, 0x20003"); I(f"s_bfe_u32 {sT0}, s2, 0x20001"); I(f"s_lshl2_add_u32 {sG_}, {sT0}, {sCL}")
    I(f"s_and_b32 {sGL}, {sG_}, 7"); I(f"s_lshr_b32 {sGH}, {sG_}, 3"); I(f"s_lshl1_add_u32 {sJ0}, {sCL}, {sQW}")
for i in range(2): ktab(i)
I(f"s_and_b32 {sW_}, {sT3}, 3"); I(f"s_lshl_b32 {sM4}, {sW_}, 12")
I(f"v_lshrrev_b32 v81, 3, {vLANE}"); I(f"v_and_b32 v82, 7, {vLANE}")
I("v_lshrrev_b32 v84, 1, v81"); I("v_xor_b32 v83, v82, v84"); I("v_lshlrev_b32 v83, 4, v83"); I("v_xor_b32 v85, 64, v83")
I(f"v_lshlrev_b32 v78, 2, {vLANE}"); I("v_mov_b32 v79, 0"); I(f"v_add_u32 v78, {PRG}, v78"); DS("ds_write_b32 v78, v79", "prz")
I(f"s_mov_b32 {sSP2}, 0x1000000"); I(f"s_and_b32 {sCW}, {sCL}, {3 if OPT['wr'] == 4 else 1}")
I(f"s_cmp_ge_u32 {sT3}, 4"); I("s_cbranch_scc1 L_helper")

E = EC
vP1 = [2, 3, 4, 5]; vGT = 6; vNM = 7; vR2 = 0
FB0, NFB = 8, 6
ACCG = [32, 64, 96]; ACCU = [48, 80, 112]; ACC_R, ACC_I = 96, 112
XF = 128
vXo = [86, 87, 88, 89]
def cbar(name, vm=(), lg=()):
    E.wait(vm=vm, lg=lg); E.barrier(); bar_names.append(name)
I("v_and_b32 v84, 4, v81"); I("v_and_b32 v80, 3, v81"); I("v_lshl_add_u32 v84, v84, 2, v80")
I(f"s_lshl2_add_u32 {sT0}, {sC_}, {sW_}"); I(f"s_lshl_b32 {sT0}, {sT0}, 5")
I(f"v_add_lshl_u32 v84, v84, {sT0}, 10")
I(f"v_add_u32 {v(vXo[0])}, v84, v83"); I(f"v_add_u32 {v(vXo[1])}, v84, v85")
I(f"v_add_u32 {v(vXo[2])}, 6144, {v(vXo[0])}"); I(f"v_add_u32 {v(vXo[3])}, 9216, {v(vXo[1])}"); I(f"v_add_u32 {v(vXo[1])}, 3072, {v(vXo[1])}")
I("s_mov_b32 s50, 2097152"); I("s_mov_b32 s51, 0x20000")
E.wait_all(lg=True)
I("s_mov_b64 s[48:49], s[16:17]")
def X_issue(i):
    I(f"s_add_u32 m0, {sM4}, {items[f'X{i}'].base}")
    for q in range(4): VM(f"buffer_load_dwordx4 {v(vXo[q])}, {SX}, {sK[i]} offen" + (f" offset:{q*1024}" if q else "") + " lds", f"X{i}")
X_issue(0); X_issue(1)
if OPT["prio"] == 1: I("s_setprio 1")
for i in range(2, 8): ktab(i)
X_issue(2)
if OPT["x3"]: X_issue(3)
cbar("b0")
I(f"v_and_b32 v90, 31, {vLANE}"); I(f"v_lshrrev_b32 v91, 5, {vLANE}")
I("v_bfe_u32 v92, v90, 1, 3"); I("v_xor_b32 v92, v92, v91"); I("v_lshlrev_b32 v92, 4, v92"); I("v_lshl_add_u32 v92, v90, 7, v92")
I(f"v_add_u32 {v(vP1[0])}, {sM4}, v92")
for s in range(1, 4): I(f"v_xor_b32 {v(vP1[s])}, {32*s}, {v(vP1[0])}")
I(f"s_mov_b32 {sC11}, 0x3f803f80"); I(f"s_mov_b32 {sC10}, 0x00003f80"); I(f"s_mov_b32 {sC01}, 0x3f800000")
for r in range(64, 72): I(f"v_mov_b32 v{r}, 0")
srd(SWS, 46, WS_SIZE); srd(SOUT, 42, 4194304)
I(f"s_cmp_ge_u32 {sW_}, 2"); srd_sel(SG, 36, 38, 1409024); srd_sel(SC, 26, 28, 524288); I(f"s_mul_i32 {sM6}, {sW_}, 6144"); srd(SWD, 40, 1409024)
I(f"s_mov_b32 {sSPIN}, 0"); I("s_mov_b32 s15, 0"); I("s_mov_b64 s[22:23], s[32:33]"); I("s_mov_b64 s[20:21], s[40:41]")
I(f"v_bfe_u32 v92, {vLANE}, 2, 2"); I("v_lshl_add_u32 v92, v91, 3, v92"); I(f"v_mul_u32_u24 {v(vGT)}, 192, v92")
I(f"v_and_b32 v93, 16, {vLANE}"); I(f"v_lshl_add_u32 {v(vGT)}, v93, 1, {v(vGT)}")
I(f"v_and_b32 v93, 1, {vLANE}"); I(f"v_lshl_add_u32 {v(vGT)}, v93, 4, {v(vGT)}")
I(f"v_and_b32 v93, 2, {vLANE}"); I(f"v_lshl_add_u32 {v(vGT)}, v93, 2, {v(vGT)}")
I(f"s_lshl_b32 {sT0}, {sW_}, 7"); I(f"s_add_u32 {sT0}, {sT0}, {RTAB}")
I("v_bfe_u32 v93, v90, 2, 1"); I("v_lshlrev_b32 v94, 4, v93"); I("v_lshrrev_b32 v93, 3, v90"); I("v_lshl_add_u32 v94, v93, 2, v94")
I("v_and_b32 v93, 3, v90"); I("v_add_u32 v94, v94, v93"); I(f"v_lshl_add_u32 v94, v94, 2, {sT0}")
FR = dict(r=72, t=73, v=74, w=75)
I(f"v_and_b32 v72, 3, {vLANE}"); I("v_lshlrev_b32 v72, 2, v72"); I(f"v_add_u32 v72, {PRG}, v72")
I(f"s_lshl_b32 {sT0}, {sW_}, 2"); I(f"s_add_u32 {sT0}, {sT0}, {PRG}"); I(f"v_mov_b32 v75, {sT0}")
def csig(st): signal("PC", PCV[st], FR["w"], FR["v"], 0)
for i in range(8):
    it = items[f"X{i}"]
    E.wait(vm=it.name)
    for s in range(4):
        DS(f"ds_read_b128 {v(XF + 16*i + 4*s, 4)}, {v(vP1[s])} offset:{it.base & 0xffff}", f"xr{i}_{s}"); note_read(it.name)
    if not OPT["x3"] and i + 3 < 8: X_issue(i + 3)
    if OPT["x3"] and i + 4 < 8: E.wait(lg=f"xr{i}_3"); X_issue(i + 4)
    if i == OPT["xi"]: csig("Xi")
    if i == 4 and OPT["mw"]:
        I(f"s_cmp_eq_u32 {sW_}, 1"); I("s_cselect_b64 s[52:53], s[38:39], s[36:37]"); I(f"s_cmp_eq_u32 {sW_}, 2"); I("s_cselect_b64 s[52:53], s[40:41], s[52:53]")
        I(f"s_cmp_eq_u32 {sW_}, 3"); I("s_cselect_b64 s[52:53], s[26:27], s[52:53]"); I("s_mov_b32 s54, 1409024"); I("s_cselect_b32 s54, 524288, s54"); I("s_mov_b32 s55, 0x20000")
        I(f"s_cselect_b32 {sT0}, 16, 43"); I(f"s_mul_i32 {sT1}, s2, {sT0}"); I(f"s_sub_u32 {sT0}, {sT0}, 1"); I(f"v_min_u32 v76, {sT0}, {vLANE}"); I(f"v_add_lshl_u32 v76, v76, {sT1}, 7")
        VM("buffer_load_dword v77, v76, s[52:55], 0 offen", "mw")
        I("s_mov_b64 s[52:53], s[28:29]"); I(f"s_cmp_eq_u32 {sW_}, 3"); I("s_cselect_b32 s54, 524288, 0")
        VM("buffer_load_dword v77, v76, s[52:55], 0 offen", "mw")
    for s in range(4):
        E.wait(lg=f"xr{i}_{s}")
        for d in range(4):
            x = v(XF + 16*i + 4*s + d)
            I(f"v_dot2c_f32_bf16 v{64+d}, {sC11}, {x}"); I(f"v_dot2c_f32_bf16 v{68+d}, {x}, {x}")
    lstamp(f"X{i}")
csig("X"); gchk = {"S0": chk_issue(FR["r"], FR["t"], 16)}
I("v_add_f32 v64, v64, v65"); I("v_add_f32 v66, v66, v67"); I("v_add_f32 v68, v68, v69")
I("v_add_f32 v64, v64, v66"); I("v_add_f32 v70, v70, v71"); I("v_mov_b32 v65, v64"); I("v_add_f32 v68, v68, v70"); I("v_mov_b32 v69, v68")
I("v_permlane32_swap_b32 v64, v65"); I("v_permlane32_swap_b32 v68, v69")
I("v_add_f32 v64, v64, v65"); I("v_mul_f32 v64, 0x3b000000, v64")
runall(bf16r_ops(65, 64)); I(f"v_sub_f32 {v(vNM)}, 0, v65")
I(f"s_sub_u32 {sT0}, 65536, {sM4}")
for s in range(4): I(f"v_add_u32 {v(vP1[s])}, {sT0}, {v(vP1[s])}")
win = {"p1": 65536, "c1": 0, "gt": 0, "lin": 0, "wt": 0}
def burst(i):
    for d in range(16):
        x = v(XF + 16*i + d)
        I(f"v_dot2_f32_bf16 v{32+2*d}, {x}, {sC10}, {v(vNM)}"); I(f"v_dot2_f32_bf16 v{33+2*d}, {x}, {sC01}, {v(vNM)}")
qC, qB = [], []
marks = set()
def run_op(op):
    if isinstance(op, tuple):
        if op[0] == "hold": holdq[0] = op[1]
        else: marks.add(op[1])
    elif isinstance(op, str): I(op)
    else: op()
def need_mark(m):
    while m not in marks:
        q = next(q for q in (qC, qB) if ("mark", m) in [o for o in q if isinstance(o, tuple)])
        run_op(q.pop(0))
def cvt_ops(i):
    ops = []
    for d in range(16):
        ops.append(f"v_cvt_pk_bf16_f32 {v(XF + 16*i + d)}, v{32+2*d}, v{33+2*d}")
        if d & 3 == 3: ops.append(("mark", f"cen{4*i + (d>>2)}"))
    return ops
B = ["v_add_f32 v68, v68, v69", "v_mul_f32 v68, 0x3b000000, v68", "v_fma_f32 v68, -v64, v64, v68", "v_max_f32 v68, 0, v68"]
B += bf16r_ops(68, 68) + ["v_add_f32 v68, 0x3727c5ac, v68"] + bf16r_ops(68, 68) + ["v_sqrt_f32 v68, v68", lambda: DS("ds_write_b32 v94, v65 offset:512", "tabw")]
B += bf16r_ops(68, 68) + ["v_rcp_f32 v68, v68", lambda: DS("ds_write_b32 v94, v68", "tabw"), f"v_mul_f32 {v(vR2)}, v68, v68", ("mark", "tab")]
qB.extend(B)

class Slot: pass
slots = []
def add_slot(chunk, reads, mfma, needs=()):
    s = Slot(); s.chunk, s.reads, s.mfma, s.needs = chunk, reads, mfma, needs; slots.append(s)
for i in range(8):
    for s in range(4):
        f = 4*i + s
        for comp in range(2):
            acc = v(ACC_I if comp else ACC_R, 16)
            add_slot(f"S{i}", [("p1", f"S{i}", s, comp * 4096)], lambda b, f=f, acc=acc: f"{MF} {acc}, {v(XF+4*f,4)}, {v(b[0],4)}, {acc if f else 0}", needs=[f"cen{f}"])
P2 = len(slots)
order = [(0, s, u, m) for s in range(4) for u in range(2) for m in range(2)] + [(0, s, 2, m) for s in range(4) for m in range(2)]
order += [(i, s, u, m) for i in range(1, 8 - NU) for s in range(4) for u in range(3) for m in range(2)]
order += [(i, s, u, m) for u in range(3) for i in range(8 - NU, 8) for s in range(4) for m in range(2)]
unit_done = {}
for (i, s, u, m) in order:
    f = 4*i + s; acc = v((ACCU if m else ACCG)[u], 16)
    nd = (["tab"] if f == 0 else []) + (["dumped"] if (f, u) == (0, 2) else [])
    add_slot(f"G{i}", [("gt", f"G{i}", m * 12288 + 16*s*192 + 64*u)], lambda b, f=f, acc=acc: f"{MF} {acc}, {v(b[0],4)}, {v(XF+4*f,4)}, {acc if f else 0}", needs=nd)
    unit_done[u] = len(slots) - 1
P3 = len(slots)
ACC3 = 32; BASE = 48
vHST = 138; vDSK = 140; vHR, vWT, vXR, vTAB3, vOUT = 128, 129, 130, 131, 132
sHG = ["s16", "s17", "s18"]
EPO = 144; vC1 = [134, 135, 136, 137]; vC2 = [2, 3, 4, 5]
cGo = [128, 129, 130]; cCo = [132, 133, 134, 135]
ACC4 = 48; ACCS = [64, 80]
AQ = list(range(172, 256, 4)) + list(range(108, 128, 4))
BASE = 144; PX = 108
P3BUFS = list(range(8, 32, 4)) + [96, 100, 104]
vA = 139; vWT2 = 133; vA2 = 7; vPB = 0
aloads = []; started = set()
for n, (t, hv) in enumerate(jobs):
    if n == NJ1: P4 = len(slots)
    for s in range(4):
        idx = {}
        for h_ in hv: idx[h_] = len(aloads); aloads.append((f"a{len(aloads)}", AQ[len(aloads) % len(AQ)], t, s, h_, s == 0 and h_ == hv[0]))
        for a_ in range(2):
            rd = ("c1", t, s, a_) if t[0] == "C" else ("wt", t, 16*s*128, a_)
            for k_, h_ in enumerate(hv):
                r_ = ([ACC3, ACC4] if h_ == "k" else ACCS)[a_]; acc = v(r_, 16)
                z = r_ not in started; started.add(r_)
                tag, q = aloads[idx[h_]][:2]
                add_slot(f"J{n}", [rd] if k_ == 0 else [], lambda b, q=q, acc=acc, z=z: f"{MF} {acc}, {v(q,4)}, {v(b[0],4)}, {0 if z else acc}")
                slots[-1].atag = tag; slots[-1].arel = idx[h_] + 1 if a_ == 1 else None
M = len(slots)
first_slot = {}
for m, s in enumerate(slots): first_slot.setdefault(s.chunk, m)
pool = [FB0 + 4*k for k in range(NFB)]
def newfb(): return pool.pop(0)
def set_win(kind, regs, base, span):
    cur = win[kind]
    if not (cur <= base and base + span <= cur + 65536):
        new = min((base // 49152) * 49152, MISC - 65536)
        if not (new <= base and base + span <= new + 65536): new = base
        for r in regs: I(f"v_add_u32 {v(r)}, {(new - cur) & 0xffffffff}, {v(r)}")
        win[kind] = cur = new
    return cur
def emit_reads(m):
    s = slots[m]; s.bufs = []; s.tags = []; s.own = bool(s.reads)
    if not s.reads: s.bufs = slots[m-1].bufs
    for rd in s.reads:
        b = newfb(); s.bufs.append(b); tag = f"rd{m}_{rd[0]}"; s.tags.append(tag)
        kind, it = rd[0], items[rd[1]]
        if kind == "p1":
            w = set_win(kind, vP1, it.base, it.size); DS(f"ds_read_b128 {v(b,4)}, {v(vP1[rd[2]])} offset:{it.base - w + rd[3]}", tag)
        elif kind == "c1":
            w = set_win(kind, vC1 + vC2, it.base, it.size); DS(f"ds_read_b128 {v(b,4)}, {v((vC2 if rd[3] else vC1)[rd[2]])} offset:{it.base - w}", tag)
        else:
            regs, pitch = ([vGT], 192) if kind == "gt" else ([vWT, vWT2], 128)
            reg = regs[rd[3]] if kind == "wt" else vGT
            w = set_win(kind, regs, it.base, it.size)
            DS(f"ds_read_b64_tr_b16 {v(b,2)}, {v(reg)} offset:{it.base - w + rd[2]}", tag)
            DS(f"ds_read_b64_tr_b16 {v(b+2,2)}, {v(reg)} offset:{it.base - w + rd[2] + 4*pitch}", tag)
        note_read(it.name)
events = {}
def at(m, fn): events.setdefault(m, []).append(fn)
post = {8*i + 7: (lambda i=i: (need_mark(f"cen{4*i+7}"), burst(i + 2), qC.extend(cvt_ops(i + 2)))) for i in range(6)}
at(52, lambda: qB.extend([f"v_lshlrev_b32 {v(vNM)}, 6, {vLANE}", f"v_bfe_u32 v64, {vLANE}, 1, 2", f"v_lshl_add_u32 {v(vNM)}, v64, 4, {v(vNM)}",
                          f"v_add_u32 {v(vNM)}, {sM4}, {v(vNM)}", f"v_add_u32 {v(vNM)}, {DUMPS[1]}, {v(vNM)}", ("mark", "dadr")]))
dtag = {}
at(P2 - 1, lambda: dtag.__setitem__(0, chk_issue(FR["r"], FR["t"], 0)))
def dump_op(j, comp):
    need_mark("dadr")
    if (j, comp) == (0, 1): chk_test(dtag[0], PCV["S5"], FR["r"], FR["t"], 0, -12)
    if j and comp == 0: I(f"v_xor_b32 {v(vNM)}, {16 * (j ^ (j - 1))}, {v(vNM)}")
    DS(f"ds_write_b128 {v(vNM)}, {v((ACC_I if comp else ACC_R) + 4*j, 4)} offset:{DUMPS[comp] - DUMPS[1]}", "dump")
    if (j, comp) == (3, 1): marks.add("dumped")
def dump64(j, comp, hf):
    need_mark("dadr")
    if j and comp == 0 and hf == 0: I(f"v_xor_b32 {v(vNM)}, {16 * (j ^ (j - 1))}, {v(vNM)}")
    if comp == 0 and hf == 0: I(f"v_add_u32 {v(vP1[1])}, {DUMPS[0]}, {v(vNM)}")
    DS(f"ds_write_b64 {v(vNM if comp else vP1[1])}, {v((ACC_I if comp else ACC_R) + 4*j + 2*hf, 2)} offset:{8*hf}", "dump")
    if (j, comp, hf) == (3, 1, 1): marks.add("dumped")
if OPT["d64"]:
    for k in range(16): at(P2 + (k * 15) // 16, lambda k=k: dump64(k >> 2, (k >> 1) & 1, k & 1))
else:
    for k in range(8): at(P2 + 1 + (k * OPT["dsp"]) // 2, lambda k=k: dump_op(k >> 1, k & 1))
def fr_move():
    I(f"v_mov_b32 {v(vP1[0])}, v72"); I(f"v_mov_b32 {v(vP1[3])}, v75"); FR.update(r=vP1[0], t=vP1[1], v=vP1[2], w=vP1[3])
at(P2 - 2, fr_move)
if OPT["mw"]: at(P2 - 3, lambda: E.wait(vm="mw"))
at(31, lambda: csig("S3")); at(47, lambda: csig("S5"))
at(P2 + OPT["bd"], lambda: (need_mark("dumped"), E.wait(lg=["dump", "tabw"]), csig("dump")))
LAND = {"G2": ["G4"], "G3": ["G5", "G6"], "G4": ["G7"]}
for st, sl in CEV.items(): at(P2 + sl, lambda st=st: (E.wait(vm=LAND.get(st, []), lg=["cof2"] if st == "G1" else []), csig(st)))
GATE = {c: (16, PHV[c]) for c in CHUNKS[:8]}
GATE["S0"] = (16, PHV["S2"]); GATE["S4"] = (16, PHV["S6"])
GATE.update({"G4": (0, PCV["G2"]), "G5": (0, PCV["G3"]), "G6": (0, PCV["G4"])})
del GATE["S2"], GATE["S6"]
for c in list(GATE)[1:]: at(first_slot[c] - OPT["D"] - 6, lambda c=c: gchk.__setitem__(c, chk_issue(FR["r"], FR["t"], GATE[c][0])))
cplaced = []
cWo = [168, 169, 170, 171]
def c_offsets():
    I(f"s_lshl_b32 {sT0}, {sW_}, 11"); I(f"s_add_u32 {sT0}, {sT0}, {HS}"); I(f"v_lshl_add_u32 v136, {vLANE}, 4, {sT0}")
    DS("ds_read_b128 v[128:131], v136", "cof"); note_read("OFT")
at(P2 + 24, c_offsets)
at(P2 + 45, lambda: (DS("ds_read_b128 v[132:135], v136 offset:1024", "cof2"), note_read("OFT")))
at(P2 + 76, lambda: qB.extend([lambda: E.wait(lg="cof2"), f"v_readfirstlane_b32 {sNON}, v135", "v_mov_b32 v168, v134"] + [f"v_add_u32 v{168+q}, {7168*q}, v134" for q in range(1, 4)]
                              + ["v_add_u32 v134, 14336, v132", "v_add_u32 v135, 14336, v133"] + q_setup() + [("mark", "cw")]))
def c_load(name, ta, step2, gate=None):
    k = name[0]; i = int(name[1:]); base = items[name].base
    tag = {}
    if gate:
        off, val = (0, PCV[gate]) if gate in PCV else (32, gate)
        at(P2 + ta - 6, lambda: tag.__setitem__(0, chk_issue(FR["r"], 137, off)))
    n = 6 if k == "G" else 4
    for q in range(n):
        def op(q=q):
            if q == 0:
                E.wait(lg="cof")
                if gate: chk_test(tag[0], val, FR["r"], 137, off, -(13 + len(cplaced))); cknown.append(("PC" if off == 0 else "PD", val))
                cplaced.append((name, list(cknown)))
            if k == "G":
                if q % 3 == 0:
                    I(f"s_add_u32 m0, {sM6}, {base + 1024*q}")
                    I(f"s_mul_i32 {sSO}, {sK[i]}, 1376" if q == 0 else f"s_add_u32 {sSO}, {sSO}, {16*2752}")
                VM(f"buffer_load_dwordx4 {v(cGo[q%3])}, {SG}, {sSO} offen" + (f" offset:{(q%3)*1024}" if q % 3 else "") + " lds", name)
            else:
                if q == 0:
                    need_mark("cw"); I(f"s_add_u32 m0, {sM4}, {base}")
                    if k == "C": q_h(sSO, i); I(f"s_lshl_b32 {sSO}, {sSO}, 7")
                    else: w_soff(sSO, i, "s19")
                VM(f"buffer_load_dwordx4 {v((cCo if k == 'C' else cWo)[q])}, {SC if k == 'C' else SWD}, {sSO} offen" + (f" offset:{q*1024}" if q else "") + " lds", name)
        at(P2 + ta + (q * step2) // 2, op)
cknown = []
c_load("G4", 37, 5, "G0"); c_load("G6", 52, 4); c_load("G5", 64, 4, "G1"); c_load("G7", 77, 5); c_load("C1", 93, 4)
c_load("C2", OPT["c1"], 4); c_load("C3", OPT["c1"] + 8, 4);
if OPT["wl"] < 3: c_load("W1", 141, 4)
if OPT["wl"] < 2: c_load("W2", 156, 3, "G5"); c_load("W3", 162, 3)
def st_addr():
    o = [f"s_lshl2_add_u32 {sT0}, {sC_}, {sW_}", f"s_mul_i32 {sT0}, {sT0}, {160*1024}", f"v_lshl_add_u32 {v(vHST)}, {vLANE}, 4, {sT0}", f"s_lshl_b32 {sT0}, {sGL}, 11", f"s_add_u32 {sT0}, {sT0}, {sRA}"]
    o += [f"s_add_u32 {sHG[uu]}, {sT0}, {8*uu*2048}" for uu in range(3)]
    o += [f"s_and_b32 {sT1}, {sW_}, 1", f"s_lshr_b32 {sT2}, {sW_}, 1", f"s_lshl1_add_u32 {sT0}, {sC_}, {sGH}", f"s_lshl1_add_u32 {sT0}, {sT0}, {sT2}",
          f"s_mul_i32 {sT0}, {sT0}, {160*1024}", f"s_lshl_b32 {sT3}, {sT1}, 12", f"s_add_u32 {sT0}, {sT0}, {sT3}", f"v_lshl_add_u32 {v(vA)}, {vLANE}, 4, {sT0}",
          f"v_lshlrev_b32 {v(vDSK)}, 16, v131",
          f"s_mul_i32 {sT0}, {sGH}, {4*160*1024}", f"s_sub_u32 {sT0}, {2*160*1024}, {sT0}", f"v_add_u32 {v(vA2)}, {sT0}, {v(vA)}", ("mark", "sta1")]
    return o
def st_addr2():
    o = [f"s_and_b32 {sT1}, {sW_}, 1", f"s_lshr_b32 {sT2}, {sW_}, 1", f"v_lshrrev_b32 v141, 5, {vLANE}", f"v_and_b32 v143, 31, {vLANE}"]
    o += [f"s_lshl1_add_u32 {sT3}, {sGL}, {sT1}"]
    o += [f"s_lshl_b32 {sT3}, {sT3}, 7", f"s_lshl1_add_u32 {sT0}, {sGH}, {sT2}", f"s_lshl2_add_u32 s13, {sC_}, {sT0}", "s_lshl_b32 s13, s13, 16", f"s_add_u32 s13, s13, {sT3}",
          "v_lshlrev_b32 v142, 15, v141", "v_lshl_add_u32 v142, v143, 2, v142", f"v_add_u32 {v(vOUT)}, s13, v142"]
    o += [f"s_lshl_b32 {sT0}, {sT0}, 7", f"s_add_u32 {sT0}, {sT0}, {RTAB}", f"v_lshl_add_u32 {v(vTAB3)}, v141, 6, {sT0}",
          f"s_lshl_b32 {sT0}, {sT1}, 6", f"s_lshl_b32 {sT3}, {sT2}, 12", f"s_add_u32 {sT3}, {sT3}, {sT0}", f"s_add_u32 {sT3}, {sT3}, {XE}",
          "v_lshlrev_b32 v142, 11, v141", "v_lshl_add_u32 v142, v143, 1, v142", f"v_add_u32 {v(vXR)}, {sT3}, v142",
          f"s_lshl_b32 {sT3}, {sW_}, 12", f"s_add_u32 {sT3}, {sT3}, {RED}", f"v_lshl_add_u32 {v(vHR)}, {vLANE}, 4, {sT3}"]
    o += [f"v_bfe_u32 v142, {vLANE}, 2, 2", "v_lshl_add_u32 v142, v141, 3, v142", "v_lshlrev_b32 v142, 7, v142",
          f"v_and_b32 v6, 16, {vLANE}", "v_lshl_add_u32 v142, v6, 1, v142", f"v_and_b32 v6, 3, {vLANE}", "v_lshl_add_u32 v142, v6, 3, v142",
          f"v_and_b32 v6, 8, {vLANE}", "v_lshlrev_b32 v6, 3, v6", f"v_xor_b32 v6, {sT0}, v6", f"s_lshl_b32 {sT3}, {sT1}, 13", f"v_add3_u32 {v(vWT)}, v142, v6, {sT3}", f"v_xor_b32 {v(vWT2)}, 64, {v(vWT)}"]
    o += [f"s_mul_i32 {sT0}, {sT1}, 12288", "v_bfe_u32 v142, v143, 1, 3", "v_xor_b32 v142, v142, v141", "v_lshlrev_b32 v142, 4, v142", "v_lshl_add_u32 v142, v143, 7, v142",
          f"v_add_u32 {v(vC1[0])}, {sT0}, v142"] + [f"v_xor_b32 {v(vC1[s])}, {32*s}, {v(vC1[0])}" for s in range(1, 4)] + [f"v_xor_b32 {v(vC2[s])}, 4096, {v(vC1[s])}" for s in range(4)] + [("mark", "sta")]
    return o
at(P2 + 120, lambda: qB.extend(st_addr()))
def glu_epi(u):
    ops = []; o = EPO + 8*u
    for j in range(8):
        g0, u0 = ACCG[u] + 2*j, ACCU[u] + 2*j
        ops += [f"v_mul_f32 {v(u0)}, {v(vR2)}, {v(u0)}", f"v_mul_f32 {v(u0+1)}, {v(vR2)}, {v(u0+1)}",
                f"v_mul_f32 {v(u0)}, {v(g0)}, {v(u0)}", f"v_mul_f32 {v(u0+1)}, {v(g0+1)}, {v(u0+1)}", f"v_cvt_pk_bf16_f32 {v(o+j)}, {v(u0)}, {v(u0+1)}"]
        if j & 3 == 3:
            ops.append(lambda fr=j >> 2: VM(f"buffer_store_dwordx4 {v(o + 4*fr, 4)}, {v(vHST)}, {SWS}, {sHG[u]} offen offset:{fr*1024}" + STP, "gst" if u == 2 else "gsa"))
    return ops + [("mark", f"epi{u}")]
for u in range(2): at(unit_done[u] + 3, lambda u=u: qB.extend(glu_epi(u)))
def base_ops():
    ops = [f"v_mov_b32 {v(BASE+r)}, 0" for r in range(16)]
    def rdx(r): DS(f"ds_read_u16_d16_hi {v(BASE+r)}, {v(vXR)} offset:{128*r}", f"xe{r}"); note_read("XE")
    ops += [lambda r=r: rdx(r) for r in range(16)]
    R3, M3, t0, t1, p = 160, 164, 168, 169, 170
    rnd = [f"v_cvt_pk_bf16_f32 {v(p)}, {v(t0)}, {v(t1)}", f"v_lshlrev_b32 {v(t0)}, 16, {v(p)}", f"v_and_b32 {v(t1)}, 0xffff0000, {v(p)}"]
    for j in range(4):
        ops += [lambda j=j: DS(f"ds_read_b128 {v(R3,4)}, {v(vTAB3)} offset:{16*j}", f"r3{j}"), lambda j=j: DS(f"ds_read_b128 {v(M3,4)}, {v(vTAB3)} offset:{512+16*j}", f"m3{j}"),
                ("hold", 3), lambda j=j: E.wait(lg=f"m3{j}")]
        for e in (0, 2):
            r = 4*j + e
            ops += [f"v_sub_f32 {v(t0)}, {v(BASE+r)}, {v(M3+e)}", f"v_sub_f32 {v(t1)}, {v(BASE+r+1)}, {v(M3+1+e)}"] + rnd
            ops += [f"v_mul_f32 {v(t0)}, {v(t0)}, {v(R3+e)}", f"v_mul_f32 {v(t1)}, {v(t1)}, {v(R3+1+e)}"] + rnd
            ops += [f"v_mul_f32 {v(t0)}, {v(t0)}, {v(vDSK)}", f"v_mul_f32 {v(t1)}, {v(t1)}, {v(vDSK)}"] + rnd
            ops += [f"v_add_f32 {v(BASE+r)}, {v(BASE+r)}, {v(t0)}", f"v_add_f32 {v(BASE+r+1)}, {v(BASE+r+1)}, {v(t1)}"]
    return ops + [("mark", "base")]
holdq = [0]

def segment(lo, hi, Dof, lim, pre_bar):
    rn = lo; held = []
    for m in range(lo - 1, hi):
        c0 = E.count + E.nops
        if m >= lo:
            s = slots[m]
            for n in s.needs: need_mark(n)
            tags = list(s.tags)
            if m % 2 == 0 and m + 1 < hi: tags += slots[m+1].tags
            E.wait(vm=[s.atag] if m >= P3 else [], lg=tags)
            I(s.mfma(s.bufs)); c0 = E.count + E.nops
            if s.own: pool.extend(held); held = list(s.bufs)
            if m >= P3:
                if s.arel: adone[0] = max(adone[0], s.arel)
                a_issue(OPT["ar"])
            if first_slot[s.chunk] == m and m < P3: lstamp(s.chunk)
            if OPT["lst"] == 9 and m >= P2 + OPT["l0"] and (m - P2 - OPT["l0"]) % OPT["ld"] == 0: LSET["C"].append(f"m{m-P2}"); lstamp(f"m{m-P2}")
            for fn in events.get(m, []): fn()
        nr = 0
        while rn < hi and rn <= m + Dof(m) and len(pool) >= len(slots[rn].reads) and (nr < 2 or m < lo):
            ch = slots[rn].chunk
            if first_slot[ch] == rn:
                if pre_bar: pre_bar(ch)
                if ch in GATE:
                    chk_test(gchk[ch], GATE[ch][1], FR["r"], FR["t"], GATE[ch][0], -(list(GATE).index(ch) + 1))
                    cknown.append(("PC" if GATE[ch][0] == 0 else "PH", GATE[ch][1]))
            emit_reads(rn); rn += 1; nr += 1
        assert rn >= min(hi, m + 3), (m, rn)
        if m >= lo:
            n = 0
            while qC and (n < 3 or isinstance(qC[0], tuple)): run_op(qC.pop(0)); n += 1
            if holdq[0]: holdq[0] -= 1
            while qB and not holdq[0] and (E.count + E.nops - c0 < lim - (m & 1) or isinstance(qB[0], tuple)): run_op(qB.pop(0))
            if m in post: post[m]()
    pool.extend(held)
retired = set()
def D2(m): return OPT["D"]
anext = [0]; aok = {"C": False, "W": False, "L": False}; adone = [0]
def a_issue(n):
    while n > 0 and anext[0] < len(aloads):
        tag, q, t, s_, h_, first = aloads[anext[0]]
        if not aok["L" if t in ("W4", "W5") else t[0]] or anext[0] - adone[0] >= min(len(AQ), OPT["al"]): return
        if first:
            i = int(t[1:])
            if t[0] == "C": q_h(sSO, i); I(f"s_lshl_b32 {sSO}, {sSO}, 13")
            else:
                q_u(sSO, i); I(f"s_lshl_b32 {sSO}, {sSO}, 13"); I(f"s_add_u32 {sSO}, {sSO}, {sRA}")
        VM(f"buffer_load_dwordx4 {v(q,4)}, {v(vA if h_ == 'k' else vA2)}, {SWS}, {sSO} offen" + (f" offset:{s_*1024}" if s_ else "") + [" sc1", "", " nt"][OPT["pll"]], tag)
        anext[0] += 1; n -= 1
if OPT["ea"]:
    etag = {}
    at(P2 + OPT["ea"] - 6, lambda: etag.__setitem__(0, chk_issue(FR["r"], FR["t"], 16)))
    at(P2 + OPT["ea"], lambda: (need_mark("sta1"), chk_test(etag[0], PHV["K0"], FR["r"], FR["t"], 16, -11), aok.__setitem__("C", True)))
    for m_ in range(OPT["ea"], 192): at(P2 + m_, lambda: a_issue(1) if anext[0] < 12 else None)
burst(0); runall([o for o in cvt_ops(0) if isinstance(o, str)]); marks.update(f"cen{k}" for k in range(4)); burst(1); qC.extend(cvt_ops(1))
segment(0, P3, D2, 6, None)
PBAR = {"J0": "P0", "J5" if OPT["wl"] < 3 else "J4": "P2", "J8": "P3", "J12": "P4"}
def p3bar(ch):
    if ch in PBAR: cbar("b" + PBAR[ch], vm=[{0: "W3", 2: "W1", 3: "C3"}[OPT["wl"]]])
    lstamp(ch)
for key, val, sl in (("W", "KA", OPT["ka"]), ("L", "KB", OPT["kb"])):
    tg = {}
    at(P3 + sl - 4, lambda tg=tg: tg.__setitem__(0, chk_issue(FR["r"], FR["t"], 16)))
    at(P3 + sl, lambda tg=tg, key=key, val=val: (chk_test(tg[0], PHV[val], FR["r"], FR["t"], 16, -(18 if key == "W" else 19)), aok.__setitem__(key, True), a_issue(OPT["ab"])))
lstamp("T"); csig("T")
need_mark("epi1")
qB.extend(glu_epi(2)); need_mark("epi2"); lstamp("e2")
pool[:] = P3BUFS
sa = st_addr2()
I(f"v_mov_b32 v106, {v(FR['r'])}"); I(f"v_mov_b32 v107, {v(FR['w'])}"); FR.update(r=106, w=107, t=104, v=105); P3BUFS.pop(); pool[:] = P3BUFS
if OPT["ord"] == 0:
    for op in sa: run_op(op)
if not OPT["ea"]: chk_spin(PHV["K0"], FR["r"], FR["t"], 16); aok["C"] = True
lstamp("k0"); a_issue(OPT["a0"])
if OPT["ord"] == 1:
    for op in sa: run_op(op)
E.wait(vm="gsa"); csig("gsa"); lstamp("ga"); a_issue(12)
lstamp("K0")
qB.extend([f"s_lshl4_add_u32 {sT0}, {sC_}, {sG_}", f"s_lshl2_add_u32 {sT0}, {sT0}, {sW_}", f"s_lshl_b32 {sT0}, {sT0}, 12", f"s_add_u32 s20, {sT0}, {WS_PB}", f"s_xor_b32 s21, s20, {8 << 14}",
           "s_mov_b32 s16, 0x07060500", "s_mov_b32 s17, 0x07060501", "s_mov_b32 s18, 0x07060502", "s_mov_b32 s22, 0x07060503", "s_mov_b32 s23, 0x0c0c0400", "s_mov_b32 s53, 0x05040100", f"v_lshlrev_b32 {v(vPB)}, 4, {vLANE}"] + base_ops())
if OPT["gs"] < 0: E.wait(vm="gst"); csig("gst")
else: at(P3 + OPT["gs"], lambda: (E.wait(vm="gst"), csig("gst")))
def reduce_pair(own, other, bar):
    for j in range(4): DS(f"ds_write_b128 {v(vHR)}, {v(other+4*j,4)} offset:{1024*j}", "red" + bar)
    I(f"v_xor_b32 {v(FR['t'])}, 4096, {v(vHR)}")
    cbar(bar, lg=["red" + bar])
    for j in range(4): DS(f"ds_read_b128 {v(other+4*j,4)}, {v(FR['t'])} offset:{1024*j}", f"rr{j}")
if OPT["ovr"]:
    at(P4, lambda: (lstamp("snd"), need_mark("base")))
    for j in range(4): at(P4 + 1 + j // 2, lambda j=j: DS(f"ds_write_b128 {v(vHR)}, {v(ACCS[1]+4*j,4)} offset:{1024*j}", "redbR1"))
    def r1_mid():
        I(f"v_xor_b32 v170, 4096, {v(vHR)}"); I(f"v_mov_b32 v171, {sNON}")
        cbar("bR1", lg=["redbR1"])
        for j in range(4): DS(f"ds_read_b128 {v(ACCS[1]+4*j,4)}, v170 offset:{1024*j}", f"rq{j}")
    def r1_fin(j):
        E.wait(lg=f"rq{j}")
        for e in range(4): I(f"v_add_f32 {v(ACCS[0]+4*j+e)}, {v(ACCS[0]+4*j+e)}, {v(ACCS[1]+4*j+e)}")
        for e in range(4): I(f"v_perm_b32 {v(ACCS[0]+4*j+e)}, {v(ACCS[0]+4*j+e)}, v171, {['s16', 's17', 's18', 's22'][e]}")
        VM(f"buffer_store_dwordx4 {v(ACCS[0]+4*j,4)}, {v(vPB)}, {SWS}, s21 offen offset:{1024*j} sc1", "pst")
    at(P4 + 5, r1_mid)
    for j in range(4): at(P4 + 7 + j, lambda j=j: r1_fin(j))
else:
    segment(P3, P4, lambda m: OPT["D3"], 8, p3bar)
    lstamp("snd")
    need_mark("base")
    reduce_pair(ACCS[0], ACCS[1], "bR1")
    I(f"v_mov_b32 v171, {sNON}")
    for j in range(4):
        E.wait(lg=f"rr{j}")
        for e in range(4): I(f"v_add_f32 {v(ACCS[0]+4*j+e)}, {v(ACCS[0]+4*j+e)}, {v(ACCS[1]+4*j+e)}")
        for e in range(4): I(f"v_perm_b32 {v(ACCS[0]+4*j+e)}, {v(ACCS[0]+4*j+e)}, v171, {['s16', 's17', 's18', 's22'][e]}")
        VM(f"buffer_store_dwordx4 {v(ACCS[0]+4*j,4)}, {v(vPB)}, {SWS}, s21 offen offset:{1024*j} sc1", "pst")
pl_ld = [f"buffer_load_dwordx4 {v(80+4*j,4)}, {v(vPB)}, {SWS}, s20 offen offset:{1024*j} sc1" for j in range(4)]
at(M - 1 - OPT["pl"], lambda: [VM(t_, "pld") for t_ in pl_ld])
segment(P3 if OPT["ovr"] else P4, M, lambda m: OPT["D3"], 8, p3bar)
assert not qC and not qB and anext[0] == len(aloads)
RT2 = jobs[10][0]; RED2 = slot_of[RT2] * 16384
I(f"v_add_u32 {v(vHR)}, {(RED2 - RED) & 0xffffffff}, {v(vHR)}")
reduce_pair(ACC3, ACC4, "bR2")
for r in range(16): I(f"v_add_f32 {v(ACC3+r)}, {v(ACC3+r)}, {v(BASE+r)}")
chkp = []
for j in range(4):
    b_ = 80 + 4*j
    chkp += [f"v_perm_b32 v65, v{b_+1}, v{b_}, s23", f"v_perm_b32 v66, v{b_+3}, v{b_+2}, s23", "v_perm_b32 v65, v66, v65, s53",
             "v_xor_b32 v64, v171, v65" if j == 0 else "v_xor_b32 v65, v171, v65"] + ([] if j == 0 else ["v_or_b32 v64, v64, v65"])
chkp.append("v_cmp_ne_u32 vcc, 0, v64")
E.wait(vm="pld")
for c_ in chkp: I(c_)
I("s_cbranch_vccnz L_slow_p"); E.label("L_back_p"); lstamp("kp")
slow.extend(["L_slow_p:", ] + ["  " + t_ for t_ in pl_ld] + ["  s_waitcnt vmcnt(0)"] + ["  " + c_ for c_ in chkp] + spin_guard("L_back_p", -10) + ["  s_cbranch_vccnz L_slow_p", "  s_branch L_back_p"])
I("s_mov_b32 s16, 0xffffff00")
for r in range(16): I(f"v_and_b32 {v(80+r)}, s16, {v(80+r)}"); I(f"v_add_f32 {v(ACC3+r)}, {v(ACC3+r)}, {v(80 + r)}")
lstamp("last")
for r in range(16):
    if r % 4 == 0: E.wait(lg=f"rr{r>>2}")
    I(f"v_add_f32 {v(ACC3+r)}, {v(ACC3+r)}, {v(ACC4+r)}")
    if r % 2 == 0: I(f"s_mov_b32 {sT0}, {(r>>1)*4096}")
    VM(f"buffer_store_dword {v(ACC3+r)}, {v(vOUT)}, {SOUT}, {sT0} offen offset:{(r&1)*2048}" + (" sc1" if OPT["osc"] else ""), "out")
dump_stamps("C")
I("s_endpgm")

E = EH
E.label("L_helper")
vSo = [2, 3]; vGo = [4, 5, 6]; vCo = [8, 9, 10, 11]; vWo = [12, 13, 14, 15]; vHo = 16; vXEo = [17, 18]
vFLS, vFLP, vPOLL, vFLX = 19, 20, 21, 7
vLR, vCR, vL16, vL128, vL256, vPQ = 22, 24, 26, 28, 30, 32
vE, vE2, vP = 34, 36, 38
vEQA, vEST, vEF, vEX, vZA, vHSW, vHSR, vHSTo, vDA, vTAB = 40, 41, 42, 44, 46, 47, 48, 49, 50, 54
TR, TI, RT, TMP = 96, 112, 128, 144
vF16, vF256 = 56, 58
vQR, vQT, vQV, vQW = 160, 161, 162, 163
vDB = 164; vUP = 76
live = [items[f"X{i}"] for i in range(4, 8)]
known = {id(EC): 0, id(EH): 0}
def hplace(name):
    it = items[name]
    for o in list(live):
        if o.base < it.base + it.size and it.base < o.base + o.size:
            assert known[id(o.reader)] >= o.last_read, ("WAR", name, o.name)
            live.remove(o)
    live.append(it); return it
def adv11(s): I(f"s_add_u32 {s}, {s}, 1"); I(f"s_cmp_eq_u32 {s}, 11"); I(f"s_cselect_b32 {s}, 0, {s}")
cur_m0 = [None]
SOFF = {"G": "s16", "C": "s17", "W": "s18"}
def item_ops(name):
    k = name.rstrip("0123456789"); i = int(name[len(k):] or 0)
    so = SOFF.get(k)
    srd_, sm, voffs, pol = {"S": (SS, sM2, vSo, ""), "G": (SG, sM6, vGo, ""), "C": (SC, sM4, vCo, ""), "H": (SWS, sM4, [vHo]*4, " sc1"),
                            "W": (SWD, sM4, vWo, ""), "HG": (SWS, sM4, [vHo]*4, " sc1"), "XE": (SX, sM2, vXEo, "")}[k]
    prep = {"G": lambda: I(f"s_mul_i32 {so}, {sK[i]}, 1376"), "C": lambda: (q_h(so, i), I(f"s_lshl_b32 {so}, {so}, 7")),
            "W": lambda: w_soff(so, i, sSO)}.get(k, lambda: None)
    if so is None: so = "0" if k == "XE" else sK[i]
    ops = []
    for half in range(2 if k == "G" else 1):
        for q in range(len(voffs)):
            def op(half=half, q=q):
                if name in RT_:
                    if q == 0: prep()
                    VM(f"buffer_load_dwordx4 {v(RT_[name] + 4*q, 4)}, {v(voffs[q])}, {srd_}, {so} offen" + (f" offset:{q*1024}" if q else ""), name)
                    return
                if (half, q) == (0, 0): hplace(name)
                m0 = (sm, items[name].base + 3072 * half)
                if cur_m0[0] != m0: I(f"s_add_u32 m0, {sm}, {m0[1]}"); cur_m0[0] = m0
                if (half, q) == (0, 0): prep()
                if (half, q) == (1, 0): I(f"s_add_u32 {so}, {so}, {16*2752}")
                VM(f"buffer_load_dwordx4 {v(voffs[q])}, {srd_}, {so} offen" + (f" offset:{q*1024}" if q else "") + f"{pol} lds", name)
            ops.append(op)
    last = ops[-1]
    ops[-1] = lambda: (last(), done_issue.__setitem__(name, True))
    return ops
done_issue = {}
def issue(name, between=lambda: None):
    for op in item_ops(name): op(); between()
def unpark(name):
    hplace(name); E.wait(vm=name)
    I(f"v_add_u32 {v(vUP+1)}, {items[name].base}, {v(vUP)}")
    for q in range(4): DS(f"ds_write_b128 {v(vUP+1)}, {v(RT_[name] + 4*q, 4)} offset:{q*1024}", "up" + name)
def issue_mix(miss, *hits):
    mo = item_ops(miss); ho = [op for h in hits for op in item_ops(h)]
    for k, op in enumerate(mo):
        op()
        for h in ho[k * len(ho) // len(mo):(k + 1) * len(ho) // len(mo)]: h()
def flag_send(so): VM(f"buffer_store_dword v61, {v(vFLS)}, {SWS}, {so} offen sc1", "flag")
MBOX = {"s20": WS_FH - WS_FH, "s21": WS_FG - WS_FH, "s19": WS_FP - WS_FH}
def poll_issue(so, tag): pass
def poll_check(so, tag, inc):
    E.wait_all(lg=True)
    I(f"s_cmp_lg_u32 {sW_}, 0"); I(f"s_cbranch_scc1 L_back_{tag}")
    E.begin_cond()
    E.label(f"L_poll_{tag}")
    I(f"s_load_dwordx8 s[40:47], s[72:73], {MBOX[so]} glc"); I(f"s_sub_u32 {sSP2}, {sSP2}, 8"); I("s_cbranch_scc1 L_end"); I("s_waitcnt lgkmcnt(0)")
    for k in range(4, 8): I(f"s_xor_b64 s[{32+2*k}:{33+2*k}], s[{32+2*k}:{33+2*k}], s[74:75]")
    for a_, b_ in ((40, 42), (44, 46), (40, 44)): I(f"s_or_b64 s[{a_}:{a_+1}], s[{a_}:{a_+1}], s[{b_}:{b_+1}]")
    I(f"s_cbranch_scc1 L_poll_{tag}")
    E.end_cond(); E.label(f"L_back_{tag}")
I(f"s_and_b32 {sT1}, {sW_}, 1"); I(f"s_lshl1_add_u32 {sT0}, {sG_}, {sT1}"); I(f"s_lshl_b32 {sT0}, {sT0}, 4")
I(f"v_add_lshl_u32 v84, v81, {sT0}, 10")
I(f"v_add_u32 {v(vSo[0])}, v84, v83"); I(f"v_add_u32 {v(vSo[1])}, v84, v85"); I(f"v_add_u32 {v(vSo[1])}, 7168, {v(vSo[1])}")
I(f"s_lshl_b32 {sM2}, {sW_}, 11")
E.wait_all(lg=True)
I(f"s_cmp_ge_u32 {sW_}, 2"); srd_sel(SS, 22, 24, 524288); srd_sel(SG, 36, 38, 1409024); srd_sel(SC, 26, 28, 524288)
issue("S0"); issue("S1"); E.barrier()
if OPT["prio"] == 2: I("s_setprio 1")
I(f"s_lshl2_add_u32 {sT0}, {sG_}, {sW_}"); I(f"s_lshl_b32 {sT0}, {sT0}, 3"); I(f"v_add_lshl_u32 v87, v82, {sT0}, 1")
VM("global_load_ushort v70, v87, s[30:31]", "par"); VM("global_load_ushort v71, v87, s[18:19]", "par"); VM("global_load_ushort v72, v87, s[20:21]", "par")
I(f"s_lshl1_add_u32 {sT0}, {sGL}, {sT1}"); I(f"s_lshl_b32 {sT0}, {sT0}, 5"); I(f"v_and_b32 v87, 31, {vLANE}"); I(f"v_add_lshl_u32 v87, v87, {sT0}, 1")
VM("global_load_ushort v7, v87, s[32:33]", "par")
srd(SDBG, 44, 256)
I(f"s_or_b32 {sT0}, s2, {sW_}"); I("s_cbranch_scc1 L_notag")
E.begin_cond()
I("s_or_b32 s13, s14, 1"); I("s_mul_i32 s13, s13, 0x9E3779B1"); I("v_mov_b32 v93, s13"); I("v_mov_b32 v94, 0"); I("s_mov_b64 exec, 1")
VM(f"buffer_store_dword v93, v94, {SDBG}, 0 offen sc1"); I("s_mov_b64 exec, -1")
E.end_cond(); E.label("L_notag")
for i in range(2, 8): ktab(i)
srd(SX, 16, 2097152); srd(SWD, 40, 1409024); srd(SWS, 46, WS_SIZE)
if OPT["sp"]:
    I(f"s_lshl4_add_u32 {sT0}, {sC_}, {sG_}"); I(f"s_lshl_b32 {sT0}, {sT0}, 7"); I(f"s_add_u32 {sT0}, {sT0}, {WS_FH}"); I(f"s_add_u32 s72, s46, {sT0}"); I("s_addc_u32 s73, s47, 0")
def warm():
    if not OPT["tw"]: return
    srd(SOUT, 42, 4194304)
    I("v_mov_b32 v92, 0"); I(f"s_lshl2_add_u32 {sT0}, {sC_}, {sW_}"); I(f"s_mul_i32 {sT0}, {sT0}, {160*1024}")
    I(f"s_lshr_b32 {sT2}, {sG_}, 1"); I(f"s_lshl_b32 {sT2}, {sT2}, 13"); I(f"s_add_u32 {sT0}, {sT0}, {sT2}"); I(f"s_and_b32 {sT2}, {sG_}, 1"); I(f"s_lshl_b32 {sT2}, {sT2}, 11"); I(f"s_add_u32 {sT0}, {sT0}, {sT2}")
    I(f"s_mov_b32 {sT2}, {WS_EB + 0x30000}"); I(f"s_lshl_b32 {sT3}, {sC_}, 18")
    I("s_mov_b64 exec, 1")
    for sr, so in ((SG, "0"), (SC, "0"), (SWD, "0"), (SWS, sT0), (SWS, sT2), (SOUT, sT3)):
        VM(f"buffer_load_dword v95, v92, {sr}, {so} offen sc1", "tw")
    I("s_mov_b64 exec, -1")
def setup1():
    I(f"s_mov_b32 {sSPIN}, 0"); I("s_mov_b32 s15, 0"); I(f"s_mul_i32 {sM6}, {sW_}, 6144")
    I(f"s_mul_i32 {sT0}, {sT1}, {32*2752}"); I(f"s_mul_i32 {sT2}, {sG_}, 192"); I(f"s_add_u32 {sT0}, {sT0}, {sT2}")
    if OPT["bal"]: I(f"s_lshl_b32 {sT2}, {sGH}, 7"); I(f"s_sub_u32 {sT0}, {sT0}, {sT2}")
    I(f"s_mul_i32 {sT2}, {sGL if OPT['bal'] else sG_}, 3"); I(f"s_mov_b32 {sT3}, 2752")
    if OPT["bal"]: I(f"s_add_u32 {sT2}, {sT2}, {sGH}"); I(f"v_mov_b32 v90, {OOB}")
    for i in range(3):
        I(f"v_add_u32 v88, {64*i}, {vLANE}"); I("v_mul_u32_u24 v86, 43691, v88"); I("v_lshrrev_b32 v86, 19, v86")
        I("v_mul_u32_u24 v87, 12, v86"); I("v_sub_u32 v87, v88, v87")
        I(f"v_mul_lo_u32 v86, v86, {sT3}"); I("v_lshl_add_u32 v86, v87, 4, v86"); I(f"v_add_u32 v86, {sT0}, v86")
        I("v_lshrrev_b32 v87, 2, v87"); I(f"v_add_u32 v87, {sT2}, v87"); I(f"v_cmp_gt_u32 vcc, {22 if OPT['bal'] else 43}, v87")
        if i: I(f"v_subrev_u32 v86, {1024*i}, v86")
        I(f"v_cndmask_b32 {v(vGo[i])}, v90, v86, vcc")
    I(f"s_lshl2_add_u32 {sT0}, {sGL}, {sT1}"); I(f"s_lshl_b32 {sT2}, {sG_}, 1"); I(f"s_sub_u32 {sT0}, {sT0}, {sT2}"); I(f"s_lshl_b32 {sT0}, {sT0}, 14")
    I(f"v_add_u32 {v(vCo[0])}, {sT0}, {v(vSo[0])}"); I(f"v_add_u32 {v(vCo[1])}, {sT0}, {v(vSo[1])}")
    I(f"v_add_u32 {v(vCo[2])}, {2*7168}, {v(vCo[0])}"); I(f"v_add_u32 {v(vCo[3])}, {2*7168}, {v(vCo[1])}")

def setup1b():
    I(f"s_and_b32 {sT1}, {sW_}, 1")
    I("v_lshlrev_b32 v86, 4, v82"); I("v_lshl_add_u32 v86, v81, 10, v86"); I(f"v_and_b32 v87, 16, {vLANE}"); I("v_lshlrev_b32 v87, 2, v87"); I("v_xor_b32 v87, v86, v87")
    I(f"s_lshl_b32 {sT3}, {sGL}, 7"); I(f"v_add_u32 {v(vWo[0])}, {sT3}, v87")
    for q in range(1, 4): I(f"v_add_u32 {v(vWo[q])}, {7168*q}, {v(vWo[0])}")
    I(f"s_lshl1_add_u32 s13, {sC_}, {sGH}"); I(f"s_lshl2_add_u32 {sT0}, s13, {sW_}"); I(f"s_lshl_b32 {sT0}, {sT0}, 14"); I(f"s_add_u32 {sT0}, {sT0}, {sT3}")
    I(f"v_add_u32 {v(vXEo[0])}, {sT0}, v86"); I(f"v_add_u32 {v(vXEo[1])}, 7168, {v(vXEo[0])}")
    I(f"s_lshr_b32 {sT2}, {sW_}, 1"); I(f"s_lshl1_add_u32 {sT0}, s13, {sT2}"); I(f"s_mul_i32 {sT0}, {sT0}, {160*1024}"); I(f"s_lshl_b32 {sT3}, {sT1}, 12"); I(f"s_add_u32 {sT0}, {sT0}, {sT3}")
    I(f"v_lshl_add_u32 {v(vHo)}, {vLANE}, 4, {sT0}")
    I(f"s_cmp_eq_u32 {sW_}, 0"); I(f"s_cselect_b32 {sT2}, 8, 0"); I(f"v_cmp_gt_u32 vcc, {sT2}, {vLANE}")
    I(f"s_lshl1_add_u32 {sT0}, {sC_}, {sGH}"); I(f"s_lshl_b32 {sT0}, {sT0}, 10"); I(f"s_lshl2_add_u32 {sT3}, {sGL}, {sT0}"); I(f"v_lshl_add_u32 v86, {vLANE}, 7, {sT3}")
    I(f"v_cndmask_b32 {v(vFLS)}, v90, v86, vcc")
    I(f"s_mov_b32 s20, {WS_FH}"); I(f"s_mov_b32 s21, {WS_FG}")

def setup2():
    o = []
    A = o.append
    A(f"s_lshl_b32 {sT0}, {sW_}, 10"); A(f"s_add_u32 {sT0}, {sT0}, {EQ}"); A(f"v_lshl_add_u32 {v(vEQA)}, {vLANE}, 3, {sT0}")
    A("v_mov_b32 v88, 0"); A("v_mov_b32 v89, 0"); A(lambda: DS(f"ds_write_b64 {v(vEQA)}, v[88:89]", "eqz"))
    A(f"v_lshl_add_u32 {v(vZA)}, v82, 3, {sT0}")
    A(f"s_lshl_b32 {sT0}, {sW_}, 9"); A(f"v_lshlrev_b32 v86, 11, v81"); A("v_lshl_add_u32 v86, v82, 6, v86"); A("v_lshrrev_b32 v87, 1, v82")
    A("v_lshl_add_u32 v86, v87, 4, v86"); A(f"v_add_u32 {v(vDA)}, {sT0}, v86")
    for j in range(1, 4): A(f"v_xor_b32 {v(vDA+j)}, {16*j}, {v(vDA)}")
    for j in range(4): A(f"v_add_u32 {v(vDB+j)}, {DUMPS[1]}, {v(vDA+j)}")
    A(f"v_lshlrev_b32 {v(vTAB)}, 6, v81"); A(f"v_add_u32 {v(vTAB)}, {RTAB}, {v(vTAB)}")
    A(f"s_lshl_b32 {sT0}, {sG_}, 13"); A(f"s_lshl_b32 {sT2}, {sW_}, 7"); A(f"s_add_u32 {sT0}, {sT0}, {sT2}"); A(f"s_add_u32 {sT0}, {sT0}, {WS_EB}")
    A(f"v_lshl_add_u32 v86, v82, 4, {sT0}")
    A(f"s_lshl_b32 {sT2}, {sC_}, 9"); A(f"v_add_u32 {v(vEST)}, {sT2}, v86"); A(lambda: (I("v_cmp_eq_u32 vcc, 7, v81"), I(f"v_cndmask_b32 {v(vEST)}, v90, {v(vEST)}, vcc")))
    A(f"s_sub_u32 {sT2}, {sC_}, 16"); A(f"v_lshl_add_u32 v87, v81, 1, {sT2}")
    A(f"v_lshl_add_u32 {v(vEF)}, v87, 9, v86"); A(f"v_add_u32 {v(vEF+1)}, 512, {v(vEF)}")
    A(lambda: (I("v_cmp_le_i32 vcc, 0, v87"), I(f"v_cndmask_b32 {v(vEF)}, v90, {v(vEF)}, vcc"), I(f"v_cndmask_b32 {v(vEX)}, 0, -1, vcc")))
    A(lambda: (I("v_cmp_le_i32 vcc, -1, v87"), I(f"v_cndmask_b32 {v(vEF+1)}, v90, {v(vEF+1)}, vcc"), I(f"v_cndmask_b32 {v(vEX+1)}, 0, -1, vcc")))
    A(f"s_mul_i32 {sT0}, {sW_}, 2608"); A(f"s_add_u32 {sT0}, {sT0}, {HS}")
    A("v_mul_u32_u24 v86, 336, v82"); A("v_lshl_add_u32 v86, v81, 5, v86"); A(f"v_add_u32 {v(vHSW)}, {sT0}, v86")
    A(f"v_bfe_u32 v86, {vLANE}, 2, 2"); A("v_mul_u32_u24 v86, 336, v86"); A(f"v_and_b32 v87, 32, {vLANE}"); A("v_lshl_add_u32 v86, v87, 1, v86")
    A(f"v_and_b32 v87, 1, {vLANE}"); A("v_lshl_add_u32 v86, v87, 5, v86"); A(f"v_and_b32 v87, 16, {vLANE}"); A("v_add_u32 v86, v86, v87")
    A(f"v_and_b32 v87, 2, {vLANE}"); A("v_lshl_add_u32 v86, v87, 2, v86"); A(f"v_add_u32 {v(vHSR)}, {sT0}, v86")
    A(f"s_mul_i32 {sT0}, {sC_}, {4*160}"); A(f"s_lshr_b32 {sT2}, {sG_}, 1"); A(f"s_lshl3_add_u32 {sT0}, {sT2}, {sT0}"); A(f"s_and_b32 {sT2}, {sG_}, 1")
    A(f"s_lshl1_add_u32 {sT0}, {sT2}, {sT0}"); A(f"s_lshl_b32 {sT0}, {sT0}, 10"); A(f"s_lshl_b32 {sT2}, {sW_}, 9"); A(f"s_add_u32 {sT0}, {sT0}, {sT2}")
    A(f"v_lshrrev_b32 v86, 5, {vLANE}"); A(f"v_mul_u32_u24 v86, {160*1024}, v86"); A(f"v_and_b32 v87, 31, {vLANE}"); A("v_lshl_add_u32 v86, v87, 4, v86"); A(f"v_add_u32 {v(vHSTo)}, {sT0}, v86")
    LOG2E = "0x3fb8aa3b"
    A(lambda: E.wait(vm="par"))
    o += ["v_lshlrev_b32 v70, 16, v70", "v_lshlrev_b32 v71, 16, v71", "v_lshlrev_b32 v72, 16, v72",
          f"v_mul_f32 v70, {LOG2E}, v70", "v_exp_f32 v70, v70", "v_mul_f32 v74, v71, v71"] + bf16r_ops(70, 70)
    o += ["v_mul_f32 v75, v70, v71", "v_mul_f32 v76, v70, v72", f"v_mul_f32 v75, {LOG2E}, v75", "v_exp_f32 v75, v75",
          "v_mul_f32 v76, 0.15915494, v76", "v_rndne_f32 v77, v76", "v_sub_f32 v76, v76, v77", "v_cos_f32 v77, v76", "v_sin_f32 v78, v76",
          "v_fmac_f32 v74, v72, v72", f"v_mul_f32 {v(vLR)}, v75, v77", "v_mul_f32 v78, v75, v78", "v_rcp_f32 v74, v74",
          f"v_add_f32 v77, -1.0, {v(vLR)}", "v_add_f32 v74, v74, v74",
          f"v_mul_f32 {v(vCR)}, v77, v71", f"v_fmac_f32 {v(vCR)}, v78, v72", f"v_mul_f32 {v(vCR)}, {v(vCR)}, v74",
          f"v_mul_f32 {v(vCR+1)}, v77, v72", f"v_fma_f32 {v(vCR+1)}, -v78, v71, {v(vCR+1)}", f"v_mul_f32 {v(vCR+1)}, {v(vCR+1)}, v74",
          f"v_sub_f32 {v(vLR+1)}, 0, v78"]
    o += csq_ops(70, vLR, 78) + csq_ops(72, 70, 78) + csq_ops(70, 72, 78) + csq_ops(vL16, 70, 78)
    o += csq_ops(70, vL16, 78) + csq_ops(72, 70, 78) + csq_ops(vL128, 72, 78) + csq_ops(vL256, vL128, 78)
    o += [f"v_mov_b32 {v(vPQ)}, {v(vCR)}", f"v_mov_b32 {v(vPQ+1)}, {v(vCR+1)}"]
    for bit, L in ((8, vL16), (16, 70), (32, 72)):
        o += [f"v_and_b32 v74, {bit}, {vLANE}", lambda L=L: (I("v_cmp_ne_u32 vcc, 0, v74"), I(f"v_cndmask_b32 v76, 1.0, {v(L)}, vcc"), I(f"v_cndmask_b32 v77, 0, {v(L+1)}, vcc"))]
        o += cmul_ops(vPQ, vPQ, 76, 78)
    def factor(F, Ls):
        r = []
        for n, (bit, L) in enumerate(zip((8, 16, 32), Ls)):
            d = F if n == 0 else 76
            r += [f"v_and_b32 v74, {bit}, {vLANE}", lambda L=L, d=d: (I("v_cmp_eq_u32 vcc, 0, v74"), I(f"v_cndmask_b32 {v(d)}, 1.0, {v(L)}, vcc"), I(f"v_cndmask_b32 {v(d+1)}, 0, {v(L+1)}, vcc"))]
            if n: r += cmul_ops(F, F, 76, 78)
        return r
    o += factor(vF16, (vL16, 70, 72))
    o += csq_ops(70, vL256, 78) + csq_ops(72, 70, 78) + factor(vF256, (vL256, 70, 72))
    return o
def allsum(a_, b_, t):
    o = [f"v_add_f32_dpp {v(t)}, {v(a_)}, {v(a_)} row_ror:8 row_mask:0xf bank_mask:0xf", f"v_add_f32_dpp {v(t+1)}, {v(b_)}, {v(b_)} row_ror:8 row_mask:0xf bank_mask:0xf",
         f"v_mov_b32 {v(a_)}, {v(t)}", f"v_mov_b32 {v(b_)}, {v(t+1)}",
         f"v_permlane16_swap_b32 {v(a_)}, {v(t)}", f"v_permlane16_swap_b32 {v(b_)}, {v(t+1)}",
         f"v_add_f32 {v(a_)}, {v(a_)}, {v(t)}", f"v_add_f32 {v(b_)}, {v(b_)}, {v(t+1)}",
         f"v_mov_b32 {v(t)}, {v(a_)}", f"v_mov_b32 {v(t+1)}, {v(b_)}",
         f"v_permlane32_swap_b32 {v(a_)}, {v(t)}", f"v_permlane32_swap_b32 {v(b_)}, {v(t+1)}",
         f"v_add_f32 {v(a_)}, {v(a_)}, {v(t)}", f"v_add_f32 {v(b_)}, {v(b_)}, {v(t+1)}"]
    return o
def cmul4(d, x, y):
    return [f"v_mul_f32 {v(d[0])}, {v(x[0])}, {v(y)}", f"v_mul_f32 {v(d[1])}, {v(x[0])}, {v(y+1)}",
            f"v_fma_f32 {v(d[0])}, -{v(x[1])}, {v(y+1)}, {v(d[0])}", f"v_fmac_f32 {v(d[1])}, {v(x[1])}, {v(y)}"]
def ssm1():
    o = []
    def rdd(j, comp): DS(f"ds_read_b128 {v((TI if comp else TR) + 4*j, 4)}, {v(vDB+j)} offset:{DUMPS[comp] - DUMPS[1]}", f"dr{j}"); note_read(f"DUMP{comp}")
    for j in range(4):
        o += [lambda j=j: DS(f"ds_read_b128 {v(RT + 4*j, 4)}, {v(vTAB)} offset:{16*j}", f"dr{j}"), lambda j=j: rdd(j, 0), lambda j=j: rdd(j, 1)]
    cur, nx = (vE, vE + 1), (vE2, vE2 + 1)
    for r in range(16):
        if r % 4 == 0: o.append(lambda j=r >> 2: E.wait(lg=f"dr{j}"))
        o += [f"v_mul_f32 {v(TR+r)}, {v(TR+r)}, {v(RT+r)}", f"v_mul_f32_e64 {v(TI+r)}, -{v(TI+r)}, {v(RT+r)}"]
        if r == 0: src = (TR, TI)
        else:
            o += cfma_ops(nx, vLR, src, TR + r, TI + r); src = nx; cur, nx = nx, cur
    assert src == (vE2, vE2 + 1)
    o += cmul4((60, 62), src, vF16) + allsum(60, 62, 64)
    o.append(lambda: (VM(f"buffer_store_dwordx4 v[60:63], {v(vEST)}, {SWS}, 0 offen sc1", "est"), lstamp("epub")))
    return o
def window():
    o = [lambda: DS(f"ds_write_b64 {v(vEQA)}, {v(vE2,2)} offset:{7*64}", "eqw")]
    o += [lambda i=i: DS(f"ds_read_b64 {v(TMP+2*i,2)}, {v(vEQA)} offset:{64*i}", "eq") for i in range(7)]
    for r in range(16):
        o += [f"v_mul_f32 v72, {v(vCR+1)}, {v(TI+r)}", f"v_mul_f32 {v(TI+r)}, {v(vCR)}, {v(TI+r)}",
              f"v_fmac_f32 {v(TI+r)}, {v(vCR+1)}, {v(TR+r)}", f"v_fma_f32 {v(TR+r)}, {v(vCR)}, {v(TR+r)}, -v72"]
    o.append(lambda: E.wait(lg="eq"))
    src = (TMP, TMP + 1); pp = [(vE2, vE2 + 1), (vE, vE + 1)]
    for i in range(1, 7):
        d = pp[i & 1]; o += cfma_ops(d, vL16, src, TMP + 2*i, TMP + 2*i + 1); src = d
    return o + cmul4((vP, vP + 1), src, vCR)
def efetch_issue():
    VM(f"buffer_load_dwordx4 v[64:67], {v(vEF)}, {SWS}, 0 offen sc1", "ef"); VM(f"buffer_load_dwordx4 v[68:71], {v(vEF+1)}, {SWS}, 0 offen sc1", "ef")
def ssm3():
    chk = [f"v_xor_b32 v72, v65, {v(vEX)}", f"v_xor_b32 v73, v67, {v(vEX)}", f"v_xor_b32 v74, v69, {v(vEX+1)}", "v_or3_b32 v72, v72, v73, v74",
           f"v_xor_b32 v73, v71, {v(vEX+1)}", "v_or_b32 v72, v72, v73", "v_cmp_ne_u32 vcc, 0, v72"]
    def check():
        E.wait(vm="ef")
        for c in chk: I(c)
        I("s_cbranch_vccnz L_slow_e"); E.label("L_back_e"); lstamp("eok")
        slow.extend(["L_slow_e:",  f"  buffer_load_dwordx4 v[64:67], {v(vEF)}, {SWS}, 0 offen sc1", f"  buffer_load_dwordx4 v[68:71], {v(vEF+1)}, {SWS}, 0 offen sc1",
                     "  s_waitcnt vmcnt(0)"] + ["  " + c for c in chk] + spin_guard("L_back_e", 0x100) + ["  s_cbranch_vccnz L_slow_e", "  s_branch L_back_e"])
    o = [check] + cfma_ops((vE, vE + 1), vL128, (64, 66), 68, 70)
    o += cmul4((vE2, vE2 + 1), (vE, vE + 1), vF256) + allsum(vE2, vE2 + 1, 72)
    src = (vE2, vE2 + 1)
    o += cfma_ops((vE, vE + 1), vPQ, src, vP, vP + 1)
    src = (vE, vE + 1)
    for r in range(16):
        d = (TR + r, TI + r); o += cfma_ops(d, vLR, src, d[0], d[1]); src = d
        if r & 1: o += [f"v_cvt_pk_bf16_f32 {v(TMP + (r>>1))}, {v(TR+r-1)}, {v(TR+r)}", f"v_cvt_pk_bf16_f32 {v(TMP + 8 + (r>>1))}, {v(TI+r-1)}, {v(TI+r)}"]
    for comp in range(2):
        o += [lambda j=j, comp=comp: DS(f"ds_write_b128 {v(vHSW)}, {v(TMP + 8*comp + 4*j, 4)} offset:{16*j}", "hsw") for j in range(2)]
        for i in range(2):
            for ph in range(2):
                def rd(i=i, ph=ph, comp=comp):
                    DS(f"ds_read_b64_tr_b16 {v(RT + 8*comp + 4*i + 2*ph, 2)}, {v(vHSR)} offset:{4*ph*336 + 128*i}", f"hr{comp}{i}"); note_read("HS")
                o.append(rd)
    for comp in range(2):
        for i in range(2):
            def st(i=i, comp=comp):
                I(f"s_mov_b32 {sT0}, {2*i*160*1024 + comp*4096}"); E.wait(lg=f"hr{comp}{i}")
                VM(f"buffer_store_dwordx4 {v(RT + 8*comp + 4*i, 4)}, {v(vHSTo)}, {SWS}, {sT0} offen" + STP, "hst")
            o.append(st)
    o.append(lambda: lstamp("hst"))
    return o
work = []
def pop_work(n):
    while n > 0 and work: runall([work.pop(0)]); n -= 1
def between(n=8): return lambda: pop_work(n)
live.append(items["OFT"])
I(f"v_and_b32 {v(vQR)}, 3, {vLANE}"); I(f"v_lshlrev_b32 {v(vQR)}, 2, {v(vQR)}"); I(f"v_add_u32 {v(vQR)}, {PRG}, {v(vQR)}"); I(f"v_mov_b32 {v(vQV)}, 0")
I(f"s_lshl_b32 {sT0}, {sW_}, 2"); I(f"s_add_u32 {sT0}, {sT0}, {PRG}"); I(f"v_mov_b32 {v(vQW)}, {sT0}")
issue("S2"); issue("S3"); lstamp("b0")
def hchk(word, st):
    off = {"PC": 0, "PD": 32}[word]; val = PCV[st] if word == "PC" else st
    chk_spin(val, vQR, vQT, off)
    em, lg = signals[(word, val)]; known[id(em)] = max(known[id(em)], lg)
published = [0]
def pub(ch):
    assert PHV[ch] > published[0]
    E.wait(vm=[n for c in CHUNKS[published[0]:PHV[ch]] for n in chunk_items(c)]); signal("PH", PHV[ch], vQW, vQV, 16); published[0] = PHV[ch]
def auto_pub(lead):
    best = None
    for c in CHUNKS[published[0]:]:
        if all(n in E.vm and done_issue.get(n) and len(E.vm) - E.last(E.vm, n) >= lead for n in chunk_items(c)): best = c
        else: break
    if best: pub(best)
def s47():
    for n in ("S4", "S5", "S6", "S7"): issue(n)
if OPT["xi"] < 0: s47()
pub("S2")
setup1()
I(f"s_lshl_b32 {sT0}, {sW_}, 11"); I(f"s_add_u32 {sT0}, {sT0}, {HS}"); I(f"v_lshl_add_u32 v86, {vLANE}, 4, {sT0}")
E.wait(vm="par"); DS("ds_write_b128 v86, v[4:7]", "oft"); I("v_mov_b32 v92, v86"); E.wait(lg="oft")
if OPT["xi"] >= 0: hchk("PC", "Xi"); s47()
w2 = setup2(); runall(w2[:OPT["w2a"]])
hchk("PC", "X"); lstamp("xd")
I("v_mov_b32 v91, 0"); VM(f"buffer_load_dword {v(vPOLL)}, v91, {SDBG}, 0 offen sc1", "tag")
issue("G0"); pub("S6"); runall(w2[OPT["w2a"]:OPT["w2b"]]); issue("G1"); runall(w2[OPT["w2b"]:]); pub("G0"); hchk("PC", "S3"); issue("G2"); pub("G1"); issue("G3"); setup1b()
tag_check("H", vPOLL, 88)
I(f"s_mov_b32 s74, {sNON}"); I(f"s_mov_b32 s75, {sNON}")
runall([f"v_mov_b32 v61, {sNON}", f"v_mov_b32 v63, {sNON}", f"v_and_b32 {v(vEX)}, {sNON}, {v(vEX)}", f"v_and_b32 {v(vEX+1)}, {sNON}, {v(vEX+1)}",
        f"v_lshl_add_u32 {v(vUP)}, {vLANE}, 4, {sM4}"])
known[id(EC)] = max(known[id(EC)], signals[("PC", PCV["S5"])][1]); hplace("DUMP0"); hplace("DUMP1")
DS("ds_write_b64 v92, v[8:9] offset:1024", "oft"); DS("ds_write_b32 v92, v12 offset:1032", "oft"); DS("ds_write_b32 v92, v61 offset:1036", "oft")
runall(q_setup()); issue("C0"); issue("W0")
if OPT["w1e"]: issue("W4")
I(f"s_setprio {OPT['pb']}")
hchk("PC", "dump"); lstamp("bD")
ncp = [0]
def code_touch():
    ncp[0] += 1
    I("s_getpc_b64 s[54:55]"); E.label(f"L_pc{ncp[0]}")
    I(f"s_sub_u32 s54, s54, L_pc{ncp[0]}-{NAME}_kernel"); I("s_subb_u32 s55, s55, 0")
    I(f"s_and_b32 {sT0}, {sGL}, 3"); I("v_and_b32 v78, 0xfc, v0"); I(f"v_or_b32 v78, {sT0}, v78"); I("v_lshlrev_b32 v78, 7, v78")
    VM("global_load_dword v79, v78, s[54:55]", "code")
def pass2():
    t0 = OPT["bd"] + 2
    s1, wn, s3 = ssm1(), window(), ssm3()
    ins = []
    def spread(name, ta, tb, pre=None):
        holder = {}
        n = 6 if name[0] == "G" else 4
        for k in range(n):
            def f(k=k):
                if k == 0:
                    if pre: hchk(*pre)
                    holder["ops"] = item_ops(name)
                holder["ops"][k]()
            ins.append((ta + (tb - ta) * k / n, f))
    ins.append((OPT["pg2"], lambda: (E.wait(lg="dr3"), pub("G2")))); ins.append((48, lambda: pub("G3")))
    ins.sort(key=lambda x: x[0])
    t = [float(t0)]
    def cyc(): return E.nvec * OPT["vc"] / 10.0 + (E.count + E.nops - E.nvec) * 4.0
    def adv(c0): t[0] += (cyc() - c0) / 33.0
    def run(ops):
        for op in ops:
            while ins and ins[0][0] <= t[0]:
                c0 = cyc(); ins.pop(0)[1](); adv(c0)
            c0 = cyc(); runall([op]); adv(c0)
    def idle_until(tt):
        while ins and ins[0][0] <= tt: t[0] = max(t[0], ins[0][0]); ins.pop(0)[1]()
        t[0] = max(t[0], tt)
    run(s1); tpub = t[0]
    k = 0
    while k < len(wn) and t[0] < tpub + OPT["efd"]: run([wn[k]]); k += 1
    efetch_issue(); lstamp("ef"); tf = t[0]
    if OPT["cp"] & 1: code_touch()
    run(wn[k:]); hchk("PC", "G1"); hplace("HS")
    tc = t[0]
    I(f"s_setprio {OPT['pc']}"); run(s3); ts = t[0]; assert not ins
    E.wait(vm="hst"); signal("PD", 2, vQW, vQV, 32); hchk("PD", 2); flag_send("s20"); lstamp("hflag")
    if OPT.get("log"): print(f"helper est: epub {tpub:.0f} efetch {tf:.0f} check {tc:.0f} stores {ts:.0f}", file=sys.stderr)
pass2()
issue("XE")
if not OPT["w1e"]: issue("W4")
if OPT["cp"] & 2: code_touch()
pub("KX")
for name, kn in cplaced:
    save = dict(known); known.update({id(EC): 0, id(EH): 0})
    for w_, val in kn:
        em, lg = signals[(w_, val)]; known[id(em)] = max(known[id(em)], lg)
    hplace(name); done_issue[name] = True; known.update(save)
I(f"s_setprio {OPT['pd']}")
if OPT["ep"]:
    hchk("PC", "U0"); poll_issue("s20", "ph"); poll_check("s20", "ph", 0x10000); lstamp("okh"); pub("K0")
I(f"s_mov_b32 s19, {WS_FP}")
hchk("PC", "T"); lstamp("gT")
unpark("C0"); I("s_setprio 2")
hchk("PC", "gsa"); flag_send("s19"); lstamp("fa"); I(f"s_setprio {OPT['pd']}")
wl_ = list(("W1", "W2", "W3")[3 - OPT["wl"]:])
if OPT["u0"]: unpark("W0")
for k, bn in enumerate(bar_names[1:]):
    E.wait(vm={"bP3": ["W5"], "bP2": wl_}.get(bn, []), lg={"bP0": ["upC0"], "bP2": ["upW0"], "bP3": ["upW4"]}.get(bn, [])); E.barrier()
    known[id(EC)] = max(known[id(EC)], EC.barriers[k + 1][1])
    if bn == "bP0":
        poll_check("s19", "pa", 0x1); lstamp("oka"); pub("KA")
        I("s_setprio 2"); hchk("PC", "gst"); flag_send("s21"); I(f"s_setprio {OPT['pd']}")
        for n_ in wl_: issue(n_)
        if not OPT["u0"]: unpark("W0")
        poll_check("s21", "pg", 0x1000000); lstamp("okg"); pub("KB")
    if bn == "bP2": issue("W5"); unpark("W4")
    if bn == "bP3": assert known[id(EC)] >= min(items["C2"].last_read, 10**9)
    if bn == "bP4": assert known[id(EC)] >= items[RT2].last_read
assert len(EH.barriers) == len(EC.barriers)
dump_stamps("H")
E.label("L_end"); I("s_endpgm")

DOC = """; Fused LayerNorm + S5 scan + bilinear GLU, one launch, 256 workgroups (one per CU), written by dev/gen16.py.
;                        then the output GEMM for 128 rows x 64 columns over one half of K; the partner
;                        workgroup (c, g^8) holds the other half and the two swap 64x64 partial tiles.
;   waves 4-7 (helper):  LDS-DMA loads, exact chunked scan (local end states exchanged between row blocks),
;                        hand-off flags.  Every hand-off carries a per-launch tag published through d_debug.
"""
hdr = open("cdna_kernels/" + NAME + ".s.ref").read().split("; Override launch geometry")[0]
out = hdr
if OPT["lst"]: out += "; cstamps: " + " ".join(lnames["C"]) + "\n; hstamps: " + " ".join(lnames["H"]) + f"\n; rt: {OPT['rt']}\n"
out += f"; @launch grid=(256,1,1) block=(512,1,1) lds={LDS_BYTES}\n"
out += DOC
out += f'.amdgcn_target "amdgcn-amd-amdhsa--gfx950"\n.text\n.globl {NAME}_kernel\n.p2align 8\n.type {NAME}_kernel,@function\n'
kc = next(k for k, l in enumerate(EC.lines) if "v_and_b32 v90, 31" in l)
out += E0.text() + "\n".join(EC.lines[:kc]) + "\n  s_branch L_cmain\n" + EH.text() + "L_cmain:\n" + "\n".join(EC.lines[kc:]) + "\n" + "\n".join(slow) + "\n"
out += f"L_pad:\n.fill (37120 - (L_pad - {NAME}_kernel)) / 4, 4, 0xbf810000\n"
out += f""".section .rodata,"a"
.p2align 6
.amdhsa_kernel {NAME}_kernel
  .amdhsa_next_free_vgpr 256
  .amdhsa_next_free_sgpr 102
  .amdhsa_accum_offset 256
  .amdhsa_group_segment_fixed_size 0
  .amdhsa_kernarg_size 128
  .amdhsa_user_sgpr_count 2
  .amdhsa_user_sgpr_kernarg_segment_ptr 1
  .amdhsa_system_sgpr_workgroup_id_x 1
.end_amdhsa_kernel
"""
open(sys.argv[1], "w").write(out)
print(f"compute {EC.count}+{EC.nops} helper {EH.count}+{EH.nops} barriers {len(bar_names)}: {' '.join(bar_names)}", file=sys.stderr)
```

```python
import sys
from emit import Emitter
NAME = "parallel_sum__ssm_conv_s5__glu_gated_bilinear__prompt"
OPT = dict(lst=0, rt=1, D=4, D2=7, D3=6, NU=2, gfd=40, prio=1, bd=15, ipc=85, slp=2, slq=0, wl=2, ovr=0, cp=0, sp=2, dsp=3, efn=90, rot=8, lead=12, ge=0, gf=1, gg=5, gp=2, mw=0, ar=1, nr=8, bk=12, c34=1, f0=0, f2=1, pw=0, pd=2, nwt=0, a0=6, al=16, nb=60, gs=0, tw=0, osc=1, d64=0, w2a=20, w2b=110, pb=0, c1=117, c45=1, u0s=170, xi=-1, pc=2, map=0, xj=1, nd=2, skw=2, gj=7, pjd=10, ea=0, pl=14, w1e=0, xw=1, ct=1, stg=0, x3=0, wr=4, pg2=21, ep=1, ord=1, ka=20, kb=56, ab=2, u0=1, pls=0, pll=0, bal=1, skp=1, vc=85, efd=35, ecd=20)
for a_ in sys.argv[2:]:
    k_, v_ = a_.split("="); OPT[k_] = int(v_)

WS_EB = 0xA00000; WS_FH = 0xA40000; WS_FG = 0xA48000; WS_ST = 0xC00000; WS_FP = 0xA50000; WS_PB = 0x1000000; WS_SIZE = 0x1800000
U8 = 8192; MISC = 18 * U8
RTAB = MISC; EQ = MISC + 1024; HS = MISC + 5120; XE = MISC + 5120
DUMP = 0
PRG = MISC + 15872
LDS_BYTES = 163840
OOB = 0x80000000
sW_, sC_, sG_, sGL, sGH, sJ0 = "s3", "s4", "s5", "s6", "s7", "s8"
sT0, sT1, sT2, sT3 = "s9", "s10", "s11", "s12"
SX, SS, SG, SC, SWD, SWS, SOUT, SDBG = ("s[48:51]", "s[52:55]", "s[56:59]", "s[60:63]", "s[64:67]", "s[68:71]", "s[72:75]", "s[76:79]")
sK = [f"s{80+i}" for i in range(8)]
sM4, sM2, sM6 = "s88", "s89", "s94"
sQW, sQHG, sSO = "s95", "s96", "s100"
sNON, sC10, sC01, sC11 = "s90", "s91", "s92", "s93"
sSPIN = "s97"; sSP2 = "s99"; sCL = "s101"
sCW = "s98"; WMUL = {4: 3, 2: 6, 1: 0}[OPT["wr"]]
sRA = "s52"
def q_setup(): return [f"s_add_u32 {sQW}, {sGL}, {sCL}", f"s_mul_i32 {sRA}, {sGH}, {6*8192}", f"s_add_u32 {sRA}, {sRA}, 65536"]
def q_h(so, i): I(f"s_add_u32 {so}, {sQW}, {i}"); I(f"s_and_b32 {so}, {so}, 3"); I(f"s_lshl2_add_u32 {so}, {sGH}, {so}")
def q_u(so, i):
    I(f"s_add_u32 {so}, {sQW}, {i}"); I(f"s_and_b32 {so}, {so}, {3 if i < 4 else 1}")
    if i >= 4: I(f"s_add_u32 {so}, {so}, 4")
def w_soff(so, i, tmp):
    q_u(tmp, i); I(f"s_lshl2_add_u32 {tmp}, {tmp}, {sW_}"); I(f"s_and_b32 {so}, {tmp}, 7"); I(f"s_lshl3_add_u32 {so}, {sGH}, {so}"); I(f"s_mul_i32 {so}, {so}, 3")
    I(f"s_lshr_b32 {tmp}, {tmp}, 3"); I(f"s_add_u32 {so}, {so}, {tmp}")
    if OPT["bal"]:
        I(f"s_sub_u32 {tmp}, {so}, 22"); I(f"s_cmp_lt_u32 {tmp}, 2"); I(f"s_cselect_b32 {so}, 64, {so}"); I(f"s_lshl_b32 {tmp}, {sGH}, 1"); I(f"s_sub_u32 {so}, {so}, {tmp}")
    I(f"s_lshl_b32 {so}, {so}, 15")
STP = [" sc1", "", " nt"][OPT["pls"]]
vLANE = "v1"
MF = "v_mfma_f32_32x32x16_bf16"
def v(n, k=1): return f"v{n}" if k == 1 else f"v[{n}:{n+k-1}]"

EC, EH, E0 = Emitter(), Emitter(), Emitter()
E = E0
def I(t): return E.I(t)
def VM(t, tag=None): return E.VM(t, tag)
def DS(t, tag=None): return E.DS(t, tag)
slow = []
lnames = {"C": [], "H": []}
def lstamp(name):
    who = "C" if E is EC else "H"
    if OPT["lst"] and name in LSET[who] and len(lnames[who]) < 12:
        k = 24 + 2 * len(lnames[who]); lnames[who].append(name); I(f"{'s_memrealtime' if OPT['rt'] else 's_memtime'} s[{k}:{k+1}]")
LSETS = {0: ([], []),
         1: (["X6", "X7", "S0", "G0", "G4", "T", "J0", "J4", "snd", "kp", "last", "end"], ["b0", "xd", "bD", "epub", "ef", "eok", "hst", "hflag", "okh", "gT", "okg", "end"]),
         2: (["S0", "S2", "S4", "S6", "G0", "G1", "G2", "G3", "G4", "G5", "G6", "T"], ["b0", "xd", "bD", "epub", "ef", "eok", "hst", "hflag", "okh", "gT", "okg", "end"]),
         3: (["T", "K0", "J0", "J2", "J4", "J7", "snd", "J10", "J13", "kp", "last", "end"], ["b0", "xd", "bD", "epub", "ef", "eok", "hst", "hflag", "okh", "gT", "okg", "end"])}
LSETS[9] = ([], LSETS[1][1])
LSETS[4] = (["T", "e2", "k0", "ga", "K0", "J0", "J1", "J2", "J3", "J4", "J5", "J6"], [])
LSETS[5] = (["J6", "J7", "J8", "J9", "snd", "J10", "J12", "J14", "J16", "J17", "kp", "last"], [])
LSET = dict(zip("CH", LSETS[OPT["lst"]])); LSET["H"] = ["bD", "epub", "eok", "hst", "hflag", "okh", "fa", "oka"]
def runall(ops):
    for op in ops:
        if isinstance(op, str): I(op)
        else: op()
def csq_ops(d, x, t):
    return [f"v_mul_f32 {v(t)}, {v(x+1)}, {v(x+1)}", f"v_add_f32 {v(t+1)}, {v(x)}, {v(x)}", f"v_fma_f32 {v(d)}, {v(x)}, {v(x)}, -{v(t)}", f"v_mul_f32 {v(d+1)}, {v(t+1)}, {v(x+1)}"]
def cmul_ops(d, x, y, t):
    return [f"v_mul_f32 {v(t)}, {v(x)}, {v(y)}", f"v_mul_f32 {v(t+1)}, {v(x)}, {v(y+1)}",
            f"v_fma_f32 {v(t)}, -{v(x+1)}, {v(y+1)}, {v(t)}", f"v_fma_f32 {v(d+1)}, {v(x+1)}, {v(y)}, {v(t+1)}", f"v_mov_b32 {v(d)}, {v(t)}"]
def cfma_ops(d, L, x, br, bi):
    return [f"v_fma_f32 {v(d[0])}, {v(L)}, {v(x[0])}, {v(br)}", f"v_fma_f32 {v(d[1])}, {v(L)}, {v(x[1])}, {v(bi)}",
            f"v_fma_f32 {v(d[0])}, -{v(L+1)}, {v(x[1])}, {v(d[0])}", f"v_fma_f32 {v(d[1])}, {v(L+1)}, {v(x[0])}, {v(d[1])}"]
def bf16r_ops(d, s): return [f"v_cvt_pk_bf16_f32 {v(d)}, {v(s)}, {v(s)}", f"v_and_b32 {v(d)}, 0xffff0000, {v(d)}"]
def srd(dst, lo, size):
    n = int(dst[2:dst.index(":")])
    I(f"s_mov_b64 s[{n}:{n+1}], s[{lo}:{lo+1}]"); I(f"s_mov_b32 s{n+2}, {size}"); I(f"s_mov_b32 s{n+3}, 0x20000")
def srd_sel(dst, p0, p1, size):
    n = int(dst[2:dst.index(":")])
    I(f"s_cselect_b64 s[{n}:{n+1}], s[{p1}:{p1+1}], s[{p0}:{p0+1}]"); I(f"s_mov_b32 s{n+2}, {size}"); I(f"s_mov_b32 s{n+3}, 0x20000")
def ktab(i):
    I(f"s_add_u32 {sK[i]}, {sJ0}, {i}"); I(f"s_and_b32 {sK[i]}, {sK[i]}, 7"); I(f"s_lshl_b32 {sK[i]}, {sK[i]}, 7")
def spin_guard(lbl_back, inc):
    return ([f"  s_add_u32 s15, s15, {inc}" if inc >= 0 else f"  s_bitset1_b32 s15, {-inc}"] if OPT["lst"] else []) + [f"  s_add_u32 {sSPIN}, {sSPIN}, 1", f"  s_cmp_gt_u32 {sSPIN}, 0x200000", f"  s_cbranch_scc1 {lbl_back}"]
def tag_check(who, vp, vz):
    E.wait(vm="tag"); I(f"v_readfirstlane_b32 {sNON}, {v(vp)}"); I(f"s_cmp_eq_u32 {sNON}, 0"); I(f"s_cbranch_scc1 L_slow_tag{who}"); E.label(f"L_back_tag{who}")
    slow.extend([f"L_slow_tag{who}:", "  s_sleep 1", f"  v_mov_b32 {v(vz)}, 0", f"  buffer_load_dword {v(vp)}, {v(vz)}, {SDBG}, 0 offen sc1", "  s_waitcnt vmcnt(0)",
                 f"  v_readfirstlane_b32 {sNON}, {v(vp)}"] + spin_guard(f"L_back_tag{who}", 1) +
                [f"  s_cmp_eq_u32 {sNON}, 0", f"  s_cbranch_scc1 L_slow_tag{who}", f"  s_branch L_back_tag{who}"])
signals = {}
def signal(word, val, va, vt, off):
    signals[(word, val)] = (E, E.lg_done)
    I(f"v_mov_b32 {v(vt)}, {val}"); DS(f"ds_write_b32 {v(va)}, {v(vt)} offset:{off}", "sig")
nchk = [0]
def chk_issue(va, vt, off):
    nchk[0] += 1; DS(f"ds_read_b32 {v(vt)}, {v(va)} offset:{off}", f"chk{nchk[0]}"); return f"chk{nchk[0]}"
def chk_test(tag, val, va, vt, off, inc):
    E.wait(lg=tag)
    I(f"v_cmp_gt_u32 vcc, {val}, {v(vt)}"); I(f"s_cbranch_vccnz L_slow_{tag}"); E.label(f"L_back_{tag}")
    slow.extend([f"L_slow_{tag}:", f"  ds_read_b32 {v(vt)}, {v(va)} offset:{off}", "  s_waitcnt lgkmcnt(0)", f"  v_cmp_gt_u32 vcc, {val}, {v(vt)}"]
                + spin_guard(f"L_back_{tag}", inc) + [f"  s_cbranch_vccnz L_slow_{tag}", f"  s_branch L_back_{tag}"])
def chk_spin(val, va, vt, off):
    nchk[0] += 1; lbl = f"L_spin{nchk[0]}"
    E.label(lbl)
    DS(f"ds_read_b32 {v(vt)}, {v(va)} offset:{off}", lbl); I(f"s_sub_u32 {sSP2}, {sSP2}, 1"); I("s_cbranch_scc1 L_end")
    E.wait_all(lg=True)
    I(f"v_cmp_gt_u32 vcc, {val}, {v(vt)}"); I(f"s_cbranch_vccnz {lbl}")
def dump_stamps(who):
    if not OPT["lst"]: return
    E.wait_all(vm=True); lstamp("end"); E.wait_all(lg=True)
    n = len(lnames[who])
    for k in range(n): I(f"v_writelane_b32 v2, s{24+2*k}, {k}")
    I(f"v_writelane_b32 v2, {n}, 61"); I("v_writelane_b32 v2, s15, 60"); I("v_writelane_b32 v2, s14, 63")
    I(f"s_lshl3_add_u32 {sT0}, s2, {sW_}"); I(f"s_add_u32 {sT0}, {sT0}, {4 if who == 'H' else 0}"); I(f"s_lshl_b32 {sT0}, {sT0}, 8"); I(f"s_add_u32 {sT0}, {sT0}, {WS_ST}")
    I(f"v_lshlrev_b32 v3, 2, {vLANE}")
    VM(f"buffer_store_dword v2, v3, {SWS}, {sT0} offen")

NU = OPT["NU"]; assert NU == 2

BASE_OF = {}
for i in range(8): BASE_OF[f"X{i}"] = (2 * (i & 3) * U8, 16384)
for i, u in enumerate(range(8, 16)): BASE_OF[f"S{i}"] = (u * U8, 8192)
for i, u in enumerate([0, 3, 6, 9, 0, 3, 12, 15]): BASE_OF[f"G{i}"] = (u * U8, 24576)
DUMPS = [16 * U8, 12 * U8]
BASE_OF["DUMP0"] = (DUMPS[0], 16384); BASE_OF["DUMP1"] = (DUMPS[1], 16384); BASE_OF["XE"] = (XE, 8192); BASE_OF["HS"] = (HS, 10432); BASE_OF["OFT"] = (HS, 8192)
slot_of = {"C1": 3, "C2": 4, "C3": 5, "W1": 0, "W2": 1, "W3": 2, "C0": 6, "W0": 7, "W4": 8, "W5": 3}
RT_ = {"C0": 168, "W0": 184, "W4": 200}
ND = OPT["nd"]
CO = ["C1", "C2", "C3", "C0"]; WO = ["W1", "W2", "W3", "W0", "W4", "W5"]
SK = [["W1"], ["W1", "W4"], []][OPT["skw"]]
jobs = [(t, "sk") for t in CO[:4-ND]] + [(t, "s") for t in CO[4-ND:]] + [(t, "sk" if t in SK else "s") for t in WO] + [(t, "k") for t in WO if t not in SK] + [(t, "k") for t in CO[4-ND:]]
NJ1 = 10
def chunk_items(ch):
    i = ch[1:]
    if ch[0] == "S": return [f"S{i}", f"S{int(i)+1}"]
    return {"K": ["XE"] if ch == "KX" else [], "G": [f"G{i}"]}[ch[0]]
RED = slot_of["C2"] * 16384; assert ND <= 2
CHUNKS = ["S0", "S2", "S4", "S6"] + [f"G{i}" for i in range(4)] + ["KX", "K0", "KA", "KB"]
PHV = {c: k + 1 for k, c in enumerate(CHUNKS)}
CEV = {"G0": 25, "G1": 49, "G2": 74, "G3": 99, "G4": 122, "G5": 145, "U0": OPT["u0s"]}
STAGES = ["Xi", "X", "S3", "S5", "dump"] + sorted(CEV, key=CEV.get) + ["T", "gsa", "gst", "pj"]
PCV = {c: k + 1 for k, c in enumerate(STAGES)}
for n, s in slot_of.items(): BASE_OF[n] = (s * 16384, 16384)

class Item: pass
items = {}
for n, (b, sz) in BASE_OF.items():
    it = Item(); it.name, it.base, it.size = n, b, sz; it.first_bar = None; it.last_read = None; it.reader = None; items[n] = it
bar_names = []
def note_read(name):
    it = items[name]
    if it.first_bar is None: it.first_bar = len(E.barriers)
    it.last_read = len(E.lg); it.last_bar = len(E.barriers); it.reader = E

E = E0
E.label(f"{NAME}_kernel")
I("s_cmp_ge_u32 s2, 256"); I("s_cbranch_scc1 L_end")
I("s_load_dwordx16 s[16:31], s[0:1], 0")
I("s_getpc_b64 s[98:99]"); I(f"s_bfe_u32 {sT0}, s2, 0x20003"); I("v_lshrrev_b32 v80, 3, v0"); I(f"v_lshl_add_u32 v80, v80, 2, {sT0}"); I("v_lshlrev_b32 v80, 7, v80")
VM("global_load_dword v95, v80, s[98:99]", "code")
I("s_load_dwordx16 s[32:47], s[0:1], 64")
I("s_memrealtime s[14:15]")
I("v_lshrrev_b32 v80, 6, v0"); I(f"v_and_b32 {vLANE}, 63, v0"); I(f"v_readfirstlane_b32 {sT3}, v80")
sR8 = "s19" if False else None
if OPT["map"] == 0:
    I(f"s_bfe_u32 {sT0}, s2, 0x20001"); I(f"s_lshr_b32 {sCL}, s2, 6"); I(f"s_lshl2_add_u32 {sC_}, {sT0}, {sCL}")
    I(f"s_bfe_u32 {sGL}, s2, 0x30003"); I(f"s_lshl1_add_u32 {sJ0}, {sCL}, {sGL}")
    I(f"s_and_b32 {sGH}, s2, 1"); I(f"s_lshl3_add_u32 {sG_}, {sGH}, {sGL}"); I(f"s_mov_b32 {sQW}, {sGL}")
    if OPT["xj"]: I(f"s_add_u32 {sJ0}, {sJ0}, {sT0}")
else:
    I(f"s_and_b32 {sT0}, s2, 1"); I(f"s_lshr_b32 {sQW}, s2, 5"); I(f"s_lshl3_add_u32 {sC_}, {sT0}, {sQW}")
    I(f"s_bfe_u32 {sCL}, s2, 0x20003"); I(f"s_bfe_u32 {sT0}, s2, 0x20001"); I(f"s_lshl2_add_u32 {sG_}, {sT0}, {sCL}")
    I(f"s_and_b32 {sGL}, {sG_}, 7"); I(f"s_lshr_b32 {sGH}, {sG_}, 3"); I(f"s_lshl1_add_u32 {sJ0}, {sCL}, {sQW}")
for i in range(2): ktab(i)
I(f"s_and_b32 {sW_}, {sT3}, 3"); I(f"s_lshl_b32 {sM4}, {sW_}, 12")
I(f"v_lshrrev_b32 v81, 3, {vLANE}"); I(f"v_and_b32 v82, 7, {vLANE}")
I("v_lshrrev_b32 v84, 1, v81"); I("v_xor_b32 v83, v82, v84"); I("v_lshlrev_b32 v83, 4, v83"); I("v_xor_b32 v85, 64, v83")
I(f"v_lshlrev_b32 v78, 2, {vLANE}"); I("v_mov_b32 v79, 0"); I(f"v_add_u32 v78, {PRG}, v78"); DS("ds_write_b32 v78, v79", "prz")
I(f"s_mov_b32 {sSP2}, 0x1000000"); I(f"s_and_b32 {sCW}, {sCL}, {3 if OPT['wr'] == 4 else 1}")
I(f"s_cmp_ge_u32 {sT3}, 4"); I("s_cbranch_scc1 L_helper")

E = EC
vP1 = [2, 3, 4, 5]; vGT = 6; vNM = 7; vR2 = 0
FB0, NFB = 8, 6
ACCG = [32, 64, 96]; ACCU = [48, 80, 112]; ACC_R, ACC_I = 96, 112
XF = 128
vXo = [86, 87, 88, 89]
def cbar(name, vm=(), lg=()):
    E.wait(vm=vm, lg=lg); E.barrier(); bar_names.append(name)
I("v_and_b32 v84, 4, v81"); I("v_and_b32 v80, 3, v81"); I("v_lshl_add_u32 v84, v84, 2, v80")
I(f"s_lshl2_add_u32 {sT0}, {sC_}, {sW_}"); I(f"s_lshl_b32 {sT0}, {sT0}, 5")
I(f"v_add_lshl_u32 v84, v84, {sT0}, 10")
I(f"v_add_u32 {v(vXo[0])}, v84, v83"); I(f"v_add_u32 {v(vXo[1])}, v84, v85")
I(f"v_add_u32 {v(vXo[2])}, 6144, {v(vXo[0])}"); I(f"v_add_u32 {v(vXo[3])}, 9216, {v(vXo[1])}"); I(f"v_add_u32 {v(vXo[1])}, 3072, {v(vXo[1])}")
I("s_mov_b32 s50, 2097152"); I("s_mov_b32 s51, 0x20000")
E.wait_all(lg=True)
I("s_mov_b64 s[48:49], s[16:17]")
def X_issue(i):
    I(f"s_add_u32 m0, {sM4}, {items[f'X{i}'].base}")
    for q in range(4): VM(f"buffer_load_dwordx4 {v(vXo[q])}, {SX}, {sK[i]} offen" + (f" offset:{q*1024}" if q else "") + " lds", f"X{i}")
X_issue(0); X_issue(1)
if OPT["prio"] == 1: I("s_setprio 1")
for i in range(2, 8): ktab(i)
X_issue(2)
if OPT["x3"]: X_issue(3)
cbar("b0")
I(f"v_and_b32 v90, 31, {vLANE}"); I(f"v_lshrrev_b32 v91, 5, {vLANE}")
I("v_bfe_u32 v92, v90, 1, 3"); I("v_xor_b32 v92, v92, v91"); I("v_lshlrev_b32 v92, 4, v92"); I("v_lshl_add_u32 v92, v90, 7, v92")
I(f"v_add_u32 {v(vP1[0])}, {sM4}, v92")
for s in range(1, 4): I(f"v_xor_b32 {v(vP1[s])}, {32*s}, {v(vP1[0])}")
I(f"s_mov_b32 {sC11}, 0x3f803f80"); I(f"s_mov_b32 {sC10}, 0x00003f80"); I(f"s_mov_b32 {sC01}, 0x3f800000")
for r in range(64, 72): I(f"v_mov_b32 v{r}, 0")
srd(SWS, 46, WS_SIZE); srd(SOUT, 42, 4194304)
I(f"s_cmp_ge_u32 {sW_}, 2"); srd_sel(SG, 36, 38, 1409024); srd_sel(SC, 26, 28, 524288); I(f"s_mul_i32 {sM6}, {sW_}, 6144"); srd(SWD, 40, 1409024)
I(f"s_mov_b32 {sSPIN}, 0"); I("s_mov_b32 s15, 0"); I("s_mov_b64 s[22:23], s[32:33]"); I("s_mov_b64 s[20:21], s[40:41]")
I(f"v_bfe_u32 v92, {vLANE}, 2, 2"); I("v_lshl_add_u32 v92, v91, 3, v92"); I(f"v_mul_u32_u24 {v(vGT)}, 192, v92")
I(f"v_and_b32 v93, 16, {vLANE}"); I(f"v_lshl_add_u32 {v(vGT)}, v93, 1, {v(vGT)}")
I(f"v_and_b32 v93, 1, {vLANE}"); I(f"v_lshl_add_u32 {v(vGT)}, v93, 4, {v(vGT)}")
I(f"v_and_b32 v93, 2, {vLANE}"); I(f"v_lshl_add_u32 {v(vGT)}, v93, 2, {v(vGT)}")
I(f"s_lshl_b32 {sT0}, {sW_}, 7"); I(f"s_add_u32 {sT0}, {sT0}, {RTAB}")
I("v_bfe_u32 v93, v90, 2, 1"); I("v_lshlrev_b32 v94, 4, v93"); I("v_lshrrev_b32 v93, 3, v90"); I("v_lshl_add_u32 v94, v93, 2, v94")
I("v_and_b32 v93, 3, v90"); I("v_add_u32 v94, v94, v93"); I(f"v_lshl_add_u32 v94, v94, 2, {sT0}")
FR = dict(r=72, t=73, v=74, w=75)
I(f"v_and_b32 v72, 3, {vLANE}"); I("v_lshlrev_b32 v72, 2, v72"); I(f"v_add_u32 v72, {PRG}, v72")
I(f"s_lshl_b32 {sT0}, {sW_}, 2"); I(f"s_add_u32 {sT0}, {sT0}, {PRG}"); I(f"v_mov_b32 v75, {sT0}")
def csig(st): signal("PC", PCV[st], FR["w"], FR["v"], 0)
for i in range(8):
    it = items[f"X{i}"]
    E.wait(vm=it.name)
    for s in range(4):
        DS(f"ds_read_b128 {v(XF + 16*i + 4*s, 4)}, {v(vP1[s])} offset:{it.base & 0xffff}", f"xr{i}_{s}"); note_read(it.name)
    if not OPT["x3"] and i + 3 < 8: X_issue(i + 3)
    if OPT["x3"] and i + 4 < 8: E.wait(lg=f"xr{i}_3"); X_issue(i + 4)
    if i == OPT["xi"]: csig("Xi")
    if i == 4 and OPT["mw"]:
        I(f"s_cmp_eq_u32 {sW_}, 1"); I("s_cselect_b64 s[52:53], s[38:39], s[36:37]"); I(f"s_cmp_eq_u32 {sW_}, 2"); I("s_cselect_b64 s[52:53], s[40:41], s[52:53]")
        I(f"s_cmp_eq_u32 {sW_}, 3"); I("s_cselect_b64 s[52:53], s[26:27], s[52:53]"); I("s_mov_b32 s54, 1409024"); I("s_cselect_b32 s54, 524288, s54"); I("s_mov_b32 s55, 0x20000")
        I(f"s_cselect_b32 {sT0}, 16, 43"); I(f"s_mul_i32 {sT1}, s2, {sT0}"); I(f"s_sub_u32 {sT0}, {sT0}, 1"); I(f"v_min_u32 v76, {sT0}, {vLANE}"); I(f"v_add_lshl_u32 v76, v76, {sT1}, 7")
        VM("buffer_load_dword v77, v76, s[52:55], 0 offen", "mw")
        I("s_mov_b64 s[52:53], s[28:29]"); I(f"s_cmp_eq_u32 {sW_}, 3"); I("s_cselect_b32 s54, 524288, 0")
        VM("buffer_load_dword v77, v76, s[52:55], 0 offen", "mw")
    for s in range(4):
        E.wait(lg=f"xr{i}_{s}")
        for d in range(4):
            x = v(XF + 16*i + 4*s + d)
            I(f"v_dot2c_f32_bf16 v{64+d}, {sC11}, {x}"); I(f"v_dot2c_f32_bf16 v{68+d}, {x}, {x}")
    lstamp(f"X{i}")
csig("X"); gchk = {"S0": chk_issue(FR["r"], FR["t"], 16)}
I("v_add_f32 v64, v64, v65"); I("v_add_f32 v66, v66, v67"); I("v_add_f32 v68, v68, v69")
I("v_add_f32 v64, v64, v66"); I("v_add_f32 v70, v70, v71"); I("v_mov_b32 v65, v64"); I("v_add_f32 v68, v68, v70"); I("v_mov_b32 v69, v68")
I("v_permlane32_swap_b32 v64, v65"); I("v_permlane32_swap_b32 v68, v69")
I("v_add_f32 v64, v64, v65"); I("v_mul_f32 v64, 0x3b000000, v64")
runall(bf16r_ops(65, 64)); I(f"v_sub_f32 {v(vNM)}, 0, v65")
I(f"s_sub_u32 {sT0}, 65536, {sM4}")
for s in range(4): I(f"v_add_u32 {v(vP1[s])}, {sT0}, {v(vP1[s])}")
win = {"p1": 65536, "c1": 0, "gt": 0, "lin": 0, "wt": 0}
def burst(i):
    for d in range(16):
        x = v(XF + 16*i + d)
        I(f"v_dot2_f32_bf16 v{32+2*d}, {x}, {sC10}, {v(vNM)}"); I(f"v_dot2_f32_bf16 v{33+2*d}, {x}, {sC01}, {v(vNM)}")
qC, qB = [], []
marks = set()
def run_op(op):
    if isinstance(op, tuple):
        if op[0] == "hold": holdq[0] = op[1]
        else: marks.add(op[1])
    elif isinstance(op, str): I(op)
    else: op()
def need_mark(m):
    while m not in marks:
        q = next(q for q in (qC, qB) if ("mark", m) in [o for o in q if isinstance(o, tuple)])
        run_op(q.pop(0))
def cvt_ops(i):
    ops = []
    for d in range(16):
        ops.append(f"v_cvt_pk_bf16_f32 {v(XF + 16*i + d)}, v{32+2*d}, v{33+2*d}")
        if d & 3 == 3: ops.append(("mark", f"cen{4*i + (d>>2)}"))
    return ops
B = ["v_add_f32 v68, v68, v69", "v_mul_f32 v68, 0x3b000000, v68", "v_fma_f32 v68, -v64, v64, v68", "v_max_f32 v68, 0, v68"]
B += bf16r_ops(68, 68) + ["v_add_f32 v68, 0x3727c5ac, v68"] + bf16r_ops(68, 68) + ["v_sqrt_f32 v68, v68", lambda: DS("ds_write_b32 v94, v65 offset:512", "tabw")]
B += bf16r_ops(68, 68) + ["v_rcp_f32 v68, v68", lambda: DS("ds_write_b32 v94, v68", "tabw"), f"v_mul_f32 {v(vR2)}, v68, v68", ("mark", "tab")]
qB.extend(B)

class Slot: pass
slots = []
def add_slot(chunk, reads, mfma, needs=()):
    s = Slot(); s.chunk, s.reads, s.mfma, s.needs = chunk, reads, mfma, needs; slots.append(s)
for i in range(8):
    for s in range(4):
        f = 4*i + s
        for comp in range(2):
            acc = v(ACC_I if comp else ACC_R, 16)
            add_slot(f"S{i}", [("p1", f"S{i}", s, comp * 4096)], lambda b, f=f, acc=acc: f"{MF} {acc}, {v(XF+4*f,4)}, {v(b[0],4)}, {acc if f else 0}", needs=[f"cen{f}"])
P2 = len(slots)
order = [(0, s, u, m) for s in range(4) for u in range(2) for m in range(2)] + [(0, s, 2, m) for s in range(4) for m in range(2)]
order += [(i, s, u, m) for i in range(1, 8 - NU) for s in range(4) for u in range(3) for m in range(2)]
order += [(i, s, u, m) for u in range(3) for i in range(8 - NU, 8) for s in range(4) for m in range(2)]
unit_done = {}
for (i, s, u, m) in order:
    f = 4*i + s; acc = v((ACCU if m else ACCG)[u], 16)
    nd = (["tab"] if f == 0 else []) + (["dumped"] if (f, u) == (0, 2) else [])
    add_slot(f"G{i}", [("gt", f"G{i}", m * 12288 + 16*s*192 + 64*u)], lambda b, f=f, acc=acc: f"{MF} {acc}, {v(b[0],4)}, {v(XF+4*f,4)}, {acc if f else 0}", needs=nd)
    unit_done[u] = len(slots) - 1
P3 = len(slots)
ACC3 = 32; BASE = 48
vHST = 138; vDSK = 140; vHR, vWT, vXR, vTAB3, vOUT = 128, 129, 130, 131, 132
sHG = ["s16", "s17", "s18"]
EPO = 144; vC1 = [134, 135, 136, 137]; vC2 = [2, 3, 4, 5]
cGo = [128, 129, 130]; cCo = [132, 133, 134, 135]
ACC4 = 48; ACCS = [64, 80]
AQ = list(range(172, 256, 4)) + list(range(108, 128, 4))
BASE = 144; PX = 108
P3BUFS = list(range(8, 32, 4)) + [96, 100, 104]
vA = 139; vWT2 = 133; vA2 = 7; vPB = 0
aloads = []; started = set()
for n, (t, hv) in enumerate(jobs):
    if n == NJ1: P4 = len(slots)
    for s in range(4):
        idx = {}
        for h_ in hv: idx[h_] = len(aloads); aloads.append((f"a{len(aloads)}", AQ[len(aloads) % len(AQ)], t, s, h_, s == 0 and h_ == hv[0]))
        for a_ in range(2):
            rd = ("c1", t, s, a_) if t[0] == "C" else ("wt", t, 16*s*128, a_)
            for k_, h_ in enumerate(hv):
                r_ = ([ACC3, ACC4] if h_ == "k" else ACCS)[a_]; acc = v(r_, 16)
                z = r_ not in started; started.add(r_)
                tag, q = aloads[idx[h_]][:2]
                add_slot(f"J{n}", [rd] if k_ == 0 else [], lambda b, q=q, acc=acc, z=z: f"{MF} {acc}, {v(q,4)}, {v(b[0],4)}, {0 if z else acc}")
                slots[-1].atag = tag; slots[-1].arel = idx[h_] + 1 if a_ == 1 else None
M = len(slots)
first_slot = {}
for m, s in enumerate(slots): first_slot.setdefault(s.chunk, m)
pool = [FB0 + 4*k for k in range(NFB)]
def newfb(): return pool.pop(0)
def set_win(kind, regs, base, span):
    cur = win[kind]
    if not (cur <= base and base + span <= cur + 65536):
        new = min((base // 49152) * 49152, MISC - 65536)
        if not (new <= base and base + span <= new + 65536): new = base
        for r in regs: I(f"v_add_u32 {v(r)}, {(new - cur) & 0xffffffff}, {v(r)}")
        win[kind] = cur = new
    return cur
def emit_reads(m):
    s = slots[m]; s.bufs = []; s.tags = []; s.own = bool(s.reads)
    if not s.reads: s.bufs = slots[m-1].bufs
    for rd in s.reads:
        b = newfb(); s.bufs.append(b); tag = f"rd{m}_{rd[0]}"; s.tags.append(tag)
        kind, it = rd[0], items[rd[1]]
        if kind == "p1":
            w = set_win(kind, vP1, it.base, it.size); DS(f"ds_read_b128 {v(b,4)}, {v(vP1[rd[2]])} offset:{it.base - w + rd[3]}", tag)
        elif kind == "c1":
            w = set_win(kind, vC1 + vC2, it.base, it.size); DS(f"ds_read_b128 {v(b,4)}, {v((vC2 if rd[3] else vC1)[rd[2]])} offset:{it.base - w}", tag)
        else:
            regs, pitch = ([vGT], 192) if kind == "gt" else ([vWT, vWT2], 128)
            reg = regs[rd[3]] if kind == "wt" else vGT
            w = set_win(kind, regs, it.base, it.size)
            DS(f"ds_read_b64_tr_b16 {v(b,2)}, {v(reg)} offset:{it.base - w + rd[2]}", tag)
            DS(f"ds_read_b64_tr_b16 {v(b+2,2)}, {v(reg)} offset:{it.base - w + rd[2] + 4*pitch}", tag)
        note_read(it.name)
events = {}
def at(m, fn): events.setdefault(m, []).append(fn)
post = {8*i + 7: (lambda i=i: (need_mark(f"cen{4*i+7}"), burst(i + 2), qC.extend(cvt_ops(i + 2)))) for i in range(6)}
at(52, lambda: qB.extend([f"v_lshlrev_b32 {v(vNM)}, 6, {vLANE}", f"v_bfe_u32 v64, {vLANE}, 1, 2", f"v_lshl_add_u32 {v(vNM)}, v64, 4, {v(vNM)}",
                          f"v_add_u32 {v(vNM)}, {sM4}, {v(vNM)}", f"v_add_u32 {v(vNM)}, {DUMPS[1]}, {v(vNM)}", ("mark", "dadr")]))
dtag = {}
at(P2 - 1, lambda: dtag.__setitem__(0, chk_issue(FR["r"], FR["t"], 0)))
def dump_op(j, comp):
    need_mark("dadr")
    if (j, comp) == (0, 1): chk_test(dtag[0], PCV["S5"], FR["r"], FR["t"], 0, -12)
    if j and comp == 0: I(f"v_xor_b32 {v(vNM)}, {16 * (j ^ (j - 1))}, {v(vNM)}")
    DS(f"ds_write_b128 {v(vNM)}, {v((ACC_I if comp else ACC_R) + 4*j, 4)} offset:{DUMPS[comp] - DUMPS[1]}", "dump")
    if (j, comp) == (3, 1): marks.add("dumped")
def dump64(j, comp, hf):
    need_mark("dadr")
    if j and comp == 0 and hf == 0: I(f"v_xor_b32 {v(vNM)}, {16 * (j ^ (j - 1))}, {v(vNM)}")
    if comp == 0 and hf == 0: I(f"v_add_u32 {v(vP1[1])}, {DUMPS[0]}, {v(vNM)}")
    DS(f"ds_write_b64 {v(vNM if comp else vP1[1])}, {v((ACC_I if comp else ACC_R) + 4*j + 2*hf, 2)} offset:{8*hf}", "dump")
    if (j, comp, hf) == (3, 1, 1): marks.add("dumped")
if OPT["d64"]:
    for k in range(16): at(P2 + (k * 15) // 16, lambda k=k: dump64(k >> 2, (k >> 1) & 1, k & 1))
else:
    for k in range(8): at(P2 + 1 + (k * OPT["dsp"]) // 2, lambda k=k: dump_op(k >> 1, k & 1))
def fr_move():
    I(f"v_mov_b32 {v(vP1[0])}, v72"); I(f"v_mov_b32 {v(vP1[3])}, v75"); FR.update(r=vP1[0], t=vP1[1], v=vP1[2], w=vP1[3])
at(P2 - 2, fr_move)
if OPT["mw"]: at(P2 - 3, lambda: E.wait(vm="mw"))
at(31, lambda: csig("S3")); at(47, lambda: csig("S5"))
at(P2 + OPT["bd"], lambda: (need_mark("dumped"), E.wait(lg=["dump", "tabw"]), csig("dump")))
LAND = {"G2": ["G4"], "G3": ["G5", "G6"], "G4": ["G7"]}
for st, sl in CEV.items(): at(P2 + sl, lambda st=st: (E.wait(vm=LAND.get(st, []), lg=["cof2"] if st == "G1" else []), csig(st)))
GATE = {c: (16, PHV[c]) for c in CHUNKS[:8]}
GATE["S0"] = (16, PHV["S2"]); GATE["S4"] = (16, PHV["S6"])
GATE.update({"G4": (0, PCV["G2"]), "G5": (0, PCV["G3"]), "G6": (0, PCV["G4"])})
del GATE["S2"], GATE["S6"]
for c in list(GATE)[1:]: at(first_slot[c] - OPT["D"] - 6, lambda c=c: gchk.__setitem__(c, chk_issue(FR["r"], FR["t"], GATE[c][0])))
cplaced = []
cWo = [168, 169, 170, 171]
def c_offsets():
    I(f"s_lshl_b32 {sT0}, {sW_}, 11"); I(f"s_add_u32 {sT0}, {sT0}, {HS}"); I(f"v_lshl_add_u32 v136, {vLANE}, 4, {sT0}")
    DS("ds_read_b128 v[128:131], v136", "cof"); note_read("OFT")
at(P2 + 24, c_offsets)
at(P2 + 45, lambda: (DS("ds_read_b128 v[132:135], v136 offset:1024", "cof2"), note_read("OFT")))
at(P2 + 76, lambda: qB.extend([lambda: E.wait(lg="cof2"), f"v_readfirstlane_b32 {sNON}, v135", "v_mov_b32 v168, v134"] + [f"v_add_u32 v{168+q}, {7168*q}, v134" for q in range(1, 4)]
                              + ["v_add_u32 v134, 14336, v132", "v_add_u32 v135, 14336, v133"] + q_setup() + [("mark", "cw")]))
def c_load(name, ta, step2, gate=None):
    k = name[0]; i = int(name[1:]); base = items[name].base
    tag = {}
    if gate:
        off, val = (0, PCV[gate]) if gate in PCV else (32, gate)
        at(P2 + ta - 6, lambda: tag.__setitem__(0, chk_issue(FR["r"], 137, off)))
    n = 6 if k == "G" else 4
    for q in range(n):
        def op(q=q):
            if q == 0:
                E.wait(lg="cof")
                if gate: chk_test(tag[0], val, FR["r"], 137, off, -(13 + len(cplaced))); cknown.append(("PC" if off == 0 else "PD", val))
                cplaced.append((name, list(cknown)))
            if k == "G":
                if q % 3 == 0:
                    I(f"s_add_u32 m0, {sM6}, {base + 1024*q}")
                    I(f"s_mul_i32 {sSO}, {sK[i]}, 1376" if q == 0 else f"s_add_u32 {sSO}, {sSO}, {16*2752}")
                VM(f"buffer_load_dwordx4 {v(cGo[q%3])}, {SG}, {sSO} offen" + (f" offset:{(q%3)*1024}" if q % 3 else "") + " lds", name)
            else:
                if q == 0:
                    need_mark("cw"); I(f"s_add_u32 m0, {sM4}, {base}")
                    if k == "C": q_h(sSO, i); I(f"s_lshl_b32 {sSO}, {sSO}, 7")
                    else: w_soff(sSO, i, "s19")
                VM(f"buffer_load_dwordx4 {v((cCo if k == 'C' else cWo)[q])}, {SC if k == 'C' else SWD}, {sSO} offen" + (f" offset:{q*1024}" if q else "") + " lds", name)
        at(P2 + ta + (q * step2) // 2, op)
cknown = []
c_load("G4", 37, 5, "G0"); c_load("G6", 52, 4); c_load("G5", 64, 4, "G1"); c_load("G7", 77, 5); c_load("C1", 93, 4)
c_load("C2", OPT["c1"], 4); c_load("C3", OPT["c1"] + 8, 4);
if OPT["wl"] < 3: c_load("W1", 141, 4)
if OPT["wl"] < 2: c_load("W2", 156, 3, "G5"); c_load("W3", 162, 3)
def st_addr():
    o = [f"s_lshl2_add_u32 {sT0}, {sC_}, {sW_}", f"s_mul_i32 {sT0}, {sT0}, {160*1024}", f"v_lshl_add_u32 {v(vHST)}, {vLANE}, 4, {sT0}", f"s_lshl_b32 {sT0}, {sGL}, 11", f"s_add_u32 {sT0}, {sT0}, {sRA}"]
    o += [f"s_add_u32 {sHG[uu]}, {sT0}, {8*uu*2048}" for uu in range(3)]
    if OPT["skp"]:
        o += [lambda: (I(f"s_cmp_eq_u32 {sGL}, 7"), I(f"s_cselect_b32 {sHG[1]}, 0x40000000, {sHG[1]}"), I(f"s_cselect_b32 {sHG[2]}, 0x40000000, {sHG[2]}")),
              lambda: (I(f"s_cmp_eq_u32 {sG_}, 15"), I(f"s_cselect_b32 {sHG[0]}, 0x40000000, {sHG[0]}"))]
    o += [f"s_and_b32 {sT1}, {sW_}, 1", f"s_lshr_b32 {sT2}, {sW_}, 1", f"s_lshl1_add_u32 {sT0}, {sC_}, {sGH}", f"s_lshl1_add_u32 {sT0}, {sT0}, {sT2}",
          f"s_mul_i32 {sT0}, {sT0}, {160*1024}", f"s_lshl_b32 {sT3}, {sT1}, 12", f"s_add_u32 {sT0}, {sT0}, {sT3}", f"v_lshl_add_u32 {v(vA)}, {vLANE}, 4, {sT0}",
          f"v_lshlrev_b32 {v(vDSK)}, 16, v131",
          f"s_mul_i32 {sT0}, {sGH}, {4*160*1024}", f"s_sub_u32 {sT0}, {2*160*1024}, {sT0}", f"v_add_u32 {v(vA2)}, {sT0}, {v(vA)}",
          f"s_lshl_b32 s54, {sGH}, 1", "s_or_b32 s54, s54, 40", f"s_mul_i32 s54, s54, {sT1}", ("mark", "sta1")]
    return o
def st_addr2():
    o = [f"s_and_b32 {sT1}, {sW_}, 1", f"s_lshr_b32 {sT2}, {sW_}, 1", f"v_lshrrev_b32 v141, 5, {vLANE}", f"v_and_b32 v143, 31, {vLANE}"]
    o += [f"s_lshl1_add_u32 {sT3}, {sGL}, {sT1}"]
    o += [f"s_lshl_b32 {sT3}, {sT3}, 7", f"s_lshl1_add_u32 {sT0}, {sGH}, {sT2}", f"s_lshl2_add_u32 s13, {sC_}, {sT0}", "s_lshl_b32 s13, s13, 16", f"s_add_u32 s13, s13, {sT3}",
          "v_lshlrev_b32 v142, 15, v141", "v_lshl_add_u32 v142, v143, 2, v142", f"v_add_u32 {v(vOUT)}, s13, v142"]
    o += [f"s_lshl_b32 {sT0}, {sT0}, 7", f"s_add_u32 {sT0}, {sT0}, {RTAB}", f"v_lshl_add_u32 {v(vTAB3)}, v141, 6, {sT0}",
          f"s_lshl_b32 {sT0}, {sT1}, 6", f"s_lshl_b32 {sT3}, {sT2}, 12", f"s_add_u32 {sT3}, {sT3}, {sT0}", f"s_add_u32 {sT3}, {sT3}, {XE}",
          "v_lshlrev_b32 v142, 11, v141", "v_lshl_add_u32 v142, v143, 1, v142", f"v_add_u32 {v(vXR)}, {sT3}, v142",
          f"s_lshl_b32 {sT3}, {sW_}, 12", f"s_add_u32 {sT3}, {sT3}, {RED}", f"v_lshl_add_u32 {v(vHR)}, {vLANE}, 4, {sT3}"]
    o += [f"v_bfe_u32 v142, {vLANE}, 2, 2", "v_lshl_add_u32 v142, v141, 3, v142", "v_lshlrev_b32 v142, 7, v142",
          f"v_and_b32 v6, 16, {vLANE}", "v_lshl_add_u32 v142, v6, 1, v142", f"v_and_b32 v6, 3, {vLANE}", "v_lshl_add_u32 v142, v6, 3, v142",
          f"v_and_b32 v6, 8, {vLANE}", "v_lshlrev_b32 v6, 3, v6", f"v_xor_b32 v6, {sT0}, v6", f"s_lshl_b32 {sT3}, {sT1}, 13", f"v_add3_u32 {v(vWT)}, v142, v6, {sT3}", f"v_xor_b32 {v(vWT2)}, 64, {v(vWT)}"]
    o += [f"s_mul_i32 {sT0}, {sT1}, 12288", "v_bfe_u32 v142, v143, 1, 3", "v_xor_b32 v142, v142, v141", "v_lshlrev_b32 v142, 4, v142", "v_lshl_add_u32 v142, v143, 7, v142",
          f"v_add_u32 {v(vC1[0])}, {sT0}, v142"] + [f"v_xor_b32 {v(vC1[s])}, {32*s}, {v(vC1[0])}" for s in range(1, 4)] + [f"v_xor_b32 {v(vC2[s])}, 4096, {v(vC1[s])}" for s in range(4)] + [("mark", "sta")]
    return o
at(P2 + 120, lambda: qB.extend(st_addr()))
def glu_epi(u):
    ops = []; o = EPO + 8*u
    for j in range(8):
        g0, u0 = ACCG[u] + 2*j, ACCU[u] + 2*j
        ops += [f"v_mul_f32 {v(u0)}, {v(vR2)}, {v(u0)}", f"v_mul_f32 {v(u0+1)}, {v(vR2)}, {v(u0+1)}",
                f"v_mul_f32 {v(u0)}, {v(g0)}, {v(u0)}", f"v_mul_f32 {v(u0+1)}, {v(g0+1)}, {v(u0+1)}", f"v_cvt_pk_bf16_f32 {v(o+j)}, {v(u0)}, {v(u0+1)}"]
        if j & 3 == 3:
            ops.append(lambda fr=j >> 2: VM(f"buffer_store_dwordx4 {v(o + 4*fr, 4)}, {v(vHST)}, {SWS}, {sHG[u]} offen offset:{fr*1024}" + STP, "gst" if u == 2 else "gsa"))
    return ops + [("mark", f"epi{u}")]
for u in range(2): at(unit_done[u] + 3, lambda u=u: qB.extend(glu_epi(u)))
def base_ops():
    ops = [f"v_mov_b32 {v(BASE+r)}, 0" for r in range(16)]
    def rdx(r): DS(f"ds_read_u16_d16_hi {v(BASE+r)}, {v(vXR)} offset:{128*r}", f"xe{r}"); note_read("XE")
    ops += [lambda r=r: rdx(r) for r in range(16)]
    R3, M3, t0, t1, p = 160, 164, 168, 169, 170
    rnd = [f"v_cvt_pk_bf16_f32 {v(p)}, {v(t0)}, {v(t1)}", f"v_lshlrev_b32 {v(t0)}, 16, {v(p)}", f"v_and_b32 {v(t1)}, 0xffff0000, {v(p)}"]
    for j in range(4):
        ops += [lambda j=j: DS(f"ds_read_b128 {v(R3,4)}, {v(vTAB3)} offset:{16*j}", f"r3{j}"), lambda j=j: DS(f"ds_read_b128 {v(M3,4)}, {v(vTAB3)} offset:{512+16*j}", f"m3{j}"),
                ("hold", 3), lambda j=j: E.wait(lg=f"m3{j}")]
        for e in (0, 2):
            r = 4*j + e
            ops += [f"v_sub_f32 {v(t0)}, {v(BASE+r)}, {v(M3+e)}", f"v_sub_f32 {v(t1)}, {v(BASE+r+1)}, {v(M3+1+e)}"] + rnd
            ops += [f"v_mul_f32 {v(t0)}, {v(t0)}, {v(R3+e)}", f"v_mul_f32 {v(t1)}, {v(t1)}, {v(R3+1+e)}"] + rnd
            ops += [f"v_mul_f32 {v(t0)}, {v(t0)}, {v(vDSK)}", f"v_mul_f32 {v(t1)}, {v(t1)}, {v(vDSK)}"] + rnd
            ops += [f"v_add_f32 {v(BASE+r)}, {v(BASE+r)}, {v(t0)}", f"v_add_f32 {v(BASE+r+1)}, {v(BASE+r+1)}, {v(t1)}"]
    return ops + [("mark", "base")]
holdq = [0]

def segment(lo, hi, Dof, lim, pre_bar):
    rn = lo; held = []
    for m in range(lo - 1, hi):
        c0 = E.count + E.nops
        if m >= lo:
            s = slots[m]
            for n in s.needs: need_mark(n)
            tags = list(s.tags)
            if m % 2 == 0 and m + 1 < hi: tags += slots[m+1].tags
            E.wait(vm=[s.atag] if m >= P3 else [], lg=tags)
            I(s.mfma(s.bufs)); c0 = E.count + E.nops
            if s.own: pool.extend(held); held = list(s.bufs)
            if m >= P3:
                if s.arel: adone[0] = max(adone[0], s.arel)
                a_issue(OPT["ar"])
            if first_slot[s.chunk] == m and m < P3: lstamp(s.chunk)
            if OPT["lst"] == 9 and m >= P2 + OPT["l0"] and (m - P2 - OPT["l0"]) % OPT["ld"] == 0: LSET["C"].append(f"m{m-P2}"); lstamp(f"m{m-P2}")
            for fn in events.get(m, []): fn()
        nr = 0
        while rn < hi and rn <= m + Dof(m) and len(pool) >= len(slots[rn].reads) and (nr < 2 or m < lo):
            ch = slots[rn].chunk
            if first_slot[ch] == rn:
                if pre_bar: pre_bar(ch)
                if ch in GATE:
                    chk_test(gchk[ch], GATE[ch][1], FR["r"], FR["t"], GATE[ch][0], -(list(GATE).index(ch) + 1))
                    cknown.append(("PC" if GATE[ch][0] == 0 else "PH", GATE[ch][1]))
            emit_reads(rn); rn += 1; nr += 1
        assert rn >= min(hi, m + 3), (m, rn)
        if m >= lo:
            n = 0
            while qC and (n < 3 or isinstance(qC[0], tuple)): run_op(qC.pop(0)); n += 1
            if holdq[0]: holdq[0] -= 1
            while qB and not holdq[0] and (E.count + E.nops - c0 < lim - (m & 1) or isinstance(qB[0], tuple)): run_op(qB.pop(0))
            if m in post: post[m]()
    pool.extend(held)
retired = set()
def D2(m): return OPT["D"]
anext = [0]; aok = {"C": False, "W": False, "L": False}; adone = [0]
def a_issue(n):
    while n > 0 and anext[0] < len(aloads):
        tag, q, t, s_, h_, first = aloads[anext[0]]
        if not aok["L" if t in ("W4", "W5") else t[0]] or anext[0] - adone[0] >= min(len(AQ), OPT["al"]): return
        if first:
            i = int(t[1:])
            if t[0] == "C": q_h(sSO, i); I(f"s_lshl_b32 {sSO}, {sSO}, 13")
            else:
                q_u(sSO, i)
                if OPT["skp"]: I(f"s_bitcmp1_b32 s54, {sSO}")
                I(f"s_lshl_b32 s19, {sSO}, 13") if False else None
                if OPT["skp"]: I("s_cselect_b32 s55, 0x40000000, 0")
                I(f"s_lshl_b32 {sSO}, {sSO}, 13"); I(f"s_add_u32 {sSO}, {sSO}, {sRA}")
                if OPT["skp"]: I(f"s_add_u32 s55, s55, {sSO}")
        VM(f"buffer_load_dwordx4 {v(q,4)}, {v(vA if h_ == 'k' else vA2)}, {SWS}, {'s55' if (OPT['skp'] and t[0] == 'W' and s_ >= 2) else sSO} offen" + (f" offset:{s_*1024}" if s_ else "") + [" sc1", "", " nt"][OPT["pll"]], tag)
        anext[0] += 1; n -= 1
if OPT["ea"]:
    etag = {}
    at(P2 + OPT["ea"] - 6, lambda: etag.__setitem__(0, chk_issue(FR["r"], FR["t"], 16)))
    at(P2 + OPT["ea"], lambda: (need_mark("sta1"), chk_test(etag[0], PHV["K0"], FR["r"], FR["t"], 16, -11), aok.__setitem__("C", True)))
    for m_ in range(OPT["ea"], 192): at(P2 + m_, lambda: a_issue(1) if anext[0] < 12 else None)
burst(0); runall([o for o in cvt_ops(0) if isinstance(o, str)]); marks.update(f"cen{k}" for k in range(4)); burst(1); qC.extend(cvt_ops(1))
segment(0, P3, D2, 6, None)
PBAR = {"J0": "P0", "J5" if OPT["wl"] < 3 else "J4": "P2", "J8": "P3", "J12": "P4"}
def p3bar(ch):
    if ch in PBAR: cbar("b" + PBAR[ch], vm=[{0: "W3", 2: "W1", 3: "C3"}[OPT["wl"]]])
    lstamp(ch)
for key, val, sl in (("W", "KA", OPT["ka"]), ("L", "KB", OPT["kb"])):
    tg = {}
    at(P3 + sl - 4, lambda tg=tg: tg.__setitem__(0, chk_issue(FR["r"], FR["t"], 16)))
    at(P3 + sl, lambda tg=tg, key=key, val=val: (chk_test(tg[0], PHV[val], FR["r"], FR["t"], 16, -(18 if key == "W" else 19)), aok.__setitem__(key, True), a_issue(OPT["ab"])))
lstamp("T"); csig("T")
need_mark("epi1")
qB.extend(glu_epi(2)); need_mark("epi2"); lstamp("e2")
pool[:] = P3BUFS
sa = st_addr2()
I(f"v_mov_b32 v106, {v(FR['r'])}"); I(f"v_mov_b32 v107, {v(FR['w'])}"); FR.update(r=106, w=107, t=104, v=105); P3BUFS.pop(); pool[:] = P3BUFS
if OPT["ord"] == 0:
    for op in sa: run_op(op)
if not OPT["ea"]: chk_spin(PHV["K0"], FR["r"], FR["t"], 16); aok["C"] = True
lstamp("k0"); a_issue(OPT["a0"])
if OPT["ord"] == 1:
    for op in sa: run_op(op)
E.wait(vm="gsa"); csig("gsa"); lstamp("ga"); a_issue(12)
lstamp("K0")
qB.extend([f"s_lshl4_add_u32 {sT0}, {sC_}, {sG_}", f"s_lshl2_add_u32 {sT0}, {sT0}, {sW_}", f"s_lshl_b32 {sT0}, {sT0}, 12", f"s_add_u32 s20, {sT0}, {WS_PB}", f"s_xor_b32 s21, s20, {8 << 14}",
           "s_mov_b32 s16, 0x07060500", "s_mov_b32 s17, 0x07060501", "s_mov_b32 s18, 0x07060502", "s_mov_b32 s22, 0x07060503", "s_mov_b32 s23, 0x0c0c0400", "s_mov_b32 s53, 0x05040100", f"v_lshlrev_b32 {v(vPB)}, 4, {vLANE}"] + base_ops())
if OPT["gs"] < 0: E.wait(vm="gst"); csig("gst")
else: at(P3 + OPT["gs"], lambda: (E.wait(vm="gst"), csig("gst")))
def reduce_pair(own, other, bar):
    for j in range(4): DS(f"ds_write_b128 {v(vHR)}, {v(other+4*j,4)} offset:{1024*j}", "red" + bar)
    I(f"v_xor_b32 {v(FR['t'])}, 4096, {v(vHR)}")
    cbar(bar, lg=["red" + bar])
    for j in range(4): DS(f"ds_read_b128 {v(other+4*j,4)}, {v(FR['t'])} offset:{1024*j}", f"rr{j}")
if OPT["ovr"]:
    at(P4, lambda: (lstamp("snd"), need_mark("base")))
    for j in range(4): at(P4 + 1 + j // 2, lambda j=j: DS(f"ds_write_b128 {v(vHR)}, {v(ACCS[1]+4*j,4)} offset:{1024*j}", "redbR1"))
    def r1_mid():
        I(f"v_xor_b32 v170, 4096, {v(vHR)}"); I(f"v_mov_b32 v171, {sNON}")
        cbar("bR1", lg=["redbR1"])
        for j in range(4): DS(f"ds_read_b128 {v(ACCS[1]+4*j,4)}, v170 offset:{1024*j}", f"rq{j}")
    def r1_fin(j):
        E.wait(lg=f"rq{j}")
        for e in range(4): I(f"v_add_f32 {v(ACCS[0]+4*j+e)}, {v(ACCS[0]+4*j+e)}, {v(ACCS[1]+4*j+e)}")
        for e in range(4): I(f"v_perm_b32 {v(ACCS[0]+4*j+e)}, {v(ACCS[0]+4*j+e)}, v171, {['s16', 's17', 's18', 's22'][e]}")
        VM(f"buffer_store_dwordx4 {v(ACCS[0]+4*j,4)}, {v(vPB)}, {SWS}, s21 offen offset:{1024*j} sc1", "pst")
    at(P4 + 5, r1_mid)
    for j in range(4): at(P4 + 7 + j, lambda j=j: r1_fin(j))
else:
    segment(P3, P4, lambda m: OPT["D3"], 8, p3bar)
    lstamp("snd")
    need_mark("base")
    reduce_pair(ACCS[0], ACCS[1], "bR1")
    I(f"v_mov_b32 v171, {sNON}")
    for j in range(4):
        E.wait(lg=f"rr{j}")
        for e in range(4): I(f"v_add_f32 {v(ACCS[0]+4*j+e)}, {v(ACCS[0]+4*j+e)}, {v(ACCS[1]+4*j+e)}")
        for e in range(4): I(f"v_perm_b32 {v(ACCS[0]+4*j+e)}, {v(ACCS[0]+4*j+e)}, v171, {['s16', 's17', 's18', 's22'][e]}")
        VM(f"buffer_store_dwordx4 {v(ACCS[0]+4*j,4)}, {v(vPB)}, {SWS}, s21 offen offset:{1024*j} sc1", "pst")
pl_ld = [f"buffer_load_dwordx4 {v(80+4*j,4)}, {v(vPB)}, {SWS}, s20 offen offset:{1024*j} sc1" for j in range(4)]
at(M - 1 - OPT["pl"], lambda: [VM(t_, "pld") for t_ in pl_ld])
segment(P3 if OPT["ovr"] else P4, M, lambda m: OPT["D3"], 8, p3bar)
assert not qC and not qB and anext[0] == len(aloads)
RT2 = jobs[10][0]; RED2 = slot_of[RT2] * 16384
I(f"v_add_u32 {v(vHR)}, {(RED2 - RED) & 0xffffffff}, {v(vHR)}")
reduce_pair(ACC3, ACC4, "bR2")
for r in range(16): I(f"v_add_f32 {v(ACC3+r)}, {v(ACC3+r)}, {v(BASE+r)}")
chkp = []
for j in range(4):
    b_ = 80 + 4*j
    chkp += [f"v_perm_b32 v65, v{b_+1}, v{b_}, s23", f"v_perm_b32 v66, v{b_+3}, v{b_+2}, s23", "v_perm_b32 v65, v66, v65, s53",
             "v_xor_b32 v64, v171, v65" if j == 0 else "v_xor_b32 v65, v171, v65"] + ([] if j == 0 else ["v_or_b32 v64, v64, v65"])
chkp.append("v_cmp_ne_u32 vcc, 0, v64")
E.wait(vm="pld")
for c_ in chkp: I(c_)
I("s_cbranch_vccnz L_slow_p"); E.label("L_back_p"); lstamp("kp")
slow.extend(["L_slow_p:", ] + ["  " + t_ for t_ in pl_ld] + ["  s_waitcnt vmcnt(0)"] + ["  " + c_ for c_ in chkp] + spin_guard("L_back_p", -10) + ["  s_cbranch_vccnz L_slow_p", "  s_branch L_back_p"])
I("s_mov_b32 s16, 0xffffff00")
for r in range(16): I(f"v_and_b32 {v(80+r)}, s16, {v(80+r)}"); I(f"v_add_f32 {v(ACC3+r)}, {v(ACC3+r)}, {v(80 + r)}")
lstamp("last")
for r in range(16):
    if r % 4 == 0: E.wait(lg=f"rr{r>>2}")
    I(f"v_add_f32 {v(ACC3+r)}, {v(ACC3+r)}, {v(ACC4+r)}")
    if r % 2 == 0: I(f"s_mov_b32 {sT0}, {(r>>1)*4096}")
    VM(f"buffer_store_dword {v(ACC3+r)}, {v(vOUT)}, {SOUT}, {sT0} offen offset:{(r&1)*2048}" + (" sc1" if OPT["osc"] else ""), "out")
dump_stamps("C")
I("s_endpgm")

E = EH
E.label("L_helper")
vSo = [2, 3]; vGo = [4, 5, 6]; vCo = [8, 9, 10, 11]; vWo = [12, 13, 14, 15]; vHo = 16; vXEo = [17, 18]
vFLS, vFLP, vPOLL, vFLX = 19, 20, 21, 7
vLR, vCR, vL16, vL128, vL256, vPQ = 22, 24, 26, 28, 30, 32
vE, vE2, vP = 34, 36, 38
vEQA, vEST, vEF, vEX, vZA, vHSW, vHSR, vHSTo, vDA, vTAB = 40, 41, 42, 44, 46, 47, 48, 49, 50, 54
TR, TI, RT, TMP = 96, 112, 128, 144
vF16, vF256 = 56, 58
vQR, vQT, vQV, vQW = 160, 161, 162, 163
vDB = 164; vUP = 76
live = [items[f"X{i}"] for i in range(4, 8)]
known = {id(EC): 0, id(EH): 0}
def hplace(name):
    it = items[name]
    for o in list(live):
        if o.base < it.base + it.size and it.base < o.base + o.size:
            assert known[id(o.reader)] >= o.last_read, ("WAR", name, o.name)
            live.remove(o)
    live.append(it); return it
def adv11(s): I(f"s_add_u32 {s}, {s}, 1"); I(f"s_cmp_eq_u32 {s}, 11"); I(f"s_cselect_b32 {s}, 0, {s}")
cur_m0 = [None]
SOFF = {"G": "s16", "C": "s17", "W": "s18"}
def item_ops(name):
    k = name.rstrip("0123456789"); i = int(name[len(k):] or 0)
    so = SOFF.get(k)
    srd_, sm, voffs, pol = {"S": (SS, sM2, vSo, ""), "G": (SG, sM6, vGo, ""), "C": (SC, sM4, vCo, ""), "H": (SWS, sM4, [vHo]*4, " sc1"),
                            "W": (SWD, sM4, vWo, ""), "HG": (SWS, sM4, [vHo]*4, " sc1"), "XE": (SX, sM2, vXEo, "")}[k]
    prep = {"G": lambda: I(f"s_mul_i32 {so}, {sK[i]}, 1376"), "C": lambda: (q_h(so, i), I(f"s_lshl_b32 {so}, {so}, 7")),
            "W": lambda: w_soff(so, i, sSO)}.get(k, lambda: None)
    if so is None: so = "0" if k == "XE" else sK[i]
    ops = []
    for half in range(2 if k == "G" else 1):
        for q in range(len(voffs)):
            def op(half=half, q=q):
                if name in RT_:
                    if q == 0: prep()
                    VM(f"buffer_load_dwordx4 {v(RT_[name] + 4*q, 4)}, {v(voffs[q])}, {srd_}, {so} offen" + (f" offset:{q*1024}" if q else ""), name)
                    return
                if (half, q) == (0, 0): hplace(name)
                m0 = (sm, items[name].base + 3072 * half)
                if cur_m0[0] != m0: I(f"s_add_u32 m0, {sm}, {m0[1]}"); cur_m0[0] = m0
                if (half, q) == (0, 0): prep()
                if (half, q) == (1, 0): I(f"s_add_u32 {so}, {so}, {16*2752}")
                VM(f"buffer_load_dwordx4 {v(voffs[q])}, {srd_}, {so} offen" + (f" offset:{q*1024}" if q else "") + f"{pol} lds", name)
            ops.append(op)
    last = ops[-1]
    ops[-1] = lambda: (last(), done_issue.__setitem__(name, True))
    return ops
done_issue = {}
def issue(name, between=lambda: None):
    for op in item_ops(name): op(); between()
def unpark(name):
    hplace(name); E.wait(vm=name)
    I(f"v_add_u32 {v(vUP+1)}, {items[name].base}, {v(vUP)}")
    for q in range(4): DS(f"ds_write_b128 {v(vUP+1)}, {v(RT_[name] + 4*q, 4)} offset:{q*1024}", "up" + name)
def issue_mix(miss, *hits):
    mo = item_ops(miss); ho = [op for h in hits for op in item_ops(h)]
    for k, op in enumerate(mo):
        op()
        for h in ho[k * len(ho) // len(mo):(k + 1) * len(ho) // len(mo)]: h()
def flag_send(so): VM(f"buffer_store_dword v61, {v(vFLS)}, {SWS}, {so} offen sc1", "flag")
MBOX = {"s20": WS_FH - WS_FH, "s21": WS_FG - WS_FH, "s19": WS_FP - WS_FH}
def poll_issue(so, tag): pass
def poll_check(so, tag, inc):
    E.wait_all(lg=True)
    I(f"s_cmp_lg_u32 {sW_}, 0"); I(f"s_cbranch_scc1 L_back_{tag}")
    E.begin_cond()
    E.label(f"L_poll_{tag}")
    I(f"s_load_dwordx8 s[40:47], s[72:73], {MBOX[so]} glc"); I(f"s_sub_u32 {sSP2}, {sSP2}, 8"); I("s_cbranch_scc1 L_end"); I("s_waitcnt lgkmcnt(0)")
    for k in range(4, 8): I(f"s_xor_b64 s[{32+2*k}:{33+2*k}], s[{32+2*k}:{33+2*k}], s[74:75]")
    for a_, b_ in ((40, 42), (44, 46), (40, 44)): I(f"s_or_b64 s[{a_}:{a_+1}], s[{a_}:{a_+1}], s[{b_}:{b_+1}]")
    I(f"s_cbranch_scc1 L_poll_{tag}")
    E.end_cond(); E.label(f"L_back_{tag}")
I(f"s_and_b32 {sT1}, {sW_}, 1"); I(f"s_lshl1_add_u32 {sT0}, {sG_}, {sT1}"); I(f"s_lshl_b32 {sT0}, {sT0}, 4")
I(f"v_add_lshl_u32 v84, v81, {sT0}, 10")
I(f"v_add_u32 {v(vSo[0])}, v84, v83"); I(f"v_add_u32 {v(vSo[1])}, v84, v85"); I(f"v_add_u32 {v(vSo[1])}, 7168, {v(vSo[1])}")
I(f"s_lshl_b32 {sM2}, {sW_}, 11")
E.wait_all(lg=True)
I(f"s_cmp_ge_u32 {sW_}, 2"); srd_sel(SS, 22, 24, 524288); srd_sel(SG, 36, 38, 1409024); srd_sel(SC, 26, 28, 524288)
issue("S0"); issue("S1"); E.barrier()
if OPT["prio"] == 2: I("s_setprio 1")
I(f"s_lshl2_add_u32 {sT0}, {sG_}, {sW_}"); I(f"s_lshl_b32 {sT0}, {sT0}, 3"); I(f"v_add_lshl_u32 v87, v82, {sT0}, 1")
VM("global_load_ushort v70, v87, s[30:31]", "par"); VM("global_load_ushort v71, v87, s[18:19]", "par"); VM("global_load_ushort v72, v87, s[20:21]", "par")
I(f"s_lshl1_add_u32 {sT0}, {sGL}, {sT1}"); I(f"s_lshl_b32 {sT0}, {sT0}, 5"); I(f"v_and_b32 v87, 31, {vLANE}"); I(f"v_add_lshl_u32 v87, v87, {sT0}, 1")
VM("global_load_ushort v7, v87, s[32:33]", "par")
srd(SDBG, 44, 256)
I(f"s_or_b32 {sT0}, s2, {sW_}"); I("s_cbranch_scc1 L_notag")
E.begin_cond()
I("s_or_b32 s13, s14, 1"); I("s_mul_i32 s13, s13, 0x9E3779B1"); I("v_mov_b32 v93, s13"); I("v_mov_b32 v94, 0"); I("s_mov_b64 exec, 1")
VM(f"buffer_store_dword v93, v94, {SDBG}, 0 offen sc1"); I("s_mov_b64 exec, -1")
E.end_cond(); E.label("L_notag")
for i in range(2, 8): ktab(i)
srd(SX, 16, 2097152); srd(SWD, 40, 1409024); srd(SWS, 46, WS_SIZE)
if OPT["sp"]:
    I(f"s_lshl4_add_u32 {sT0}, {sC_}, {sG_}"); I(f"s_lshl_b32 {sT0}, {sT0}, 7"); I(f"s_add_u32 {sT0}, {sT0}, {WS_FH}"); I(f"s_add_u32 s72, s46, {sT0}"); I("s_addc_u32 s73, s47, 0")
def warm():
    if not OPT["tw"]: return
    srd(SOUT, 42, 4194304)
    I("v_mov_b32 v92, 0"); I(f"s_lshl2_add_u32 {sT0}, {sC_}, {sW_}"); I(f"s_mul_i32 {sT0}, {sT0}, {160*1024}")
    I(f"s_lshr_b32 {sT2}, {sG_}, 1"); I(f"s_lshl_b32 {sT2}, {sT2}, 13"); I(f"s_add_u32 {sT0}, {sT0}, {sT2}"); I(f"s_and_b32 {sT2}, {sG_}, 1"); I(f"s_lshl_b32 {sT2}, {sT2}, 11"); I(f"s_add_u32 {sT0}, {sT0}, {sT2}")
    I(f"s_mov_b32 {sT2}, {WS_EB + 0x30000}"); I(f"s_lshl_b32 {sT3}, {sC_}, 18")
    I("s_mov_b64 exec, 1")
    for sr, so in ((SG, "0"), (SC, "0"), (SWD, "0"), (SWS, sT0), (SWS, sT2), (SOUT, sT3)):
        VM(f"buffer_load_dword v95, v92, {sr}, {so} offen sc1", "tw")
    I("s_mov_b64 exec, -1")
def setup1():
    I(f"s_mov_b32 {sSPIN}, 0"); I("s_mov_b32 s15, 0"); I(f"s_mul_i32 {sM6}, {sW_}, 6144")
    I(f"s_mul_i32 {sT0}, {sT1}, {32*2752}"); I(f"s_mul_i32 {sT2}, {sG_}, 192"); I(f"s_add_u32 {sT0}, {sT0}, {sT2}")
    if OPT["bal"]: I(f"s_lshl_b32 {sT2}, {sGH}, 7"); I(f"s_sub_u32 {sT0}, {sT0}, {sT2}")
    I(f"s_mul_i32 {sT2}, {sGL if OPT['bal'] else sG_}, 3"); I(f"s_mov_b32 {sT3}, 2752")
    I(f"v_mov_b32 v90, {OOB}")
    if OPT["bal"]: I(f"s_add_u32 {sT2}, {sT2}, {sGH}")
    for i in range(3):
        I(f"v_add_u32 v88, {64*i}, {vLANE}"); I("v_mul_u32_u24 v86, 43691, v88"); I("v_lshrrev_b32 v86, 19, v86")
        I("v_mul_u32_u24 v87, 12, v86"); I("v_sub_u32 v87, v88, v87")
        I(f"v_mul_lo_u32 v86, v86, {sT3}"); I("v_lshl_add_u32 v86, v87, 4, v86"); I(f"v_add_u32 v86, {sT0}, v86")
        I("v_lshrrev_b32 v87, 2, v87"); I(f"v_add_u32 v87, {sT2}, v87"); I(f"v_cmp_gt_u32 vcc, {22 if OPT['bal'] else 43}, v87")
        if i: I(f"v_subrev_u32 v86, {1024*i}, v86")
        I(f"v_cndmask_b32 {v(vGo[i])}, v90, v86, vcc")
    I(f"s_lshl2_add_u32 {sT0}, {sGL}, {sT1}"); I(f"s_lshl_b32 {sT2}, {sG_}, 1"); I(f"s_sub_u32 {sT0}, {sT0}, {sT2}"); I(f"s_lshl_b32 {sT0}, {sT0}, 14")
    I(f"v_add_u32 {v(vCo[0])}, {sT0}, {v(vSo[0])}"); I(f"v_add_u32 {v(vCo[1])}, {sT0}, {v(vSo[1])}")
    I(f"v_add_u32 {v(vCo[2])}, {2*7168}, {v(vCo[0])}"); I(f"v_add_u32 {v(vCo[3])}, {2*7168}, {v(vCo[1])}")

def setup1b():
    I(f"s_and_b32 {sT1}, {sW_}, 1")
    I("v_lshlrev_b32 v86, 4, v82"); I("v_lshl_add_u32 v86, v81, 10, v86"); I(f"v_and_b32 v87, 16, {vLANE}"); I("v_lshlrev_b32 v87, 2, v87"); I("v_xor_b32 v87, v86, v87")
    I(f"s_lshl_b32 {sT3}, {sGL}, 7"); I(f"v_add_u32 {v(vWo[0])}, {sT3}, v87")
    for q in range(1, 4): I(f"v_add_u32 {v(vWo[q])}, {7168*q}, {v(vWo[0])}")
    I(f"s_lshl1_add_u32 s13, {sC_}, {sGH}"); I(f"s_lshl2_add_u32 {sT0}, s13, {sW_}"); I(f"s_lshl_b32 {sT0}, {sT0}, 14"); I(f"s_add_u32 {sT0}, {sT0}, {sT3}")
    I(f"v_add_u32 {v(vXEo[0])}, {sT0}, v86"); I(f"v_add_u32 {v(vXEo[1])}, 7168, {v(vXEo[0])}")
    I(f"s_lshr_b32 {sT2}, {sW_}, 1"); I(f"s_lshl1_add_u32 {sT0}, s13, {sT2}"); I(f"s_mul_i32 {sT0}, {sT0}, {160*1024}"); I(f"s_lshl_b32 {sT3}, {sT1}, 12"); I(f"s_add_u32 {sT0}, {sT0}, {sT3}")
    I(f"v_lshl_add_u32 {v(vHo)}, {vLANE}, 4, {sT0}")
    I(f"s_cmp_eq_u32 {sW_}, 0"); I(f"s_cselect_b32 {sT2}, 8, 0"); I(f"v_cmp_gt_u32 vcc, {sT2}, {vLANE}")
    I(f"s_lshl1_add_u32 {sT0}, {sC_}, {sGH}"); I(f"s_lshl_b32 {sT0}, {sT0}, 10"); I(f"s_lshl2_add_u32 {sT3}, {sGL}, {sT0}"); I(f"v_lshl_add_u32 v86, {vLANE}, 7, {sT3}")
    I(f"v_cndmask_b32 {v(vFLS)}, v90, v86, vcc")
    I(f"s_mov_b32 s20, {WS_FH}"); I(f"s_mov_b32 s21, {WS_FG}")

def setup2():
    o = []
    A = o.append
    A(f"s_lshl_b32 {sT0}, {sW_}, 10"); A(f"s_add_u32 {sT0}, {sT0}, {EQ}"); A(f"v_lshl_add_u32 {v(vEQA)}, {vLANE}, 3, {sT0}")
    A("v_mov_b32 v88, 0"); A("v_mov_b32 v89, 0"); A(lambda: DS(f"ds_write_b64 {v(vEQA)}, v[88:89]", "eqz"))
    A(f"v_lshl_add_u32 {v(vZA)}, v82, 3, {sT0}")
    A(f"s_lshl_b32 {sT0}, {sW_}, 9"); A(f"v_lshlrev_b32 v86, 11, v81"); A("v_lshl_add_u32 v86, v82, 6, v86"); A("v_lshrrev_b32 v87, 1, v82")
    A("v_lshl_add_u32 v86, v87, 4, v86"); A(f"v_add_u32 {v(vDA)}, {sT0}, v86")
    for j in range(1, 4): A(f"v_xor_b32 {v(vDA+j)}, {16*j}, {v(vDA)}")
    for j in range(4): A(f"v_add_u32 {v(vDB+j)}, {DUMPS[1]}, {v(vDA+j)}")
    A(f"v_lshlrev_b32 {v(vTAB)}, 6, v81"); A(f"v_add_u32 {v(vTAB)}, {RTAB}, {v(vTAB)}")
    A(f"s_lshl_b32 {sT0}, {sG_}, 13"); A(f"s_lshl_b32 {sT2}, {sW_}, 7"); A(f"s_add_u32 {sT0}, {sT0}, {sT2}"); A(f"s_add_u32 {sT0}, {sT0}, {WS_EB}")
    A(f"v_lshl_add_u32 v86, v82, 4, {sT0}")
    A(f"s_lshl_b32 {sT2}, {sC_}, 9"); A(f"v_add_u32 {v(vEST)}, {sT2}, v86"); A(lambda: (I("v_cmp_eq_u32 vcc, 7, v81"), I(f"v_cndmask_b32 {v(vEST)}, v90, {v(vEST)}, vcc")))
    A(f"s_sub_u32 {sT2}, {sC_}, 16"); A(f"v_lshl_add_u32 v87, v81, 1, {sT2}")
    A(f"v_lshl_add_u32 {v(vEF)}, v87, 9, v86"); A(f"v_add_u32 {v(vEF+1)}, 512, {v(vEF)}")
    A(lambda: (I("v_cmp_le_i32 vcc, 0, v87"), I(f"v_cndmask_b32 {v(vEF)}, v90, {v(vEF)}, vcc"), I(f"v_cndmask_b32 {v(vEX)}, 0, -1, vcc")))
    A(lambda: (I("v_cmp_le_i32 vcc, -1, v87"), I(f"v_cndmask_b32 {v(vEF+1)}, v90, {v(vEF+1)}, vcc"), I(f"v_cndmask_b32 {v(vEX+1)}, 0, -1, vcc")))
    A(f"s_mul_i32 {sT0}, {sW_}, 2608"); A(f"s_add_u32 {sT0}, {sT0}, {HS}")
    A("v_mul_u32_u24 v86, 336, v82"); A("v_lshl_add_u32 v86, v81, 5, v86"); A(f"v_add_u32 {v(vHSW)}, {sT0}, v86")
    A(f"v_bfe_u32 v86, {vLANE}, 2, 2"); A("v_mul_u32_u24 v86, 336, v86"); A(f"v_and_b32 v87, 32, {vLANE}"); A("v_lshl_add_u32 v86, v87, 1, v86")
    A(f"v_and_b32 v87, 1, {vLANE}"); A("v_lshl_add_u32 v86, v87, 5, v86"); A(f"v_and_b32 v87, 16, {vLANE}"); A("v_add_u32 v86, v86, v87")
    A(f"v_and_b32 v87, 2, {vLANE}"); A("v_lshl_add_u32 v86, v87, 2, v86"); A(f"v_add_u32 {v(vHSR)}, {sT0}, v86")
    A(f"s_mul_i32 {sT0}, {sC_}, {4*160}"); A(f"s_lshr_b32 {sT2}, {sG_}, 1"); A(f"s_lshl3_add_u32 {sT0}, {sT2}, {sT0}"); A(f"s_and_b32 {sT2}, {sG_}, 1")
    A(f"s_lshl1_add_u32 {sT0}, {sT2}, {sT0}"); A(f"s_lshl_b32 {sT0}, {sT0}, 10"); A(f"s_lshl_b32 {sT2}, {sW_}, 9"); A(f"s_add_u32 {sT0}, {sT0}, {sT2}")
    A(f"v_lshrrev_b32 v86, 5, {vLANE}"); A(f"v_mul_u32_u24 v86, {160*1024}, v86"); A(f"v_and_b32 v87, 31, {vLANE}"); A("v_lshl_add_u32 v86, v87, 4, v86"); A(f"v_add_u32 {v(vHSTo)}, {sT0}, v86")
    LOG2E = "0x3fb8aa3b"
    A(lambda: E.wait(vm="par"))
    o += ["v_lshlrev_b32 v70, 16, v70", "v_lshlrev_b32 v71, 16, v71", "v_lshlrev_b32 v72, 16, v72",
          f"v_mul_f32 v70, {LOG2E}, v70", "v_exp_f32 v70, v70", "v_mul_f32 v74, v71, v71"] + bf16r_ops(70, 70)
    o += ["v_mul_f32 v75, v70, v71", "v_mul_f32 v76, v70, v72", f"v_mul_f32 v75, {LOG2E}, v75", "v_exp_f32 v75, v75",
          "v_mul_f32 v76, 0.15915494, v76", "v_rndne_f32 v77, v76", "v_sub_f32 v76, v76, v77", "v_cos_f32 v77, v76", "v_sin_f32 v78, v76",
          "v_fmac_f32 v74, v72, v72", f"v_mul_f32 {v(vLR)}, v75, v77", "v_mul_f32 v78, v75, v78", "v_rcp_f32 v74, v74",
          f"v_add_f32 v77, -1.0, {v(vLR)}", "v_add_f32 v74, v74, v74",
          f"v_mul_f32 {v(vCR)}, v77, v71", f"v_fmac_f32 {v(vCR)}, v78, v72", f"v_mul_f32 {v(vCR)}, {v(vCR)}, v74",
          f"v_mul_f32 {v(vCR+1)}, v77, v72", f"v_fma_f32 {v(vCR+1)}, -v78, v71, {v(vCR+1)}", f"v_mul_f32 {v(vCR+1)}, {v(vCR+1)}, v74",
          f"v_sub_f32 {v(vLR+1)}, 0, v78"]
    o += csq_ops(70, vLR, 78) + csq_ops(72, 70, 78) + csq_ops(70, 72, 78) + csq_ops(vL16, 70, 78)
    o += csq_ops(70, vL16, 78) + csq_ops(72, 70, 78) + csq_ops(vL128, 72, 78) + csq_ops(vL256, vL128, 78)
    o += [f"v_mov_b32 {v(vPQ)}, {v(vCR)}", f"v_mov_b32 {v(vPQ+1)}, {v(vCR+1)}"]
    for bit, L in ((8, vL16), (16, 70), (32, 72)):
        o += [f"v_and_b32 v74, {bit}, {vLANE}", lambda L=L: (I("v_cmp_ne_u32 vcc, 0, v74"), I(f"v_cndmask_b32 v76, 1.0, {v(L)}, vcc"), I(f"v_cndmask_b32 v77, 0, {v(L+1)}, vcc"))]
        o += cmul_ops(vPQ, vPQ, 76, 78)
    def factor(F, Ls):
        r = []
        for n, (bit, L) in enumerate(zip((8, 16, 32), Ls)):
            d = F if n == 0 else 76
            r += [f"v_and_b32 v74, {bit}, {vLANE}", lambda L=L, d=d: (I("v_cmp_eq_u32 vcc, 0, v74"), I(f"v_cndmask_b32 {v(d)}, 1.0, {v(L)}, vcc"), I(f"v_cndmask_b32 {v(d+1)}, 0, {v(L+1)}, vcc"))]
            if n: r += cmul_ops(F, F, 76, 78)
        return r
    o += factor(vF16, (vL16, 70, 72))
    o += csq_ops(70, vL256, 78) + csq_ops(72, 70, 78) + factor(vF256, (vL256, 70, 72))
    return o
def allsum(a_, b_, t):
    o = [f"v_add_f32_dpp {v(t)}, {v(a_)}, {v(a_)} row_ror:8 row_mask:0xf bank_mask:0xf", f"v_add_f32_dpp {v(t+1)}, {v(b_)}, {v(b_)} row_ror:8 row_mask:0xf bank_mask:0xf",
         f"v_mov_b32 {v(a_)}, {v(t)}", f"v_mov_b32 {v(b_)}, {v(t+1)}",
         f"v_permlane16_swap_b32 {v(a_)}, {v(t)}", f"v_permlane16_swap_b32 {v(b_)}, {v(t+1)}",
         f"v_add_f32 {v(a_)}, {v(a_)}, {v(t)}", f"v_add_f32 {v(b_)}, {v(b_)}, {v(t+1)}",
         f"v_mov_b32 {v(t)}, {v(a_)}", f"v_mov_b32 {v(t+1)}, {v(b_)}",
         f"v_permlane32_swap_b32 {v(a_)}, {v(t)}", f"v_permlane32_swap_b32 {v(b_)}, {v(t+1)}",
         f"v_add_f32 {v(a_)}, {v(a_)}, {v(t)}", f"v_add_f32 {v(b_)}, {v(b_)}, {v(t+1)}"]
    return o
def cmul4(d, x, y):
    return [f"v_mul_f32 {v(d[0])}, {v(x[0])}, {v(y)}", f"v_mul_f32 {v(d[1])}, {v(x[0])}, {v(y+1)}",
            f"v_fma_f32 {v(d[0])}, -{v(x[1])}, {v(y+1)}, {v(d[0])}", f"v_fmac_f32 {v(d[1])}, {v(x[1])}, {v(y)}"]
def ssm1():
    o = []
    def rdd(j, comp): DS(f"ds_read_b128 {v((TI if comp else TR) + 4*j, 4)}, {v(vDB+j)} offset:{DUMPS[comp] - DUMPS[1]}", f"dr{j}"); note_read(f"DUMP{comp}")
    for j in range(4):
        o += [lambda j=j: DS(f"ds_read_b128 {v(RT + 4*j, 4)}, {v(vTAB)} offset:{16*j}", f"dr{j}"), lambda j=j: rdd(j, 0), lambda j=j: rdd(j, 1)]
    cur, nx = (vE, vE + 1), (vE2, vE2 + 1)
    for r in range(16):
        if r % 4 == 0: o.append(lambda j=r >> 2: E.wait(lg=f"dr{j}"))
        o += [f"v_mul_f32 {v(TR+r)}, {v(TR+r)}, {v(RT+r)}", f"v_mul_f32_e64 {v(TI+r)}, -{v(TI+r)}, {v(RT+r)}"]
        if r == 0: src = (TR, TI)
        else:
            o += cfma_ops(nx, vLR, src, TR + r, TI + r); src = nx; cur, nx = nx, cur
    assert src == (vE2, vE2 + 1)
    o += cmul4((60, 62), src, vF16) + allsum(60, 62, 64)
    o.append(lambda: (VM(f"buffer_store_dwordx4 v[60:63], {v(vEST)}, {SWS}, 0 offen sc1", "est"), lstamp("epub")))
    return o
def window():
    o = [lambda: DS(f"ds_write_b64 {v(vEQA)}, {v(vE2,2)} offset:{7*64}", "eqw")]
    o += [lambda i=i: DS(f"ds_read_b64 {v(TMP+2*i,2)}, {v(vEQA)} offset:{64*i}", "eq") for i in range(7)]
    for r in range(16):
        o += [f"v_mul_f32 v72, {v(vCR+1)}, {v(TI+r)}", f"v_mul_f32 {v(TI+r)}, {v(vCR)}, {v(TI+r)}",
              f"v_fmac_f32 {v(TI+r)}, {v(vCR+1)}, {v(TR+r)}", f"v_fma_f32 {v(TR+r)}, {v(vCR)}, {v(TR+r)}, -v72"]
    o.append(lambda: E.wait(lg="eq"))
    src = (TMP, TMP + 1); pp = [(vE2, vE2 + 1), (vE, vE + 1)]
    for i in range(1, 7):
        d = pp[i & 1]; o += cfma_ops(d, vL16, src, TMP + 2*i, TMP + 2*i + 1); src = d
    return o + cmul4((vP, vP + 1), src, vCR)
def efetch_issue():
    VM(f"buffer_load_dwordx4 v[64:67], {v(vEF)}, {SWS}, 0 offen sc1", "ef"); VM(f"buffer_load_dwordx4 v[68:71], {v(vEF+1)}, {SWS}, 0 offen sc1", "ef")
def ssm3():
    chk = [f"v_xor_b32 v72, v65, {v(vEX)}", f"v_xor_b32 v73, v67, {v(vEX)}", f"v_xor_b32 v74, v69, {v(vEX+1)}", "v_or3_b32 v72, v72, v73, v74",
           f"v_xor_b32 v73, v71, {v(vEX+1)}", "v_or_b32 v72, v72, v73", "v_cmp_ne_u32 vcc, 0, v72"]
    def check():
        E.wait(vm="ef")
        for c in chk: I(c)
        I("s_cbranch_vccnz L_slow_e"); E.label("L_back_e"); lstamp("eok")
        slow.extend(["L_slow_e:",  f"  buffer_load_dwordx4 v[64:67], {v(vEF)}, {SWS}, 0 offen sc1", f"  buffer_load_dwordx4 v[68:71], {v(vEF+1)}, {SWS}, 0 offen sc1",
                     "  s_waitcnt vmcnt(0)"] + ["  " + c for c in chk] + spin_guard("L_back_e", 0x100) + ["  s_cbranch_vccnz L_slow_e", "  s_branch L_back_e"])
    o = [check] + cfma_ops((vE, vE + 1), vL128, (64, 66), 68, 70)
    o += cmul4((vE2, vE2 + 1), (vE, vE + 1), vF256) + allsum(vE2, vE2 + 1, 72)
    src = (vE2, vE2 + 1)
    o += cfma_ops((vE, vE + 1), vPQ, src, vP, vP + 1)
    src = (vE, vE + 1)
    for r in range(16):
        d = (TR + r, TI + r); o += cfma_ops(d, vLR, src, d[0], d[1]); src = d
        if r & 1: o += [f"v_cvt_pk_bf16_f32 {v(TMP + (r>>1))}, {v(TR+r-1)}, {v(TR+r)}", f"v_cvt_pk_bf16_f32 {v(TMP + 8 + (r>>1))}, {v(TI+r-1)}, {v(TI+r)}"]
    for comp in range(2):
        o += [lambda j=j, comp=comp: DS(f"ds_write_b128 {v(vHSW)}, {v(TMP + 8*comp + 4*j, 4)} offset:{16*j}", "hsw") for j in range(2)]
        for i in range(2):
            for ph in range(2):
                def rd(i=i, ph=ph, comp=comp):
                    DS(f"ds_read_b64_tr_b16 {v(RT + 8*comp + 4*i + 2*ph, 2)}, {v(vHSR)} offset:{4*ph*336 + 128*i}", f"hr{comp}{i}"); note_read("HS")
                o.append(rd)
    for comp in range(2):
        for i in range(2):
            def st(i=i, comp=comp):
                I(f"s_mov_b32 {sT0}, {2*i*160*1024 + comp*4096}"); E.wait(lg=f"hr{comp}{i}")
                VM(f"buffer_store_dwordx4 {v(RT + 8*comp + 4*i, 4)}, {v(vHSTo)}, {SWS}, {sT0} offen" + STP, "hst")
            o.append(st)
    o.append(lambda: lstamp("hst"))
    return o
work = []
def pop_work(n):
    while n > 0 and work: runall([work.pop(0)]); n -= 1
def between(n=8): return lambda: pop_work(n)
live.append(items["OFT"])
I(f"v_and_b32 {v(vQR)}, 3, {vLANE}"); I(f"v_lshlrev_b32 {v(vQR)}, 2, {v(vQR)}"); I(f"v_add_u32 {v(vQR)}, {PRG}, {v(vQR)}"); I(f"v_mov_b32 {v(vQV)}, 0")
I(f"s_lshl_b32 {sT0}, {sW_}, 2"); I(f"s_add_u32 {sT0}, {sT0}, {PRG}"); I(f"v_mov_b32 {v(vQW)}, {sT0}")
issue("S2"); issue("S3"); lstamp("b0")
def hchk(word, st):
    off = {"PC": 0, "PD": 32}[word]; val = PCV[st] if word == "PC" else st
    chk_spin(val, vQR, vQT, off)
    em, lg = signals[(word, val)]; known[id(em)] = max(known[id(em)], lg)
published = [0]
def pub(ch):
    assert PHV[ch] > published[0]
    E.wait(vm=[n for c in CHUNKS[published[0]:PHV[ch]] for n in chunk_items(c)]); signal("PH", PHV[ch], vQW, vQV, 16); published[0] = PHV[ch]
def auto_pub(lead):
    best = None
    for c in CHUNKS[published[0]:]:
        if all(n in E.vm and done_issue.get(n) and len(E.vm) - E.last(E.vm, n) >= lead for n in chunk_items(c)): best = c
        else: break
    if best: pub(best)
def s47():
    for n in ("S4", "S5", "S6", "S7"): issue(n)
if OPT["xi"] < 0: s47()
pub("S2")
setup1()
I(f"s_lshl_b32 {sT0}, {sW_}, 11"); I(f"s_add_u32 {sT0}, {sT0}, {HS}"); I(f"v_lshl_add_u32 v86, {vLANE}, 4, {sT0}")
E.wait(vm="par"); DS("ds_write_b128 v86, v[4:7]", "oft"); I("v_mov_b32 v92, v86"); E.wait(lg="oft")
if OPT["xi"] >= 0: hchk("PC", "Xi"); s47()
w2 = setup2(); runall(w2[:OPT["w2a"]])
hchk("PC", "X"); lstamp("xd")
I("v_mov_b32 v91, 0"); VM(f"buffer_load_dword {v(vPOLL)}, v91, {SDBG}, 0 offen sc1", "tag")
issue("G0"); pub("S6"); runall(w2[OPT["w2a"]:OPT["w2b"]]); issue("G1"); runall(w2[OPT["w2b"]:]); pub("G0"); hchk("PC", "S3"); issue("G2"); pub("G1"); issue("G3"); setup1b()
tag_check("H", vPOLL, 88)
I(f"s_mov_b32 s74, {sNON}"); I(f"s_mov_b32 s75, {sNON}")
runall([f"v_mov_b32 v61, {sNON}", f"v_mov_b32 v63, {sNON}", f"v_and_b32 {v(vEX)}, {sNON}, {v(vEX)}", f"v_and_b32 {v(vEX+1)}, {sNON}, {v(vEX+1)}",
        f"v_lshl_add_u32 {v(vUP)}, {vLANE}, 4, {sM4}"])
known[id(EC)] = max(known[id(EC)], signals[("PC", PCV["S5"])][1]); hplace("DUMP0"); hplace("DUMP1")
DS("ds_write_b64 v92, v[8:9] offset:1024", "oft"); DS("ds_write_b32 v92, v12 offset:1032", "oft"); DS("ds_write_b32 v92, v61 offset:1036", "oft")
runall(q_setup()); issue("C0"); issue("W0")
if OPT["w1e"]: issue("W4")
I(f"s_setprio {OPT['pb']}")
hchk("PC", "dump"); lstamp("bD")
ncp = [0]
def code_touch():
    ncp[0] += 1
    I("s_getpc_b64 s[54:55]"); E.label(f"L_pc{ncp[0]}")
    I(f"s_sub_u32 s54, s54, L_pc{ncp[0]}-{NAME}_kernel"); I("s_subb_u32 s55, s55, 0")
    I(f"s_and_b32 {sT0}, {sGL}, 3"); I("v_and_b32 v78, 0xfc, v0"); I(f"v_or_b32 v78, {sT0}, v78"); I("v_lshlrev_b32 v78, 7, v78")
    VM("global_load_dword v79, v78, s[54:55]", "code")
def pass2():
    t0 = OPT["bd"] + 2
    s1, wn, s3 = ssm1(), window(), ssm3()
    ins = []
    def spread(name, ta, tb, pre=None):
        holder = {}
        n = 6 if name[0] == "G" else 4
        for k in range(n):
            def f(k=k):
                if k == 0:
                    if pre: hchk(*pre)
                    holder["ops"] = item_ops(name)
                holder["ops"][k]()
            ins.append((ta + (tb - ta) * k / n, f))
    ins.append((OPT["pg2"], lambda: (E.wait(lg="dr3"), pub("G2")))); ins.append((48, lambda: pub("G3")))
    ins.sort(key=lambda x: x[0])
    t = [float(t0)]
    def cyc(): return E.nvec * OPT["vc"] / 10.0 + (E.count + E.nops - E.nvec) * 4.0
    def adv(c0): t[0] += (cyc() - c0) / 33.0
    def run(ops):
        for op in ops:
            while ins and ins[0][0] <= t[0]:
                c0 = cyc(); ins.pop(0)[1](); adv(c0)
            c0 = cyc(); runall([op]); adv(c0)
    def idle_until(tt):
        while ins and ins[0][0] <= tt: t[0] = max(t[0], ins[0][0]); ins.pop(0)[1]()
        t[0] = max(t[0], tt)
    run(s1); tpub = t[0]
    k = 0
    while k < len(wn) and t[0] < tpub + OPT["efd"]: run([wn[k]]); k += 1
    efetch_issue(); lstamp("ef"); tf = t[0]
    if OPT["cp"] & 1: code_touch()
    run(wn[k:]); hchk("PC", "G1"); hplace("HS")
    tc = t[0]
    I(f"s_setprio {OPT['pc']}"); run(s3); ts = t[0]; assert not ins
    E.wait(vm="hst"); signal("PD", 2, vQW, vQV, 32); hchk("PD", 2); flag_send("s20"); lstamp("hflag")
    if OPT.get("log"): print(f"helper est: epub {tpub:.0f} efetch {tf:.0f} check {tc:.0f} stores {ts:.0f}", file=sys.stderr)
pass2()
issue("XE")
if not OPT["w1e"]: issue("W4")
if OPT["cp"] & 2: code_touch()
pub("KX")
for name, kn in cplaced:
    save = dict(known); known.update({id(EC): 0, id(EH): 0})
    for w_, val in kn:
        em, lg = signals[(w_, val)]; known[id(em)] = max(known[id(em)], lg)
    hplace(name); done_issue[name] = True; known.update(save)
I(f"s_setprio {OPT['pd']}")
if OPT["ep"]:
    hchk("PC", "U0"); poll_issue("s20", "ph"); poll_check("s20", "ph", 0x10000); lstamp("okh"); pub("K0")
I(f"s_mov_b32 s19, {WS_FP}")
hchk("PC", "T"); lstamp("gT")
unpark("C0"); I("s_setprio 2")
hchk("PC", "gsa"); flag_send("s19"); lstamp("fa"); I(f"s_setprio {OPT['pd']}")
wl_ = list(("W1", "W2", "W3")[3 - OPT["wl"]:])
if OPT["u0"]: unpark("W0")
for k, bn in enumerate(bar_names[1:]):
    E.wait(vm={"bP3": ["W5"], "bP2": wl_}.get(bn, []), lg={"bP0": ["upC0"], "bP2": ["upW0"], "bP3": ["upW4"]}.get(bn, [])); E.barrier()
    known[id(EC)] = max(known[id(EC)], EC.barriers[k + 1][1])
    if bn == "bP0":
        poll_check("s19", "pa", 0x1); lstamp("oka"); pub("KA")
        I("s_setprio 2"); hchk("PC", "gst"); flag_send("s21"); I(f"s_setprio {OPT['pd']}")
        for n_ in wl_: issue(n_)
        if not OPT["u0"]: unpark("W0")
        poll_check("s21", "pg", 0x1000000); lstamp("okg"); pub("KB")
    if bn == "bP2": issue("W5"); unpark("W4")
    if bn == "bP3": assert known[id(EC)] >= min(items["C2"].last_read, 10**9)
    if bn == "bP4": assert known[id(EC)] >= items[RT2].last_read
assert len(EH.barriers) == len(EC.barriers)
dump_stamps("H")
E.label("L_end"); I("s_endpgm")

DOC = """; Fused LayerNorm + S5 scan + bilinear GLU, one launch, 256 workgroups (one per CU), written by dev/gen16.py.
;                        then the output GEMM for 128 rows x 64 columns over one half of K; the partner
;                        workgroup (c, g^8) holds the other half and the two swap 64x64 partial tiles.
;   waves 4-7 (helper):  LDS-DMA loads, exact chunked scan (local end states exchanged between row blocks),
;                        hand-off flags.  Every hand-off carries a per-launch tag published through d_debug.
"""
hdr = open("cdna_kernels/" + NAME + ".s.ref").read().split("; Override launch geometry")[0]
out = hdr
if OPT["lst"]: out += "; cstamps: " + " ".join(lnames["C"]) + "\n; hstamps: " + " ".join(lnames["H"]) + f"\n; rt: {OPT['rt']}\n"
out += f"; @launch grid=(256,1,1) block=(512,1,1) lds={LDS_BYTES}\n"
out += DOC
out += f'.amdgcn_target "amdgcn-amd-amdhsa--gfx950"\n.text\n.globl {NAME}_kernel\n.p2align 8\n.type {NAME}_kernel,@function\n'
kc = next(k for k, l in enumerate(EC.lines) if "v_and_b32 v90, 31" in l)
out += E0.text() + "\n".join(EC.lines[:kc]) + "\n  s_branch L_cmain\n" + EH.text() + "L_cmain:\n" + "\n".join(EC.lines[kc:]) + "\n" + "\n".join(slow) + "\n"
out += f"L_pad:\n.fill (37120 - (L_pad - {NAME}_kernel)) / 4, 4, 0xbf810000\n"
out += f""".section .rodata,"a"
.p2align 6
.amdhsa_kernel {NAME}_kernel
  .amdhsa_next_free_vgpr 256
  .amdhsa_next_free_sgpr 102
  .amdhsa_accum_offset 256
  .amdhsa_group_segment_fixed_size 0
  .amdhsa_kernarg_size 128
  .amdhsa_user_sgpr_count 2
  .amdhsa_user_sgpr_kernarg_segment_ptr 1
  .amdhsa_system_sgpr_workgroup_id_x 1
.end_amdhsa_kernel
"""
open(sys.argv[1], "w").write(out)
print(f"compute {EC.count}+{EC.nops} helper {EH.count}+{EH.nops} barriers {len(bar_names)}: {' '.join(bar_names)}", file=sys.stderr)
```

```python
import sys
from emit import Emitter
NAME = "parallel_sum__ssm_conv_s5__glu_gated_bilinear__prompt"
OPT = dict(lst=0, rt=1, D=4, D2=7, D3=6, NU=2, gfd=40, prio=1, bd=15, ipc=85, slp=2, slq=0, wl=2, ovr=0, cp=0, sp=2, dsp=3, efn=90, rot=8, lead=12, ge=0, gf=1, gg=5, gp=2, mw=0, ar=1, nr=8, bk=12, c34=1, f0=0, f2=1, pw=0, pd=2, nwt=0, a0=6, al=16, nb=60, gs=0, tw=0, osc=1, d64=0, w2a=20, w2b=110, pb=0, c1=117, c45=1, u0s=170, xi=-1, pc=2, map=0, xj=1, nd=1, skw=2, gj=7, pjd=10, ea=0, pl=14, w1e=0, xw=1, ct=1, stg=0, x3=0, wr=4, pg2=21, ep=1, ord=1, ka=26, kb=64, ab=2, u0=1, pls=0, pll=0, bal=1, skp=1, gsl=0, af=0, pb16=1, vc=85, efd=35, ecd=20)
for a_ in sys.argv[2:]:
    k_, v_ = a_.split("="); OPT[k_] = int(v_)

WS_EB = 0xA00000; WS_FH = 0xA40000; WS_FG = 0xA48000; WS_ST = 0xC00000; WS_FP = 0xA50000; WS_PB = 0x1000000; WS_SIZE = 0x1800000
U8 = 8192; MISC = 18 * U8
RTAB = MISC; EQ = MISC + 1024; HS = MISC + 5120; XE = MISC + 5120
DUMP = 0
PRG = MISC + 15872
LDS_BYTES = 163840
OOB = 0x80000000
sW_, sC_, sG_, sGL, sGH, sJ0 = "s3", "s4", "s5", "s6", "s7", "s8"
sT0, sT1, sT2, sT3 = "s9", "s10", "s11", "s12"
SX, SS, SG, SC, SWD, SWS, SOUT, SDBG = ("s[48:51]", "s[52:55]", "s[56:59]", "s[60:63]", "s[64:67]", "s[68:71]", "s[72:75]", "s[76:79]")
sK = [f"s{80+i}" for i in range(8)]
sM4, sM2, sM6 = "s88", "s89", "s94"
sQW, sQHG, sSO = "s95", "s96", "s100"
sNON, sC10, sC01, sC11 = "s90", "s91", "s92", "s93"
sSPIN = "s97"; sSP2 = "s99"; sCL = "s101"
sCW = "s98"; WMUL = {4: 3, 2: 6, 1: 0}[OPT["wr"]]
sRA = "s52"
def q_setup(): return [f"s_add_u32 {sQW}, {sGL}, {sCL}", f"s_mul_i32 {sRA}, {sGH}, {6*8192}", f"s_add_u32 {sRA}, {sRA}, 65536"]
def q_h(so, i): I(f"s_add_u32 {so}, {sQW}, {i}"); I(f"s_and_b32 {so}, {so}, 3"); I(f"s_lshl2_add_u32 {so}, {sGH}, {so}")
def q_u(so, i):
    I(f"s_add_u32 {so}, {sQW}, {i}"); I(f"s_and_b32 {so}, {so}, {3 if i < 4 else 1}")
    if i >= 4: I(f"s_add_u32 {so}, {so}, 4")
def w_soff(so, i, tmp):
    q_u(tmp, i); I(f"s_lshl2_add_u32 {tmp}, {tmp}, {sW_}"); I(f"s_and_b32 {so}, {tmp}, 7"); I(f"s_lshl3_add_u32 {so}, {sGH}, {so}"); I(f"s_mul_i32 {so}, {so}, 3")
    I(f"s_lshr_b32 {tmp}, {tmp}, 3"); I(f"s_add_u32 {so}, {so}, {tmp}")
    if OPT["bal"]:
        I(f"s_sub_u32 {tmp}, {so}, 22"); I(f"s_cmp_lt_u32 {tmp}, 2"); I(f"s_cselect_b32 {so}, 64, {so}"); I(f"s_lshl_b32 {tmp}, {sGH}, 1"); I(f"s_sub_u32 {so}, {so}, {tmp}")
    I(f"s_lshl_b32 {so}, {so}, 15")
STP = [" sc1", "", " nt"][OPT["pls"]]
vLANE = "v1"
MF = "v_mfma_f32_32x32x16_bf16"
def v(n, k=1): return f"v{n}" if k == 1 else f"v[{n}:{n+k-1}]"

EC, EH, E0 = Emitter(), Emitter(), Emitter()
E = E0
def I(t): return E.I(t)
def VM(t, tag=None): return E.VM(t, tag)
def DS(t, tag=None): return E.DS(t, tag)
slow = []
lnames = {"C": [], "H": []}
def lstamp(name):
    who = "C" if E is EC else "H"
    if OPT["lst"] and name in LSET[who] and len(lnames[who]) < 12:
        k = 24 + 2 * len(lnames[who]); lnames[who].append(name); I(f"{'s_memrealtime' if OPT['rt'] else 's_memtime'} s[{k}:{k+1}]")
LSETS = {0: ([], []),
         1: (["X6", "X7", "S0", "G0", "G4", "T", "J0", "J4", "snd", "kp", "last", "end"], ["b0", "xd", "bD", "epub", "ef", "eok", "hst", "hflag", "okh", "gT", "okg", "end"]),
         2: (["S0", "S2", "S4", "S6", "G0", "G1", "G2", "G3", "G4", "G5", "G6", "T"], ["b0", "xd", "bD", "epub", "ef", "eok", "hst", "hflag", "okh", "gT", "okg", "end"]),
         3: (["T", "K0", "J0", "J2", "J4", "J7", "snd", "J10", "J13", "kp", "last", "end"], ["b0", "xd", "bD", "epub", "ef", "eok", "hst", "hflag", "okh", "gT", "okg", "end"])}
LSETS[9] = ([], LSETS[1][1])
LSETS[4] = (["T", "e2", "k0", "ga", "K0", "J0", "J1", "J2", "J3", "J4", "J5", "J6"], [])
LSETS[5] = (["J6", "J7", "J8", "J9", "snd", "J10", "J12", "J14", "J16", "J17", "kp", "last"], [])
LSET = dict(zip("CH", LSETS[OPT["lst"]])); LSET["H"] = ["bD", "epub", "eok", "hst", "hflag", "okh", "fa", "oka"]
def runall(ops):
    for op in ops:
        if isinstance(op, str): I(op)
        else: op()
def csq_ops(d, x, t):
    return [f"v_mul_f32 {v(t)}, {v(x+1)}, {v(x+1)}", f"v_add_f32 {v(t+1)}, {v(x)}, {v(x)}", f"v_fma_f32 {v(d)}, {v(x)}, {v(x)}, -{v(t)}", f"v_mul_f32 {v(d+1)}, {v(t+1)}, {v(x+1)}"]
def cmul_ops(d, x, y, t):
    return [f"v_mul_f32 {v(t)}, {v(x)}, {v(y)}", f"v_mul_f32 {v(t+1)}, {v(x)}, {v(y+1)}",
            f"v_fma_f32 {v(t)}, -{v(x+1)}, {v(y+1)}, {v(t)}", f"v_fma_f32 {v(d+1)}, {v(x+1)}, {v(y)}, {v(t+1)}", f"v_mov_b32 {v(d)}, {v(t)}"]
def cfma_ops(d, L, x, br, bi):
    return [f"v_fma_f32 {v(d[0])}, {v(L)}, {v(x[0])}, {v(br)}", f"v_fma_f32 {v(d[1])}, {v(L)}, {v(x[1])}, {v(bi)}",
            f"v_fma_f32 {v(d[0])}, -{v(L+1)}, {v(x[1])}, {v(d[0])}", f"v_fma_f32 {v(d[1])}, {v(L+1)}, {v(x[0])}, {v(d[1])}"]
def bf16r_ops(d, s): return [f"v_cvt_pk_bf16_f32 {v(d)}, {v(s)}, {v(s)}", f"v_and_b32 {v(d)}, 0xffff0000, {v(d)}"]
def srd(dst, lo, size):
    n = int(dst[2:dst.index(":")])
    I(f"s_mov_b64 s[{n}:{n+1}], s[{lo}:{lo+1}]"); I(f"s_mov_b32 s{n+2}, {size}"); I(f"s_mov_b32 s{n+3}, 0x20000")
def srd_sel(dst, p0, p1, size):
    n = int(dst[2:dst.index(":")])
    I(f"s_cselect_b64 s[{n}:{n+1}], s[{p1}:{p1+1}], s[{p0}:{p0+1}]"); I(f"s_mov_b32 s{n+2}, {size}"); I(f"s_mov_b32 s{n+3}, 0x20000")
def ktab(i):
    I(f"s_add_u32 {sK[i]}, {sJ0}, {i}"); I(f"s_and_b32 {sK[i]}, {sK[i]}, 7"); I(f"s_lshl_b32 {sK[i]}, {sK[i]}, 7")
def spin_guard(lbl_back, inc):
    return ([f"  s_add_u32 s15, s15, {inc}" if inc >= 0 else f"  s_bitset1_b32 s15, {-inc}"] if OPT["lst"] else []) + [f"  s_add_u32 {sSPIN}, {sSPIN}, 1", f"  s_cmp_gt_u32 {sSPIN}, 0x200000", f"  s_cbranch_scc1 {lbl_back}"]
def tag_check(who, vp, vz):
    E.wait(vm="tag"); I(f"v_readfirstlane_b32 {sNON}, {v(vp)}"); I(f"s_cmp_eq_u32 {sNON}, 0"); I(f"s_cbranch_scc1 L_slow_tag{who}"); E.label(f"L_back_tag{who}")
    slow.extend([f"L_slow_tag{who}:", "  s_sleep 1", f"  v_mov_b32 {v(vz)}, 0", f"  buffer_load_dword {v(vp)}, {v(vz)}, {SDBG}, 0 offen sc1", "  s_waitcnt vmcnt(0)",
                 f"  v_readfirstlane_b32 {sNON}, {v(vp)}"] + spin_guard(f"L_back_tag{who}", 1) +
                [f"  s_cmp_eq_u32 {sNON}, 0", f"  s_cbranch_scc1 L_slow_tag{who}", f"  s_branch L_back_tag{who}"])
signals = {}
def signal(word, val, va, vt, off):
    signals[(word, val)] = (E, E.lg_done)
    I(f"v_mov_b32 {v(vt)}, {val}"); DS(f"ds_write_b32 {v(va)}, {v(vt)} offset:{off}", "sig")
nchk = [0]
def chk_issue(va, vt, off):
    nchk[0] += 1; DS(f"ds_read_b32 {v(vt)}, {v(va)} offset:{off}", f"chk{nchk[0]}"); return f"chk{nchk[0]}"
def chk_test(tag, val, va, vt, off, inc):
    E.wait(lg=tag)
    I(f"v_cmp_gt_u32 vcc, {val}, {v(vt)}"); I(f"s_cbranch_vccnz L_slow_{tag}"); E.label(f"L_back_{tag}")
    slow.extend([f"L_slow_{tag}:", f"  ds_read_b32 {v(vt)}, {v(va)} offset:{off}", "  s_waitcnt lgkmcnt(0)", f"  v_cmp_gt_u32 vcc, {val}, {v(vt)}"]
                + spin_guard(f"L_back_{tag}", inc) + [f"  s_cbranch_vccnz L_slow_{tag}", f"  s_branch L_back_{tag}"])
def chk_spin(val, va, vt, off):
    nchk[0] += 1; lbl = f"L_spin{nchk[0]}"
    E.label(lbl)
    DS(f"ds_read_b32 {v(vt)}, {v(va)} offset:{off}", lbl); I(f"s_sub_u32 {sSP2}, {sSP2}, 1"); I("s_cbranch_scc1 L_end")
    E.wait_all(lg=True)
    I(f"v_cmp_gt_u32 vcc, {val}, {v(vt)}"); I(f"s_cbranch_vccnz {lbl}")
def dump_stamps(who):
    if not OPT["lst"]: return
    E.wait_all(vm=True); lstamp("end"); E.wait_all(lg=True)
    n = len(lnames[who])
    for k in range(n): I(f"v_writelane_b32 v2, s{24+2*k}, {k}")
    I(f"v_writelane_b32 v2, {n}, 61"); I("v_writelane_b32 v2, s15, 60"); I("v_writelane_b32 v2, s14, 63")
    I(f"s_lshl3_add_u32 {sT0}, s2, {sW_}"); I(f"s_add_u32 {sT0}, {sT0}, {4 if who == 'H' else 0}"); I(f"s_lshl_b32 {sT0}, {sT0}, 8"); I(f"s_add_u32 {sT0}, {sT0}, {WS_ST}")
    I(f"v_lshlrev_b32 v3, 2, {vLANE}")
    VM(f"buffer_store_dword v2, v3, {SWS}, {sT0} offen")

NU = OPT["NU"]; assert NU == 2

BASE_OF = {}
for i in range(8): BASE_OF[f"X{i}"] = (2 * (i & 3) * U8, 16384)
for i, u in enumerate(range(8, 16)): BASE_OF[f"S{i}"] = (u * U8, 8192)
for i, u in enumerate([0, 3, 6, 9, 0, 3, 12, 15]): BASE_OF[f"G{i}"] = (u * U8, 24576)
DUMPS = [16 * U8, 12 * U8]
BASE_OF["DUMP0"] = (DUMPS[0], 16384); BASE_OF["DUMP1"] = (DUMPS[1], 16384); BASE_OF["XE"] = (XE, 8192); BASE_OF["HS"] = (HS, 10432); BASE_OF["OFT"] = (HS, 8192)
slot_of = {"C1": 3, "C2": 4, "C3": 5, "W1": 0, "W2": 1, "W3": 2, "C0": 6, "W0": 7, "W4": 8, "W5": 3}
RT_ = {"C0": 168, "W0": 184, "W4": 200}
ND = OPT["nd"]
CO = ["C1", "C2", "C3", "C0"]; WO = ["W1", "W2", "W3", "W0", "W4", "W5"]
SK = [["W1"], ["W1", "W4"], []][OPT["skw"]]
jobs = [(t, "sk") for t in CO[:4-ND]] + [(t, "s") for t in CO[4-ND:]] + [(t, "sk" if t in SK else "s") for t in WO] + [(t, "k") for t in WO if t not in SK] + [(t, "k") for t in CO[4-ND:]]
NJ1 = 10
def chunk_items(ch):
    i = ch[1:]
    if ch[0] == "S": return [f"S{i}", f"S{int(i)+1}"]
    return {"K": ["XE"] if ch == "KX" else [], "G": [f"G{i}"]}[ch[0]]
RED = slot_of["C2"] * 16384; assert ND <= 2
CHUNKS = ["S0", "S2", "S4", "S6"] + [f"G{i}" for i in range(4)] + ["KX", "K0", "KA", "KB"]
PHV = {c: k + 1 for k, c in enumerate(CHUNKS)}
CEV = {"G0": 25, "G1": 49, "G2": 74, "G3": 99, "G4": 128 if OPT["gsl"] else 122, "G5": 145, "U0": OPT["u0s"]}
STAGES = ["Xi", "X", "S3", "S5", "dump"] + sorted(CEV, key=CEV.get) + ["T", "gsa", "gst", "pj"]
PCV = {c: k + 1 for k, c in enumerate(STAGES)}
for n, s in slot_of.items(): BASE_OF[n] = (s * 16384, 16384)

class Item: pass
items = {}
for n, (b, sz) in BASE_OF.items():
    it = Item(); it.name, it.base, it.size = n, b, sz; it.first_bar = None; it.last_read = None; it.reader = None; items[n] = it
bar_names = []
def note_read(name):
    it = items[name]
    if it.first_bar is None: it.first_bar = len(E.barriers)
    it.last_read = len(E.lg); it.last_bar = len(E.barriers); it.reader = E

E = E0
E.label(f"{NAME}_kernel")
I("s_cmp_ge_u32 s2, 256"); I("s_cbranch_scc1 L_end")
I("s_load_dwordx16 s[16:31], s[0:1], 0")
I("s_getpc_b64 s[98:99]"); I(f"s_bfe_u32 {sT0}, s2, 0x20003"); I("v_lshrrev_b32 v80, 3, v0"); I(f"v_lshl_add_u32 v80, v80, 2, {sT0}"); I("v_lshlrev_b32 v80, 7, v80")
VM("global_load_dword v95, v80, s[98:99]", "code")
I("s_load_dwordx16 s[32:47], s[0:1], 64")
I("s_memrealtime s[14:15]")
I("v_lshrrev_b32 v80, 6, v0"); I(f"v_and_b32 {vLANE}, 63, v0"); I(f"v_readfirstlane_b32 {sT3}, v80")
sR8 = "s19" if False else None
if OPT["map"] == 0:
    I(f"s_bfe_u32 {sT0}, s2, 0x20001"); I(f"s_lshr_b32 {sCL}, s2, 6"); I(f"s_lshl2_add_u32 {sC_}, {sT0}, {sCL}")
    I(f"s_bfe_u32 {sGL}, s2, 0x30003"); I(f"s_lshl1_add_u32 {sJ0}, {sCL}, {sGL}")
    I(f"s_and_b32 {sGH}, s2, 1"); I(f"s_lshl3_add_u32 {sG_}, {sGH}, {sGL}"); I(f"s_mov_b32 {sQW}, {sGL}")
    if OPT["xj"]: I(f"s_add_u32 {sJ0}, {sJ0}, {sT0}")
else:
    I(f"s_and_b32 {sT0}, s2, 1"); I(f"s_lshr_b32 {sQW}, s2, 5"); I(f"s_lshl3_add_u32 {sC_}, {sT0}, {sQW}")
    I(f"s_bfe_u32 {sCL}, s2, 0x20003"); I(f"s_bfe_u32 {sT0}, s2, 0x20001"); I(f"s_lshl2_add_u32 {sG_}, {sT0}, {sCL}")
    I(f"s_and_b32 {sGL}, {sG_}, 7"); I(f"s_lshr_b32 {sGH}, {sG_}, 3"); I(f"s_lshl1_add_u32 {sJ0}, {sCL}, {sQW}")
for i in range(2): ktab(i)
I(f"s_and_b32 {sW_}, {sT3}, 3"); I(f"s_lshl_b32 {sM4}, {sW_}, 12")
I(f"v_lshrrev_b32 v81, 3, {vLANE}"); I(f"v_and_b32 v82, 7, {vLANE}")
I("v_lshrrev_b32 v84, 1, v81"); I("v_xor_b32 v83, v82, v84"); I("v_lshlrev_b32 v83, 4, v83"); I("v_xor_b32 v85, 64, v83")
I(f"v_lshlrev_b32 v78, 2, {vLANE}"); I("v_mov_b32 v79, 0"); I(f"v_add_u32 v78, {PRG}, v78"); DS("ds_write_b32 v78, v79", "prz")
I(f"s_mov_b32 {sSP2}, 0x1000000"); I(f"s_and_b32 {sCW}, {sCL}, {3 if OPT['wr'] == 4 else 1}")
I(f"s_cmp_ge_u32 {sT3}, 4"); I("s_cbranch_scc1 L_helper")

E = EC
vP1 = [2, 3, 4, 5]; vGT = 6; vNM = 7; vR2 = 0
FB0, NFB = 8, 6
ACCG = [32, 64, 96]; ACCU = [48, 80, 112]; ACC_R, ACC_I = 96, 112
XF = 128
vXo = [86, 87, 88, 89]
def cbar(name, vm=(), lg=()):
    E.wait(vm=vm, lg=lg); E.barrier(); bar_names.append(name)
I("v_and_b32 v84, 4, v81"); I("v_and_b32 v80, 3, v81"); I("v_lshl_add_u32 v84, v84, 2, v80")
I(f"s_lshl2_add_u32 {sT0}, {sC_}, {sW_}"); I(f"s_lshl_b32 {sT0}, {sT0}, 5")
I(f"v_add_lshl_u32 v84, v84, {sT0}, 10")
I(f"v_add_u32 {v(vXo[0])}, v84, v83"); I(f"v_add_u32 {v(vXo[1])}, v84, v85")
I(f"v_add_u32 {v(vXo[2])}, 6144, {v(vXo[0])}"); I(f"v_add_u32 {v(vXo[3])}, 9216, {v(vXo[1])}"); I(f"v_add_u32 {v(vXo[1])}, 3072, {v(vXo[1])}")
I("s_mov_b32 s50, 2097152"); I("s_mov_b32 s51, 0x20000")
E.wait_all(lg=True)
I("s_mov_b64 s[48:49], s[16:17]")
def X_issue(i):
    I(f"s_add_u32 m0, {sM4}, {items[f'X{i}'].base}")
    for q in range(4): VM(f"buffer_load_dwordx4 {v(vXo[q])}, {SX}, {sK[i]} offen" + (f" offset:{q*1024}" if q else "") + " lds", f"X{i}")
X_issue(0); X_issue(1)
if OPT["prio"] == 1: I("s_setprio 1")
for i in range(2, 8): ktab(i)
X_issue(2)
if OPT["x3"]: X_issue(3)
cbar("b0")
I(f"v_and_b32 v90, 31, {vLANE}"); I(f"v_lshrrev_b32 v91, 5, {vLANE}")
I("v_bfe_u32 v92, v90, 1, 3"); I("v_xor_b32 v92, v92, v91"); I("v_lshlrev_b32 v92, 4, v92"); I("v_lshl_add_u32 v92, v90, 7, v92")
I(f"v_add_u32 {v(vP1[0])}, {sM4}, v92")
for s in range(1, 4): I(f"v_xor_b32 {v(vP1[s])}, {32*s}, {v(vP1[0])}")
I(f"s_mov_b32 {sC11}, 0x3f803f80"); I(f"s_mov_b32 {sC10}, 0x00003f80"); I(f"s_mov_b32 {sC01}, 0x3f800000")
for r in range(64, 72): I(f"v_mov_b32 v{r}, 0")
srd(SWS, 46, WS_SIZE); srd(SOUT, 42, 4194304)
I(f"s_cmp_ge_u32 {sW_}, 2"); srd_sel(SG, 36, 38, 1409024); srd_sel(SC, 26, 28, 524288); I(f"s_mul_i32 {sM6}, {sW_}, 6144"); srd(SWD, 40, 1409024)
I(f"s_mov_b32 {sSPIN}, 0"); I("s_mov_b32 s15, 0"); I("s_mov_b64 s[22:23], s[32:33]"); I("s_mov_b64 s[20:21], s[40:41]")
I(f"v_bfe_u32 v92, {vLANE}, 2, 2"); I("v_lshl_add_u32 v92, v91, 3, v92"); I(f"v_mul_u32_u24 {v(vGT)}, 192, v92")
I(f"v_and_b32 v93, 16, {vLANE}"); I(f"v_lshl_add_u32 {v(vGT)}, v93, 1, {v(vGT)}")
I(f"v_and_b32 v93, 1, {vLANE}"); I(f"v_lshl_add_u32 {v(vGT)}, v93, 4, {v(vGT)}")
I(f"v_and_b32 v93, 2, {vLANE}"); I(f"v_lshl_add_u32 {v(vGT)}, v93, 2, {v(vGT)}")
I(f"s_lshl_b32 {sT0}, {sW_}, 7"); I(f"s_add_u32 {sT0}, {sT0}, {RTAB}")
I("v_bfe_u32 v93, v90, 2, 1"); I("v_lshlrev_b32 v94, 4, v93"); I("v_lshrrev_b32 v93, 3, v90"); I("v_lshl_add_u32 v94, v93, 2, v94")
I("v_and_b32 v93, 3, v90"); I("v_add_u32 v94, v94, v93"); I(f"v_lshl_add_u32 v94, v94, 2, {sT0}")
FR = dict(r=72, t=73, v=74, w=75)
I(f"v_and_b32 v72, 3, {vLANE}"); I("v_lshlrev_b32 v72, 2, v72"); I(f"v_add_u32 v72, {PRG}, v72")
I(f"s_lshl_b32 {sT0}, {sW_}, 2"); I(f"s_add_u32 {sT0}, {sT0}, {PRG}"); I(f"v_mov_b32 v75, {sT0}")
def csig(st): signal("PC", PCV[st], FR["w"], FR["v"], 0)
for i in range(8):
    it = items[f"X{i}"]
    E.wait(vm=it.name)
    for s in range(4):
        DS(f"ds_read_b128 {v(XF + 16*i + 4*s, 4)}, {v(vP1[s])} offset:{it.base & 0xffff}", f"xr{i}_{s}"); note_read(it.name)
    if not OPT["x3"] and i + 3 < 8: X_issue(i + 3)
    if OPT["x3"] and i + 4 < 8: E.wait(lg=f"xr{i}_3"); X_issue(i + 4)
    if i == OPT["xi"]: csig("Xi")
    if i == 4 and OPT["mw"]:
        I(f"s_cmp_eq_u32 {sW_}, 1"); I("s_cselect_b64 s[52:53], s[38:39], s[36:37]"); I(f"s_cmp_eq_u32 {sW_}, 2"); I("s_cselect_b64 s[52:53], s[40:41], s[52:53]")
        I(f"s_cmp_eq_u32 {sW_}, 3"); I("s_cselect_b64 s[52:53], s[26:27], s[52:53]"); I("s_mov_b32 s54, 1409024"); I("s_cselect_b32 s54, 524288, s54"); I("s_mov_b32 s55, 0x20000")
        I(f"s_cselect_b32 {sT0}, 16, 43"); I(f"s_mul_i32 {sT1}, s2, {sT0}"); I(f"s_sub_u32 {sT0}, {sT0}, 1"); I(f"v_min_u32 v76, {sT0}, {vLANE}"); I(f"v_add_lshl_u32 v76, v76, {sT1}, 7")
        VM("buffer_load_dword v77, v76, s[52:55], 0 offen", "mw")
        I("s_mov_b64 s[52:53], s[28:29]"); I(f"s_cmp_eq_u32 {sW_}, 3"); I("s_cselect_b32 s54, 524288, 0")
        VM("buffer_load_dword v77, v76, s[52:55], 0 offen", "mw")
    for s in range(4):
        E.wait(lg=f"xr{i}_{s}")
        for d in range(4):
            x = v(XF + 16*i + 4*s + d)
            I(f"v_dot2c_f32_bf16 v{64+d}, {sC11}, {x}"); I(f"v_dot2c_f32_bf16 v{68+d}, {x}, {x}")
    lstamp(f"X{i}")
csig("X"); gchk = {"S0": chk_issue(FR["r"], FR["t"], 16)}
I("v_add_f32 v64, v64, v65"); I("v_add_f32 v66, v66, v67"); I("v_add_f32 v68, v68, v69")
I("v_add_f32 v64, v64, v66"); I("v_add_f32 v70, v70, v71"); I("v_mov_b32 v65, v64"); I("v_add_f32 v68, v68, v70"); I("v_mov_b32 v69, v68")
I("v_permlane32_swap_b32 v64, v65"); I("v_permlane32_swap_b32 v68, v69")
I("v_add_f32 v64, v64, v65"); I("v_mul_f32 v64, 0x3b000000, v64")
runall(bf16r_ops(65, 64)); I(f"v_sub_f32 {v(vNM)}, 0, v65")
I(f"s_sub_u32 {sT0}, 65536, {sM4}")
for s in range(4): I(f"v_add_u32 {v(vP1[s])}, {sT0}, {v(vP1[s])}")
win = {"p1": 65536, "c1": 0, "gt": 0, "lin": 0, "wt": 0}
def burst(i):
    for d in range(16):
        x = v(XF + 16*i + d)
        I(f"v_dot2_f32_bf16 v{32+2*d}, {x}, {sC10}, {v(vNM)}"); I(f"v_dot2_f32_bf16 v{33+2*d}, {x}, {sC01}, {v(vNM)}")
qC, qB = [], []
marks = set()
def run_op(op):
    if isinstance(op, tuple):
        if op[0] == "hold": holdq[0] = op[1]
        else: marks.add(op[1])
    elif isinstance(op, str): I(op)
    else: op()
def need_mark(m):
    while m not in marks:
        q = next(q for q in (qC, qB) if ("mark", m) in [o for o in q if isinstance(o, tuple)])
        run_op(q.pop(0))
def cvt_ops(i):
    ops = []
    for d in range(16):
        ops.append(f"v_cvt_pk_bf16_f32 {v(XF + 16*i + d)}, v{32+2*d}, v{33+2*d}")
        if d & 3 == 3: ops.append(("mark", f"cen{4*i + (d>>2)}"))
    return ops
B = ["v_add_f32 v68, v68, v69", "v_mul_f32 v68, 0x3b000000, v68", "v_fma_f32 v68, -v64, v64, v68", "v_max_f32 v68, 0, v68"]
B += bf16r_ops(68, 68) + ["v_add_f32 v68, 0x3727c5ac, v68"] + bf16r_ops(68, 68) + ["v_sqrt_f32 v68, v68", lambda: DS("ds_write_b32 v94, v65 offset:512", "tabw")]
B += bf16r_ops(68, 68) + ["v_rcp_f32 v68, v68", lambda: DS("ds_write_b32 v94, v68", "tabw"), f"v_mul_f32 {v(vR2)}, v68, v68", ("mark", "tab")]
qB.extend(B)

class Slot: pass
slots = []
def add_slot(chunk, reads, mfma, needs=()):
    s = Slot(); s.chunk, s.reads, s.mfma, s.needs = chunk, reads, mfma, needs; slots.append(s)
for i in range(8):
    for s in range(4):
        f = 4*i + s
        for comp in range(2):
            acc = v(ACC_I if comp else ACC_R, 16)
            add_slot(f"S{i}", [("p1", f"S{i}", s, comp * 4096)], lambda b, f=f, acc=acc: f"{MF} {acc}, {v(XF+4*f,4)}, {v(b[0],4)}, {acc if f else 0}", needs=[f"cen{f}"])
P2 = len(slots)
order = [(0, s, u, m) for s in range(4) for u in range(2) for m in range(2)] + [(0, s, 2, m) for s in range(4) for m in range(2)]
order += [(i, s, u, m) for i in range(1, 8 - NU) for s in range(4) for u in range(3) for m in range(2)]
order += [(i, s, u, m) for u in range(3) for i in range(8 - NU, 8) for s in range(4) for m in range(2)]
unit_done = {}
for (i, s, u, m) in order:
    f = 4*i + s; acc = v((ACCU if m else ACCG)[u], 16)
    nd = (["tab"] if f == 0 else []) + (["dumped"] if (f, u) == (0, 2) else [])
    add_slot(f"G{i}", [("gt", f"G{i}", m * 12288 + 16*s*192 + 64*u)], lambda b, f=f, acc=acc: f"{MF} {acc}, {v(b[0],4)}, {v(XF+4*f,4)}, {acc if f else 0}", needs=nd)
    unit_done[u] = len(slots) - 1
P3 = len(slots)
ACC3 = 32; BASE = 48
vHST = 138; vDSK = 140; vHR, vWT, vXR, vTAB3, vOUT = 128, 129, 130, 131, 132
sHG = ["s16", "s17", "s18"]
EPO = 144; vC1 = [134, 135, 136, 137]; vC2 = [2, 3, 4, 5]
cGo = [128, 129, 130]; cCo = [132, 133, 134, 135]
ACC4 = 48; ACCS = [64, 80]
AQ = list(range(172, 256, 4)) + list(range(108, 128, 4))
BASE = 144; PX = 108
P3BUFS = list(range(8, 32, 4)) + [96, 100, 104]
vA = 139; vWT2 = 133; vA2 = 7; vPB = 0
aloads = []; started = set()
for n, (t, hv) in enumerate(jobs):
    if n == NJ1: P4 = len(slots)
    for s in range(4):
        idx = {}
        for h_ in hv: idx[h_] = len(aloads); aloads.append((f"a{len(aloads)}", AQ[len(aloads) % len(AQ)], t, s, h_, s == 0 and h_ == hv[0]))
        for a_ in range(2):
            rd = ("c1", t, s, a_) if t[0] == "C" else ("wt", t, 16*s*128, a_)
            for k_, h_ in enumerate(hv):
                r_ = ([ACC3, ACC4] if h_ == "k" else ACCS)[a_]; acc = v(r_, 16)
                z = r_ not in started; started.add(r_)
                tag, q = aloads[idx[h_]][:2]
                add_slot(f"J{n}", [rd] if k_ == 0 else [], lambda b, q=q, acc=acc, z=z: f"{MF} {acc}, {v(q,4)}, {v(b[0],4)}, {0 if z else acc}")
                slots[-1].atag = tag; slots[-1].arel = idx[h_] + 1 if a_ == 1 else None
M = len(slots)
first_slot = {}
for m, s in enumerate(slots): first_slot.setdefault(s.chunk, m)
pool = [FB0 + 4*k for k in range(NFB)]
def newfb(): return pool.pop(0)
def set_win(kind, regs, base, span):
    cur = win[kind]
    if not (cur <= base and base + span <= cur + 65536):
        new = min((base // 49152) * 49152, MISC - 65536)
        if not (new <= base and base + span <= new + 65536): new = base
        for r in regs: I(f"v_add_u32 {v(r)}, {(new - cur) & 0xffffffff}, {v(r)}")
        win[kind] = cur = new
    return cur
def emit_reads(m):
    s = slots[m]; s.bufs = []; s.tags = []; s.own = bool(s.reads)
    if not s.reads: s.bufs = slots[m-1].bufs
    for rd in s.reads:
        b = newfb(); s.bufs.append(b); tag = f"rd{m}_{rd[0]}"; s.tags.append(tag)
        kind, it = rd[0], items[rd[1]]
        if kind == "p1":
            w = set_win(kind, vP1, it.base, it.size); DS(f"ds_read_b128 {v(b,4)}, {v(vP1[rd[2]])} offset:{it.base - w + rd[3]}", tag)
        elif kind == "c1":
            w = set_win(kind, vC1 + vC2, it.base, it.size); DS(f"ds_read_b128 {v(b,4)}, {v((vC2 if rd[3] else vC1)[rd[2]])} offset:{it.base - w}", tag)
        else:
            regs, pitch = ([vGT], 192) if kind == "gt" else ([vWT, vWT2], 128)
            reg = regs[rd[3]] if kind == "wt" else vGT
            w = set_win(kind, regs, it.base, it.size)
            DS(f"ds_read_b64_tr_b16 {v(b,2)}, {v(reg)} offset:{it.base - w + rd[2]}", tag)
            DS(f"ds_read_b64_tr_b16 {v(b+2,2)}, {v(reg)} offset:{it.base - w + rd[2] + 4*pitch}", tag)
        note_read(it.name)
events = {}
def at(m, fn): events.setdefault(m, []).append(fn)
post = {8*i + 7: (lambda i=i: (need_mark(f"cen{4*i+7}"), burst(i + 2), qC.extend(cvt_ops(i + 2)))) for i in range(6)}
at(52, lambda: qB.extend([f"v_lshlrev_b32 {v(vNM)}, 6, {vLANE}", f"v_bfe_u32 v64, {vLANE}, 1, 2", f"v_lshl_add_u32 {v(vNM)}, v64, 4, {v(vNM)}",
                          f"v_add_u32 {v(vNM)}, {sM4}, {v(vNM)}", f"v_add_u32 {v(vNM)}, {DUMPS[1]}, {v(vNM)}", ("mark", "dadr")]))
dtag = {}
at(P2 - 1, lambda: dtag.__setitem__(0, chk_issue(FR["r"], FR["t"], 0)))
def dump_op(j, comp):
    need_mark("dadr")
    if (j, comp) == (0, 1): chk_test(dtag[0], PCV["S5"], FR["r"], FR["t"], 0, -12)
    if j and comp == 0: I(f"v_xor_b32 {v(vNM)}, {16 * (j ^ (j - 1))}, {v(vNM)}")
    DS(f"ds_write_b128 {v(vNM)}, {v((ACC_I if comp else ACC_R) + 4*j, 4)} offset:{DUMPS[comp] - DUMPS[1]}", "dump")
    if (j, comp) == (3, 1): marks.add("dumped")
def dump64(j, comp, hf):
    need_mark("dadr")
    if j and comp == 0 and hf == 0: I(f"v_xor_b32 {v(vNM)}, {16 * (j ^ (j - 1))}, {v(vNM)}")
    if comp == 0 and hf == 0: I(f"v_add_u32 {v(vP1[1])}, {DUMPS[0]}, {v(vNM)}")
    DS(f"ds_write_b64 {v(vNM if comp else vP1[1])}, {v((ACC_I if comp else ACC_R) + 4*j + 2*hf, 2)} offset:{8*hf}", "dump")
    if (j, comp, hf) == (3, 1, 1): marks.add("dumped")
if OPT["d64"]:
    for k in range(16): at(P2 + (k * 15) // 16, lambda k=k: dump64(k >> 2, (k >> 1) & 1, k & 1))
else:
    for k in range(8): at(P2 + 1 + (k * OPT["dsp"]) // 2, lambda k=k: dump_op(k >> 1, k & 1))
def fr_move():
    I(f"v_mov_b32 {v(vP1[0])}, v72"); I(f"v_mov_b32 {v(vP1[3])}, v75"); FR.update(r=vP1[0], t=vP1[1], v=vP1[2], w=vP1[3])
at(P2 - 2, fr_move)
if OPT["mw"]: at(P2 - 3, lambda: E.wait(vm="mw"))
at(31, lambda: csig("S3")); at(47, lambda: csig("S5"))
at(P2 + OPT["bd"], lambda: (need_mark("dumped"), E.wait(lg=["dump", "tabw"]), csig("dump")))
LAND = {"G2": ["G4"], "G3": ["G5"], "G4": ["G6", "G7"]} if OPT["gsl"] else {"G2": ["G4"], "G3": ["G5", "G6"], "G4": ["G7"]}
for st, sl in CEV.items(): at(P2 + sl, lambda st=st: (E.wait(vm=LAND.get(st, []), lg=["cof2"] if st == "G1" else []), csig(st)))
GATE = {c: (16, PHV[c]) for c in CHUNKS[:8]}
GATE["S0"] = (16, PHV["S2"]); GATE["S4"] = (16, PHV["S6"])
GATE.update({"G4": (0, PCV["G2"]), "G5": (0, PCV["G3"]), "G6": (0, PCV["G4"])})
del GATE["S2"], GATE["S6"]
for c in list(GATE)[1:]: at(first_slot[c] - OPT["D"] - 6, lambda c=c: gchk.__setitem__(c, chk_issue(FR["r"], FR["t"], GATE[c][0])))
cplaced = []
cWo = [168, 169, 170, 171]
def c_offsets():
    I(f"s_lshl_b32 {sT0}, {sW_}, 11"); I(f"s_add_u32 {sT0}, {sT0}, {HS}"); I(f"v_lshl_add_u32 v136, {vLANE}, 4, {sT0}")
    DS("ds_read_b128 v[128:131], v136", "cof"); note_read("OFT")
at(P2 + 24, c_offsets)
at(P2 + 45, lambda: (DS("ds_read_b128 v[132:135], v136 offset:1024", "cof2"), note_read("OFT")))
at(P2 + 76, lambda: qB.extend([lambda: E.wait(lg="cof2"), f"v_readfirstlane_b32 {sNON}, v135", "v_mov_b32 v168, v134"] + [f"v_add_u32 v{168+q}, {7168*q}, v134" for q in range(1, 4)]
                              + ["v_add_u32 v134, 14336, v132", "v_add_u32 v135, 14336, v133"] + q_setup() + [("mark", "cw")]))
def c_load(name, ta, step2, gate=None):
    k = name[0]; i = int(name[1:]); base = items[name].base
    tag = {}
    if gate:
        off, val = (0, PCV[gate]) if gate in PCV else (32, gate)
        at(P2 + ta - 6, lambda: tag.__setitem__(0, chk_issue(FR["r"], 137, off)))
    n = 6 if k == "G" else 4
    for q in range(n):
        def op(q=q):
            if q == 0:
                E.wait(lg="cof")
                if gate: chk_test(tag[0], val, FR["r"], 137, off, -(13 + len(cplaced))); cknown.append(("PC" if off == 0 else "PD", val))
                cplaced.append((name, list(cknown)))
            if k == "G":
                if q % 3 == 0:
                    I(f"s_add_u32 m0, {sM6}, {base + 1024*q}")
                    I(f"s_mul_i32 {sSO}, {sK[i]}, 1376" if q == 0 else f"s_add_u32 {sSO}, {sSO}, {16*2752}")
                VM(f"buffer_load_dwordx4 {v(cGo[q%3])}, {SG}, {sSO} offen" + (f" offset:{(q%3)*1024}" if q % 3 else "") + " lds", name)
            else:
                if q == 0:
                    need_mark("cw"); I(f"s_add_u32 m0, {sM4}, {base}")
                    if k == "C": q_h(sSO, i); I(f"s_lshl_b32 {sSO}, {sSO}, 7")
                    else: w_soff(sSO, i, "s19")
                VM(f"buffer_load_dwordx4 {v((cCo if k == 'C' else cWo)[q])}, {SC if k == 'C' else SWD}, {sSO} offen" + (f" offset:{q*1024}" if q else "") + " lds", name)
        at(P2 + ta + (q * step2) // 2, op)
cknown = []
if OPT["gsl"]:
    c_load("G4", 34, 6, "G0"); c_load("G5", 56, 6, "G1"); c_load("G6", 74, 6); c_load("G7", 92, 6); c_load("C1", 110, 5)
    c_load("C2", 120, 5); c_load("C3", 130, 5)
else:
    c_load("G4", 37, 5, "G0"); c_load("G6", 52, 4); c_load("G5", 64, 4, "G1"); c_load("G7", 77, 5); c_load("C1", 93, 4)
    c_load("C2", OPT["c1"], 4); c_load("C3", OPT["c1"] + 8, 4)
if OPT["wl"] < 3: c_load("W1", 141, 4)
if OPT["wl"] < 2: c_load("W2", 156, 3, "G5"); c_load("W3", 162, 3)
def st_addr():
    o = [f"s_lshl2_add_u32 {sT0}, {sC_}, {sW_}", f"s_mul_i32 {sT0}, {sT0}, {160*1024}", f"v_lshl_add_u32 {v(vHST)}, {vLANE}, 4, {sT0}", f"s_lshl_b32 {sT0}, {sGL}, 11", f"s_add_u32 {sT0}, {sT0}, {sRA}"]
    o += [f"s_add_u32 {sHG[uu]}, {sT0}, {8*uu*2048}" for uu in range(3)]
    if OPT["skp"]:
        o += [lambda: (I(f"s_cmp_eq_u32 {sGL}, 7"), I(f"s_cselect_b32 {sHG[1]}, 0x40000000, {sHG[1]}"), I(f"s_cselect_b32 {sHG[2]}, 0x40000000, {sHG[2]}")),
              lambda: (I(f"s_cmp_eq_u32 {sG_}, 15"), I(f"s_cselect_b32 {sHG[0]}, 0x40000000, {sHG[0]}"))]
    o += [f"s_and_b32 {sT1}, {sW_}, 1", f"s_lshr_b32 {sT2}, {sW_}, 1", f"s_lshl1_add_u32 {sT0}, {sC_}, {sGH}", f"s_lshl1_add_u32 {sT0}, {sT0}, {sT2}",
          f"s_mul_i32 {sT0}, {sT0}, {160*1024}", f"s_lshl_b32 {sT3}, {sT1}, 12", f"s_add_u32 {sT0}, {sT0}, {sT3}", f"v_lshl_add_u32 {v(vA)}, {vLANE}, 4, {sT0}",
          f"v_lshlrev_b32 {v(vDSK)}, 16, v131",
          f"s_mul_i32 {sT0}, {sGH}, {4*160*1024}", f"s_sub_u32 {sT0}, {2*160*1024}, {sT0}", f"v_add_u32 {v(vA2)}, {sT0}, {v(vA)}",
          f"s_lshl_b32 s54, {sGH}, 1", "s_or_b32 s54, s54, 40", f"s_mul_i32 s54, s54, {sT1}", ("mark", "sta1")]
    return o
def st_addr2():
    o = [f"s_and_b32 {sT1}, {sW_}, 1", f"s_lshr_b32 {sT2}, {sW_}, 1", f"v_lshrrev_b32 v141, 5, {vLANE}", f"v_and_b32 v143, 31, {vLANE}"]
    o += [f"s_lshl1_add_u32 {sT3}, {sGL}, {sT1}"]
    o += [f"s_lshl_b32 {sT3}, {sT3}, 7", f"s_lshl1_add_u32 {sT0}, {sGH}, {sT2}", f"s_lshl2_add_u32 s13, {sC_}, {sT0}", "s_lshl_b32 s13, s13, 16", f"s_add_u32 s13, s13, {sT3}",
          "v_lshlrev_b32 v142, 15, v141", "v_lshl_add_u32 v142, v143, 2, v142", f"v_add_u32 {v(vOUT)}, s13, v142"]
    o += [f"s_lshl_b32 {sT0}, {sT0}, 7", f"s_add_u32 {sT0}, {sT0}, {RTAB}", f"v_lshl_add_u32 {v(vTAB3)}, v141, 6, {sT0}",
          f"s_lshl_b32 {sT0}, {sT1}, 6", f"s_lshl_b32 {sT3}, {sT2}, 12", f"s_add_u32 {sT3}, {sT3}, {sT0}", f"s_add_u32 {sT3}, {sT3}, {XE}",
          "v_lshlrev_b32 v142, 11, v141", "v_lshl_add_u32 v142, v143, 1, v142", f"v_add_u32 {v(vXR)}, {sT3}, v142",
          f"s_lshl_b32 {sT3}, {sW_}, 12", f"s_add_u32 {sT3}, {sT3}, {RED}", f"v_lshl_add_u32 {v(vHR)}, {vLANE}, 4, {sT3}"]
    o += [f"v_bfe_u32 v142, {vLANE}, 2, 2", "v_lshl_add_u32 v142, v141, 3, v142", "v_lshlrev_b32 v142, 7, v142",
          f"v_and_b32 v6, 16, {vLANE}", "v_lshl_add_u32 v142, v6, 1, v142", f"v_and_b32 v6, 3, {vLANE}", "v_lshl_add_u32 v142, v6, 3, v142",
          f"v_and_b32 v6, 8, {vLANE}", "v_lshlrev_b32 v6, 3, v6", f"v_xor_b32 v6, {sT0}, v6", f"s_lshl_b32 {sT3}, {sT1}, 13", f"v_add3_u32 {v(vWT)}, v142, v6, {sT3}", f"v_xor_b32 {v(vWT2)}, 64, {v(vWT)}"]
    o += [f"s_mul_i32 {sT0}, {sT1}, 12288", "v_bfe_u32 v142, v143, 1, 3", "v_xor_b32 v142, v142, v141", "v_lshlrev_b32 v142, 4, v142", "v_lshl_add_u32 v142, v143, 7, v142",
          f"v_add_u32 {v(vC1[0])}, {sT0}, v142"] + [f"v_xor_b32 {v(vC1[s])}, {32*s}, {v(vC1[0])}" for s in range(1, 4)] + [f"v_xor_b32 {v(vC2[s])}, 4096, {v(vC1[s])}" for s in range(4)] + [("mark", "sta")]
    return o
at(P2 + 120, lambda: qB.extend(st_addr()))
def glu_epi(u):
    ops = []; o = EPO + 8*u
    for j in range(8):
        g0, u0 = ACCG[u] + 2*j, ACCU[u] + 2*j
        ops += [f"v_mul_f32 {v(u0)}, {v(vR2)}, {v(u0)}", f"v_mul_f32 {v(u0+1)}, {v(vR2)}, {v(u0+1)}",
                f"v_mul_f32 {v(u0)}, {v(g0)}, {v(u0)}", f"v_mul_f32 {v(u0+1)}, {v(g0+1)}, {v(u0+1)}", f"v_cvt_pk_bf16_f32 {v(o+j)}, {v(u0)}, {v(u0+1)}"]
        if j & 3 == 3:
            ops.append(lambda fr=j >> 2: VM(f"buffer_store_dwordx4 {v(o + 4*fr, 4)}, {v(vHST)}, {SWS}, {sHG[u]} offen offset:{fr*1024}" + STP, "gst" if u == 2 else "gsa"))
    return ops + [("mark", f"epi{u}")]
for u in range(2): at(unit_done[u] + 3, lambda u=u: qB.extend(glu_epi(u)))
def base_ops():
    ops = [f"v_mov_b32 {v(BASE+r)}, 0" for r in range(16)]
    def rdx(r): DS(f"ds_read_u16_d16_hi {v(BASE+r)}, {v(vXR)} offset:{128*r}", f"xe{r}"); note_read("XE")
    ops += [lambda r=r: rdx(r) for r in range(16)]
    R3, M3, t0, t1, p = 160, 164, 168, 169, 170
    rnd = [f"v_cvt_pk_bf16_f32 {v(p)}, {v(t0)}, {v(t1)}", f"v_lshlrev_b32 {v(t0)}, 16, {v(p)}", f"v_and_b32 {v(t1)}, 0xffff0000, {v(p)}"]
    for j in range(4):
        ops += [lambda j=j: DS(f"ds_read_b128 {v(R3,4)}, {v(vTAB3)} offset:{16*j}", f"r3{j}"), lambda j=j: DS(f"ds_read_b128 {v(M3,4)}, {v(vTAB3)} offset:{512+16*j}", f"m3{j}"),
                ("hold", 3), lambda j=j: E.wait(lg=f"m3{j}")]
        for e in (0, 2):
            r = 4*j + e
            ops += [f"v_sub_f32 {v(t0)}, {v(BASE+r)}, {v(M3+e)}", f"v_sub_f32 {v(t1)}, {v(BASE+r+1)}, {v(M3+1+e)}"] + rnd
            ops += [f"v_mul_f32 {v(t0)}, {v(t0)}, {v(R3+e)}", f"v_mul_f32 {v(t1)}, {v(t1)}, {v(R3+1+e)}"] + rnd
            ops += [f"v_mul_f32 {v(t0)}, {v(t0)}, {v(vDSK)}", f"v_mul_f32 {v(t1)}, {v(t1)}, {v(vDSK)}"] + rnd
            ops += [f"v_add_f32 {v(BASE+r)}, {v(BASE+r)}, {v(t0)}", f"v_add_f32 {v(BASE+r+1)}, {v(BASE+r+1)}, {v(t1)}"]
    return ops + [("mark", "base")]
holdq = [0]

def segment(lo, hi, Dof, lim, pre_bar):
    rn = lo; held = []
    for m in range(lo - 1, hi):
        c0 = E.count + E.nops
        if m >= lo:
            s = slots[m]
            for n in s.needs: need_mark(n)
            tags = list(s.tags)
            if m % 2 == 0 and m + 1 < hi: tags += slots[m+1].tags
            E.wait(vm=[s.atag] if m >= P3 else [], lg=tags)
            I(s.mfma(s.bufs)); c0 = E.count + E.nops
            if s.own: pool.extend(held); held = list(s.bufs)
            if m >= P3:
                if s.arel: adone[0] = max(adone[0], s.arel)
                a_issue(OPT["ar"])
            if first_slot[s.chunk] == m and m < P3: lstamp(s.chunk)
            if OPT["lst"] == 9 and m >= P2 + OPT["l0"] and (m - P2 - OPT["l0"]) % OPT["ld"] == 0: LSET["C"].append(f"m{m-P2}"); lstamp(f"m{m-P2}")
            for fn in events.get(m, []): fn()
        nr = 0
        while rn < hi and rn <= m + Dof(m) and len(pool) >= len(slots[rn].reads) and (nr < 2 or m < lo):
            ch = slots[rn].chunk
            if first_slot[ch] == rn:
                if pre_bar: pre_bar(ch)
                if ch in GATE:
                    chk_test(gchk[ch], GATE[ch][1], FR["r"], FR["t"], GATE[ch][0], -(list(GATE).index(ch) + 1))
                    cknown.append(("PC" if GATE[ch][0] == 0 else "PH", GATE[ch][1]))
            emit_reads(rn); rn += 1; nr += 1
        assert rn >= min(hi, m + 3), (m, rn)
        if m >= lo:
            n = 0
            while qC and (n < 3 or isinstance(qC[0], tuple)): run_op(qC.pop(0)); n += 1
            if holdq[0]: holdq[0] -= 1
            while qB and not holdq[0] and (E.count + E.nops - c0 < lim - (m & 1) or isinstance(qB[0], tuple)): run_op(qB.pop(0))
            if m in post: post[m]()
    pool.extend(held)
retired = set()
def D2(m): return OPT["D"]
anext = [0]; aok = {"C": False, "W": False, "L": False}; adone = [0]
def a_issue(n):
    while n > 0 and anext[0] < len(aloads):
        tag, q, t, s_, h_, first = aloads[anext[0]]
        if not aok["L" if t in ("W4", "W5") else t[0]] or anext[0] - adone[0] >= min(len(AQ), OPT["al"]): return
        if first:
            i = int(t[1:])
            if t[0] == "C": q_h(sSO, i); I(f"s_lshl_b32 {sSO}, {sSO}, 13")
            else:
                q_u(sSO, i)
                if OPT["skp"]: I(f"s_bitcmp1_b32 s54, {sSO}")
                I(f"s_lshl_b32 s19, {sSO}, 13") if False else None
                if OPT["skp"]: I("s_cselect_b32 s55, 0x40000000, 0")
                I(f"s_lshl_b32 {sSO}, {sSO}, 13"); I(f"s_add_u32 {sSO}, {sSO}, {sRA}")
                if OPT["skp"]: I(f"s_add_u32 s55, s55, {sSO}")
        VM(f"buffer_load_dwordx4 {v(q,4)}, {v(vA if h_ == 'k' else vA2)}, {SWS}, {'s55' if (OPT['skp'] and t[0] == 'W' and s_ >= 2) else sSO} offen" + (f" offset:{s_*1024}" if s_ else "") + [" sc1", "", " nt"][OPT["pll"]], tag)
        anext[0] += 1; n -= 1
if OPT["ea"]:
    etag = {}
    at(P2 + OPT["ea"] - 6, lambda: etag.__setitem__(0, chk_issue(FR["r"], FR["t"], 16)))
    at(P2 + OPT["ea"], lambda: (need_mark("sta1"), chk_test(etag[0], PHV["K0"], FR["r"], FR["t"], 16, -11), aok.__setitem__("C", True)))
    for m_ in range(OPT["ea"], 192): at(P2 + m_, lambda: a_issue(1) if anext[0] < 12 else None)
burst(0); runall([o for o in cvt_ops(0) if isinstance(o, str)]); marks.update(f"cen{k}" for k in range(4)); burst(1); qC.extend(cvt_ops(1))
segment(0, P3, D2, 6, None)
PBAR = {"J0": "P0", "J5" if OPT["wl"] < 3 else "J4": "P2", "J8": "P3", "J12": "P4"}
def p3bar(ch):
    if ch in PBAR: cbar("b" + PBAR[ch], vm=[{0: "W3", 2: "W1", 3: "C3"}[OPT["wl"]]])
    lstamp(ch)
for key, val, sl in (("W", "KA", OPT["ka"]), ("L", "KB", OPT["kb"])):
    tg = {}
    at(P3 + sl - 4, lambda tg=tg: tg.__setitem__(0, chk_issue(FR["r"], FR["t"], 16)))
    at(P3 + sl, lambda tg=tg, key=key, val=val: (chk_test(tg[0], PHV[val], FR["r"], FR["t"], 16, -(18 if key == "W" else 19)), aok.__setitem__(key, True), a_issue(OPT["ab"])))
lstamp("T"); csig("T")
need_mark("epi1")
if OPT["af"]: need_mark("sta1"); chk_spin(PHV["K0"], FR["r"], FR["t"], 16); aok["C"] = True; a_issue(OPT["af"])
qB.extend(glu_epi(2)); need_mark("epi2"); lstamp("e2")
pool[:] = P3BUFS
sa = st_addr2()
I(f"v_mov_b32 v106, {v(FR['r'])}"); I(f"v_mov_b32 v107, {v(FR['w'])}"); FR.update(r=106, w=107, t=104, v=105); P3BUFS.pop(); pool[:] = P3BUFS
if OPT["ord"] == 0:
    for op in sa: run_op(op)
if not OPT["ea"] and not OPT["af"]: chk_spin(PHV["K0"], FR["r"], FR["t"], 16); aok["C"] = True
lstamp("k0"); a_issue(OPT["a0"])
if OPT["ord"] == 1:
    for op in sa: run_op(op)
E.wait(vm="gsa"); csig("gsa"); lstamp("ga"); a_issue(12)
lstamp("K0")
qB.extend([f"s_lshl4_add_u32 {sT0}, {sC_}, {sG_}", f"s_lshl2_add_u32 {sT0}, {sT0}, {sW_}", f"s_lshl_b32 {sT0}, {sT0}, 12", f"s_add_u32 s20, {sT0}, {WS_PB}", f"s_xor_b32 s21, s20, {8 << 14}",
           "s_mov_b32 s16, 0x07060500", "s_mov_b32 s17, 0x07060501", "s_mov_b32 s18, 0x07060502", "s_mov_b32 s22, 0x07060503", "s_mov_b32 s23, 0x0c0c0400", "s_mov_b32 s53, 0x05040100", f"v_lshlrev_b32 {v(vPB)}, 4, {vLANE}"] + base_ops())
if OPT["gs"] < 0: E.wait(vm="gst"); csig("gst")
else: at(P3 + OPT["gs"], lambda: (E.wait(vm="gst"), csig("gst")))
def reduce_pair(own, other, bar):
    for j in range(4): DS(f"ds_write_b128 {v(vHR)}, {v(other+4*j,4)} offset:{1024*j}", "red" + bar)
    I(f"v_xor_b32 {v(FR['t'])}, 4096, {v(vHR)}")
    cbar(bar, lg=["red" + bar])
    for j in range(4): DS(f"ds_read_b128 {v(other+4*j,4)}, {v(FR['t'])} offset:{1024*j}", f"rr{j}")
if OPT["ovr"]:
    at(P4, lambda: (lstamp("snd"), need_mark("base")))
    for j in range(4): at(P4 + 1 + j // 2, lambda j=j: DS(f"ds_write_b128 {v(vHR)}, {v(ACCS[1]+4*j,4)} offset:{1024*j}", "redbR1"))
    def r1_mid():
        I(f"v_xor_b32 v170, 4096, {v(vHR)}"); I(f"v_mov_b32 v171, {sNON}")
        cbar("bR1", lg=["redbR1"])
        for j in range(4): DS(f"ds_read_b128 {v(ACCS[1]+4*j,4)}, v170 offset:{1024*j}", f"rq{j}")
    def r1_fin(j):
        E.wait(lg=f"rq{j}")
        for e in range(4): I(f"v_add_f32 {v(ACCS[0]+4*j+e)}, {v(ACCS[0]+4*j+e)}, {v(ACCS[1]+4*j+e)}")
        for e in range(4): I(f"v_perm_b32 {v(ACCS[0]+4*j+e)}, {v(ACCS[0]+4*j+e)}, v171, {['s16', 's17', 's18', 's22'][e]}")
        VM(f"buffer_store_dwordx4 {v(ACCS[0]+4*j,4)}, {v(vPB)}, {SWS}, s21 offen offset:{1024*j} sc1", "pst")
    at(P4 + 5, r1_mid)
    for j in range(4): at(P4 + 7 + j, lambda j=j: r1_fin(j))
else:
    segment(P3, P4, lambda m: OPT["D3"], 8, p3bar)
    lstamp("snd")
    need_mark("base")
    reduce_pair(ACCS[0], ACCS[1], "bR1")
    if OPT["pb16"]:
        for j in range(3): I(f"v_mov_b32 v{163+4*j}, {sNON}")
        I("v_mov_b32 v170, 0")
        for d in range(8):
            if d % 2 == 0: E.wait(lg=f"rr{d>>1}")
            for e in range(2): I(f"v_add_f32 {v(ACCS[0]+2*d+e)}, {v(ACCS[0]+2*d+e)}, {v(ACCS[1]+2*d+e)}")
            I(f"v_cvt_pk_bf16_f32 v{160 + 4*(d//3) + d%3}, {v(ACCS[0]+2*d)}, {v(ACCS[0]+2*d+1)}")
            if d in (2, 5, 7): VM(f"buffer_store_dwordx4 {v(160+4*(d//3),4)}, {v(vPB)}, {SWS}, s21 offen offset:{1024*(d//3)} sc1", "pst")
    else:
        I(f"v_mov_b32 v171, {sNON}")
        for j in range(4):
            E.wait(lg=f"rr{j}")
            for e in range(4): I(f"v_add_f32 {v(ACCS[0]+4*j+e)}, {v(ACCS[0]+4*j+e)}, {v(ACCS[1]+4*j+e)}")
            for e in range(4): I(f"v_perm_b32 {v(ACCS[0]+4*j+e)}, {v(ACCS[0]+4*j+e)}, v171, {['s16', 's17', 's18', 's22'][e]}")
            VM(f"buffer_store_dwordx4 {v(ACCS[0]+4*j,4)}, {v(vPB)}, {SWS}, s21 offen offset:{1024*j} sc1", "pst")
pl_ld = [f"buffer_load_dwordx4 {v(80+4*j,4)}, {v(vPB)}, {SWS}, s20 offen offset:{1024*j} sc1" for j in range(3 if OPT["pb16"] else 4)]
at(M - 1 - OPT["pl"], lambda: [VM(t_, "pld") for t_ in pl_ld])
segment(P3 if OPT["ovr"] else P4, M, lambda m: OPT["D3"], 8, p3bar)
assert not qC and not qB and anext[0] == len(aloads)
RT2 = jobs[10][0]; RED2 = slot_of[RT2] * 16384
I(f"v_add_u32 {v(vHR)}, {(RED2 - RED) & 0xffffffff}, {v(vHR)}")
reduce_pair(ACC3, ACC4, "bR2")
for r in range(16): I(f"v_add_f32 {v(ACC3+r)}, {v(ACC3+r)}, {v(BASE+r)}")
chkp = []
for j in range(4):
    b_ = 80 + 4*j
    chkp += [f"v_perm_b32 v65, v{b_+1}, v{b_}, s23", f"v_perm_b32 v66, v{b_+3}, v{b_+2}, s23", "v_perm_b32 v65, v66, v65, s53",
             "v_xor_b32 v64, v171, v65" if j == 0 else "v_xor_b32 v65, v171, v65"] + ([] if j == 0 else ["v_or_b32 v64, v64, v65"])
if OPT["pb16"]: chkp = ["v_xor_b32 v64, v171, v83", "v_xor_b32 v65, v171, v87", "v_xor_b32 v66, v171, v91", "v_or3_b32 v64, v64, v65, v66"]
chkp.append("v_cmp_ne_u32 vcc, 0, v64")
E.wait(vm="pld")
for c_ in chkp: I(c_)
I("s_cbranch_vccnz L_slow_p"); E.label("L_back_p"); lstamp("kp")
slow.extend(["L_slow_p:", ] + ["  " + t_ for t_ in pl_ld] + ["  s_waitcnt vmcnt(0)"] + ["  " + c_ for c_ in chkp] + spin_guard("L_back_p", -10) + ["  s_cbranch_vccnz L_slow_p", "  s_branch L_back_p"])
if OPT["pb16"]:
    I("s_mov_b32 s16, 0xffff0000")
    for d in range(8):
        q_ = 80 + 4*(d//3) + d % 3
        I(f"v_lshlrev_b32 v64, 16, v{q_}"); I(f"v_and_b32 v65, s16, v{q_}"); I(f"v_add_f32 {v(ACC3+2*d)}, {v(ACC3+2*d)}, v64"); I(f"v_add_f32 {v(ACC3+2*d+1)}, {v(ACC3+2*d+1)}, v65")
else:
    I("s_mov_b32 s16, 0xffffff00")
    for r in range(16): I(f"v_and_b32 {v(80+r)}, s16, {v(80+r)}"); I(f"v_add_f32 {v(ACC3+r)}, {v(ACC3+r)}, {v(80 + r)}")
lstamp("last")
for r in range(16):
    if r % 4 == 0: E.wait(lg=f"rr{r>>2}")
    I(f"v_add_f32 {v(ACC3+r)}, {v(ACC3+r)}, {v(ACC4+r)}")
    if r % 2 == 0: I(f"s_mov_b32 {sT0}, {(r>>1)*4096}")
    VM(f"buffer_store_dword {v(ACC3+r)}, {v(vOUT)}, {SOUT}, {sT0} offen offset:{(r&1)*2048}" + (" sc1" if OPT["osc"] else ""), "out")
dump_stamps("C")
I("s_endpgm")

E = EH
E.label("L_helper")
vSo = [2, 3]; vGo = [4, 5, 6]; vCo = [8, 9, 10, 11]; vWo = [12, 13, 14, 15]; vHo = 16; vXEo = [17, 18]
vFLS, vFLP, vPOLL, vFLX = 19, 20, 21, 7
vLR, vCR, vL16, vL128, vL256, vPQ = 22, 24, 26, 28, 30, 32
vE, vE2, vP = 34, 36, 38
vEQA, vEST, vEF, vEX, vZA, vHSW, vHSR, vHSTo, vDA, vTAB = 40, 41, 42, 44, 46, 47, 48, 49, 50, 54
TR, TI, RT, TMP = 96, 112, 128, 144
vF16, vF256 = 56, 58
vQR, vQT, vQV, vQW = 160, 161, 162, 163
vDB = 164; vUP = 76
live = [items[f"X{i}"] for i in range(4, 8)]
known = {id(EC): 0, id(EH): 0}
def hplace(name):
    it = items[name]
    for o in list(live):
        if o.base < it.base + it.size and it.base < o.base + o.size:
            assert known[id(o.reader)] >= o.last_read, ("WAR", name, o.name)
            live.remove(o)
    live.append(it); return it
def adv11(s): I(f"s_add_u32 {s}, {s}, 1"); I(f"s_cmp_eq_u32 {s}, 11"); I(f"s_cselect_b32 {s}, 0, {s}")
cur_m0 = [None]
SOFF = {"G": "s16", "C": "s17", "W": "s18"}
def item_ops(name):
    k = name.rstrip("0123456789"); i = int(name[len(k):] or 0)
    so = SOFF.get(k)
    srd_, sm, voffs, pol = {"S": (SS, sM2, vSo, ""), "G": (SG, sM6, vGo, ""), "C": (SC, sM4, vCo, ""), "H": (SWS, sM4, [vHo]*4, " sc1"),
                            "W": (SWD, sM4, vWo, ""), "HG": (SWS, sM4, [vHo]*4, " sc1"), "XE": (SX, sM2, vXEo, "")}[k]
    prep = {"G": lambda: I(f"s_mul_i32 {so}, {sK[i]}, 1376"), "C": lambda: (q_h(so, i), I(f"s_lshl_b32 {so}, {so}, 7")),
            "W": lambda: w_soff(so, i, sSO)}.get(k, lambda: None)
    if so is None: so = "0" if k == "XE" else sK[i]
    ops = []
    for half in range(2 if k == "G" else 1):
        for q in range(len(voffs)):
            def op(half=half, q=q):
                if name in RT_:
                    if q == 0: prep()
                    VM(f"buffer_load_dwordx4 {v(RT_[name] + 4*q, 4)}, {v(voffs[q])}, {srd_}, {so} offen" + (f" offset:{q*1024}" if q else ""), name)
                    return
                if (half, q) == (0, 0): hplace(name)
                m0 = (sm, items[name].base + 3072 * half)
                if cur_m0[0] != m0: I(f"s_add_u32 m0, {sm}, {m0[1]}"); cur_m0[0] = m0
                if (half, q) == (0, 0): prep()
                if (half, q) == (1, 0): I(f"s_add_u32 {so}, {so}, {16*2752}")
                VM(f"buffer_load_dwordx4 {v(voffs[q])}, {srd_}, {so} offen" + (f" offset:{q*1024}" if q else "") + f"{pol} lds", name)
            ops.append(op)
    last = ops[-1]
    ops[-1] = lambda: (last(), done_issue.__setitem__(name, True))
    return ops
done_issue = {}
def issue(name, between=lambda: None):
    for op in item_ops(name): op(); between()
def unpark(name):
    hplace(name); E.wait(vm=name)
    I(f"v_add_u32 {v(vUP+1)}, {items[name].base}, {v(vUP)}")
    for q in range(4): DS(f"ds_write_b128 {v(vUP+1)}, {v(RT_[name] + 4*q, 4)} offset:{q*1024}", "up" + name)
def issue_mix(miss, *hits):
    mo = item_ops(miss); ho = [op for h in hits for op in item_ops(h)]
    for k, op in enumerate(mo):
        op()
        for h in ho[k * len(ho) // len(mo):(k + 1) * len(ho) // len(mo)]: h()
def flag_send(so): VM(f"buffer_store_dword v61, {v(vFLS)}, {SWS}, {so} offen sc1", "flag")
MBOX = {"s20": WS_FH - WS_FH, "s21": WS_FG - WS_FH, "s19": WS_FP - WS_FH}
def poll_issue(so, tag): pass
def poll_check(so, tag, inc):
    E.wait_all(lg=True)
    I(f"s_cmp_lg_u32 {sW_}, 0"); I(f"s_cbranch_scc1 L_back_{tag}")
    E.begin_cond()
    E.label(f"L_poll_{tag}")
    I(f"s_load_dwordx8 s[40:47], s[72:73], {MBOX[so]} glc"); I(f"s_sub_u32 {sSP2}, {sSP2}, 8"); I("s_cbranch_scc1 L_end"); I("s_waitcnt lgkmcnt(0)")
    for k in range(4, 8): I(f"s_xor_b64 s[{32+2*k}:{33+2*k}], s[{32+2*k}:{33+2*k}], s[74:75]")
    for a_, b_ in ((40, 42), (44, 46), (40, 44)): I(f"s_or_b64 s[{a_}:{a_+1}], s[{a_}:{a_+1}], s[{b_}:{b_+1}]")
    I(f"s_cbranch_scc1 L_poll_{tag}")
    E.end_cond(); E.label(f"L_back_{tag}")
I(f"s_and_b32 {sT1}, {sW_}, 1"); I(f"s_lshl1_add_u32 {sT0}, {sG_}, {sT1}"); I(f"s_lshl_b32 {sT0}, {sT0}, 4")
I(f"v_add_lshl_u32 v84, v81, {sT0}, 10")
I(f"v_add_u32 {v(vSo[0])}, v84, v83"); I(f"v_add_u32 {v(vSo[1])}, v84, v85"); I(f"v_add_u32 {v(vSo[1])}, 7168, {v(vSo[1])}")
I(f"s_lshl_b32 {sM2}, {sW_}, 11")
E.wait_all(lg=True)
I(f"s_cmp_ge_u32 {sW_}, 2"); srd_sel(SS, 22, 24, 524288); srd_sel(SG, 36, 38, 1409024); srd_sel(SC, 26, 28, 524288)
issue("S0"); issue("S1"); E.barrier()
if OPT["prio"] == 2: I("s_setprio 1")
I(f"s_lshl2_add_u32 {sT0}, {sG_}, {sW_}"); I(f"s_lshl_b32 {sT0}, {sT0}, 3"); I(f"v_add_lshl_u32 v87, v82, {sT0}, 1")
VM("global_load_ushort v70, v87, s[30:31]", "par"); VM("global_load_ushort v71, v87, s[18:19]", "par"); VM("global_load_ushort v72, v87, s[20:21]", "par")
I(f"s_lshl1_add_u32 {sT0}, {sGL}, {sT1}"); I(f"s_lshl_b32 {sT0}, {sT0}, 5"); I(f"v_and_b32 v87, 31, {vLANE}"); I(f"v_add_lshl_u32 v87, v87, {sT0}, 1")
VM("global_load_ushort v7, v87, s[32:33]", "par")
srd(SDBG, 44, 256)
I(f"s_or_b32 {sT0}, s2, {sW_}"); I("s_cbranch_scc1 L_notag")
E.begin_cond()
I("s_or_b32 s13, s14, 1"); I("s_mul_i32 s13, s13, 0x9E3779B1"); I("v_mov_b32 v93, s13"); I("v_mov_b32 v94, 0"); I("s_mov_b64 exec, 1")
VM(f"buffer_store_dword v93, v94, {SDBG}, 0 offen sc1"); I("s_mov_b64 exec, -1")
E.end_cond(); E.label("L_notag")
for i in range(2, 8): ktab(i)
srd(SX, 16, 2097152); srd(SWD, 40, 1409024); srd(SWS, 46, WS_SIZE)
if OPT["sp"]:
    I(f"s_lshl4_add_u32 {sT0}, {sC_}, {sG_}"); I(f"s_lshl_b32 {sT0}, {sT0}, 7"); I(f"s_add_u32 {sT0}, {sT0}, {WS_FH}"); I(f"s_add_u32 s72, s46, {sT0}"); I("s_addc_u32 s73, s47, 0")
def warm():
    if not OPT["tw"]: return
    srd(SOUT, 42, 4194304)
    I("v_mov_b32 v92, 0"); I(f"s_lshl2_add_u32 {sT0}, {sC_}, {sW_}"); I(f"s_mul_i32 {sT0}, {sT0}, {160*1024}")
    I(f"s_lshr_b32 {sT2}, {sG_}, 1"); I(f"s_lshl_b32 {sT2}, {sT2}, 13"); I(f"s_add_u32 {sT0}, {sT0}, {sT2}"); I(f"s_and_b32 {sT2}, {sG_}, 1"); I(f"s_lshl_b32 {sT2}, {sT2}, 11"); I(f"s_add_u32 {sT0}, {sT0}, {sT2}")
    I(f"s_mov_b32 {sT2}, {WS_EB + 0x30000}"); I(f"s_lshl_b32 {sT3}, {sC_}, 18")
    I("s_mov_b64 exec, 1")
    for sr, so in ((SG, "0"), (SC, "0"), (SWD, "0"), (SWS, sT0), (SWS, sT2), (SOUT, sT3)):
        VM(f"buffer_load_dword v95, v92, {sr}, {so} offen sc1", "tw")
    I("s_mov_b64 exec, -1")
def setup1():
    I(f"s_mov_b32 {sSPIN}, 0"); I("s_mov_b32 s15, 0"); I(f"s_mul_i32 {sM6}, {sW_}, 6144")
    I(f"s_mul_i32 {sT0}, {sT1}, {32*2752}"); I(f"s_mul_i32 {sT2}, {sG_}, 192"); I(f"s_add_u32 {sT0}, {sT0}, {sT2}")
    if OPT["bal"]: I(f"s_lshl_b32 {sT2}, {sGH}, 7"); I(f"s_sub_u32 {sT0}, {sT0}, {sT2}")
    I(f"s_mul_i32 {sT2}, {sGL if OPT['bal'] else sG_}, 3"); I(f"s_mov_b32 {sT3}, 2752")
    I(f"v_mov_b32 v90, {OOB}")
    if OPT["bal"]: I(f"s_add_u32 {sT2}, {sT2}, {sGH}")
    for i in range(3):
        I(f"v_add_u32 v88, {64*i}, {vLANE}"); I("v_mul_u32_u24 v86, 43691, v88"); I("v_lshrrev_b32 v86, 19, v86")
        I("v_mul_u32_u24 v87, 12, v86"); I("v_sub_u32 v87, v88, v87")
        I(f"v_mul_lo_u32 v86, v86, {sT3}"); I("v_lshl_add_u32 v86, v87, 4, v86"); I(f"v_add_u32 v86, {sT0}, v86")
        I("v_lshrrev_b32 v87, 2, v87"); I(f"v_add_u32 v87, {sT2}, v87"); I(f"v_cmp_gt_u32 vcc, {22 if OPT['bal'] else 43}, v87")
        if i: I(f"v_subrev_u32 v86, {1024*i}, v86")
        I(f"v_cndmask_b32 {v(vGo[i])}, v90, v86, vcc")
    I(f"s_lshl2_add_u32 {sT0}, {sGL}, {sT1}"); I(f"s_lshl_b32 {sT2}, {sG_}, 1"); I(f"s_sub_u32 {sT0}, {sT0}, {sT2}"); I(f"s_lshl_b32 {sT0}, {sT0}, 14")
    I(f"v_add_u32 {v(vCo[0])}, {sT0}, {v(vSo[0])}"); I(f"v_add_u32 {v(vCo[1])}, {sT0}, {v(vSo[1])}")
    I(f"v_add_u32 {v(vCo[2])}, {2*7168}, {v(vCo[0])}"); I(f"v_add_u32 {v(vCo[3])}, {2*7168}, {v(vCo[1])}")

def setup1b():
    I(f"s_and_b32 {sT1}, {sW_}, 1")
    I("v_lshlrev_b32 v86, 4, v82"); I("v_lshl_add_u32 v86, v81, 10, v86"); I(f"v_and_b32 v87, 16, {vLANE}"); I("v_lshlrev_b32 v87, 2, v87"); I("v_xor_b32 v87, v86, v87")
    I(f"s_lshl_b32 {sT3}, {sGL}, 7"); I(f"v_add_u32 {v(vWo[0])}, {sT3}, v87")
    for q in range(1, 4): I(f"v_add_u32 {v(vWo[q])}, {7168*q}, {v(vWo[0])}")
    I(f"s_lshl1_add_u32 s13, {sC_}, {sGH}"); I(f"s_lshl2_add_u32 {sT0}, s13, {sW_}"); I(f"s_lshl_b32 {sT0}, {sT0}, 14"); I(f"s_add_u32 {sT0}, {sT0}, {sT3}")
    I(f"v_add_u32 {v(vXEo[0])}, {sT0}, v86"); I(f"v_add_u32 {v(vXEo[1])}, 7168, {v(vXEo[0])}")
    I(f"s_lshr_b32 {sT2}, {sW_}, 1"); I(f"s_lshl1_add_u32 {sT0}, s13, {sT2}"); I(f"s_mul_i32 {sT0}, {sT0}, {160*1024}"); I(f"s_lshl_b32 {sT3}, {sT1}, 12"); I(f"s_add_u32 {sT0}, {sT0}, {sT3}")
    I(f"v_lshl_add_u32 {v(vHo)}, {vLANE}, 4, {sT0}")
    I(f"s_cmp_eq_u32 {sW_}, 0"); I(f"s_cselect_b32 {sT2}, 8, 0"); I(f"v_cmp_gt_u32 vcc, {sT2}, {vLANE}")
    I(f"s_lshl1_add_u32 {sT0}, {sC_}, {sGH}"); I(f"s_lshl_b32 {sT0}, {sT0}, 10"); I(f"s_lshl2_add_u32 {sT3}, {sGL}, {sT0}"); I(f"v_lshl_add_u32 v86, {vLANE}, 7, {sT3}")
    I(f"v_cndmask_b32 {v(vFLS)}, v90, v86, vcc")
    I(f"s_mov_b32 s20, {WS_FH}"); I(f"s_mov_b32 s21, {WS_FG}")

def setup2():
    o = []
    A = o.append
    A(f"s_lshl_b32 {sT0}, {sW_}, 10"); A(f"s_add_u32 {sT0}, {sT0}, {EQ}"); A(f"v_lshl_add_u32 {v(vEQA)}, {vLANE}, 3, {sT0}")
    A("v_mov_b32 v88, 0"); A("v_mov_b32 v89, 0"); A(lambda: DS(f"ds_write_b64 {v(vEQA)}, v[88:89]", "eqz"))
    A(f"v_lshl_add_u32 {v(vZA)}, v82, 3, {sT0}")
    A(f"s_lshl_b32 {sT0}, {sW_}, 9"); A(f"v_lshlrev_b32 v86, 11, v81"); A("v_lshl_add_u32 v86, v82, 6, v86"); A("v_lshrrev_b32 v87, 1, v82")
    A("v_lshl_add_u32 v86, v87, 4, v86"); A(f"v_add_u32 {v(vDA)}, {sT0}, v86")
    for j in range(1, 4): A(f"v_xor_b32 {v(vDA+j)}, {16*j}, {v(vDA)}")
    for j in range(4): A(f"v_add_u32 {v(vDB+j)}, {DUMPS[1]}, {v(vDA+j)}")
    A(f"v_lshlrev_b32 {v(vTAB)}, 6, v81"); A(f"v_add_u32 {v(vTAB)}, {RTAB}, {v(vTAB)}")
    A(f"s_lshl_b32 {sT0}, {sG_}, 13"); A(f"s_lshl_b32 {sT2}, {sW_}, 7"); A(f"s_add_u32 {sT0}, {sT0}, {sT2}"); A(f"s_add_u32 {sT0}, {sT0}, {WS_EB}")
    A(f"v_lshl_add_u32 v86, v82, 4, {sT0}")
    A(f"s_lshl_b32 {sT2}, {sC_}, 9"); A(f"v_add_u32 {v(vEST)}, {sT2}, v86"); A(lambda: (I("v_cmp_eq_u32 vcc, 7, v81"), I(f"v_cndmask_b32 {v(vEST)}, v90, {v(vEST)}, vcc")))
    A(f"s_sub_u32 {sT2}, {sC_}, 16"); A(f"v_lshl_add_u32 v87, v81, 1, {sT2}")
    A(f"v_lshl_add_u32 {v(vEF)}, v87, 9, v86"); A(f"v_add_u32 {v(vEF+1)}, 512, {v(vEF)}")
    A(lambda: (I("v_cmp_le_i32 vcc, 0, v87"), I(f"v_cndmask_b32 {v(vEF)}, v90, {v(vEF)}, vcc"), I(f"v_cndmask_b32 {v(vEX)}, 0, -1, vcc")))
    A(lambda: (I("v_cmp_le_i32 vcc, -1, v87"), I(f"v_cndmask_b32 {v(vEF+1)}, v90, {v(vEF+1)}, vcc"), I(f"v_cndmask_b32 {v(vEX+1)}, 0, -1, vcc")))
    A(f"s_mul_i32 {sT0}, {sW_}, 2608"); A(f"s_add_u32 {sT0}, {sT0}, {HS}")
    A("v_mul_u32_u24 v86, 336, v82"); A("v_lshl_add_u32 v86, v81, 5, v86"); A(f"v_add_u32 {v(vHSW)}, {sT0}, v86")
    A(f"v_bfe_u32 v86, {vLANE}, 2, 2"); A("v_mul_u32_u24 v86, 336, v86"); A(f"v_and_b32 v87, 32, {vLANE}"); A("v_lshl_add_u32 v86, v87, 1, v86")
    A(f"v_and_b32 v87, 1, {vLANE}"); A("v_lshl_add_u32 v86, v87, 5, v86"); A(f"v_and_b32 v87, 16, {vLANE}"); A("v_add_u32 v86, v86, v87")
    A(f"v_and_b32 v87, 2, {vLANE}"); A("v_lshl_add_u32 v86, v87, 2, v86"); A(f"v_add_u32 {v(vHSR)}, {sT0}, v86")
    A(f"s_mul_i32 {sT0}, {sC_}, {4*160}"); A(f"s_lshr_b32 {sT2}, {sG_}, 1"); A(f"s_lshl3_add_u32 {sT0}, {sT2}, {sT0}"); A(f"s_and_b32 {sT2}, {sG_}, 1")
    A(f"s_lshl1_add_u32 {sT0}, {sT2}, {sT0}"); A(f"s_lshl_b32 {sT0}, {sT0}, 10"); A(f"s_lshl_b32 {sT2}, {sW_}, 9"); A(f"s_add_u32 {sT0}, {sT0}, {sT2}")
    A(f"v_lshrrev_b32 v86, 5, {vLANE}"); A(f"v_mul_u32_u24 v86, {160*1024}, v86"); A(f"v_and_b32 v87, 31, {vLANE}"); A("v_lshl_add_u32 v86, v87, 4, v86"); A(f"v_add_u32 {v(vHSTo)}, {sT0}, v86")
    LOG2E = "0x3fb8aa3b"
    A(lambda: E.wait(vm="par"))
    o += ["v_lshlrev_b32 v70, 16, v70", "v_lshlrev_b32 v71, 16, v71", "v_lshlrev_b32 v72, 16, v72",
          f"v_mul_f32 v70, {LOG2E}, v70", "v_exp_f32 v70, v70", "v_mul_f32 v74, v71, v71"] + bf16r_ops(70, 70)
    o += ["v_mul_f32 v75, v70, v71", "v_mul_f32 v76, v70, v72", f"v_mul_f32 v75, {LOG2E}, v75", "v_exp_f32 v75, v75",
          "v_mul_f32 v76, 0.15915494, v76", "v_rndne_f32 v77, v76", "v_sub_f32 v76, v76, v77", "v_cos_f32 v77, v76", "v_sin_f32 v78, v76",
          "v_fmac_f32 v74, v72, v72", f"v_mul_f32 {v(vLR)}, v75, v77", "v_mul_f32 v78, v75, v78", "v_rcp_f32 v74, v74",
          f"v_add_f32 v77, -1.0, {v(vLR)}", "v_add_f32 v74, v74, v74",
          f"v_mul_f32 {v(vCR)}, v77, v71", f"v_fmac_f32 {v(vCR)}, v78, v72", f"v_mul_f32 {v(vCR)}, {v(vCR)}, v74",
          f"v_mul_f32 {v(vCR+1)}, v77, v72", f"v_fma_f32 {v(vCR+1)}, -v78, v71, {v(vCR+1)}", f"v_mul_f32 {v(vCR+1)}, {v(vCR+1)}, v74",
          f"v_sub_f32 {v(vLR+1)}, 0, v78"]
    o += csq_ops(70, vLR, 78) + csq_ops(72, 70, 78) + csq_ops(70, 72, 78) + csq_ops(vL16, 70, 78)
    o += csq_ops(70, vL16, 78) + csq_ops(72, 70, 78) + csq_ops(vL128, 72, 78) + csq_ops(vL256, vL128, 78)
    o += [f"v_mov_b32 {v(vPQ)}, {v(vCR)}", f"v_mov_b32 {v(vPQ+1)}, {v(vCR+1)}"]
    for bit, L in ((8, vL16), (16, 70), (32, 72)):
        o += [f"v_and_b32 v74, {bit}, {vLANE}", lambda L=L: (I("v_cmp_ne_u32 vcc, 0, v74"), I(f"v_cndmask_b32 v76, 1.0, {v(L)}, vcc"), I(f"v_cndmask_b32 v77, 0, {v(L+1)}, vcc"))]
        o += cmul_ops(vPQ, vPQ, 76, 78)
    def factor(F, Ls):
        r = []
        for n, (bit, L) in enumerate(zip((8, 16, 32), Ls)):
            d = F if n == 0 else 76
            r += [f"v_and_b32 v74, {bit}, {vLANE}", lambda L=L, d=d: (I("v_cmp_eq_u32 vcc, 0, v74"), I(f"v_cndmask_b32 {v(d)}, 1.0, {v(L)}, vcc"), I(f"v_cndmask_b32 {v(d+1)}, 0, {v(L+1)}, vcc"))]
            if n: r += cmul_ops(F, F, 76, 78)
        return r
    o += factor(vF16, (vL16, 70, 72))
    o += csq_ops(70, vL256, 78) + csq_ops(72, 70, 78) + factor(vF256, (vL256, 70, 72))
    return o
def allsum(a_, b_, t):
    o = [f"v_add_f32_dpp {v(t)}, {v(a_)}, {v(a_)} row_ror:8 row_mask:0xf bank_mask:0xf", f"v_add_f32_dpp {v(t+1)}, {v(b_)}, {v(b_)} row_ror:8 row_mask:0xf bank_mask:0xf",
         f"v_mov_b32 {v(a_)}, {v(t)}", f"v_mov_b32 {v(b_)}, {v(t+1)}",
         f"v_permlane16_swap_b32 {v(a_)}, {v(t)}", f"v_permlane16_swap_b32 {v(b_)}, {v(t+1)}",
         f"v_add_f32 {v(a_)}, {v(a_)}, {v(t)}", f"v_add_f32 {v(b_)}, {v(b_)}, {v(t+1)}",
         f"v_mov_b32 {v(t)}, {v(a_)}", f"v_mov_b32 {v(t+1)}, {v(b_)}",
         f"v_permlane32_swap_b32 {v(a_)}, {v(t)}", f"v_permlane32_swap_b32 {v(b_)}, {v(t+1)}",
         f"v_add_f32 {v(a_)}, {v(a_)}, {v(t)}", f"v_add_f32 {v(b_)}, {v(b_)}, {v(t+1)}"]
    return o
def cmul4(d, x, y):
    return [f"v_mul_f32 {v(d[0])}, {v(x[0])}, {v(y)}", f"v_mul_f32 {v(d[1])}, {v(x[0])}, {v(y+1)}",
            f"v_fma_f32 {v(d[0])}, -{v(x[1])}, {v(y+1)}, {v(d[0])}", f"v_fmac_f32 {v(d[1])}, {v(x[1])}, {v(y)}"]
def ssm1():
    o = []
    def rdd(j, comp): DS(f"ds_read_b128 {v((TI if comp else TR) + 4*j, 4)}, {v(vDB+j)} offset:{DUMPS[comp] - DUMPS[1]}", f"dr{j}"); note_read(f"DUMP{comp}")
    for j in range(4):
        o += [lambda j=j: DS(f"ds_read_b128 {v(RT + 4*j, 4)}, {v(vTAB)} offset:{16*j}", f"dr{j}"), lambda j=j: rdd(j, 0), lambda j=j: rdd(j, 1)]
    cur, nx = (vE, vE + 1), (vE2, vE2 + 1)
    for r in range(16):
        if r % 4 == 0: o.append(lambda j=r >> 2: E.wait(lg=f"dr{j}"))
        o += [f"v_mul_f32 {v(TR+r)}, {v(TR+r)}, {v(RT+r)}", f"v_mul_f32_e64 {v(TI+r)}, -{v(TI+r)}, {v(RT+r)}"]
        if r == 0: src = (TR, TI)
        else:
            o += cfma_ops(nx, vLR, src, TR + r, TI + r); src = nx; cur, nx = nx, cur
    assert src == (vE2, vE2 + 1)
    o += cmul4((60, 62), src, vF16) + allsum(60, 62, 64)
    o.append(lambda: (VM(f"buffer_store_dwordx4 v[60:63], {v(vEST)}, {SWS}, 0 offen sc1", "est"), lstamp("epub")))
    return o
def window():
    o = [lambda: DS(f"ds_write_b64 {v(vEQA)}, {v(vE2,2)} offset:{7*64}", "eqw")]
    o += [lambda i=i: DS(f"ds_read_b64 {v(TMP+2*i,2)}, {v(vEQA)} offset:{64*i}", "eq") for i in range(7)]
    for r in range(16):
        o += [f"v_mul_f32 v72, {v(vCR+1)}, {v(TI+r)}", f"v_mul_f32 {v(TI+r)}, {v(vCR)}, {v(TI+r)}",
              f"v_fmac_f32 {v(TI+r)}, {v(vCR+1)}, {v(TR+r)}", f"v_fma_f32 {v(TR+r)}, {v(vCR)}, {v(TR+r)}, -v72"]
    o.append(lambda: E.wait(lg="eq"))
    src = (TMP, TMP + 1); pp = [(vE2, vE2 + 1), (vE, vE + 1)]
    for i in range(1, 7):
        d = pp[i & 1]; o += cfma_ops(d, vL16, src, TMP + 2*i, TMP + 2*i + 1); src = d
    return o + cmul4((vP, vP + 1), src, vCR)
def efetch_issue():
    VM(f"buffer_load_dwordx4 v[64:67], {v(vEF)}, {SWS}, 0 offen sc1", "ef"); VM(f"buffer_load_dwordx4 v[68:71], {v(vEF+1)}, {SWS}, 0 offen sc1", "ef")
def ssm3():
    chk = [f"v_xor_b32 v72, v65, {v(vEX)}", f"v_xor_b32 v73, v67, {v(vEX)}", f"v_xor_b32 v74, v69, {v(vEX+1)}", "v_or3_b32 v72, v72, v73, v74",
           f"v_xor_b32 v73, v71, {v(vEX+1)}", "v_or_b32 v72, v72, v73", "v_cmp_ne_u32 vcc, 0, v72"]
    def check():
        E.wait(vm="ef")
        for c in chk: I(c)
        I("s_cbranch_vccnz L_slow_e"); E.label("L_back_e"); lstamp("eok")
        slow.extend(["L_slow_e:",  f"  buffer_load_dwordx4 v[64:67], {v(vEF)}, {SWS}, 0 offen sc1", f"  buffer_load_dwordx4 v[68:71], {v(vEF+1)}, {SWS}, 0 offen sc1",
                     "  s_waitcnt vmcnt(0)"] + ["  " + c for c in chk] + spin_guard("L_back_e", 0x100) + ["  s_cbranch_vccnz L_slow_e", "  s_branch L_back_e"])
    o = [check] + cfma_ops((vE, vE + 1), vL128, (64, 66), 68, 70)
    o += cmul4((vE2, vE2 + 1), (vE, vE + 1), vF256) + allsum(vE2, vE2 + 1, 72)
    src = (vE2, vE2 + 1)
    o += cfma_ops((vE, vE + 1), vPQ, src, vP, vP + 1)
    src = (vE, vE + 1)
    for r in range(16):
        d = (TR + r, TI + r); o += cfma_ops(d, vLR, src, d[0], d[1]); src = d
        if r & 1: o += [f"v_cvt_pk_bf16_f32 {v(TMP + (r>>1))}, {v(TR+r-1)}, {v(TR+r)}", f"v_cvt_pk_bf16_f32 {v(TMP + 8 + (r>>1))}, {v(TI+r-1)}, {v(TI+r)}"]
    for comp in range(2):
        o += [lambda j=j, comp=comp: DS(f"ds_write_b128 {v(vHSW)}, {v(TMP + 8*comp + 4*j, 4)} offset:{16*j}", "hsw") for j in range(2)]
        for i in range(2):
            for ph in range(2):
                def rd(i=i, ph=ph, comp=comp):
                    DS(f"ds_read_b64_tr_b16 {v(RT + 8*comp + 4*i + 2*ph, 2)}, {v(vHSR)} offset:{4*ph*336 + 128*i}", f"hr{comp}{i}"); note_read("HS")
                o.append(rd)
    for comp in range(2):
        for i in range(2):
            def st(i=i, comp=comp):
                I(f"s_mov_b32 {sT0}, {2*i*160*1024 + comp*4096}"); E.wait(lg=f"hr{comp}{i}")
                VM(f"buffer_store_dwordx4 {v(RT + 8*comp + 4*i, 4)}, {v(vHSTo)}, {SWS}, {sT0} offen" + STP, "hst")
            o.append(st)
    o.append(lambda: lstamp("hst"))
    return o
work = []
def pop_work(n):
    while n > 0 and work: runall([work.pop(0)]); n -= 1
def between(n=8): return lambda: pop_work(n)
live.append(items["OFT"])
I(f"v_and_b32 {v(vQR)}, 3, {vLANE}"); I(f"v_lshlrev_b32 {v(vQR)}, 2, {v(vQR)}"); I(f"v_add_u32 {v(vQR)}, {PRG}, {v(vQR)}"); I(f"v_mov_b32 {v(vQV)}, 0")
I(f"s_lshl_b32 {sT0}, {sW_}, 2"); I(f"s_add_u32 {sT0}, {sT0}, {PRG}"); I(f"v_mov_b32 {v(vQW)}, {sT0}")
issue("S2"); issue("S3"); lstamp("b0")
def hchk(word, st):
    off = {"PC": 0, "PD": 32}[word]; val = PCV[st] if word == "PC" else st
    chk_spin(val, vQR, vQT, off)
    em, lg = signals[(word, val)]; known[id(em)] = max(known[id(em)], lg)
published = [0]
def pub(ch):
    assert PHV[ch] > published[0]
    E.wait(vm=[n for c in CHUNKS[published[0]:PHV[ch]] for n in chunk_items(c)]); signal("PH", PHV[ch], vQW, vQV, 16); published[0] = PHV[ch]
def auto_pub(lead):
    best = None
    for c in CHUNKS[published[0]:]:
        if all(n in E.vm and done_issue.get(n) and len(E.vm) - E.last(E.vm, n) >= lead for n in chunk_items(c)): best = c
        else: break
    if best: pub(best)
def s47():
    for n in ("S4", "S5", "S6", "S7"): issue(n)
if OPT["xi"] < 0: s47()
pub("S2")
setup1()
I(f"s_lshl_b32 {sT0}, {sW_}, 11"); I(f"s_add_u32 {sT0}, {sT0}, {HS}"); I(f"v_lshl_add_u32 v86, {vLANE}, 4, {sT0}")
E.wait(vm="par"); DS("ds_write_b128 v86, v[4:7]", "oft"); I("v_mov_b32 v92, v86"); E.wait(lg="oft")
if OPT["xi"] >= 0: hchk("PC", "Xi"); s47()
w2 = setup2(); runall(w2[:OPT["w2a"]])
hchk("PC", "X"); lstamp("xd")
I("v_mov_b32 v91, 0"); VM(f"buffer_load_dword {v(vPOLL)}, v91, {SDBG}, 0 offen sc1", "tag")
issue("G0"); pub("S6"); runall(w2[OPT["w2a"]:OPT["w2b"]]); issue("G1"); runall(w2[OPT["w2b"]:]); pub("G0"); hchk("PC", "S3"); issue("G2"); pub("G1"); issue("G3"); setup1b()
tag_check("H", vPOLL, 88)
I(f"s_mov_b32 s74, {sNON}"); I(f"s_mov_b32 s75, {sNON}")
runall([f"v_mov_b32 v61, {sNON}", f"v_mov_b32 v63, {sNON}", f"v_and_b32 {v(vEX)}, {sNON}, {v(vEX)}", f"v_and_b32 {v(vEX+1)}, {sNON}, {v(vEX+1)}",
        f"v_lshl_add_u32 {v(vUP)}, {vLANE}, 4, {sM4}"])
known[id(EC)] = max(known[id(EC)], signals[("PC", PCV["S5"])][1]); hplace("DUMP0"); hplace("DUMP1")
DS("ds_write_b64 v92, v[8:9] offset:1024", "oft"); DS("ds_write_b32 v92, v12 offset:1032", "oft"); DS("ds_write_b32 v92, v61 offset:1036", "oft")
runall(q_setup()); issue("C0"); issue("W0")
if OPT["w1e"]: issue("W4")
I(f"s_setprio {OPT['pb']}")
hchk("PC", "dump"); lstamp("bD")
ncp = [0]
def code_touch():
    ncp[0] += 1
    I("s_getpc_b64 s[54:55]"); E.label(f"L_pc{ncp[0]}")
    I(f"s_sub_u32 s54, s54, L_pc{ncp[0]}-{NAME}_kernel"); I("s_subb_u32 s55, s55, 0")
    I(f"s_and_b32 {sT0}, {sGL}, 3"); I("v_and_b32 v78, 0xfc, v0"); I(f"v_or_b32 v78, {sT0}, v78"); I("v_lshlrev_b32 v78, 7, v78")
    VM("global_load_dword v79, v78, s[54:55]", "code")
def pass2():
    t0 = OPT["bd"] + 2
    s1, wn, s3 = ssm1(), window(), ssm3()
    ins = []
    def spread(name, ta, tb, pre=None):
        holder = {}
        n = 6 if name[0] == "G" else 4
        for k in range(n):
            def f(k=k):
                if k == 0:
                    if pre: hchk(*pre)
                    holder["ops"] = item_ops(name)
                holder["ops"][k]()
            ins.append((ta + (tb - ta) * k / n, f))
    ins.append((OPT["pg2"], lambda: (E.wait(lg="dr3"), pub("G2")))); ins.append((48, lambda: pub("G3")))
    ins.sort(key=lambda x: x[0])
    t = [float(t0)]
    def cyc(): return E.nvec * OPT["vc"] / 10.0 + (E.count + E.nops - E.nvec) * 4.0
    def adv(c0): t[0] += (cyc() - c0) / 33.0
    def run(ops):
        for op in ops:
            while ins and ins[0][0] <= t[0]:
                c0 = cyc(); ins.pop(0)[1](); adv(c0)
            c0 = cyc(); runall([op]); adv(c0)
    def idle_until(tt):
        while ins and ins[0][0] <= tt: t[0] = max(t[0], ins[0][0]); ins.pop(0)[1]()
        t[0] = max(t[0], tt)
    run(s1); tpub = t[0]
    k = 0
    while k < len(wn) and t[0] < tpub + OPT["efd"]: run([wn[k]]); k += 1
    efetch_issue(); lstamp("ef"); tf = t[0]
    if OPT["cp"] & 1: code_touch()
    run(wn[k:]); hchk("PC", "G1"); hplace("HS")
    tc = t[0]
    I(f"s_setprio {OPT['pc']}"); run(s3); ts = t[0]; assert not ins
    E.wait(vm="hst"); signal("PD", 2, vQW, vQV, 32); hchk("PD", 2); flag_send("s20"); lstamp("hflag")
    if OPT.get("log"): print(f"helper est: epub {tpub:.0f} efetch {tf:.0f} check {tc:.0f} stores {ts:.0f}", file=sys.stderr)
pass2()
issue("XE")
if not OPT["w1e"]: issue("W4")
if OPT["cp"] & 2: code_touch()
pub("KX")
for name, kn in cplaced:
    save = dict(known); known.update({id(EC): 0, id(EH): 0})
    for w_, val in kn:
        em, lg = signals[(w_, val)]; known[id(em)] = max(known[id(em)], lg)
    hplace(name); done_issue[name] = True; known.update(save)
I(f"s_setprio {OPT['pd']}")
if OPT["ep"]:
    hchk("PC", "U0"); poll_issue("s20", "ph"); poll_check("s20", "ph", 0x10000); lstamp("okh"); pub("K0")
I(f"s_mov_b32 s19, {WS_FP}")
hchk("PC", "T"); lstamp("gT")
unpark("C0"); I("s_setprio 2")
hchk("PC", "gsa"); flag_send("s19"); lstamp("fa"); I(f"s_setprio {OPT['pd']}")
wl_ = list(("W1", "W2", "W3")[3 - OPT["wl"]:])
if OPT["u0"]: unpark("W0")
for k, bn in enumerate(bar_names[1:]):
    E.wait(vm={"bP3": ["W5"], "bP2": wl_}.get(bn, []), lg={"bP0": ["upC0"], "bP2": ["upW0"], "bP3": ["upW4"]}.get(bn, [])); E.barrier()
    known[id(EC)] = max(known[id(EC)], EC.barriers[k + 1][1])
    if bn == "bP0":
        poll_check("s19", "pa", 0x1); lstamp("oka"); pub("KA")
        I("s_setprio 2"); hchk("PC", "gst"); flag_send("s21"); I(f"s_setprio {OPT['pd']}")
        for n_ in wl_: issue(n_)
        if not OPT["u0"]: unpark("W0")
        poll_check("s21", "pg", 0x1000000); lstamp("okg"); pub("KB")
    if bn == "bP2": issue("W5"); unpark("W4")
    if bn == "bP3": assert known[id(EC)] >= min(items["C2"].last_read, 10**9)
    if bn == "bP4": assert known[id(EC)] >= items[RT2].last_read
assert len(EH.barriers) == len(EC.barriers)
dump_stamps("H")
E.label("L_end"); I("s_endpgm")

DOC = """; Fused LayerNorm + S5 scan + bilinear GLU, one launch, 256 workgroups (one per CU), written by dev/gen16.py.
;                        then the output GEMM for 128 rows x 64 columns over one half of K; the partner
;                        workgroup (c, g^8) holds the other half and the two swap 64x64 partial tiles.
;   waves 4-7 (helper):  LDS-DMA loads, exact chunked scan (local end states exchanged between row blocks),
;                        hand-off flags.  Every hand-off carries a per-launch tag published through d_debug.
"""
hdr = open("cdna_kernels/" + NAME + ".s.ref").read().split("; Override launch geometry")[0]
out = hdr
if OPT["lst"]: out += "; cstamps: " + " ".join(lnames["C"]) + "\n; hstamps: " + " ".join(lnames["H"]) + f"\n; rt: {OPT['rt']}\n"
out += f"; @launch grid=(256,1,1) block=(512,1,1) lds={LDS_BYTES}\n"
out += DOC
out += f'.amdgcn_target "amdgcn-amd-amdhsa--gfx950"\n.text\n.globl {NAME}_kernel\n.p2align 8\n.type {NAME}_kernel,@function\n'
kc = next(k for k, l in enumerate(EC.lines) if "v_and_b32 v90, 31" in l)
out += E0.text() + "\n".join(EC.lines[:kc]) + "\n  s_branch L_cmain\n" + EH.text() + "L_cmain:\n" + "\n".join(EC.lines[kc:]) + "\n" + "\n".join(slow) + "\n"
out += f"L_pad:\n.fill (37120 - (L_pad - {NAME}_kernel)) / 4, 4, 0xbf810000\n"
out += f""".section .rodata,"a"
.p2align 6
.amdhsa_kernel {NAME}_kernel
  .amdhsa_next_free_vgpr 256
  .amdhsa_next_free_sgpr 102
  .amdhsa_accum_offset 256
  .amdhsa_group_segment_fixed_size 0
  .amdhsa_kernarg_size 128
  .amdhsa_user_sgpr_count 2
  .amdhsa_user_sgpr_kernarg_segment_ptr 1
  .amdhsa_system_sgpr_workgroup_id_x 1
.end_amdhsa_kernel
"""
open(sys.argv[1], "w").write(out)
print(f"compute {EC.count}+{EC.nops} helper {EH.count}+{EH.nops} barriers {len(bar_names)}: {' '.join(bar_names)}", file=sys.stderr)
```
